```python
import torch

def _softmax(x, axis=-1):
    return torch.softmax(x, dim=axis)
def _gelu(x):
    return torch.nn.functional.gelu(x, approximate="tanh")
def _silu(x):
    return torch.nn.functional.silu(x)
def _sigmoid(x):
    return torch.sigmoid(x)
def _layernorm(x, axis=-1, eps=1e-5):
    m = x.mean(dim=axis, keepdim=True)
    v = x.var(dim=axis, keepdim=True, unbiased=False)
    return (x - m) / torch.sqrt(v + eps)
def _scatter_add(tgt, idx, src, axis=0):
    return tgt.clone().index_add_(axis, idx, src)
def _segment_sum(src, seg, n):
    out = torch.zeros((n,) + src.shape[1:], dtype=src.dtype)
    return out.index_add_(0, seg, src)
def _pad(x, pw):
    flat = tuple(v for pair in reversed(pw) for v in pair)
    return torch.nn.functional.pad(x, flat)

kernel_name = 'standalone__gqa_block_cached__near_ridge'

def setup_inputs():

    _w = (lambda a: (lambda t: t.to(torch.bfloat16) if t.is_floating_point() else t)(torch.as_tensor(a)))
    B, Sq, D = 16, 96, 576
    Hq, Hkv, Sk, Dh = 32, 16, 1024, 128
    assert Hq % Hkv == 0, (Hq, Hkv)
    return {
        "x": _w((lambda *s: torch.randn(*s, dtype=torch.bfloat16) * 0.8)(B, Sq, D)),
        "k_cache": _w((lambda *s: torch.randn(*s, dtype=torch.bfloat16) * 0.8)(B, Hkv, Sk, Dh)),
        "v_cache": _w((lambda *s: torch.randn(*s, dtype=torch.bfloat16) * 0.05)(B, Hkv, Sk, Dh)),
        "wq": _w((lambda *s: torch.randn(*s, dtype=torch.bfloat16) * 0.8)(D, Hq * Dh) * (D ** -0.5)),
        "wo": _w((lambda *s: torch.randn(*s, dtype=torch.bfloat16) * 0.05)(Hq * Dh, D) * ((Hq * Dh) ** -0.5)),
    }

def reference(x, k_cache, v_cache, wq, wo):
    B, Sq, D = x.shape
    Hq, Dh = 32, 128
    Hkv = k_cache.shape[1]
    rep = Hq // Hkv
    q = (lambda x, *d: x.permute(*d))((x @ wq).reshape(B, Sq, Hq, Dh), 0, 2, 1, 3)
    k = (lambda x, n, axis: torch.repeat_interleave(x, n, dim=axis))(k_cache, rep, axis=1)
    v = (lambda x, n, axis: torch.repeat_interleave(x, n, dim=axis))(v_cache, rep, axis=1)
    scores = torch.einsum("bhqd,bhkd->bhqk", q, k) * (Dh ** -0.5)
    p = _softmax(scores, axis=-1)
    o = torch.einsum("bhqk,bhkd->bhqd", p, v)
    return (lambda x, *d: x.permute(*d))(o, 0, 2, 1, 3).reshape(B, Sq, Hq * Dh) @ wo
```

```python
HEADER = """; Kernarg layout (64 bytes): 0 x | 8 k_cache | 16 v_cache | 24 wq | 32 wo | 40 out | 48 debug | 56 ws
"""

class Asm:
    def __init__(self):
        self.lines = []
        self._lab = 0
    def e(self, s=""):
        for l in s.split("\n"):
            l = l.strip()
            if not l: continue
            if l.endswith(":") or l.startswith("."): self.lines.append(l)
            else: self.lines.append("    " + l)
    def __call__(self, s): self.e(s)
    def label(self, base="L"):
        self._lab += 1
        return "%s_%d" % (base, self._lab)
    def text(self): return "\n".join(self.lines) + "\n"

def kernel_begin(name):
    return (".globl %s\n.p2align 8\n.type %s,@function\n%s:\n" % (name, name, name))

def kernel_desc(name, vgpr=256, sgpr=102, accum=None):
    if accum is None: accum = (min(vgpr, 256) + 3) // 4 * 4
    return """.amdhsa_kernel %s
  .amdhsa_next_free_vgpr %d
  .amdhsa_next_free_sgpr %d
  .amdhsa_accum_offset %d
  .amdhsa_group_segment_fixed_size 0
  .amdhsa_kernarg_size 64
  .amdhsa_user_sgpr_count 2
  .amdhsa_user_sgpr_kernarg_segment_ptr 1
  .amdhsa_system_sgpr_workgroup_id_x 1
  .amdhsa_float_denorm_mode_32 3
.end_amdhsa_kernel
""" % (name, vgpr, sgpr, accum)

def build_file(launches, kernels):
    s = HEADER
    for (n, g, b, lds) in launches:
        s += "; @launch kernel=%s grid=(%d,1,1) block=(%d,1,1) lds=%d\n" % (n, g, b, lds)
    s += '.amdgcn_target "amdgcn-amd-amdhsa--gfx950"\n.text\n'
    for (n, body, vgpr, sgpr, accum) in kernels:
        s += kernel_begin(n) + body + "\n"
    s += '.section .rodata,"a"\n'
    for (n, body, vgpr, sgpr, accum) in kernels:
        s += ".p2align 6\n" + kernel_desc(n, vgpr, sgpr, accum)
    return s
```

```python
import re
REG = re.compile(r'\b([vas])(\d+)\b|\b([vas])\[(\d+):(\d+)\]')
TRANS = ("v_exp_f32", "v_rcp_f32", "v_log_f32", "v_rsq_f32", "v_sqrt_f32", "v_rcp_iflag_f32")
def regs(tok):
    out = []
    for m in REG.finditer(tok):
        if m.group(1): out.append((m.group(1), int(m.group(2))))
        else: out += [(m.group(3), i) for i in range(int(m.group(4)), int(m.group(5)) + 1)]
    if re.search(r'\bvcc\b', tok): out += [("s", 106), ("s", 107)]
    if re.search(r'\bm0\b', tok): out += [("s", 124)]
    return out
def parse(line):
    line = line.split(";")[0].strip()
    if not line or line.endswith(":") or line.startswith("."): return None
    parts = line.split(None, 1)
    op = parts[0]
    ops = [o.strip() for o in parts[1].split(",")] if len(parts) > 1 else []
    d = dict(op=op, line=line, defs=set(), uses=set(), useC=set(), useAB=set(), kind="other", states=1)
    if op == "s_nop": d["states"] = int(ops[0], 0) + 1; d["kind"] = "nop"; return d
    if op.startswith("v_mfma"):
        d["kind"] = "mfma"; d["defs"] = set(regs(ops[0])); d["useAB"] = set(regs(ops[1]) + regs(ops[2])); d["useC"] = set(regs(ops[3]))
        d["uses"] = d["useAB"] | d["useC"]
        d["passes"] = 8 if "32x32" in op else 4
        return d
    if op.startswith("v_permlane") and "swap" in op:
        d["kind"] = "permlane"; r = set(regs(ops[0]) + regs(ops[1])); d["defs"] = r; d["uses"] = r; return d
    if op.startswith("v_cmp"):
        d["kind"] = "valu"; d["defs"] = set(regs(ops[0])); d["uses"] = set(sum((regs(o) for o in ops[1:]), [])); return d
    if op.startswith("v_readfirstlane") or op.startswith("v_readlane"):
        d["kind"] = "readlane"; d["defs"] = set(regs(ops[0])); d["uses"] = set(sum((regs(o) for o in ops[1:]), [])); return d
    if op.startswith("v_"):
        d["kind"] = "trans" if op.replace("_e32", "").replace("_e64", "") in TRANS else "valu"
        d["defs"] = set(regs(ops[0])); d["uses"] = set(sum((regs(o) for o in ops[1:]), []))
        if op.startswith("v_fmac") or op.startswith("v_pk_fmac"): d["uses"] |= d["defs"]
        if op.startswith("v_cndmask") and len(ops) == 3: d["uses"] |= {("s", 106), ("s", 107)}
        if "_co_" in op: d["defs"] |= set(regs(ops[1]))
        return d
    if op.startswith("ds_read"):
        d["kind"] = "ds"; d["defs"] = set(regs(ops[0])); d["uses"] = set(regs(ops[1])); return d
    if op.startswith("ds_"):
        d["kind"] = "ds"; d["uses"] = set(sum((regs(o) for o in ops), [])); return d
    if op.startswith("buffer_") or op.startswith("global_"):
        d["kind"] = "vmem"
        allr = [regs(o) for o in ops]
        if "load" in op and " lds" not in line:
            d["defs"] = set(allr[0]); d["uses"] = set(sum(allr[1:], []))
        else:
            d["uses"] = set(sum(allr, []))
            if "store" in op and ("x4" in op or "x3" in op):
                d["stdata"] = set(allr[0]) if op.startswith("buffer_") else set(allr[1])
        if " lds" in line: d["uses"].add(("s", 124)); d["ldsdma"] = True
        return d
    if op.startswith("s_"):
        d["kind"] = "salu"
        if ops and not op.startswith(("s_cmp", "s_cbranch", "s_branch", "s_waitcnt", "s_barrier", "s_setprio", "s_endpgm", "s_sleep")):
            d["defs"] = set(regs(ops[0])); d["uses"] = set(sum((regs(o) for o in ops[1:]), []))
        else:
            d["uses"] = set(sum((regs(o) for o in ops), []))
        return d
    return d
def check(text, name="", window=24):
    ins = [p for p in (parse(l) for l in text.split("\n")) if p]
    errs = []
    for i, c in enumerate(ins):
        dist = 0
        for k in range(i - 1, max(-1, i - window), -1):
            p = ins[k]
            need = 0; why = ""
            isvalu_p = p["kind"] in ("valu", "trans", "permlane", "readlane")
            isvalu_c = c["kind"] in ("valu", "trans", "permlane", "readlane")
            vp = {r for r in p["defs"] if r[0] in "va"}
            sp = {r for r in p["defs"] if r[0] == "s"}
            if isvalu_p and c["kind"] == "mfma" and vp & c["uses"]: need, why = 2, "VALU->MFMA"
            if p["kind"] == "mfma":
                n = 8 if p["passes"] == 4 else 12
                if c["kind"] == "mfma":
                    if vp & c["useAB"]: need, why = n, "MFMA D->MFMA AB"
                    elif vp & c["useC"] and not (c["useC"] == vp): need, why = n - 2, "MFMA D->MFMA C partial"
                elif (isvalu_c and (vp & (c["uses"] | c["defs"]))) or (c["kind"] in ("ds", "vmem") and (vp & (c["uses"] | c["defs"]))):
                    need, why = n, "MFMA D->VALU/mem"
                if isvalu_c and (p["useC"] & c["defs"]) and need < (3 if p["passes"] == 4 else 7): need, why = (3 if p["passes"] == 4 else 7), "MFMA C WAR"
            if p["kind"] == "trans" and isvalu_c and c["kind"] != "trans" and vp & c["uses"]: need, why = max(need, 1), why or "trans->VALU"
            if p["kind"] == "trans" and c["kind"] == "trans" and vp & c["uses"]: need, why = max(need, 1), why or "trans->trans(conservative)"
            if isvalu_p and c["kind"] == "permlane" and vp & c["uses"]: need, why = max(need, 2), why or "VALU->permlane"
            if isvalu_p and c["kind"] == "readlane" and vp & c["uses"]: need, why = max(need, 1), why or "VALU->readlane"
            if p.get("stdata") and isvalu_c and p["stdata"] & c["defs"]: need, why = max(need, 2), why or "store data WAR"
            if isvalu_p and sp and c["kind"] == "vmem" and sp & c["uses"]: need, why = max(need, 5), why or "VALU sgpr->VMEM"
            if isvalu_p and sp and isvalu_c and sp & c["uses"]: need, why = max(need, 2), why or "VALU sgpr->VALU"
            if p["kind"] == "salu" and ("s", 124) in p["defs"] and c.get("ldsdma"): need, why = max(need, 1), why or "m0->lds dma"
            if need > dist:
                errs.append("%s: [%s] need %d have %d:\n    P: %s\n    C: %s" % (name, why, need, dist, p["line"], c["line"]))
            dist += p["states"]
            if dist >= 12: break
    return errs
```

```python
import sys, struct
from asmlib import *
import hazard

def f32(x): return "0x%08x" % struct.unpack("<I", struct.pack("<f", x))[0]
C_SCALE = 1.4426950408889634 / (128 ** 0.5)

PAIR = 32768
WBASE = 65536
AUX = 131072
XSLOT = 12288
LDS_BYTES = 163840
PART = 108 * 1024
WS_PART = 1 << 20
STAMP = False

sK, sV, sX, sWQ, sWO, sP = 20, 24, 28, 32, 36, 40
sWAVE, sB, sH, sLW = 44, 45, 46, 47
sT0, sT1, sT2, sT3 = 48, 49, 50, 51
sLW4096, sLW3072 = 52, 53
sTHR, sCNT, sDK, sDV, sSLOT = 54, 55, 56, 57, 58
sSTAMP = 60
sTM = 62
def srd(b): return "s[%d:%d]" % (b, b + 3)

def vr(b, n=1): return "v%d" % b if n == 1 else "v[%d:%d]" % (b, b + n - 1)

def stamp(a, idx, lane_v):
    if not STAMP: return
    sk = a.label("Lst")
    a("s_cmp_lg_u32 s%d, %d" % (sWAVE, a.stamp_wave)); a("s_cbranch_scc1 %s" % sk)
    a("s_memrealtime s[%d:%d]" % (sTM, sTM + 1)); a("s_waitcnt lgkmcnt(0)")
    a("v_mov_b32 v%d, s%d" % (a.stamp_tmp, sTM)); a("v_mov_b32 v%d, 0" % (a.stamp_tmp + 1))
    a("global_store_dword v%d, v%d, s[%d:%d] offset:%d" % (a.stamp_tmp + 1, a.stamp_tmp, sSTAMP, sSTAMP + 1, 4 * idx))
    a("%s:" % sk)

def common_prologue(a, endlab, nwg):
    a("s_cmp_ge_u32 s2, %d" % nwg); a("s_cbranch_scc1 %s" % endlab)
    a("s_load_dwordx8 s[4:11], s[0:1], 0")
    a("s_load_dwordx4 s[12:15], s[0:1], 32")
    a("s_load_dwordx2 s[16:17], s[0:1], 56")
    a("v_lshrrev_b32 v1, 6, v0")
    a("s_nop 0")
    a("v_readfirstlane_b32 s%d, v1" % sWAVE)
    a("s_waitcnt lgkmcnt(0)")

class VQ:
    def __init__(s): s.q = []
    def issue(s, tag, n=1): s.q += [tag] * n
    def wait(s, tags):
        idx = [i for i, t in enumerate(s.q) if t in tags]
        if not idx: return None
        last = max(idx); n = len(s.q) - 1 - last
        s.q = s.q[last + 1:]
        return min(n, 63)

KV_FLAGS = " nt"
W_FLAGS = ""
P_FLAGS = " sc0 sc1"

def gen_loader(a):
    vK, vV, vW, vX, vO = 10, 14, 16, 18, 20
    a("s_sub_u32 s%d, s%d, 4" % (sLW, sWAVE))
    a("s_lshl_b32 s%d, s%d, 12" % (sLW4096, sLW))
    a("s_mul_i32 s%d, s%d, 3072" % (sLW3072, sLW))
    a("v_and_b32 v1, 63, v0")
    a("v_lshrrev_b32 v2, 4, v1")
    a("v_and_b32 v3, 15, v1")
    a("v_lshlrev_b32 v4, 8, v2"); a("v_add_u32 v4, s%d, v4" % sLW4096)
    for ii in range(4):
        a("v_add_u32 v5, %d, v2" % (4 * ii)); a("v_xor_b32 v5, v5, v3"); a("v_lshlrev_b32 v5, 4, v5"); a("v_add_u32 v%d, v4, v5" % (vK + ii))
    for par in range(2):
        a("v_lshlrev_b32 v5, 1, v2"); a("v_add_u32 v5, %d, v5" % (8 * par)); a("v_xor_b32 v5, v5, v3"); a("v_lshlrev_b32 v5, 4, v5"); a("v_add_u32 v%d, v4, v5" % (vV + par))
    a("v_lshrrev_b32 v6, 5, v1"); a("v_and_b32 v7, 31, v1")
    a("s_and_b32 s%d, s%d, 1" % (sT0, sLW)); a("s_lshl_b32 s%d, s%d, 2" % (sT0, sT0))
    a("s_lshl_b32 s%d, s%d, 16" % (sT1, sLW))
    a("v_lshlrev_b32 v8, 13, v6"); a("v_add_u32 v8, s%d, v8" % sT1)
    for par in range(2):
        a("v_add_u32 v5, s%d, v6" % sT0); a("v_add_u32 v5, %d, v5" % (2 * par)); a("v_lshlrev_b32 v5, 1, v5"); a("v_xor_b32 v5, v5, v7")
        a("v_lshlrev_b32 v5, 4, v5"); a("v_add_u32 v%d, v8, v5" % (vW + par))
    a("v_lshrrev_b32 v6, 3, v1"); a("v_and_b32 v7, 7, v1")
    a("s_mul_i32 s%d, s%d, 24" % (sT1, sLW)); a("v_add_u32 v8, s%d, v6" % sT1); a("v_mul_u32_u24 v8, 1152, v8")
    a("v_lshrrev_b32 v9, 1, v6")
    for i in range(2):
        a("s_add_u32 s%d, s%d, %d" % (sT0, sLW, i)); a("s_and_b32 s%d, s%d, 1" % (sT0, sT0)); a("s_lshl_b32 s%d, s%d, 2" % (sT0, sT0))
        a("v_add_u32 v5, s%d, v9" % sT0); a("v_xor_b32 v5, v5, v7"); a("v_lshlrev_b32 v5, 4, v5"); a("v_add_u32 v%d, v8, v5" % (vX + i))
    a("s_lshl_b32 s%d, s%d, 5" % (sT1, sLW)); a("v_add_u32 v8, s%d, v6" % sT1); a("v_mul_u32_u24 v8, 1152, v8")
    a("v_and_b32 v5, 3, v9"); a("v_lshlrev_b32 v5, 1, v5"); a("v_xor_b32 v5, v5, v7"); a("v_lshlrev_b32 v5, 4, v5"); a("v_add_u32 v%d, v8, v5" % vO)

    q = VQ()
    def dma(vreg, srdb, soff, imm, flags):
        a("buffer_load_dwordx4 v%d, %s, s%d offen offset:%d%s lds" % (vreg, srd(srdb), soff, imm, flags))
    def iss_K(T):
        a("s_add_u32 m0, s%d, %d" % (sLW4096, (T % 4) * PAIR)); a("s_mov_b32 s%d, %d" % (sT0, T * 16384))
        for ii in range(4): dma(vK + ii, sK, sT0, ii * 1024, KV_FLAGS)
        q.issue("I%d" % T, 4)
    def iss_V(T):
        a("s_add_u32 m0, s%d, %d" % (sLW4096, (T % 4) * PAIR + 16384)); a("s_mov_b32 s%d, %d" % (sT0, T * 16384))
        for ii in range(4): dma(vV + (ii & 1), sV, sT0, ii * 1024, KV_FLAGS)
        q.issue("I%d" % T, 4)
    def iss_W(s):
        a("s_add_u32 m0, s%d, %d" % (sLW4096, WBASE + ((s + 2) % 4) * 16384))
        for ii in range(4):
            a("s_mov_b32 s%d, %d" % (sT0, 262144 * s + 15360 * ii))
            dma(vW + (ii & 1), sWQ, sT0, ii * 1024, W_FLAGS)
        q.issue("W%d" % s, 4)
    def iss_X(cp):
        a("s_add_u32 m0, s%d, %d" % (sLW3072, AUX + (cp % 2) * XSLOT))
        for ii in range(3):
            a("s_mov_b32 s%d, %d" % (sT0, 128 * cp + 8192 * ii))
            dma(vX + (ii & 1), sX, sT0, ii * 1024, W_FLAGS)
        q.issue("X%d" % cp, 3)
    def iss_O(c):
        T = 16 + c
        for hq in range(2):
            a("s_add_u32 m0, s%d, %d" % (sLW4096, (T % 4) * PAIR + hq * 16384))
            for ii in range(4):
                a("s_mov_b32 s%d, %d" % (sT0, 128 * hq * 1152 + 128 * c + 8192 * ii))
                dma(vO, sWO, sT0, ii * 1024, W_FLAGS)
        q.issue("I%d" % T, 8)
    def iss_item(T):
        if T < 16: iss_K(T); iss_V(T)
        elif T <= 24: iss_O(T - 16)
    def bar(tags):
        n = q.wait(tags)
        if n is not None: a("s_waitcnt vmcnt(%d)" % n)
        a("s_barrier")

    iss_W(0); iss_X(0); iss_W(1); iss_W(2); iss_X(1); iss_W(3)
    for s in range(18):
        bar(["W%d" % s, "X%d" % (s // 2)])
        if s >= 1 and s + 3 <= 17: iss_W(s + 3)
        if s >= 2 and s % 2 == 0 and s // 2 + 1 <= 8: iss_X(s // 2 + 1)
        if s == 0: iss_K(0)
        if s == 3: iss_V(0)
        if s == 6: iss_K(1)
        if s == 9: iss_V(1)
        if s == 15: iss_K(2)
        if s == 16: iss_V(2)
        if s == 17: iss_K(3)
    bar(["I0"])
    iss_V(3)
    stamp(a, 8, 1)
    for n in range(1, 17):
        bar(["I%d" % n])
        if n >= 2: iss_item(n + 2)
    a("s_barrier")
    for n in range(17, 25):
        bar(["I%d" % n])
        iss_item(n + 2)
    stamp(a, 9, 1)

def O_(j, db): return (j * 8 + db) * 4
def Q_(j, s): return 96 + (j * 4 + s) * 4
def KF(f): return 144 + 4 * f
def VF(db): return 176 + 4 * db
def S_(par): return 208 + 8 * par
def P_(par): return 224 + 4 * par
def N_(j): return 232 + 4 * j
def L_(j): return 244 + j
vKB, vVB, vM1, vM2, vA0, vA1, vTMP, vLANE = 247, 248, 249, 250, 251, 252, 253, 255
MF = "v_mfma_f32_16x16x32_bf16"

def interleave(a, mfmas, fillers):
    for x in fillers.get(-1, []): a(x)
    for i, m in enumerate(mfmas):
        a(m)
        for x in fillers.get(i, []): a(x)

def spread(items, slots):
    d = {}
    n = len(items)
    for i, it in enumerate(items):
        sl = slots[i * len(slots) // n]
        d.setdefault(sl, []).append(it)
    return d
def merge(*ds):
    o = {}
    for d in ds:
        for k, v in d.items(): o.setdefault(k, []).extend(v)
    return o

def gen_compute(a):
    rare = []
    a("v_and_b32 v%d, 63, v0" % vLANE)
    sQI, sRH = 64, 65
    a("s_lshr_b32 s%d, s%d, 1" % (sQI, sWAVE)); a("s_and_b32 s%d, s%d, 1" % (sRH, sWAVE))
    g, rp, c, q = 240, 241, 242, 243
    a("v_lshrrev_b32 v%d, 4, v%d" % (g, vLANE)); a("v_bfe_u32 v%d, v%d, 2, 2" % (rp, vLANE)); a("v_and_b32 v%d, 3, v%d" % (c, vLANE)); a("v_and_b32 v%d, 15, v%d" % (q, vLANE))
    vWA, vXA = 232, 244
    t = vTMP
    a("v_lshlrev_b32 v%d, 3, v%d" % (t, g)); a("v_add_u32 v%d, v%d, v%d" % (t, t, rp)); a("v_lshlrev_b32 v%d, 9, v%d" % (t, t))
    a("v_and_b32 v%d, 1, v%d" % (vA0, g)); a("v_lshlrev_b32 v%d, 2, v%d" % (vA0, vA0)); a("v_add_u32 v%d, v%d, v%d" % (vA0, vA0, rp)); a("v_lshlrev_b32 v%d, 5, v%d" % (vA0, vA0))
    a("v_add_u32 v%d, v%d, v%d" % (t, t, vA0)); a("v_lshlrev_b32 v%d, 3, v%d" % (vA0, c)); a("v_add_u32 v%d, v%d, v%d" % (t, t, vA0))
    a("s_lshl_b32 s%d, s%d, 8" % (sT0, sQI)); a("s_add_u32 s%d, s%d, %d" % (sT0, sT0, WBASE)); a("v_add_u32 v%d, s%d, v%d" % (t, sT0, t))
    for db in range(8): a("v_xor_b32 v%d, %d, v%d" % (vWA + db, db * 32, t))
    a("s_mul_i32 s%d, s%d, %d" % (sT0, sRH, 48 * 128)); a("s_add_u32 s%d, s%d, %d" % (sT0, sT0, AUX))
    a("v_lshrrev_b32 v%d, 1, v%d" % (t, q)); a("v_xor_b32 v%d, v%d, v%d" % (t, t, g)); a("v_lshlrev_b32 v%d, 4, v%d" % (t, t))
    a("v_lshlrev_b32 v%d, 7, v%d" % (vA0, q)); a("v_add_u32 v%d, v%d, v%d" % (t, t, vA0)); a("v_add_u32 v%d, s%d, v%d" % (vXA, sT0, t)); a("v_xor_b32 v%d, 64, v%d" % (vXA + 1, vXA))
    a("v_xor_b32 v%d, v%d, v%d" % (t, g, q)); a("v_lshlrev_b32 v%d, 4, v%d" % (t, t)); a("v_lshlrev_b32 v%d, 8, v%d" % (vA0, q)); a("v_add_u32 v%d, v%d, v%d" % (vKB, t, vA0))
    a("v_lshlrev_b32 v%d, 2, v%d" % (t, g)); a("v_add_u32 v%d, v%d, v%d" % (t, t, rp)); a("v_and_b32 v%d, 7, v%d" % (vA0, t)); a("v_lshlrev_b32 v%d, 5, v%d" % (vA0, vA0))
    a("v_lshlrev_b32 v%d, 8, v%d" % (t, t)); a("v_add_u32 v%d, v%d, v%d" % (t, t, vA0)); a("v_lshlrev_b32 v%d, 3, v%d" % (vA0, c)); a("v_add_u32 v%d, v%d, v%d" % (t, t, vA0))
    a("v_add_u32 v%d, 16384, v%d" % (vVB, t))
    stamp(a, 0, vLANE)

    def ABUF(buf, db): return 144 + 32 * buf + 4 * db
    def BBUF(buf, j): return 208 + 12 * buf + 4 * j
    def q_reads(s):
        buf = s & 1; wo = ((s + 2) % 4) * 16384; xo = ((s // 2) % 2) * XSLOT
        r = []
        for j in range(3): r.append("ds_read_b128 %s, v%d offset:%d" % (vr(BBUF(buf, j), 4), vXA + (s & 1), xo + j * 2048))
        for db in range(8):
            r.append("ds_read_b64_tr_b16 %s, v%d offset:%d" % (vr(ABUF(buf, db), 2), vWA + db, wo))
            r.append("ds_read_b64_tr_b16 %s, v%d offset:%d" % (vr(ABUF(buf, db) + 2, 2), vWA + db, wo + 2048))
        return r
    def k_reads(half, first_setup=True):
        r = []
        for s in range(4):
            for kb in range(2):
                f = kb * 4 + s
                pre = []
                if s == 0: ad = vKB
                else:
                    ad = vA0 if s & 1 else vA1
                    if kb == 0: pre.append("v_xor_b32 v%d, %d, v%d" % (ad, s * 64, vKB))
                r.append((f, pre + ["ds_read_b128 %s, v%d offset:%d" % (vr(KF(f), 4), ad, half * 8192 + kb * 4096)]))
        return r
    a("s_barrier")
    for x in q_reads(0): a(x)
    for s in range(18):
        buf = s & 1
        a("s_waitcnt lgkmcnt(0)")
        a("s_barrier")
        mf = []
        for db in range(8):
            for j in range(3):
                cc = "0" if s == 0 else vr(O_(j, db), 4)
                mf.append("%s %s, %s, %s, %s" % (MF, vr(O_(j, db), 4), vr(ABUF(buf, db), 4), vr(BBUF(buf, j), 4), cc))
        if s < 17: rd = q_reads(s + 1)
        else: rd = [x for (f, l) in k_reads(0) for x in l]
        interleave(a, mf, spread(rd, list(range(0, 17))))
    stamp(a, 1, vLANE)
    a("s_nop 7")
    a("s_mov_b32 s%d, %s" % (sT0, f32(C_SCALE)))
    for j in range(3):
        for s in range(4):
            X, Y, D = O_(j, 2 * s), O_(j, 2 * s + 1), Q_(j, s)
            for r in range(4):
                a("v_mul_f32 v%d, s%d, v%d" % (X + r, sT0, X + r)); a("v_mul_f32 v%d, s%d, v%d" % (Y + r, sT0, Y + r))
            a("v_cvt_pk_bf16_f32 v%d, v%d, v%d" % (D + 0, X + 0, X + 1)); a("v_cvt_pk_bf16_f32 v%d, v%d, v%d" % (D + 1, X + 2, X + 3))
            a("v_cvt_pk_bf16_f32 v%d, v%d, v%d" % (D + 2, Y + 0, Y + 1)); a("v_cvt_pk_bf16_f32 v%d, v%d, v%d" % (D + 3, Y + 2, Y + 3))
            for r in range(0, 4, 2):
                a("v_mov_b64 %s, 0" % vr(X + r, 2)); a("v_mov_b64 %s, 0" % vr(Y + r, 2))
            a("v_permlane32_swap_b32 v%d, v%d" % (D + 0, D + 2)); a("v_permlane32_swap_b32 v%d, v%d" % (D + 1, D + 3))
            a("s_nop 1")
            a("v_permlane16_swap_b32 v%d, v%d" % (D + 0, D + 2)); a("v_permlane16_swap_b32 v%d, v%d" % (D + 1, D + 3))
    for r in range(176, 208, 2): a("v_mov_b64 %s, 0" % vr(r, 2))
    for r in range(224, 244, 2): a("v_mov_b64 %s, 0" % vr(r, 2))
    for j in range(3): a("v_mov_b32 v%d, 0" % L_(j))
    a("s_mov_b32 s%d, 0xff800000" % sTHR)
    a("s_mov_b32 s%d, 0" % sSLOT)
    a("s_mov_b32 s%d, 0x%x" % (sDV, -3 * PAIR & 0xffffffff))
    a("s_waitcnt lgkmcnt(0)")
    def qk_mfmas(jn, par):
        m = []
        for s in range(4):
            for kb in range(2):
                d = S_(par) + 4 * kb
                cc = vr(N_(jn), 4) if s == 0 else vr(d, 4)
                m.append(("%s %s, %s, %s, %s" % (MF, vr(d, 4), vr(KF(kb * 4 + s), 4), vr(Q_(jn, s), 4), cc), kb * 4 + s))
        return m
    def pv_mfmas(jp, par):
        return ["%s %s, %s, %s, %s" % (MF, vr(O_(jp, db), 4), vr(VF(db), 4), vr(P_(par), 4), vr(O_(jp, db), 4)) for db in range(8)]
    for m, f in qk_mfmas(0, 0): a(m)
    a("s_nop 7")

    def block(st, j, qk=True, pv=True, kload=None, vload=None, barrier=False, pre=[], post=[]):
        par = (3 * st + j) & 1
        jn, jp = (j + 1) % 3, (j - 1) % 3
        S, P = S_(par), P_(par)
        mf = []; fill = {}
        def add(slot, x): fill.setdefault(slot, []).append(x)
        if barrier: add(-1, "s_barrier")
        if not qk: add(-1, "s_nop 1")
        for x in pre: add(-1, x)
        if qk:
            if j == 2: add(-1, "s_waitcnt lgkmcnt(0)")
            qm = qk_mfmas(jn, par ^ 1)
            kl = dict()
            if kload is not None:
                for f, l in k_reads(kload): kl[f] = l
            for i, (m, f) in enumerate(qm):
                mf.append(m)
                if f in kl:
                    for x in kl[f]: add(i, x)
        nq = len(mf)
        if pv:
            pm = pv_mfmas(jp, par ^ 1)
            if j == 1 and a.v_pending:
                add(nq - 1, "s_waitcnt lgkmcnt(%d)" % (8 if (qk and kload is not None) else 0)); a.v_pending = False
            for db, m in enumerate(pm):
                mf.append(m)
                if vload is not None:
                    if db == 0: ad = vVB
                    else:
                        ad = vA0 if db & 1 else vA1
                        add(nq + db, "v_xor_b32 v%d, %d, v%d" % (ad, db * 32, vVB))
                    add(nq + db, "ds_read_b64_tr_b16 %s, v%d offset:%d" % (vr(VF(db), 2), ad, vload * 8192))
                    add(nq + db, "ds_read_b64_tr_b16 %s, v%d offset:%d" % (vr(VF(db) + 2, 2), ad, vload * 8192 + 4096))
            if vload is not None: a.v_pending = True
        n = len(mf)
        rl, cont = a.label("Lrare"), a.label("Lcont")
        mx = ["v_max3_f32 v%d, v%d, v%d, v%d" % (vM1, S, S + 1, S + 2), "v_max3_f32 v%d, v%d, v%d, v%d" % (vM2, S + 3, S + 4, S + 5),
              "v_max3_f32 v%d, v%d, v%d, v%d" % (vM1, vM1, S + 6, S + 7), "v_max_f32 v%d, v%d, v%d" % (vM1, vM1, vM2),
              "v_cmp_lt_f32 vcc, s%d, v%d" % (sTHR, vM1)]
        rest = []
        ex = ["v_exp_f32 v%d, v%d" % (S + i, S + i) for i in range(8)]
        ad_ = ["v_add_f32 v%d, v%d, v%d" % (L_(j), L_(j), S + i) for i in range(8)]
        cv = ["v_cvt_pk_bf16_f32 v%d, v%d, v%d" % (P + i, S + 2 * i, S + 2 * i + 1) for i in range(4)]
        rest = [ex[0], ex[1], ex[2], ad_[0], ad_[1], ex[3], cv[0], ad_[2], ex[4], ad_[3], ex[5], cv[1], ad_[4], ex[6], ad_[5], ex[7], cv[2], ad_[6], "s_nop 0", ad_[7], cv[3]]
        if n >= 12:
            s0 = 0
            for i, x in enumerate(mx): add(min(i, n - 1), x)
            add(4, "s_cbranch_vccnz %s" % rl); add(4, "%s:" % cont)
            for k, v in spread(rest, list(range(5, n))).items():
                for x in v: add(k, x)
        else:
            base = n - 1
            add(base, "s_nop 7")
            for x in mx: add(base, x)
            add(base, "s_cbranch_vccnz %s" % rl); add(base, "%s:" % cont)
            for x in rest: add(base, x)
        for x in post: add(n - 1, x)
        interleave(a, mf, fill)
        r = Asm()
        r("%s:" % rl)
        r("v_mov_b32 v%d, v%d" % (vM2, vM1)); r("s_nop 1"); r("v_permlane32_swap_b32 v%d, v%d" % (vM1, vM2)); r("v_max_f32 v%d, v%d, v%d" % (vM1, vM1, vM2))
        r("v_mov_b32 v%d, v%d" % (vM2, vM1)); r("s_nop 1"); r("v_permlane16_swap_b32 v%d, v%d" % (vM1, vM2)); r("v_max_f32 v%d, v%d, v%d" % (vM1, vM1, vM2))
        sk = a.label("Lfirst")
        r("s_cmp_eq_u32 s%d, 0xff800000" % sTHR); r("s_cbranch_scc1 %s" % sk)
        r("v_max_f32 v%d, 0, v%d" % (vM1, vM1))
        r("v_sub_f32 v%d, 0, v%d" % (vM2, vM1)); r("v_exp_f32 v%d, v%d" % (vM2, vM2)); r("s_nop 0")
        r("v_mul_f32 v%d, v%d, v%d" % (L_(j), L_(j), vM2))
        for db in range(8):
            for rr in range(4): r("v_mul_f32 v%d, v%d, v%d" % (O_(j, db) + rr, O_(j, db) + rr, vM2))
        r("%s:" % sk)
        for i in range(8): r("v_sub_f32 v%d, v%d, v%d" % (S + i, S + i, vM1))
        for i in range(4): r("v_sub_f32 v%d, v%d, v%d" % (N_(j) + i, N_(j) + i, vM1))
        r("s_branch %s" % cont)
        rare.append(r.text())

    a.v_pending = False
    def tile(last):
        pre0 = []
        block(0, 0, vload=0)
        block(0, 1, kload=1)
        block(0, 2, post=["s_mov_b32 s%d, 0x41000000" % sTHR])
        adv = ["s_add_u32 s%d, s%d, 1" % (sSLOT, sSLOT), "s_and_b32 s%d, s%d, 3" % (sSLOT, sSLOT), "s_cmp_eq_u32 s%d, 0" % sSLOT,
               "s_cselect_b32 s%d, s%d, %d" % (sDK, sDV, PAIR), "v_add_u32 v%d, s%d, v%d" % (vKB, sDK, vKB)]
        block(1, 0, vload=1, pre=adv)
        block(1, 1, kload=(None if last else 0), barrier=True, post=["v_add_u32 v%d, s%d, v%d" % (vVB, sDK, vVB)])
        block(1, 2, qk=not last)
    loop = a.label("Ltile")
    a("s_mov_b32 s%d, 0" % sCNT)
    a("%s:" % loop)
    tile(False)
    a("s_add_u32 s%d, s%d, 1" % (sCNT, sCNT)); a("s_cmp_lt_u32 s%d, 15" % sCNT); a("s_cbranch_scc1 %s" % loop)
    tile(True)
    a("s_nop 1")
    for m in pv_mfmas(2, 1): a(m)
    a("s_nop 7")
    stamp(a, 2, vLANE)
    for j in range(3):
        L = L_(j)
        a("v_mov_b32 v%d, v%d" % (vM2, L)); a("s_nop 1"); a("v_permlane32_swap_b32 v%d, v%d" % (L, vM2)); a("v_add_f32 v%d, v%d, v%d" % (L, L, vM2))
        a("v_mov_b32 v%d, v%d" % (vM2, L)); a("s_nop 1"); a("v_permlane16_swap_b32 v%d, v%d" % (L, vM2)); a("v_add_f32 v%d, v%d, v%d" % (L, L, vM2))
        a("v_rcp_f32 v%d, v%d" % (L, L))
    a("s_nop 1")
    def OA(s, j): return 96 + (s * 3 + j) * 4
    def OB(s, j): return 144 + (s * 3 + j) * 4
    for j in range(3):
        for s in range(4):
            X, Y, D = O_(j, 2 * s), O_(j, 2 * s + 1), OA(s, j)
            for r in range(4):
                a("v_mul_f32 v%d, v%d, v%d" % (X + r, X + r, L_(j))); a("v_mul_f32 v%d, v%d, v%d" % (Y + r, Y + r, L_(j)))
            a("v_cvt_pk_bf16_f32 v%d, v%d, v%d" % (D + 0, X + 0, X + 1)); a("v_cvt_pk_bf16_f32 v%d, v%d, v%d" % (D + 1, X + 2, X + 3))
            a("v_cvt_pk_bf16_f32 v%d, v%d, v%d" % (D + 2, Y + 0, Y + 1)); a("v_cvt_pk_bf16_f32 v%d, v%d, v%d" % (D + 3, Y + 2, Y + 3))
    K15 = 3 * PAIR
    def xbases(sw, d1, d2):
        a("s_mul_i32 s%d, s%d, 12288" % (d1, sw)); a("s_add_u32 s%d, s%d, %d" % (d1, d1, AUX))
        a("s_cmp_eq_u32 s%d, 2" % sw); a("s_cselect_b32 s%d, %d, s%d" % (d1, K15, d1))
        a("s_cmp_eq_u32 s%d, 3" % sw); a("s_cselect_b32 s%d, %d, s%d" % (d1, AUX + 24576, d1))
        a("s_cselect_b32 s%d, %d, s%d" % (d2, K15 + 12288 - 8192, d1))
    a("v_lshlrev_b32 v%d, 4, v%d" % (vTMP, vLANE))
    xbases(sWAVE, sT0, sT1)
    a("v_add_u32 v%d, s%d, v%d" % (vA0, sT0, vTMP)); a("v_add_u32 v%d, s%d, v%d" % (vA1, sT1, vTMP))
    for i in range(12):
        a("ds_write_b128 v%d, %s offset:%d" % (vA0 if i < 8 else vA1, vr(96 + 4 * i, 4), i * 1024))
    a("s_xor_b32 s%d, s%d, 2" % (sT2, sWAVE))
    xbases(sT2, sT0, sT1)
    a("v_add_u32 v%d, s%d, v%d" % (vA0, sT0, vTMP)); a("v_add_u32 v%d, s%d, v%d" % (vA1, sT1, vTMP))
    vAO = 224
    vST = 228
    g, rp, c = 240, 241, 242
    a("v_lshrrev_b32 v%d, 4, v%d" % (g, vLANE)); a("v_bfe_u32 v%d, v%d, 2, 2" % (rp, vLANE)); a("v_and_b32 v%d, 3, v%d" % (c, vLANE))
    t = 243
    a("v_lshlrev_b32 v%d, 2, v%d" % (t, g)); a("v_add_u32 v%d, v%d, v%d" % (t, t, rp))
    a("v_lshrrev_b32 v%d, 1, v%d" % (g, t)); a("v_and_b32 v%d, 3, v%d" % (g, g)); a("v_lshlrev_b32 v%d, 5, v%d" % (g, g))
    a("v_lshlrev_b32 v%d, 7, v%d" % (t, t)); a("v_add_u32 v%d, v%d, v%d" % (t, t, g)); a("v_lshlrev_b32 v%d, 3, v%d" % (c, c)); a("v_add_u32 v%d, v%d, v%d" % (t, t, c))
    a("s_lshl_b32 s%d, s%d, 6" % (sT0, sQI)); a("v_xor_b32 v%d, s%d, v%d" % (t, sT0, t))
    a("s_lshl_b32 s%d, s%d, 14" % (sT0, sQI)); a("s_xor_b32 s%d, s%d, 16384" % (sT1, sT0))
    a("v_add_u32 v%d, s%d, v%d" % (vAO + 0, sT0, t)); a("v_xor_b32 v%d, 32, v%d" % (vAO + 1, vAO + 0))
    a("v_add_u32 v%d, s%d, v%d" % (vAO + 2, sT1, t)); a("v_xor_b32 v%d, 32, v%d" % (vAO + 3, vAO + 2))
    a("s_mul_i32 s%d, s%d, 6144" % (sT0, sQI)); a("s_mul_i32 s%d, s%d, 3072" % (sT1, sRH)); a("s_add_u32 s%d, s%d, s%d" % (sT0, sT0, sT1))
    a("v_add_u32 v%d, s%d, v%d" % (vST, sT0, vTMP))
    a("s_waitcnt lgkmcnt(0)")
    a("s_barrier")
    for i in range(12):
        a("ds_read_b128 %s, v%d offset:%d" % (vr(144 + 4 * i, 4), vA0 if i < 8 else vA1, i * 1024))
    stamp(a, 3, vLANE)
    def AF(i): return 192 + 4 * (i % 8)
    def ACC(buf, z, j): return buf * 24 + (z * 3 + j) * 4
    def PK(buf, j): return 48 + buf * 12 + 4 * j
    def a_reads(G):
        c_, kk = divmod(G, 8)
        hs, s = (0, kk) if kk < 4 else (1, kk - 4)
        r = []
        for z in range(2):
            fr = AF(2 * G + z)
            r.append("ds_read_b64_tr_b16 %s, v%d offset:%d" % (vr(fr, 2), vAO + 2 * hs + z, s * 4096))
            r.append("ds_read_b64_tr_b16 %s, v%d offset:%d" % (vr(fr + 2, 2), vAO + 2 * hs + z, s * 4096 + 2048))
        return r
    LOOK = 3
    def slot_delta(c_from):
        return (-3 * PAIR if (16 + c_from + 1) % 4 == 0 else PAIR) & 0xffffffff
    for G in range(LOOK):
        for x in a_reads(G): a(x)
    a("s_waitcnt lgkmcnt(%d)" % (4 * LOOK))
    pend_epi = []
    for c_ in range(9):
        buf = c_ & 1
        for kk in range(8):
            G = c_ * 8 + kk
            hs, s = (0, kk) if kk < 4 else (1, kk - 4)
            Gn = G + LOOK
            pre = []
            rd = []
            if Gn < 72:
                cn, kn = divmod(Gn, 8)
                if kn == 0:
                    pre += ["s_barrier", "v_add_u32 v%d, 0x%x, v%d" % (vAO + 0, slot_delta(cn - 1), vAO + 0), "v_add_u32 v%d, 0x%x, v%d" % (vAO + 1, slot_delta(cn - 1), vAO + 1)]
                if kn == 4 and cn > 0:
                    pre += ["v_add_u32 v%d, 0x%x, v%d" % (vAO + 2, slot_delta(cn - 1), vAO + 2), "v_add_u32 v%d, 0x%x, v%d" % (vAO + 3, slot_delta(cn - 1), vAO + 3)]
                rd = a_reads(Gn)
            younger = 4 * min(LOOK - 1, 71 - G)
            for x in pre: a(x)
            a("s_waitcnt lgkmcnt(%d)" % younger)
            mf = []
            for z in range(2):
                for j in range(3):
                    bsrc = OA(s, j) if hs == 0 else OB(s, j)
                    cc = "0" if kk == 0 else vr(ACC(buf, z, j), 4)
                    mf.append("%s %s, %s, %s, %s" % (MF, vr(ACC(buf, z, j), 4), vr(AF(2 * G + z), 4), vr(bsrc, 4), cc))
            fill = spread(rd, [0, 1, 2, 3]) if rd else {}
            if pend_epi and kk >= 1:
                take = pend_epi[:5] if kk < 4 else pend_epi
                pend_epi = pend_epi[len(take):]
                fill = merge(fill, spread(take, [1, 2, 3, 4, 5]))
            interleave(a, mf, fill)
        epi = []
        for j in range(3):
            d = PK(buf, j)
            for z in range(2):
                A_ = ACC(buf, z, j)
                epi.append("v_cvt_pk_bf16_f32 v%d, v%d, v%d" % (d + 2 * z, A_, A_ + 1)); epi.append("v_cvt_pk_bf16_f32 v%d, v%d, v%d" % (d + 2 * z + 1, A_ + 2, A_ + 3))
            epi.append("s_mov_b32 s%d, %d" % (sT3, c_ * 12288 + j * 1024))
            epi.append("buffer_store_dwordx4 %s, v%d, %s, s%d offen%s" % (vr(d, 4), vST, srd(sP), sT3, P_FLAGS))
        pend_epi = epi
    a("s_nop 7")
    for x in pend_epi: a(x)
    stamp(a, 4, vLANE)
    a("s_waitcnt vmcnt(0)")
    stamp(a, 5, vLANE)
    a("s_endpgm")
    for r in rare: a(r)

def gen_k1():
    a = Asm(); a.stamp_wave = 0; a.stamp_tmp = 253
    common_prologue(a, "L_k1_end", 256)
    a("s_and_b32 s%d, s2, 7" % sT0); a("s_lshr_b32 s%d, s2, 3" % sT1)
    a("s_and_b32 s%d, s%d, 1" % (sB, sT0)); a("s_lshl_b32 s%d, s%d, 3" % (sB, sB)); a("s_and_b32 s%d, s%d, 7" % (sT2, sT1)); a("s_add_u32 s%d, s%d, s%d" % (sB, sB, sT2))
    a("s_lshr_b32 s%d, s%d, 1" % (sH, sT0)); a("s_lshl_b32 s%d, s%d, 2" % (sH, sH)); a("s_lshr_b32 s%d, s%d, 3" % (sT2, sT1)); a("s_add_u32 s%d, s%d, s%d" % (sH, sH, sT2))
    a("s_lshl_b32 s%d, s%d, 4" % (sT0, sB)); a("s_add_u32 s%d, s%d, s%d" % (sT0, sT0, sH))
    a("s_lshl_b32 s%d, s%d, 18" % (sT1, sT0))
    def mk(b, lo, hi, off, size):
        a("s_add_u32 s%d, s%d, s%d" % (b, lo, off)); a("s_addc_u32 s%d, s%d, 0" % (b + 1, hi)); a("s_mov_b32 s%d, %d" % (b + 2, size)); a("s_mov_b32 s%d, 0x20000" % (b + 3))
    mk(sK, 6, 7, sT1, 262144); mk(sV, 8, 9, sT1, 262144)
    a("s_mul_i32 s%d, s%d, 110592" % (sT1, sB)); mk(sX, 4, 5, sT1, 110592)
    a("s_lshl_b32 s%d, s%d, 9" % (sT1, sH)); mk(sWQ, 10, 11, sT1, 0); a("s_sub_u32 s%d, 4718592, s%d" % (sWQ + 2, sT1))
    a("s_mul_i32 s%d, s%d, 294912" % (sT1, sH)); mk(sWO, 12, 13, sT1, 294912)
    a("s_mul_i32 s%d, s%d, %d" % (sT1, sT0, PART)); a("s_add_u32 s%d, s%d, %d" % (sT1, sT1, WS_PART)); mk(sP, 16, 17, sT1, PART)
    if STAMP:
        a("s_lshl_b32 s%d, s2, 6" % sT1); a("s_add_u32 s%d, s16, s%d" % (sSTAMP, sT1)); a("s_addc_u32 s%d, s17, 0" % (sSTAMP + 1))
    a("s_cmp_ge_u32 s%d, 4" % sWAVE); a("s_cbranch_scc1 L_loader")
    gen_compute(a)
    a("L_loader:")
    a.stamp_wave = 4; a.stamp_tmp = 30
    gen_loader(a)
    a("L_k1_end:")
    a("s_endpgm")
    return a.text()

def gen_k2():
    a = Asm(); a.stamp_wave = 0; a.stamp_tmp = 100
    common_prologue(a, "L_k2_end", 432)
    a("s_lshl_b32 s%d, s2, 2" % sT0); a("s_add_u32 s%d, s%d, s%d" % (sT0, sT0, sWAVE))
    a("s_mul_hi_u32 s%d, s%d, %d" % (sB, sT0, (2**32 + 107) // 108)); a("s_mul_i32 s%d, s%d, 108" % (sT1, sB)); a("s_sub_u32 s%d, s%d, s%d" % (sT1, sT0, sT1))
    a("s_mul_i32 s%d, s%d, %d" % (sT2, sB, 16 * PART)); a("s_add_u32 s%d, s%d, %d" % (sT2, sT2, WS_PART))
    a("s_add_u32 s%d, s16, s%d" % (sP, sT2)); a("s_addc_u32 s%d, s17, 0" % (sP + 1)); a("s_mov_b32 s%d, %d" % (sP + 2, 16 * PART)); a("s_mov_b32 s%d, 0x20000" % (sP + 3))
    a("v_and_b32 v1, 63, v0"); a("v_lshlrev_b32 v2, 4, v1")
    a("s_lshl_b32 s%d, s%d, 10" % (sT2, sT1))
    for h in range(16):
        a("buffer_load_dwordx4 v[%d:%d], v2, %s, s%d offen nt" % (16 + 4 * h, 19 + 4 * h, srd(sP), sT2))
        if h < 15: a("s_add_u32 s%d, s%d, %d" % (sT2, sT2, PART))
    a("s_mul_hi_u32 s%d, s%d, %d" % (sT2, sT1, (2**32 + 5) // 6)); a("s_mul_i32 s%d, s%d, 6" % (sT3, sT2)); a("s_sub_u32 s%d, s%d, s%d" % (sT3, sT1, sT3))
    a("s_mul_i32 s%d, s%d, 96" % (sT0, sB)); a("s_lshl_b32 s%d, s%d, 4" % (sT3, sT3)); a("s_add_u32 s%d, s%d, s%d" % (sT0, sT0, sT3))
    a("s_mul_i32 s%d, s%d, 1152" % (sT0, sT0)); a("s_lshl_b32 s%d, s%d, 6" % (sT2, sT2)); a("s_add_u32 s%d, s%d, s%d" % (sT0, sT0, sT2))
    a("v_and_b32 v3, 15, v1"); a("v_mul_u32_u24 v3, 1152, v3"); a("v_lshrrev_b32 v4, 4, v1"); a("v_lshlrev_b32 v4, 3, v4"); a("v_add_u32 v3, v3, v4")
    a("s_mov_b32 s%d, s14" % sK); a("s_mov_b32 s%d, s15" % (sK + 1)); a("s_mov_b32 s%d, %d" % (sK + 2, 16 * 96 * 576 * 2)); a("s_mov_b32 s%d, 0x20000" % (sK + 3))
    for h in range(16):
        a("s_waitcnt vmcnt(%d)" % (15 - h))
        for r in range(4):
            src = 16 + 4 * h + r
            if h == 0:
                a("v_lshlrev_b32 v%d, 16, v%d" % (8 + 2 * r, src)); a("v_and_b32 v%d, 0xffff0000, v%d" % (9 + 2 * r, src))
            else:
                a("v_lshlrev_b32 v5, 16, v%d" % src); a("v_and_b32 v6, 0xffff0000, v%d" % src)
                a("v_add_f32 v%d, v%d, v5" % (8 + 2 * r, 8 + 2 * r)); a("v_add_f32 v%d, v%d, v6" % (9 + 2 * r, 9 + 2 * r))
    for r in range(4): a("v_cvt_pk_bf16_f32 v%d, v%d, v%d" % (16 + r, 8 + 2 * r, 9 + 2 * r))
    a("buffer_store_dwordx2 v[16:17], v3, %s, s%d offen" % (srd(sK), sT0))
    a("buffer_store_dwordx2 v[18:19], v3, %s, s%d offen offset:32" % (srd(sK), sT0))
    a("L_k2_end:")
    a("s_endpgm")
    return a.text()

def build(fn, stamp=False):
    global STAMP
    STAMP = stamp
    k1, k2 = gen_k1(), gen_k2()
    for n, t in (("k1", k1), ("k2", k2)):
        errs = hazard.check(t, n)
        for e in errs[:20]: print(e)
        if errs: print("%s: %d hazard warnings" % (n, len(errs)))
    txt = build_file([("gqa_main_kernel", 256, 512, LDS_BYTES), ("gqa_reduce_kernel", 432, 256, 0)],
                     [("gqa_main_kernel", k1, 256, 96, 256), ("gqa_reduce_kernel", k2, 96, 96, 96)])
    open(fn, "w").write(txt)
    print(fn, len(txt), "bytes,", txt.count("\n"), "lines")

if __name__ == "__main__":
    build("v1.s"); build("v1_st.s", True)
```

```python
import hazard

def cost(text):
    op = text.split()[0]
    if op.startswith("v_mfma"): return 8
    if op in ("v_exp_f32", "v_rcp_f32", "v_log_f32"): return 8
    if op.startswith("v_cvt_pk"): return 4.5
    if op.startswith("v_"): return 4
    if op == "ds_read_b128": return 7
    if op.startswith("ds_read"): return 5.5
    if op.startswith("ds_write"): return 8
    if op.startswith("buffer_") or op.startswith("global_"): return 8
    if op.startswith("s_"): return 1
    return 4

class Item:
    def __init__(s, text, deps=(), lo=0, hi=10**6, pri=0):
        s.text = text if isinstance(text, list) else [text]
        s.deps = list(deps); s.lo = lo; s.hi = hi; s.pri = pri; s.gap = None
        s.cost = sum(cost(t) for t in s.text)

def schedule(mfmas, items, pre=(), minfill=8.0):
    n = len(mfmas)
    for it in items: it.hi = min(it.hi, n - 1)
    changed = True
    while changed:
        changed = False
        for it in items:
            for d in it.deps:
                if d.hi > it.hi - 1 and it.hi - 1 >= d.lo:
                    d.hi = it.hi - 1; changed = True
    out = list(pre)
    rem = list(items)
    for g in range(n):
        out.append(mfmas[g])
        W = sum(it.cost for it in rem)
        budget = max(minfill, W / (n - g))
        fill = 0.0
        while True:
            ready = [it for it in rem if it.lo <= g and all(d.gap is not None and d.gap < g for d in it.deps)]
            if not ready: break
            ready.sort(key=lambda it: (it.hi, -it.pri, rem.index(it)))
            it = ready[0]
            forced = it.hi <= g
            if not forced and fill + it.cost / 2 > budget: break
            it.gap = g; rem.remove(it); out += it.text; fill += it.cost
    if rem:
        for it in rem:
            out.append("s_nop 0"); out += it.text; it.gap = n
    return out

def model_cycles(lines):
    tot = 0; cur = None
    for l in lines:
        l = l.strip()
        if not l or l.endswith(":"): continue
        if l.startswith("v_mfma"):
            if cur is not None: tot += max(16, cur)
            cur = 8
        else:
            c = cost(l)
            if cur is None: tot += c
            else: cur += c
    if cur is not None: tot += max(16, cur)
    return tot

def auto_lgkm(lines, entry_lines=(), age=None):
    q = []
    clock = [0]
    def run(ls, emit):
        nonlocal q
        out = []
        for l in ls:
            p = hazard.parse(l)
            if p is None:
                out.append(l); continue
            if p["op"] == "s_waitcnt" and "lgkmcnt" in l:
                n = int(l.split("lgkmcnt(")[1].split(")")[0])
                if len(q) > n: q = q[len(q) - n:] if n else []
                out.append(l); continue
            touched = (p["uses"] | p["defs"])
            need = -1
            for i, (d, t) in enumerate(q):
                if d & touched: need = i
            if need >= 0:
                if age is not None:
                    while need + 1 < len(q) and clock[0] - q[need + 1][1] >= age: need += 1
                n = min(len(q) - 1 - need, 15)
                out.append("s_waitcnt lgkmcnt(%d)" % n)
                q = q[len(q) - n:] if n else []
            if p["kind"] == "mfma": clock[0] += 1
            if p["kind"] == "ds":
                q.append((set(p["defs"]), clock[0]))
            out.append(l)
        return out
    run(list(entry_lines), False)
    return run(list(lines), True)
```

```python
import sys, struct
from asmlib import *
import hazard
from sched import Item, schedule, auto_lgkm, model_cycles

def f32(x): return "0x%08x" % struct.unpack("<I", struct.pack("<f", x))[0]
C_SCALE = 1.4426950408889634 / (128 ** 0.5)

PAIR = 35840
KGRP, VGRP = 1088, 1152
VOFF = 16 * KGRP
WBASE = 2 * PAIR
XBASE = WBASE + 4 * 16384
XSLOT = 12288
EXCH = 3 * PAIR
LDS_BYTES = 163840
PART = 108 * 1024
WS_PART = 1 << 20
WS_FLAG = 1 << 19
KNAME = 'standalone__gqa_block_cached__near_ridge_kernel'
OPT = set()
STAMP = False

sK, sV, sX, sWQ, sWO, sP = 20, 24, 28, 32, 36, 40
sWAVE, sB, sH, sLW = 44, 45, 46, 47
sT0, sT1, sT2, sT3 = 48, 49, 50, 51
sLWK, sLW3072, sLWV, sLW4096 = 52, 53, 59, 66
sTHR, sCNT, sDK, sNEG, sSLOT = 54, 55, 56, 57, 58
sSTAMP = 60
sTM = 62
sQI, sRH = 64, 65
sXCD, sIDX = 67, 68
sPF = 72
sPF2 = 76
sFL = 8
sPB = 4
sOUT = 12
def srd(b): return "s[%d:%d]" % (b, b + 3)
def vr(b, n=1): return "v%d" % b if n == 1 else "v[%d:%d]" % (b, b + n - 1)

def _stamp(a, idx, instr):
    if not STAMP: return
    a("%s s[%d:%d]" % (instr, sTM, sTM + 1)); a("s_waitcnt lgkmcnt(0)")
    if a.stamp_wave == 0: a("s_mov_b32 s%d, s%d" % (80 + idx, sTM))
    else: a("v_writelane_b32 v40, s%d, %d" % (sTM, idx))
def stamp(a, idx, cyc=None):
    _stamp(a, idx, "s_memrealtime")
    if cyc is not None: _stamp(a, cyc, "s_memtime")
def stamp_flush(a):
    if not STAMP: return
    sk = a.label("Lst")
    a("s_cmp_lg_u32 s%d, %d" % (sWAVE, a.stamp_wave)); a("s_cbranch_scc1 %s" % sk)
    if a.stamp_wave == 0:
        a("v_mov_b32 v1, 0")
        for i in range(16):
            if i in (8, 9, 15): continue
            a("v_mov_b32 v2, s%d" % (80 + i)); a("global_store_dword v1, v2, s[%d:%d] offset:%d" % (sSTAMP, sSTAMP + 1, 4 * i))
    else:
        a("v_and_b32 v2, 63, v0"); a("v_lshlrev_b32 v3, 2, v2")
        a("v_cmp_lt_u32 vcc, 14, v2"); a("v_cmp_eq_u32 s[96:97], 8, v2"); a("s_or_b64 vcc, vcc, s[96:97]"); a("v_cmp_eq_u32 s[96:97], 9, v2"); a("s_or_b64 vcc, vcc, s[96:97]")
        a("s_and_saveexec_b64 s[96:97], vcc")
        a("global_store_dword v3, v40, s[%d:%d]" % (sSTAMP, sSTAMP + 1))
        a("s_mov_b64 exec, s[96:97]")
    a("%s:" % sk)

def common_prologue(a, endlab, nwg):
    a("s_cmp_ge_u32 s2, %d" % nwg); a("s_cbranch_scc1 %s" % endlab)
    a("s_load_dwordx8 s[4:11], s[0:1], 0")
    a("s_load_dwordx4 s[12:15], s[0:1], 32")
    a("s_load_dwordx4 s[16:19], s[0:1], 48")
    a("v_lshrrev_b32 v1, 6, v0")
    a("s_nop 0")
    a("v_readfirstlane_b32 s%d, v1" % sWAVE)
    a("s_waitcnt lgkmcnt(0)")

class VQ:
    def __init__(s): s.q = []
    def issue(s, tag, n=1): s.q += [tag] * n
    def wait(s, tags):
        idx = [i for i, t in enumerate(s.q) if t in tags]
        if not idx: return None
        last = max(idx); n = len(s.q) - 1 - last
        s.q = s.q[last + 1:]
        return min(n, 63)

KV_FLAGS = " nt"
W_FLAGS = ""
O_FLAGS = ""
P_FLAGS = " sc0 sc1"


def gen_loader(a):
    a("s_sub_u32 s%d, s%d, 4" % (sLW, sWAVE))
    a("v_and_b32 v1, 63, v0")
    if STAMP: a("v_mov_b32 v40, 0")
    a("s_cmp_ge_u32 s%d, 2" % sLW); a("s_cbranch_scc1 L_kvloader")
    gen_wloader(a)
    a("L_kvloader:")
    gen_kvloader(a)

def mk_bar(a, q, trace_base=None):
    def bar(tags):
        n = q.wait(tags) if tags else None
        if n is not None and "nowait" not in OPT: a("s_waitcnt vmcnt(%d)" % n)
        if "trace" in OPT and bar.n < 48 and trace_base is not None: stamp(a, 16 + bar.n)
        a("s_barrier")
        bar.n += 1
    bar.n = 0
    return bar

def dma(a, vreg, srdb, soff, imm, flags):
    if "noload" in OPT: return
    a("buffer_load_dwordx4 v%d, %s, s%d offen offset:%d%s lds" % (vreg, srd(srdb), soff, imm, flags))

def gen_wloader(a):
    vW, vX, vO = 10, 14, 16
    a.stamp_wave = 4
    sA, sBb = sLWK, sLWV
    a("v_lshrrev_b32 v6, 5, v1"); a("v_and_b32 v7, 31, v1")
    a("s_lshl_b32 s%d, s%d, 17" % (sT1, sLW))
    a("v_lshlrev_b32 v8, 13, v6"); a("v_add_u32 v8, s%d, v8" % sT1)
    for var in range(4):
        a("v_add_u32 v5, %d, v6" % (2 * (var & 1) + 4 * (var >> 1))); a("v_lshlrev_b32 v5, 1, v5"); a("v_xor_b32 v5, v5, v7")
        a("v_lshlrev_b32 v5, 4, v5"); a("v_add_u32 v%d, v8, v5" % (vW + var))
    a("v_lshrrev_b32 v6, 3, v1"); a("v_and_b32 v7, 7, v1")
    a("s_mul_i32 s%d, s%d, 48" % (sT1, sLW)); a("v_add_u32 v8, s%d, v6" % sT1); a("v_mul_u32_u24 v8, 1152, v8")
    a("v_lshrrev_b32 v9, 1, v6")
    for i in range(2):
        a("v_add_u32 v5, %d, v9" % (4 * i)); a("v_xor_b32 v5, v5, v7"); a("v_lshlrev_b32 v5, 4, v5"); a("v_add_u32 v%d, v8, v5" % (vX + i))
    a("v_mul_u32_u24 v8, 1152, v6")
    a("v_and_b32 v5, 3, v9"); a("v_lshlrev_b32 v5, 1, v5"); a("v_xor_b32 v5, v5, v7"); a("v_lshlrev_b32 v5, 4, v5"); a("v_add_u32 v%d, v8, v5" % vO)
    a("s_lshl_b32 s%d, s%d, 13" % (sA, sLW))
    a("s_mul_i32 s%d, s%d, 6144" % (sBb, sLW))
    a("s_lshl_b32 s%d, s%d, 14" % (sLW4096, sLW))
    a("s_mul_i32 s%d, s%d, %d" % (sLW3072, sLW, 128 * 1152))
    q = VQ(); bar = mk_bar(a, q, 0)
    sWK, sXK, sOK = 98, 99, 100
    if "norot" in OPT:
        a("s_mov_b32 s%d, 0" % sWK); a("s_mov_b32 s%d, 0" % sXK); a("s_mov_b32 s%d, 0" % sOK)
    else:
        a("s_and_b32 s%d, s%d, 7" % (sT0, sIDX)); a("s_lshr_b32 s%d, s%d, 3" % (sT1, sIDX)); a("s_lshl_b32 s%d, s%d, 1" % (sT1, sT1)); a("s_add_u32 s%d, s%d, s%d" % (sT0, sT0, sT1))
        a("s_cmp_ge_u32 s%d, 9" % sT0); a("s_cselect_b32 s%d, 9, 0" % sT1); a("s_sub_u32 s%d, s%d, s%d" % (sT0, sT0, sT1))
        a("s_lshl_b32 s%d, s%d, 19" % (sWK, sT0)); a("s_lshl_b32 s%d, s%d, 7" % (sXK, sT0))
        a("s_and_b32 s%d, s%d, 7" % (sT0, sB)); a("s_lshl_b32 s%d, s%d, 7" % (sOK, sT0))
    def adv(reg, step, wrap):
        a("s_add_u32 s%d, s%d, %d" % (reg, reg, step)); a("s_cmp_eq_u32 s%d, %d" % (reg, wrap)); a("s_cselect_b32 s%d, 0, s%d" % (reg, reg))
    def iss_W(s):
        for ii in range(8):
            if ii % 4 == 0: a("s_add_u32 m0, s%d, %d" % (sA, WBASE + ((s + 2) % 4) * 16384 + (ii >> 2) * 4096))
            a("s_add_u32 s%d, s%d, %d" % (sT0, sWK, 16384 * ii - (ii & 3) * 1024))
            dma(a, vW + (ii & 1) + 2 * (ii >> 2), sWQ, sT0, (ii & 3) * 1024, W_FLAGS)
        adv(sWK, 262144, 18 * 262144)
        q.issue("W%d" % s, 8)
    def iss_X(cp):
        for ii in range(6):
            if ii % 4 == 0: a("s_add_u32 m0, s%d, %d" % (sBb, XBASE + (cp % 2) * XSLOT + (ii >> 2) * 4096))
            a("s_add_u32 s%d, s%d, %d" % (sT0, sXK, 9216 * ii - (ii & 3) * 1024))
            dma(a, vX + (ii & 1), sX, sT0, (ii & 3) * 1024, W_FLAGS)
        adv(sXK, 128, 9 * 128)
        q.issue("X%d" % cp, 6)
    def iss_O(c):
        T = 16 + c
        a("s_add_u32 s%d, s%d, s%d" % (sT1, sLW3072, sOK))
        for ii in range(16):
            if ii % 4 == 0: a("s_add_u32 m0, s%d, %d" % (sLW4096, (T % 4) * PAIR + (ii >> 2) * 4096))
            a("s_add_u32 s%d, s%d, %d" % (sT0, sT1, 9216 * ii - (ii & 3) * 1024))
            dma(a, vO, sWO, sT0, (ii & 3) * 1024, O_FLAGS)
        adv(sOK, 128, 9 * 128)
        q.issue("I%d" % T, 16)
    def prefetch_o():
        a("s_lshr_b32 s%d, s%d, 2" % (sT0, sH)); a("s_mul_i32 s%d, s%d, %d" % (sT0, sT0, 4 * 294912))
        a("s_add_u32 s%d, s%d, s%d" % (sPF2, sWOP, sT0)); a("s_addc_u32 s%d, s%d, 0" % (sPF2 + 1, sWOP + 1)); a("s_mov_b32 s%d, %d" % (sPF2 + 2, 4 * 294912)); a("s_mov_b32 s%d, 0x20000" % (sPF2 + 3))
        a("s_lshl_b32 s%d, s%d, 1" % (sT0, sIDX)); a("s_add_u32 s%d, s%d, s%d" % (sT0, sT0, sLW)); a("s_mul_i32 s%d, s%d, 144" % (sT0, sT0))
        a("v_add_u32 v5, s%d, v1" % sT0); a("v_lshlrev_b32 v6, 7, v5")
        a("buffer_load_dword v34, v6, %s, 0 offen" % srd(sPF2))
        a("v_add_u32 v6, 8192, v6"); a("buffer_load_dword v35, v6, %s, 0 offen" % srd(sPF2))
        a("v_add_u32 v6, 8192, v6"); a("v_mov_b32 v7, 0x40000000"); a("v_cmp_gt_u32 vcc, 16, v1"); a("s_nop 1"); a("v_cndmask_b32 v6, v7, v6, vcc")
        a("buffer_load_dword v36, v6, %s, 0 offen" % srd(sPF2))
        q.issue("PF", 3)
    iss_W(0); iss_X(0); iss_W(1); iss_W(2); iss_X(1); iss_W(3)
    for s in range(18):
        bar(["W%d" % s, "X%d" % (s // 2)])
        if s >= 1 and s + 3 <= 17: iss_W(s + 3)
        if s >= 2 and s % 2 == 0 and s // 2 + 1 <= 8: iss_X(s // 2 + 1)
    bar(None)
    stamp(a, 8)
    for n in range(1, 17):
        bar(["I%d" % n] if n >= 16 else None)
        if n == PF_O_AT and "pfo" in OPT: prefetch_o()
        if n + 2 >= 16: iss_O(n + 2 - 16)
    a("s_barrier"); a("s_barrier")
    for n in range(17, 24):
        bar(["I%d" % n] + (["I24"] if n == 23 else []))
        if n + 2 <= 24: iss_O(n + 2 - 16)
    stamp(a, 9)
    gen_reducer(a)

def gen_kvloader(a):
    vK, vV = 10, 11
    a.stamp_wave = -1
    a("s_sub_u32 s%d, s%d, 2" % (sLW, sLW))
    a("v_lshrrev_b32 v2, 4, v1"); a("v_and_b32 v3, 15, v1")
    a("s_lshl_b32 s%d, s%d, 13" % (sT0, sLW))
    a("v_lshlrev_b32 v4, 8, v2"); a("v_add_u32 v4, s%d, v4" % sT0)
    a("v_xor_b32 v5, v2, v3"); a("v_lshlrev_b32 v5, 4, v5"); a("v_add_u32 v%d, v4, v5" % vK)
    a("v_lshlrev_b32 v5, 1, v2"); a("v_xor_b32 v5, v5, v3"); a("v_lshlrev_b32 v5, 4, v5"); a("v_add_u32 v%d, v4, v5" % vV)
    a("s_mul_i32 s%d, s%d, %d" % (sLWK, sLW, 8 * KGRP)); a("s_mul_i32 s%d, s%d, %d" % (sLWV, sLW, 8 * VGRP))
    q = VQ(); bar = mk_bar(a, q, None)
    def iss(T, isK):
        for ii in range(8):
            if ii % 4 == 0: a("s_mov_b32 s%d, %d" % (sT0, T * 16384 + (ii >> 2) * 4096))
            grp = KGRP if isK else VGRP
            a("s_add_u32 m0, s%d, %d" % (sLWK if isK else sLWV, (T % 4) * PAIR + (0 if isK else VOFF) + ii * grp - (ii & 3) * 1024))
            if ii % 4: a("s_nop 0")
            else: a("s_nop 0")
            dma(a, vK if isK else vV, sK if isK else sV, sT0, (ii & 3) * 1024, KV_FLAGS)
        q.issue("I%d" % T, 8)
    def prefetch_q():
        sk = a.label("Lpfq"); skx = a.label("Lpfx")
        a("s_cmp_lg_u32 s%d, 0" % sLW); a("s_cbranch_scc1 %s" % sk)
        a("s_cmp_ge_u32 s%d, 28" % sIDX); a("s_cbranch_scc1 %s" % sk)
        a("s_cmp_ge_u32 s%d, 16" % sIDX); a("s_cbranch_scc1 %s" % skx)
        a("s_lshl_b32 s%d, s%d, 2" % (sT0, sIDX)); a("v_add_u32 v5, s%d, v2" % sT0); a("v_lshlrev_b32 v5, 13, v5"); a("v_lshlrev_b32 v6, 7, v3"); a("v_add_u32 v5, v5, v6")
        for cp in range(1, 9):
            a("s_mov_b32 s%d, %d" % (sT0, cp * 64 * 8192)); a("buffer_load_dword v%d, v5, %s, s%d offen" % (20 + cp, srd(sPF), sT0))
        a("s_branch %s" % sk)
        a("%s:" % skx)
        a("s_sub_u32 s%d, s%d, 16" % (sT0, sIDX)); a("s_lshl_b32 s%d, s%d, 6" % (sT0, sT0)); a("v_add_u32 v5, s%d, v1" % sT0); a("v_mul_u32_u24 v5, 1152, v5")
        for cp in range(1, 9):
            a("s_mov_b32 s%d, %d" % (sT0, cp * 128)); a("buffer_load_dword v%d, v5, %s, s%d offen" % (20 + cp, srd(sPF2), sT0))
        a("%s:" % sk)
    def clear_flags():
        sk = a.label("Lclr")
        a("s_cmp_lg_u32 s%d, 1" % sLW); a("s_cbranch_scc1 %s" % sk)
        a("v_mov_b32 v20, 0"); a("v_mov_b32 v21, 0"); a("v_mov_b32 v22, 0"); a("v_mov_b32 v23, 0")
        a("s_lshl_b32 s%d, s%d, 4" % (sT0, sH))
        a("v_lshlrev_b32 v5, 8, v1"); a("v_add_u32 v5, s%d, v5" % sT0); a("v_mov_b32 v7, 0x40000000"); a("v_cmp_gt_u32 vcc, 9, v1"); a("s_nop 1"); a("v_cndmask_b32 v5, v7, v5, vcc")
        a("buffer_store_dwordx4 v[20:23], v5, %s, 0 offen sc0 sc1" % srd(sFL))
        a("s_waitcnt vmcnt(0)")
        a("s_lshl_b32 s%d, s%d, 4" % (sT0, sB)); a("v_mov_b32 v5, s%d" % sT0); a("v_mov_b32 v6, 1")
        a("s_mov_b64 s[96:97], exec"); a("s_mov_b64 exec, 1")
        a("global_atomic_add v5, v6, s[16:17] sc1")
        a("s_mov_b64 exec, s[96:97]")
        a("%s:" % sk)
    if "pfq" in OPT: prefetch_q()
    clear_flags()
    for s in range(18):
        bar(None)
        for kind, T in KSCHED.get(s, []): iss(T, kind == "K")
    bar(["I0"])
    iss(3, True); iss(3, False)
    for n in range(1, 17):
        bar(["I%d" % n] if n < 16 else None)
        if n >= 2 and n + 2 < 16: iss(n + 2, True); iss(n + 2, False)
    a("s_barrier"); a("s_barrier")
    for n in range(17, 24): bar(None)
    gen_reducer(a, kv=True)

KSCHED = {2: [("K", 0)], 5: [("V", 0)], 8: [("K", 1)], 11: [("V", 1)], 16: [("K", 2)], 17: [("V", 2)]}

def gen_reducer(a, kv=False):
    if "nored" in OPT:
        if not kv: stamp_flush(a)
        a("s_endpgm"); return
    sR, sC = sLW, sCNT
    a("s_sub_u32 s%d, s%d, 4" % (sR, sWAVE))
    a("s_mul_i32 s%d, s%d, 48" % (sT0, sH)); a("v_add_u32 v2, s%d, v1" % sT0)
    a("v_lshlrev_b32 v3, 4, v2"); a("v_mov_b32 v7, 0x40000000"); a("v_cmp_gt_u32 vcc, 48, v1"); a("s_nop 1"); a("v_cndmask_b32 v3, v7, v3, vcc")
    a("v_lshrrev_b32 v4, 6, v2"); a("v_and_b32 v5, 63, v2")
    a("v_cmp_le_u32 s[96:97], 6, v4"); a("s_nop 1"); a("v_cndmask_b32 v6, 0, 1, s[96:97]")
    a("v_mul_u32_u24 v8, 6, v6"); a("v_sub_u32 v4, v4, v8")
    a("v_lshlrev_b32 v4, 4, v4"); a("v_and_b32 v8, 15, v5"); a("v_add_u32 v4, v4, v8"); a("v_mul_u32_u24 v4, 1152, v4")
    a("v_lshlrev_b32 v6, 6, v6"); a("v_lshrrev_b32 v5, 4, v5"); a("v_lshlrev_b32 v5, 3, v5"); a("v_add_u32 v4, v4, v6"); a("v_add_u32 v4, v4, v5")
    a("v_cndmask_b32 v4, v7, v4, vcc")
    a("v_lshlrev_b32 v9, 2, v1")
    lp, giveup = a.label("Lclrwait"), a.label("Lgiveup")
    a("s_lshl_b32 s%d, s%d, 4" % (sT0, sB)); a("v_mov_b32 v10, s%d" % sT0)
    a("s_mov_b32 s%d, 0" % sT3)
    a("%s:" % lp)
    a("global_load_dword v11, v10, s[16:17] sc1"); a("s_waitcnt vmcnt(0)"); a("v_readfirstlane_b32 s%d, v11" % sT1)
    a("s_add_u32 s%d, s%d, 1" % (sT3, sT3)); a("s_cmp_gt_u32 s%d, %d" % (sT3, SPIN_MAX)); a("s_cbranch_scc1 %s" % giveup)
    a("s_cmp_lt_u32 s%d, 16" % sT1); a("s_cbranch_scc1 %s" % lp)
    a("s_mov_b32 s%d, s%d" % (sC, sR))
    task = a.label("Ltask"); poll = a.label("Lpoll")
    a("%s:" % task)
    a("s_lshl_b32 s%d, s%d, 8" % (sT0, sC))
    a("s_mov_b32 s%d, 0" % sT3)
    a("%s:" % poll)
    a("buffer_load_dword v11, v9, %s, s%d offen sc1" % (srd(sFL), sT0)); a("s_waitcnt vmcnt(0)")
    a("v_cmp_eq_u32 vcc, 1, v11")
    a("s_add_u32 s%d, s%d, 1" % (sT3, sT3)); a("s_cmp_gt_u32 s%d, %d" % (sT3, SPIN_MAX)); a("s_cbranch_scc1 %s" % giveup)
    a("s_cmp_eq_u64 vcc, -1"); a("s_cbranch_scc0 %s" % poll)
    a("s_mul_i32 s%d, s%d, 12288" % (sT0, sC))
    for h in range(16):
        a("buffer_load_dwordx4 v[%d:%d], v3, %s, s%d offen sc1" % (64 + 4 * h, 67 + 4 * h, srd(sPB), sT0))
        if h < 15: a("s_add_u32 s%d, s%d, %d" % (sT0, sT0, PART))
    for h in range(16):
        a("s_waitcnt vmcnt(%d)" % (15 - h))
        for r in range(4):
            src = 64 + 4 * h + r
            if h == 0:
                a("v_lshlrev_b32 v%d, 16, v%d" % (48 + 2 * r, src)); a("v_and_b32 v%d, 0xffff0000, v%d" % (49 + 2 * r, src))
            else:
                a("v_lshlrev_b32 v12, 16, v%d" % src); a("v_and_b32 v13, 0xffff0000, v%d" % src)
                a("v_add_f32 v%d, v%d, v12" % (48 + 2 * r, 48 + 2 * r)); a("v_add_f32 v%d, v%d, v13" % (49 + 2 * r, 49 + 2 * r))
    for r in range(4): a("v_cvt_pk_bf16_f32 v%d, v%d, v%d" % (56 + r, 48 + 2 * r, 49 + 2 * r))
    if "norot" in OPT: a("s_lshl_b32 s%d, s%d, 7" % (sT0, sC))
    else:
        a("s_and_b32 s%d, s%d, 7" % (sT0, sB)); a("s_add_u32 s%d, s%d, s%d" % (sT0, sT0, sC))
        a("s_cmp_ge_u32 s%d, 9" % sT0); a("s_cselect_b32 s%d, 9, 0" % sT1); a("s_sub_u32 s%d, s%d, s%d" % (sT0, sT0, sT1)); a("s_lshl_b32 s%d, s%d, 7" % (sT0, sT0))
    a("buffer_store_dwordx2 v[56:57], v4, %s, s%d offen" % (srd(sOUT), sT0))
    a("buffer_store_dwordx2 v[58:59], v4, %s, s%d offen offset:32" % (srd(sOUT), sT0))
    a("s_add_u32 s%d, s%d, 4" % (sC, sC)); a("s_cmp_lt_u32 s%d, 9" % sC); a("s_cbranch_scc1 %s" % task)
    a("%s:" % giveup)
    if not kv:
        stamp(a, 15)
        stamp_flush(a)
    a("s_endpgm")
SPIN_MAX = 200000
sWOP = 70

PF_O_AT = 10
CMP_SLACK = 6
FLAG_DELAY = 4

def O_(j, db): return (j * 8 + db) * 4
def Q_(j, s): return 96 + (j * 4 + s) * 4
def KF(f): return 144 + 4 * f
def VF(db): return 176 + 4 * db
def S_(par): return 208 + 8 * par
def P_(par): return 224 + 4 * par
def N_(j): return 232 + 4 * j
def L_(j): return 244 + j
vKA, vVA, vT, vT2, vS, vLANE = 247, 248, 252, 253, 254, 255
MF = "v_mfma_f32_16x16x32_bf16"

def interleave(mfmas, fillers):
    out = list(fillers.get(-1, []))
    for i, m in enumerate(mfmas):
        out.append(m); out += fillers.get(i, [])
    return out
def spread(items, slots):
    d = {}; n = len(items)
    for i, it in enumerate(items): d.setdefault(slots[i * len(slots) // n], []).append(it)
    return d
def merge(*ds):
    o = {}
    for d in ds:
        for k, v in d.items(): o.setdefault(k, []).extend(v)
    return o

KORD = [(kb, s) for s in range(4) for kb in range(2)]
def k_read(kb, s, half, ad=None):
    return "ds_read_b128 %s, v%d offset:%d" % (vr(KF(kb * 4 + s), 4), vKA if ad is None else ad, half * 8 * KGRP + kb * 4 * KGRP + s * 64)
def v_reads(db, half):
    A, cc = divmod(db, 4)
    o = half * 8 * VGRP + A * 128
    return ["ds_read_b64_tr_b16 %s, v%d offset:%d" % (vr(VF(db), 2), vVA + cc, o), "ds_read_b64_tr_b16 %s, v%d offset:%d" % (vr(VF(db) + 2, 2), vVA + cc, o + 4 * VGRP)]

def gen_compute(a):
    rare = []
    a("v_and_b32 v%d, 63, v0" % vLANE)
    a("s_lshr_b32 s%d, s%d, 1" % (sQI, sWAVE)); a("s_and_b32 s%d, s%d, 1" % (sRH, sWAVE))
    g, rp, c, q = 240, 241, 242, 243
    a("v_lshrrev_b32 v%d, 4, v%d" % (g, vLANE)); a("v_bfe_u32 v%d, v%d, 2, 2" % (rp, vLANE)); a("v_and_b32 v%d, 3, v%d" % (c, vLANE)); a("v_and_b32 v%d, 15, v%d" % (q, vLANE))
    vWA, vXA = 232, 244
    t, t2 = vT, vT2
    a("v_lshlrev_b32 v%d, 3, v%d" % (t, g)); a("v_add_u32 v%d, v%d, v%d" % (t, t, rp)); a("v_lshlrev_b32 v%d, 9, v%d" % (t, t))
    a("v_and_b32 v%d, 1, v%d" % (t2, g)); a("v_lshlrev_b32 v%d, 2, v%d" % (t2, t2)); a("v_add_u32 v%d, v%d, v%d" % (t2, t2, rp)); a("v_lshlrev_b32 v%d, 5, v%d" % (t2, t2))
    a("v_add_u32 v%d, v%d, v%d" % (t, t, t2)); a("v_lshlrev_b32 v%d, 3, v%d" % (t2, c)); a("v_add_u32 v%d, v%d, v%d" % (t, t, t2))
    a("s_lshl_b32 s%d, s%d, 8" % (sT0, sQI)); a("s_add_u32 s%d, s%d, %d" % (sT0, sT0, WBASE)); a("v_add_u32 v%d, s%d, v%d" % (t, sT0, t))
    assert WBASE % 256 == 0 and XBASE % 128 == 0
    for db in range(8): a("v_xor_b32 v%d, %d, v%d" % (vWA + db, db * 32, t))
    a("s_mul_i32 s%d, s%d, %d" % (sT0, sRH, 48 * 128)); a("s_add_u32 s%d, s%d, %d" % (sT0, sT0, XBASE))
    a("v_lshrrev_b32 v%d, 1, v%d" % (t, q)); a("v_xor_b32 v%d, v%d, v%d" % (t, t, g)); a("v_lshlrev_b32 v%d, 4, v%d" % (t, t))
    a("v_lshlrev_b32 v%d, 7, v%d" % (t2, q)); a("v_add_u32 v%d, v%d, v%d" % (t, t, t2)); a("v_add_u32 v%d, s%d, v%d" % (vXA, sT0, t)); a("v_xor_b32 v%d, 64, v%d" % (vXA + 1, vXA))
    a("v_lshrrev_b32 v%d, 2, v%d" % (t, q)); a("v_mul_u32_u24 v%d, %d, v%d" % (t, KGRP, t))
    a("v_and_b32 v%d, 3, v%d" % (t2, q)); a("v_lshlrev_b32 v%d, 8, v%d" % (vKA, t2)); a("v_add_u32 v%d, v%d, v%d" % (t, t, vKA))
    a("v_xor_b32 v%d, v%d, v%d" % (t2, t2, g)); a("v_lshlrev_b32 v%d, 4, v%d" % (t2, t2)); a("v_add_u32 v%d, v%d, v%d" % (vKA, t, t2))
    a("v_mul_u32_u24 v%d, %d, v%d" % (t, VGRP, g)); a("v_lshlrev_b32 v%d, 8, v%d" % (t2, rp)); a("v_add_u32 v%d, v%d, v%d" % (t, t, t2))
    a("v_lshlrev_b32 v%d, 3, v%d" % (t2, c)); a("v_add_u32 v%d, v%d, v%d" % (t, t, t2)); a("v_add_u32 v%d, %d, v%d" % (t, VOFF, t))
    for cc in range(4):
        a("v_xor_b32 v%d, %d, v%d" % (t2, cc, rp)); a("v_lshlrev_b32 v%d, 5, v%d" % (t2, t2)); a("v_add_u32 v%d, v%d, v%d" % (vVA + cc, t, t2))
    stamp(a, 0, 10)

    def ABUF(buf, db): return 144 + 32 * buf + 4 * db
    def BBUF(buf, j): return 208 + 12 * buf + 4 * j
    def q_reads(s):
        buf = s & 1; wo = ((s + 2) % 4) * 16384; xo = ((s // 2) % 2) * XSLOT
        r = []
        for j in range(3): r.append("ds_read_b128 %s, v%d offset:%d" % (vr(BBUF(buf, j), 4), vXA + (s & 1), xo + j * 2048))
        for db in range(8):
            r.append("ds_read_b64_tr_b16 %s, v%d offset:%d" % (vr(ABUF(buf, db), 2), vWA + db, wo))
            r.append("ds_read_b64_tr_b16 %s, v%d offset:%d" % (vr(ABUF(buf, db) + 2, 2), vWA + db, wo + 2048))
        return r
    a("s_barrier")
    for x in q_reads(0): a(x)
    for s in range(18):
        buf = s & 1
        a("s_waitcnt lgkmcnt(0)")
        a("s_barrier")
        mf = []
        for db in range(8):
            for j in range(3):
                cc = "0" if s == 0 else vr(O_(j, db), 4)
                mf.append("%s %s, %s, %s, %s" % (MF, vr(O_(j, db), 4), vr(ABUF(buf, db), 4), vr(BBUF(buf, j), 4), cc))
        rd = q_reads(s + 1) if s < 17 else [k_read(kb, s_, 0) for kb, s_ in KORD]
        for x in interleave(mf, spread(rd, list(range(0, 17)))): a(x)
    stamp(a, 1, 11)
    a("s_nop 7")
    a("s_mov_b32 s%d, %s" % (sT0, f32(C_SCALE))); a("s_mov_b32 s%d, s%d" % (sT0 + 1, sT0))
    for j in range(3):
        for s in range(4):
            X, Y, D = O_(j, 2 * s), O_(j, 2 * s + 1), Q_(j, s)
            for r in range(0, 4, 2):
                a("v_pk_mul_f32 %s, %s, s[%d:%d]" % (vr(X + r, 2), vr(X + r, 2), sT0, sT0 + 1)); a("v_pk_mul_f32 %s, %s, s[%d:%d]" % (vr(Y + r, 2), vr(Y + r, 2), sT0, sT0 + 1))
            a("v_cvt_pk_bf16_f32 v%d, v%d, v%d" % (D + 0, X + 0, X + 1)); a("v_cvt_pk_bf16_f32 v%d, v%d, v%d" % (D + 1, X + 2, X + 3))
            a("v_cvt_pk_bf16_f32 v%d, v%d, v%d" % (D + 2, Y + 0, Y + 1)); a("v_cvt_pk_bf16_f32 v%d, v%d, v%d" % (D + 3, Y + 2, Y + 3))
            for r in range(0, 4, 2):
                a("v_mov_b64 %s, 0" % vr(X + r, 2)); a("v_mov_b64 %s, 0" % vr(Y + r, 2))
            a("v_permlane32_swap_b32 v%d, v%d" % (D + 0, D + 2)); a("v_permlane32_swap_b32 v%d, v%d" % (D + 1, D + 3))
            a("s_nop 1")
            a("v_permlane16_swap_b32 v%d, v%d" % (D + 0, D + 2)); a("v_permlane16_swap_b32 v%d, v%d" % (D + 1, D + 3))
    a("s_waitcnt lgkmcnt(0)")
    for j in range(3):
        for kb, s_ in KORD:
            d = 176 + 8 * j + 4 * kb
            a("%s %s, %s, %s, %s" % (MF, vr(d, 4), vr(KF(kb * 4 + s_), 4), vr(Q_(j, s_), 4), "0" if s_ == 0 else vr(d, 4)))
    for r in range(224, 232, 2): a("v_mov_b64 %s, 0" % vr(r, 2))
    for j in range(3): a("v_mov_b32 v%d, 0" % L_(j))
    a("v_mov_b32 v%d, 0" % vS)
    a("s_mov_b32 s%d, %s" % (sTHR, "0x7f800000" if "norare" in OPT else f32(256.0)))
    a("s_mov_b32 s%d, 0" % sSLOT); a("s_mov_b32 s%d, 0" % sDK)
    a("s_mov_b32 s%d, 0x%x" % (sNEG, -3 * PAIR & 0xffffffff))
    a("s_mov_b64 vcc, 0")
    a("s_nop 3")
    for j in range(3):
        S = 176 + 8 * j; t, t2 = 200 + 2 * j, 201 + 2 * j
        a("v_max3_f32 v%d, v%d, v%d, v%d" % (t, S, S + 1, S + 2)); a("v_max3_f32 v%d, v%d, v%d, v%d" % (t2, S + 3, S + 4, S + 5))
        a("v_max3_f32 v%d, v%d, v%d, v%d" % (t, t, S + 6, S + 7)); a("v_max_f32 v%d, v%d, v%d" % (t, t, t2))
    for sw in ("v_permlane32_swap_b32", "v_permlane16_swap_b32"):
        for j in range(3): a("v_mov_b32 v%d, v%d" % (201 + 2 * j, 200 + 2 * j))
        a("s_nop 0")
        for j in range(3): a("%s v%d, v%d" % (sw, 200 + 2 * j, 201 + 2 * j))
        for j in range(3): a("v_max_f32 v%d, v%d, v%d" % (200 + 2 * j, 200 + 2 * j, 201 + 2 * j))
    for j in range(3):
        for i in range(4): a("v_sub_f32 v%d, 0, v%d" % (N_(j) + i, 200 + 2 * j))
    for r in range(176, 208, 2): a("v_mov_b64 %s, 0" % vr(r, 2))
    def qk_mfmas(jn, par):
        m = []
        for kb, s in KORD:
            d = S_(par) + 4 * kb
            cc = vr(N_(jn), 4) if s == 0 else vr(d, 4)
            m.append("%s %s, %s, %s, %s" % (MF, vr(d, 4), vr(KF(kb * 4 + s), 4), vr(Q_(jn, s), 4), cc))
        return m
    def pv_mfmas(jp, par):
        return ["%s %s, %s, %s, %s" % (MF, vr(O_(jp, db), 4), vr(VF(db), 4), vr(P_(par), 4), vr(O_(jp, db), 4)) for db in range(8)]
    for m in qk_mfmas(0, 0): a(m)
    a("s_nop 7")

    def rare_code(st, j, adv):
        par = (3 * st + j) & 1
        S, P = S_(par), P_(par)
        rl, cont = a.label("Lrare"), a.label("Lcont")
        r = Asm()
        r("%s:" % rl)
        if adv: r("v_subrev_u32 v%d, s%d, v%d" % (vT2, sDK, vKA))
        else: r("v_mov_b32 v%d, v%d" % (vT2, vKA))
        for kb in range(2):
            for s in range(4):
                r("ds_read_b128 %s, v%d offset:%d" % (vr(P, 4), vT2, st * 8 * KGRP + kb * 4 * KGRP + s * 64))
                r("s_waitcnt lgkmcnt(0)")
                cc = vr(N_(j), 4) if s == 0 else vr(S + 4 * kb, 4)
                r("%s %s, %s, %s, %s" % (MF, vr(S + 4 * kb, 4), vr(P, 4), vr(Q_(j, s), 4), cc))
                r("s_nop 3")
        r("s_nop 7")
        r("v_max3_f32 v%d, v%d, v%d, v%d" % (vT, S, S + 1, S + 2)); r("v_max3_f32 v%d, v%d, v%d, v%d" % (vT2, S + 3, S + 4, S + 5))
        r("v_max3_f32 v%d, v%d, v%d, v%d" % (vT, vT, S + 6, S + 7)); r("v_max_f32 v%d, v%d, v%d" % (vT, vT, vT2))
        r("v_mov_b32 v%d, v%d" % (vT2, vT)); r("s_nop 1"); r("v_permlane32_swap_b32 v%d, v%d" % (vT, vT2)); r("v_max_f32 v%d, v%d, v%d" % (vT, vT, vT2))
        r("v_mov_b32 v%d, v%d" % (vT2, vT)); r("s_nop 1"); r("v_permlane16_swap_b32 v%d, v%d" % (vT, vT2)); r("v_max_f32 v%d, v%d, v%d" % (vT, vT, vT2))
        r("v_max_f32 v%d, 0, v%d" % (vT, vT))
        r("v_sub_f32 v%d, 0, v%d" % (vT2, vT)); r("v_exp_f32 v%d, v%d" % (vT2, vT2)); r("s_nop 0")
        r("v_mul_f32 v%d, v%d, v%d" % (L_(j), L_(j), vT2))
        for db in range(8):
            for rr in range(4): r("v_mul_f32 v%d, v%d, v%d" % (O_(j, db) + rr, O_(j, db) + rr, vT2))
        for i in range(4): r("v_sub_f32 v%d, v%d, v%d" % (N_(j) + i, N_(j) + i, vT))
        for i in range(8): r("v_sub_f32 v%d, v%d, v%d" % (S + i, S + i, vT))
        for i in range(8): r("v_exp_f32 v%d, v%d" % (S + i, S + i))
        r("s_nop 0")
        r("v_add_f32 v%d, v%d, v%d" % (vS, S, S + 1))
        for i in range(2, 8): r("v_add_f32 v%d, v%d, v%d" % (vS, vS, S + i))
        for i in range(4): r("v_cvt_pk_bf16_f32 v%d, v%d, v%d" % (P + i, S + 2 * i, S + 2 * i + 1))
        r("s_nop 1")
        r("s_branch %s" % cont)
        rare.append(r.text())
        return ["s_cbranch_vccnz %s" % rl, "%s:" % cont]

    def block(st, j, prev, qk=True, kload=None, vlo=None, vhi=None, barrier=False, extra=(), pre_extra=(), klate=None):
        par = (3 * st + j) & 1
        jn, jp = (j + 1) % 3, (j - 1) % 3
        S, P = S_(par), P_(par)
        pre = []
        if barrier: pre.append("s_barrier")
        if prev is not None: pre += rare_code(*prev)
        pre += list(pre_extra)
        mf = (qk_mfmas(jn, par ^ 1) if qk else []) + pv_mfmas(jp, par ^ 1)
        nq = 8 if qk else 0
        if not qk: pre.append("s_nop 1")
        it = []
        Ladd = Item("v_add_f32 v%d, v%d, v%d" % (L_(jp), L_(jp), vS), lo=0, hi=6, pri=5)
        E = [Item("v_exp_f32 v%d, v%d" % (S + i, S + i), lo=0, pri=3) for i in range(8)]
        for i in range(1, 8): pass
        A01 = Item("v_add_f32 v%d, v%d, v%d" % (vT, S, S + 1), deps=[E[0], E[1]])
        A23 = Item("v_add_f32 v%d, v%d, v%d" % (vT2, S + 2, S + 3), deps=[E[2], E[3]])
        B_ = Item("v_add_f32 v%d, v%d, v%d" % (vT, vT, vT2), deps=[A01, A23])
        A45 = Item("v_add_f32 v%d, v%d, v%d" % (vT2, S + 4, S + 5), deps=[E[4], E[5], B_])
        C_ = Item("v_add_f32 v%d, v%d, v%d" % (vT, vT, vT2), deps=[A45])
        A67 = Item("v_add_f32 v%d, v%d, v%d" % (vT2, S + 6, S + 7), deps=[E[6], E[7], C_])
        D_ = Item("v_add_f32 v%d, v%d, v%d" % (vS, vT, vT2), deps=[A67, Ladd])
        CMP = Item("v_cmp_lt_f32 vcc, s%d, v%d" % (sTHR, vS), deps=[D_], hi=len(mf) - CMP_SLACK)
        CV = [Item("v_cvt_pk_bf16_f32 v%d, v%d, v%d" % (P + i, S + 2 * i, S + 2 * i + 1), deps=[E[2 * i], E[2 * i + 1]], hi=len(mf) - 2) for i in range(4)]
        if "nosm" in OPT: it = []
        else: it = [Ladd] + E + [A01, A23, B_, A45, C_, A67, D_, CMP] + CV
        if "nolds" not in OPT:
            if vlo is not None:
                for db in range(4): it.append(Item(v_reads(db, vlo), lo=nq + db, pri=4))
            if vhi is not None:
                for db in range(4, 8): it.append(Item(v_reads(db, vhi), lo=0, hi=nq + db - 7, pri=6))
            if kload is not None:
                for i, (kb, s) in enumerate(KORD[:6]): it.append(Item(k_read(kb, s, kload), lo=max(i, 5), hi=min(15, 9 + i), pri=4))
            if klate is not None:
                for i, (kb, s) in list(enumerate(KORD))[6:]: it.append(Item(k_read(kb, s, klate), lo=0, hi=0, pri=7))
        for x in extra: it.append(Item(x, lo=8))
        return schedule(mf, it, pre)

    def tile(last, first_of_all=False):
        L = []
        L += block(0, 0, (1, 2, True), vlo=0)
        L += block(0, 1, (0, 0, False), vhi=0, kload=1)
        L += block(0, 2, (0, 1, False), klate=1)
        L += block(1, 0, (0, 2, False), vlo=1)
        adv = ["s_add_u32 s%d, s%d, 1" % (sSLOT, sSLOT), "s_and_b32 s%d, s%d, 3" % (sSLOT, sSLOT), "s_cmp_eq_u32 s%d, 0" % sSLOT,
               "s_cselect_b32 s%d, s%d, %d" % (sDK, sNEG, PAIR), "v_add_u32 v%d, s%d, v%d" % (vKA, sDK, vKA)]
        L += block(1, 1, (1, 0, False), vhi=1, kload=(None if last else 0), barrier=True, pre_extra=adv)
        L += block(1, 2, (1, 1, True), qk=not last, klate=(None if last else 0),
                   extra=[["v_add_u32 v%d, s%d, v%d" % (vVA + cc, sDK, vVA + cc)] for cc in range(4)])
        return L
    steady = tile(False)
    del rare[:]
    steady2 = tile(False)
    lastt = tile(True)
    body = auto_lgkm(steady2, entry_lines=steady)
    lastb = auto_lgkm(lastt, entry_lines=steady)
    print("   attention steady tile: model %d cycles (%d/unit), %d instrs" % (model_cycles(body), model_cycles(body) / 6, len(body)))
    loop = a.label("Ltile")
    _stamp(a, 6, "s_memtime")
    a("s_mov_b32 s%d, 0" % sCNT)
    a("%s:" % loop)
    for x in body: a(x)
    a("s_add_u32 s%d, s%d, 1" % (sCNT, sCNT)); a("s_cmp_lt_u32 s%d, 15" % sCNT); a("s_cbranch_scc1 %s" % loop)
    _stamp(a, 7, "s_memtime")
    for x in lastb: a(x)
    for x in rare_code(1, 2, True): a(x)
    a("v_add_f32 v%d, v%d, v%d" % (L_(2), L_(2), vS))
    a("s_nop 1")
    for m in pv_mfmas(2, 1): a(m)
    a("s_nop 7")
    stamp(a, 2, 12)
    for j in range(3):
        L = L_(j)
        a("v_mov_b32 v%d, v%d" % (vT, L)); a("s_nop 1"); a("v_permlane32_swap_b32 v%d, v%d" % (L, vT)); a("v_add_f32 v%d, v%d, v%d" % (L, L, vT))
        a("v_mov_b32 v%d, v%d" % (vT, L)); a("s_nop 1"); a("v_permlane16_swap_b32 v%d, v%d" % (L, vT)); a("v_add_f32 v%d, v%d, v%d" % (L, L, vT))
        a("v_rcp_f32 v%d, v%d" % (L, L))
    a("s_nop 1")
    def OA(s, j): return 96 + (s * 3 + j) * 4
    def OB(s, j): return 144 + (s * 3 + j) * 4
    for j in range(3):
        a("v_mov_b32 v%d, v%d" % (vT2, L_(j))); a("v_mov_b32 v%d, v%d" % (vT, L_(j)))
        for s in range(4):
            X, Y, D = O_(j, 2 * s), O_(j, 2 * s + 1), OA(s, j)
            for r in range(0, 4, 2):
                a("v_pk_mul_f32 %s, %s, %s" % (vr(X + r, 2), vr(X + r, 2), vr(vT, 2))); a("v_pk_mul_f32 %s, %s, %s" % (vr(Y + r, 2), vr(Y + r, 2), vr(vT, 2)))
            a("v_cvt_pk_bf16_f32 v%d, v%d, v%d" % (D + 0, X + 0, X + 1)); a("v_cvt_pk_bf16_f32 v%d, v%d, v%d" % (D + 1, X + 2, X + 3))
            a("v_cvt_pk_bf16_f32 v%d, v%d, v%d" % (D + 2, Y + 0, Y + 1)); a("v_cvt_pk_bf16_f32 v%d, v%d, v%d" % (D + 3, Y + 2, Y + 3))
    vA0, vA1 = 240, 241
    a("v_lshlrev_b32 v%d, 4, v%d" % (vT, vLANE))
    a("s_mul_i32 s%d, s%d, 12288" % (sT0, sWAVE)); a("s_add_u32 s%d, s%d, %d" % (sT0, sT0, EXCH)); a("v_add_u32 v%d, s%d, v%d" % (vA0, sT0, vT))
    a("s_xor_b32 s%d, s%d, 2" % (sT2, sWAVE)); a("s_mul_i32 s%d, s%d, 12288" % (sT0, sT2)); a("s_add_u32 s%d, s%d, %d" % (sT0, sT0, EXCH)); a("v_add_u32 v%d, s%d, v%d" % (vA1, sT0, vT))
    a("s_barrier")
    for i in range(12): a("ds_write_b128 v%d, %s offset:%d" % (vA0, vr(96 + 4 * i, 4), i * 1024))
    vAO, vST = 224, 228
    g, rp, c, t = 242, 243, 244, 245
    a("v_lshrrev_b32 v%d, 4, v%d" % (g, vLANE)); a("v_bfe_u32 v%d, v%d, 2, 2" % (rp, vLANE)); a("v_and_b32 v%d, 3, v%d" % (c, vLANE))
    a("v_lshlrev_b32 v%d, 2, v%d" % (t, g)); a("v_add_u32 v%d, v%d, v%d" % (t, t, rp))
    a("v_lshrrev_b32 v%d, 1, v%d" % (g, t)); a("v_and_b32 v%d, 3, v%d" % (g, g)); a("v_lshlrev_b32 v%d, 5, v%d" % (g, g))
    a("v_lshlrev_b32 v%d, 7, v%d" % (t, t)); a("v_add_u32 v%d, v%d, v%d" % (t, t, g)); a("v_lshlrev_b32 v%d, 3, v%d" % (c, c)); a("v_add_u32 v%d, v%d, v%d" % (t, t, c))
    a("s_lshl_b32 s%d, s%d, 6" % (sT0, sQI)); a("v_xor_b32 v%d, s%d, v%d" % (t, sT0, t))
    a("s_lshl_b32 s%d, s%d, 14" % (sT0, sQI)); a("s_xor_b32 s%d, s%d, 16384" % (sT1, sT0))
    a("v_add_u32 v%d, s%d, v%d" % (vAO + 0, sT0, t)); a("v_xor_b32 v%d, 32, v%d" % (vAO + 1, vAO + 0))
    a("v_add_u32 v%d, s%d, v%d" % (vAO + 2, sT1, t)); a("v_xor_b32 v%d, 32, v%d" % (vAO + 3, vAO + 2))
    a("s_mul_i32 s%d, s%d, 6144" % (sT0, sQI)); a("s_mul_i32 s%d, s%d, 3072" % (sT1, sRH)); a("s_add_u32 s%d, s%d, s%d" % (sT0, sT0, sT1))
    a("v_add_u32 v%d, s%d, v%d" % (vST, sT0, vT))
    a("s_waitcnt lgkmcnt(0)")
    a("s_barrier")
    for i in range(12): a("ds_read_b128 %s, v%d offset:%d" % (vr(144 + 4 * i, 4), vA1, i * 1024))
    stamp(a, 3, 13)
    assert PAIR % 256 == 0
    def AF(i): return 192 + 4 * (i % 8)
    def ACC(buf, z, j): return buf * 24 + (z * 3 + j) * 4
    def PK(buf, j): return 48 + buf * 12 + 4 * j
    def a_reads(G):
        c_, kk = divmod(G, 8)
        hs, s = (0, kk) if kk < 4 else (1, kk - 4)
        r = []
        for z in range(2):
            fr = AF(2 * G + z)
            r.append("ds_read_b64_tr_b16 %s, v%d offset:%d" % (vr(fr, 2), vAO + 2 * hs + z, s * 4096))
            r.append("ds_read_b64_tr_b16 %s, v%d offset:%d" % (vr(fr + 2, 2), vAO + 2 * hs + z, s * 4096 + 2048))
        return r
    LOOK = 3
    def slot_delta(c_from): return (-3 * PAIR if (16 + c_from + 1) % 4 == 0 else PAIR) & 0xffffffff
    for G in range(LOOK):
        for x in a_reads(G): a(x)
    pend_epi = []
    cq = VQ()
    vFO, vONE = 229, 230
    a("s_lshl_b32 s%d, s%d, 4" % (sT0, sH)); a("s_lshl_b32 s%d, s%d, 2" % (sT1, sWAVE)); a("s_add_u32 s%d, s%d, s%d" % (sT0, sT0, sT1))
    a("v_mov_b32 v%d, 0x40000000" % vFO); a("v_mov_b32 v%d, 1" % vONE); a("v_writelane_b32 v%d, s%d, 0" % (vFO, sT0))
    def flag(c):
        if "nored" in OPT: return []
        n = cq.wait(["S%d" % c])
        r = ["s_waitcnt vmcnt(%d)" % n, "s_mov_b32 s%d, %d" % (sT2, c * 256), "buffer_store_dword v%d, v%d, %s, s%d offen sc0 sc1" % (vONE, vFO, srd(sFL), sT2)]
        cq.issue("F%d" % c, 1)
        return r
    for c_ in range(9):
        buf = c_ & 1
        for kk in range(8):
            G = c_ * 8 + kk
            hs, s = (0, kk) if kk < 4 else (1, kk - 4)
            Gn = G + LOOK
            pre = []; rd = []
            if Gn < 72:
                cn, kn = divmod(Gn, 8)
                if kn == 0:
                    pre += (["s_barrier"] if cn < 8 else []) + ["v_add_u32 v%d, 0x%x, v%d" % (vAO + 0, slot_delta(cn - 1), vAO + 0), "v_add_u32 v%d, 0x%x, v%d" % (vAO + 1, slot_delta(cn - 1), vAO + 1)]
                if kn == 4 and cn > 0:
                    pre += ["v_add_u32 v%d, 0x%x, v%d" % (vAO + 2, slot_delta(cn - 1), vAO + 2), "v_add_u32 v%d, 0x%x, v%d" % (vAO + 3, slot_delta(cn - 1), vAO + 3)]
                rd = a_reads(Gn)
            younger = 4 * min(LOOK - 1, 71 - G)
            if kk == 0 and c_ >= FLAG_DELAY: pre += flag(c_ - FLAG_DELAY)
            for x in pre: a(x)
            a("s_waitcnt lgkmcnt(%d)" % younger)
            mf = []
            for z in range(2):
                for j in range(3):
                    bsrc = OA(s, j) if hs == 0 else OB(s, j)
                    cc = "0" if kk == 0 else vr(ACC(buf, z, j), 4)
                    mf.append("%s %s, %s, %s, %s" % (MF, vr(ACC(buf, z, j), 4), vr(AF(2 * G + z), 4), vr(bsrc, 4), cc))
            fill = spread(rd, [0, 1, 2, 3]) if rd else {}
            if pend_epi and kk >= 1:
                take = pend_epi[:5] if kk < 4 else pend_epi
                pend_epi = pend_epi[len(take):]
                for x in take:
                    if x.startswith("buffer_store"): cq.issue("S%d" % (c_ - 1), 1)
                fill = merge(fill, spread(take, [1, 2, 3, 4, 5]))
            for x in interleave(mf, fill): a(x)
        epi = []
        for j in range(3):
            d = PK(buf, j)
            for z in range(2):
                A_ = ACC(buf, z, j)
                epi.append("v_cvt_pk_bf16_f32 v%d, v%d, v%d" % (d + 2 * z, A_, A_ + 1)); epi.append("v_cvt_pk_bf16_f32 v%d, v%d, v%d" % (d + 2 * z + 1, A_ + 2, A_ + 3))
            epi.append("s_mov_b32 s%d, %d" % (sT3, c_ * 12288 + j * 1024))
            epi.append("buffer_store_dwordx4 %s, v%d, %s, s%d offen%s" % (vr(d, 4), vST, srd(sP), sT3, P_FLAGS))
        pend_epi = epi
    a("s_nop 7")
    for x in pend_epi: a(x)
    cq.issue("S8", 3)
    stamp(a, 4, 14)
    for c in range(9 - FLAG_DELAY, 9):
        for x in flag(c): a(x)
    a("s_waitcnt vmcnt(0)")
    stamp(a, 5)
    stamp_flush(a)
    a("s_endpgm")
    for r in rare: a(r)

def mk_srd(a, b, lo, hi, off, size):
    a("s_add_u32 s%d, s%d, s%d" % (b, lo, off)); a("s_addc_u32 s%d, s%d, 0" % (b + 1, hi)); a("s_mov_b32 s%d, %d" % (b + 2, size)); a("s_mov_b32 s%d, 0x20000" % (b + 3))

def gen_k1():
    a = Asm(); a.stamp_wave = 0; a.stamp_tmp = 252
    common_prologue(a, "L_k1_end", 256)
    a("s_and_b32 s%d, s2, 7" % sXCD); a("s_lshr_b32 s%d, s2, 3" % sIDX)
    a("s_and_b32 s%d, s%d, 1" % (sB, sXCD)); a("s_lshl_b32 s%d, s%d, 3" % (sB, sB)); a("s_and_b32 s%d, s%d, 7" % (sT2, sIDX)); a("s_add_u32 s%d, s%d, s%d" % (sB, sB, sT2))
    a("s_lshr_b32 s%d, s%d, 1" % (sH, sXCD)); a("s_lshl_b32 s%d, s%d, 2" % (sH, sH)); a("s_lshr_b32 s%d, s%d, 3" % (sT2, sIDX)); a("s_add_u32 s%d, s%d, s%d" % (sH, sH, sT2))
    a("s_lshl_b32 s%d, s%d, 4" % (sT0, sB)); a("s_add_u32 s%d, s%d, s%d" % (sT0, sT0, sH))
    a("s_lshl_b32 s%d, s%d, 18" % (sT1, sT0))
    mk_srd(a, sK, 6, 7, sT1, 262144); mk_srd(a, sV, 8, 9, sT1, 262144)
    a("s_mul_i32 s%d, s%d, 110592" % (sT1, sB)); mk_srd(a, sX, 4, 5, sT1, 110592)
    a("s_lshl_b32 s%d, s%d, 9" % (sT1, sH)); mk_srd(a, sWQ, 10, 11, sT1, 0); a("s_sub_u32 s%d, 4718592, s%d" % (sWQ + 2, sT1))
    a("s_mul_i32 s%d, s%d, 294912" % (sT1, sH)); mk_srd(a, sWO, 12, 13, sT1, 294912)
    a("s_mul_i32 s%d, s%d, %d" % (sT1, sT0, PART)); a("s_add_u32 s%d, s%d, %d" % (sT1, sT1, WS_PART)); mk_srd(a, sP, 18, 19, sT1, PART)
    a("s_lshr_b32 s%d, s%d, 2" % (sT1, sH)); a("s_lshl_b32 s%d, s%d, 11" % (sT1, sT1)); mk_srd(a, sPF, 10, 11, sT1, 0); a("s_sub_u32 s%d, 4718592, s%d" % (sPF + 2, sT1))
    a("s_lshr_b32 s%d, s%d, 3" % (sT1, sB)); a("s_mul_i32 s%d, s%d, %d" % (sT1, sT1, 8 * 110592)); mk_srd(a, sPF2, 4, 5, sT1, 8 * 110592)
    a("s_mov_b32 s%d, s12" % sWOP); a("s_mov_b32 s%d, s13" % (sWOP + 1))
    a("s_mul_i32 s%d, s%d, 110592" % (sT1, sB)); mk_srd(a, sOUT, 14, 15, sT1, 110592)
    a("s_mul_i32 s%d, s%d, %d" % (sT1, sB, 16 * PART)); a("s_add_u32 s%d, s%d, %d" % (sT1, sT1, WS_PART)); mk_srd(a, sPB, 18, 19, sT1, 16 * PART)
    a("s_mul_i32 s%d, s%d, %d" % (sT1, sB, 9 * 256)); a("s_add_u32 s%d, s%d, %d" % (sT1, sT1, WS_FLAG)); mk_srd(a, sFL, 18, 19, sT1, 9 * 256)
    if STAMP:
        a("s_lshl_b32 s%d, s2, 9" % sT1); a("s_add_u32 s%d, s18, s%d" % (sSTAMP, sT1)); a("s_addc_u32 s%d, s19, 0" % (sSTAMP + 1))
    if "allc" in OPT: a("s_and_b32 s%d, s%d, 3" % (sWAVE, sWAVE))
    a("s_cmp_ge_u32 s%d, 4" % sWAVE); a("s_cbranch_scc1 L_loader")
    gen_compute(a)
    a("L_loader:")
    a.stamp_wave = 4; a.stamp_tmp = 40
    gen_loader(a)
    a("L_k1_end:")
    a("s_endpgm")
    return a.text()

def build(fn, stamp=False, opt=()):
    global STAMP, OPT
    STAMP = stamp; OPT = set(opt)
    k1 = gen_k1()
    errs = hazard.check(k1, "k1")
    for e in errs[:10]: print(e)
    if errs: print("k1: %d hazard warnings" % len(errs))
    txt = HEADER + "; @launch grid=(256,1,1) block=(512,1,1) lds=%d\n" % LDS_BYTES
    txt += '.amdgcn_target "amdgcn-amd-amdhsa--gfx950"\n.text\n' + kernel_begin(KNAME) + k1 + '\n.section .rodata,"a"\n.p2align 6\n' + kernel_desc(KNAME, 256, 102, 256)
    open(fn, "w").write(txt)
    print(fn, len(txt), "bytes,", txt.count("\n"), "lines")

if __name__ == "__main__":
    build("v4.s"); build("v4_st.s", True, ["trace"]); build("v4_nl.s", True, ["noload", "nored", "norare"])
    build("v4_a.s", True, ["trace", "norot"])
    W_FLAGS = " nt"; O_FLAGS = " nt"
    build("v4_b.s", True, ["trace"])
    W_FLAGS = ""; O_FLAGS = ""
    KSCHED = {0: [("K", 0)], 1: [("V", 0)], 2: [("K", 1)], 3: [("V", 1)], 16: [("K", 2)], 17: [("V", 2)]}
    build("v4_c.s", True, ["trace"])
```

```python
import sys, struct
from asmlib import *
import hazard
from sched import Item, schedule, auto_lgkm, model_cycles

def f32(x): return "0x%08x" % struct.unpack("<I", struct.pack("<f", x))[0]
C_SCALE = 1.4426950408889634 / (128 ** 0.5)

PAIR = 35840
KGRP, VGRP = 1088, 1152
VOFF = 16 * KGRP
WBASE = 2 * PAIR
XBASE = WBASE + 4 * 16384
XSLOT = 12288
EXCH = 3 * PAIR
LDS_BYTES = 163840
PART = 108 * 1024
WS_PART = 1 << 20
WS_FLAG = 1 << 19
KNAME = 'standalone__gqa_block_cached__near_ridge_kernel'
OPT = set()
STAMP = False

sK, sV, sX, sWQ, sWO, sP = 20, 24, 28, 32, 36, 40
sWAVE, sB, sH, sLW = 44, 45, 46, 47
sT0, sT1, sT2, sT3 = 48, 49, 50, 51
sLWK, sLW3072, sLWV, sLW4096 = 52, 53, 59, 66
sTHR, sCNT, sDK, sNEG, sSLOT = 54, 55, 56, 57, 58
sSTAMP = 60
sTM = 62
sQI, sRH = 64, 65
sXCD, sIDX = 67, 68
sPF = 72
sPF2 = 76
sFL = 8
sPB = 4
sOUT = 12
def srd(b): return "s[%d:%d]" % (b, b + 3)
def vr(b, n=1): return "v%d" % b if n == 1 else "v[%d:%d]" % (b, b + n - 1)

def _stamp(a, idx, instr):
    if not STAMP: return
    a("%s s[%d:%d]" % (instr, sTM, sTM + 1)); a("s_waitcnt lgkmcnt(0)")
    if a.stamp_wave == 0: a("s_mov_b32 s%d, s%d" % (80 + idx, sTM))
    else: a("v_writelane_b32 v40, s%d, %d" % (sTM, idx))
def stamp(a, idx, cyc=None):
    _stamp(a, idx, "s_memrealtime")
    if cyc is not None: _stamp(a, cyc, "s_memtime")
def stamp_flush(a):
    if not STAMP: return
    sk = a.label("Lst")
    a("s_cmp_lg_u32 s%d, %d" % (sWAVE, a.stamp_wave)); a("s_cbranch_scc1 %s" % sk)
    if a.stamp_wave == 0:
        a("v_mov_b32 v1, 0")
        for i in range(16):
            if i in (8, 9, 15): continue
            a("v_mov_b32 v2, s%d" % (80 + i)); a("global_store_dword v1, v2, s[%d:%d] offset:%d" % (sSTAMP, sSTAMP + 1, 4 * i))
    else:
        a("v_and_b32 v2, 63, v0"); a("v_lshlrev_b32 v3, 2, v2")
        a("v_cmp_lt_u32 vcc, 14, v2"); a("v_cmp_eq_u32 s[96:97], 8, v2"); a("s_or_b64 vcc, vcc, s[96:97]"); a("v_cmp_eq_u32 s[96:97], 9, v2"); a("s_or_b64 vcc, vcc, s[96:97]")
        a("s_and_saveexec_b64 s[96:97], vcc")
        a("global_store_dword v3, v40, s[%d:%d]" % (sSTAMP, sSTAMP + 1))
        a("s_mov_b64 exec, s[96:97]")
    a("%s:" % sk)

def common_prologue(a, endlab, nwg):
    a("s_cmp_ge_u32 s2, %d" % nwg); a("s_cbranch_scc1 %s" % endlab)
    a("s_load_dwordx8 s[4:11], s[0:1], 0")
    a("s_load_dwordx4 s[12:15], s[0:1], 32")
    a("s_load_dwordx4 s[16:19], s[0:1], 48")
    a("v_lshrrev_b32 v1, 6, v0")
    a("s_nop 0")
    a("v_readfirstlane_b32 s%d, v1" % sWAVE)
    a("s_waitcnt lgkmcnt(0)")

class VQ:
    def __init__(s): s.q = []
    def issue(s, tag, n=1): s.q += [tag] * n
    def wait(s, tags):
        idx = [i for i, t in enumerate(s.q) if t in tags]
        if not idx: return None
        last = max(idx); n = len(s.q) - 1 - last
        s.q = s.q[last + 1:]
        return min(n, 63)

KV_FLAGS = " nt"
W_FLAGS = ""
O_FLAGS = ""
P_FLAGS = " sc0 sc1"


def gen_loader(a):
    a("s_sub_u32 s%d, s%d, 4" % (sLW, sWAVE))
    a("v_and_b32 v1, 63, v0")
    if STAMP: a("v_mov_b32 v40, 0")
    a("s_cmp_ge_u32 s%d, 2" % sLW); a("s_cbranch_scc1 L_kvloader")
    gen_wloader(a)
    a("L_kvloader:")
    gen_kvloader(a)

def mk_bar(a, q, trace_base=None):
    def bar(tags):
        n = q.wait(tags) if tags else None
        if n is not None and "nowait" not in OPT: a("s_waitcnt vmcnt(%d)" % n)
        if "trace" in OPT and bar.n < 48 and trace_base is not None: stamp(a, 16 + bar.n)
        a("s_barrier")
        bar.n += 1
    bar.n = 0
    return bar

def dma(a, vreg, srdb, soff, imm, flags):
    if "noload" in OPT: return
    a("buffer_load_dwordx4 v%d, %s, s%d offen offset:%d%s lds" % (vreg, srd(srdb), soff, imm, flags))

def emit_pf(a, chunks, lane=1):
    if not chunks: return
    sk = a.label("Lpfq"); skx = a.label("Lpfx")
    a("s_cmp_ge_u32 s%d, 28" % sIDX); a("s_cbranch_scc1 %s" % sk)
    a("s_cmp_ge_u32 s%d, 16" % sIDX); a("s_cbranch_scc1 %s" % skx)
    a("v_lshrrev_b32 v30, 4, v%d" % lane); a("v_and_b32 v31, 15, v%d" % lane)
    a("s_lshl_b32 s%d, s%d, 2" % (sT0, sIDX)); a("v_add_u32 v30, s%d, v30" % sT0); a("v_lshlrev_b32 v30, 13, v30"); a("v_lshlrev_b32 v31, 7, v31"); a("v_add_u32 v30, v30, v31")
    for cp in chunks:
        if isinstance(cp, int): a("s_mov_b32 s%d, %d" % (sT0, cp * 64 * 8192))
        else: a("s_lshl_b32 s%d, s%d, 19" % (sT0, cp[0])); a("s_add_u32 s%d, s%d, %d" % (sT0, sT0, cp[1] * 64 * 8192))
        a("buffer_load_dword v32, v30, %s, s%d offen" % (srd(sPF), sT0))
    a("s_branch %s" % sk)
    a("%s:" % skx)
    a("s_sub_u32 s%d, s%d, 16" % (sT0, sIDX)); a("s_lshl_b32 s%d, s%d, 6" % (sT0, sT0)); a("v_add_u32 v30, s%d, v%d" % (sT0, lane)); a("v_mul_u32_u24 v30, 1152, v30")
    for cp in chunks:
        if isinstance(cp, int): a("s_mov_b32 s%d, %d" % (sT0, cp * 128))
        else: a("s_lshl_b32 s%d, s%d, 7" % (sT0, cp[0])); a("s_add_u32 s%d, s%d, %d" % (sT0, sT0, cp[1] * 128))
        a("buffer_load_dword v32, v30, %s, s%d offen" % (srd(sPF2), sT0))
    a("%s:" % sk)

def code_prefetch(a, lane=1):
    if "nocpf" in OPT: return
    lab = a.label("Lcpf")
    a("s_getpc_b64 s[94:95]")
    a("%s:" % lab)
    a("s_sub_u32 s94, s94, (%s - %s)" % (lab, KNAME)); a("s_subb_u32 s95, s95, 0")
    a("s_lshl_b32 s%d, s%d, 11" % (sT0, sIDX))
    a("v_and_b32 v34, 15, v%d" % lane); a("v_lshlrev_b32 v34, 7, v34"); a("v_add_u32 v34, s%d, v34" % sT0)
    a("v_min_u32 v34, (L_k1_end - %s), v34" % KNAME)
    a("global_load_dword v35, v34, s[94:95]")

def gen_wloader(a):
    vW, vX, vO = 10, 14, 16
    a.stamp_wave = 4
    sA, sBb = sLWK, sLWV
    a("v_lshrrev_b32 v6, 5, v1"); a("v_and_b32 v7, 31, v1")
    a("s_lshl_b32 s%d, s%d, 17" % (sT1, sLW))
    a("v_lshlrev_b32 v8, 13, v6"); a("v_add_u32 v8, s%d, v8" % sT1)
    for var in range(4):
        a("v_add_u32 v5, %d, v6" % (2 * (var & 1) + 4 * (var >> 1))); a("v_lshlrev_b32 v5, 1, v5"); a("v_xor_b32 v5, v5, v7")
        a("v_lshlrev_b32 v5, 4, v5"); a("v_add_u32 v%d, v8, v5" % (vW + var))
    a("v_lshrrev_b32 v6, 3, v1"); a("v_and_b32 v7, 7, v1")
    a("s_mul_i32 s%d, s%d, 48" % (sT1, sLW)); a("v_add_u32 v8, s%d, v6" % sT1); a("v_mul_u32_u24 v8, 1152, v8")
    a("v_lshrrev_b32 v9, 1, v6")
    for i in range(2):
        a("v_add_u32 v5, %d, v9" % (4 * i)); a("v_xor_b32 v5, v5, v7"); a("v_lshlrev_b32 v5, 4, v5"); a("v_add_u32 v%d, v8, v5" % (vX + i))
    a("v_mul_u32_u24 v8, 1152, v6")
    a("v_and_b32 v5, 3, v9"); a("v_lshlrev_b32 v5, 1, v5"); a("v_xor_b32 v5, v5, v7"); a("v_lshlrev_b32 v5, 4, v5"); a("v_add_u32 v%d, v8, v5" % vO)
    a("s_lshl_b32 s%d, s%d, 13" % (sA, sLW))
    a("s_mul_i32 s%d, s%d, 6144" % (sBb, sLW))
    a("s_lshl_b32 s%d, s%d, 14" % (sLW4096, sLW))
    a("s_mul_i32 s%d, s%d, %d" % (sLW3072, sLW, 128 * 1152))
    q = VQ(); bar = mk_bar(a, q, 0)
    sWK, sXK, sOK = 98, 99, 100
    if "rotq" not in OPT:
        a("s_mov_b32 s%d, 0" % sWK); a("s_mov_b32 s%d, 0" % sXK)
        a("s_and_b32 s%d, s%d, 7" % (sT0, sB)); a("s_lshl_b32 s%d, s%d, 7" % (sOK, sT0))
    else:
        a("s_and_b32 s%d, s%d, 7" % (sT0, sIDX)); a("s_lshr_b32 s%d, s%d, 3" % (sT1, sIDX)); a("s_lshl_b32 s%d, s%d, 1" % (sT1, sT1)); a("s_add_u32 s%d, s%d, s%d" % (sT0, sT0, sT1))
        a("s_cmp_ge_u32 s%d, 9" % sT0); a("s_cselect_b32 s%d, 9, 0" % sT1); a("s_sub_u32 s%d, s%d, s%d" % (sT0, sT0, sT1))
        a("s_lshl_b32 s%d, s%d, 19" % (sWK, sT0)); a("s_lshl_b32 s%d, s%d, 7" % (sXK, sT0))
        a("s_and_b32 s%d, s%d, 7" % (sT0, sB)); a("s_lshl_b32 s%d, s%d, 7" % (sOK, sT0))
    def adv(reg, step, wrap):
        a("s_add_u32 s%d, s%d, %d" % (reg, reg, step)); a("s_cmp_eq_u32 s%d, %d" % (reg, wrap)); a("s_cselect_b32 s%d, 0, s%d" % (reg, reg))
    def iss_W(s):
        for ii in range(8):
            if ii % 4 == 0: a("s_add_u32 m0, s%d, %d" % (sA, WBASE + ((s + 2) % 4) * 16384 + (ii >> 2) * 4096))
            a("s_add_u32 s%d, s%d, %d" % (sT0, sWK, 16384 * ii - (ii & 3) * 1024))
            dma(a, vW + (ii & 1) + 2 * (ii >> 2), sWQ, sT0, (ii & 3) * 1024, W_FLAGS)
        adv(sWK, 262144, 18 * 262144)
        q.issue("W%d" % s, 8)
    def iss_X(cp):
        for ii in range(6):
            if ii % 4 == 0: a("s_add_u32 m0, s%d, %d" % (sBb, XBASE + (cp % 2) * XSLOT + (ii >> 2) * 4096))
            a("s_add_u32 s%d, s%d, %d" % (sT0, sXK, 9216 * ii - (ii & 3) * 1024))
            dma(a, vX + (ii & 1), sX, sT0, (ii & 3) * 1024, W_FLAGS)
        adv(sXK, 128, 9 * 128)
        q.issue("X%d" % cp, 6)
    def iss_O(c):
        T = 16 + c
        a("s_add_u32 s%d, s%d, s%d" % (sT1, sLW3072, sOK))
        for ii in range(16):
            if ii % 4 == 0: a("s_add_u32 m0, s%d, %d" % (sLW4096, (T % 4) * PAIR + (ii >> 2) * 4096))
            a("s_add_u32 s%d, s%d, %d" % (sT0, sT1, 9216 * ii - (ii & 3) * 1024))
            dma(a, vO, sWO, sT0, (ii & 3) * 1024, O_FLAGS)
        adv(sOK, 128, 9 * 128)
        q.issue("I%d" % T, 16)
    def prefetch_o():
        a("s_lshr_b32 s%d, s%d, 2" % (sT0, sH)); a("s_mul_i32 s%d, s%d, %d" % (sT0, sT0, 4 * 294912))
        a("s_add_u32 s%d, s%d, s%d" % (sPF2, sWOP, sT0)); a("s_addc_u32 s%d, s%d, 0" % (sPF2 + 1, sWOP + 1)); a("s_mov_b32 s%d, %d" % (sPF2 + 2, 4 * 294912)); a("s_mov_b32 s%d, 0x20000" % (sPF2 + 3))
        a("s_lshl_b32 s%d, s%d, 1" % (sT0, sIDX)); a("s_add_u32 s%d, s%d, s%d" % (sT0, sT0, sLW)); a("s_mul_i32 s%d, s%d, 144" % (sT0, sT0))
        a("v_add_u32 v5, s%d, v1" % sT0); a("v_lshlrev_b32 v6, 7, v5")
        a("buffer_load_dword v34, v6, %s, 0 offen" % srd(sPF2))
        a("v_add_u32 v6, 8192, v6"); a("buffer_load_dword v35, v6, %s, 0 offen" % srd(sPF2))
        a("v_add_u32 v6, 8192, v6"); a("v_mov_b32 v7, 0x40000000"); a("v_cmp_gt_u32 vcc, 16, v1"); a("s_nop 1"); a("v_cndmask_b32 v6, v7, v6, vcc")
        a("buffer_load_dword v36, v6, %s, 0 offen" % srd(sPF2))
        q.issue("PF", 3)
    def cpf():
        sk = a.label("Lcp"); a("s_cmp_lg_u32 s%d, 1" % sLW); a("s_cbranch_scc1 %s" % sk); code_prefetch(a); a("%s:" % sk)
    if "cpf0" in OPT: cpf()
    if PF0:
        a("s_mul_i32 s%d, s%d, %d" % (sT2, sLW, PF0))
        emit_pf(a, [(sT2, k) for k in range(PF0)])
    iss_W(0); iss_X(0); iss_W(1); iss_W(2); iss_X(1); iss_W(3)
    for s in range(18):
        bar(["W%d" % s, "X%d" % (s // 2)])
        if s >= 1 and s + 3 <= 17: iss_W(s + 3)
        if s >= 2 and s % 2 == 0 and s // 2 + 1 <= 8: iss_X(s // 2 + 1)
    bar(None)
    bar(None)
    stamp(a, 8)
    for n in range(1, 17):
        bar(["I%d" % n] if n >= 16 else None)
        if n == PF_O_AT and "pfo" in OPT: prefetch_o()
        if n == CPF_AT: cpf()
        if n + 2 >= 16: iss_O(n + 2 - 16)
    a("s_barrier"); a("s_barrier")
    for n in range(17, 27):
        bar((["I%d" % n] + (["I24"] if n == 23 else [])) if n <= 23 else None)
        if n + 2 <= 24: iss_O(n + 2 - 16)
    stamp(a, 9)
    a("s_add_u32 s%d, s%d, 4" % (sCNT, sLW))
    a("s_branch L_reduce")

def gen_kvloader(a):
    vK, vV = 10, 11
    a.stamp_wave = -1
    a("s_sub_u32 s%d, s%d, 2" % (sLW, sLW))
    a("v_lshrrev_b32 v2, 4, v1"); a("v_and_b32 v3, 15, v1")
    a("s_lshl_b32 s%d, s%d, 13" % (sT0, sLW))
    a("v_lshlrev_b32 v4, 8, v2"); a("v_add_u32 v4, s%d, v4" % sT0)
    a("v_xor_b32 v5, v2, v3"); a("v_lshlrev_b32 v5, 4, v5"); a("v_add_u32 v%d, v4, v5" % vK)
    a("v_lshlrev_b32 v5, 1, v2"); a("v_xor_b32 v5, v5, v3"); a("v_lshlrev_b32 v5, 4, v5"); a("v_add_u32 v%d, v4, v5" % vV)
    a("s_mul_i32 s%d, s%d, %d" % (sLWK, sLW, 8 * KGRP)); a("s_mul_i32 s%d, s%d, %d" % (sLWV, sLW, 8 * VGRP))
    q = VQ(); bar = mk_bar(a, q, None)
    def iss(T, isK, lo=0, hi=8):
        for ii in range(lo, hi):
            if ii % 4 == 0 or ii == lo: a("s_mov_b32 s%d, %d" % (sT0, T * 16384 + (ii >> 2) * 4096))
            grp = KGRP if isK else VGRP
            a("s_add_u32 m0, s%d, %d" % (sLWK if isK else sLWV, (T % 4) * PAIR + (0 if isK else VOFF) + ii * grp - (ii & 3) * 1024))
            if ii % 4: a("s_nop 0")
            else: a("s_nop 0")
            dma(a, vK if isK else vV, sK if isK else sV, sT0, (ii & 3) * 1024, KV_FLAGS)
        q.issue("I%d" % T, hi - lo)
    def prefetch_q():
        sk = a.label("Lpfq"); skx = a.label("Lpfx")
        a("s_cmp_lg_u32 s%d, %d" % (sLW, PF_WAVE)); a("s_cbranch_scc1 %s" % sk)
        a("s_cmp_ge_u32 s%d, 28" % sIDX); a("s_cbranch_scc1 %s" % sk)
        a("s_cmp_ge_u32 s%d, 16" % sIDX); a("s_cbranch_scc1 %s" % skx)
        a("s_lshl_b32 s%d, s%d, 2" % (sT0, sIDX)); a("v_add_u32 v5, s%d, v2" % sT0); a("v_lshlrev_b32 v5, 13, v5"); a("v_lshlrev_b32 v6, 7, v3"); a("v_add_u32 v5, v5, v6")
        for cp in range(PF_FIRST, 9):
            a("s_mov_b32 s%d, %d" % (sT0, cp * 64 * 8192)); a("buffer_load_dword v%d, v5, %s, s%d offen" % (20 + cp, srd(sPF), sT0))
        a("s_branch %s" % sk)
        a("%s:" % skx)
        a("s_sub_u32 s%d, s%d, 16" % (sT0, sIDX)); a("s_lshl_b32 s%d, s%d, 6" % (sT0, sT0)); a("v_add_u32 v5, s%d, v1" % sT0); a("v_mul_u32_u24 v5, 1152, v5")
        for cp in range(PF_FIRST, 9):
            a("s_mov_b32 s%d, %d" % (sT0, cp * 128)); a("buffer_load_dword v%d, v5, %s, s%d offen" % (20 + cp, srd(sPF2), sT0))
        a("%s:" % sk)
    def clear_flags():
        sk = a.label("Lclr")
        a("s_cmp_lg_u32 s%d, 1" % sLW); a("s_cbranch_scc1 %s" % sk)
        a("v_mov_b32 v20, 0")
        a("s_lshl_b32 s%d, s%d, 2" % (sT0, sH))
        a("v_lshlrev_b32 v5, 6, v1"); a("v_add_u32 v5, s%d, v5" % sT0); a("v_mov_b32 v7, 0x40000000"); a("v_cmp_gt_u32 vcc, 9, v1"); a("s_nop 1"); a("v_cndmask_b32 v5, v7, v5, vcc")
        a("buffer_store_dword v20, v5, %s, 0 offen sc0 sc1" % srd(sFL))
        a("s_waitcnt vmcnt(0)")
        a("s_lshl_b32 s%d, s%d, 4" % (sT0, sB)); a("v_mov_b32 v5, s%d" % sT0); a("v_mov_b32 v6, 1")
        a("s_mov_b64 s[96:97], exec"); a("s_mov_b64 exec, 1")
        a("global_atomic_add v5, v6, s[16:17] sc1")
        a("s_mov_b64 exec, s[96:97]")
        a("%s:" % sk)
    if "notlb" not in OPT:
        sk = a.label("Ltlb")
        a("s_cmp_lg_u32 s%d, 0" % sLW); a("s_cbranch_scc1 %s" % sk)
        a("v_mov_b32 v5, 0")
        for i, sr in enumerate((sK, sV, sWO, sP, sOUT)): a("buffer_load_dword v%d, v5, %s, 0 offen nt" % (33 + i, srd(sr)))
        a("v_mul_u32_u24 v5, %d, v1" % (PART // 8)); a("v_lshlrev_b32 v5, 3, v5"); a("v_mov_b32 v7, 0x40000000"); a("v_cmp_gt_u32 vcc, 16, v1"); a("s_nop 1"); a("v_cndmask_b32 v5, v7, v5, vcc")
        a("buffer_load_dword v38, v5, %s, 0 offen nt" % srd(sPB))
        a("%s:" % sk)
    clear_flags()
    if "nopfq" not in OPT and PF_AT < 0: prefetch_q()
    for s in range(18):
        bar(None)
        if "nopfq" not in OPT and PF_AT == s: prefetch_q()
        for e in KSCHED.get(s, []): iss(e[1], e[0] == "K", *e[2:])
    bar(None)
    for e in KSCHED.get(18, []): iss(e[1], e[0] == "K", *e[2:])
    bar(["I0"])
    for e in KSCHED.get(19, []): iss(e[1], e[0] == "K", *e[2:])
    for n in range(1, 17):
        bar(["I%d" % n] if n < 16 else None)
        if n >= FIRST_RULE and n + 2 < 16: iss(n + 2, True); iss(n + 2, False)
    if "nored" not in OPT:
        sk = a.label("Ldbg"); lp = a.label("Ldbgw")
        a("s_cmp_lg_u32 s%d, 0" % sLW); a("s_cbranch_scc1 %s" % sk)
        a("s_lshl_b32 s%d, s%d, 4" % (sT0, sB)); a("v_mov_b32 v10, s%d" % sT0); a("s_mov_b32 s%d, 0" % sT3)
        a("%s:" % lp)
        a("global_load_dword v12, v10, s[16:17] sc1"); a("s_waitcnt vmcnt(0)"); a("v_readfirstlane_b32 s%d, v12" % sT1)
        a("s_add_u32 s%d, s%d, 1" % (sT3, sT3)); a("s_cmp_gt_u32 s%d, %d" % (sT3, SPIN_MAX)); a("s_cbranch_scc1 %s" % sk)
        a("s_cmp_lt_u32 s%d, 16" % sT1); a("s_cbranch_scc1 %s" % lp)
        a("%s:" % sk)
    a("s_barrier"); a("s_barrier")
    vPR, vPO, vF, vOne = 20, 24, 25, 26
    a("v_lshlrev_b32 v%d, 4, v1" % vPO)
    a("v_add_u32 v%d, %d, v%d" % (vPR, PB0, vPO)); a("v_add_u32 v%d, %d, v%d" % (vPR + 1, 32768, vPO)); a("v_add_u32 v%d, %d, v%d" % (vPR + 2, 2 * PAIR + 32768, vPO))
    a("v_mov_b32 v%d, 1" % vOne)
    def set_flags(first, n):
        a("v_lshlrev_b32 v%d, 7, v1" % vF); a("s_lshl_b32 s%d, s%d, 2" % (sT0, sH)); a("s_add_u32 s%d, s%d, %d" % (sT0, sT0, first * 64)); a("v_add_u32 v%d, s%d, v%d" % (vF, sT0, vF))
        a("v_mov_b32 v7, 0x40000000"); a("v_cmp_gt_u32 vcc, %d, v1" % n); a("s_nop 1"); a("v_cndmask_b32 v%d, v7, v%d, vcc" % (vF, vF))
        a("buffer_store_dword v%d, v%d, %s, 0 offen sc0 sc1" % (vOne, vF, srd(sFL)))
    for n in range(17, 27):
        a("s_barrier")
        c = n - 18
        if c < 0: continue
        sk = a.label("Lsto")
        a("s_cmp_lg_u32 s%d, %d" % (sLW, c & 1)); a("s_cbranch_scc1 %s" % sk)
        for w in range(4):
            for j in range(3):
                if c & 1 == 0: ad, off = vPR, (3 * w + j) * 1024
                else: ad, off = vPR + 1 + (w >> 1), (w & 1) * PAIR + j * 1024
                a("ds_read_b128 %s, v%d offset:%d" % (vr(64 + 4 * (3 * w + j), 4), ad, off))
        if c >= 7 and "nored" not in OPT:
            a("s_waitcnt vmcnt(0)")
            set_flags(c & 1, 4 if c == 8 else 3)
        for i in range(12):
            a("s_waitcnt lgkmcnt(%d)" % (11 - i))
            a("s_mov_b32 s%d, %d" % (sT0, c * 12288 + i * 1024))
            if "nostore" not in OPT: a("buffer_store_dwordx4 %s, v%d, %s, s%d offen%s" % (vr(64 + 4 * i, 4), vPO, srd(sP), sT0, P_FLAGS))
        if c >= 7 and "nored" not in OPT:
            a("s_waitcnt vmcnt(0)")
            set_flags(c, 1)
        a("%s:" % sk)
    a("s_cmp_eq_u32 s%d, 0" % sLW); a("s_cselect_b32 s%d, 7, 6" % sCNT)
    a("s_branch L_reduce")

KSCHED = {2: [("K", 0)], 5: [("V", 0)], 8: [("K", 1)], 11: [("V", 1)], 16: [("K", 2)], 17: [("V", 2)]}

def gen_reducer(a):
    a("L_reduce:")
    if "nored" in OPT:
        a.stamp_wave = 4; stamp_flush(a); a("s_endpgm"); return
    rho = sCNT
    giveup = a.label("Lgiveup"); poll = a.label("Lpoll")
    a("s_mul_i32 s%d, s%d, 54" % (sT0, rho)); a("s_mul_hi_u32 s%d, s%d, %d" % (sT2, sT0, (2**32 + 47) // 48))
    a("v_lshlrev_b32 v9, 2, v1"); a("v_mov_b32 v7, 0x40000000"); a("v_cmp_gt_u32 vcc, 32, v1"); a("s_nop 1"); a("v_cndmask_b32 v9, v7, v9, vcc")
    a("s_lshl_b32 s%d, s%d, 6" % (sT2, sT2))
    a("buffer_load_dword v11, v9, %s, s%d offen sc1" % (srd(sFL), sT2))
    a("v_add_u32 v2, s%d, v1" % sT0)
    a("v_mul_u32_u24 v8, 1366, v2"); a("v_lshrrev_b32 v8, 16, v8")
    a("v_mul_u32_u24 v5, 48, v8"); a("v_sub_u32 v2, v2, v5")
    a("s_mul_i32 s%d, s%d, 48" % (sT1, sH)); a("v_add_u32 v2, s%d, v2" % sT1)
    a("v_mul_u32_u24 v3, 12288, v8"); a("v_lshlrev_b32 v5, 4, v2"); a("v_add_u32 v3, v3, v5")
    a("v_cmp_gt_u32 vcc, 54, v1"); a("s_nop 1"); a("v_cndmask_b32 v3, v7, v3, vcc")
    a("v_lshrrev_b32 v4, 6, v2"); a("v_and_b32 v5, 63, v2")
    a("v_cmp_le_u32 s[96:97], 6, v4"); a("s_nop 1"); a("v_cndmask_b32 v6, 0, 1, s[96:97]")
    a("v_mul_u32_u24 v10, 6, v6"); a("v_sub_u32 v4, v4, v10")
    a("v_lshlrev_b32 v4, 4, v4"); a("v_and_b32 v10, 15, v5"); a("v_add_u32 v4, v4, v10"); a("v_mul_u32_u24 v4, 1152, v4")
    a("v_lshlrev_b32 v6, 6, v6"); a("v_lshrrev_b32 v5, 4, v5"); a("v_lshlrev_b32 v5, 3, v5"); a("v_add_u32 v4, v4, v6"); a("v_add_u32 v4, v4, v5")
    a("s_and_b32 s%d, s%d, 7" % (sT1, sB)); a("v_add_u32 v8, s%d, v8" % sT1)
    a("v_cmp_le_u32 s[96:97], 9, v8"); a("s_nop 1"); a("v_cndmask_b32 v6, 0, 9, s[96:97]"); a("v_sub_u32 v8, v8, v6"); a("v_lshlrev_b32 v8, 7, v8"); a("v_add_u32 v4, v4, v8")
    a("v_cndmask_b32 v4, v7, v4, vcc")
    a("s_mov_b32 s%d, 0" % sT3)
    a("s_branch %s_chk" % poll)
    a("%s:" % poll)
    a("buffer_load_dword v11, v9, %s, s%d offen sc1" % (srd(sFL), sT2))
    a("%s_chk:" % poll)
    a("s_waitcnt vmcnt(0)")
    a("v_cmp_eq_u32 vcc, 1, v11")
    a("s_add_u32 s%d, s%d, 1" % (sT3, sT3)); a("s_cmp_gt_u32 s%d, %d" % (sT3, SPIN_MAX)); a("s_cbranch_scc1 %s" % giveup)
    a("s_cmp_eq_u32 vcc_lo, -1"); a("s_cbranch_scc0 %s" % poll)
    a("s_mov_b32 s%d, 0" % sT0)
    for h in range(16):
        a("buffer_load_dwordx4 v[%d:%d], v3, %s, s%d offen%s" % (64 + 4 * h, 67 + 4 * h, srd(sPB), sT0, R_FLAGS))
        if h < 15: a("s_add_u32 s%d, s%d, %d" % (sT0, sT0, PART))
    for h in range(16):
        a("s_waitcnt vmcnt(%d)" % (15 - h))
        for r in range(4):
            src = 64 + 4 * h + r
            if h == 0:
                a("v_lshlrev_b32 v%d, 16, v%d" % (48 + 2 * r, src)); a("v_and_b32 v%d, 0xffff0000, v%d" % (49 + 2 * r, src))
            else:
                a("v_lshlrev_b32 v12, 16, v%d" % src); a("v_and_b32 v13, 0xffff0000, v%d" % src)
                a("v_add_f32 v%d, v%d, v12" % (48 + 2 * r, 48 + 2 * r)); a("v_add_f32 v%d, v%d, v13" % (49 + 2 * r, 49 + 2 * r))
    for r in range(4): a("v_cvt_pk_bf16_f32 v%d, v%d, v%d" % (56 + r, 48 + 2 * r, 49 + 2 * r))
    a("buffer_store_dwordx2 v[56:57], v4, %s, 0 offen%s" % (srd(sOUT), OUT_FLAGS))
    a("buffer_store_dwordx2 v[58:59], v4, %s, 0 offen offset:32%s" % (srd(sOUT), OUT_FLAGS))
    a("%s:" % giveup)
    if STAMP:
        sk = a.label("Lnst"); a("s_cmp_lg_u32 s%d, 4" % sWAVE); a("s_cbranch_scc1 %s" % sk)
        a.stamp_wave = 4; stamp(a, 15); stamp_flush(a)
        a("%s:" % sk)
    a("s_endpgm")
R_FLAGS = " sc1"
OUT_FLAGS = ""
sTASK2 = 101
PB0 = 143360
SPIN_MAX = 200000
sWOP = 70

PF_O_AT = 10
PF_WAVE = 1
PF_FIRST = 4
PF_AT = 0
PF0 = 2
CPF_AT = 11
FIRST_RULE = 1
CMP_SLACK = 6
FLAG_DELAY = 4

def O_(j, db): return (j * 8 + db) * 4
def Q_(j, s): return 96 + (j * 4 + s) * 4
def KF(f): return 144 + 4 * f
def VF(db): return 176 + 4 * db
def S_(par): return 208 + 8 * par
def P_(par): return 224 + 4 * par
def N_(j): return 232 + 4 * j
def L_(j): return 244 + j
vKA, vVA, vT, vT2, vS, vLANE = 247, 248, 252, 253, 254, 255
MF = "v_mfma_f32_16x16x32_bf16"

def interleave(mfmas, fillers):
    out = list(fillers.get(-1, []))
    for i, m in enumerate(mfmas):
        out.append(m); out += fillers.get(i, [])
    return out
def spread(items, slots):
    d = {}; n = len(items)
    for i, it in enumerate(items): d.setdefault(slots[i * len(slots) // n], []).append(it)
    return d
def merge(*ds):
    o = {}
    for d in ds:
        for k, v in d.items(): o.setdefault(k, []).extend(v)
    return o

KORD = [(kb, s) for s in range(4) for kb in range(2)]
def k_read(kb, s, half, ad=None):
    return "ds_read_b128 %s, v%d offset:%d" % (vr(KF(kb * 4 + s), 4), vKA if ad is None else ad, half * 8 * KGRP + kb * 4 * KGRP + s * 64)
def v_reads(db, half):
    A, cc = divmod(db, 4)
    o = half * 8 * VGRP + A * 128
    return ["ds_read_b64_tr_b16 %s, v%d offset:%d" % (vr(VF(db), 2), vVA + cc, o), "ds_read_b64_tr_b16 %s, v%d offset:%d" % (vr(VF(db) + 2, 2), vVA + cc, o + 4 * VGRP)]

def gen_compute(a):
    rare = []
    a("v_and_b32 v%d, 63, v0" % vLANE)
    a("s_lshr_b32 s%d, s%d, 1" % (sQI, sWAVE)); a("s_and_b32 s%d, s%d, 1" % (sRH, sWAVE))
    g, rp, c, q = 240, 241, 242, 243
    a("v_lshrrev_b32 v%d, 4, v%d" % (g, vLANE)); a("v_bfe_u32 v%d, v%d, 2, 2" % (rp, vLANE)); a("v_and_b32 v%d, 3, v%d" % (c, vLANE)); a("v_and_b32 v%d, 15, v%d" % (q, vLANE))
    vWA, vXA = 232, 244
    t, t2 = vT, vT2
    a("v_lshlrev_b32 v%d, 3, v%d" % (t, g)); a("v_add_u32 v%d, v%d, v%d" % (t, t, rp)); a("v_lshlrev_b32 v%d, 9, v%d" % (t, t))
    a("v_and_b32 v%d, 1, v%d" % (t2, g)); a("v_lshlrev_b32 v%d, 2, v%d" % (t2, t2)); a("v_add_u32 v%d, v%d, v%d" % (t2, t2, rp)); a("v_lshlrev_b32 v%d, 5, v%d" % (t2, t2))
    a("v_add_u32 v%d, v%d, v%d" % (t, t, t2)); a("v_lshlrev_b32 v%d, 3, v%d" % (t2, c)); a("v_add_u32 v%d, v%d, v%d" % (t, t, t2))
    a("s_lshl_b32 s%d, s%d, 8" % (sT0, sQI)); a("s_add_u32 s%d, s%d, %d" % (sT0, sT0, WBASE)); a("v_add_u32 v%d, s%d, v%d" % (t, sT0, t))
    assert WBASE % 256 == 0 and XBASE % 128 == 0
    for db in range(8): a("v_xor_b32 v%d, %d, v%d" % (vWA + db, db * 32, t))
    a("s_mul_i32 s%d, s%d, %d" % (sT0, sRH, 48 * 128)); a("s_add_u32 s%d, s%d, %d" % (sT0, sT0, XBASE))
    a("v_lshrrev_b32 v%d, 1, v%d" % (t, q)); a("v_xor_b32 v%d, v%d, v%d" % (t, t, g)); a("v_lshlrev_b32 v%d, 4, v%d" % (t, t))
    a("v_lshlrev_b32 v%d, 7, v%d" % (t2, q)); a("v_add_u32 v%d, v%d, v%d" % (t, t, t2)); a("v_add_u32 v%d, s%d, v%d" % (vXA, sT0, t)); a("v_xor_b32 v%d, 64, v%d" % (vXA + 1, vXA))
    a("v_lshrrev_b32 v%d, 2, v%d" % (t, q)); a("v_mul_u32_u24 v%d, %d, v%d" % (t, KGRP, t))
    a("v_and_b32 v%d, 3, v%d" % (t2, q)); a("v_lshlrev_b32 v%d, 8, v%d" % (vKA, t2)); a("v_add_u32 v%d, v%d, v%d" % (t, t, vKA))
    a("v_xor_b32 v%d, v%d, v%d" % (t2, t2, g)); a("v_lshlrev_b32 v%d, 4, v%d" % (t2, t2)); a("v_add_u32 v%d, v%d, v%d" % (vKA, t, t2))
    a("v_mul_u32_u24 v%d, %d, v%d" % (t, VGRP, g)); a("v_lshlrev_b32 v%d, 8, v%d" % (t2, rp)); a("v_add_u32 v%d, v%d, v%d" % (t, t, t2))
    a("v_lshlrev_b32 v%d, 3, v%d" % (t2, c)); a("v_add_u32 v%d, v%d, v%d" % (t, t, t2)); a("v_add_u32 v%d, %d, v%d" % (t, VOFF, t))
    for cc in range(4):
        a("v_xor_b32 v%d, %d, v%d" % (t2, cc, rp)); a("v_lshlrev_b32 v%d, 5, v%d" % (t2, t2)); a("v_add_u32 v%d, v%d, v%d" % (vVA + cc, t, t2))
    stamp(a, 0, 10)

    def ABUF(buf, db): return 144 + 32 * buf + 4 * db
    def BBUF(buf, j): return 208 + 12 * buf + 4 * j
    def q_reads(s):
        buf = s & 1; wo = ((s + 2) % 4) * 16384; xo = ((s // 2) % 2) * XSLOT
        r = []
        for j in range(3): r.append("ds_read_b128 %s, v%d offset:%d" % (vr(BBUF(buf, j), 4), vXA + (s & 1), xo + j * 2048))
        for db in range(8):
            r.append("ds_read_b64_tr_b16 %s, v%d offset:%d" % (vr(ABUF(buf, db), 2), vWA + db, wo))
            r.append("ds_read_b64_tr_b16 %s, v%d offset:%d" % (vr(ABUF(buf, db) + 2, 2), vWA + db, wo + 2048))
        return r
    a("s_barrier")
    for x in q_reads(0): a(x)
    for s in range(18):
        buf = s & 1
        a("s_waitcnt lgkmcnt(0)")
        a("s_barrier")
        mf = []
        for db in range(8):
            for j in range(3):
                cc = "0" if s == 0 else vr(O_(j, db), 4)
                mf.append("%s %s, %s, %s, %s" % (MF, vr(O_(j, db), 4), vr(ABUF(buf, db), 4), vr(BBUF(buf, j), 4), cc))
        rd = q_reads(s + 1) if s < 17 else []
        for x in interleave(mf, spread(rd, list(range(0, 17))) if rd else {}): a(x)
    stamp(a, 1, 11)
    a("s_nop 7")
    a("s_mov_b32 s%d, %s" % (sT0, f32(C_SCALE))); a("s_mov_b32 s%d, s%d" % (sT0 + 1, sT0))
    for j in range(3):
        for s in range(4):
            X, Y, D = O_(j, 2 * s), O_(j, 2 * s + 1), Q_(j, s)
            for r in range(0, 4, 2):
                a("v_pk_mul_f32 %s, %s, s[%d:%d]" % (vr(X + r, 2), vr(X + r, 2), sT0, sT0 + 1)); a("v_pk_mul_f32 %s, %s, s[%d:%d]" % (vr(Y + r, 2), vr(Y + r, 2), sT0, sT0 + 1))
            a("v_cvt_pk_bf16_f32 v%d, v%d, v%d" % (D + 0, X + 0, X + 1)); a("v_cvt_pk_bf16_f32 v%d, v%d, v%d" % (D + 1, X + 2, X + 3))
            a("v_cvt_pk_bf16_f32 v%d, v%d, v%d" % (D + 2, Y + 0, Y + 1)); a("v_cvt_pk_bf16_f32 v%d, v%d, v%d" % (D + 3, Y + 2, Y + 3))
            for r in range(0, 4, 2):
                a("v_mov_b64 %s, 0" % vr(X + r, 2)); a("v_mov_b64 %s, 0" % vr(Y + r, 2))
            a("v_permlane32_swap_b32 v%d, v%d" % (D + 0, D + 2)); a("v_permlane32_swap_b32 v%d, v%d" % (D + 1, D + 3))
            a("s_nop 1")
            a("v_permlane16_swap_b32 v%d, v%d" % (D + 0, D + 2)); a("v_permlane16_swap_b32 v%d, v%d" % (D + 1, D + 3))
    a("s_barrier")
    for kb, s_ in KORD: a(k_read(kb, s_, 0))
    a("s_waitcnt lgkmcnt(0)")
    for j in range(3):
        for kb, s_ in KORD:
            d = 176 + 8 * j + 4 * kb
            a("%s %s, %s, %s, %s" % (MF, vr(d, 4), vr(KF(kb * 4 + s_), 4), vr(Q_(j, s_), 4), "0" if s_ == 0 else vr(d, 4)))
    for r in range(224, 232, 2): a("v_mov_b64 %s, 0" % vr(r, 2))
    for j in range(3): a("v_mov_b32 v%d, 0" % L_(j))
    a("v_mov_b32 v%d, 0" % vS)
    a("s_mov_b32 s%d, %s" % (sTHR, "0x7f800000" if "norare" in OPT else f32(256.0)))
    a("s_mov_b32 s%d, 0" % sSLOT); a("s_mov_b32 s%d, 0" % sDK)
    a("s_mov_b32 s%d, 0x%x" % (sNEG, -3 * PAIR & 0xffffffff))
    a("s_mov_b64 vcc, 0")
    a("s_nop 3")
    for j in range(3):
        S = 176 + 8 * j; t, t2 = 200 + 2 * j, 201 + 2 * j
        a("v_max3_f32 v%d, v%d, v%d, v%d" % (t, S, S + 1, S + 2)); a("v_max3_f32 v%d, v%d, v%d, v%d" % (t2, S + 3, S + 4, S + 5))
        a("v_max3_f32 v%d, v%d, v%d, v%d" % (t, t, S + 6, S + 7)); a("v_max_f32 v%d, v%d, v%d" % (t, t, t2))
    for sw in ("v_permlane32_swap_b32", "v_permlane16_swap_b32"):
        for j in range(3): a("v_mov_b32 v%d, v%d" % (201 + 2 * j, 200 + 2 * j))
        a("s_nop 0")
        for j in range(3): a("%s v%d, v%d" % (sw, 200 + 2 * j, 201 + 2 * j))
        for j in range(3): a("v_max_f32 v%d, v%d, v%d" % (200 + 2 * j, 200 + 2 * j, 201 + 2 * j))
    for j in range(3):
        for i in range(4): a("v_sub_f32 v%d, 0, v%d" % (N_(j) + i, 200 + 2 * j))
    for r in range(176, 208, 2): a("v_mov_b64 %s, 0" % vr(r, 2))
    def qk_mfmas(jn, par):
        m = []
        for kb, s in KORD:
            d = S_(par) + 4 * kb
            cc = vr(N_(jn), 4) if s == 0 else vr(d, 4)
            m.append("%s %s, %s, %s, %s" % (MF, vr(d, 4), vr(KF(kb * 4 + s), 4), vr(Q_(jn, s), 4), cc))
        return m
    def pv_mfmas(jp, par):
        return ["%s %s, %s, %s, %s" % (MF, vr(O_(jp, db), 4), vr(VF(db), 4), vr(P_(par), 4), vr(O_(jp, db), 4)) for db in range(8)]
    for m in qk_mfmas(0, 0): a(m)
    a("s_nop 7")

    def rare_code(st, j, adv):
        par = (3 * st + j) & 1
        S, P = S_(par), P_(par)
        rl, cont = a.label("Lrare"), a.label("Lcont")
        r = Asm()
        r("%s:" % rl)
        if adv: r("v_subrev_u32 v%d, s%d, v%d" % (vT2, sDK, vKA))
        else: r("v_mov_b32 v%d, v%d" % (vT2, vKA))
        for kb in range(2):
            for s in range(4):
                r("ds_read_b128 %s, v%d offset:%d" % (vr(P, 4), vT2, st * 8 * KGRP + kb * 4 * KGRP + s * 64))
                r("s_waitcnt lgkmcnt(0)")
                cc = vr(N_(j), 4) if s == 0 else vr(S + 4 * kb, 4)
                r("%s %s, %s, %s, %s" % (MF, vr(S + 4 * kb, 4), vr(P, 4), vr(Q_(j, s), 4), cc))
                r("s_nop 3")
        r("s_nop 7")
        r("v_max3_f32 v%d, v%d, v%d, v%d" % (vT, S, S + 1, S + 2)); r("v_max3_f32 v%d, v%d, v%d, v%d" % (vT2, S + 3, S + 4, S + 5))
        r("v_max3_f32 v%d, v%d, v%d, v%d" % (vT, vT, S + 6, S + 7)); r("v_max_f32 v%d, v%d, v%d" % (vT, vT, vT2))
        r("v_mov_b32 v%d, v%d" % (vT2, vT)); r("s_nop 1"); r("v_permlane32_swap_b32 v%d, v%d" % (vT, vT2)); r("v_max_f32 v%d, v%d, v%d" % (vT, vT, vT2))
        r("v_mov_b32 v%d, v%d" % (vT2, vT)); r("s_nop 1"); r("v_permlane16_swap_b32 v%d, v%d" % (vT, vT2)); r("v_max_f32 v%d, v%d, v%d" % (vT, vT, vT2))
        r("v_max_f32 v%d, 0, v%d" % (vT, vT))
        r("v_sub_f32 v%d, 0, v%d" % (vT2, vT)); r("v_exp_f32 v%d, v%d" % (vT2, vT2)); r("s_nop 0")
        r("v_mul_f32 v%d, v%d, v%d" % (L_(j), L_(j), vT2))
        for db in range(8):
            for rr in range(4): r("v_mul_f32 v%d, v%d, v%d" % (O_(j, db) + rr, O_(j, db) + rr, vT2))
        for i in range(4): r("v_sub_f32 v%d, v%d, v%d" % (N_(j) + i, N_(j) + i, vT))
        for i in range(8): r("v_sub_f32 v%d, v%d, v%d" % (S + i, S + i, vT))
        for i in range(8): r("v_exp_f32 v%d, v%d" % (S + i, S + i))
        r("s_nop 0")
        r("v_add_f32 v%d, v%d, v%d" % (vS, S, S + 1))
        for i in range(2, 8): r("v_add_f32 v%d, v%d, v%d" % (vS, vS, S + i))
        for i in range(4): r("v_cvt_pk_bf16_f32 v%d, v%d, v%d" % (P + i, S + 2 * i, S + 2 * i + 1))
        r("s_nop 1")
        r("s_branch %s" % cont)
        rare.append(r.text())
        return ["s_cbranch_vccnz %s" % rl, "%s:" % cont]

    def block(st, j, prev, qk=True, kload=None, vlo=None, vhi=None, barrier=False, extra=(), pre_extra=(), klate=None):
        par = (3 * st + j) & 1
        jn, jp = (j + 1) % 3, (j - 1) % 3
        S, P = S_(par), P_(par)
        pre = []
        if barrier: pre.append("s_barrier")
        if prev is not None: pre += rare_code(*prev)
        pre += list(pre_extra)
        mf = (qk_mfmas(jn, par ^ 1) if qk else []) + pv_mfmas(jp, par ^ 1)
        nq = 8 if qk else 0
        if not qk: pre.append("s_nop 1")
        it = []
        Ladd = Item("v_add_f32 v%d, v%d, v%d" % (L_(jp), L_(jp), vS), lo=0, hi=6, pri=5)
        E = [Item("v_exp_f32 v%d, v%d" % (S + i, S + i), lo=0, pri=3) for i in range(8)]
        for i in range(1, 8): pass
        A01 = Item("v_add_f32 v%d, v%d, v%d" % (vT, S, S + 1), deps=[E[0], E[1]])
        A23 = Item("v_add_f32 v%d, v%d, v%d" % (vT2, S + 2, S + 3), deps=[E[2], E[3]])
        B_ = Item("v_add_f32 v%d, v%d, v%d" % (vT, vT, vT2), deps=[A01, A23])
        A45 = Item("v_add_f32 v%d, v%d, v%d" % (vT2, S + 4, S + 5), deps=[E[4], E[5], B_])
        C_ = Item("v_add_f32 v%d, v%d, v%d" % (vT, vT, vT2), deps=[A45])
        A67 = Item("v_add_f32 v%d, v%d, v%d" % (vT2, S + 6, S + 7), deps=[E[6], E[7], C_])
        D_ = Item("v_add_f32 v%d, v%d, v%d" % (vS, vT, vT2), deps=[A67, Ladd])
        CMP = Item("v_cmp_lt_f32 vcc, s%d, v%d" % (sTHR, vS), deps=[D_], hi=len(mf) - CMP_SLACK)
        CV = [Item("v_cvt_pk_bf16_f32 v%d, v%d, v%d" % (P + i, S + 2 * i, S + 2 * i + 1), deps=[E[2 * i], E[2 * i + 1]], hi=len(mf) - 2) for i in range(4)]
        if "nosm" in OPT: it = []
        else: it = [Ladd] + E + [A01, A23, B_, A45, C_, A67, D_, CMP] + CV
        if "nolds" not in OPT:
            if vlo is not None:
                for db in range(4): it.append(Item(v_reads(db, vlo), lo=nq + db, pri=4))
            if vhi is not None:
                for db in range(4, 8): it.append(Item(v_reads(db, vhi), lo=0, hi=nq + db - 7, pri=6))
            if kload is not None:
                for i, (kb, s) in enumerate(KORD[:6]): it.append(Item(k_read(kb, s, kload), lo=max(i, 5), hi=min(15, 9 + i), pri=4))
            if klate is not None:
                for i, (kb, s) in list(enumerate(KORD))[6:]: it.append(Item(k_read(kb, s, klate), lo=0, hi=0, pri=7))
        for x in extra: it.append(Item(x, lo=8))
        return schedule(mf, it, pre)

    def tile(last, first_of_all=False):
        L = []
        L += block(0, 0, (1, 2, True), vlo=0)
        L += block(0, 1, (0, 0, False), vhi=0, kload=1)
        L += block(0, 2, (0, 1, False), klate=1)
        L += block(1, 0, (0, 2, False), vlo=1)
        adv = ["s_add_u32 s%d, s%d, 1" % (sSLOT, sSLOT), "s_and_b32 s%d, s%d, 3" % (sSLOT, sSLOT), "s_cmp_eq_u32 s%d, 0" % sSLOT,
               "s_cselect_b32 s%d, s%d, %d" % (sDK, sNEG, PAIR), "v_add_u32 v%d, s%d, v%d" % (vKA, sDK, vKA)]
        L += block(1, 1, (1, 0, False), vhi=1, kload=(None if last else 0), barrier=True, pre_extra=adv)
        L += block(1, 2, (1, 1, True), qk=not last, klate=(None if last else 0),
                   extra=[["v_add_u32 v%d, s%d, v%d" % (vVA + cc, sDK, vVA + cc)] for cc in range(4)])
        return L
    steady = tile(False)
    del rare[:]
    steady2 = tile(False)
    lastt = tile(True)
    body = auto_lgkm(steady2, entry_lines=steady)
    lastb = auto_lgkm(lastt, entry_lines=steady)
    print("   attention steady tile: model %d cycles (%d/unit), %d instrs" % (model_cycles(body), model_cycles(body) / 6, len(body)))
    loop = a.label("Ltile")
    _stamp(a, 6, "s_memtime")
    a("s_mov_b32 s%d, 0" % sCNT)
    a("%s:" % loop)
    for x in body: a(x)
    a("s_add_u32 s%d, s%d, 1" % (sCNT, sCNT)); a("s_cmp_lt_u32 s%d, 15" % sCNT); a("s_cbranch_scc1 %s" % loop)
    _stamp(a, 7, "s_memtime")
    for x in lastb: a(x)
    for x in rare_code(1, 2, True): a(x)
    a("v_add_f32 v%d, v%d, v%d" % (L_(2), L_(2), vS))
    a("s_nop 1")
    for m in pv_mfmas(2, 1): a(m)
    a("s_nop 7")
    stamp(a, 2, 12)
    for j in range(3):
        L = L_(j)
        a("v_mov_b32 v%d, v%d" % (vT, L)); a("s_nop 1"); a("v_permlane32_swap_b32 v%d, v%d" % (L, vT)); a("v_add_f32 v%d, v%d, v%d" % (L, L, vT))
        a("v_mov_b32 v%d, v%d" % (vT, L)); a("s_nop 1"); a("v_permlane16_swap_b32 v%d, v%d" % (L, vT)); a("v_add_f32 v%d, v%d, v%d" % (L, L, vT))
        a("v_rcp_f32 v%d, v%d" % (L, L))
    a("s_nop 1")
    def OA(s, j): return 96 + (s * 3 + j) * 4
    def OB(s, j): return 144 + (s * 3 + j) * 4
    for j in range(3):
        a("v_mov_b32 v%d, v%d" % (vT2, L_(j))); a("v_mov_b32 v%d, v%d" % (vT, L_(j)))
        for s in range(4):
            X, Y, D = O_(j, 2 * s), O_(j, 2 * s + 1), OA(s, j)
            for r in range(0, 4, 2):
                a("v_pk_mul_f32 %s, %s, %s" % (vr(X + r, 2), vr(X + r, 2), vr(vT, 2))); a("v_pk_mul_f32 %s, %s, %s" % (vr(Y + r, 2), vr(Y + r, 2), vr(vT, 2)))
            a("v_cvt_pk_bf16_f32 v%d, v%d, v%d" % (D + 0, X + 0, X + 1)); a("v_cvt_pk_bf16_f32 v%d, v%d, v%d" % (D + 1, X + 2, X + 3))
            a("v_cvt_pk_bf16_f32 v%d, v%d, v%d" % (D + 2, Y + 0, Y + 1)); a("v_cvt_pk_bf16_f32 v%d, v%d, v%d" % (D + 3, Y + 2, Y + 3))
    vA0, vA1 = 240, 241
    a("v_lshlrev_b32 v%d, 4, v%d" % (vT, vLANE))
    a("s_mul_i32 s%d, s%d, 12288" % (sT0, sWAVE)); a("s_add_u32 s%d, s%d, %d" % (sT0, sT0, EXCH)); a("v_add_u32 v%d, s%d, v%d" % (vA0, sT0, vT))
    a("s_xor_b32 s%d, s%d, 2" % (sT2, sWAVE)); a("s_mul_i32 s%d, s%d, 12288" % (sT0, sT2)); a("s_add_u32 s%d, s%d, %d" % (sT0, sT0, EXCH)); a("v_add_u32 v%d, s%d, v%d" % (vA1, sT0, vT))
    a("s_barrier")
    for i in range(12): a("ds_write_b128 v%d, %s offset:%d" % (vA0, vr(96 + 4 * i, 4), i * 1024))
    vAO, vST = 224, 228
    g, rp, c, t = 242, 243, 244, 245
    a("v_lshrrev_b32 v%d, 4, v%d" % (g, vLANE)); a("v_bfe_u32 v%d, v%d, 2, 2" % (rp, vLANE)); a("v_and_b32 v%d, 3, v%d" % (c, vLANE))
    a("v_lshlrev_b32 v%d, 2, v%d" % (t, g)); a("v_add_u32 v%d, v%d, v%d" % (t, t, rp))
    a("v_lshrrev_b32 v%d, 1, v%d" % (g, t)); a("v_and_b32 v%d, 3, v%d" % (g, g)); a("v_lshlrev_b32 v%d, 5, v%d" % (g, g))
    a("v_lshlrev_b32 v%d, 7, v%d" % (t, t)); a("v_add_u32 v%d, v%d, v%d" % (t, t, g)); a("v_lshlrev_b32 v%d, 3, v%d" % (c, c)); a("v_add_u32 v%d, v%d, v%d" % (t, t, c))
    a("s_lshl_b32 s%d, s%d, 6" % (sT0, sQI)); a("v_xor_b32 v%d, s%d, v%d" % (t, sT0, t))
    a("s_lshl_b32 s%d, s%d, 14" % (sT0, sQI)); a("s_xor_b32 s%d, s%d, 16384" % (sT1, sT0))
    a("v_add_u32 v%d, s%d, v%d" % (vAO + 0, sT0, t)); a("v_xor_b32 v%d, 32, v%d" % (vAO + 1, vAO + 0))
    a("v_add_u32 v%d, s%d, v%d" % (vAO + 2, sT1, t)); a("v_xor_b32 v%d, 32, v%d" % (vAO + 3, vAO + 2))
    a("s_mul_i32 s%d, s%d, 6144" % (sT0, sQI)); a("s_mul_i32 s%d, s%d, 3072" % (sT1, sRH)); a("s_add_u32 s%d, s%d, s%d" % (sT0, sT0, sT1))
    a("v_add_u32 v%d, s%d, v%d" % (vST, sT0, vT))
    a("s_waitcnt lgkmcnt(0)")
    a("s_barrier")
    for i in range(12): a("ds_read_b128 %s, v%d offset:%d" % (vr(144 + 4 * i, 4), vA1, i * 1024))
    stamp(a, 3, 13)
    assert PAIR % 256 == 0
    def AF(i): return 192 + 4 * (i % 8)
    def ACC(buf, z, j): return buf * 24 + (z * 3 + j) * 4
    def PK(buf, j): return 48 + buf * 12 + 4 * j
    def a_reads(G):
        c_, kk = divmod(G, 8)
        hs, s = (0, kk) if kk < 4 else (1, kk - 4)
        r = []
        for z in range(2):
            fr = AF(2 * G + z)
            r.append("ds_read_b64_tr_b16 %s, v%d offset:%d" % (vr(fr, 2), vAO + 2 * hs + z, s * 4096))
            r.append("ds_read_b64_tr_b16 %s, v%d offset:%d" % (vr(fr + 2, 2), vAO + 2 * hs + z, s * 4096 + 2048))
        return r
    LOOK = 3
    def slot_delta(c_from): return (-3 * PAIR if (16 + c_from + 1) % 4 == 0 else PAIR) & 0xffffffff
    for G in range(LOOK):
        for x in a_reads(G): a(x)
    pend_epi = []
    vPW = 229
    a("v_lshlrev_b32 v%d, 4, v%d" % (vT, vLANE))
    a("s_mul_i32 s%d, s%d, 3072" % (sT0, sWAVE)); a("s_add_u32 s%d, s%d, %d" % (sT0, sT0, PB0)); a("v_add_u32 v%d, s%d, v%d" % (vPW, sT0, vT))
    a("s_mul_i32 s%d, s%d, %d" % (sT0, sWAVE, PAIR)); a("s_add_u32 s%d, s%d, 32768" % (sT0, sT0)); a("v_add_u32 v%d, s%d, v%d" % (vPW + 1, sT0, vT))
    for c_ in range(9):
        buf = c_ & 1
        for kk in range(8):
            G = c_ * 8 + kk
            hs, s = (0, kk) if kk < 4 else (1, kk - 4)
            Gn = G + LOOK
            pre = []; rd = []; barrier = False
            if Gn < 72:
                cn, kn = divmod(Gn, 8)
                if kn == 0:
                    barrier = True
                    pre += ["v_add_u32 v%d, 0x%x, v%d" % (vAO + 0, slot_delta(cn - 1), vAO + 0), "v_add_u32 v%d, 0x%x, v%d" % (vAO + 1, slot_delta(cn - 1), vAO + 1)]
                if kn == 4 and cn > 0:
                    pre += ["v_add_u32 v%d, 0x%x, v%d" % (vAO + 2, slot_delta(cn - 1), vAO + 2), "v_add_u32 v%d, 0x%x, v%d" % (vAO + 3, slot_delta(cn - 1), vAO + 3)]
                rd = a_reads(Gn)
            elif G == 69: barrier = True
            younger = 4 * min(LOOK - 1, 71 - G)
            a("s_waitcnt lgkmcnt(%d)" % younger)
            if barrier: a("s_barrier")
            for x in pre: a(x)
            mf = []
            for z in range(2):
                for j in range(3):
                    bsrc = OA(s, j) if hs == 0 else OB(s, j)
                    cc = "0" if kk == 0 else vr(ACC(buf, z, j), 4)
                    mf.append("%s %s, %s, %s, %s" % (MF, vr(ACC(buf, z, j), 4), vr(AF(2 * G + z), 4), vr(bsrc, 4), cc))
            fill = spread(rd, [0, 1, 2, 3]) if rd else {}
            if pend_epi and kk >= 1:
                take = pend_epi[:8] if kk == 1 else pend_epi
                pend_epi = pend_epi[len(take):]
                fill = merge(fill, spread(take, [1, 2, 3, 4, 5]))
            for x in interleave(mf, fill): a(x)
        epi = []
        for j in range(3):
            d = PK(buf, j)
            for z in range(2):
                A_ = ACC(buf, z, j)
                epi.append("v_cvt_pk_bf16_f32 v%d, v%d, v%d" % (d + 2 * z, A_, A_ + 1)); epi.append("v_cvt_pk_bf16_f32 v%d, v%d, v%d" % (d + 2 * z + 1, A_ + 2, A_ + 3))
            epi.append("ds_write_b128 v%d, %s offset:%d" % (vPW + buf, vr(d, 4), j * 1024))
        pend_epi = epi
    a("s_nop 7")
    for x in pend_epi: a(x)
    a("s_waitcnt lgkmcnt(0)")
    a("s_barrier")
    stamp(a, 4, 14)
    stamp(a, 5)
    stamp_flush(a)
    a("v_mov_b32 v1, v%d" % vLANE)
    a("s_mov_b32 s%d, s%d" % (sCNT, sWAVE))
    a("s_branch L_reduce")
    for r in rare: a(r)

def mk_srd(a, b, lo, hi, off, size):
    a("s_add_u32 s%d, s%d, s%d" % (b, lo, off)); a("s_addc_u32 s%d, s%d, 0" % (b + 1, hi)); a("s_mov_b32 s%d, %d" % (b + 2, size)); a("s_mov_b32 s%d, 0x20000" % (b + 3))

def gen_k1():
    a = Asm(); a.stamp_wave = 0; a.stamp_tmp = 252
    common_prologue(a, "L_k1_end", 256)
    a("s_and_b32 s%d, s2, 7" % sXCD); a("s_lshr_b32 s%d, s2, 3" % sIDX)
    a("s_and_b32 s%d, s%d, 1" % (sB, sXCD)); a("s_lshl_b32 s%d, s%d, 3" % (sB, sB)); a("s_and_b32 s%d, s%d, 7" % (sT2, sIDX)); a("s_add_u32 s%d, s%d, s%d" % (sB, sB, sT2))
    a("s_lshr_b32 s%d, s%d, 1" % (sH, sXCD)); a("s_lshl_b32 s%d, s%d, 2" % (sH, sH)); a("s_lshr_b32 s%d, s%d, 3" % (sT2, sIDX)); a("s_add_u32 s%d, s%d, s%d" % (sH, sH, sT2))
    a("s_lshl_b32 s%d, s%d, 4" % (sT0, sB)); a("s_add_u32 s%d, s%d, s%d" % (sT0, sT0, sH))
    a("s_lshl_b32 s%d, s%d, 18" % (sT1, sT0))
    mk_srd(a, sK, 6, 7, sT1, 262144); mk_srd(a, sV, 8, 9, sT1, 262144)
    a("s_mul_i32 s%d, s%d, 110592" % (sT1, sB)); mk_srd(a, sX, 4, 5, sT1, 110592)
    a("s_lshl_b32 s%d, s%d, 9" % (sT1, sH)); mk_srd(a, sWQ, 10, 11, sT1, 0); a("s_sub_u32 s%d, 4718592, s%d" % (sWQ + 2, sT1))
    a("s_mul_i32 s%d, s%d, 294912" % (sT1, sH)); mk_srd(a, sWO, 12, 13, sT1, 294912)
    a("s_mul_i32 s%d, s%d, %d" % (sT1, sT0, PART)); a("s_add_u32 s%d, s%d, %d" % (sT1, sT1, WS_PART)); mk_srd(a, sP, 18, 19, sT1, PART)
    a("s_lshr_b32 s%d, s%d, 2" % (sT1, sH)); a("s_lshl_b32 s%d, s%d, 11" % (sT1, sT1)); mk_srd(a, sPF, 10, 11, sT1, 0); a("s_sub_u32 s%d, 4718592, s%d" % (sPF + 2, sT1))
    a("s_lshr_b32 s%d, s%d, 3" % (sT1, sB)); a("s_mul_i32 s%d, s%d, %d" % (sT1, sT1, 8 * 110592)); mk_srd(a, sPF2, 4, 5, sT1, 8 * 110592)
    a("s_mov_b32 s%d, s12" % sWOP); a("s_mov_b32 s%d, s13" % (sWOP + 1))
    a("s_mul_i32 s%d, s%d, 110592" % (sT1, sB)); mk_srd(a, sOUT, 14, 15, sT1, 110592)
    a("s_mul_i32 s%d, s%d, %d" % (sT1, sB, 16 * PART)); a("s_add_u32 s%d, s%d, %d" % (sT1, sT1, WS_PART)); mk_srd(a, sPB, 18, 19, sT1, 16 * PART)
    a("s_mul_i32 s%d, s%d, %d" % (sT1, sB, 9 * 64)); a("s_add_u32 s%d, s%d, %d" % (sT1, sT1, WS_FLAG)); mk_srd(a, sFL, 18, 19, sT1, 9 * 64)
    if STAMP:
        a("s_lshl_b32 s%d, s2, 9" % sT1); a("s_add_u32 s%d, s18, s%d" % (sSTAMP, sT1)); a("s_addc_u32 s%d, s19, 0" % (sSTAMP + 1))
    if "allc" in OPT: a("s_and_b32 s%d, s%d, 3" % (sWAVE, sWAVE))
    a("s_cmp_ge_u32 s%d, 4" % sWAVE); a("s_cbranch_scc1 L_loader")
    gen_compute(a)
    a("L_loader:")
    a.stamp_wave = 4; a.stamp_tmp = 40
    gen_loader(a)
    gen_reducer(a)
    a("L_k1_end:")
    a("s_endpgm")
    return a.text()

def build(fn, stamp=False, opt=()):
    global STAMP, OPT
    STAMP = stamp; OPT = set(opt)
    k1 = gen_k1()
    errs = hazard.check(k1, "k1")
    for e in errs[:10]: print(e)
    if errs: print("k1: %d hazard warnings" % len(errs))
    txt = HEADER + "; @launch grid=(256,1,1) block=(512,1,1) lds=%d\n" % LDS_BYTES
    txt += '.amdgcn_target "amdgcn-amd-amdhsa--gfx950"\n.text\n' + kernel_begin(KNAME) + k1 + '\n.section .rodata,"a"\n.p2align 6\n' + kernel_desc(KNAME, 256, 102, 256)
    open(fn, "w").write(txt)
    print(fn, len(txt), "bytes,", txt.count("\n"), "lines")

if __name__ == "__main__":
    def pieces(start, per):
        d = {}; st = start
        for kind in "KV":
            for lo in range(0, 8, per):
                d.setdefault(st, []).append((kind, 0, lo, lo + per)); st += 1
        return d
    def mk(start, per, i1at):
        d = pieces(start, per)
        d.setdefault(i1at, []).extend([("K", 1), ("V", 1)])
        d.setdefault(19, []).extend([("K", 2), ("V", 2)])
        return d
    PF0 = 0
    O = ["rotq", "nopfq"]
    KSCHED = mk(10, 2, 18)
    KSCHED = mk(12, 4, 18)
    build("v6.s", False, O); build("v6_st.s", True, ["trace"] + O)
    build("v6_e.s", True, ["trace", "nocpf"] + O); build("v6_f.s", True, ["trace", "cpf0"] + O)
    KSCHED = mk(6, 2, 18)
    build("v6_a.s", True, ["trace"] + O)
    KSCHED = mk(2, 1, 18)
    build("v6_b.s", True, ["trace"] + O)
    KSCHED = mk(12, 4, 18)
    build("v6_c.s", True, ["trace"] + O)
    KSCHED = mk(8, 2, 17)
    build("v6_d.s", True, ["trace"] + O)
```

```python
import sys, struct
from asmlib import *
import hazard
from sched import Item, schedule, auto_lgkm, model_cycles

def f32(x): return "0x%08x" % struct.unpack("<I", struct.pack("<f", x))[0]
C_SCALE = 1.4426950408889634 / (128 ** 0.5)

PAIR = 35840
KGRP, VGRP = 1088, 1152
VOFF = 16 * KGRP
WBASE = 2 * PAIR
XBASE = WBASE + 4 * 16384
XSLOT = 12288
EXCH = 3 * PAIR
LDS_BYTES = 163840
PART = 108 * 1024
WS_PART = 1 << 20
WS_FLAG = 1 << 19
KNAME = 'standalone__gqa_block_cached__near_ridge_kernel'
OPT = set()
STAMP = False

sK, sV, sX, sWQ, sWO, sP = 20, 24, 28, 32, 36, 40
sWAVE, sB, sH, sLW = 44, 45, 46, 47
sT0, sT1, sT2, sT3 = 48, 49, 50, 51
sLWK, sLW3072, sLWV, sLW4096 = 52, 53, 59, 66
sTHR, sCNT, sDK, sNEG, sSLOT = 54, 55, 56, 57, 58
sSTAMP = 60
sTM = 62
sQI, sRH = 64, 65
sXCD, sIDX = 67, 68
sPF = 72
sPF2 = 76
sFL = 8
sPB = 4
sOUT = 12
def srd(b): return "s[%d:%d]" % (b, b + 3)
def vr(b, n=1): return "v%d" % b if n == 1 else "v[%d:%d]" % (b, b + n - 1)

def _stamp(a, idx, instr):
    if not STAMP: return
    a("%s s[%d:%d]" % (instr, sTM, sTM + 1)); a("s_waitcnt lgkmcnt(0)")
    if a.stamp_wave == 0: a("s_mov_b32 s%d, s%d" % (80 + idx, sTM))
    else: a("v_writelane_b32 v40, s%d, %d" % (sTM, idx))
def stamp(a, idx, cyc=None):
    _stamp(a, idx, "s_memrealtime")
    if cyc is not None: _stamp(a, cyc, "s_memtime")
DBG_WG = 37
def stamp_flush(a):
    if not STAMP: return
    if "dbg" in OPT:
        sk = a.label("Ldbgs")
        a("s_cmp_lg_u32 s2, %d" % DBG_WG); a("s_cbranch_scc1 %s" % sk)
        a("s_cmp_lg_u32 s%d, %d" % (sWAVE, a.stamp_wave)); a("s_cbranch_scc1 %s" % sk)
        a("v_mov_b32 v1, 0")
        if a.stamp_wave == 0:
            for dw, (j, j0) in zip((1, 2, 3, 5, 6, 7, 9, 10, 11), ((1, 0), (2, 0), (3, 0), (4, 0), (11, 10), (12, 11), (13, 12), (14, 13), (7, 6))):
                a("s_sub_u32 s%d, s%d, s%d" % (sT0, 80 + j, 80 + j0)); a("v_mov_b32 v2, s%d" % sT0); a("global_store_dword v1, v2, s[16:17] offset:%d" % (4 * dw))
        else:
            a("v_readlane_b32 s%d, v40, 15" % sT0); a("v_readlane_b32 s%d, v40, 16" % sT1); a("s_nop 3"); a("s_sub_u32 s%d, s%d, s%d" % (sT0, sT0, sT1)); a("v_mov_b32 v2, s%d" % sT0)
            a("global_store_dword v1, v2, s[16:17] offset:52")
            a("v_readlane_b32 s%d, v40, 36" % sT0); a("s_nop 3"); a("s_sub_u32 s%d, s%d, s%d" % (sT0, sT0, sT1)); a("v_mov_b32 v2, s%d" % sT0)
            a("global_store_dword v1, v2, s[16:17] offset:56")
        a("%s:" % sk)
        return
    sk = a.label("Lst")
    a("s_cmp_lg_u32 s%d, %d" % (sWAVE, a.stamp_wave)); a("s_cbranch_scc1 %s" % sk)
    if a.stamp_wave == 0:
        a("v_mov_b32 v1, 0")
        for i in range(16):
            if i in (8, 9, 15): continue
            a("v_mov_b32 v2, s%d" % (80 + i)); a("global_store_dword v1, v2, s[%d:%d] offset:%d" % (sSTAMP, sSTAMP + 1, 4 * i))
    else:
        a("v_and_b32 v2, 63, v0"); a("v_lshlrev_b32 v3, 2, v2")
        a("v_cmp_lt_u32 vcc, 14, v2"); a("v_cmp_eq_u32 s[96:97], 8, v2"); a("s_or_b64 vcc, vcc, s[96:97]"); a("v_cmp_eq_u32 s[96:97], 9, v2"); a("s_or_b64 vcc, vcc, s[96:97]")
        a("s_and_saveexec_b64 s[96:97], vcc")
        a("global_store_dword v3, v40, s[%d:%d]" % (sSTAMP, sSTAMP + 1))
        a("s_mov_b64 exec, s[96:97]")
    a("%s:" % sk)

def common_prologue(a, endlab, nwg):
    a("s_cmp_ge_u32 s2, %d" % nwg); a("s_cbranch_scc1 %s" % endlab)
    a("s_load_dwordx8 s[4:11], s[0:1], 0")
    a("s_load_dwordx4 s[12:15], s[0:1], 32")
    a("s_load_dwordx4 s[16:19], s[0:1], 48")
    a("v_lshrrev_b32 v1, 6, v0")
    a("s_nop 0")
    a("v_readfirstlane_b32 s%d, v1" % sWAVE)
    a("s_waitcnt lgkmcnt(0)")

class VQ:
    def __init__(s): s.q = []
    def issue(s, tag, n=1): s.q += [tag] * n
    def wait(s, tags):
        idx = [i for i, t in enumerate(s.q) if t in tags]
        if not idx: return None
        last = max(idx); n = len(s.q) - 1 - last
        s.q = s.q[last + 1:]
        return min(n, 63)

KV_FLAGS = " nt"
W_FLAGS = ""
O_FLAGS = ""
P_FLAGS = " sc0 sc1"


def gen_loader(a):
    a("s_sub_u32 s%d, s%d, 4" % (sLW, sWAVE))
    a("v_and_b32 v1, 63, v0")
    if STAMP: a("v_mov_b32 v40, 0")
    a("s_cmp_ge_u32 s%d, 2" % sLW); a("s_cbranch_scc1 L_kvloader")
    gen_wloader(a)
    a("L_kvloader:")
    gen_kvloader(a)

def mk_bar(a, q, trace_base=None):
    def bar(tags):
        n = q.wait(tags) if tags else None
        if n is not None and "nowait" not in OPT: a("s_waitcnt vmcnt(%d)" % n)
        if "trace" in OPT and bar.n < 48 and trace_base is not None: stamp(a, 16 + bar.n)
        a("s_barrier")
        bar.n += 1
    bar.n = 0
    return bar

def dma(a, vreg, srdb, soff, imm, flags):
    if "noload" in OPT: return
    a("buffer_load_dwordx4 v%d, %s, s%d offen offset:%d%s lds" % (vreg, srd(srdb), soff, imm, flags))

def emit_pf(a, chunks, lane=1):
    if not chunks: return
    sk = a.label("Lpfq"); skx = a.label("Lpfx")
    a("s_cmp_ge_u32 s%d, 28" % sIDX); a("s_cbranch_scc1 %s" % sk)
    a("s_cmp_ge_u32 s%d, 16" % sIDX); a("s_cbranch_scc1 %s" % skx)
    a("v_lshrrev_b32 v30, 4, v%d" % lane); a("v_and_b32 v31, 15, v%d" % lane)
    a("s_lshl_b32 s%d, s%d, 2" % (sT0, sIDX)); a("v_add_u32 v30, s%d, v30" % sT0); a("v_lshlrev_b32 v30, 13, v30"); a("v_lshlrev_b32 v31, 7, v31"); a("v_add_u32 v30, v30, v31")
    for cp in chunks:
        if isinstance(cp, int): a("s_mov_b32 s%d, %d" % (sT0, cp * 64 * 8192))
        else: a("s_lshl_b32 s%d, s%d, 19" % (sT0, cp[0])); a("s_add_u32 s%d, s%d, %d" % (sT0, sT0, cp[1] * 64 * 8192))
        a("buffer_load_dword v32, v30, %s, s%d offen" % (srd(sPF), sT0))
    a("s_branch %s" % sk)
    a("%s:" % skx)
    a("s_sub_u32 s%d, s%d, 16" % (sT0, sIDX)); a("s_lshl_b32 s%d, s%d, 6" % (sT0, sT0)); a("v_add_u32 v30, s%d, v%d" % (sT0, lane)); a("v_mul_u32_u24 v30, 1152, v30")
    for cp in chunks:
        if isinstance(cp, int): a("s_mov_b32 s%d, %d" % (sT0, cp * 128))
        else: a("s_lshl_b32 s%d, s%d, 7" % (sT0, cp[0])); a("s_add_u32 s%d, s%d, %d" % (sT0, sT0, cp[1] * 128))
        a("buffer_load_dword v32, v30, %s, s%d offen" % (srd(sPF2), sT0))
    a("%s:" % sk)

def code_prefetch(a, lane=1):
    if "nocpf" in OPT: return
    lab = a.label("Lcpf")
    a("s_getpc_b64 s[94:95]")
    a("%s:" % lab)
    a("s_sub_u32 s94, s94, (%s - %s)" % (lab, KNAME)); a("s_subb_u32 s95, s95, 0")
    a("s_lshl_b32 s%d, s%d, 11" % (sT0, sIDX))
    a("v_and_b32 v34, 15, v%d" % lane); a("v_lshlrev_b32 v34, 7, v34"); a("v_add_u32 v34, s%d, v34" % sT0)
    a("v_min_u32 v34, (L_k1_end - %s), v34" % KNAME)
    a("global_load_dword v35, v34, s[94:95]")

def gen_wloader(a):
    vW, vX, vO = 10, 14, 16
    a.stamp_wave = 4
    sA, sBb = sLWK, sLWV
    a("v_lshrrev_b32 v6, 5, v1"); a("v_and_b32 v7, 31, v1")
    a("s_lshl_b32 s%d, s%d, 17" % (sT1, sLW))
    a("v_lshlrev_b32 v8, 13, v6"); a("v_add_u32 v8, s%d, v8" % sT1)
    for var in range(4):
        a("v_add_u32 v5, %d, v6" % (2 * (var & 1) + 4 * (var >> 1))); a("v_lshlrev_b32 v5, 1, v5"); a("v_xor_b32 v5, v5, v7")
        a("v_lshlrev_b32 v5, 4, v5"); a("v_add_u32 v%d, v8, v5" % (vW + var))
    a("v_lshrrev_b32 v6, 3, v1"); a("v_and_b32 v7, 7, v1")
    a("s_mul_i32 s%d, s%d, 48" % (sT1, sLW)); a("v_add_u32 v8, s%d, v6" % sT1); a("v_mul_u32_u24 v8, 1152, v8")
    a("v_lshrrev_b32 v9, 1, v6")
    for i in range(2):
        a("v_add_u32 v5, %d, v9" % (4 * i)); a("v_xor_b32 v5, v5, v7"); a("v_lshlrev_b32 v5, 4, v5"); a("v_add_u32 v%d, v8, v5" % (vX + i))
    a("v_mul_u32_u24 v8, 1152, v6")
    a("v_and_b32 v5, 3, v9"); a("v_lshlrev_b32 v5, 1, v5"); a("v_xor_b32 v5, v5, v7"); a("v_lshlrev_b32 v5, 4, v5"); a("v_add_u32 v%d, v8, v5" % vO)
    a("s_lshl_b32 s%d, s%d, 13" % (sA, sLW))
    a("s_mul_i32 s%d, s%d, 6144" % (sBb, sLW))
    a("s_lshl_b32 s%d, s%d, 14" % (sLW4096, sLW))
    a("s_mul_i32 s%d, s%d, %d" % (sLW3072, sLW, 128 * 1152))
    q = VQ(); bar = mk_bar(a, q, 0)
    sWK, sXK, sOK = 98, 99, 100
    if "rotq" not in OPT:
        a("s_mov_b32 s%d, 0" % sWK); a("s_mov_b32 s%d, 0" % sXK)
        a("s_and_b32 s%d, s%d, 7" % (sT0, sB)); a("s_lshl_b32 s%d, s%d, 7" % (sOK, sT0))
    else:
        a("s_and_b32 s%d, s%d, 7" % (sT0, sIDX)); a("s_lshr_b32 s%d, s%d, 3" % (sT1, sIDX)); a("s_lshl_b32 s%d, s%d, 1" % (sT1, sT1)); a("s_add_u32 s%d, s%d, s%d" % (sT0, sT0, sT1))
        a("s_cmp_ge_u32 s%d, 9" % sT0); a("s_cselect_b32 s%d, 9, 0" % sT1); a("s_sub_u32 s%d, s%d, s%d" % (sT0, sT0, sT1))
        a("s_lshl_b32 s%d, s%d, 19" % (sWK, sT0)); a("s_lshl_b32 s%d, s%d, 7" % (sXK, sT0))
        a("s_and_b32 s%d, s%d, 7" % (sT0, sB)); a("s_lshl_b32 s%d, s%d, 7" % (sOK, sT0))
    def adv(reg, step, wrap):
        a("s_add_u32 s%d, s%d, %d" % (reg, reg, step)); a("s_cmp_eq_u32 s%d, %d" % (reg, wrap)); a("s_cselect_b32 s%d, 0, s%d" % (reg, reg))
    def iss_W(s):
        for ii in range(8):
            if ii % 4 == 0: a("s_add_u32 m0, s%d, %d" % (sA, WBASE + ((s + 2) % 4) * 16384 + (ii >> 2) * 4096))
            a("s_add_u32 s%d, s%d, %d" % (sT0, sWK, 16384 * ii - (ii & 3) * 1024))
            dma(a, vW + (ii & 1) + 2 * (ii >> 2), sWQ, sT0, (ii & 3) * 1024, W_FLAGS)
        adv(sWK, 262144, 18 * 262144)
        q.issue("W%d" % s, 8)
    def iss_X(cp):
        for ii in range(6):
            if ii % 4 == 0: a("s_add_u32 m0, s%d, %d" % (sBb, XBASE + (cp % 2) * XSLOT + (ii >> 2) * 4096))
            a("s_add_u32 s%d, s%d, %d" % (sT0, sXK, 9216 * ii - (ii & 3) * 1024))
            dma(a, vX + (ii & 1), sX, sT0, (ii & 3) * 1024, W_FLAGS)
        adv(sXK, 128, 9 * 128)
        q.issue("X%d" % cp, 6)
    def iss_O(c):
        T = 16 + c
        a("s_add_u32 s%d, s%d, s%d" % (sT1, sLW3072, sOK))
        for ii in range(16):
            if ii % 4 == 0: a("s_add_u32 m0, s%d, %d" % (sLW4096, (T % 4) * PAIR + (ii >> 2) * 4096))
            a("s_add_u32 s%d, s%d, %d" % (sT0, sT1, 9216 * ii - (ii & 3) * 1024))
            dma(a, vO, sWO, sT0, (ii & 3) * 1024, O_FLAGS)
        adv(sOK, 128, 9 * 128)
        q.issue("I%d" % T, 16)
    def prefetch_o():
        a("s_lshr_b32 s%d, s%d, 2" % (sT0, sH)); a("s_mul_i32 s%d, s%d, %d" % (sT0, sT0, 4 * 294912))
        a("s_add_u32 s%d, s%d, s%d" % (sPF2, sWOP, sT0)); a("s_addc_u32 s%d, s%d, 0" % (sPF2 + 1, sWOP + 1)); a("s_mov_b32 s%d, %d" % (sPF2 + 2, 4 * 294912)); a("s_mov_b32 s%d, 0x20000" % (sPF2 + 3))
        a("s_lshl_b32 s%d, s%d, 1" % (sT0, sIDX)); a("s_add_u32 s%d, s%d, s%d" % (sT0, sT0, sLW)); a("s_mul_i32 s%d, s%d, 144" % (sT0, sT0))
        a("v_add_u32 v5, s%d, v1" % sT0); a("v_lshlrev_b32 v6, 7, v5")
        a("buffer_load_dword v34, v6, %s, 0 offen" % srd(sPF2))
        a("v_add_u32 v6, 8192, v6"); a("buffer_load_dword v35, v6, %s, 0 offen" % srd(sPF2))
        a("v_add_u32 v6, 8192, v6"); a("v_mov_b32 v7, 0x40000000"); a("v_cmp_gt_u32 vcc, 16, v1"); a("s_nop 1"); a("v_cndmask_b32 v6, v7, v6, vcc")
        a("buffer_load_dword v36, v6, %s, 0 offen" % srd(sPF2))
        q.issue("PF", 3)
    def cpf():
        sk = a.label("Lcp"); a("s_cmp_lg_u32 s%d, 1" % sLW); a("s_cbranch_scc1 %s" % sk); code_prefetch(a); a("%s:" % sk)
    if "cpf0" in OPT: cpf()
    if PF0:
        a("s_mul_i32 s%d, s%d, %d" % (sT2, sLW, PF0))
        emit_pf(a, [(sT2, k) for k in range(PF0)])
    iss_W(0); iss_X(0); iss_W(1); iss_W(2); iss_X(1); iss_W(3)
    for s in range(18):
        bar(["W%d" % s, "X%d" % (s // 2)])
        if s >= 1 and s + 3 <= 17: iss_W(s + 3)
        if s >= 2 and s % 2 == 0 and s // 2 + 1 <= 8: iss_X(s // 2 + 1)
    bar(None)
    bar(None)
    stamp(a, 8)
    for n in range(1, 17):
        bar(["I%d" % n] if n >= 16 else None)
        if n == PF_O_AT and "pfo" in OPT: prefetch_o()
        if n == CPF_AT: cpf()
        if n + 2 >= 16: iss_O(n + 2 - 16)
    a("s_barrier"); a("s_barrier")
    for n in range(17, 27):
        bar((["I%d" % n] + (["I24"] if n == 23 else [])) if n <= 23 else None)
        if n + 2 <= 24: iss_O(n + 2 - 16)
    stamp(a, 9)
    a("s_add_u32 s%d, s%d, 4" % (sCNT, sLW))
    a("s_branch L_reduce")

def gen_kvloader(a):
    vK, vV = 10, 11
    a.stamp_wave = -1
    a("s_sub_u32 s%d, s%d, 2" % (sLW, sLW))
    a("v_lshrrev_b32 v2, 4, v1"); a("v_and_b32 v3, 15, v1")
    a("s_lshl_b32 s%d, s%d, 13" % (sT0, sLW))
    a("v_lshlrev_b32 v4, 8, v2"); a("v_add_u32 v4, s%d, v4" % sT0)
    a("v_xor_b32 v5, v2, v3"); a("v_lshlrev_b32 v5, 4, v5"); a("v_add_u32 v%d, v4, v5" % vK)
    a("v_lshlrev_b32 v5, 1, v2"); a("v_xor_b32 v5, v5, v3"); a("v_lshlrev_b32 v5, 4, v5"); a("v_add_u32 v%d, v4, v5" % vV)
    a("s_mul_i32 s%d, s%d, %d" % (sLWK, sLW, 8 * KGRP)); a("s_mul_i32 s%d, s%d, %d" % (sLWV, sLW, 8 * VGRP))
    q = VQ(); bar = mk_bar(a, q, None)
    def iss(T, isK, lo=0, hi=8):
        for ii in range(lo, hi):
            if ii % 4 == 0 or ii == lo: a("s_mov_b32 s%d, %d" % (sT0, T * 16384 + (ii >> 2) * 4096))
            grp = KGRP if isK else VGRP
            a("s_add_u32 m0, s%d, %d" % (sLWK if isK else sLWV, (T % 4) * PAIR + (0 if isK else VOFF) + ii * grp - (ii & 3) * 1024))
            if ii % 4: a("s_nop 0")
            else: a("s_nop 0")
            dma(a, vK if isK else vV, sK if isK else sV, sT0, (ii & 3) * 1024, KV_FLAGS)
        q.issue("I%d" % T, hi - lo)
    def prefetch_q():
        sk = a.label("Lpfq"); skx = a.label("Lpfx")
        a("s_cmp_lg_u32 s%d, %d" % (sLW, PF_WAVE)); a("s_cbranch_scc1 %s" % sk)
        a("s_cmp_ge_u32 s%d, 28" % sIDX); a("s_cbranch_scc1 %s" % sk)
        a("s_cmp_ge_u32 s%d, 16" % sIDX); a("s_cbranch_scc1 %s" % skx)
        a("s_lshl_b32 s%d, s%d, 2" % (sT0, sIDX)); a("v_add_u32 v5, s%d, v2" % sT0); a("v_lshlrev_b32 v5, 13, v5"); a("v_lshlrev_b32 v6, 7, v3"); a("v_add_u32 v5, v5, v6")
        for cp in range(PF_FIRST, 9):
            a("s_mov_b32 s%d, %d" % (sT0, cp * 64 * 8192)); a("buffer_load_dword v%d, v5, %s, s%d offen" % (20 + cp, srd(sPF), sT0))
        a("s_branch %s" % sk)
        a("%s:" % skx)
        a("s_sub_u32 s%d, s%d, 16" % (sT0, sIDX)); a("s_lshl_b32 s%d, s%d, 6" % (sT0, sT0)); a("v_add_u32 v5, s%d, v1" % sT0); a("v_mul_u32_u24 v5, 1152, v5")
        for cp in range(PF_FIRST, 9):
            a("s_mov_b32 s%d, %d" % (sT0, cp * 128)); a("buffer_load_dword v%d, v5, %s, s%d offen" % (20 + cp, srd(sPF2), sT0))
        a("%s:" % sk)
    def clear_flags():
        sk = a.label("Lclr")
        a("s_cmp_lg_u32 s%d, 1" % sLW); a("s_cbranch_scc1 %s" % sk)
        a("v_mov_b32 v20, 0")
        a("s_lshl_b32 s%d, s%d, 2" % (sT0, sH))
        a("v_lshlrev_b32 v5, 6, v1"); a("v_add_u32 v5, s%d, v5" % sT0); a("v_mov_b32 v7, 0x40000000"); a("v_cmp_gt_u32 vcc, 9, v1"); a("s_nop 1"); a("v_cndmask_b32 v5, v7, v5, vcc")
        a("buffer_store_dword v20, v5, %s, 0 offen sc0 sc1" % srd(sFL))
        a("s_waitcnt vmcnt(0)")
        a("s_lshl_b32 s%d, s%d, 4" % (sT0, sB)); a("v_mov_b32 v5, s%d" % sT0); a("v_mov_b32 v6, 1")
        a("s_mov_b64 s[96:97], exec"); a("s_mov_b64 exec, 1")
        a("global_atomic_add v5, v6, s[16:17] sc1")
        a("s_mov_b64 exec, s[96:97]")
        a("%s:" % sk)
    if "notlb" not in OPT:
        sk = a.label("Ltlb")
        a("s_cmp_lg_u32 s%d, 0" % sLW); a("s_cbranch_scc1 %s" % sk)
        a("v_mov_b32 v5, 0")
        for i, sr in enumerate((sK, sV, sWO, sP, sOUT)): a("buffer_load_dword v%d, v5, %s, 0 offen nt" % (33 + i, srd(sr)))
        a("v_mul_u32_u24 v5, %d, v1" % (PART // 8)); a("v_lshlrev_b32 v5, 3, v5"); a("v_mov_b32 v7, 0x40000000"); a("v_cmp_gt_u32 vcc, 16, v1"); a("s_nop 1"); a("v_cndmask_b32 v5, v7, v5, vcc")
        a("buffer_load_dword v38, v5, %s, 0 offen nt" % srd(sPB))
        a("%s:" % sk)
    clear_flags()
    if "nopfq" not in OPT and PF_AT < 0: prefetch_q()
    for s in range(18):
        bar(None)
        if "nopfq" not in OPT and PF_AT == s: prefetch_q()
        for e in KSCHED.get(s, []): iss(e[1], e[0] == "K", *e[2:])
    bar(None)
    for e in KSCHED.get(18, []): iss(e[1], e[0] == "K", *e[2:])
    bar(["I0"])
    for e in KSCHED.get(19, []): iss(e[1], e[0] == "K", *e[2:])
    for n in range(1, 17):
        bar(["I%d" % n] if n < 16 else None)
        if n >= FIRST_RULE and n + 2 < 16: iss(n + 2, True); iss(n + 2, False)
    if "nored" not in OPT:
        sk = a.label("Ldbg"); lp = a.label("Ldbgw")
        a("s_cmp_lg_u32 s%d, 0" % sLW); a("s_cbranch_scc1 %s" % sk)
        a("s_lshl_b32 s%d, s%d, 4" % (sT0, sB)); a("v_mov_b32 v10, s%d" % sT0); a("s_mov_b32 s%d, 0" % sT3)
        a("%s:" % lp)
        a("global_load_dword v12, v10, s[16:17] sc1"); a("s_waitcnt vmcnt(0)"); a("v_readfirstlane_b32 s%d, v12" % sT1)
        a("s_add_u32 s%d, s%d, 1" % (sT3, sT3)); a("s_cmp_gt_u32 s%d, %d" % (sT3, SPIN_MAX)); a("s_cbranch_scc1 %s" % sk)
        a("s_cmp_lt_u32 s%d, 16" % sT1); a("s_cbranch_scc1 %s" % lp)
        a("%s:" % sk)
    a("s_barrier"); a("s_barrier")
    vPR, vPO, vF, vOne = 20, 24, 25, 26
    a("v_lshlrev_b32 v%d, 4, v1" % vPO)
    a("v_add_u32 v%d, %d, v%d" % (vPR, PB0, vPO)); a("v_add_u32 v%d, %d, v%d" % (vPR + 1, 32768, vPO)); a("v_add_u32 v%d, %d, v%d" % (vPR + 2, 2 * PAIR + 32768, vPO))
    a("v_mov_b32 v%d, 1" % vOne)
    def set_flags(first, n):
        a("v_lshlrev_b32 v%d, 7, v1" % vF); a("s_lshl_b32 s%d, s%d, 2" % (sT0, sH)); a("s_add_u32 s%d, s%d, %d" % (sT0, sT0, first * 64)); a("v_add_u32 v%d, s%d, v%d" % (vF, sT0, vF))
        a("v_mov_b32 v7, 0x40000000"); a("v_cmp_gt_u32 vcc, %d, v1" % n); a("s_nop 1"); a("v_cndmask_b32 v%d, v7, v%d, vcc" % (vF, vF))
        a("buffer_store_dword v%d, v%d, %s, 0 offen sc0 sc1" % (vOne, vF, srd(sFL)))
    for n in range(17, 27):
        a("s_barrier")
        c = n - 18
        if c < 0: continue
        sk = a.label("Lsto")
        a("s_cmp_lg_u32 s%d, %d" % (sLW, c & 1)); a("s_cbranch_scc1 %s" % sk)
        for w in range(4):
            for j in range(3):
                if c & 1 == 0: ad, off = vPR, (3 * w + j) * 1024
                else: ad, off = vPR + 1 + (w >> 1), (w & 1) * PAIR + j * 1024
                a("ds_read_b128 %s, v%d offset:%d" % (vr(64 + 4 * (3 * w + j), 4), ad, off))
        if c >= 7 and "nored" not in OPT:
            a("s_waitcnt vmcnt(0)")
            set_flags(c & 1, 4 if c == 8 else 3)
        for i in range(12):
            a("s_waitcnt lgkmcnt(%d)" % (11 - i))
            a("s_mov_b32 s%d, %d" % (sT0, c * 12288 + i * 1024))
            if "nostore" not in OPT: a("buffer_store_dwordx4 %s, v%d, %s, s%d offen%s" % (vr(64 + 4 * i, 4), vPO, srd(sP), sT0, P_FLAGS))
        if c >= 7 and "nored" not in OPT:
            a("s_waitcnt vmcnt(0)")
            set_flags(c, 1)
        a("%s:" % sk)
    a("s_cmp_eq_u32 s%d, 0" % sLW); a("s_cselect_b32 s%d, 7, 6" % sCNT)
    a("s_branch L_reduce")

KSCHED = {2: [("K", 0)], 5: [("V", 0)], 8: [("K", 1)], 11: [("V", 1)], 16: [("K", 2)], 17: [("V", 2)]}

def gen_reducer(a):
    a("L_reduce:")
    if "nored" in OPT:
        a.stamp_wave = 4; stamp_flush(a); a("s_endpgm"); return
    rho = sCNT
    giveup = a.label("Lgiveup"); poll = a.label("Lpoll")
    a("s_mul_i32 s%d, s%d, 54" % (sT0, rho)); a("s_mul_hi_u32 s%d, s%d, %d" % (sT2, sT0, (2**32 + 47) // 48))
    a("v_lshlrev_b32 v9, 2, v1"); a("v_mov_b32 v7, 0x40000000"); a("v_cmp_gt_u32 vcc, 32, v1"); a("s_nop 1"); a("v_cndmask_b32 v9, v7, v9, vcc")
    a("s_lshl_b32 s%d, s%d, 6" % (sT2, sT2))
    a("buffer_load_dword v11, v9, %s, s%d offen sc1" % (srd(sFL), sT2))
    a("v_add_u32 v2, s%d, v1" % sT0)
    a("v_mul_u32_u24 v8, 1366, v2"); a("v_lshrrev_b32 v8, 16, v8")
    a("v_mul_u32_u24 v5, 48, v8"); a("v_sub_u32 v2, v2, v5")
    a("s_mul_i32 s%d, s%d, 48" % (sT1, sH)); a("v_add_u32 v2, s%d, v2" % sT1)
    a("v_mul_u32_u24 v3, 12288, v8"); a("v_lshlrev_b32 v5, 4, v2"); a("v_add_u32 v3, v3, v5")
    a("v_cmp_gt_u32 vcc, 54, v1"); a("s_nop 1"); a("v_cndmask_b32 v3, v7, v3, vcc")
    a("v_lshrrev_b32 v4, 6, v2"); a("v_and_b32 v5, 63, v2")
    a("v_cmp_le_u32 s[96:97], 6, v4"); a("s_nop 1"); a("v_cndmask_b32 v6, 0, 1, s[96:97]")
    a("v_mul_u32_u24 v10, 6, v6"); a("v_sub_u32 v4, v4, v10")
    a("v_lshlrev_b32 v4, 4, v4"); a("v_and_b32 v10, 15, v5"); a("v_add_u32 v4, v4, v10"); a("v_mul_u32_u24 v4, 1152, v4")
    a("v_lshlrev_b32 v6, 6, v6"); a("v_lshrrev_b32 v5, 4, v5"); a("v_lshlrev_b32 v5, 3, v5"); a("v_add_u32 v4, v4, v6"); a("v_add_u32 v4, v4, v5")
    a("s_and_b32 s%d, s%d, 7" % (sT1, sB)); a("v_add_u32 v8, s%d, v8" % sT1)
    a("v_cmp_le_u32 s[96:97], 9, v8"); a("s_nop 1"); a("v_cndmask_b32 v6, 0, 9, s[96:97]"); a("v_sub_u32 v8, v8, v6"); a("v_lshlrev_b32 v8, 7, v8"); a("v_add_u32 v4, v4, v8")
    a("v_cndmask_b32 v4, v7, v4, vcc")
    a("s_mov_b32 s%d, 0" % sT3)
    a("s_branch %s_chk" % poll)
    a("%s:" % poll)
    a("buffer_load_dword v11, v9, %s, s%d offen sc1" % (srd(sFL), sT2))
    a("%s_chk:" % poll)
    a("s_waitcnt vmcnt(0)")
    a("v_cmp_eq_u32 vcc, 1, v11")
    a("s_add_u32 s%d, s%d, 1" % (sT3, sT3)); a("s_cmp_gt_u32 s%d, %d" % (sT3, SPIN_MAX)); a("s_cbranch_scc1 %s" % giveup)
    a("s_cmp_eq_u32 vcc_lo, -1"); a("s_cbranch_scc0 %s" % poll)
    a("s_mov_b32 s%d, 0" % sT0)
    for h in range(16):
        a("buffer_load_dwordx4 v[%d:%d], v3, %s, s%d offen%s" % (64 + 4 * h, 67 + 4 * h, srd(sPB), sT0, R_FLAGS))
        if h < 15: a("s_add_u32 s%d, s%d, %d" % (sT0, sT0, PART))
    for h in range(16):
        a("s_waitcnt vmcnt(%d)" % (15 - h))
        for r in range(4):
            src = 64 + 4 * h + r
            if h == 0:
                a("v_lshlrev_b32 v%d, 16, v%d" % (48 + 2 * r, src)); a("v_and_b32 v%d, 0xffff0000, v%d" % (49 + 2 * r, src))
            else:
                a("v_lshlrev_b32 v12, 16, v%d" % src); a("v_and_b32 v13, 0xffff0000, v%d" % src)
                a("v_add_f32 v%d, v%d, v12" % (48 + 2 * r, 48 + 2 * r)); a("v_add_f32 v%d, v%d, v13" % (49 + 2 * r, 49 + 2 * r))
    for r in range(4): a("v_cvt_pk_bf16_f32 v%d, v%d, v%d" % (56 + r, 48 + 2 * r, 49 + 2 * r))
    a("buffer_store_dwordx2 v[56:57], v4, %s, 0 offen%s" % (srd(sOUT), OUT_FLAGS))
    a("buffer_store_dwordx2 v[58:59], v4, %s, 0 offen offset:32%s" % (srd(sOUT), OUT_FLAGS))
    a("%s:" % giveup)
    if STAMP:
        sk = a.label("Lnst"); a("s_cmp_lg_u32 s%d, 4" % sWAVE); a("s_cbranch_scc1 %s" % sk)
        a.stamp_wave = 4; stamp(a, 15); stamp_flush(a)
        a("%s:" % sk)
    a("s_endpgm")
R_FLAGS = " sc1"
OUT_FLAGS = ""
sTASK2 = 101
PB0 = 143360
SPIN_MAX = 200000
sWOP = 70

PF_O_AT = 10
PF_WAVE = 1
PF_FIRST = 4
PF_AT = 0
PF0 = 2
CPF_AT = 11
FIRST_RULE = 1
CMP_SLACK = 6
FLAG_DELAY = 4

def O_(j, db): return (j * 8 + db) * 4
def Q_(j, s): return 96 + (j * 4 + s) * 4
def KF(f): return 144 + 4 * f
def VF(db): return 176 + 4 * db
def S_(par): return 208 + 8 * par
def P_(par): return 224 + 4 * par
def N_(j): return 232 + 4 * j
def L_(j): return 244 + j
vKA, vVA, vT, vT2, vS, vLANE = 247, 248, 252, 253, 254, 255
MF = "v_mfma_f32_16x16x32_bf16"

def interleave(mfmas, fillers):
    out = list(fillers.get(-1, []))
    for i, m in enumerate(mfmas):
        out.append(m); out += fillers.get(i, [])
    return out
def spread(items, slots):
    d = {}; n = len(items)
    for i, it in enumerate(items): d.setdefault(slots[i * len(slots) // n], []).append(it)
    return d
def merge(*ds):
    o = {}
    for d in ds:
        for k, v in d.items(): o.setdefault(k, []).extend(v)
    return o

KORD = [(kb, s) for s in range(4) for kb in range(2)]
def k_read(kb, s, half, ad=None):
    return "ds_read_b128 %s, v%d offset:%d" % (vr(KF(kb * 4 + s), 4), vKA if ad is None else ad, half * 8 * KGRP + kb * 4 * KGRP + s * 64)
def v_reads(db, half):
    A, cc = divmod(db, 4)
    o = half * 8 * VGRP + A * 128
    return ["ds_read_b64_tr_b16 %s, v%d offset:%d" % (vr(VF(db), 2), vVA + cc, o), "ds_read_b64_tr_b16 %s, v%d offset:%d" % (vr(VF(db) + 2, 2), vVA + cc, o + 4 * VGRP)]

def gen_compute(a):
    rare = []
    a("v_and_b32 v%d, 63, v0" % vLANE)
    a("s_lshr_b32 s%d, s%d, 1" % (sQI, sWAVE)); a("s_and_b32 s%d, s%d, 1" % (sRH, sWAVE))
    g, rp, c, q = 240, 241, 242, 243
    a("v_lshrrev_b32 v%d, 4, v%d" % (g, vLANE)); a("v_bfe_u32 v%d, v%d, 2, 2" % (rp, vLANE)); a("v_and_b32 v%d, 3, v%d" % (c, vLANE)); a("v_and_b32 v%d, 15, v%d" % (q, vLANE))
    vWA, vXA = 232, 244
    t, t2 = vT, vT2
    a("v_lshlrev_b32 v%d, 3, v%d" % (t, g)); a("v_add_u32 v%d, v%d, v%d" % (t, t, rp)); a("v_lshlrev_b32 v%d, 9, v%d" % (t, t))
    a("v_and_b32 v%d, 1, v%d" % (t2, g)); a("v_lshlrev_b32 v%d, 2, v%d" % (t2, t2)); a("v_add_u32 v%d, v%d, v%d" % (t2, t2, rp)); a("v_lshlrev_b32 v%d, 5, v%d" % (t2, t2))
    a("v_add_u32 v%d, v%d, v%d" % (t, t, t2)); a("v_lshlrev_b32 v%d, 3, v%d" % (t2, c)); a("v_add_u32 v%d, v%d, v%d" % (t, t, t2))
    a("s_lshl_b32 s%d, s%d, 8" % (sT0, sQI)); a("s_add_u32 s%d, s%d, %d" % (sT0, sT0, WBASE)); a("v_add_u32 v%d, s%d, v%d" % (t, sT0, t))
    assert WBASE % 256 == 0 and XBASE % 128 == 0
    for db in range(8): a("v_xor_b32 v%d, %d, v%d" % (vWA + db, db * 32, t))
    a("s_mul_i32 s%d, s%d, %d" % (sT0, sRH, 48 * 128)); a("s_add_u32 s%d, s%d, %d" % (sT0, sT0, XBASE))
    a("v_lshrrev_b32 v%d, 1, v%d" % (t, q)); a("v_xor_b32 v%d, v%d, v%d" % (t, t, g)); a("v_lshlrev_b32 v%d, 4, v%d" % (t, t))
    a("v_lshlrev_b32 v%d, 7, v%d" % (t2, q)); a("v_add_u32 v%d, v%d, v%d" % (t, t, t2)); a("v_add_u32 v%d, s%d, v%d" % (vXA, sT0, t)); a("v_xor_b32 v%d, 64, v%d" % (vXA + 1, vXA))
    a("v_lshrrev_b32 v%d, 2, v%d" % (t, q)); a("v_mul_u32_u24 v%d, %d, v%d" % (t, KGRP, t))
    a("v_and_b32 v%d, 3, v%d" % (t2, q)); a("v_lshlrev_b32 v%d, 8, v%d" % (vKA, t2)); a("v_add_u32 v%d, v%d, v%d" % (t, t, vKA))
    a("v_xor_b32 v%d, v%d, v%d" % (t2, t2, g)); a("v_lshlrev_b32 v%d, 4, v%d" % (t2, t2)); a("v_add_u32 v%d, v%d, v%d" % (vKA, t, t2))
    a("v_mul_u32_u24 v%d, %d, v%d" % (t, VGRP, g)); a("v_lshlrev_b32 v%d, 8, v%d" % (t2, rp)); a("v_add_u32 v%d, v%d, v%d" % (t, t, t2))
    a("v_lshlrev_b32 v%d, 3, v%d" % (t2, c)); a("v_add_u32 v%d, v%d, v%d" % (t, t, t2)); a("v_add_u32 v%d, %d, v%d" % (t, VOFF, t))
    for cc in range(4):
        a("v_xor_b32 v%d, %d, v%d" % (t2, cc, rp)); a("v_lshlrev_b32 v%d, 5, v%d" % (t2, t2)); a("v_add_u32 v%d, v%d, v%d" % (vVA + cc, t, t2))
    stamp(a, 0, 10)

    def ABUF(buf, db): return 144 + 32 * buf + 4 * db
    def BBUF(buf, j): return 208 + 12 * buf + 4 * j
    def q_reads(s):
        buf = s & 1; wo = ((s + 2) % 4) * 16384; xo = ((s // 2) % 2) * XSLOT
        r = []
        for j in range(3): r.append("ds_read_b128 %s, v%d offset:%d" % (vr(BBUF(buf, j), 4), vXA + (s & 1), xo + j * 2048))
        for db in range(8):
            r.append("ds_read_b64_tr_b16 %s, v%d offset:%d" % (vr(ABUF(buf, db), 2), vWA + db, wo))
            r.append("ds_read_b64_tr_b16 %s, v%d offset:%d" % (vr(ABUF(buf, db) + 2, 2), vWA + db, wo + 2048))
        return r
    a("s_barrier")
    for x in q_reads(0): a(x)
    for s in range(18):
        buf = s & 1
        a("s_waitcnt lgkmcnt(0)")
        a("s_barrier")
        mf = []
        for db in range(8):
            for j in range(3):
                cc = "0" if s == 0 else vr(O_(j, db), 4)
                mf.append("%s %s, %s, %s, %s" % (MF, vr(O_(j, db), 4), vr(ABUF(buf, db), 4), vr(BBUF(buf, j), 4), cc))
        rd = q_reads(s + 1) if s < 17 else []
        for x in interleave(mf, spread(rd, list(range(0, 17))) if rd else {}): a(x)
    stamp(a, 1, 11)
    a("s_nop 7")
    a("s_mov_b32 s%d, %s" % (sT0, f32(C_SCALE))); a("s_mov_b32 s%d, s%d" % (sT0 + 1, sT0))
    for j in range(3):
        for s in range(4):
            X, Y, D = O_(j, 2 * s), O_(j, 2 * s + 1), Q_(j, s)
            for r in range(0, 4, 2):
                a("v_pk_mul_f32 %s, %s, s[%d:%d]" % (vr(X + r, 2), vr(X + r, 2), sT0, sT0 + 1)); a("v_pk_mul_f32 %s, %s, s[%d:%d]" % (vr(Y + r, 2), vr(Y + r, 2), sT0, sT0 + 1))
            a("v_cvt_pk_bf16_f32 v%d, v%d, v%d" % (D + 0, X + 0, X + 1)); a("v_cvt_pk_bf16_f32 v%d, v%d, v%d" % (D + 1, X + 2, X + 3))
            a("v_cvt_pk_bf16_f32 v%d, v%d, v%d" % (D + 2, Y + 0, Y + 1)); a("v_cvt_pk_bf16_f32 v%d, v%d, v%d" % (D + 3, Y + 2, Y + 3))
            for r in range(0, 4, 2):
                a("v_mov_b64 %s, 0" % vr(X + r, 2)); a("v_mov_b64 %s, 0" % vr(Y + r, 2))
            a("v_permlane32_swap_b32 v%d, v%d" % (D + 0, D + 2)); a("v_permlane32_swap_b32 v%d, v%d" % (D + 1, D + 3))
            a("s_nop 1")
            a("v_permlane16_swap_b32 v%d, v%d" % (D + 0, D + 2)); a("v_permlane16_swap_b32 v%d, v%d" % (D + 1, D + 3))
    a("s_barrier")
    for kb, s_ in KORD: a(k_read(kb, s_, 0))
    a("s_waitcnt lgkmcnt(0)")
    for j in range(3):
        for kb, s_ in KORD:
            d = 176 + 8 * j + 4 * kb
            a("%s %s, %s, %s, %s" % (MF, vr(d, 4), vr(KF(kb * 4 + s_), 4), vr(Q_(j, s_), 4), "0" if s_ == 0 else vr(d, 4)))
    for r in range(224, 232, 2): a("v_mov_b64 %s, 0" % vr(r, 2))
    for j in range(3): a("v_mov_b32 v%d, 0" % L_(j))
    a("v_mov_b32 v%d, 0" % vS)
    a("s_mov_b32 s%d, %s" % (sTHR, "0x7f800000" if "norare" in OPT else f32(256.0)))
    a("s_mov_b32 s%d, 0" % sSLOT); a("s_mov_b32 s%d, 0" % sDK)
    a("s_mov_b32 s%d, 0x%x" % (sNEG, -3 * PAIR & 0xffffffff))
    a("s_mov_b64 vcc, 0")
    a("s_nop 3")
    for j in range(3):
        S = 176 + 8 * j; t, t2 = 200 + 2 * j, 201 + 2 * j
        a("v_max3_f32 v%d, v%d, v%d, v%d" % (t, S, S + 1, S + 2)); a("v_max3_f32 v%d, v%d, v%d, v%d" % (t2, S + 3, S + 4, S + 5))
        a("v_max3_f32 v%d, v%d, v%d, v%d" % (t, t, S + 6, S + 7)); a("v_max_f32 v%d, v%d, v%d" % (t, t, t2))
    for sw in ("v_permlane32_swap_b32", "v_permlane16_swap_b32"):
        for j in range(3): a("v_mov_b32 v%d, v%d" % (201 + 2 * j, 200 + 2 * j))
        a("s_nop 0")
        for j in range(3): a("%s v%d, v%d" % (sw, 200 + 2 * j, 201 + 2 * j))
        for j in range(3): a("v_max_f32 v%d, v%d, v%d" % (200 + 2 * j, 200 + 2 * j, 201 + 2 * j))
    for j in range(3):
        for i in range(4): a("v_sub_f32 v%d, 0, v%d" % (N_(j) + i, 200 + 2 * j))
    for r in range(176, 208, 2): a("v_mov_b64 %s, 0" % vr(r, 2))
    def qk_mfmas(jn, par):
        m = []
        for kb, s in KORD:
            d = S_(par) + 4 * kb
            cc = vr(N_(jn), 4) if s == 0 else vr(d, 4)
            m.append("%s %s, %s, %s, %s" % (MF, vr(d, 4), vr(KF(kb * 4 + s), 4), vr(Q_(jn, s), 4), cc))
        return m
    def pv_mfmas(jp, par):
        return ["%s %s, %s, %s, %s" % (MF, vr(O_(jp, db), 4), vr(VF(db), 4), vr(P_(par), 4), vr(O_(jp, db), 4)) for db in range(8)]
    for m in qk_mfmas(0, 0): a(m)
    a("s_nop 7")

    def rare_code(st, j, adv):
        par = (3 * st + j) & 1
        S, P = S_(par), P_(par)
        rl, cont = a.label("Lrare"), a.label("Lcont")
        r = Asm()
        r("%s:" % rl)
        if adv: r("v_subrev_u32 v%d, s%d, v%d" % (vT2, sDK, vKA))
        else: r("v_mov_b32 v%d, v%d" % (vT2, vKA))
        for kb in range(2):
            for s in range(4):
                r("ds_read_b128 %s, v%d offset:%d" % (vr(P, 4), vT2, st * 8 * KGRP + kb * 4 * KGRP + s * 64))
                r("s_waitcnt lgkmcnt(0)")
                cc = vr(N_(j), 4) if s == 0 else vr(S + 4 * kb, 4)
                r("%s %s, %s, %s, %s" % (MF, vr(S + 4 * kb, 4), vr(P, 4), vr(Q_(j, s), 4), cc))
                r("s_nop 3")
        r("s_nop 7")
        r("v_max3_f32 v%d, v%d, v%d, v%d" % (vT, S, S + 1, S + 2)); r("v_max3_f32 v%d, v%d, v%d, v%d" % (vT2, S + 3, S + 4, S + 5))
        r("v_max3_f32 v%d, v%d, v%d, v%d" % (vT, vT, S + 6, S + 7)); r("v_max_f32 v%d, v%d, v%d" % (vT, vT, vT2))
        r("v_mov_b32 v%d, v%d" % (vT2, vT)); r("s_nop 1"); r("v_permlane32_swap_b32 v%d, v%d" % (vT, vT2)); r("v_max_f32 v%d, v%d, v%d" % (vT, vT, vT2))
        r("v_mov_b32 v%d, v%d" % (vT2, vT)); r("s_nop 1"); r("v_permlane16_swap_b32 v%d, v%d" % (vT, vT2)); r("v_max_f32 v%d, v%d, v%d" % (vT, vT, vT2))
        r("v_max_f32 v%d, 0, v%d" % (vT, vT))
        r("v_sub_f32 v%d, 0, v%d" % (vT2, vT)); r("v_exp_f32 v%d, v%d" % (vT2, vT2)); r("s_nop 0")
        r("v_mul_f32 v%d, v%d, v%d" % (L_(j), L_(j), vT2))
        for db in range(8):
            for rr in range(4): r("v_mul_f32 v%d, v%d, v%d" % (O_(j, db) + rr, O_(j, db) + rr, vT2))
        for i in range(4): r("v_sub_f32 v%d, v%d, v%d" % (N_(j) + i, N_(j) + i, vT))
        for i in range(8): r("v_sub_f32 v%d, v%d, v%d" % (S + i, S + i, vT))
        for i in range(8): r("v_exp_f32 v%d, v%d" % (S + i, S + i))
        r("s_nop 0")
        r("v_add_f32 v%d, v%d, v%d" % (vS, S, S + 1))
        for i in range(2, 8): r("v_add_f32 v%d, v%d, v%d" % (vS, vS, S + i))
        for i in range(4): r("v_cvt_pk_bf16_f32 v%d, v%d, v%d" % (P + i, S + 2 * i, S + 2 * i + 1))
        r("s_nop 1")
        r("s_branch %s" % cont)
        rare.append(r.text())
        return ["s_cbranch_vccnz %s" % rl, "%s:" % cont]

    def block(st, j, prev, qk=True, kload=None, vlo=None, vhi=None, barrier=False, extra=(), pre_extra=(), klate=None):
        par = (3 * st + j) & 1
        jn, jp = (j + 1) % 3, (j - 1) % 3
        S, P = S_(par), P_(par)
        pre = []
        if barrier: pre.append("s_barrier")
        if prev is not None: pre += rare_code(*prev)
        pre += list(pre_extra)
        mf = (qk_mfmas(jn, par ^ 1) if qk else []) + pv_mfmas(jp, par ^ 1)
        nq = 8 if qk else 0
        if not qk: pre.append("s_nop 1")
        it = []
        Ladd = Item("v_add_f32 v%d, v%d, v%d" % (L_(jp), L_(jp), vS), lo=0, hi=6, pri=5)
        E = [Item("v_exp_f32 v%d, v%d" % (S + i, S + i), lo=0, pri=3) for i in range(8)]
        for i in range(1, 8): pass
        A01 = Item("v_add_f32 v%d, v%d, v%d" % (vT, S, S + 1), deps=[E[0], E[1]])
        A23 = Item("v_add_f32 v%d, v%d, v%d" % (vT2, S + 2, S + 3), deps=[E[2], E[3]])
        B_ = Item("v_add_f32 v%d, v%d, v%d" % (vT, vT, vT2), deps=[A01, A23])
        A45 = Item("v_add_f32 v%d, v%d, v%d" % (vT2, S + 4, S + 5), deps=[E[4], E[5], B_])
        C_ = Item("v_add_f32 v%d, v%d, v%d" % (vT, vT, vT2), deps=[A45])
        A67 = Item("v_add_f32 v%d, v%d, v%d" % (vT2, S + 6, S + 7), deps=[E[6], E[7], C_])
        D_ = Item("v_add_f32 v%d, v%d, v%d" % (vS, vT, vT2), deps=[A67, Ladd])
        CMP = Item("v_cmp_lt_f32 vcc, s%d, v%d" % (sTHR, vS), deps=[D_], hi=len(mf) - CMP_SLACK)
        CV = [Item("v_cvt_pk_bf16_f32 v%d, v%d, v%d" % (P + i, S + 2 * i, S + 2 * i + 1), deps=[E[2 * i], E[2 * i + 1]], hi=len(mf) - 2) for i in range(4)]
        if "nosm" in OPT: it = []
        else: it = [Ladd] + E + [A01, A23, B_, A45, C_, A67, D_, CMP] + CV
        if "nolds" not in OPT:
            if vlo is not None:
                for db in range(4): it.append(Item(v_reads(db, vlo), lo=nq + db, pri=4))
            if vhi is not None:
                for db in range(4, 8): it.append(Item(v_reads(db, vhi), lo=0, hi=nq + db - 7, pri=6))
            if kload is not None:
                for i, (kb, s) in enumerate(KORD[:6]): it.append(Item(k_read(kb, s, kload), lo=max(i, 5), hi=min(15, 9 + i), pri=4))
            if klate is not None:
                for i, (kb, s) in list(enumerate(KORD))[6:]: it.append(Item(k_read(kb, s, klate), lo=0, hi=0, pri=7))
        for x in extra: it.append(Item(x, lo=8))
        return schedule(mf, it, pre)

    def tile(last, first_of_all=False):
        L = []
        L += block(0, 0, (1, 2, True), vlo=0)
        L += block(0, 1, (0, 0, False), vhi=0, kload=1)
        L += block(0, 2, (0, 1, False), klate=1)
        L += block(1, 0, (0, 2, False), vlo=1)
        adv = ["s_add_u32 s%d, s%d, 1" % (sSLOT, sSLOT), "s_and_b32 s%d, s%d, 3" % (sSLOT, sSLOT), "s_cmp_eq_u32 s%d, 0" % sSLOT,
               "s_cselect_b32 s%d, s%d, %d" % (sDK, sNEG, PAIR), "v_add_u32 v%d, s%d, v%d" % (vKA, sDK, vKA)]
        L += block(1, 1, (1, 0, False), vhi=1, kload=(None if last else 0), barrier=True, pre_extra=adv)
        L += block(1, 2, (1, 1, True), qk=not last, klate=(None if last else 0),
                   extra=[["v_add_u32 v%d, s%d, v%d" % (vVA + cc, sDK, vVA + cc)] for cc in range(4)])
        return L
    steady = tile(False)
    del rare[:]
    steady2 = tile(False)
    lastt = tile(True)
    body = auto_lgkm(steady2, entry_lines=steady)
    lastb = auto_lgkm(lastt, entry_lines=steady)
    print("   attention steady tile: model %d cycles (%d/unit), %d instrs" % (model_cycles(body), model_cycles(body) / 6, len(body)))
    loop = a.label("Ltile")
    _stamp(a, 6, "s_memtime")
    a("s_mov_b32 s%d, 0" % sCNT)
    a("%s:" % loop)
    for x in body: a(x)
    a("s_add_u32 s%d, s%d, 1" % (sCNT, sCNT)); a("s_cmp_lt_u32 s%d, 15" % sCNT); a("s_cbranch_scc1 %s" % loop)
    _stamp(a, 7, "s_memtime")
    for x in lastb: a(x)
    for x in rare_code(1, 2, True): a(x)
    a("v_add_f32 v%d, v%d, v%d" % (L_(2), L_(2), vS))
    a("s_nop 1")
    for m in pv_mfmas(2, 1): a(m)
    a("s_nop 7")
    stamp(a, 2, 12)
    for j in range(3):
        L = L_(j)
        a("v_mov_b32 v%d, v%d" % (vT, L)); a("s_nop 1"); a("v_permlane32_swap_b32 v%d, v%d" % (L, vT)); a("v_add_f32 v%d, v%d, v%d" % (L, L, vT))
        a("v_mov_b32 v%d, v%d" % (vT, L)); a("s_nop 1"); a("v_permlane16_swap_b32 v%d, v%d" % (L, vT)); a("v_add_f32 v%d, v%d, v%d" % (L, L, vT))
        a("v_rcp_f32 v%d, v%d" % (L, L))
    a("s_nop 1")
    def OA(s, j): return 96 + (s * 3 + j) * 4
    def OB(s, j): return 144 + (s * 3 + j) * 4
    for j in range(3):
        a("v_mov_b32 v%d, v%d" % (vT2, L_(j))); a("v_mov_b32 v%d, v%d" % (vT, L_(j)))
        for s in range(4):
            X, Y, D = O_(j, 2 * s), O_(j, 2 * s + 1), OA(s, j)
            for r in range(0, 4, 2):
                a("v_pk_mul_f32 %s, %s, %s" % (vr(X + r, 2), vr(X + r, 2), vr(vT, 2))); a("v_pk_mul_f32 %s, %s, %s" % (vr(Y + r, 2), vr(Y + r, 2), vr(vT, 2)))
            a("v_cvt_pk_bf16_f32 v%d, v%d, v%d" % (D + 0, X + 0, X + 1)); a("v_cvt_pk_bf16_f32 v%d, v%d, v%d" % (D + 1, X + 2, X + 3))
            a("v_cvt_pk_bf16_f32 v%d, v%d, v%d" % (D + 2, Y + 0, Y + 1)); a("v_cvt_pk_bf16_f32 v%d, v%d, v%d" % (D + 3, Y + 2, Y + 3))
    vA0, vA1 = 240, 241
    a("v_lshlrev_b32 v%d, 4, v%d" % (vT, vLANE))
    a("s_mul_i32 s%d, s%d, 12288" % (sT0, sWAVE)); a("s_add_u32 s%d, s%d, %d" % (sT0, sT0, EXCH)); a("v_add_u32 v%d, s%d, v%d" % (vA0, sT0, vT))
    a("s_xor_b32 s%d, s%d, 2" % (sT2, sWAVE)); a("s_mul_i32 s%d, s%d, 12288" % (sT0, sT2)); a("s_add_u32 s%d, s%d, %d" % (sT0, sT0, EXCH)); a("v_add_u32 v%d, s%d, v%d" % (vA1, sT0, vT))
    a("s_barrier")
    for i in range(12): a("ds_write_b128 v%d, %s offset:%d" % (vA0, vr(96 + 4 * i, 4), i * 1024))
    vAO, vST = 224, 228
    g, rp, c, t = 242, 243, 244, 245
    a("v_lshrrev_b32 v%d, 4, v%d" % (g, vLANE)); a("v_bfe_u32 v%d, v%d, 2, 2" % (rp, vLANE)); a("v_and_b32 v%d, 3, v%d" % (c, vLANE))
    a("v_lshlrev_b32 v%d, 2, v%d" % (t, g)); a("v_add_u32 v%d, v%d, v%d" % (t, t, rp))
    a("v_lshrrev_b32 v%d, 1, v%d" % (g, t)); a("v_and_b32 v%d, 3, v%d" % (g, g)); a("v_lshlrev_b32 v%d, 5, v%d" % (g, g))
    a("v_lshlrev_b32 v%d, 7, v%d" % (t, t)); a("v_add_u32 v%d, v%d, v%d" % (t, t, g)); a("v_lshlrev_b32 v%d, 3, v%d" % (c, c)); a("v_add_u32 v%d, v%d, v%d" % (t, t, c))
    a("s_lshl_b32 s%d, s%d, 6" % (sT0, sQI)); a("v_xor_b32 v%d, s%d, v%d" % (t, sT0, t))
    a("s_lshl_b32 s%d, s%d, 14" % (sT0, sQI)); a("s_xor_b32 s%d, s%d, 16384" % (sT1, sT0))
    a("v_add_u32 v%d, s%d, v%d" % (vAO + 0, sT0, t)); a("v_xor_b32 v%d, 32, v%d" % (vAO + 1, vAO + 0))
    a("v_add_u32 v%d, s%d, v%d" % (vAO + 2, sT1, t)); a("v_xor_b32 v%d, 32, v%d" % (vAO + 3, vAO + 2))
    a("s_mul_i32 s%d, s%d, 6144" % (sT0, sQI)); a("s_mul_i32 s%d, s%d, 3072" % (sT1, sRH)); a("s_add_u32 s%d, s%d, s%d" % (sT0, sT0, sT1))
    a("v_add_u32 v%d, s%d, v%d" % (vST, sT0, vT))
    a("s_waitcnt lgkmcnt(0)")
    a("s_barrier")
    for i in range(12): a("ds_read_b128 %s, v%d offset:%d" % (vr(144 + 4 * i, 4), vA1, i * 1024))
    stamp(a, 3, 13)
    assert PAIR % 256 == 0
    def AF(i): return 192 + 4 * (i % 8)
    def ACC(buf, z, j): return buf * 24 + (z * 3 + j) * 4
    def PK(buf, j): return 48 + buf * 12 + 4 * j
    def a_reads(G):
        c_, kk = divmod(G, 8)
        hs, s = (0, kk) if kk < 4 else (1, kk - 4)
        r = []
        for z in range(2):
            fr = AF(2 * G + z)
            r.append("ds_read_b64_tr_b16 %s, v%d offset:%d" % (vr(fr, 2), vAO + 2 * hs + z, s * 4096))
            r.append("ds_read_b64_tr_b16 %s, v%d offset:%d" % (vr(fr + 2, 2), vAO + 2 * hs + z, s * 4096 + 2048))
        return r
    LOOK = 3
    def slot_delta(c_from): return (-3 * PAIR if (16 + c_from + 1) % 4 == 0 else PAIR) & 0xffffffff
    for G in range(LOOK):
        for x in a_reads(G): a(x)
    pend_epi = []
    vPW = 229
    a("v_lshlrev_b32 v%d, 4, v%d" % (vT, vLANE))
    a("s_mul_i32 s%d, s%d, 3072" % (sT0, sWAVE)); a("s_add_u32 s%d, s%d, %d" % (sT0, sT0, PB0)); a("v_add_u32 v%d, s%d, v%d" % (vPW, sT0, vT))
    a("s_mul_i32 s%d, s%d, %d" % (sT0, sWAVE, PAIR)); a("s_add_u32 s%d, s%d, 32768" % (sT0, sT0)); a("v_add_u32 v%d, s%d, v%d" % (vPW + 1, sT0, vT))
    for c_ in range(9):
        buf = c_ & 1
        for kk in range(8):
            G = c_ * 8 + kk
            hs, s = (0, kk) if kk < 4 else (1, kk - 4)
            Gn = G + LOOK
            pre = []; rd = []; barrier = False
            if Gn < 72:
                cn, kn = divmod(Gn, 8)
                if kn == 0:
                    barrier = True
                    pre += ["v_add_u32 v%d, 0x%x, v%d" % (vAO + 0, slot_delta(cn - 1), vAO + 0), "v_add_u32 v%d, 0x%x, v%d" % (vAO + 1, slot_delta(cn - 1), vAO + 1)]
                if kn == 4 and cn > 0:
                    pre += ["v_add_u32 v%d, 0x%x, v%d" % (vAO + 2, slot_delta(cn - 1), vAO + 2), "v_add_u32 v%d, 0x%x, v%d" % (vAO + 3, slot_delta(cn - 1), vAO + 3)]
                rd = a_reads(Gn)
            elif G == 69: barrier = True
            younger = 4 * min(LOOK - 1, 71 - G)
            a("s_waitcnt lgkmcnt(%d)" % younger)
            if barrier: a("s_barrier")
            for x in pre: a(x)
            mf = []
            for z in range(2):
                for j in range(3):
                    bsrc = OA(s, j) if hs == 0 else OB(s, j)
                    cc = "0" if kk == 0 else vr(ACC(buf, z, j), 4)
                    mf.append("%s %s, %s, %s, %s" % (MF, vr(ACC(buf, z, j), 4), vr(AF(2 * G + z), 4), vr(bsrc, 4), cc))
            fill = spread(rd, [0, 1, 2, 3]) if rd else {}
            if pend_epi and kk >= 1:
                take = pend_epi[:8] if kk == 1 else pend_epi
                pend_epi = pend_epi[len(take):]
                fill = merge(fill, spread(take, [1, 2, 3, 4, 5]))
            for x in interleave(mf, fill): a(x)
        epi = []
        for j in range(3):
            d = PK(buf, j)
            for z in range(2):
                A_ = ACC(buf, z, j)
                epi.append("v_cvt_pk_bf16_f32 v%d, v%d, v%d" % (d + 2 * z, A_, A_ + 1)); epi.append("v_cvt_pk_bf16_f32 v%d, v%d, v%d" % (d + 2 * z + 1, A_ + 2, A_ + 3))
            epi.append("ds_write_b128 v%d, %s offset:%d" % (vPW + buf, vr(d, 4), j * 1024))
        pend_epi = epi
    a("s_nop 7")
    for x in pend_epi: a(x)
    a("s_waitcnt lgkmcnt(0)")
    a("s_barrier")
    stamp(a, 4, 14)
    stamp(a, 5)
    stamp_flush(a)
    a("v_mov_b32 v1, v%d" % vLANE)
    a("s_mov_b32 s%d, s%d" % (sCNT, sWAVE))
    a("s_branch L_reduce")
    for r in rare: a(r)

def mk_srd(a, b, lo, hi, off, size):
    a("s_add_u32 s%d, s%d, s%d" % (b, lo, off)); a("s_addc_u32 s%d, s%d, 0" % (b + 1, hi)); a("s_mov_b32 s%d, %d" % (b + 2, size)); a("s_mov_b32 s%d, 0x20000" % (b + 3))

def gen_k1():
    a = Asm(); a.stamp_wave = 0; a.stamp_tmp = 252
    common_prologue(a, "L_k1_end", 256)
    a("s_and_b32 s%d, s2, 7" % sXCD); a("s_lshr_b32 s%d, s2, 3" % sIDX)
    a("s_and_b32 s%d, s%d, 1" % (sB, sXCD)); a("s_lshl_b32 s%d, s%d, 3" % (sB, sB)); a("s_and_b32 s%d, s%d, 7" % (sT2, sIDX)); a("s_add_u32 s%d, s%d, s%d" % (sB, sB, sT2))
    a("s_lshr_b32 s%d, s%d, 1" % (sH, sXCD)); a("s_lshl_b32 s%d, s%d, 2" % (sH, sH)); a("s_lshr_b32 s%d, s%d, 3" % (sT2, sIDX)); a("s_add_u32 s%d, s%d, s%d" % (sH, sH, sT2))
    a("s_lshl_b32 s%d, s%d, 4" % (sT0, sB)); a("s_add_u32 s%d, s%d, s%d" % (sT0, sT0, sH))
    a("s_lshl_b32 s%d, s%d, 18" % (sT1, sT0))
    mk_srd(a, sK, 6, 7, sT1, 262144); mk_srd(a, sV, 8, 9, sT1, 262144)
    a("s_mul_i32 s%d, s%d, 110592" % (sT1, sB)); mk_srd(a, sX, 4, 5, sT1, 110592)
    a("s_lshl_b32 s%d, s%d, 9" % (sT1, sH)); mk_srd(a, sWQ, 10, 11, sT1, 0); a("s_sub_u32 s%d, 4718592, s%d" % (sWQ + 2, sT1))
    a("s_mul_i32 s%d, s%d, 294912" % (sT1, sH)); mk_srd(a, sWO, 12, 13, sT1, 294912)
    a("s_mul_i32 s%d, s%d, %d" % (sT1, sT0, PART)); a("s_add_u32 s%d, s%d, %d" % (sT1, sT1, WS_PART)); mk_srd(a, sP, 18, 19, sT1, PART)
    a("s_lshr_b32 s%d, s%d, 2" % (sT1, sH)); a("s_lshl_b32 s%d, s%d, 11" % (sT1, sT1)); mk_srd(a, sPF, 10, 11, sT1, 0); a("s_sub_u32 s%d, 4718592, s%d" % (sPF + 2, sT1))
    a("s_lshr_b32 s%d, s%d, 3" % (sT1, sB)); a("s_mul_i32 s%d, s%d, %d" % (sT1, sT1, 8 * 110592)); mk_srd(a, sPF2, 4, 5, sT1, 8 * 110592)
    a("s_mov_b32 s%d, s12" % sWOP); a("s_mov_b32 s%d, s13" % (sWOP + 1))
    a("s_mul_i32 s%d, s%d, 110592" % (sT1, sB)); mk_srd(a, sOUT, 14, 15, sT1, 110592)
    a("s_mul_i32 s%d, s%d, %d" % (sT1, sB, 16 * PART)); a("s_add_u32 s%d, s%d, %d" % (sT1, sT1, WS_PART)); mk_srd(a, sPB, 18, 19, sT1, 16 * PART)
    a("s_mul_i32 s%d, s%d, %d" % (sT1, sB, 9 * 64)); a("s_add_u32 s%d, s%d, %d" % (sT1, sT1, WS_FLAG)); mk_srd(a, sFL, 18, 19, sT1, 9 * 64)
    if STAMP:
        a("s_lshl_b32 s%d, s2, 9" % sT1); a("s_add_u32 s%d, s18, s%d" % (sSTAMP, sT1)); a("s_addc_u32 s%d, s19, 0" % (sSTAMP + 1))
    if "allc" in OPT: a("s_and_b32 s%d, s%d, 3" % (sWAVE, sWAVE))
    a("s_cmp_ge_u32 s%d, 4" % sWAVE); a("s_cbranch_scc1 L_loader")
    gen_compute(a)
    a("L_loader:")
    a.stamp_wave = 4; a.stamp_tmp = 40
    gen_loader(a)
    gen_reducer(a)
    a("L_k1_end:")
    a("s_endpgm")
    return a.text()

def build(fn, stamp=False, opt=()):
    global STAMP, OPT
    STAMP = stamp; OPT = set(opt)
    k1 = gen_k1()
    errs = hazard.check(k1, "k1")
    for e in errs[:10]: print(e)
    if errs: print("k1: %d hazard warnings" % len(errs))
    txt = HEADER + "; @launch grid=(256,1,1) block=(512,1,1) lds=%d\n" % LDS_BYTES
    txt += '.amdgcn_target "amdgcn-amd-amdhsa--gfx950"\n.text\n' + kernel_begin(KNAME) + k1 + '\n.section .rodata,"a"\n.p2align 6\n' + kernel_desc(KNAME, 256, 102, 256)
    open(fn, "w").write(txt)
    print(fn, len(txt), "bytes,", txt.count("\n"), "lines")

if __name__ == "__main__":
    def pieces(start, per):
        d = {}; st = start
        for kind in "KV":
            for lo in range(0, 8, per):
                d.setdefault(st, []).append((kind, 0, lo, lo + per)); st += 1
        return d
    def mk(start, per, i1at):
        d = pieces(start, per)
        d.setdefault(i1at, []).extend([("K", 1), ("V", 1)])
        d.setdefault(19, []).extend([("K", 2), ("V", 2)])
        return d
    PF0 = 0
    O = ["rotq", "nopfq"]
    KSCHED = mk(10, 2, 18)
    KSCHED = mk(12, 4, 18)
    build("v6.s", False, O); build("v6_st.s", True, ["trace"] + O)
    build("v6_e.s", True, ["trace", "nocpf"] + O); build("v6_f.s", True, ["trace", "cpf0"] + O)
    build("v6_dbg.s", True, ["trace", "dbg"] + O); build("v6_dbg2.s", True, ["trace", "dbg", "nocpf"] + O)
    KSCHED = mk(6, 2, 18)
    build("v6_a.s", True, ["trace"] + O)
    KSCHED = mk(2, 1, 18)
    build("v6_b.s", True, ["trace"] + O)
    KSCHED = mk(12, 4, 18)
    build("v6_c.s", True, ["trace"] + O)
    KSCHED = mk(8, 2, 17)
    build("v6_d.s", True, ["trace"] + O)
```

```python
import sys, struct
from asmlib import *
import hazard
from sched import Item, schedule, auto_lgkm, model_cycles

def f32(x): return "0x%08x" % struct.unpack("<I", struct.pack("<f", x))[0]
C_SCALE = 1.4426950408889634 / (128 ** 0.5)

PAIR = 35840
KGRP, VGRP = 1088, 1152
VOFF = 16 * KGRP
WBASE = 2 * PAIR
XBASE = WBASE + 4 * 16384
XSLOT = 12288
EXCH = 3 * PAIR
LDS_BYTES = 163840
PART = 108 * 1024
WS_PART = 1 << 20
WS_FLAG = 1 << 19
KNAME = 'standalone__gqa_block_cached__near_ridge_kernel'
OPT = set()
STAMP = False

sK, sV, sX, sWQ, sWO, sP = 20, 24, 28, 32, 36, 40
sWAVE, sB, sH, sLW = 44, 45, 46, 47
sT0, sT1, sT2, sT3 = 48, 49, 50, 51
sLWK, sLW3072, sLWV, sLW4096 = 52, 53, 59, 66
sTHR, sCNT, sDK, sNEG, sSLOT = 54, 55, 56, 57, 58
sSTAMP = 60
sTM = 62
sQI, sRH = 64, 65
sXCD, sIDX = 67, 68
sPF = 72
sPF2 = 76
sFL = 8
sPB = 4
sOUT = 12
def srd(b): return "s[%d:%d]" % (b, b + 3)
def vr(b, n=1): return "v%d" % b if n == 1 else "v[%d:%d]" % (b, b + n - 1)

def _stamp(a, idx, instr):
    if not STAMP: return
    a("%s s[%d:%d]" % (instr, sTM, sTM + 1)); a("s_waitcnt lgkmcnt(0)")
    if a.stamp_wave == 0: a("s_mov_b32 s%d, s%d" % (80 + idx, sTM))
    else: a("v_writelane_b32 v40, s%d, %d" % (sTM, idx))
def stamp(a, idx, cyc=None):
    _stamp(a, idx, "s_memrealtime")
    if cyc is not None: _stamp(a, cyc, "s_memtime")
DBG_WG = 37
def stamp_flush(a):
    if not STAMP: return
    if "dbg" in OPT:
        sk = a.label("Ldbgs")
        a("s_cmp_lg_u32 s2, %d" % DBG_WG); a("s_cbranch_scc1 %s" % sk)
        a("s_cmp_lg_u32 s%d, %d" % (sWAVE, a.stamp_wave)); a("s_cbranch_scc1 %s" % sk)
        a("v_mov_b32 v1, 0")
        if a.stamp_wave == 0:
            for dw, (j, j0) in zip((1, 2, 3, 5, 6, 7, 9, 10, 11), ((1, 0), (2, 0), (3, 0), (4, 0), (11, 10), (12, 11), (13, 12), (14, 13), (7, 6))):
                a("s_sub_u32 s%d, s%d, s%d" % (sT0, 80 + j, 80 + j0)); a("v_mov_b32 v2, s%d" % sT0); a("global_store_dword v1, v2, s[16:17] offset:%d" % (4 * dw))
        else:
            a("v_readlane_b32 s%d, v40, 15" % sT0); a("v_readlane_b32 s%d, v40, 16" % sT1); a("s_nop 3"); a("s_sub_u32 s%d, s%d, s%d" % (sT0, sT0, sT1)); a("v_mov_b32 v2, s%d" % sT0)
            a("global_store_dword v1, v2, s[16:17] offset:52")
            a("v_readlane_b32 s%d, v40, 36" % sT0); a("s_nop 3"); a("s_sub_u32 s%d, s%d, s%d" % (sT0, sT0, sT1)); a("v_mov_b32 v2, s%d" % sT0)
            a("global_store_dword v1, v2, s[16:17] offset:56")
        a("%s:" % sk)
        return
    sk = a.label("Lst")
    a("s_cmp_lg_u32 s%d, %d" % (sWAVE, a.stamp_wave)); a("s_cbranch_scc1 %s" % sk)
    if a.stamp_wave == 0:
        a("v_mov_b32 v1, 0")
        for i in range(16):
            if i in (8, 9, 15): continue
            a("v_mov_b32 v2, s%d" % (80 + i)); a("global_store_dword v1, v2, s[%d:%d] offset:%d" % (sSTAMP, sSTAMP + 1, 4 * i))
    else:
        a("v_and_b32 v2, 63, v0"); a("v_lshlrev_b32 v3, 2, v2")
        a("v_cmp_lt_u32 vcc, 14, v2"); a("v_cmp_eq_u32 s[96:97], 8, v2"); a("s_or_b64 vcc, vcc, s[96:97]"); a("v_cmp_eq_u32 s[96:97], 9, v2"); a("s_or_b64 vcc, vcc, s[96:97]")
        a("s_and_saveexec_b64 s[96:97], vcc")
        a("global_store_dword v3, v40, s[%d:%d]" % (sSTAMP, sSTAMP + 1))
        a("s_mov_b64 exec, s[96:97]")
    a("%s:" % sk)

def common_prologue(a, endlab, nwg):
    a("s_cmp_ge_u32 s2, %d" % nwg); a("s_cbranch_scc1 %s" % endlab)
    a("s_load_dwordx8 s[4:11], s[0:1], 0")
    a("s_load_dwordx4 s[12:15], s[0:1], 32")
    a("s_load_dwordx4 s[16:19], s[0:1], 48")
    a("v_lshrrev_b32 v1, 6, v0")
    a("s_nop 0")
    a("v_readfirstlane_b32 s%d, v1" % sWAVE)
    a("s_waitcnt lgkmcnt(0)")

class VQ:
    def __init__(s): s.q = []
    def issue(s, tag, n=1): s.q += [tag] * n
    def wait(s, tags):
        idx = [i for i, t in enumerate(s.q) if t in tags]
        if not idx: return None
        last = max(idx); n = len(s.q) - 1 - last
        s.q = s.q[last + 1:]
        return min(n, 63)

KV_FLAGS = " nt"
W_FLAGS = ""
O_FLAGS = ""
P_FLAGS = " sc0 sc1"


def gen_loader(a):
    a("s_sub_u32 s%d, s%d, 4" % (sLW, sWAVE))
    a("v_and_b32 v1, 63, v0")
    if STAMP: a("v_mov_b32 v40, 0")
    a("s_cmp_ge_u32 s%d, 2" % sLW); a("s_cbranch_scc1 L_kvloader")
    gen_wloader(a)
    a("L_kvloader:")
    gen_kvloader(a)

def mk_bar(a, q, trace_base=None):
    def bar(tags):
        n = q.wait(tags) if tags else None
        if n is not None and "nowait" not in OPT: a("s_waitcnt vmcnt(%d)" % n)
        if "trace" in OPT and bar.n < 48 and trace_base is not None: stamp(a, 16 + bar.n)
        a("s_barrier")
        bar.n += 1
    bar.n = 0
    return bar

def dma(a, vreg, srdb, soff, imm, flags):
    if "noload" in OPT: return
    a("buffer_load_dwordx4 v%d, %s, s%d offen offset:%d%s lds" % (vreg, srd(srdb), soff, imm, flags))

def emit_pf(a, chunks, lane=1):
    if not chunks: return
    sk = a.label("Lpfq"); skx = a.label("Lpfx")
    a("s_cmp_ge_u32 s%d, 28" % sIDX); a("s_cbranch_scc1 %s" % sk)
    a("s_cmp_ge_u32 s%d, 16" % sIDX); a("s_cbranch_scc1 %s" % skx)
    a("v_lshrrev_b32 v30, 4, v%d" % lane); a("v_and_b32 v31, 15, v%d" % lane)
    a("s_lshl_b32 s%d, s%d, 2" % (sT0, sIDX)); a("v_add_u32 v30, s%d, v30" % sT0); a("v_lshlrev_b32 v30, 13, v30"); a("v_lshlrev_b32 v31, 7, v31"); a("v_add_u32 v30, v30, v31")
    for cp in chunks:
        if isinstance(cp, int): a("s_mov_b32 s%d, %d" % (sT0, cp * 64 * 8192))
        else: a("s_lshl_b32 s%d, s%d, 19" % (sT0, cp[0])); a("s_add_u32 s%d, s%d, %d" % (sT0, sT0, cp[1] * 64 * 8192))
        a("buffer_load_dword v32, v30, %s, s%d offen" % (srd(sPF), sT0))
    a("s_branch %s" % sk)
    a("%s:" % skx)
    a("s_sub_u32 s%d, s%d, 16" % (sT0, sIDX)); a("s_lshl_b32 s%d, s%d, 6" % (sT0, sT0)); a("v_add_u32 v30, s%d, v%d" % (sT0, lane)); a("v_mul_u32_u24 v30, 1152, v30")
    for cp in chunks:
        if isinstance(cp, int): a("s_mov_b32 s%d, %d" % (sT0, cp * 128))
        else: a("s_lshl_b32 s%d, s%d, 7" % (sT0, cp[0])); a("s_add_u32 s%d, s%d, %d" % (sT0, sT0, cp[1] * 128))
        a("buffer_load_dword v32, v30, %s, s%d offen" % (srd(sPF2), sT0))
    a("%s:" % sk)

def code_prefetch(a, lane=1):
    if "nocpf" in OPT: return
    lab = a.label("Lcpf")
    a("s_getpc_b64 s[94:95]")
    a("%s:" % lab)
    a("s_sub_u32 s94, s94, (%s - %s)" % (lab, KNAME)); a("s_subb_u32 s95, s95, 0")
    a("s_lshl_b32 s%d, s%d, 11" % (sT0, sIDX))
    a("v_and_b32 v34, 15, v%d" % lane); a("v_lshlrev_b32 v34, 7, v34"); a("v_add_u32 v34, s%d, v34" % sT0)
    a("v_min_u32 v34, (L_k1_end - %s), v34" % KNAME)
    a("global_load_dword v35, v34, s[94:95]")

def gen_wloader(a):
    vW, vX, vO = 10, 14, 16
    a.stamp_wave = 4
    sA, sBb = sLWK, sLWV
    a("v_lshrrev_b32 v6, 5, v1"); a("v_and_b32 v7, 31, v1")
    a("s_lshl_b32 s%d, s%d, 17" % (sT1, sLW))
    a("v_lshlrev_b32 v8, 13, v6"); a("v_add_u32 v8, s%d, v8" % sT1)
    for var in range(4):
        a("v_add_u32 v5, %d, v6" % (2 * (var & 1) + 4 * (var >> 1))); a("v_lshlrev_b32 v5, 1, v5"); a("v_xor_b32 v5, v5, v7")
        a("v_lshlrev_b32 v5, 4, v5"); a("v_add_u32 v%d, v8, v5" % (vW + var))
    a("v_lshrrev_b32 v6, 3, v1"); a("v_and_b32 v7, 7, v1")
    a("s_mul_i32 s%d, s%d, 48" % (sT1, sLW)); a("v_add_u32 v8, s%d, v6" % sT1); a("v_mul_u32_u24 v8, 1152, v8")
    a("v_lshrrev_b32 v9, 1, v6")
    for i in range(2):
        a("v_add_u32 v5, %d, v9" % (4 * i)); a("v_xor_b32 v5, v5, v7"); a("v_lshlrev_b32 v5, 4, v5"); a("v_add_u32 v%d, v8, v5" % (vX + i))
    a("v_mul_u32_u24 v8, 1152, v6")
    a("v_and_b32 v5, 3, v9"); a("v_lshlrev_b32 v5, 1, v5"); a("v_xor_b32 v5, v5, v7"); a("v_lshlrev_b32 v5, 4, v5"); a("v_add_u32 v%d, v8, v5" % vO)
    a("s_lshl_b32 s%d, s%d, 13" % (sA, sLW))
    a("s_mul_i32 s%d, s%d, 6144" % (sBb, sLW))
    a("s_lshl_b32 s%d, s%d, 14" % (sLW4096, sLW))
    a("s_mul_i32 s%d, s%d, %d" % (sLW3072, sLW, 128 * 1152))
    q = VQ(); bar = mk_bar(a, q, 0)
    sWK, sXK, sOK = 98, 99, 100
    if "rotq" not in OPT:
        a("s_mov_b32 s%d, 0" % sWK); a("s_mov_b32 s%d, 0" % sXK)
        a("s_and_b32 s%d, s%d, 7" % (sT0, sB)); a("s_lshl_b32 s%d, s%d, 7" % (sOK, sT0))
    else:
        a("s_and_b32 s%d, s%d, 7" % (sT0, sIDX)); a("s_lshr_b32 s%d, s%d, 3" % (sT1, sIDX)); a("s_lshl_b32 s%d, s%d, 1" % (sT1, sT1)); a("s_add_u32 s%d, s%d, s%d" % (sT0, sT0, sT1))
        a("s_cmp_ge_u32 s%d, 9" % sT0); a("s_cselect_b32 s%d, 9, 0" % sT1); a("s_sub_u32 s%d, s%d, s%d" % (sT0, sT0, sT1))
        a("s_lshl_b32 s%d, s%d, 19" % (sWK, sT0)); a("s_lshl_b32 s%d, s%d, 7" % (sXK, sT0))
        a("s_and_b32 s%d, s%d, 7" % (sT0, sB)); a("s_lshl_b32 s%d, s%d, 7" % (sOK, sT0))
    def adv(reg, step, wrap):
        a("s_add_u32 s%d, s%d, %d" % (reg, reg, step)); a("s_cmp_eq_u32 s%d, %d" % (reg, wrap)); a("s_cselect_b32 s%d, 0, s%d" % (reg, reg))
    def iss_W(s):
        for ii in range(8):
            if ii % 4 == 0: a("s_add_u32 m0, s%d, %d" % (sA, WBASE + ((s + 2) % 4) * 16384 + (ii >> 2) * 4096))
            a("s_add_u32 s%d, s%d, %d" % (sT0, sWK, 16384 * ii - (ii & 3) * 1024))
            dma(a, vW + (ii & 1) + 2 * (ii >> 2), sWQ, sT0, (ii & 3) * 1024, W_FLAGS)
        adv(sWK, 262144, 18 * 262144)
        q.issue("W%d" % s, 8)
    def iss_X(cp):
        for ii in range(6):
            if ii % 4 == 0: a("s_add_u32 m0, s%d, %d" % (sBb, XBASE + (cp % 2) * XSLOT + (ii >> 2) * 4096))
            a("s_add_u32 s%d, s%d, %d" % (sT0, sXK, 9216 * ii - (ii & 3) * 1024))
            dma(a, vX + (ii & 1), sX, sT0, (ii & 3) * 1024, W_FLAGS)
        adv(sXK, 128, 9 * 128)
        q.issue("X%d" % cp, 6)
    def iss_O(c):
        T = 16 + c
        a("s_add_u32 s%d, s%d, s%d" % (sT1, sLW3072, sOK))
        for ii in range(16):
            if ii % 4 == 0: a("s_add_u32 m0, s%d, %d" % (sLW4096, (T % 4) * PAIR + (ii >> 2) * 4096))
            a("s_add_u32 s%d, s%d, %d" % (sT0, sT1, 9216 * ii - (ii & 3) * 1024))
            dma(a, vO, sWO, sT0, (ii & 3) * 1024, O_FLAGS)
        adv(sOK, 128, 9 * 128)
        q.issue("I%d" % T, 16)
    def prefetch_o():
        a("s_lshr_b32 s%d, s%d, 2" % (sT0, sH)); a("s_mul_i32 s%d, s%d, %d" % (sT0, sT0, 4 * 294912))
        a("s_add_u32 s%d, s%d, s%d" % (sPF2, sWOP, sT0)); a("s_addc_u32 s%d, s%d, 0" % (sPF2 + 1, sWOP + 1)); a("s_mov_b32 s%d, %d" % (sPF2 + 2, 4 * 294912)); a("s_mov_b32 s%d, 0x20000" % (sPF2 + 3))
        a("s_lshl_b32 s%d, s%d, 1" % (sT0, sIDX)); a("s_add_u32 s%d, s%d, s%d" % (sT0, sT0, sLW)); a("s_mul_i32 s%d, s%d, 144" % (sT0, sT0))
        a("v_add_u32 v5, s%d, v1" % sT0); a("v_lshlrev_b32 v6, 7, v5")
        a("buffer_load_dword v34, v6, %s, 0 offen" % srd(sPF2))
        a("v_add_u32 v6, 8192, v6"); a("buffer_load_dword v35, v6, %s, 0 offen" % srd(sPF2))
        a("v_add_u32 v6, 8192, v6"); a("v_mov_b32 v7, 0x40000000"); a("v_cmp_gt_u32 vcc, 16, v1"); a("s_nop 1"); a("v_cndmask_b32 v6, v7, v6, vcc")
        a("buffer_load_dword v36, v6, %s, 0 offen" % srd(sPF2))
        q.issue("PF", 3)
    def cpf():
        sk = a.label("Lcp"); a("s_cmp_lg_u32 s%d, 1" % sLW); a("s_cbranch_scc1 %s" % sk); code_prefetch(a); a("%s:" % sk)
    if "cpf0" in OPT: cpf()
    if PF0:
        a("s_mul_i32 s%d, s%d, %d" % (sT2, sLW, PF0))
        emit_pf(a, [(sT2, k) for k in range(PF0)])
    iss_W(0); iss_X(0); iss_W(1); iss_W(2); iss_X(1); iss_W(3)
    for s in range(18):
        bar(["W%d" % s, "X%d" % (s // 2)])
        if s >= 1 and s + 3 <= 17: iss_W(s + 3)
        if s >= 2 and s % 2 == 0 and s // 2 + 1 <= 8: iss_X(s // 2 + 1)
    bar(None)
    bar(None)
    stamp(a, 8)
    for n in range(1, 17):
        bar(["I%d" % n] if n >= 16 else None)
        if n == PF_O_AT and "pfo" in OPT: prefetch_o()
        if n == CPF_AT: cpf()
        if n + 2 >= 16: iss_O(n + 2 - 16)
    a("s_barrier"); a("s_barrier")
    for n in range(17, 27):
        bar((["I%d" % n] + (["I24"] if n == 23 else [])) if n <= 23 else None)
        if n + 2 <= 24: iss_O(n + 2 - 16)
    stamp(a, 9)
    a("s_add_u32 s%d, s%d, 4" % (sCNT, sLW))
    a("s_branch L_reduce")

def gen_kvloader(a):
    vK, vV = 10, 11
    a.stamp_wave = -1
    a("s_sub_u32 s%d, s%d, 2" % (sLW, sLW))
    a("v_lshrrev_b32 v2, 4, v1"); a("v_and_b32 v3, 15, v1")
    a("s_lshl_b32 s%d, s%d, 13" % (sT0, sLW))
    a("v_lshlrev_b32 v4, 8, v2"); a("v_add_u32 v4, s%d, v4" % sT0)
    a("v_xor_b32 v5, v2, v3"); a("v_lshlrev_b32 v5, 4, v5"); a("v_add_u32 v%d, v4, v5" % vK)
    a("v_lshlrev_b32 v5, 1, v2"); a("v_xor_b32 v5, v5, v3"); a("v_lshlrev_b32 v5, 4, v5"); a("v_add_u32 v%d, v4, v5" % vV)
    a("s_mul_i32 s%d, s%d, %d" % (sLWK, sLW, 8 * KGRP)); a("s_mul_i32 s%d, s%d, %d" % (sLWV, sLW, 8 * VGRP))
    sROT = 92
    if "krot" in OPT:
        a("s_mul_i32 s%d, s%d, %d" % (sROT, sXCD, KROT[0])); a("s_mul_i32 s%d, s%d, %d" % (sT0, sIDX, KROT[1])); a("s_add_u32 s%d, s%d, s%d" % (sROT, sROT, sT0))
    q = VQ(); bar = mk_bar(a, q, None)
    def iss(T, isK, lo=0, hi=8):
        for ii in range(lo, hi):
            if "krot" in OPT:
                if ii == lo: a("s_add_u32 s%d, s%d, %d" % (sT2, sROT, T)); a("s_and_b32 s%d, s%d, 15" % (sT2, sT2)); a("s_lshl_b32 s%d, s%d, 14" % (sT2, sT2))
                if ii % 4 == 0 or ii == lo: a("s_add_u32 s%d, s%d, %d" % (sT0, sT2, (ii >> 2) * 4096))
            elif ii % 4 == 0 or ii == lo: a("s_mov_b32 s%d, %d" % (sT0, T * 16384 + (ii >> 2) * 4096))
            grp = KGRP if isK else VGRP
            a("s_add_u32 m0, s%d, %d" % (sLWK if isK else sLWV, (T % 4) * PAIR + (0 if isK else VOFF) + ii * grp - (ii & 3) * 1024))
            if ii % 4: a("s_nop 0")
            else: a("s_nop 0")
            dma(a, vK if isK else vV, sK if isK else sV, sT0, (ii & 3) * 1024, KV_FLAGS)
        q.issue("I%d" % T, hi - lo)
    def prefetch_q():
        sk = a.label("Lpfq"); skx = a.label("Lpfx")
        a("s_cmp_lg_u32 s%d, %d" % (sLW, PF_WAVE)); a("s_cbranch_scc1 %s" % sk)
        a("s_cmp_ge_u32 s%d, 28" % sIDX); a("s_cbranch_scc1 %s" % sk)
        a("s_cmp_ge_u32 s%d, 16" % sIDX); a("s_cbranch_scc1 %s" % skx)
        a("s_lshl_b32 s%d, s%d, 2" % (sT0, sIDX)); a("v_add_u32 v5, s%d, v2" % sT0); a("v_lshlrev_b32 v5, 13, v5"); a("v_lshlrev_b32 v6, 7, v3"); a("v_add_u32 v5, v5, v6")
        for cp in range(PF_FIRST, 9):
            a("s_mov_b32 s%d, %d" % (sT0, cp * 64 * 8192)); a("buffer_load_dword v%d, v5, %s, s%d offen" % (20 + cp, srd(sPF), sT0))
        a("s_branch %s" % sk)
        a("%s:" % skx)
        a("s_sub_u32 s%d, s%d, 16" % (sT0, sIDX)); a("s_lshl_b32 s%d, s%d, 6" % (sT0, sT0)); a("v_add_u32 v5, s%d, v1" % sT0); a("v_mul_u32_u24 v5, 1152, v5")
        for cp in range(PF_FIRST, 9):
            a("s_mov_b32 s%d, %d" % (sT0, cp * 128)); a("buffer_load_dword v%d, v5, %s, s%d offen" % (20 + cp, srd(sPF2), sT0))
        a("%s:" % sk)
    def clear_flags():
        sk = a.label("Lclr")
        a("s_cmp_lg_u32 s%d, 1" % sLW); a("s_cbranch_scc1 %s" % sk)
        a("v_mov_b32 v20, 0")
        a("s_lshl_b32 s%d, s%d, 2" % (sT0, sH))
        a("v_lshlrev_b32 v5, 6, v1"); a("v_add_u32 v5, s%d, v5" % sT0); a("v_mov_b32 v7, 0x40000000"); a("v_cmp_gt_u32 vcc, 9, v1"); a("s_nop 1"); a("v_cndmask_b32 v5, v7, v5, vcc")
        a("buffer_store_dword v20, v5, %s, 0 offen sc0 sc1" % srd(sFL))
        a("s_waitcnt vmcnt(0)")
        a("s_lshl_b32 s%d, s%d, 4" % (sT0, sB)); a("v_mov_b32 v5, s%d" % sT0); a("v_mov_b32 v6, 1")
        a("s_mov_b64 s[96:97], exec"); a("s_mov_b64 exec, 1")
        a("global_atomic_add v5, v6, s[16:17] sc1")
        a("s_mov_b64 exec, s[96:97]")
        a("%s:" % sk)
    if "notlb" not in OPT:
        sk = a.label("Ltlb")
        a("s_cmp_lg_u32 s%d, 0" % sLW); a("s_cbranch_scc1 %s" % sk)
        a("v_mov_b32 v5, 0")
        for i, sr in enumerate((sK, sV, sWO, sP, sOUT)): a("buffer_load_dword v%d, v5, %s, 0 offen nt" % (33 + i, srd(sr)))
        a("v_mul_u32_u24 v5, %d, v1" % (PART // 8)); a("v_lshlrev_b32 v5, 3, v5"); a("v_mov_b32 v7, 0x40000000"); a("v_cmp_gt_u32 vcc, 16, v1"); a("s_nop 1"); a("v_cndmask_b32 v5, v7, v5, vcc")
        a("buffer_load_dword v38, v5, %s, 0 offen nt" % srd(sPB))
        a("%s:" % sk)
    clear_flags()
    if "nopfq" not in OPT and PF_AT < 0: prefetch_q()
    for s in range(18):
        bar(None)
        if "nopfq" not in OPT and PF_AT == s: prefetch_q()
        for e in KSCHED.get(s, []): iss(e[1], e[0] == "K", *e[2:])
    bar(None)
    for e in KSCHED.get(18, []): iss(e[1], e[0] == "K", *e[2:])
    bar(["I0"])
    for e in KSCHED.get(19, []): iss(e[1], e[0] == "K", *e[2:])
    for n in range(1, 17):
        bar(["I%d" % n] if n < 16 else None)
        if n >= FIRST_RULE and n + 2 < 16: iss(n + 2, True); iss(n + 2, False)
    if "nored" not in OPT:
        sk = a.label("Ldbg"); lp = a.label("Ldbgw")
        a("s_cmp_lg_u32 s%d, 0" % sLW); a("s_cbranch_scc1 %s" % sk)
        a("s_lshl_b32 s%d, s%d, 4" % (sT0, sB)); a("v_mov_b32 v10, s%d" % sT0); a("s_mov_b32 s%d, 0" % sT3)
        a("%s:" % lp)
        a("global_load_dword v12, v10, s[16:17] sc1"); a("s_waitcnt vmcnt(0)"); a("v_readfirstlane_b32 s%d, v12" % sT1)
        a("s_add_u32 s%d, s%d, 1" % (sT3, sT3)); a("s_cmp_gt_u32 s%d, %d" % (sT3, SPIN_MAX)); a("s_cbranch_scc1 %s" % sk)
        a("s_cmp_lt_u32 s%d, 16" % sT1); a("s_cbranch_scc1 %s" % lp)
        a("%s:" % sk)
    a("s_barrier"); a("s_barrier")
    vPR, vPO, vF, vOne = 20, 24, 25, 26
    a("v_lshlrev_b32 v%d, 4, v1" % vPO)
    a("v_add_u32 v%d, %d, v%d" % (vPR, PB0, vPO)); a("v_add_u32 v%d, %d, v%d" % (vPR + 1, 32768, vPO)); a("v_add_u32 v%d, %d, v%d" % (vPR + 2, 2 * PAIR + 32768, vPO))
    a("v_mov_b32 v%d, 1" % vOne)
    def set_flags(first, n):
        a("v_lshlrev_b32 v%d, 7, v1" % vF); a("s_lshl_b32 s%d, s%d, 2" % (sT0, sH)); a("s_add_u32 s%d, s%d, %d" % (sT0, sT0, first * 64)); a("v_add_u32 v%d, s%d, v%d" % (vF, sT0, vF))
        a("v_mov_b32 v7, 0x40000000"); a("v_cmp_gt_u32 vcc, %d, v1" % n); a("s_nop 1"); a("v_cndmask_b32 v%d, v7, v%d, vcc" % (vF, vF))
        a("buffer_store_dword v%d, v%d, %s, 0 offen sc0 sc1" % (vOne, vF, srd(sFL)))
    for n in range(17, 27):
        a("s_barrier")
        c = n - 18
        if c < 0: continue
        sk = a.label("Lsto")
        a("s_cmp_lg_u32 s%d, %d" % (sLW, c & 1)); a("s_cbranch_scc1 %s" % sk)
        for w in range(4):
            for j in range(3):
                if c & 1 == 0: ad, off = vPR, (3 * w + j) * 1024
                else: ad, off = vPR + 1 + (w >> 1), (w & 1) * PAIR + j * 1024
                a("ds_read_b128 %s, v%d offset:%d" % (vr(64 + 4 * (3 * w + j), 4), ad, off))
        if "lateflags" in OPT and c >= 7 and "nored" not in OPT:
            a("s_waitcnt vmcnt(0)")
            set_flags(c & 1, 4 if c == 8 else 3)
        for i in range(12):
            a("s_waitcnt lgkmcnt(%d)" % (11 - i))
            a("s_mov_b32 s%d, %d" % (sT0, c * 12288 + i * 1024))
            if "nostore" not in OPT: a("buffer_store_dwordx4 %s, v%d, %s, s%d offen%s" % (vr(64 + 4 * i, 4), vPO, srd(sP), sT0, P_FLAGS))
        if "lateflags" not in OPT and c >= 2 and "nored" not in OPT:
            a("s_waitcnt vmcnt(12)")
            set_flags(c - 2, 1)
        if c >= 7 and "nored" not in OPT:
            a("s_waitcnt vmcnt(%d)" % (0 if "lateflags" in OPT else 1)) if False else a("s_waitcnt vmcnt(0)")
            set_flags(c, 1)
        a("%s:" % sk)
    a("s_cmp_eq_u32 s%d, 0" % sLW); a("s_cselect_b32 s%d, 7, 6" % sCNT)
    a("s_branch L_reduce")

KSCHED = {2: [("K", 0)], 5: [("V", 0)], 8: [("K", 1)], 11: [("V", 1)], 16: [("K", 2)], 17: [("V", 2)]}

def gen_reducer(a):
    a("L_reduce:")
    if "nored" in OPT:
        a.stamp_wave = 4; stamp_flush(a); a("s_endpgm"); return
    rho = sCNT
    giveup = a.label("Lgiveup"); poll = a.label("Lpoll")
    a("s_mul_i32 s%d, s%d, 54" % (sT0, rho)); a("s_mul_hi_u32 s%d, s%d, %d" % (sT2, sT0, (2**32 + 47) // 48))
    a("v_lshlrev_b32 v9, 2, v1"); a("v_mov_b32 v7, 0x40000000"); a("v_cmp_gt_u32 vcc, 32, v1"); a("s_nop 1"); a("v_cndmask_b32 v9, v7, v9, vcc")
    a("s_lshl_b32 s%d, s%d, 6" % (sT2, sT2))
    a("buffer_load_dword v11, v9, %s, s%d offen sc1" % (srd(sFL), sT2))
    a("v_add_u32 v2, s%d, v1" % sT0)
    a("v_mul_u32_u24 v8, 1366, v2"); a("v_lshrrev_b32 v8, 16, v8")
    a("v_mul_u32_u24 v5, 48, v8"); a("v_sub_u32 v2, v2, v5")
    a("s_mul_i32 s%d, s%d, 48" % (sT1, sH)); a("v_add_u32 v2, s%d, v2" % sT1)
    a("v_mul_u32_u24 v3, 12288, v8"); a("v_lshlrev_b32 v5, 4, v2"); a("v_add_u32 v3, v3, v5")
    a("v_cmp_gt_u32 vcc, 54, v1"); a("s_nop 1"); a("v_cndmask_b32 v3, v7, v3, vcc")
    a("v_lshrrev_b32 v4, 6, v2"); a("v_and_b32 v5, 63, v2")
    a("v_cmp_le_u32 s[96:97], 6, v4"); a("s_nop 1"); a("v_cndmask_b32 v6, 0, 1, s[96:97]")
    a("v_mul_u32_u24 v10, 6, v6"); a("v_sub_u32 v4, v4, v10")
    a("v_lshlrev_b32 v4, 4, v4"); a("v_and_b32 v10, 15, v5"); a("v_add_u32 v4, v4, v10"); a("v_mul_u32_u24 v4, 1152, v4")
    a("v_lshlrev_b32 v6, 6, v6"); a("v_lshrrev_b32 v5, 4, v5"); a("v_lshlrev_b32 v5, 3, v5"); a("v_add_u32 v4, v4, v6"); a("v_add_u32 v4, v4, v5")
    a("s_and_b32 s%d, s%d, 7" % (sT1, sB)); a("v_add_u32 v8, s%d, v8" % sT1)
    a("v_cmp_le_u32 s[96:97], 9, v8"); a("s_nop 1"); a("v_cndmask_b32 v6, 0, 9, s[96:97]"); a("v_sub_u32 v8, v8, v6"); a("v_lshlrev_b32 v8, 7, v8"); a("v_add_u32 v4, v4, v8")
    a("v_cndmask_b32 v4, v7, v4, vcc")
    a("s_mov_b32 s%d, 0" % sT3)
    a("s_branch %s_chk" % poll)
    a("%s:" % poll)
    a("buffer_load_dword v11, v9, %s, s%d offen sc1" % (srd(sFL), sT2))
    a("%s_chk:" % poll)
    a("s_waitcnt vmcnt(0)")
    a("v_cmp_eq_u32 vcc, 1, v11")
    a("s_add_u32 s%d, s%d, 1" % (sT3, sT3)); a("s_cmp_gt_u32 s%d, %d" % (sT3, SPIN_MAX)); a("s_cbranch_scc1 %s" % giveup)
    a("s_cmp_eq_u32 vcc_lo, -1"); a("s_cbranch_scc0 %s" % poll)
    a("s_mov_b32 s%d, 0" % sT0)
    for h in range(16):
        a("buffer_load_dwordx4 v[%d:%d], v3, %s, s%d offen%s" % (64 + 4 * h, 67 + 4 * h, srd(sPB), sT0, R_FLAGS))
        if h < 15: a("s_add_u32 s%d, s%d, %d" % (sT0, sT0, PART))
    for h in range(16):
        a("s_waitcnt vmcnt(%d)" % (15 - h))
        for r in range(4):
            src = 64 + 4 * h + r
            if h == 0:
                a("v_lshlrev_b32 v%d, 16, v%d" % (48 + 2 * r, src)); a("v_and_b32 v%d, 0xffff0000, v%d" % (49 + 2 * r, src))
            else:
                a("v_lshlrev_b32 v12, 16, v%d" % src); a("v_and_b32 v13, 0xffff0000, v%d" % src)
                a("v_add_f32 v%d, v%d, v12" % (48 + 2 * r, 48 + 2 * r)); a("v_add_f32 v%d, v%d, v13" % (49 + 2 * r, 49 + 2 * r))
    for r in range(4): a("v_cvt_pk_bf16_f32 v%d, v%d, v%d" % (56 + r, 48 + 2 * r, 49 + 2 * r))
    a("buffer_store_dwordx2 v[56:57], v4, %s, 0 offen%s" % (srd(sOUT), OUT_FLAGS))
    a("buffer_store_dwordx2 v[58:59], v4, %s, 0 offen offset:32%s" % (srd(sOUT), OUT_FLAGS))
    a("%s:" % giveup)
    if STAMP:
        sk = a.label("Lnst"); a("s_cmp_lg_u32 s%d, 4" % sWAVE); a("s_cbranch_scc1 %s" % sk)
        a.stamp_wave = 4; stamp(a, 15); stamp_flush(a)
        a("%s:" % sk)
    a("s_endpgm")
R_FLAGS = " sc1"
OUT_FLAGS = ""
sTASK2 = 101
PB0 = 143360
SPIN_MAX = 200000
sWOP = 70

PF_O_AT = 10
PF_WAVE = 1
PF_FIRST = 4
PF_AT = 0
PF0 = 2
KROT = (2, 1)
CPF_AT = 11
FIRST_RULE = 1
CMP_SLACK = 6
FLAG_DELAY = 4

def O_(j, db): return (j * 8 + db) * 4
def Q_(j, s): return 96 + (j * 4 + s) * 4
def KF(f): return 144 + 4 * f
def VF(db): return 176 + 4 * db
def S_(par): return 208 + 8 * par
def P_(par): return 224 + 4 * par
def N_(j): return 232 + 4 * j
def L_(j): return 244 + j
vKA, vVA, vT, vT2, vS, vLANE = 247, 248, 252, 253, 254, 255
MF = "v_mfma_f32_16x16x32_bf16"

def interleave(mfmas, fillers):
    out = list(fillers.get(-1, []))
    for i, m in enumerate(mfmas):
        out.append(m); out += fillers.get(i, [])
    return out
def spread(items, slots):
    d = {}; n = len(items)
    for i, it in enumerate(items): d.setdefault(slots[i * len(slots) // n], []).append(it)
    return d
def merge(*ds):
    o = {}
    for d in ds:
        for k, v in d.items(): o.setdefault(k, []).extend(v)
    return o

KORD = [(kb, s) for s in range(4) for kb in range(2)]
def k_read(kb, s, half, ad=None):
    return "ds_read_b128 %s, v%d offset:%d" % (vr(KF(kb * 4 + s), 4), vKA if ad is None else ad, half * 8 * KGRP + kb * 4 * KGRP + s * 64)
def v_reads(db, half):
    A, cc = divmod(db, 4)
    o = half * 8 * VGRP + A * 128
    return ["ds_read_b64_tr_b16 %s, v%d offset:%d" % (vr(VF(db), 2), vVA + cc, o), "ds_read_b64_tr_b16 %s, v%d offset:%d" % (vr(VF(db) + 2, 2), vVA + cc, o + 4 * VGRP)]

TAB = None
def hoist_waits(lines):
    out = []
    for l in lines:
        if l.startswith("s_waitcnt lgkmcnt") and out:
            n = int(l.split("(")[1].split(")")[0])
            k = len(out) - 1; jumped = 0; ok = False
            while k >= 0:
                x = out[k]
                if x.startswith("v_mfma"): ok = True; break
                if x.endswith(":") or x.startswith(("s_cbranch", "s_barrier", "s_waitcnt")): break
                if x.startswith("ds_"): jumped += 1
                k -= 1
            if ok and n - jumped >= 0:
                out.insert(k + 1, "s_waitcnt lgkmcnt(%d)" % (n - jumped)); continue
        out.append(l)
    return out

def gen_compute(a):
    rare = []
    a("v_and_b32 v%d, 63, v0" % vLANE)
    a("s_lshr_b32 s%d, s%d, 1" % (sQI, sWAVE)); a("s_and_b32 s%d, s%d, 1" % (sRH, sWAVE))
    g, rp, c, q = 240, 241, 242, 243
    a("v_lshrrev_b32 v%d, 4, v%d" % (g, vLANE)); a("v_bfe_u32 v%d, v%d, 2, 2" % (rp, vLANE)); a("v_and_b32 v%d, 3, v%d" % (c, vLANE)); a("v_and_b32 v%d, 15, v%d" % (q, vLANE))
    vWA, vXA = 232, 244
    t, t2 = vT, vT2
    a("v_lshlrev_b32 v%d, 3, v%d" % (t, g)); a("v_add_u32 v%d, v%d, v%d" % (t, t, rp)); a("v_lshlrev_b32 v%d, 9, v%d" % (t, t))
    a("v_and_b32 v%d, 1, v%d" % (t2, g)); a("v_lshlrev_b32 v%d, 2, v%d" % (t2, t2)); a("v_add_u32 v%d, v%d, v%d" % (t2, t2, rp)); a("v_lshlrev_b32 v%d, 5, v%d" % (t2, t2))
    a("v_add_u32 v%d, v%d, v%d" % (t, t, t2)); a("v_lshlrev_b32 v%d, 3, v%d" % (t2, c)); a("v_add_u32 v%d, v%d, v%d" % (t, t, t2))
    a("s_lshl_b32 s%d, s%d, 8" % (sT0, sQI)); a("s_add_u32 s%d, s%d, %d" % (sT0, sT0, WBASE)); a("v_add_u32 v%d, s%d, v%d" % (t, sT0, t))
    assert WBASE % 256 == 0 and XBASE % 128 == 0
    for db in range(8): a("v_xor_b32 v%d, %d, v%d" % (vWA + db, db * 32, t))
    a("s_mul_i32 s%d, s%d, %d" % (sT0, sRH, 48 * 128)); a("s_add_u32 s%d, s%d, %d" % (sT0, sT0, XBASE))
    a("v_lshrrev_b32 v%d, 1, v%d" % (t, q)); a("v_xor_b32 v%d, v%d, v%d" % (t, t, g)); a("v_lshlrev_b32 v%d, 4, v%d" % (t, t))
    a("v_lshlrev_b32 v%d, 7, v%d" % (t2, q)); a("v_add_u32 v%d, v%d, v%d" % (t, t, t2)); a("v_add_u32 v%d, s%d, v%d" % (vXA, sT0, t)); a("v_xor_b32 v%d, 64, v%d" % (vXA + 1, vXA))
    a("v_lshrrev_b32 v%d, 2, v%d" % (t, q)); a("v_mul_u32_u24 v%d, %d, v%d" % (t, KGRP, t))
    a("v_and_b32 v%d, 3, v%d" % (t2, q)); a("v_lshlrev_b32 v%d, 8, v%d" % (vKA, t2)); a("v_add_u32 v%d, v%d, v%d" % (t, t, vKA))
    a("v_xor_b32 v%d, v%d, v%d" % (t2, t2, g)); a("v_lshlrev_b32 v%d, 4, v%d" % (t2, t2)); a("v_add_u32 v%d, v%d, v%d" % (vKA, t, t2))
    a("v_mul_u32_u24 v%d, %d, v%d" % (t, VGRP, g)); a("v_lshlrev_b32 v%d, 8, v%d" % (t2, rp)); a("v_add_u32 v%d, v%d, v%d" % (t, t, t2))
    a("v_lshlrev_b32 v%d, 3, v%d" % (t2, c)); a("v_add_u32 v%d, v%d, v%d" % (t, t, t2)); a("v_add_u32 v%d, %d, v%d" % (t, VOFF, t))
    for cc in range(4):
        a("v_xor_b32 v%d, %d, v%d" % (t2, cc, rp)); a("v_lshlrev_b32 v%d, 5, v%d" % (t2, t2)); a("v_add_u32 v%d, v%d, v%d" % (vVA + cc, t, t2))
    stamp(a, 0, 10)

    def ABUF(buf, db): return 144 + 32 * buf + 4 * db
    def BBUF(buf, j): return 208 + 12 * buf + 4 * j
    def q_reads(s):
        buf = s & 1; wo = ((s + 2) % 4) * 16384; xo = ((s // 2) % 2) * XSLOT
        r = []
        for j in range(3): r.append("ds_read_b128 %s, v%d offset:%d" % (vr(BBUF(buf, j), 4), vXA + (s & 1), xo + j * 2048))
        for db in range(8):
            r.append("ds_read_b64_tr_b16 %s, v%d offset:%d" % (vr(ABUF(buf, db), 2), vWA + db, wo))
            r.append("ds_read_b64_tr_b16 %s, v%d offset:%d" % (vr(ABUF(buf, db) + 2, 2), vWA + db, wo + 2048))
        return r
    a("s_barrier")
    for x in q_reads(0): a(x)
    for s in range(18):
        buf = s & 1
        a("s_waitcnt lgkmcnt(0)")
        a("s_barrier")
        mf = []
        for db in range(8):
            for j in range(3):
                cc = "0" if s == 0 else vr(O_(j, db), 4)
                mf.append("%s %s, %s, %s, %s" % (MF, vr(O_(j, db), 4), vr(ABUF(buf, db), 4), vr(BBUF(buf, j), 4), cc))
        rd = q_reads(s + 1) if s < 17 else []
        for x in interleave(mf, spread(rd, list(range(0, 17))) if rd else {}): a(x)
    stamp(a, 1, 11)
    a("s_nop 7")
    a("s_mov_b32 s%d, %s" % (sT0, f32(C_SCALE))); a("s_mov_b32 s%d, s%d" % (sT0 + 1, sT0))
    for j in range(3):
        for s in range(4):
            X, Y, D = O_(j, 2 * s), O_(j, 2 * s + 1), Q_(j, s)
            for r in range(0, 4, 2):
                a("v_pk_mul_f32 %s, %s, s[%d:%d]" % (vr(X + r, 2), vr(X + r, 2), sT0, sT0 + 1)); a("v_pk_mul_f32 %s, %s, s[%d:%d]" % (vr(Y + r, 2), vr(Y + r, 2), sT0, sT0 + 1))
            a("v_cvt_pk_bf16_f32 v%d, v%d, v%d" % (D + 0, X + 0, X + 1)); a("v_cvt_pk_bf16_f32 v%d, v%d, v%d" % (D + 1, X + 2, X + 3))
            a("v_cvt_pk_bf16_f32 v%d, v%d, v%d" % (D + 2, Y + 0, Y + 1)); a("v_cvt_pk_bf16_f32 v%d, v%d, v%d" % (D + 3, Y + 2, Y + 3))
            for r in range(0, 4, 2):
                a("v_mov_b64 %s, 0" % vr(X + r, 2)); a("v_mov_b64 %s, 0" % vr(Y + r, 2))
            a("v_permlane32_swap_b32 v%d, v%d" % (D + 0, D + 2)); a("v_permlane32_swap_b32 v%d, v%d" % (D + 1, D + 3))
            a("s_nop 1")
            a("v_permlane16_swap_b32 v%d, v%d" % (D + 0, D + 2)); a("v_permlane16_swap_b32 v%d, v%d" % (D + 1, D + 3))
    a("s_barrier")
    for kb, s_ in KORD: a(k_read(kb, s_, 0))
    a("s_waitcnt lgkmcnt(0)")
    for j in range(3):
        for kb, s_ in KORD:
            d = 176 + 8 * j + 4 * kb
            a("%s %s, %s, %s, %s" % (MF, vr(d, 4), vr(KF(kb * 4 + s_), 4), vr(Q_(j, s_), 4), "0" if s_ == 0 else vr(d, 4)))
    for r in range(224, 232, 2): a("v_mov_b64 %s, 0" % vr(r, 2))
    for j in range(3): a("v_mov_b32 v%d, 0" % L_(j))
    a("v_mov_b32 v%d, 0" % vS)
    a("s_mov_b32 s%d, %s" % (sTHR, "0x7f800000" if "norare" in OPT else f32(256.0)))
    a("s_mov_b32 s%d, 0" % sSLOT); a("s_mov_b32 s%d, 0" % sDK)
    a("s_mov_b32 s%d, 0x%x" % (sNEG, -3 * PAIR & 0xffffffff))
    a("s_mov_b64 vcc, 0")
    a("s_nop 3")
    for j in range(3):
        S = 176 + 8 * j; t, t2 = 200 + 2 * j, 201 + 2 * j
        a("v_max3_f32 v%d, v%d, v%d, v%d" % (t, S, S + 1, S + 2)); a("v_max3_f32 v%d, v%d, v%d, v%d" % (t2, S + 3, S + 4, S + 5))
        a("v_max3_f32 v%d, v%d, v%d, v%d" % (t, t, S + 6, S + 7)); a("v_max_f32 v%d, v%d, v%d" % (t, t, t2))
    for sw in ("v_permlane32_swap_b32", "v_permlane16_swap_b32"):
        for j in range(3): a("v_mov_b32 v%d, v%d" % (201 + 2 * j, 200 + 2 * j))
        a("s_nop 0")
        for j in range(3): a("%s v%d, v%d" % (sw, 200 + 2 * j, 201 + 2 * j))
        for j in range(3): a("v_max_f32 v%d, v%d, v%d" % (200 + 2 * j, 200 + 2 * j, 201 + 2 * j))
    for j in range(3):
        for i in range(4): a("v_sub_f32 v%d, 0, v%d" % (N_(j) + i, 200 + 2 * j))
    for r in range(176, 208, 2): a("v_mov_b64 %s, 0" % vr(r, 2))
    def qk_mfmas(jn, par):
        m = []
        for kb, s in KORD:
            d = S_(par) + 4 * kb
            cc = vr(N_(jn), 4) if s == 0 else vr(d, 4)
            m.append("%s %s, %s, %s, %s" % (MF, vr(d, 4), vr(KF(kb * 4 + s), 4), vr(Q_(jn, s), 4), cc))
        return m
    def pv_mfmas(jp, par):
        return ["%s %s, %s, %s, %s" % (MF, vr(O_(jp, db), 4), vr(VF(db), 4), vr(P_(par), 4), vr(O_(jp, db), 4)) for db in range(8)]
    for m in qk_mfmas(0, 0): a(m)
    a("s_nop 7")

    def rare_code(st, j, adv):
        par = (3 * st + j) & 1
        S, P = S_(par), P_(par)
        rl, cont = a.label("Lrare"), a.label("Lcont")
        r = Asm()
        r("%s:" % rl)
        if adv: r("v_subrev_u32 v%d, s%d, v%d" % (vT2, sDK, vKA))
        else: r("v_mov_b32 v%d, v%d" % (vT2, vKA))
        for kb in range(2):
            for s in range(4):
                r("ds_read_b128 %s, v%d offset:%d" % (vr(P, 4), vT2, st * 8 * KGRP + kb * 4 * KGRP + s * 64))
                r("s_waitcnt lgkmcnt(0)")
                cc = vr(N_(j), 4) if s == 0 else vr(S + 4 * kb, 4)
                r("%s %s, %s, %s, %s" % (MF, vr(S + 4 * kb, 4), vr(P, 4), vr(Q_(j, s), 4), cc))
                r("s_nop 3")
        r("s_nop 7")
        r("v_max3_f32 v%d, v%d, v%d, v%d" % (vT, S, S + 1, S + 2)); r("v_max3_f32 v%d, v%d, v%d, v%d" % (vT2, S + 3, S + 4, S + 5))
        r("v_max3_f32 v%d, v%d, v%d, v%d" % (vT, vT, S + 6, S + 7)); r("v_max_f32 v%d, v%d, v%d" % (vT, vT, vT2))
        r("v_mov_b32 v%d, v%d" % (vT2, vT)); r("s_nop 1"); r("v_permlane32_swap_b32 v%d, v%d" % (vT, vT2)); r("v_max_f32 v%d, v%d, v%d" % (vT, vT, vT2))
        r("v_mov_b32 v%d, v%d" % (vT2, vT)); r("s_nop 1"); r("v_permlane16_swap_b32 v%d, v%d" % (vT, vT2)); r("v_max_f32 v%d, v%d, v%d" % (vT, vT, vT2))
        r("v_max_f32 v%d, 0, v%d" % (vT, vT))
        r("v_sub_f32 v%d, 0, v%d" % (vT2, vT)); r("v_exp_f32 v%d, v%d" % (vT2, vT2)); r("s_nop 0")
        r("v_mul_f32 v%d, v%d, v%d" % (L_(j), L_(j), vT2))
        for db in range(8):
            for rr in range(4): r("v_mul_f32 v%d, v%d, v%d" % (O_(j, db) + rr, O_(j, db) + rr, vT2))
        for i in range(4): r("v_sub_f32 v%d, v%d, v%d" % (N_(j) + i, N_(j) + i, vT))
        for i in range(8): r("v_sub_f32 v%d, v%d, v%d" % (S + i, S + i, vT))
        for i in range(8): r("v_exp_f32 v%d, v%d" % (S + i, S + i))
        r("s_nop 0")
        r("v_add_f32 v%d, v%d, v%d" % (vS, S, S + 1))
        for i in range(2, 8): r("v_add_f32 v%d, v%d, v%d" % (vS, vS, S + i))
        for i in range(4): r("v_cvt_pk_bf16_f32 v%d, v%d, v%d" % (P + i, S + 2 * i, S + 2 * i + 1))
        r("s_nop 1")
        r("s_branch %s" % cont)
        rare.append(r.text())
        if "nobr" in OPT: return ["%s:" % cont]
        if "sccbr" in OPT: return ["s_cbranch_scc1 %s" % rl, "%s:" % cont]
        return ["s_cbranch_vccnz %s" % rl, "%s:" % cont]

    def block_tab(st, j, prev, qk=True, kload=None, vlo=None, vhi=None, barrier=False, extra=(), pre_extra=(), klate=None):
        par = (3 * st + j) & 1
        jn, jp = (j + 1) % 3, (j - 1) % 3
        S, P = S_(par), P_(par)
        pre = []
        if barrier: pre.append("s_barrier")
        endbr = []
        if "brend" in OPT:
            endbr = rare_code(st, j, st == 1 and j >= 1)
        elif prev is not None: pre += rare_code(*prev)
        pre += list(pre_extra)
        mf = qk_mfmas(jn, par ^ 1) + pv_mfmas(jp, par ^ 1)
        N = {}
        for i in range(8): N["E%d" % i] = "v_exp_f32 v%d, v%d" % (S + i, S + i)
        for i in range(4):
            N["C%d" % i] = "v_cvt_pk_bf16_f32 v%d, v%d, v%d" % (P + i, S + 2 * i, S + 2 * i + 1)
            N["A%d" % i] = "v_add_f32 v%d, v%d, v%d" % (S + 2 * i, S + 2 * i, S + 2 * i + 1)
        N["B0"] = "v_add_f32 v%d, v%d, v%d" % (S, S, S + 2); N["B1"] = "v_add_f32 v%d, v%d, v%d" % (S + 4, S + 4, S + 6)
        N["SUM"] = "v_add_f32 v%d, v%d, v%d" % (vS, S, S + 4); N["CMP"] = "v_cmp_lt_f32 vcc, s%d, v%d" % (sTHR, vS)
        N["L"] = "v_add_f32 v%d, v%d, v%d" % (L_(jp), L_(jp), vS)
        lds = {g: [] for g in range(16)}
        if "nolds" not in OPT:
            if vlo is not None:
                rs = [x for db in range(4) for x in v_reads(db, vlo)]
                for x, g in zip(rs, TAB["vlo"]): lds[g].append(x)
            if vhi is not None:
                rs = [x for db in range(4, 8) for x in v_reads(db, vhi)]
                for x, g in zip(rs, TAB["vhi"]): lds[g].append(x)
            if kload is not None:
                for (kb, s_), g in zip(KORD[:6], TAB["k"]): lds[g].append(k_read(kb, s_, kload))
            if klate is not None:
                for (kb, s_), g in zip(KORD[6:], TAB["klate"]): lds[g].append(k_read(kb, s_, klate))
        out = list(pre)
        ex = list(extra)
        for g in range(16):
            out.append(mf[g])
            if g == 15 and endbr: out += (["s_cmp_lg_u64 vcc, 0"] if "sccbr" in OPT else []) + endbr
            out += lds[g]
            if "nosm" not in OPT: out += [N[n] for n in TAB["valu"].get(g, [])]
            if g == TAB.get("scc_at", 15) and "sccbr" in OPT and "brend" not in OPT: out.append("s_cmp_lg_u64 vcc, 0")
            if g in TAB.get("extra_at", ()) and ex:
                x = ex.pop(0); out += (x if isinstance(x, list) else [x])
        for x in ex: out += (x if isinstance(x, list) else [x])
        return out

    def block(st, j, prev, qk=True, kload=None, vlo=None, vhi=None, barrier=False, extra=(), pre_extra=(), klate=None):
        if TAB is not None and qk: return block_tab(st, j, prev, qk, kload, vlo, vhi, barrier, extra, pre_extra, klate)
        if "brend" in OPT: prev = None
        if "sccbr" in OPT and prev is not None: pre_extra = list(pre_extra)
        par = (3 * st + j) & 1
        jn, jp = (j + 1) % 3, (j - 1) % 3
        S, P = S_(par), P_(par)
        pre = []
        if barrier: pre.append("s_barrier")
        if prev is not None: pre += rare_code(*prev)
        pre += list(pre_extra)
        mf = (qk_mfmas(jn, par ^ 1) if qk else []) + pv_mfmas(jp, par ^ 1)
        nq = 8 if qk else 0
        if not qk: pre.append("s_nop 1")
        it = []
        Ladd = Item("v_add_f32 v%d, v%d, v%d" % (L_(jp), L_(jp), vS), lo=0, hi=6, pri=5)
        E = [Item("v_exp_f32 v%d, v%d" % (S + i, S + i), lo=0, pri=3) for i in range(8)]
        for i in range(1, 8): pass
        A01 = Item("v_add_f32 v%d, v%d, v%d" % (vT, S, S + 1), deps=[E[0], E[1]])
        A23 = Item("v_add_f32 v%d, v%d, v%d" % (vT2, S + 2, S + 3), deps=[E[2], E[3]])
        B_ = Item("v_add_f32 v%d, v%d, v%d" % (vT, vT, vT2), deps=[A01, A23])
        A45 = Item("v_add_f32 v%d, v%d, v%d" % (vT2, S + 4, S + 5), deps=[E[4], E[5], B_])
        C_ = Item("v_add_f32 v%d, v%d, v%d" % (vT, vT, vT2), deps=[A45])
        A67 = Item("v_add_f32 v%d, v%d, v%d" % (vT2, S + 6, S + 7), deps=[E[6], E[7], C_])
        D_ = Item("v_add_f32 v%d, v%d, v%d" % (vS, vT, vT2), deps=[A67, Ladd])
        CMP = Item("v_cmp_lt_f32 vcc, s%d, v%d" % (sTHR, vS), deps=[D_], hi=len(mf) - CMP_SLACK)
        CV = [Item("v_cvt_pk_bf16_f32 v%d, v%d, v%d" % (P + i, S + 2 * i, S + 2 * i + 1), deps=[E[2 * i], E[2 * i + 1]], hi=len(mf) - 2) for i in range(4)]
        if "nosm" in OPT: it = []
        else: it = [Ladd] + E + [A01, A23, B_, A45, C_, A67, D_, CMP] + CV
        if "nolds" not in OPT:
            if vlo is not None:
                for db in range(4): it.append(Item(v_reads(db, vlo), lo=nq + db, pri=4))
            if vhi is not None:
                for db in range(4, 8): it.append(Item(v_reads(db, vhi), lo=0, hi=nq + db - 7, pri=6))
            if kload is not None:
                for i, (kb, s) in enumerate(KORD[:6]): it.append(Item(k_read(kb, s, kload), lo=max(i, 5), hi=min(15, 9 + i), pri=4))
            if klate is not None:
                for i, (kb, s) in list(enumerate(KORD))[6:]: it.append(Item(k_read(kb, s, klate), lo=0, hi=0, pri=7))
        for x in extra: it.append(Item(x, lo=8))
        return schedule(mf, it, pre)

    def tile(last, first_of_all=False):
        L = []
        L += block(0, 0, (1, 2, True), vlo=0)
        L += block(0, 1, (0, 0, False), vhi=0, kload=1)
        L += block(0, 2, (0, 1, False), klate=1)
        L += block(1, 0, (0, 2, False), vlo=1)
        adv = ["s_add_u32 s%d, s%d, 1" % (sSLOT, sSLOT), "s_and_b32 s%d, s%d, 3" % (sSLOT, sSLOT), "s_cmp_eq_u32 s%d, 0" % sSLOT,
               "s_cselect_b32 s%d, s%d, %d" % (sDK, sNEG, PAIR), "v_add_u32 v%d, s%d, v%d" % (vKA, sDK, vKA)]
        L += block(1, 1, (1, 0, False), vhi=1, kload=(None if last else 0), barrier=True, pre_extra=adv)
        L += block(1, 2, (1, 1, True), qk=not last, klate=(None if last else 0),
                   extra=[["v_add_u32 v%d, s%d, v%d" % (vVA + cc, sDK, vVA + cc)] for cc in range(4)])
        return L
    steady = tile(False)
    del rare[:]
    steady2 = tile(False)
    lastt = tile(True)
    if TAB is not None:
        body = hoist_waits(auto_lgkm(steady2, entry_lines=steady, age=TAB.get("age")))
        lastb = hoist_waits(auto_lgkm(lastt, entry_lines=steady, age=TAB.get("age")))
    else:
        body = auto_lgkm(steady2, entry_lines=steady)
        lastb = auto_lgkm(lastt, entry_lines=steady)
    print("   attention steady tile: model %d cycles (%d/unit), %d instrs" % (model_cycles(body), model_cycles(body) / 6, len(body)))
    loop = a.label("Ltile")
    _stamp(a, 6, "s_memtime")
    a("s_mov_b32 s%d, 0" % sCNT)
    a("%s:" % loop)
    for x in body: a(x)
    a("s_add_u32 s%d, s%d, 1" % (sCNT, sCNT)); a("s_cmp_lt_u32 s%d, 15" % sCNT); a("s_cbranch_scc1 %s" % loop)
    _stamp(a, 7, "s_memtime")
    for x in lastb: a(x)
    for x in rare_code(1, 2, True): a(x)
    a("v_add_f32 v%d, v%d, v%d" % (L_(2), L_(2), vS))
    a("s_nop 1")
    for m in pv_mfmas(2, 1): a(m)
    a("s_nop 7")
    stamp(a, 2, 12)
    for j in range(3):
        L = L_(j)
        a("v_mov_b32 v%d, v%d" % (vT, L)); a("s_nop 1"); a("v_permlane32_swap_b32 v%d, v%d" % (L, vT)); a("v_add_f32 v%d, v%d, v%d" % (L, L, vT))
        a("v_mov_b32 v%d, v%d" % (vT, L)); a("s_nop 1"); a("v_permlane16_swap_b32 v%d, v%d" % (L, vT)); a("v_add_f32 v%d, v%d, v%d" % (L, L, vT))
        a("v_rcp_f32 v%d, v%d" % (L, L))
    a("s_nop 1")
    def OA(s, j): return 96 + (s * 3 + j) * 4
    def OB(s, j): return 144 + (s * 3 + j) * 4
    for j in range(3):
        a("v_mov_b32 v%d, v%d" % (vT2, L_(j))); a("v_mov_b32 v%d, v%d" % (vT, L_(j)))
        for s in range(4):
            X, Y, D = O_(j, 2 * s), O_(j, 2 * s + 1), OA(s, j)
            for r in range(0, 4, 2):
                a("v_pk_mul_f32 %s, %s, %s" % (vr(X + r, 2), vr(X + r, 2), vr(vT, 2))); a("v_pk_mul_f32 %s, %s, %s" % (vr(Y + r, 2), vr(Y + r, 2), vr(vT, 2)))
            a("v_cvt_pk_bf16_f32 v%d, v%d, v%d" % (D + 0, X + 0, X + 1)); a("v_cvt_pk_bf16_f32 v%d, v%d, v%d" % (D + 1, X + 2, X + 3))
            a("v_cvt_pk_bf16_f32 v%d, v%d, v%d" % (D + 2, Y + 0, Y + 1)); a("v_cvt_pk_bf16_f32 v%d, v%d, v%d" % (D + 3, Y + 2, Y + 3))
    vA0, vA1 = 240, 241
    a("v_lshlrev_b32 v%d, 4, v%d" % (vT, vLANE))
    a("s_mul_i32 s%d, s%d, 12288" % (sT0, sWAVE)); a("s_add_u32 s%d, s%d, %d" % (sT0, sT0, EXCH)); a("v_add_u32 v%d, s%d, v%d" % (vA0, sT0, vT))
    a("s_xor_b32 s%d, s%d, 2" % (sT2, sWAVE)); a("s_mul_i32 s%d, s%d, 12288" % (sT0, sT2)); a("s_add_u32 s%d, s%d, %d" % (sT0, sT0, EXCH)); a("v_add_u32 v%d, s%d, v%d" % (vA1, sT0, vT))
    a("s_barrier")
    for i in range(12): a("ds_write_b128 v%d, %s offset:%d" % (vA0, vr(96 + 4 * i, 4), i * 1024))
    vAO, vST = 224, 228
    g, rp, c, t = 242, 243, 244, 245
    a("v_lshrrev_b32 v%d, 4, v%d" % (g, vLANE)); a("v_bfe_u32 v%d, v%d, 2, 2" % (rp, vLANE)); a("v_and_b32 v%d, 3, v%d" % (c, vLANE))
    a("v_lshlrev_b32 v%d, 2, v%d" % (t, g)); a("v_add_u32 v%d, v%d, v%d" % (t, t, rp))
    a("v_lshrrev_b32 v%d, 1, v%d" % (g, t)); a("v_and_b32 v%d, 3, v%d" % (g, g)); a("v_lshlrev_b32 v%d, 5, v%d" % (g, g))
    a("v_lshlrev_b32 v%d, 7, v%d" % (t, t)); a("v_add_u32 v%d, v%d, v%d" % (t, t, g)); a("v_lshlrev_b32 v%d, 3, v%d" % (c, c)); a("v_add_u32 v%d, v%d, v%d" % (t, t, c))
    a("s_lshl_b32 s%d, s%d, 6" % (sT0, sQI)); a("v_xor_b32 v%d, s%d, v%d" % (t, sT0, t))
    a("s_lshl_b32 s%d, s%d, 14" % (sT0, sQI)); a("s_xor_b32 s%d, s%d, 16384" % (sT1, sT0))
    a("v_add_u32 v%d, s%d, v%d" % (vAO + 0, sT0, t)); a("v_xor_b32 v%d, 32, v%d" % (vAO + 1, vAO + 0))
    a("v_add_u32 v%d, s%d, v%d" % (vAO + 2, sT1, t)); a("v_xor_b32 v%d, 32, v%d" % (vAO + 3, vAO + 2))
    a("s_mul_i32 s%d, s%d, 6144" % (sT0, sQI)); a("s_mul_i32 s%d, s%d, 3072" % (sT1, sRH)); a("s_add_u32 s%d, s%d, s%d" % (sT0, sT0, sT1))
    a("v_add_u32 v%d, s%d, v%d" % (vST, sT0, vT))
    a("s_waitcnt lgkmcnt(0)")
    a("s_barrier")
    for i in range(12): a("ds_read_b128 %s, v%d offset:%d" % (vr(144 + 4 * i, 4), vA1, i * 1024))
    stamp(a, 3, 13)
    assert PAIR % 256 == 0
    def AF(i): return 192 + 4 * (i % 8)
    def ACC(buf, z, j): return buf * 24 + (z * 3 + j) * 4
    def PK(buf, j): return 48 + buf * 12 + 4 * j
    def a_reads(G):
        c_, kk = divmod(G, 8)
        hs, s = (0, kk) if kk < 4 else (1, kk - 4)
        r = []
        for z in range(2):
            fr = AF(2 * G + z)
            r.append("ds_read_b64_tr_b16 %s, v%d offset:%d" % (vr(fr, 2), vAO + 2 * hs + z, s * 4096))
            r.append("ds_read_b64_tr_b16 %s, v%d offset:%d" % (vr(fr + 2, 2), vAO + 2 * hs + z, s * 4096 + 2048))
        return r
    LOOK = 3
    def slot_delta(c_from): return (-3 * PAIR if (16 + c_from + 1) % 4 == 0 else PAIR) & 0xffffffff
    for G in range(LOOK):
        for x in a_reads(G): a(x)
    pend_epi = []
    vPW = 229
    a("v_lshlrev_b32 v%d, 4, v%d" % (vT, vLANE))
    a("s_mul_i32 s%d, s%d, 3072" % (sT0, sWAVE)); a("s_add_u32 s%d, s%d, %d" % (sT0, sT0, PB0)); a("v_add_u32 v%d, s%d, v%d" % (vPW, sT0, vT))
    a("s_mul_i32 s%d, s%d, %d" % (sT0, sWAVE, PAIR)); a("s_add_u32 s%d, s%d, 32768" % (sT0, sT0)); a("v_add_u32 v%d, s%d, v%d" % (vPW + 1, sT0, vT))
    for c_ in range(9):
        buf = c_ & 1
        for kk in range(8):
            G = c_ * 8 + kk
            hs, s = (0, kk) if kk < 4 else (1, kk - 4)
            Gn = G + LOOK
            pre = []; rd = []; barrier = False
            if Gn < 72:
                cn, kn = divmod(Gn, 8)
                if kn == 0:
                    barrier = True
                    pre += ["v_add_u32 v%d, 0x%x, v%d" % (vAO + 0, slot_delta(cn - 1), vAO + 0), "v_add_u32 v%d, 0x%x, v%d" % (vAO + 1, slot_delta(cn - 1), vAO + 1)]
                if kn == 4 and cn > 0:
                    pre += ["v_add_u32 v%d, 0x%x, v%d" % (vAO + 2, slot_delta(cn - 1), vAO + 2), "v_add_u32 v%d, 0x%x, v%d" % (vAO + 3, slot_delta(cn - 1), vAO + 3)]
                rd = a_reads(Gn)
            elif G == 69: barrier = True
            younger = 4 * min(LOOK - 1, 71 - G)
            a("s_waitcnt lgkmcnt(%d)" % younger)
            if barrier: a("s_barrier")
            for x in pre: a(x)
            mf = []
            for z in range(2):
                for j in range(3):
                    bsrc = OA(s, j) if hs == 0 else OB(s, j)
                    cc = "0" if kk == 0 else vr(ACC(buf, z, j), 4)
                    mf.append("%s %s, %s, %s, %s" % (MF, vr(ACC(buf, z, j), 4), vr(AF(2 * G + z), 4), vr(bsrc, 4), cc))
            fill = spread(rd, [0, 1, 2, 3]) if rd else {}
            if pend_epi and kk >= 1:
                take = pend_epi[:8] if kk == 1 else pend_epi
                pend_epi = pend_epi[len(take):]
                fill = merge(fill, spread(take, [1, 2, 3, 4, 5]))
            for x in interleave(mf, fill): a(x)
        epi = []
        for j in range(3):
            d = PK(buf, j)
            for z in range(2):
                A_ = ACC(buf, z, j)
                epi.append("v_cvt_pk_bf16_f32 v%d, v%d, v%d" % (d + 2 * z, A_, A_ + 1)); epi.append("v_cvt_pk_bf16_f32 v%d, v%d, v%d" % (d + 2 * z + 1, A_ + 2, A_ + 3))
            epi.append("ds_write_b128 v%d, %s offset:%d" % (vPW + buf, vr(d, 4), j * 1024))
        pend_epi = epi
    a("s_nop 7")
    for x in pend_epi: a(x)
    a("s_waitcnt lgkmcnt(0)")
    a("s_barrier")
    stamp(a, 4, 14)
    stamp(a, 5)
    stamp_flush(a)
    a("v_mov_b32 v1, v%d" % vLANE)
    a("s_mov_b32 s%d, s%d" % (sCNT, sWAVE))
    a("s_branch L_reduce")
    for r in rare: a(r)

def mk_srd(a, b, lo, hi, off, size):
    a("s_add_u32 s%d, s%d, s%d" % (b, lo, off)); a("s_addc_u32 s%d, s%d, 0" % (b + 1, hi)); a("s_mov_b32 s%d, %d" % (b + 2, size)); a("s_mov_b32 s%d, 0x20000" % (b + 3))

def gen_k1():
    a = Asm(); a.stamp_wave = 0; a.stamp_tmp = 252
    common_prologue(a, "L_k1_end", 256)
    a("s_and_b32 s%d, s2, 7" % sXCD); a("s_lshr_b32 s%d, s2, 3" % sIDX)
    a("s_and_b32 s%d, s%d, 1" % (sB, sXCD)); a("s_lshl_b32 s%d, s%d, 3" % (sB, sB)); a("s_and_b32 s%d, s%d, 7" % (sT2, sIDX)); a("s_add_u32 s%d, s%d, s%d" % (sB, sB, sT2))
    a("s_lshr_b32 s%d, s%d, 1" % (sH, sXCD)); a("s_lshl_b32 s%d, s%d, 2" % (sH, sH)); a("s_lshr_b32 s%d, s%d, 3" % (sT2, sIDX)); a("s_add_u32 s%d, s%d, s%d" % (sH, sH, sT2))
    a("s_lshl_b32 s%d, s%d, 4" % (sT0, sB)); a("s_add_u32 s%d, s%d, s%d" % (sT0, sT0, sH))
    a("s_lshl_b32 s%d, s%d, 18" % (sT1, sT0))
    mk_srd(a, sK, 6, 7, sT1, 262144); mk_srd(a, sV, 8, 9, sT1, 262144)
    a("s_mul_i32 s%d, s%d, 110592" % (sT1, sB)); mk_srd(a, sX, 4, 5, sT1, 110592)
    a("s_lshl_b32 s%d, s%d, 9" % (sT1, sH)); mk_srd(a, sWQ, 10, 11, sT1, 0); a("s_sub_u32 s%d, 4718592, s%d" % (sWQ + 2, sT1))
    a("s_mul_i32 s%d, s%d, 294912" % (sT1, sH)); mk_srd(a, sWO, 12, 13, sT1, 294912)
    a("s_mul_i32 s%d, s%d, %d" % (sT1, sT0, PART)); a("s_add_u32 s%d, s%d, %d" % (sT1, sT1, WS_PART)); mk_srd(a, sP, 18, 19, sT1, PART)
    a("s_lshr_b32 s%d, s%d, 2" % (sT1, sH)); a("s_lshl_b32 s%d, s%d, 11" % (sT1, sT1)); mk_srd(a, sPF, 10, 11, sT1, 0); a("s_sub_u32 s%d, 4718592, s%d" % (sPF + 2, sT1))
    a("s_lshr_b32 s%d, s%d, 3" % (sT1, sB)); a("s_mul_i32 s%d, s%d, %d" % (sT1, sT1, 8 * 110592)); mk_srd(a, sPF2, 4, 5, sT1, 8 * 110592)
    a("s_mov_b32 s%d, s12" % sWOP); a("s_mov_b32 s%d, s13" % (sWOP + 1))
    a("s_mul_i32 s%d, s%d, 110592" % (sT1, sB)); mk_srd(a, sOUT, 14, 15, sT1, 110592)
    a("s_mul_i32 s%d, s%d, %d" % (sT1, sB, 16 * PART)); a("s_add_u32 s%d, s%d, %d" % (sT1, sT1, WS_PART)); mk_srd(a, sPB, 18, 19, sT1, 16 * PART)
    a("s_mul_i32 s%d, s%d, %d" % (sT1, sB, 9 * 64)); a("s_add_u32 s%d, s%d, %d" % (sT1, sT1, WS_FLAG)); mk_srd(a, sFL, 18, 19, sT1, 9 * 64)
    if STAMP:
        a("s_lshl_b32 s%d, s2, 9" % sT1); a("s_add_u32 s%d, s18, s%d" % (sSTAMP, sT1)); a("s_addc_u32 s%d, s19, 0" % (sSTAMP + 1))
    if "allc" in OPT: a("s_and_b32 s%d, s%d, 3" % (sWAVE, sWAVE))
    a("s_cmp_ge_u32 s%d, 4" % sWAVE); a("s_cbranch_scc1 L_loader")
    gen_compute(a)
    a("L_loader:")
    a.stamp_wave = 4; a.stamp_tmp = 40
    gen_loader(a)
    gen_reducer(a)
    a("L_k1_end:")
    a("s_endpgm")
    return a.text()

def build(fn, stamp=False, opt=()):
    global STAMP, OPT
    STAMP = stamp; OPT = set(opt)
    k1 = gen_k1()
    errs = hazard.check(k1, "k1")
    for e in errs[:10]: print(e)
    if errs: print("k1: %d hazard warnings" % len(errs))
    txt = HEADER + "; @launch grid=(256,1,1) block=(512,1,1) lds=%d\n" % LDS_BYTES
    txt += '.amdgcn_target "amdgcn-amd-amdhsa--gfx950"\n.text\n' + kernel_begin(KNAME) + k1 + '\n.section .rodata,"a"\n.p2align 6\n' + kernel_desc(KNAME, 256, 102, 256)
    open(fn, "w").write(txt)
    print(fn, len(txt), "bytes,", txt.count("\n"), "lines")

if __name__ == "__main__":
    def pieces(start, per):
        d = {}; st = start
        for kind in "KV":
            for lo in range(0, 8, per):
                d.setdefault(st, []).append((kind, 0, lo, lo + per)); st += 1
        return d
    def mk(start, per, i1at):
        d = pieces(start, per)
        d.setdefault(i1at, []).extend([("K", 1), ("V", 1)])
        d.setdefault(19, []).extend([("K", 2), ("V", 2)])
        return d
    PF0 = 0
    O = ["rotq", "nopfq", "notlb"]
    KSCHED = mk(12, 4, 18)
    build("v6.s", False, O); build("v6_st.s", True, ["trace"] + O)
    NL = ["noload", "nored", "norare"] + O
    base = dict(vlo=[8, 9, 10, 11, 12, 13, 14, 15], vhi=[0, 0, 1, 2, 3, 4, 5, 5], k=[6, 7, 8, 9, 10, 11], klate=[0, 1], extra_at=(12, 13, 14, 15), age=3)
    V1 = {0: ["E0"], 1: ["E1"], 2: ["E2", "C0"], 3: ["E3", "A0"], 4: ["E4", "C1"], 5: ["E5", "A1"], 6: ["E6", "B0"], 7: ["E7", "C2"], 8: ["A2", "C3"], 9: ["A3", "L"], 10: ["B1"], 11: ["SUM"], 12: ["CMP"]}
    V2 = {0: ["E0"], 1: ["E1", "L"], 2: ["E2"], 3: ["E3", "C0"], 4: ["E4"], 5: ["E5", "C1"], 6: ["E6"], 7: ["E7", "C2"], 8: ["A0", "A1"], 9: ["C3", ], 10: ["A2", "A3"], 11: ["B0", "B1"], 12: ["SUM"], 13: ["CMP"]}
    V3 = {0: ["E0", "L"], 1: ["E1"], 2: ["E2", "C0"], 3: ["E3"], 4: ["E4", "C1"], 5: ["E5", "A0"], 6: ["E6", "A1"], 7: ["E7", "C2"], 8: ["B0", "A2"], 9: ["C3"], 10: ["A3"], 11: ["B1"], 12: ["SUM"], 13: ["CMP"]}
    V4 = {0: ["E0"], 1: ["E1"], 2: ["E2"], 3: ["E3"], 4: ["E4"], 5: ["E5"], 6: ["E6"], 7: ["E7"], 8: ["C0", "C1"], 9: ["C2", "C3"], 10: ["A0", "A1"], 11: ["A2", "A3"], 12: ["B0", "B1"], 13: ["SUM", "L"], 14: ["CMP"]}
    V4[13] = ["L", "SUM"]
    base2 = dict(base, vhi=[0, 1, 2, 3, 4, 5, 6, 7], k=[8, 9, 10, 11, 12, 13])
    V5 = {0: ["E0"], 1: ["E1"], 2: ["E2"], 3: ["E3"], 4: ["E4"], 5: ["E5"], 6: ["E6"], 7: ["E7"], 8: ["C0", "C1"], 9: ["C2", "C3"], 10: ["A0", "A1"], 11: ["A2", "A3"], 12: ["B0", "B1"], 13: ["L", "SUM"], 14: ["CMP"]}
    V6 = {0: ["E0"], 1: ["E1"], 2: ["E2"], 3: ["E3"], 4: ["E4"], 5: ["E5"], 6: ["E6"], 7: ["E7"], 8: ["C0", "A0"], 9: ["C1", "A1"], 10: ["C2", "A2"], 11: ["C3", "A3"], 12: ["B0", "B1"], 13: ["L", "SUM"], 14: ["CMP"]}
    V7 = {0: ["E0"], 1: ["E1"], 2: ["E2", "C0"], 3: ["E3"], 4: ["E4", "C1"], 5: ["E5"], 6: ["E6", "C2"], 7: ["E7"], 8: ["A0", "A1"], 9: ["C3", "L"], 10: ["A2", "A3"], 11: ["B0", "B1"], 12: ["SUM"], 13: ["CMP"]}
    V8 = {0: ["L", "E0"], 1: ["E1"], 2: ["E2"], 3: ["E3"], 4: ["E4"], 5: ["E5"], 6: ["E6"], 7: ["E7"], 8: ["C0", "C1"], 9: ["C2", "C3"], 10: ["A0", "A1"], 11: ["A2", "A3"], 12: ["B0", "B1"], 13: ["SUM"], 14: ["CMP"]}
    V5e = {0: ["E0"], 1: ["E1"], 2: ["E2"], 3: ["E3"], 4: ["E4"], 5: ["E5"], 6: ["E6"], 7: ["E7"], 8: ["C0", "C1"], 9: ["C2", "C3"], 10: ["A0", "A1"], 11: ["A2", "A3"], 12: ["B0", "B1"], 13: ["L", "SUM"], 14: ["CMP"]}
    V5f = {0: ["E0"], 1: ["E1"], 2: ["E2"], 3: ["E3"], 4: ["E4"], 5: ["E5"], 6: ["E6"], 7: ["E7", "C0"], 8: ["C1", "A0"], 9: ["A1", "C2"], 10: ["C3", "A2"], 11: ["A3", "B0"], 12: ["B1", "L"], 13: ["SUM", "CMP"]}
    Vg = {0: ["E0"], 1: ["E1"], 2: ["E2"], 3: ["E3"], 4: ["E4", "C0"], 5: ["E5", "A0"], 6: ["E6", "C1"], 7: ["E7", "A1"], 8: ["C2", "A2"], 9: ["C3", "A3"], 10: ["B0", "B1"], 11: ["L", "SUM"], 12: ["CMP"]}
    Vh = {0: ["E0"], 1: ["E1"], 2: ["E2"], 3: ["E3"], 4: ["E4"], 5: ["E5"], 6: ["E6", "C0"], 7: ["E7", "C1"], 8: ["A0", "A1"], 9: ["C2", "C3"], 10: ["A2", "A3"], 11: ["B0", "B1"], 12: ["L", "SUM"], 13: ["CMP"]}
    Vi = {0: ["E0"], 1: ["E1"], 2: ["E2"], 3: ["E3"], 4: ["E4"], 5: ["E5"], 6: ["E6"], 7: ["E7"], 8: ["C0", "C1"], 9: ["C2", "C3"], 10: ["A0", "A1", "A2"], 11: ["A3", "B0"], 12: ["B1", "SUM"], 13: ["CMP"], 1: ["E1", "L"]}
    Vj = {0: ["E0", "L"], 1: ["E1"], 2: ["E2"], 3: ["E3"], 4: ["E4"], 5: ["E5"], 6: ["E6"], 7: ["E7", "C0"], 8: ["C1", "A0"], 9: ["A1", "C2"], 10: ["C3", "A2"], 11: ["A3", "B0"], 12: ["B1", "SUM"], 13: ["CMP"]}
    TAB = dict(base2, valu=V5f)
    OB = O + ["brend"]
    build("v6.s", False, OB); build("v6_st.s", True, ["trace"] + OB)
    build("n_new.s", False, OB); build("n_newrot.s", False, OB + ["krot"])
    TAB = None
    build("n_old.s", False, O)
```

```python
import sys, struct
from asmlib import *
import hazard
from sched import Item, schedule, auto_lgkm, model_cycles

def f32(x): return "0x%08x" % struct.unpack("<I", struct.pack("<f", x))[0]
C_SCALE = 1.4426950408889634 / (128 ** 0.5)

PAIR = 35840
KGRP, VGRP = 1088, 1152
VOFF = 16 * KGRP
WBASE = 2 * PAIR
XBASE = WBASE + 4 * 16384
XSLOT = 12288
EXCH = 3 * PAIR
LDS_BYTES = 163840
PART = 108 * 1024
WS_PART = 1 << 20
WS_FLAG = 1 << 19
KNAME = 'standalone__gqa_block_cached__near_ridge_kernel'
OPT = set()
STAMP = False

sK, sV, sX, sWQ, sWO, sP = 20, 24, 28, 32, 36, 40
sWAVE, sB, sH, sLW = 44, 45, 46, 47
sT0, sT1, sT2, sT3 = 48, 49, 50, 51
sLWK, sLW3072, sLWV, sLW4096 = 52, 53, 59, 66
sTHR, sCNT, sDK, sNEG, sSLOT = 54, 55, 56, 57, 58
sSTAMP = 60
sTM = 62
sQI, sRH = 64, 65
sXCD, sIDX = 67, 68
sPF = 72
sPF2 = 76
sFL = 8
sPB = 4
sOUT = 12
def srd(b): return "s[%d:%d]" % (b, b + 3)
def vr(b, n=1): return "v%d" % b if n == 1 else "v[%d:%d]" % (b, b + n - 1)

def _stamp(a, idx, instr):
    if not STAMP: return
    a("%s s[%d:%d]" % (instr, sTM, sTM + 1)); a("s_waitcnt lgkmcnt(0)")
    if a.stamp_wave == 0: a("s_mov_b32 s%d, s%d" % (80 + idx, sTM))
    else: a("v_writelane_b32 v40, s%d, %d" % (sTM, idx))
def stamp(a, idx, cyc=None):
    _stamp(a, idx, "s_memrealtime")
    if cyc is not None: _stamp(a, cyc, "s_memtime")
DBG_WG = 37
def stamp_flush(a):
    if not STAMP: return
    if "dbg" in OPT:
        sk = a.label("Ldbgs")
        a("s_cmp_lg_u32 s2, %d" % DBG_WG); a("s_cbranch_scc1 %s" % sk)
        a("s_cmp_lg_u32 s%d, %d" % (sWAVE, a.stamp_wave)); a("s_cbranch_scc1 %s" % sk)
        a("v_mov_b32 v1, 0")
        if a.stamp_wave == 0:
            for dw, (j, j0) in zip((1, 2, 3, 5, 6, 7, 9, 10, 11), ((1, 0), (2, 0), (3, 0), (4, 0), (11, 10), (12, 11), (13, 12), (14, 13), (7, 6))):
                a("s_sub_u32 s%d, s%d, s%d" % (sT0, 80 + j, 80 + j0)); a("v_mov_b32 v2, s%d" % sT0); a("global_store_dword v1, v2, s[16:17] offset:%d" % (4 * dw))
        else:
            a("v_readlane_b32 s%d, v40, 15" % sT0); a("v_readlane_b32 s%d, v40, 16" % sT1); a("s_nop 3"); a("s_sub_u32 s%d, s%d, s%d" % (sT0, sT0, sT1)); a("v_mov_b32 v2, s%d" % sT0)
            a("global_store_dword v1, v2, s[16:17] offset:52")
            a("v_readlane_b32 s%d, v40, 36" % sT0); a("s_nop 3"); a("s_sub_u32 s%d, s%d, s%d" % (sT0, sT0, sT1)); a("v_mov_b32 v2, s%d" % sT0)
            a("global_store_dword v1, v2, s[16:17] offset:56")
        a("%s:" % sk)
        return
    sk = a.label("Lst")
    a("s_cmp_lg_u32 s%d, %d" % (sWAVE, a.stamp_wave)); a("s_cbranch_scc1 %s" % sk)
    if a.stamp_wave == 0:
        a("v_mov_b32 v1, 0")
        for i in range(16):
            if i in (8, 9, 15): continue
            a("v_mov_b32 v2, s%d" % (80 + i)); a("global_store_dword v1, v2, s[%d:%d] offset:%d" % (sSTAMP, sSTAMP + 1, 4 * i))
    else:
        a("v_and_b32 v2, 63, v0"); a("v_lshlrev_b32 v3, 2, v2")
        a("v_cmp_lt_u32 vcc, 14, v2"); a("v_cmp_eq_u32 s[96:97], 8, v2"); a("s_or_b64 vcc, vcc, s[96:97]"); a("v_cmp_eq_u32 s[96:97], 9, v2"); a("s_or_b64 vcc, vcc, s[96:97]")
        a("s_and_saveexec_b64 s[96:97], vcc")
        a("global_store_dword v3, v40, s[%d:%d]" % (sSTAMP, sSTAMP + 1))
        a("s_mov_b64 exec, s[96:97]")
    a("%s:" % sk)

def common_prologue(a, endlab, nwg):
    a("s_cmp_ge_u32 s2, %d" % nwg); a("s_cbranch_scc1 %s" % endlab)
    a("s_load_dwordx8 s[4:11], s[0:1], 0")
    a("s_load_dwordx4 s[12:15], s[0:1], 32")
    a("s_load_dwordx4 s[16:19], s[0:1], 48")
    a("v_lshrrev_b32 v1, 6, v0")
    a("s_nop 0")
    a("v_readfirstlane_b32 s%d, v1" % sWAVE)
    a("s_waitcnt lgkmcnt(0)")

class VQ:
    def __init__(s): s.q = []
    def issue(s, tag, n=1): s.q += [tag] * n
    def wait(s, tags):
        idx = [i for i, t in enumerate(s.q) if t in tags]
        if not idx: return None
        last = max(idx); n = len(s.q) - 1 - last
        s.q = s.q[last + 1:]
        return min(n, 63)

KV_FLAGS = " nt"
W_FLAGS = ""
O_FLAGS = ""
P_FLAGS = " sc0 sc1"


def gen_loader(a):
    a("s_sub_u32 s%d, s%d, 4" % (sLW, sWAVE))
    a("v_and_b32 v1, 63, v0")
    if STAMP: a("v_mov_b32 v40, 0")
    a("s_cmp_ge_u32 s%d, 2" % sLW); a("s_cbranch_scc1 L_kvloader")
    gen_wloader(a)
    a("L_kvloader:")
    gen_kvloader(a)

def mk_bar(a, q, trace_base=None):
    def bar(tags):
        n = q.wait(tags) if tags else None
        if n is not None and "nowait" not in OPT: a("s_waitcnt vmcnt(%d)" % n)
        if "trace" in OPT and bar.n < 48 and trace_base is not None: stamp(a, 16 + bar.n)
        a("s_barrier")
        bar.n += 1
    bar.n = 0
    return bar

def dma(a, vreg, srdb, soff, imm, flags):
    if "noload" in OPT: return
    a("buffer_load_dwordx4 v%d, %s, s%d offen offset:%d%s lds" % (vreg, srd(srdb), soff, imm, flags))

def emit_pf(a, chunks, lane=1):
    if not chunks: return
    sk = a.label("Lpfq"); skx = a.label("Lpfx")
    a("s_cmp_ge_u32 s%d, 28" % sIDX); a("s_cbranch_scc1 %s" % sk)
    a("s_cmp_ge_u32 s%d, 16" % sIDX); a("s_cbranch_scc1 %s" % skx)
    a("v_lshrrev_b32 v30, 4, v%d" % lane); a("v_and_b32 v31, 15, v%d" % lane)
    a("s_lshl_b32 s%d, s%d, 2" % (sT0, sIDX)); a("v_add_u32 v30, s%d, v30" % sT0); a("v_lshlrev_b32 v30, 13, v30"); a("v_lshlrev_b32 v31, 7, v31"); a("v_add_u32 v30, v30, v31")
    for cp in chunks:
        if isinstance(cp, int): a("s_mov_b32 s%d, %d" % (sT0, cp * 64 * 8192))
        else: a("s_lshl_b32 s%d, s%d, 19" % (sT0, cp[0])); a("s_add_u32 s%d, s%d, %d" % (sT0, sT0, cp[1] * 64 * 8192))
        a("buffer_load_dword v32, v30, %s, s%d offen" % (srd(sPF), sT0))
    a("s_branch %s" % sk)
    a("%s:" % skx)
    a("s_sub_u32 s%d, s%d, 16" % (sT0, sIDX)); a("s_lshl_b32 s%d, s%d, 6" % (sT0, sT0)); a("v_add_u32 v30, s%d, v%d" % (sT0, lane)); a("v_mul_u32_u24 v30, 1152, v30")
    for cp in chunks:
        if isinstance(cp, int): a("s_mov_b32 s%d, %d" % (sT0, cp * 128))
        else: a("s_lshl_b32 s%d, s%d, 7" % (sT0, cp[0])); a("s_add_u32 s%d, s%d, %d" % (sT0, sT0, cp[1] * 128))
        a("buffer_load_dword v32, v30, %s, s%d offen" % (srd(sPF2), sT0))
    a("%s:" % sk)

def code_prefetch(a, lane=1):
    if "nocpf" in OPT: return
    lab = a.label("Lcpf")
    a("s_getpc_b64 s[94:95]")
    a("%s:" % lab)
    a("s_sub_u32 s94, s94, (%s - %s)" % (lab, KNAME)); a("s_subb_u32 s95, s95, 0")
    a("s_lshl_b32 s%d, s%d, 11" % (sT0, sIDX))
    a("v_and_b32 v34, 15, v%d" % lane); a("v_lshlrev_b32 v34, 7, v34"); a("v_add_u32 v34, s%d, v34" % sT0)
    a("v_min_u32 v34, (L_k1_end - %s), v34" % KNAME)
    a("global_load_dword v35, v34, s[94:95]")

def gen_wloader(a):
    vW, vX, vO = 10, 14, 16
    a.stamp_wave = 4
    sA, sBb = sLWK, sLWV
    a("v_lshrrev_b32 v6, 5, v1"); a("v_and_b32 v7, 31, v1")
    a("s_lshl_b32 s%d, s%d, 17" % (sT1, sLW))
    a("v_lshlrev_b32 v8, 13, v6"); a("v_add_u32 v8, s%d, v8" % sT1)
    for var in range(4):
        a("v_add_u32 v5, %d, v6" % (2 * (var & 1) + 4 * (var >> 1))); a("v_lshlrev_b32 v5, 1, v5"); a("v_xor_b32 v5, v5, v7")
        a("v_lshlrev_b32 v5, 4, v5"); a("v_add_u32 v%d, v8, v5" % (vW + var))
    a("v_lshrrev_b32 v6, 3, v1"); a("v_and_b32 v7, 7, v1")
    a("s_mul_i32 s%d, s%d, 48" % (sT1, sLW)); a("v_add_u32 v8, s%d, v6" % sT1); a("v_mul_u32_u24 v8, 1152, v8")
    a("v_lshrrev_b32 v9, 1, v6")
    for i in range(2):
        a("v_add_u32 v5, %d, v9" % (4 * i)); a("v_xor_b32 v5, v5, v7"); a("v_lshlrev_b32 v5, 4, v5"); a("v_add_u32 v%d, v8, v5" % (vX + i))
    a("v_mul_u32_u24 v8, 1152, v6")
    a("v_and_b32 v5, 3, v9"); a("v_lshlrev_b32 v5, 1, v5"); a("v_xor_b32 v5, v5, v7"); a("v_lshlrev_b32 v5, 4, v5"); a("v_add_u32 v%d, v8, v5" % vO)
    a("s_lshl_b32 s%d, s%d, 13" % (sA, sLW))
    a("s_mul_i32 s%d, s%d, 6144" % (sBb, sLW))
    a("s_lshl_b32 s%d, s%d, 14" % (sLW4096, sLW))
    a("s_mul_i32 s%d, s%d, %d" % (sLW3072, sLW, 128 * 1152))
    q = VQ(); bar = mk_bar(a, q, 0)
    sWK, sXK, sOK = 98, 99, 100
    if "rotq" not in OPT:
        a("s_mov_b32 s%d, 0" % sWK); a("s_mov_b32 s%d, 0" % sXK)
        a("s_and_b32 s%d, s%d, 7" % (sT0, sB)); a("s_lshl_b32 s%d, s%d, 7" % (sOK, sT0))
    else:
        A_, SI, B_, SJ = ROTQ
        a("s_and_b32 s%d, s%d, 7" % (sT0, sIDX)); a("s_lshr_b32 s%d, s%d, %d" % (sT0, sT0, SI)); a("s_mul_i32 s%d, s%d, %d" % (sT0, sT0, A_))
        a("s_lshr_b32 s%d, s%d, %d" % (sT1, sIDX, 3 + SJ)); a("s_mul_i32 s%d, s%d, %d" % (sT1, sT1, B_)); a("s_add_u32 s%d, s%d, s%d" % (sT0, sT0, sT1))
        for _ in range(2): a("s_cmp_ge_u32 s%d, 9" % sT0); a("s_cselect_b32 s%d, 9, 0" % sT1); a("s_sub_u32 s%d, s%d, s%d" % (sT0, sT0, sT1))
        a("s_lshl_b32 s%d, s%d, 19" % (sWK, sT0)); a("s_lshl_b32 s%d, s%d, 7" % (sXK, sT0))
        a("s_and_b32 s%d, s%d, 7" % (sT0, sB)); a("s_lshl_b32 s%d, s%d, 7" % (sOK, sT0))
    def adv(reg, step, wrap):
        a("s_add_u32 s%d, s%d, %d" % (reg, reg, step)); a("s_cmp_eq_u32 s%d, %d" % (reg, wrap)); a("s_cselect_b32 s%d, 0, s%d" % (reg, reg))
    def iss_W(s):
        for ii in range(8):
            if ii % 4 == 0: a("s_add_u32 m0, s%d, %d" % (sA, WBASE + ((s + 2) % 4) * 16384 + (ii >> 2) * 4096))
            a("s_add_u32 s%d, s%d, %d" % (sT0, sWK, 16384 * ii - (ii & 3) * 1024))
            dma(a, vW + (ii & 1) + 2 * (ii >> 2), sWQ, sT0, (ii & 3) * 1024, W_FLAGS)
        adv(sWK, 262144, 18 * 262144)
        q.issue("W%d" % s, 8)
    def iss_X(cp):
        for ii in range(6):
            if ii % 4 == 0: a("s_add_u32 m0, s%d, %d" % (sBb, XBASE + (cp % 2) * XSLOT + (ii >> 2) * 4096))
            a("s_add_u32 s%d, s%d, %d" % (sT0, sXK, 9216 * ii - (ii & 3) * 1024))
            dma(a, vX + (ii & 1), sX, sT0, (ii & 3) * 1024, W_FLAGS)
        adv(sXK, 128, 9 * 128)
        q.issue("X%d" % cp, 6)
    def iss_O(c):
        T = 16 + c
        a("s_add_u32 s%d, s%d, s%d" % (sT1, sLW3072, sOK))
        for ii in range(16):
            if ii % 4 == 0: a("s_add_u32 m0, s%d, %d" % (sLW4096, (T % 4) * PAIR + (ii >> 2) * 4096))
            a("s_add_u32 s%d, s%d, %d" % (sT0, sT1, 9216 * ii - (ii & 3) * 1024))
            dma(a, vO, sWO, sT0, (ii & 3) * 1024, O_FLAGS)
        adv(sOK, 128, 9 * 128)
        q.issue("I%d" % T, 16)
    def prefetch_o():
        a("s_lshr_b32 s%d, s%d, 2" % (sT0, sH)); a("s_mul_i32 s%d, s%d, %d" % (sT0, sT0, 4 * 294912))
        a("s_add_u32 s%d, s%d, s%d" % (sPF2, sWOP, sT0)); a("s_addc_u32 s%d, s%d, 0" % (sPF2 + 1, sWOP + 1)); a("s_mov_b32 s%d, %d" % (sPF2 + 2, 4 * 294912)); a("s_mov_b32 s%d, 0x20000" % (sPF2 + 3))
        a("s_lshl_b32 s%d, s%d, 1" % (sT0, sIDX)); a("s_add_u32 s%d, s%d, s%d" % (sT0, sT0, sLW)); a("s_mul_i32 s%d, s%d, 144" % (sT0, sT0))
        a("v_add_u32 v5, s%d, v1" % sT0); a("v_lshlrev_b32 v6, 7, v5")
        a("buffer_load_dword v34, v6, %s, 0 offen" % srd(sPF2))
        a("v_add_u32 v6, 8192, v6"); a("buffer_load_dword v35, v6, %s, 0 offen" % srd(sPF2))
        a("v_add_u32 v6, 8192, v6"); a("v_mov_b32 v7, 0x40000000"); a("v_cmp_gt_u32 vcc, 16, v1"); a("s_nop 1"); a("v_cndmask_b32 v6, v7, v6, vcc")
        a("buffer_load_dword v36, v6, %s, 0 offen" % srd(sPF2))
        q.issue("PF", 3)
    def cpf():
        sk = a.label("Lcp"); a("s_cmp_lg_u32 s%d, 1" % sLW); a("s_cbranch_scc1 %s" % sk); code_prefetch(a); a("%s:" % sk)
    if "cpf0" in OPT: cpf()
    if PF0:
        a("s_mul_i32 s%d, s%d, %d" % (sT2, sLW, PF0))
        emit_pf(a, [(sT2, k) for k in range(PF0)])
    iss_W(0); iss_X(0); iss_W(1); iss_W(2); iss_X(1); iss_W(3)
    for s in range(18):
        bar(["W%d" % s, "X%d" % (s // 2)])
        if s >= 1 and s + 3 <= 17: iss_W(s + 3)
        if s >= 2 and s % 2 == 0 and s // 2 + 1 <= 8: iss_X(s // 2 + 1)
    bar(None)
    bar(None)
    stamp(a, 8)
    for n in range(1, 17):
        bar(["I%d" % n] if n >= 16 else None)
        if n == PF_O_AT and "pfo" in OPT: prefetch_o()
        if n == CPF_AT: cpf()
        if n + 2 >= 16: iss_O(n + 2 - 16)
    a("s_barrier"); a("s_barrier")
    for n in range(17, 27):
        bar((["I%d" % n] + (["I24"] if n == 23 else [])) if n <= 23 else None)
        if n + 2 <= 24: iss_O(n + 2 - 16)
    stamp(a, 9)
    a("s_add_u32 s%d, s%d, 4" % (sCNT, sLW))
    a("s_branch L_reduce")

def gen_kvloader(a):
    vK, vV = 10, 11
    a.stamp_wave = -1
    a("s_sub_u32 s%d, s%d, 2" % (sLW, sLW))
    a("v_lshrrev_b32 v2, 4, v1"); a("v_and_b32 v3, 15, v1")
    a("s_lshl_b32 s%d, s%d, 13" % (sT0, sLW))
    a("v_lshlrev_b32 v4, 8, v2"); a("v_add_u32 v4, s%d, v4" % sT0)
    a("v_xor_b32 v5, v2, v3"); a("v_lshlrev_b32 v5, 4, v5"); a("v_add_u32 v%d, v4, v5" % vK)
    a("v_lshlrev_b32 v5, 1, v2"); a("v_xor_b32 v5, v5, v3"); a("v_lshlrev_b32 v5, 4, v5"); a("v_add_u32 v%d, v4, v5" % vV)
    a("s_mul_i32 s%d, s%d, %d" % (sLWK, sLW, 8 * KGRP)); a("s_mul_i32 s%d, s%d, %d" % (sLWV, sLW, 8 * VGRP))
    sROT = 92
    if "krot" in OPT:
        a("s_mul_i32 s%d, s%d, %d" % (sROT, sXCD, KROT[0])); a("s_mul_i32 s%d, s%d, %d" % (sT0, sIDX, KROT[1])); a("s_add_u32 s%d, s%d, s%d" % (sROT, sROT, sT0))
    q = VQ(); bar = mk_bar(a, q, None)
    def iss(T, isK, lo=0, hi=8):
        for ii in range(lo, hi):
            if "krot" in OPT:
                if ii == lo: a("s_add_u32 s%d, s%d, %d" % (sT2, sROT, T)); a("s_and_b32 s%d, s%d, 15" % (sT2, sT2)); a("s_lshl_b32 s%d, s%d, 14" % (sT2, sT2))
                if ii % 4 == 0 or ii == lo: a("s_add_u32 s%d, s%d, %d" % (sT0, sT2, (ii >> 2) * 4096))
            elif ii % 4 == 0 or ii == lo: a("s_mov_b32 s%d, %d" % (sT0, T * 16384 + (ii >> 2) * 4096))
            grp = KGRP if isK else VGRP
            a("s_add_u32 m0, s%d, %d" % (sLWK if isK else sLWV, (T % 4) * PAIR + (0 if isK else VOFF) + ii * grp - (ii & 3) * 1024))
            if ii % 4: a("s_nop 0")
            else: a("s_nop 0")
            dma(a, vK if isK else vV, sK if isK else sV, sT0, (ii & 3) * 1024, KV_FLAGS)
        q.issue("I%d" % T, hi - lo)
    def prefetch_q():
        sk = a.label("Lpfq"); skx = a.label("Lpfx")
        a("s_cmp_lg_u32 s%d, %d" % (sLW, PF_WAVE)); a("s_cbranch_scc1 %s" % sk)
        a("s_cmp_ge_u32 s%d, 28" % sIDX); a("s_cbranch_scc1 %s" % sk)
        a("s_cmp_ge_u32 s%d, 16" % sIDX); a("s_cbranch_scc1 %s" % skx)
        a("s_lshl_b32 s%d, s%d, 2" % (sT0, sIDX)); a("v_add_u32 v5, s%d, v2" % sT0); a("v_lshlrev_b32 v5, 13, v5"); a("v_lshlrev_b32 v6, 7, v3"); a("v_add_u32 v5, v5, v6")
        for cp in range(PF_FIRST, 9):
            a("s_mov_b32 s%d, %d" % (sT0, cp * 64 * 8192)); a("buffer_load_dword v%d, v5, %s, s%d offen" % (20 + cp, srd(sPF), sT0))
        a("s_branch %s" % sk)
        a("%s:" % skx)
        a("s_sub_u32 s%d, s%d, 16" % (sT0, sIDX)); a("s_lshl_b32 s%d, s%d, 6" % (sT0, sT0)); a("v_add_u32 v5, s%d, v1" % sT0); a("v_mul_u32_u24 v5, 1152, v5")
        for cp in range(PF_FIRST, 9):
            a("s_mov_b32 s%d, %d" % (sT0, cp * 128)); a("buffer_load_dword v%d, v5, %s, s%d offen" % (20 + cp, srd(sPF2), sT0))
        a("%s:" % sk)
    def clear_flags():
        sk = a.label("Lclr")
        a("s_cmp_lg_u32 s%d, 1" % sLW); a("s_cbranch_scc1 %s" % sk)
        a("v_mov_b32 v20, 0")
        a("s_lshl_b32 s%d, s%d, 2" % (sT0, sH))
        a("v_lshlrev_b32 v5, 6, v1"); a("v_add_u32 v5, s%d, v5" % sT0); a("v_mov_b32 v7, 0x40000000"); a("v_cmp_gt_u32 vcc, 9, v1"); a("s_nop 1"); a("v_cndmask_b32 v5, v7, v5, vcc")
        a("buffer_store_dword v20, v5, %s, 0 offen sc0 sc1" % srd(sFL))
        a("s_waitcnt vmcnt(0)")
        a("s_lshl_b32 s%d, s%d, 4" % (sT0, sB)); a("v_mov_b32 v5, s%d" % sT0); a("v_mov_b32 v6, 1")
        a("s_mov_b64 s[96:97], exec"); a("s_mov_b64 exec, 1")
        a("global_atomic_add v5, v6, s[16:17] sc1")
        a("s_mov_b64 exec, s[96:97]")
        a("%s:" % sk)
    if "notlb" not in OPT:
        sk = a.label("Ltlb")
        a("s_cmp_lg_u32 s%d, 0" % sLW); a("s_cbranch_scc1 %s" % sk)
        a("v_mov_b32 v5, 0")
        for i, sr in enumerate((sK, sV, sWO, sP, sOUT)): a("buffer_load_dword v%d, v5, %s, 0 offen nt" % (33 + i, srd(sr)))
        a("v_mul_u32_u24 v5, %d, v1" % (PART // 8)); a("v_lshlrev_b32 v5, 3, v5"); a("v_mov_b32 v7, 0x40000000"); a("v_cmp_gt_u32 vcc, 16, v1"); a("s_nop 1"); a("v_cndmask_b32 v5, v7, v5, vcc")
        a("buffer_load_dword v38, v5, %s, 0 offen nt" % srd(sPB))
        a("%s:" % sk)
    clear_flags()
    if "nopfq" not in OPT and PF_AT < 0: prefetch_q()
    for s in range(18):
        bar(None)
        if "nopfq" not in OPT and PF_AT == s: prefetch_q()
        for e in KSCHED.get(s, []): iss(e[1], e[0] == "K", *e[2:])
    bar(None)
    for e in KSCHED.get(18, []): iss(e[1], e[0] == "K", *e[2:])
    bar(["I0"])
    for e in KSCHED.get(19, []): iss(e[1], e[0] == "K", *e[2:])
    def st6(idx):
        if "trace6" in OPT:
            a("s_memrealtime s[%d:%d]" % (sTM, sTM + 1)); a("s_waitcnt lgkmcnt(0)"); a("v_writelane_b32 v41, s%d, %d" % (sTM, idx))
    if "trace6" in OPT: a("v_mov_b32 v41, 0")
    for n in range(1, 17):
        nn = q.wait(["I%d" % n]) if n < 16 else None
        if nn is not None and "nowait" not in OPT: a("s_waitcnt vmcnt(%d)" % nn)
        st6(3 * n)
        a("s_barrier")
        st6(3 * n + 1)
        if n >= FIRST_RULE and n + 2 < 16: iss(n + 2, True); iss(n + 2, False)
        st6(3 * n + 2)
    if "trace6" in OPT:
        sk = a.label("Lt6"); a("s_cmp_lg_u32 s%d, 0" % sLW); a("s_cbranch_scc1 %s" % sk)
        a("v_lshlrev_b32 v42, 2, v1"); a("global_store_dword v42, v41, s[%d:%d] offset:256" % (sSTAMP, sSTAMP + 1)); a("%s:" % sk)
    if "nored" not in OPT:
        sk = a.label("Ldbg"); lp = a.label("Ldbgw")
        a("s_cmp_lg_u32 s%d, 0" % sLW); a("s_cbranch_scc1 %s" % sk)
        a("s_lshl_b32 s%d, s%d, 4" % (sT0, sB)); a("v_mov_b32 v10, s%d" % sT0); a("s_mov_b32 s%d, 0" % sT3)
        a("%s:" % lp)
        a("global_load_dword v12, v10, s[16:17] sc1"); a("s_waitcnt vmcnt(0)"); a("v_readfirstlane_b32 s%d, v12" % sT1)
        a("s_add_u32 s%d, s%d, 1" % (sT3, sT3)); a("s_cmp_gt_u32 s%d, %d" % (sT3, SPIN_MAX)); a("s_cbranch_scc1 %s" % sk)
        a("s_cmp_lt_u32 s%d, 16" % sT1); a("s_cbranch_scc1 %s" % lp)
        a("%s:" % sk)
    a("s_barrier"); a("s_barrier")
    vPR, vPO, vF, vOne = 20, 24, 25, 26
    a("v_lshlrev_b32 v%d, 4, v1" % vPO)
    a("v_add_u32 v%d, %d, v%d" % (vPR, PB0, vPO)); a("v_add_u32 v%d, %d, v%d" % (vPR + 1, 32768, vPO)); a("v_add_u32 v%d, %d, v%d" % (vPR + 2, 2 * PAIR + 32768, vPO))
    a("v_mov_b32 v%d, 1" % vOne)
    def set_flags(first, n):
        a("v_lshlrev_b32 v%d, 7, v1" % vF); a("s_lshl_b32 s%d, s%d, 2" % (sT0, sH)); a("s_add_u32 s%d, s%d, %d" % (sT0, sT0, first * 64)); a("v_add_u32 v%d, s%d, v%d" % (vF, sT0, vF))
        a("v_mov_b32 v7, 0x40000000"); a("v_cmp_gt_u32 vcc, %d, v1" % n); a("s_nop 1"); a("v_cndmask_b32 v%d, v7, v%d, vcc" % (vF, vF))
        a("buffer_store_dword v%d, v%d, %s, 0 offen sc0 sc1" % (vOne, vF, srd(sFL)))
    for n in range(17, 27):
        a("s_barrier")
        c = n - 18
        if c < 0: continue
        sk = a.label("Lsto")
        a("s_cmp_lg_u32 s%d, %d" % (sLW, c & 1)); a("s_cbranch_scc1 %s" % sk)
        for w in range(4):
            for j in range(3):
                if c & 1 == 0: ad, off = vPR, (3 * w + j) * 1024
                else: ad, off = vPR + 1 + (w >> 1), (w & 1) * PAIR + j * 1024
                a("ds_read_b128 %s, v%d offset:%d" % (vr(64 + 4 * (3 * w + j), 4), ad, off))
        if "lateflags" in OPT and c >= 7 and "nored" not in OPT:
            a("s_waitcnt vmcnt(0)")
            set_flags(c & 1, 4 if c == 8 else 3)
        for i in range(12):
            a("s_waitcnt lgkmcnt(%d)" % (11 - i))
            a("s_mov_b32 s%d, %d" % (sT0, c * 12288 + i * 1024))
            if "nostore" not in OPT: a("buffer_store_dwordx4 %s, v%d, %s, s%d offen%s" % (vr(64 + 4 * i, 4), vPO, srd(sP), sT0, P_FLAGS))
        if "lateflags" not in OPT and c >= 2 and "nored" not in OPT:
            a("s_waitcnt vmcnt(12)")
            set_flags(c - 2, 1)
        if c >= 7 and "nored" not in OPT:
            a("s_waitcnt vmcnt(%d)" % (0 if "lateflags" in OPT else 1)) if False else a("s_waitcnt vmcnt(0)")
            set_flags(c, 1)
        a("%s:" % sk)
    a("s_cmp_eq_u32 s%d, 0" % sLW); a("s_cselect_b32 s%d, 7, 6" % sCNT)
    a("s_branch L_reduce")

KSCHED = {2: [("K", 0)], 5: [("V", 0)], 8: [("K", 1)], 11: [("V", 1)], 16: [("K", 2)], 17: [("V", 2)]}

def gen_reducer(a):
    a("L_reduce:")
    if "nored" in OPT:
        a.stamp_wave = 4; stamp_flush(a); a("s_endpgm"); return
    rho = sCNT
    giveup = a.label("Lgiveup"); poll = a.label("Lpoll")
    a("s_mul_i32 s%d, s%d, 54" % (sT0, rho)); a("s_mul_hi_u32 s%d, s%d, %d" % (sT2, sT0, (2**32 + 47) // 48))
    a("v_lshlrev_b32 v9, 2, v1"); a("v_mov_b32 v7, 0x40000000"); a("v_cmp_gt_u32 vcc, 32, v1"); a("s_nop 1"); a("v_cndmask_b32 v9, v7, v9, vcc")
    a("s_lshl_b32 s%d, s%d, 6" % (sT2, sT2))
    a("buffer_load_dword v11, v9, %s, s%d offen sc1" % (srd(sFL), sT2))
    a("v_add_u32 v2, s%d, v1" % sT0)
    a("v_mul_u32_u24 v8, 1366, v2"); a("v_lshrrev_b32 v8, 16, v8")
    a("v_mul_u32_u24 v5, 48, v8"); a("v_sub_u32 v2, v2, v5")
    a("s_mul_i32 s%d, s%d, 48" % (sT1, sH)); a("v_add_u32 v2, s%d, v2" % sT1)
    a("v_mul_u32_u24 v3, 12288, v8"); a("v_lshlrev_b32 v5, 4, v2"); a("v_add_u32 v3, v3, v5")
    a("v_cmp_gt_u32 vcc, 54, v1"); a("s_nop 1"); a("v_cndmask_b32 v3, v7, v3, vcc")
    a("v_lshrrev_b32 v4, 6, v2"); a("v_and_b32 v5, 63, v2")
    a("v_cmp_le_u32 s[96:97], 6, v4"); a("s_nop 1"); a("v_cndmask_b32 v6, 0, 1, s[96:97]")
    a("v_mul_u32_u24 v10, 6, v6"); a("v_sub_u32 v4, v4, v10")
    a("v_lshlrev_b32 v4, 4, v4"); a("v_and_b32 v10, 15, v5"); a("v_add_u32 v4, v4, v10"); a("v_mul_u32_u24 v4, 1152, v4")
    a("v_lshlrev_b32 v6, 6, v6"); a("v_lshrrev_b32 v5, 4, v5"); a("v_lshlrev_b32 v5, 3, v5"); a("v_add_u32 v4, v4, v6"); a("v_add_u32 v4, v4, v5")
    a("s_and_b32 s%d, s%d, 7" % (sT1, sB)); a("v_add_u32 v8, s%d, v8" % sT1)
    a("v_cmp_le_u32 s[96:97], 9, v8"); a("s_nop 1"); a("v_cndmask_b32 v6, 0, 9, s[96:97]"); a("v_sub_u32 v8, v8, v6"); a("v_lshlrev_b32 v8, 7, v8"); a("v_add_u32 v4, v4, v8")
    a("v_cndmask_b32 v4, v7, v4, vcc")
    a("s_mov_b32 s%d, 0" % sT3)
    a("s_branch %s_chk" % poll)
    a("%s:" % poll)
    a("buffer_load_dword v11, v9, %s, s%d offen sc1" % (srd(sFL), sT2))
    a("%s_chk:" % poll)
    a("s_waitcnt vmcnt(0)")
    a("v_cmp_eq_u32 vcc, 1, v11")
    a("s_add_u32 s%d, s%d, 1" % (sT3, sT3)); a("s_cmp_gt_u32 s%d, %d" % (sT3, SPIN_MAX)); a("s_cbranch_scc1 %s" % giveup)
    a("s_cmp_eq_u32 vcc_lo, -1"); a("s_cbranch_scc0 %s" % poll)
    a("s_mov_b32 s%d, 0" % sT0)
    for h in range(16):
        a("buffer_load_dwordx4 v[%d:%d], v3, %s, s%d offen%s" % (64 + 4 * h, 67 + 4 * h, srd(sPB), sT0, R_FLAGS))
        if h < 15: a("s_add_u32 s%d, s%d, %d" % (sT0, sT0, PART))
    for h in range(16):
        a("s_waitcnt vmcnt(%d)" % (15 - h))
        for r in range(4):
            src = 64 + 4 * h + r
            if h == 0:
                a("v_lshlrev_b32 v%d, 16, v%d" % (48 + 2 * r, src)); a("v_and_b32 v%d, 0xffff0000, v%d" % (49 + 2 * r, src))
            else:
                a("v_lshlrev_b32 v12, 16, v%d" % src); a("v_and_b32 v13, 0xffff0000, v%d" % src)
                a("v_add_f32 v%d, v%d, v12" % (48 + 2 * r, 48 + 2 * r)); a("v_add_f32 v%d, v%d, v13" % (49 + 2 * r, 49 + 2 * r))
    for r in range(4): a("v_cvt_pk_bf16_f32 v%d, v%d, v%d" % (56 + r, 48 + 2 * r, 49 + 2 * r))
    a("buffer_store_dwordx2 v[56:57], v4, %s, 0 offen%s" % (srd(sOUT), OUT_FLAGS))
    a("buffer_store_dwordx2 v[58:59], v4, %s, 0 offen offset:32%s" % (srd(sOUT), OUT_FLAGS))
    a("%s:" % giveup)
    if STAMP:
        sk = a.label("Lnst"); a("s_cmp_lg_u32 s%d, 4" % sWAVE); a("s_cbranch_scc1 %s" % sk)
        a.stamp_wave = 4; stamp(a, 15); stamp_flush(a)
        a("%s:" % sk)
    a("s_endpgm")
R_FLAGS = " sc1"
OUT_FLAGS = ""
sTASK2 = 101
PB0 = 143360
SPIN_MAX = 200000
sWOP = 70

PF_O_AT = 10
PF_WAVE = 1
PF_FIRST = 4
PF_AT = 0
PF0 = 2
ROTQ = (1, 0, 2, 0)
KROT = (2, 1)
CPF_AT = 11
FIRST_RULE = 1
CMP_SLACK = 6
FLAG_DELAY = 4

def O_(j, db): return (j * 8 + db) * 4
def Q_(j, s): return 96 + (j * 4 + s) * 4
def KF(f): return 144 + 4 * f
def VF(db): return 176 + 4 * db
def S_(par): return 208 + 8 * par
def P_(par): return 224 + 4 * par
def N_(j): return 232 + 4 * j
def L_(j): return 244 + j
vKA, vVA, vT, vT2, vS, vLANE = 247, 248, 252, 253, 254, 255
MF = "v_mfma_f32_16x16x32_bf16"

def interleave(mfmas, fillers):
    out = list(fillers.get(-1, []))
    for i, m in enumerate(mfmas):
        out.append(m); out += fillers.get(i, [])
    return out
def spread(items, slots):
    d = {}; n = len(items)
    for i, it in enumerate(items): d.setdefault(slots[i * len(slots) // n], []).append(it)
    return d
def merge(*ds):
    o = {}
    for d in ds:
        for k, v in d.items(): o.setdefault(k, []).extend(v)
    return o

KORD = [(kb, s) for s in range(4) for kb in range(2)]
def k_read(kb, s, half, ad=None):
    return "ds_read_b128 %s, v%d offset:%d" % (vr(KF(kb * 4 + s), 4), vKA if ad is None else ad, half * 8 * KGRP + kb * 4 * KGRP + s * 64)
def v_reads(db, half):
    A, cc = divmod(db, 4)
    o = half * 8 * VGRP + A * 128
    return ["ds_read_b64_tr_b16 %s, v%d offset:%d" % (vr(VF(db), 2), vVA + cc, o), "ds_read_b64_tr_b16 %s, v%d offset:%d" % (vr(VF(db) + 2, 2), vVA + cc, o + 4 * VGRP)]

TAB = None
def hoist_waits(lines):
    out = []
    for l in lines:
        if l.startswith("s_waitcnt lgkmcnt") and out:
            n = int(l.split("(")[1].split(")")[0])
            k = len(out) - 1; jumped = 0; ok = False
            while k >= 0:
                x = out[k]
                if x.startswith("v_mfma"): ok = True; break
                if x.endswith(":") or x.startswith(("s_cbranch", "s_barrier", "s_waitcnt")): break
                if x.startswith("ds_"): jumped += 1
                k -= 1
            if ok and n - jumped >= 0:
                out.insert(k + 1, "s_waitcnt lgkmcnt(%d)" % (n - jumped)); continue
        out.append(l)
    return out

def gen_compute(a):
    rare = []
    a("v_and_b32 v%d, 63, v0" % vLANE)
    a("s_lshr_b32 s%d, s%d, 1" % (sQI, sWAVE)); a("s_and_b32 s%d, s%d, 1" % (sRH, sWAVE))
    g, rp, c, q = 240, 241, 242, 243
    a("v_lshrrev_b32 v%d, 4, v%d" % (g, vLANE)); a("v_bfe_u32 v%d, v%d, 2, 2" % (rp, vLANE)); a("v_and_b32 v%d, 3, v%d" % (c, vLANE)); a("v_and_b32 v%d, 15, v%d" % (q, vLANE))
    vWA, vXA = 232, 244
    t, t2 = vT, vT2
    a("v_lshlrev_b32 v%d, 3, v%d" % (t, g)); a("v_add_u32 v%d, v%d, v%d" % (t, t, rp)); a("v_lshlrev_b32 v%d, 9, v%d" % (t, t))
    a("v_and_b32 v%d, 1, v%d" % (t2, g)); a("v_lshlrev_b32 v%d, 2, v%d" % (t2, t2)); a("v_add_u32 v%d, v%d, v%d" % (t2, t2, rp)); a("v_lshlrev_b32 v%d, 5, v%d" % (t2, t2))
    a("v_add_u32 v%d, v%d, v%d" % (t, t, t2)); a("v_lshlrev_b32 v%d, 3, v%d" % (t2, c)); a("v_add_u32 v%d, v%d, v%d" % (t, t, t2))
    a("s_lshl_b32 s%d, s%d, 8" % (sT0, sQI)); a("s_add_u32 s%d, s%d, %d" % (sT0, sT0, WBASE)); a("v_add_u32 v%d, s%d, v%d" % (t, sT0, t))
    assert WBASE % 256 == 0 and XBASE % 128 == 0
    for db in range(8): a("v_xor_b32 v%d, %d, v%d" % (vWA + db, db * 32, t))
    a("s_mul_i32 s%d, s%d, %d" % (sT0, sRH, 48 * 128)); a("s_add_u32 s%d, s%d, %d" % (sT0, sT0, XBASE))
    a("v_lshrrev_b32 v%d, 1, v%d" % (t, q)); a("v_xor_b32 v%d, v%d, v%d" % (t, t, g)); a("v_lshlrev_b32 v%d, 4, v%d" % (t, t))
    a("v_lshlrev_b32 v%d, 7, v%d" % (t2, q)); a("v_add_u32 v%d, v%d, v%d" % (t, t, t2)); a("v_add_u32 v%d, s%d, v%d" % (vXA, sT0, t)); a("v_xor_b32 v%d, 64, v%d" % (vXA + 1, vXA))
    a("v_lshrrev_b32 v%d, 2, v%d" % (t, q)); a("v_mul_u32_u24 v%d, %d, v%d" % (t, KGRP, t))
    a("v_and_b32 v%d, 3, v%d" % (t2, q)); a("v_lshlrev_b32 v%d, 8, v%d" % (vKA, t2)); a("v_add_u32 v%d, v%d, v%d" % (t, t, vKA))
    a("v_xor_b32 v%d, v%d, v%d" % (t2, t2, g)); a("v_lshlrev_b32 v%d, 4, v%d" % (t2, t2)); a("v_add_u32 v%d, v%d, v%d" % (vKA, t, t2))
    a("v_mul_u32_u24 v%d, %d, v%d" % (t, VGRP, g)); a("v_lshlrev_b32 v%d, 8, v%d" % (t2, rp)); a("v_add_u32 v%d, v%d, v%d" % (t, t, t2))
    a("v_lshlrev_b32 v%d, 3, v%d" % (t2, c)); a("v_add_u32 v%d, v%d, v%d" % (t, t, t2)); a("v_add_u32 v%d, %d, v%d" % (t, VOFF, t))
    for cc in range(4):
        a("v_xor_b32 v%d, %d, v%d" % (t2, cc, rp)); a("v_lshlrev_b32 v%d, 5, v%d" % (t2, t2)); a("v_add_u32 v%d, v%d, v%d" % (vVA + cc, t, t2))
    stamp(a, 0, 10)

    def ABUF(buf, db): return 144 + 32 * buf + 4 * db
    def BBUF(buf, j): return 208 + 12 * buf + 4 * j
    def q_reads(s):
        buf = s & 1; wo = ((s + 2) % 4) * 16384; xo = ((s // 2) % 2) * XSLOT
        r = []
        for j in range(3): r.append("ds_read_b128 %s, v%d offset:%d" % (vr(BBUF(buf, j), 4), vXA + (s & 1), xo + j * 2048))
        for db in range(8):
            r.append("ds_read_b64_tr_b16 %s, v%d offset:%d" % (vr(ABUF(buf, db), 2), vWA + db, wo))
            r.append("ds_read_b64_tr_b16 %s, v%d offset:%d" % (vr(ABUF(buf, db) + 2, 2), vWA + db, wo + 2048))
        return r
    a("s_barrier")
    for x in q_reads(0): a(x)
    for s in range(18):
        buf = s & 1
        a("s_waitcnt lgkmcnt(0)")
        a("s_barrier")
        mf = []
        for db in range(8):
            for j in range(3):
                cc = "0" if s == 0 else vr(O_(j, db), 4)
                mf.append("%s %s, %s, %s, %s" % (MF, vr(O_(j, db), 4), vr(ABUF(buf, db), 4), vr(BBUF(buf, j), 4), cc))
        rd = q_reads(s + 1) if s < 17 else []
        for x in interleave(mf, spread(rd, list(range(0, 17))) if rd else {}): a(x)
    stamp(a, 1, 11)
    a("s_nop 7")
    a("s_mov_b32 s%d, %s" % (sT0, f32(C_SCALE))); a("s_mov_b32 s%d, s%d" % (sT0 + 1, sT0))
    for j in range(3):
        for s in range(4):
            X, Y, D = O_(j, 2 * s), O_(j, 2 * s + 1), Q_(j, s)
            for r in range(0, 4, 2):
                a("v_pk_mul_f32 %s, %s, s[%d:%d]" % (vr(X + r, 2), vr(X + r, 2), sT0, sT0 + 1)); a("v_pk_mul_f32 %s, %s, s[%d:%d]" % (vr(Y + r, 2), vr(Y + r, 2), sT0, sT0 + 1))
            a("v_cvt_pk_bf16_f32 v%d, v%d, v%d" % (D + 0, X + 0, X + 1)); a("v_cvt_pk_bf16_f32 v%d, v%d, v%d" % (D + 1, X + 2, X + 3))
            a("v_cvt_pk_bf16_f32 v%d, v%d, v%d" % (D + 2, Y + 0, Y + 1)); a("v_cvt_pk_bf16_f32 v%d, v%d, v%d" % (D + 3, Y + 2, Y + 3))
            for r in range(0, 4, 2):
                a("v_mov_b64 %s, 0" % vr(X + r, 2)); a("v_mov_b64 %s, 0" % vr(Y + r, 2))
            a("v_permlane32_swap_b32 v%d, v%d" % (D + 0, D + 2)); a("v_permlane32_swap_b32 v%d, v%d" % (D + 1, D + 3))
            a("s_nop 1")
            a("v_permlane16_swap_b32 v%d, v%d" % (D + 0, D + 2)); a("v_permlane16_swap_b32 v%d, v%d" % (D + 1, D + 3))
    a("s_barrier")
    for kb, s_ in KORD: a(k_read(kb, s_, 0))
    a("s_waitcnt lgkmcnt(0)")
    for j in range(3):
        for kb, s_ in KORD:
            d = 176 + 8 * j + 4 * kb
            a("%s %s, %s, %s, %s" % (MF, vr(d, 4), vr(KF(kb * 4 + s_), 4), vr(Q_(j, s_), 4), "0" if s_ == 0 else vr(d, 4)))
    for r in range(224, 232, 2): a("v_mov_b64 %s, 0" % vr(r, 2))
    for j in range(3): a("v_mov_b32 v%d, 0" % L_(j))
    a("v_mov_b32 v%d, 0" % vS)
    a("s_mov_b32 s%d, %s" % (sTHR, "0x7f800000" if "norare" in OPT else f32(256.0)))
    a("s_mov_b32 s%d, 0" % sSLOT); a("s_mov_b32 s%d, 0" % sDK)
    a("s_mov_b32 s%d, 0x%x" % (sNEG, -3 * PAIR & 0xffffffff))
    a("s_mov_b64 vcc, 0")
    a("s_nop 3")
    for j in range(3):
        S = 176 + 8 * j; t, t2 = 200 + 2 * j, 201 + 2 * j
        a("v_max3_f32 v%d, v%d, v%d, v%d" % (t, S, S + 1, S + 2)); a("v_max3_f32 v%d, v%d, v%d, v%d" % (t2, S + 3, S + 4, S + 5))
        a("v_max3_f32 v%d, v%d, v%d, v%d" % (t, t, S + 6, S + 7)); a("v_max_f32 v%d, v%d, v%d" % (t, t, t2))
    for sw in ("v_permlane32_swap_b32", "v_permlane16_swap_b32"):
        for j in range(3): a("v_mov_b32 v%d, v%d" % (201 + 2 * j, 200 + 2 * j))
        a("s_nop 0")
        for j in range(3): a("%s v%d, v%d" % (sw, 200 + 2 * j, 201 + 2 * j))
        for j in range(3): a("v_max_f32 v%d, v%d, v%d" % (200 + 2 * j, 200 + 2 * j, 201 + 2 * j))
    for j in range(3):
        for i in range(4): a("v_sub_f32 v%d, 0, v%d" % (N_(j) + i, 200 + 2 * j))
    for r in range(176, 208, 2): a("v_mov_b64 %s, 0" % vr(r, 2))
    def qk_mfmas(jn, par):
        m = []
        for kb, s in KORD:
            d = S_(par) + 4 * kb
            cc = vr(N_(jn), 4) if s == 0 else vr(d, 4)
            m.append("%s %s, %s, %s, %s" % (MF, vr(d, 4), vr(KF(kb * 4 + s), 4), vr(Q_(jn, s), 4), cc))
        return m
    def pv_mfmas(jp, par):
        return ["%s %s, %s, %s, %s" % (MF, vr(O_(jp, db), 4), vr(VF(db), 4), vr(P_(par), 4), vr(O_(jp, db), 4)) for db in range(8)]
    for m in qk_mfmas(0, 0): a(m)
    a("s_nop 7")

    def rare_code(st, j, adv):
        par = (3 * st + j) & 1
        S, P = S_(par), P_(par)
        rl, cont = a.label("Lrare"), a.label("Lcont")
        r = Asm()
        r("%s:" % rl)
        if adv: r("v_subrev_u32 v%d, s%d, v%d" % (vT2, sDK, vKA))
        else: r("v_mov_b32 v%d, v%d" % (vT2, vKA))
        for kb in range(2):
            for s in range(4):
                r("ds_read_b128 %s, v%d offset:%d" % (vr(P, 4), vT2, st * 8 * KGRP + kb * 4 * KGRP + s * 64))
                r("s_waitcnt lgkmcnt(0)")
                cc = vr(N_(j), 4) if s == 0 else vr(S + 4 * kb, 4)
                r("%s %s, %s, %s, %s" % (MF, vr(S + 4 * kb, 4), vr(P, 4), vr(Q_(j, s), 4), cc))
                r("s_nop 3")
        r("s_nop 7")
        r("v_max3_f32 v%d, v%d, v%d, v%d" % (vT, S, S + 1, S + 2)); r("v_max3_f32 v%d, v%d, v%d, v%d" % (vT2, S + 3, S + 4, S + 5))
        r("v_max3_f32 v%d, v%d, v%d, v%d" % (vT, vT, S + 6, S + 7)); r("v_max_f32 v%d, v%d, v%d" % (vT, vT, vT2))
        r("v_mov_b32 v%d, v%d" % (vT2, vT)); r("s_nop 1"); r("v_permlane32_swap_b32 v%d, v%d" % (vT, vT2)); r("v_max_f32 v%d, v%d, v%d" % (vT, vT, vT2))
        r("v_mov_b32 v%d, v%d" % (vT2, vT)); r("s_nop 1"); r("v_permlane16_swap_b32 v%d, v%d" % (vT, vT2)); r("v_max_f32 v%d, v%d, v%d" % (vT, vT, vT2))
        r("v_max_f32 v%d, 0, v%d" % (vT, vT))
        r("v_sub_f32 v%d, 0, v%d" % (vT2, vT)); r("v_exp_f32 v%d, v%d" % (vT2, vT2)); r("s_nop 0")
        r("v_mul_f32 v%d, v%d, v%d" % (L_(j), L_(j), vT2))
        for db in range(8):
            for rr in range(4): r("v_mul_f32 v%d, v%d, v%d" % (O_(j, db) + rr, O_(j, db) + rr, vT2))
        for i in range(4): r("v_sub_f32 v%d, v%d, v%d" % (N_(j) + i, N_(j) + i, vT))
        for i in range(8): r("v_sub_f32 v%d, v%d, v%d" % (S + i, S + i, vT))
        for i in range(8): r("v_exp_f32 v%d, v%d" % (S + i, S + i))
        r("s_nop 0")
        r("v_add_f32 v%d, v%d, v%d" % (vS, S, S + 1))
        for i in range(2, 8): r("v_add_f32 v%d, v%d, v%d" % (vS, vS, S + i))
        for i in range(4): r("v_cvt_pk_bf16_f32 v%d, v%d, v%d" % (P + i, S + 2 * i, S + 2 * i + 1))
        r("s_nop 1")
        r("s_branch %s" % cont)
        rare.append(r.text())
        if "nobr" in OPT: return ["%s:" % cont]
        if "sccbr" in OPT: return ["s_cbranch_scc1 %s" % rl, "%s:" % cont]
        return ["s_cbranch_vccnz %s" % rl, "%s:" % cont]

    def block_tab(st, j, prev, qk=True, kload=None, vlo=None, vhi=None, barrier=False, extra=(), pre_extra=(), klate=None):
        par = (3 * st + j) & 1
        jn, jp = (j + 1) % 3, (j - 1) % 3
        S, P = S_(par), P_(par)
        pre = []
        if barrier: pre.append("s_barrier")
        endbr = []
        if "brend" in OPT:
            endbr = rare_code(st, j, st == 1 and j >= 1)
        elif prev is not None: pre += rare_code(*prev)
        pre += list(pre_extra)
        mf = qk_mfmas(jn, par ^ 1) + pv_mfmas(jp, par ^ 1)
        N = {}
        for i in range(8): N["E%d" % i] = "v_exp_f32 v%d, v%d" % (S + i, S + i)
        for i in range(4):
            N["C%d" % i] = "v_cvt_pk_bf16_f32 v%d, v%d, v%d" % (P + i, S + 2 * i, S + 2 * i + 1)
            N["A%d" % i] = "v_add_f32 v%d, v%d, v%d" % (S + 2 * i, S + 2 * i, S + 2 * i + 1)
        N["B0"] = "v_add_f32 v%d, v%d, v%d" % (S, S, S + 2); N["B1"] = "v_add_f32 v%d, v%d, v%d" % (S + 4, S + 4, S + 6)
        N["SUM"] = "v_add_f32 v%d, v%d, v%d" % (vS, S, S + 4); N["CMP"] = "v_cmp_lt_f32 vcc, s%d, v%d" % (sTHR, vS)
        N["L"] = "v_add_f32 v%d, v%d, v%d" % (L_(jp), L_(jp), vS)
        lds = {g: [] for g in range(16)}
        if "nolds" not in OPT:
            if vlo is not None:
                rs = [x for db in range(4) for x in v_reads(db, vlo)]
                for x, g in zip(rs, TAB["vlo"]): lds[g].append(x)
            if vhi is not None:
                rs = [x for db in range(4, 8) for x in v_reads(db, vhi)]
                for x, g in zip(rs, TAB["vhi"]): lds[g].append(x)
            if kload is not None:
                for (kb, s_), g in zip(KORD[:6], TAB["k"]): lds[g].append(k_read(kb, s_, kload))
            if klate is not None:
                for (kb, s_), g in zip(KORD[6:], TAB["klate"]): lds[g].append(k_read(kb, s_, klate))
        out = list(pre)
        ex = list(extra)
        for g in range(16):
            out.append(mf[g])
            if g == 15 and endbr: out += (["s_cmp_lg_u64 vcc, 0"] if "sccbr" in OPT else []) + endbr
            out += lds[g]
            if "nosm" not in OPT: out += [N[n] for n in TAB["valu"].get(g, [])]
            if g == TAB.get("scc_at", 15) and "sccbr" in OPT and "brend" not in OPT: out.append("s_cmp_lg_u64 vcc, 0")
            if g in TAB.get("extra_at", ()) and ex:
                x = ex.pop(0); out += (x if isinstance(x, list) else [x])
        for x in ex: out += (x if isinstance(x, list) else [x])
        return out

    def block(st, j, prev, qk=True, kload=None, vlo=None, vhi=None, barrier=False, extra=(), pre_extra=(), klate=None):
        if TAB is not None and qk: return block_tab(st, j, prev, qk, kload, vlo, vhi, barrier, extra, pre_extra, klate)
        if "brend" in OPT: prev = None
        if "sccbr" in OPT and prev is not None: pre_extra = list(pre_extra)
        par = (3 * st + j) & 1
        jn, jp = (j + 1) % 3, (j - 1) % 3
        S, P = S_(par), P_(par)
        pre = []
        if barrier: pre.append("s_barrier")
        if prev is not None: pre += rare_code(*prev)
        pre += list(pre_extra)
        mf = (qk_mfmas(jn, par ^ 1) if qk else []) + pv_mfmas(jp, par ^ 1)
        nq = 8 if qk else 0
        if not qk: pre.append("s_nop 1")
        it = []
        Ladd = Item("v_add_f32 v%d, v%d, v%d" % (L_(jp), L_(jp), vS), lo=0, hi=6, pri=5)
        E = [Item("v_exp_f32 v%d, v%d" % (S + i, S + i), lo=0, pri=3) for i in range(8)]
        for i in range(1, 8): pass
        A01 = Item("v_add_f32 v%d, v%d, v%d" % (vT, S, S + 1), deps=[E[0], E[1]])
        A23 = Item("v_add_f32 v%d, v%d, v%d" % (vT2, S + 2, S + 3), deps=[E[2], E[3]])
        B_ = Item("v_add_f32 v%d, v%d, v%d" % (vT, vT, vT2), deps=[A01, A23])
        A45 = Item("v_add_f32 v%d, v%d, v%d" % (vT2, S + 4, S + 5), deps=[E[4], E[5], B_])
        C_ = Item("v_add_f32 v%d, v%d, v%d" % (vT, vT, vT2), deps=[A45])
        A67 = Item("v_add_f32 v%d, v%d, v%d" % (vT2, S + 6, S + 7), deps=[E[6], E[7], C_])
        D_ = Item("v_add_f32 v%d, v%d, v%d" % (vS, vT, vT2), deps=[A67, Ladd])
        CMP = Item("v_cmp_lt_f32 vcc, s%d, v%d" % (sTHR, vS), deps=[D_], hi=len(mf) - CMP_SLACK)
        CV = [Item("v_cvt_pk_bf16_f32 v%d, v%d, v%d" % (P + i, S + 2 * i, S + 2 * i + 1), deps=[E[2 * i], E[2 * i + 1]], hi=len(mf) - 2) for i in range(4)]
        if "nosm" in OPT: it = []
        else: it = [Ladd] + E + [A01, A23, B_, A45, C_, A67, D_, CMP] + CV
        if "nolds" not in OPT:
            if vlo is not None:
                for db in range(4): it.append(Item(v_reads(db, vlo), lo=nq + db, pri=4))
            if vhi is not None:
                for db in range(4, 8): it.append(Item(v_reads(db, vhi), lo=0, hi=nq + db - 7, pri=6))
            if kload is not None:
                for i, (kb, s) in enumerate(KORD[:6]): it.append(Item(k_read(kb, s, kload), lo=max(i, 5), hi=min(15, 9 + i), pri=4))
            if klate is not None:
                for i, (kb, s) in list(enumerate(KORD))[6:]: it.append(Item(k_read(kb, s, klate), lo=0, hi=0, pri=7))
        for x in extra: it.append(Item(x, lo=8))
        return schedule(mf, it, pre)

    def tile(last, first_of_all=False):
        L = []
        L += block(0, 0, (1, 2, True), vlo=0)
        L += block(0, 1, (0, 0, False), vhi=0, kload=1)
        L += block(0, 2, (0, 1, False), klate=1)
        L += block(1, 0, (0, 2, False), vlo=1)
        adv = ["s_add_u32 s%d, s%d, 1" % (sSLOT, sSLOT), "s_and_b32 s%d, s%d, 3" % (sSLOT, sSLOT), "s_cmp_eq_u32 s%d, 0" % sSLOT,
               "s_cselect_b32 s%d, s%d, %d" % (sDK, sNEG, PAIR), "v_add_u32 v%d, s%d, v%d" % (vKA, sDK, vKA)]
        L += block(1, 1, (1, 0, False), vhi=1, kload=(None if last else 0), barrier=True, pre_extra=adv)
        L += block(1, 2, (1, 1, True), qk=not last, klate=(None if last else 0),
                   extra=[["v_add_u32 v%d, s%d, v%d" % (vVA + cc, sDK, vVA + cc)] for cc in range(4)])
        return L
    steady = tile(False)
    del rare[:]
    steady2 = tile(False)
    lastt = tile(True)
    if TAB is not None:
        body = hoist_waits(auto_lgkm(steady2, entry_lines=steady, age=TAB.get("age")))
        lastb = hoist_waits(auto_lgkm(lastt, entry_lines=steady, age=TAB.get("age")))
    else:
        body = auto_lgkm(steady2, entry_lines=steady)
        lastb = auto_lgkm(lastt, entry_lines=steady)
    print("   attention steady tile: model %d cycles (%d/unit), %d instrs" % (model_cycles(body), model_cycles(body) / 6, len(body)))
    loop = a.label("Ltile")
    _stamp(a, 6, "s_memtime")
    a("s_mov_b32 s%d, 0" % sCNT)
    a("%s:" % loop)
    for x in body: a(x)
    a("s_add_u32 s%d, s%d, 1" % (sCNT, sCNT)); a("s_cmp_lt_u32 s%d, 15" % sCNT); a("s_cbranch_scc1 %s" % loop)
    _stamp(a, 7, "s_memtime")
    for x in lastb: a(x)
    for x in rare_code(1, 2, True): a(x)
    a("v_add_f32 v%d, v%d, v%d" % (L_(2), L_(2), vS))
    a("s_nop 1")
    for m in pv_mfmas(2, 1): a(m)
    a("s_nop 7")
    stamp(a, 2, 12)
    for j in range(3):
        L = L_(j)
        a("v_mov_b32 v%d, v%d" % (vT, L)); a("s_nop 1"); a("v_permlane32_swap_b32 v%d, v%d" % (L, vT)); a("v_add_f32 v%d, v%d, v%d" % (L, L, vT))
        a("v_mov_b32 v%d, v%d" % (vT, L)); a("s_nop 1"); a("v_permlane16_swap_b32 v%d, v%d" % (L, vT)); a("v_add_f32 v%d, v%d, v%d" % (L, L, vT))
        a("v_rcp_f32 v%d, v%d" % (L, L))
    a("s_nop 1")
    def OA(s, j): return 96 + (s * 3 + j) * 4
    def OB(s, j): return 144 + (s * 3 + j) * 4
    for j in range(3):
        a("v_mov_b32 v%d, v%d" % (vT2, L_(j))); a("v_mov_b32 v%d, v%d" % (vT, L_(j)))
        for s in range(4):
            X, Y, D = O_(j, 2 * s), O_(j, 2 * s + 1), OA(s, j)
            for r in range(0, 4, 2):
                a("v_pk_mul_f32 %s, %s, %s" % (vr(X + r, 2), vr(X + r, 2), vr(vT, 2))); a("v_pk_mul_f32 %s, %s, %s" % (vr(Y + r, 2), vr(Y + r, 2), vr(vT, 2)))
            a("v_cvt_pk_bf16_f32 v%d, v%d, v%d" % (D + 0, X + 0, X + 1)); a("v_cvt_pk_bf16_f32 v%d, v%d, v%d" % (D + 1, X + 2, X + 3))
            a("v_cvt_pk_bf16_f32 v%d, v%d, v%d" % (D + 2, Y + 0, Y + 1)); a("v_cvt_pk_bf16_f32 v%d, v%d, v%d" % (D + 3, Y + 2, Y + 3))
    vA0, vA1 = 240, 241
    a("v_lshlrev_b32 v%d, 4, v%d" % (vT, vLANE))
    a("s_mul_i32 s%d, s%d, 12288" % (sT0, sWAVE)); a("s_add_u32 s%d, s%d, %d" % (sT0, sT0, EXCH)); a("v_add_u32 v%d, s%d, v%d" % (vA0, sT0, vT))
    a("s_xor_b32 s%d, s%d, 2" % (sT2, sWAVE)); a("s_mul_i32 s%d, s%d, 12288" % (sT0, sT2)); a("s_add_u32 s%d, s%d, %d" % (sT0, sT0, EXCH)); a("v_add_u32 v%d, s%d, v%d" % (vA1, sT0, vT))
    a("s_barrier")
    for i in range(12): a("ds_write_b128 v%d, %s offset:%d" % (vA0, vr(96 + 4 * i, 4), i * 1024))
    vAO, vST = 224, 228
    g, rp, c, t = 242, 243, 244, 245
    a("v_lshrrev_b32 v%d, 4, v%d" % (g, vLANE)); a("v_bfe_u32 v%d, v%d, 2, 2" % (rp, vLANE)); a("v_and_b32 v%d, 3, v%d" % (c, vLANE))
    a("v_lshlrev_b32 v%d, 2, v%d" % (t, g)); a("v_add_u32 v%d, v%d, v%d" % (t, t, rp))
    a("v_lshrrev_b32 v%d, 1, v%d" % (g, t)); a("v_and_b32 v%d, 3, v%d" % (g, g)); a("v_lshlrev_b32 v%d, 5, v%d" % (g, g))
    a("v_lshlrev_b32 v%d, 7, v%d" % (t, t)); a("v_add_u32 v%d, v%d, v%d" % (t, t, g)); a("v_lshlrev_b32 v%d, 3, v%d" % (c, c)); a("v_add_u32 v%d, v%d, v%d" % (t, t, c))
    a("s_lshl_b32 s%d, s%d, 6" % (sT0, sQI)); a("v_xor_b32 v%d, s%d, v%d" % (t, sT0, t))
    a("s_lshl_b32 s%d, s%d, 14" % (sT0, sQI)); a("s_xor_b32 s%d, s%d, 16384" % (sT1, sT0))
    a("v_add_u32 v%d, s%d, v%d" % (vAO + 0, sT0, t)); a("v_xor_b32 v%d, 32, v%d" % (vAO + 1, vAO + 0))
    a("v_add_u32 v%d, s%d, v%d" % (vAO + 2, sT1, t)); a("v_xor_b32 v%d, 32, v%d" % (vAO + 3, vAO + 2))
    a("s_mul_i32 s%d, s%d, 6144" % (sT0, sQI)); a("s_mul_i32 s%d, s%d, 3072" % (sT1, sRH)); a("s_add_u32 s%d, s%d, s%d" % (sT0, sT0, sT1))
    a("v_add_u32 v%d, s%d, v%d" % (vST, sT0, vT))
    a("s_waitcnt lgkmcnt(0)")
    a("s_barrier")
    for i in range(12): a("ds_read_b128 %s, v%d offset:%d" % (vr(144 + 4 * i, 4), vA1, i * 1024))
    stamp(a, 3, 13)
    assert PAIR % 256 == 0
    def AF(i): return 192 + 4 * (i % 8)
    def ACC(buf, z, j): return buf * 24 + (z * 3 + j) * 4
    def PK(buf, j): return 48 + buf * 12 + 4 * j
    def a_reads(G):
        c_, kk = divmod(G, 8)
        hs, s = (0, kk) if kk < 4 else (1, kk - 4)
        r = []
        for z in range(2):
            fr = AF(2 * G + z)
            r.append("ds_read_b64_tr_b16 %s, v%d offset:%d" % (vr(fr, 2), vAO + 2 * hs + z, s * 4096))
            r.append("ds_read_b64_tr_b16 %s, v%d offset:%d" % (vr(fr + 2, 2), vAO + 2 * hs + z, s * 4096 + 2048))
        return r
    LOOK = 3
    def slot_delta(c_from): return (-3 * PAIR if (16 + c_from + 1) % 4 == 0 else PAIR) & 0xffffffff
    for G in range(LOOK):
        for x in a_reads(G): a(x)
    pend_epi = []
    vPW = 229
    a("v_lshlrev_b32 v%d, 4, v%d" % (vT, vLANE))
    a("s_mul_i32 s%d, s%d, 3072" % (sT0, sWAVE)); a("s_add_u32 s%d, s%d, %d" % (sT0, sT0, PB0)); a("v_add_u32 v%d, s%d, v%d" % (vPW, sT0, vT))
    a("s_mul_i32 s%d, s%d, %d" % (sT0, sWAVE, PAIR)); a("s_add_u32 s%d, s%d, 32768" % (sT0, sT0)); a("v_add_u32 v%d, s%d, v%d" % (vPW + 1, sT0, vT))
    for c_ in range(9):
        buf = c_ & 1
        for kk in range(8):
            G = c_ * 8 + kk
            hs, s = (0, kk) if kk < 4 else (1, kk - 4)
            Gn = G + LOOK
            pre = []; rd = []; barrier = False
            if Gn < 72:
                cn, kn = divmod(Gn, 8)
                if kn == 0:
                    barrier = True
                    pre += ["v_add_u32 v%d, 0x%x, v%d" % (vAO + 0, slot_delta(cn - 1), vAO + 0), "v_add_u32 v%d, 0x%x, v%d" % (vAO + 1, slot_delta(cn - 1), vAO + 1)]
                if kn == 4 and cn > 0:
                    pre += ["v_add_u32 v%d, 0x%x, v%d" % (vAO + 2, slot_delta(cn - 1), vAO + 2), "v_add_u32 v%d, 0x%x, v%d" % (vAO + 3, slot_delta(cn - 1), vAO + 3)]
                rd = a_reads(Gn)
            elif G == 69: barrier = True
            younger = 4 * min(LOOK - 1, 71 - G)
            a("s_waitcnt lgkmcnt(%d)" % younger)
            if barrier: a("s_barrier")
            for x in pre: a(x)
            mf = []
            for z in range(2):
                for j in range(3):
                    bsrc = OA(s, j) if hs == 0 else OB(s, j)
                    cc = "0" if kk == 0 else vr(ACC(buf, z, j), 4)
                    mf.append("%s %s, %s, %s, %s" % (MF, vr(ACC(buf, z, j), 4), vr(AF(2 * G + z), 4), vr(bsrc, 4), cc))
            fill = spread(rd, [0, 1, 2, 3]) if rd else {}
            if pend_epi and kk >= 1:
                take = pend_epi[:8] if kk == 1 else pend_epi
                pend_epi = pend_epi[len(take):]
                fill = merge(fill, spread(take, [1, 2, 3, 4, 5]))
            for x in interleave(mf, fill): a(x)
        epi = []
        for j in range(3):
            d = PK(buf, j)
            for z in range(2):
                A_ = ACC(buf, z, j)
                epi.append("v_cvt_pk_bf16_f32 v%d, v%d, v%d" % (d + 2 * z, A_, A_ + 1)); epi.append("v_cvt_pk_bf16_f32 v%d, v%d, v%d" % (d + 2 * z + 1, A_ + 2, A_ + 3))
            epi.append("ds_write_b128 v%d, %s offset:%d" % (vPW + buf, vr(d, 4), j * 1024))
        pend_epi = epi
    a("s_nop 7")
    for x in pend_epi: a(x)
    a("s_waitcnt lgkmcnt(0)")
    a("s_barrier")
    stamp(a, 4, 14)
    stamp(a, 5)
    stamp_flush(a)
    a("v_mov_b32 v1, v%d" % vLANE)
    a("s_mov_b32 s%d, s%d" % (sCNT, sWAVE))
    a("s_branch L_reduce")
    for r in rare: a(r)

def mk_srd(a, b, lo, hi, off, size):
    a("s_add_u32 s%d, s%d, s%d" % (b, lo, off)); a("s_addc_u32 s%d, s%d, 0" % (b + 1, hi)); a("s_mov_b32 s%d, %d" % (b + 2, size)); a("s_mov_b32 s%d, 0x20000" % (b + 3))

def gen_k1():
    a = Asm(); a.stamp_wave = 0; a.stamp_tmp = 252
    common_prologue(a, "L_k1_end", 256)
    a("s_and_b32 s%d, s2, 7" % sXCD); a("s_lshr_b32 s%d, s2, 3" % sIDX)
    a("s_and_b32 s%d, s%d, 1" % (sB, sXCD)); a("s_lshl_b32 s%d, s%d, 3" % (sB, sB)); a("s_and_b32 s%d, s%d, 7" % (sT2, sIDX)); a("s_add_u32 s%d, s%d, s%d" % (sB, sB, sT2))
    a("s_lshr_b32 s%d, s%d, 1" % (sH, sXCD)); a("s_lshl_b32 s%d, s%d, 2" % (sH, sH)); a("s_lshr_b32 s%d, s%d, 3" % (sT2, sIDX)); a("s_add_u32 s%d, s%d, s%d" % (sH, sH, sT2))
    a("s_lshl_b32 s%d, s%d, 4" % (sT0, sB)); a("s_add_u32 s%d, s%d, s%d" % (sT0, sT0, sH))
    a("s_lshl_b32 s%d, s%d, 18" % (sT1, sT0))
    mk_srd(a, sK, 6, 7, sT1, 262144); mk_srd(a, sV, 8, 9, sT1, 262144)
    a("s_mul_i32 s%d, s%d, 110592" % (sT1, sB)); mk_srd(a, sX, 4, 5, sT1, 110592)
    a("s_lshl_b32 s%d, s%d, 9" % (sT1, sH)); mk_srd(a, sWQ, 10, 11, sT1, 0); a("s_sub_u32 s%d, 4718592, s%d" % (sWQ + 2, sT1))
    a("s_mul_i32 s%d, s%d, 294912" % (sT1, sH)); mk_srd(a, sWO, 12, 13, sT1, 294912)
    a("s_mul_i32 s%d, s%d, %d" % (sT1, sT0, PART)); a("s_add_u32 s%d, s%d, %d" % (sT1, sT1, WS_PART)); mk_srd(a, sP, 18, 19, sT1, PART)
    a("s_lshr_b32 s%d, s%d, 2" % (sT1, sH)); a("s_lshl_b32 s%d, s%d, 11" % (sT1, sT1)); mk_srd(a, sPF, 10, 11, sT1, 0); a("s_sub_u32 s%d, 4718592, s%d" % (sPF + 2, sT1))
    a("s_lshr_b32 s%d, s%d, 3" % (sT1, sB)); a("s_mul_i32 s%d, s%d, %d" % (sT1, sT1, 8 * 110592)); mk_srd(a, sPF2, 4, 5, sT1, 8 * 110592)
    a("s_mov_b32 s%d, s12" % sWOP); a("s_mov_b32 s%d, s13" % (sWOP + 1))
    a("s_mul_i32 s%d, s%d, 110592" % (sT1, sB)); mk_srd(a, sOUT, 14, 15, sT1, 110592)
    a("s_mul_i32 s%d, s%d, %d" % (sT1, sB, 16 * PART)); a("s_add_u32 s%d, s%d, %d" % (sT1, sT1, WS_PART)); mk_srd(a, sPB, 18, 19, sT1, 16 * PART)
    a("s_mul_i32 s%d, s%d, %d" % (sT1, sB, 9 * 64)); a("s_add_u32 s%d, s%d, %d" % (sT1, sT1, WS_FLAG)); mk_srd(a, sFL, 18, 19, sT1, 9 * 64)
    if STAMP:
        a("s_lshl_b32 s%d, s2, 9" % sT1); a("s_add_u32 s%d, s18, s%d" % (sSTAMP, sT1)); a("s_addc_u32 s%d, s19, 0" % (sSTAMP + 1))
    if "allc" in OPT: a("s_and_b32 s%d, s%d, 3" % (sWAVE, sWAVE))
    a("s_cmp_ge_u32 s%d, 4" % sWAVE); a("s_cbranch_scc1 L_loader")
    gen_compute(a)
    a("L_loader:")
    a.stamp_wave = 4; a.stamp_tmp = 40
    gen_loader(a)
    gen_reducer(a)
    a("L_k1_end:")
    a("s_endpgm")
    return a.text()

def build(fn, stamp=False, opt=()):
    global STAMP, OPT
    STAMP = stamp; OPT = set(opt)
    k1 = gen_k1()
    errs = hazard.check(k1, "k1")
    for e in errs[:10]: print(e)
    if errs: print("k1: %d hazard warnings" % len(errs))
    txt = HEADER + "; @launch grid=(256,1,1) block=(512,1,1) lds=%d\n" % LDS_BYTES
    txt += '.amdgcn_target "amdgcn-amd-amdhsa--gfx950"\n.text\n' + kernel_begin(KNAME) + k1 + '\n.section .rodata,"a"\n.p2align 6\n' + kernel_desc(KNAME, 256, 102, 256)
    open(fn, "w").write(txt)
    print(fn, len(txt), "bytes,", txt.count("\n"), "lines")

if __name__ == "__main__":
    def pieces(start, per):
        d = {}; st = start
        for kind in "KV":
            for lo in range(0, 8, per):
                d.setdefault(st, []).append((kind, 0, lo, lo + per)); st += 1
        return d
    def mk(start, per, i1at):
        d = pieces(start, per)
        d.setdefault(i1at, []).extend([("K", 1), ("V", 1)])
        d.setdefault(19, []).extend([("K", 2), ("V", 2)])
        return d
    PF0 = 0
    O = ["rotq", "nopfq", "notlb"]
    KSCHED = mk(12, 4, 18)
    build("v6.s", False, O); build("v6_st.s", True, ["trace"] + O)
    NL = ["noload", "nored", "norare"] + O
    base = dict(vlo=[8, 9, 10, 11, 12, 13, 14, 15], vhi=[0, 0, 1, 2, 3, 4, 5, 5], k=[6, 7, 8, 9, 10, 11], klate=[0, 1], extra_at=(12, 13, 14, 15), age=3)
    V1 = {0: ["E0"], 1: ["E1"], 2: ["E2", "C0"], 3: ["E3", "A0"], 4: ["E4", "C1"], 5: ["E5", "A1"], 6: ["E6", "B0"], 7: ["E7", "C2"], 8: ["A2", "C3"], 9: ["A3", "L"], 10: ["B1"], 11: ["SUM"], 12: ["CMP"]}
    V2 = {0: ["E0"], 1: ["E1", "L"], 2: ["E2"], 3: ["E3", "C0"], 4: ["E4"], 5: ["E5", "C1"], 6: ["E6"], 7: ["E7", "C2"], 8: ["A0", "A1"], 9: ["C3", ], 10: ["A2", "A3"], 11: ["B0", "B1"], 12: ["SUM"], 13: ["CMP"]}
    V3 = {0: ["E0", "L"], 1: ["E1"], 2: ["E2", "C0"], 3: ["E3"], 4: ["E4", "C1"], 5: ["E5", "A0"], 6: ["E6", "A1"], 7: ["E7", "C2"], 8: ["B0", "A2"], 9: ["C3"], 10: ["A3"], 11: ["B1"], 12: ["SUM"], 13: ["CMP"]}
    V4 = {0: ["E0"], 1: ["E1"], 2: ["E2"], 3: ["E3"], 4: ["E4"], 5: ["E5"], 6: ["E6"], 7: ["E7"], 8: ["C0", "C1"], 9: ["C2", "C3"], 10: ["A0", "A1"], 11: ["A2", "A3"], 12: ["B0", "B1"], 13: ["SUM", "L"], 14: ["CMP"]}
    V4[13] = ["L", "SUM"]
    base2 = dict(base, vhi=[0, 1, 2, 3, 4, 5, 6, 7], k=[8, 9, 10, 11, 12, 13])
    V5 = {0: ["E0"], 1: ["E1"], 2: ["E2"], 3: ["E3"], 4: ["E4"], 5: ["E5"], 6: ["E6"], 7: ["E7"], 8: ["C0", "C1"], 9: ["C2", "C3"], 10: ["A0", "A1"], 11: ["A2", "A3"], 12: ["B0", "B1"], 13: ["L", "SUM"], 14: ["CMP"]}
    V6 = {0: ["E0"], 1: ["E1"], 2: ["E2"], 3: ["E3"], 4: ["E4"], 5: ["E5"], 6: ["E6"], 7: ["E7"], 8: ["C0", "A0"], 9: ["C1", "A1"], 10: ["C2", "A2"], 11: ["C3", "A3"], 12: ["B0", "B1"], 13: ["L", "SUM"], 14: ["CMP"]}
    V7 = {0: ["E0"], 1: ["E1"], 2: ["E2", "C0"], 3: ["E3"], 4: ["E4", "C1"], 5: ["E5"], 6: ["E6", "C2"], 7: ["E7"], 8: ["A0", "A1"], 9: ["C3", "L"], 10: ["A2", "A3"], 11: ["B0", "B1"], 12: ["SUM"], 13: ["CMP"]}
    V8 = {0: ["L", "E0"], 1: ["E1"], 2: ["E2"], 3: ["E3"], 4: ["E4"], 5: ["E5"], 6: ["E6"], 7: ["E7"], 8: ["C0", "C1"], 9: ["C2", "C3"], 10: ["A0", "A1"], 11: ["A2", "A3"], 12: ["B0", "B1"], 13: ["SUM"], 14: ["CMP"]}
    V5e = {0: ["E0"], 1: ["E1"], 2: ["E2"], 3: ["E3"], 4: ["E4"], 5: ["E5"], 6: ["E6"], 7: ["E7"], 8: ["C0", "C1"], 9: ["C2", "C3"], 10: ["A0", "A1"], 11: ["A2", "A3"], 12: ["B0", "B1"], 13: ["L", "SUM"], 14: ["CMP"]}
    V5f = {0: ["E0"], 1: ["E1"], 2: ["E2"], 3: ["E3"], 4: ["E4"], 5: ["E5"], 6: ["E6"], 7: ["E7", "C0"], 8: ["C1", "A0"], 9: ["A1", "C2"], 10: ["C3", "A2"], 11: ["A3", "B0"], 12: ["B1", "L"], 13: ["SUM", "CMP"]}
    Vg = {0: ["E0"], 1: ["E1"], 2: ["E2"], 3: ["E3"], 4: ["E4", "C0"], 5: ["E5", "A0"], 6: ["E6", "C1"], 7: ["E7", "A1"], 8: ["C2", "A2"], 9: ["C3", "A3"], 10: ["B0", "B1"], 11: ["L", "SUM"], 12: ["CMP"]}
    Vh = {0: ["E0"], 1: ["E1"], 2: ["E2"], 3: ["E3"], 4: ["E4"], 5: ["E5"], 6: ["E6", "C0"], 7: ["E7", "C1"], 8: ["A0", "A1"], 9: ["C2", "C3"], 10: ["A2", "A3"], 11: ["B0", "B1"], 12: ["L", "SUM"], 13: ["CMP"]}
    Vi = {0: ["E0"], 1: ["E1"], 2: ["E2"], 3: ["E3"], 4: ["E4"], 5: ["E5"], 6: ["E6"], 7: ["E7"], 8: ["C0", "C1"], 9: ["C2", "C3"], 10: ["A0", "A1", "A2"], 11: ["A3", "B0"], 12: ["B1", "SUM"], 13: ["CMP"], 1: ["E1", "L"]}
    Vj = {0: ["E0", "L"], 1: ["E1"], 2: ["E2"], 3: ["E3"], 4: ["E4"], 5: ["E5"], 6: ["E6"], 7: ["E7", "C0"], 8: ["C1", "A0"], 9: ["A1", "C2"], 10: ["C3", "A2"], 11: ["A3", "B0"], 12: ["B1", "SUM"], 13: ["CMP"]}
    TAB = None
    build("v6.s", False, O); build("v6_st.s", True, ["trace"] + O)
    ROTQ = (2, 1, 4, 1); build("v6_a.s", True, ["trace"] + O)
    ROTQ = (4, 2, 2, 1); build("v6_b.s", True, ["trace"] + O)
    ROTQ = (2, 1, 1, 0); build("v6_c.s", True, ["trace"] + O)
    ROTQ = (3, 2, 0, 0); build("v6_d.s", True, ["trace"] + O)
```

```python
import sys, struct
from asmlib import *
import hazard
from sched import Item, schedule, auto_lgkm, model_cycles

def f32(x): return "0x%08x" % struct.unpack("<I", struct.pack("<f", x))[0]
C_SCALE = 1.4426950408889634 / (128 ** 0.5)

PAIR = 35840
KGRP, VGRP = 1088, 1152
VOFF = 16 * KGRP
WBASE = 2 * PAIR
XBASE = WBASE + 4 * 16384
XSLOT = 12288
EXCH = 3 * PAIR
LDS_BYTES = 163840
PART = 108 * 1024
WS_PART = 1 << 20
WS_FLAG = 1 << 19
KNAME = 'standalone__gqa_block_cached__near_ridge_kernel'
OPT = set()
STAMP = False

sK, sV, sX, sWQ, sWO, sP = 20, 24, 28, 32, 36, 40
sWAVE, sB, sH, sLW = 44, 45, 46, 47
sT0, sT1, sT2, sT3 = 48, 49, 50, 51
sLWK, sLW3072, sLWV, sLW4096 = 52, 53, 59, 66
sTHR, sCNT, sDK, sNEG, sSLOT = 54, 55, 56, 57, 58
sSTAMP = 60
sTM = 62
sQI, sRH = 64, 65
sXCD, sIDX = 67, 68
sPF = 72
sPF2 = 76
sFL = 8
sPB = 4
sOUT = 12
def srd(b): return "s[%d:%d]" % (b, b + 3)
def vr(b, n=1): return "v%d" % b if n == 1 else "v[%d:%d]" % (b, b + n - 1)

def _stamp(a, idx, instr):
    if not STAMP: return
    a("%s s[%d:%d]" % (instr, sTM, sTM + 1)); a("s_waitcnt lgkmcnt(0)")
    if a.stamp_wave == 0: a("s_mov_b32 s%d, s%d" % (80 + idx, sTM))
    else: a("v_writelane_b32 v40, s%d, %d" % (sTM, idx))
def stamp(a, idx, cyc=None):
    _stamp(a, idx, "s_memrealtime")
    if cyc is not None: _stamp(a, cyc, "s_memtime")
DBG_WG = 37
def stamp_flush(a):
    if not STAMP: return
    if "dbg" in OPT:
        sk = a.label("Ldbgs")
        a("s_cmp_lg_u32 s2, %d" % DBG_WG); a("s_cbranch_scc1 %s" % sk)
        a("s_cmp_lg_u32 s%d, %d" % (sWAVE, a.stamp_wave)); a("s_cbranch_scc1 %s" % sk)
        a("v_mov_b32 v1, 0")
        if a.stamp_wave == 0:
            for dw, (j, j0) in zip((1, 2, 3, 5, 6, 7, 9, 10, 11), ((1, 0), (2, 0), (3, 0), (4, 0), (11, 10), (12, 11), (13, 12), (14, 13), (7, 6))):
                a("s_sub_u32 s%d, s%d, s%d" % (sT0, 80 + j, 80 + j0)); a("v_mov_b32 v2, s%d" % sT0); a("global_store_dword v1, v2, s[16:17] offset:%d" % (4 * dw))
        else:
            a("v_readlane_b32 s%d, v40, 15" % sT0); a("v_readlane_b32 s%d, v40, 16" % sT1); a("s_nop 3"); a("s_sub_u32 s%d, s%d, s%d" % (sT0, sT0, sT1)); a("v_mov_b32 v2, s%d" % sT0)
            a("global_store_dword v1, v2, s[16:17] offset:52")
            a("v_readlane_b32 s%d, v40, 36" % sT0); a("s_nop 3"); a("s_sub_u32 s%d, s%d, s%d" % (sT0, sT0, sT1)); a("v_mov_b32 v2, s%d" % sT0)
            a("global_store_dword v1, v2, s[16:17] offset:56")
        a("%s:" % sk)
        return
    sk = a.label("Lst")
    a("s_cmp_lg_u32 s%d, %d" % (sWAVE, a.stamp_wave)); a("s_cbranch_scc1 %s" % sk)
    if a.stamp_wave == 0:
        a("v_mov_b32 v1, 0")
        for i in range(16):
            if i in (8, 9, 15): continue
            a("v_mov_b32 v2, s%d" % (80 + i)); a("global_store_dword v1, v2, s[%d:%d] offset:%d" % (sSTAMP, sSTAMP + 1, 4 * i))
    else:
        a("v_and_b32 v2, 63, v0"); a("v_lshlrev_b32 v3, 2, v2")
        a("v_cmp_lt_u32 vcc, 14, v2"); a("v_cmp_eq_u32 s[96:97], 8, v2"); a("s_or_b64 vcc, vcc, s[96:97]"); a("v_cmp_eq_u32 s[96:97], 9, v2"); a("s_or_b64 vcc, vcc, s[96:97]")
        a("s_and_saveexec_b64 s[96:97], vcc")
        a("global_store_dword v3, v40, s[%d:%d]" % (sSTAMP, sSTAMP + 1))
        a("s_mov_b64 exec, s[96:97]")
    a("%s:" % sk)

def common_prologue(a, endlab, nwg):
    a("s_cmp_ge_u32 s2, %d" % nwg); a("s_cbranch_scc1 %s" % endlab)
    a("s_load_dwordx8 s[4:11], s[0:1], 0")
    a("s_load_dwordx4 s[12:15], s[0:1], 32")
    a("s_load_dwordx4 s[16:19], s[0:1], 48")
    a("v_lshrrev_b32 v1, 6, v0")
    a("s_nop 0")
    a("v_readfirstlane_b32 s%d, v1" % sWAVE)
    a("s_waitcnt lgkmcnt(0)")

class VQ:
    def __init__(s): s.q = []
    def issue(s, tag, n=1): s.q += [tag] * n
    def wait(s, tags):
        idx = [i for i, t in enumerate(s.q) if t in tags]
        if not idx: return None
        last = max(idx); n = len(s.q) - 1 - last
        s.q = s.q[last + 1:]
        return min(n, 63)

KV_FLAGS = " nt"
W_FLAGS = ""
O_FLAGS = ""
P_FLAGS = " sc0 sc1"


def gen_loader(a):
    a("s_sub_u32 s%d, s%d, 4" % (sLW, sWAVE))
    a("v_and_b32 v1, 63, v0")
    if STAMP: a("v_mov_b32 v40, 0")
    a("s_cmp_ge_u32 s%d, 2" % sLW); a("s_cbranch_scc1 L_kvloader")
    gen_wloader(a)
    a("L_kvloader:")
    gen_kvloader(a)

def mk_bar(a, q, trace_base=None):
    def bar(tags):
        n = q.wait(tags) if tags else None
        if n is not None and "nowait" not in OPT: a("s_waitcnt vmcnt(%d)" % n)
        if "trace" in OPT and bar.n < 48 and trace_base is not None: stamp(a, 16 + bar.n)
        a("s_barrier")
        bar.n += 1
    bar.n = 0
    return bar

def dma(a, vreg, srdb, soff, imm, flags):
    if "noload" in OPT: return
    a("buffer_load_dwordx4 v%d, %s, s%d offen offset:%d%s lds" % (vreg, srd(srdb), soff, imm, flags))

def emit_pf(a, chunks, lane=1):
    if not chunks: return
    sk = a.label("Lpfq"); skx = a.label("Lpfx")
    a("s_cmp_ge_u32 s%d, 28" % sIDX); a("s_cbranch_scc1 %s" % sk)
    a("s_cmp_ge_u32 s%d, 16" % sIDX); a("s_cbranch_scc1 %s" % skx)
    a("v_lshrrev_b32 v30, 4, v%d" % lane); a("v_and_b32 v31, 15, v%d" % lane)
    a("s_lshl_b32 s%d, s%d, 2" % (sT0, sIDX)); a("v_add_u32 v30, s%d, v30" % sT0); a("v_lshlrev_b32 v30, 13, v30"); a("v_lshlrev_b32 v31, 7, v31"); a("v_add_u32 v30, v30, v31")
    for cp in chunks:
        if isinstance(cp, int): a("s_mov_b32 s%d, %d" % (sT0, cp * 64 * 8192))
        else: a("s_lshl_b32 s%d, s%d, 19" % (sT0, cp[0])); a("s_add_u32 s%d, s%d, %d" % (sT0, sT0, cp[1] * 64 * 8192))
        a("buffer_load_dword v32, v30, %s, s%d offen" % (srd(sPF), sT0))
    a("s_branch %s" % sk)
    a("%s:" % skx)
    a("s_sub_u32 s%d, s%d, 16" % (sT0, sIDX)); a("s_lshl_b32 s%d, s%d, 6" % (sT0, sT0)); a("v_add_u32 v30, s%d, v%d" % (sT0, lane)); a("v_mul_u32_u24 v30, 1152, v30")
    for cp in chunks:
        if isinstance(cp, int): a("s_mov_b32 s%d, %d" % (sT0, cp * 128))
        else: a("s_lshl_b32 s%d, s%d, 7" % (sT0, cp[0])); a("s_add_u32 s%d, s%d, %d" % (sT0, sT0, cp[1] * 128))
        a("buffer_load_dword v32, v30, %s, s%d offen" % (srd(sPF2), sT0))
    a("%s:" % sk)

def code_prefetch(a, lane=1):
    if "nocpf" in OPT: return
    lab = a.label("Lcpf")
    a("s_getpc_b64 s[94:95]")
    a("%s:" % lab)
    a("s_sub_u32 s94, s94, (%s - %s)" % (lab, KNAME)); a("s_subb_u32 s95, s95, 0")
    a("s_lshl_b32 s%d, s%d, 11" % (sT0, sIDX))
    a("v_and_b32 v34, 15, v%d" % lane); a("v_lshlrev_b32 v34, 7, v34"); a("v_add_u32 v34, s%d, v34" % sT0)
    a("v_min_u32 v34, (L_k1_end - %s), v34" % KNAME)
    a("global_load_dword v35, v34, s[94:95]")

def gen_wloader(a):
    vW, vX, vO = 10, 14, 16
    a.stamp_wave = 4
    sA, sBb = sLWK, sLWV
    a("v_lshrrev_b32 v6, 5, v1"); a("v_and_b32 v7, 31, v1")
    a("s_lshl_b32 s%d, s%d, 17" % (sT1, sLW))
    a("v_lshlrev_b32 v8, 13, v6"); a("v_add_u32 v8, s%d, v8" % sT1)
    for var in range(4):
        a("v_add_u32 v5, %d, v6" % (2 * (var & 1) + 4 * (var >> 1))); a("v_lshlrev_b32 v5, 1, v5"); a("v_xor_b32 v5, v5, v7")
        a("v_lshlrev_b32 v5, 4, v5"); a("v_add_u32 v%d, v8, v5" % (vW + var))
    a("v_lshrrev_b32 v6, 3, v1"); a("v_and_b32 v7, 7, v1")
    a("s_mul_i32 s%d, s%d, 48" % (sT1, sLW)); a("v_add_u32 v8, s%d, v6" % sT1); a("v_mul_u32_u24 v8, 1152, v8")
    a("v_lshrrev_b32 v9, 1, v6")
    for i in range(2):
        a("v_add_u32 v5, %d, v9" % (4 * i)); a("v_xor_b32 v5, v5, v7"); a("v_lshlrev_b32 v5, 4, v5"); a("v_add_u32 v%d, v8, v5" % (vX + i))
    a("v_mul_u32_u24 v8, 1152, v6")
    a("v_and_b32 v5, 3, v9"); a("v_lshlrev_b32 v5, 1, v5"); a("v_xor_b32 v5, v5, v7"); a("v_lshlrev_b32 v5, 4, v5"); a("v_add_u32 v%d, v8, v5" % vO)
    a("s_lshl_b32 s%d, s%d, 13" % (sA, sLW))
    a("s_mul_i32 s%d, s%d, 6144" % (sBb, sLW))
    a("s_lshl_b32 s%d, s%d, 14" % (sLW4096, sLW))
    a("s_mul_i32 s%d, s%d, %d" % (sLW3072, sLW, 128 * 1152))
    q = VQ(); bar = mk_bar(a, q, 0)
    sWK, sXK, sOK = 98, 99, 100
    if "rotq" not in OPT:
        a("s_mov_b32 s%d, 0" % sWK); a("s_mov_b32 s%d, 0" % sXK)
        a("s_and_b32 s%d, s%d, 7" % (sT0, sB)); a("s_lshl_b32 s%d, s%d, 7" % (sOK, sT0))
    else:
        A_, SI, B_, SJ = ROTQ
        a("s_and_b32 s%d, s%d, 7" % (sT0, sIDX)); a("s_lshr_b32 s%d, s%d, %d" % (sT0, sT0, SI)); a("s_mul_i32 s%d, s%d, %d" % (sT0, sT0, A_))
        a("s_lshr_b32 s%d, s%d, %d" % (sT1, sIDX, 3 + SJ)); a("s_mul_i32 s%d, s%d, %d" % (sT1, sT1, B_)); a("s_add_u32 s%d, s%d, s%d" % (sT0, sT0, sT1))
        for _ in range(2): a("s_cmp_ge_u32 s%d, 9" % sT0); a("s_cselect_b32 s%d, 9, 0" % sT1); a("s_sub_u32 s%d, s%d, s%d" % (sT0, sT0, sT1))
        a("s_lshl_b32 s%d, s%d, 19" % (sWK, sT0)); a("s_lshl_b32 s%d, s%d, 7" % (sXK, sT0))
        a("s_and_b32 s%d, s%d, 7" % (sT0, sB)); a("s_lshl_b32 s%d, s%d, 7" % (sOK, sT0))
    def adv(reg, step, wrap):
        a("s_add_u32 s%d, s%d, %d" % (reg, reg, step)); a("s_cmp_eq_u32 s%d, %d" % (reg, wrap)); a("s_cselect_b32 s%d, 0, s%d" % (reg, reg))
    def iss_W(s):
        for ii in range(8):
            if ii % 4 == 0: a("s_add_u32 m0, s%d, %d" % (sA, WBASE + ((s + 2) % 4) * 16384 + (ii >> 2) * 4096))
            a("s_add_u32 s%d, s%d, %d" % (sT0, sWK, 16384 * ii - (ii & 3) * 1024))
            dma(a, vW + (ii & 1) + 2 * (ii >> 2), sWQ, sT0, (ii & 3) * 1024, W_FLAGS)
        adv(sWK, 262144, 18 * 262144)
        q.issue("W%d" % s, 8)
    def iss_X(cp):
        for ii in range(6):
            if ii % 4 == 0: a("s_add_u32 m0, s%d, %d" % (sBb, XBASE + (cp % 2) * XSLOT + (ii >> 2) * 4096))
            a("s_add_u32 s%d, s%d, %d" % (sT0, sXK, 9216 * ii - (ii & 3) * 1024))
            dma(a, vX + (ii & 1), sX, sT0, (ii & 3) * 1024, W_FLAGS)
        adv(sXK, 128, 9 * 128)
        q.issue("X%d" % cp, 6)
    def iss_O(c):
        T = 16 + c
        a("s_add_u32 s%d, s%d, s%d" % (sT1, sLW3072, sOK))
        for ii in range(16):
            if ii % 4 == 0: a("s_add_u32 m0, s%d, %d" % (sLW4096, (T % 4) * PAIR + (ii >> 2) * 4096))
            a("s_add_u32 s%d, s%d, %d" % (sT0, sT1, 9216 * ii - (ii & 3) * 1024))
            dma(a, vO, sWO, sT0, (ii & 3) * 1024, O_FLAGS)
        adv(sOK, 128, 9 * 128)
        q.issue("I%d" % T, 16)
    def prefetch_o():
        a("s_lshr_b32 s%d, s%d, 2" % (sT0, sH)); a("s_mul_i32 s%d, s%d, %d" % (sT0, sT0, 4 * 294912))
        a("s_add_u32 s%d, s%d, s%d" % (sPF2, sWOP, sT0)); a("s_addc_u32 s%d, s%d, 0" % (sPF2 + 1, sWOP + 1)); a("s_mov_b32 s%d, %d" % (sPF2 + 2, 4 * 294912)); a("s_mov_b32 s%d, 0x20000" % (sPF2 + 3))
        a("s_lshl_b32 s%d, s%d, 1" % (sT0, sIDX)); a("s_add_u32 s%d, s%d, s%d" % (sT0, sT0, sLW)); a("s_mul_i32 s%d, s%d, 144" % (sT0, sT0))
        a("v_add_u32 v5, s%d, v1" % sT0); a("v_lshlrev_b32 v6, 7, v5")
        a("buffer_load_dword v34, v6, %s, 0 offen" % srd(sPF2))
        a("v_add_u32 v6, 8192, v6"); a("buffer_load_dword v35, v6, %s, 0 offen" % srd(sPF2))
        a("v_add_u32 v6, 8192, v6"); a("v_mov_b32 v7, 0x40000000"); a("v_cmp_gt_u32 vcc, 16, v1"); a("s_nop 1"); a("v_cndmask_b32 v6, v7, v6, vcc")
        a("buffer_load_dword v36, v6, %s, 0 offen" % srd(sPF2))
        q.issue("PF", 3)
    def cpf():
        sk = a.label("Lcp"); a("s_cmp_lg_u32 s%d, 1" % sLW); a("s_cbranch_scc1 %s" % sk); code_prefetch(a); a("%s:" % sk)
    if "cpf0" in OPT: cpf()
    if PF0:
        a("s_mul_i32 s%d, s%d, %d" % (sT2, sLW, PF0))
        emit_pf(a, [(sT2, k) for k in range(PF0)])
    iss_W(0); iss_X(0); iss_W(1); iss_W(2); iss_X(1); iss_W(3)
    for s in range(18):
        bar(["W%d" % s, "X%d" % (s // 2)])
        if s >= 1 and s + 3 <= 17: iss_W(s + 3)
        if s >= 2 and s % 2 == 0 and s // 2 + 1 <= 8: iss_X(s // 2 + 1)
    bar(None)
    bar(None)
    stamp(a, 8)
    for n in range(1, 17):
        bar(["I%d" % n] if n >= 16 else None)
        if n == PF_O_AT and "pfo" in OPT: prefetch_o()
        if n == CPF_AT: cpf()
        if n + 2 >= 16: iss_O(n + 2 - 16)
    a("s_barrier"); a("s_barrier")
    for n in range(17, 27):
        bar((["I%d" % n] + (["I24"] if n == 23 else [])) if n <= 23 else None)
        if n + 2 <= 24: iss_O(n + 2 - 16)
    stamp(a, 9)
    a("s_add_u32 s%d, s%d, 4" % (sCNT, sLW))
    a("s_branch L_reduce")

def gen_kvloader(a):
    vK, vV = 10, 11
    a.stamp_wave = -1
    a("s_sub_u32 s%d, s%d, 2" % (sLW, sLW))
    a("v_lshrrev_b32 v2, 4, v1"); a("v_and_b32 v3, 15, v1")
    a("s_lshl_b32 s%d, s%d, 13" % (sT0, sLW))
    a("v_lshlrev_b32 v4, 8, v2"); a("v_add_u32 v4, s%d, v4" % sT0)
    a("v_xor_b32 v5, v2, v3"); a("v_lshlrev_b32 v5, 4, v5"); a("v_add_u32 v%d, v4, v5" % vK)
    a("v_lshlrev_b32 v5, 1, v2"); a("v_xor_b32 v5, v5, v3"); a("v_lshlrev_b32 v5, 4, v5"); a("v_add_u32 v%d, v4, v5" % vV)
    a("s_mul_i32 s%d, s%d, %d" % (sLWK, sLW, 8 * KGRP)); a("s_mul_i32 s%d, s%d, %d" % (sLWV, sLW, 8 * VGRP))
    sROT = 92
    if "krot" in OPT:
        a("s_mul_i32 s%d, s%d, %d" % (sROT, sXCD, KROT[0])); a("s_mul_i32 s%d, s%d, %d" % (sT0, sIDX, KROT[1])); a("s_add_u32 s%d, s%d, s%d" % (sROT, sROT, sT0))
    q = VQ(); bar = mk_bar(a, q, None)
    def iss(T, isK, lo=0, hi=8):
        for ii in range(lo, hi):
            if "krot" in OPT:
                if ii == lo: a("s_add_u32 s%d, s%d, %d" % (sT2, sROT, T)); a("s_and_b32 s%d, s%d, 15" % (sT2, sT2)); a("s_lshl_b32 s%d, s%d, 14" % (sT2, sT2))
                if ii % 4 == 0 or ii == lo: a("s_add_u32 s%d, s%d, %d" % (sT0, sT2, (ii >> 2) * 4096))
            elif ii % 4 == 0 or ii == lo: a("s_mov_b32 s%d, %d" % (sT0, T * 16384 + (ii >> 2) * 4096))
            grp = KGRP if isK else VGRP
            a("s_add_u32 m0, s%d, %d" % (sLWK if isK else sLWV, (T % 4) * PAIR + (0 if isK else VOFF) + ii * grp - (ii & 3) * 1024))
            if ii % 4: a("s_nop 0")
            else: a("s_nop 0")
            dma(a, vK if isK else vV, sK if isK else sV, sT0, (ii & 3) * 1024, KV_FLAGS)
        q.issue("I%d" % T, hi - lo)
    def prefetch_q():
        sk = a.label("Lpfq"); skx = a.label("Lpfx")
        a("s_cmp_lg_u32 s%d, %d" % (sLW, PF_WAVE)); a("s_cbranch_scc1 %s" % sk)
        a("s_cmp_ge_u32 s%d, 28" % sIDX); a("s_cbranch_scc1 %s" % sk)
        a("s_cmp_ge_u32 s%d, 16" % sIDX); a("s_cbranch_scc1 %s" % skx)
        a("s_lshl_b32 s%d, s%d, 2" % (sT0, sIDX)); a("v_add_u32 v5, s%d, v2" % sT0); a("v_lshlrev_b32 v5, 13, v5"); a("v_lshlrev_b32 v6, 7, v3"); a("v_add_u32 v5, v5, v6")
        for cp in range(PF_FIRST, 9):
            a("s_mov_b32 s%d, %d" % (sT0, cp * 64 * 8192)); a("buffer_load_dword v%d, v5, %s, s%d offen" % (20 + cp, srd(sPF), sT0))
        a("s_branch %s" % sk)
        a("%s:" % skx)
        a("s_sub_u32 s%d, s%d, 16" % (sT0, sIDX)); a("s_lshl_b32 s%d, s%d, 6" % (sT0, sT0)); a("v_add_u32 v5, s%d, v1" % sT0); a("v_mul_u32_u24 v5, 1152, v5")
        for cp in range(PF_FIRST, 9):
            a("s_mov_b32 s%d, %d" % (sT0, cp * 128)); a("buffer_load_dword v%d, v5, %s, s%d offen" % (20 + cp, srd(sPF2), sT0))
        a("%s:" % sk)
    def clear_flags():
        sk = a.label("Lclr")
        a("s_cmp_lg_u32 s%d, 1" % sLW); a("s_cbranch_scc1 %s" % sk)
        a("v_mov_b32 v20, 0")
        a("s_lshl_b32 s%d, s%d, 2" % (sT0, sH))
        a("v_lshlrev_b32 v5, 6, v1"); a("v_add_u32 v5, s%d, v5" % sT0); a("v_mov_b32 v7, 0x40000000"); a("v_cmp_gt_u32 vcc, 9, v1"); a("s_nop 1"); a("v_cndmask_b32 v5, v7, v5, vcc")
        a("buffer_store_dword v20, v5, %s, 0 offen sc0 sc1" % srd(sFL))
        a("s_waitcnt vmcnt(0)")
        a("s_lshl_b32 s%d, s%d, 4" % (sT0, sB)); a("v_mov_b32 v5, s%d" % sT0); a("v_mov_b32 v6, 1")
        a("s_mov_b64 s[96:97], exec"); a("s_mov_b64 exec, 1")
        a("global_atomic_add v5, v6, s[16:17] sc1")
        a("s_mov_b64 exec, s[96:97]")
        a("%s:" % sk)
    if "notlb" not in OPT:
        sk = a.label("Ltlb")
        a("s_cmp_lg_u32 s%d, 0" % sLW); a("s_cbranch_scc1 %s" % sk)
        a("v_mov_b32 v5, 0")
        for i, sr in enumerate((sK, sV, sWO, sP, sOUT)): a("buffer_load_dword v%d, v5, %s, 0 offen nt" % (33 + i, srd(sr)))
        a("v_mul_u32_u24 v5, %d, v1" % (PART // 8)); a("v_lshlrev_b32 v5, 3, v5"); a("v_mov_b32 v7, 0x40000000"); a("v_cmp_gt_u32 vcc, 16, v1"); a("s_nop 1"); a("v_cndmask_b32 v5, v7, v5, vcc")
        a("buffer_load_dword v38, v5, %s, 0 offen nt" % srd(sPB))
        a("%s:" % sk)
    clear_flags()
    if "nopfq" not in OPT and PF_AT < 0: prefetch_q()
    for s in range(18):
        bar(None)
        if "nopfq" not in OPT and PF_AT == s: prefetch_q()
        for e in KSCHED.get(s, []): iss(e[1], e[0] == "K", *e[2:])
    bar(None)
    for e in KSCHED.get(18, []): iss(e[1], e[0] == "K", *e[2:])
    bar(["I0"])
    for e in KSCHED.get(19, []): iss(e[1], e[0] == "K", *e[2:])
    def st6(idx):
        if "trace6" in OPT:
            a("s_memrealtime s[%d:%d]" % (sTM, sTM + 1)); a("s_waitcnt lgkmcnt(0)"); a("v_writelane_b32 v41, s%d, %d" % (sTM, idx))
    if "trace6" in OPT: a("v_mov_b32 v41, 0")
    for n in range(1, 17):
        nn = q.wait(["I%d" % n]) if n < 16 else None
        if nn is not None and "nowait" not in OPT: a("s_waitcnt vmcnt(%d)" % nn)
        st6(3 * n)
        a("s_barrier")
        st6(3 * n + 1)
        if n >= FIRST_RULE and n + 2 < 16: iss(n + 2, True); iss(n + 2, False)
        st6(3 * n + 2)
    if "trace6" in OPT:
        sk = a.label("Lt6"); a("s_cmp_lg_u32 s%d, 0" % sLW); a("s_cbranch_scc1 %s" % sk)
        a("v_lshlrev_b32 v42, 2, v1"); a("global_store_dword v42, v41, s[%d:%d] offset:256" % (sSTAMP, sSTAMP + 1)); a("%s:" % sk)
    if "nored" not in OPT:
        sk = a.label("Ldbg"); lp = a.label("Ldbgw")
        a("s_cmp_lg_u32 s%d, 0" % sLW); a("s_cbranch_scc1 %s" % sk)
        a("s_lshl_b32 s%d, s%d, 4" % (sT0, sB)); a("v_mov_b32 v10, s%d" % sT0); a("s_mov_b32 s%d, 0" % sT3)
        a("%s:" % lp)
        a("global_load_dword v12, v10, s[16:17] sc1"); a("s_waitcnt vmcnt(0)"); a("v_readfirstlane_b32 s%d, v12" % sT1)
        a("s_add_u32 s%d, s%d, 1" % (sT3, sT3)); a("s_cmp_gt_u32 s%d, %d" % (sT3, SPIN_MAX)); a("s_cbranch_scc1 %s" % sk)
        a("s_cmp_lt_u32 s%d, 16" % sT1); a("s_cbranch_scc1 %s" % lp)
        a("%s:" % sk)
    a("s_barrier"); a("s_barrier")
    vPR, vPO, vF, vOne = 20, 24, 25, 26
    a("v_lshlrev_b32 v%d, 4, v1" % vPO)
    a("v_add_u32 v%d, %d, v%d" % (vPR, PB0, vPO)); a("v_add_u32 v%d, %d, v%d" % (vPR + 1, 32768, vPO)); a("v_add_u32 v%d, %d, v%d" % (vPR + 2, 2 * PAIR + 32768, vPO))
    a("v_mov_b32 v%d, 1" % vOne)
    def set_flags(first, n):
        a("v_lshlrev_b32 v%d, 7, v1" % vF); a("s_lshl_b32 s%d, s%d, 2" % (sT0, sH)); a("s_add_u32 s%d, s%d, %d" % (sT0, sT0, first * 64)); a("v_add_u32 v%d, s%d, v%d" % (vF, sT0, vF))
        a("v_mov_b32 v7, 0x40000000"); a("v_cmp_gt_u32 vcc, %d, v1" % n); a("s_nop 1"); a("v_cndmask_b32 v%d, v7, v%d, vcc" % (vF, vF))
        a("buffer_store_dword v%d, v%d, %s, 0 offen sc0 sc1" % (vOne, vF, srd(sFL)))
    for n in range(17, 27):
        a("s_barrier")
        c = n - 18
        if c < 0: continue
        sk = a.label("Lsto")
        a("s_cmp_lg_u32 s%d, %d" % (sLW, c & 1)); a("s_cbranch_scc1 %s" % sk)
        for w in range(4):
            for j in range(3):
                if c & 1 == 0: ad, off = vPR, (3 * w + j) * 1024
                else: ad, off = vPR + 1 + (w >> 1), (w & 1) * PAIR + j * 1024
                a("ds_read_b128 %s, v%d offset:%d" % (vr(64 + 4 * (3 * w + j), 4), ad, off))
        if "lateflags" in OPT and c >= 7 and "nored" not in OPT:
            a("s_waitcnt vmcnt(0)")
            set_flags(c & 1, 4 if c == 8 else 3)
        for i in range(12):
            a("s_waitcnt lgkmcnt(%d)" % (11 - i))
            a("s_mov_b32 s%d, %d" % (sT0, c * 12288 + i * 1024))
            if "nostore" not in OPT: a("buffer_store_dwordx4 %s, v%d, %s, s%d offen%s" % (vr(64 + 4 * i, 4), vPO, srd(sP), sT0, P_FLAGS))
        if "lateflags" not in OPT and c >= 2 and "nored" not in OPT:
            a("s_waitcnt vmcnt(12)")
            set_flags(c - 2, 1)
        if c >= 7 and "nored" not in OPT:
            a("s_waitcnt vmcnt(%d)" % (0 if "lateflags" in OPT else 1)) if False else a("s_waitcnt vmcnt(0)")
            set_flags(c, 1)
        a("%s:" % sk)
    a("s_cmp_eq_u32 s%d, 0" % sLW); a("s_cselect_b32 s%d, 7, 6" % sCNT)
    a("s_branch L_reduce")

KSCHED = {2: [("K", 0)], 5: [("V", 0)], 8: [("K", 1)], 11: [("V", 1)], 16: [("K", 2)], 17: [("V", 2)]}

def gen_reducer(a):
    a("L_reduce:")
    if "nored" in OPT:
        a.stamp_wave = 4; stamp_flush(a); a("s_endpgm"); return
    rho = sCNT
    giveup = a.label("Lgiveup"); poll = a.label("Lpoll")
    a("s_mul_i32 s%d, s%d, 54" % (sT0, rho)); a("s_mul_hi_u32 s%d, s%d, %d" % (sT2, sT0, (2**32 + 47) // 48))
    a("v_lshlrev_b32 v9, 2, v1"); a("v_mov_b32 v7, 0x40000000"); a("v_cmp_gt_u32 vcc, 32, v1"); a("s_nop 1"); a("v_cndmask_b32 v9, v7, v9, vcc")
    a("s_lshl_b32 s%d, s%d, 6" % (sT2, sT2))
    a("buffer_load_dword v11, v9, %s, s%d offen sc1" % (srd(sFL), sT2))
    a("v_add_u32 v2, s%d, v1" % sT0)
    a("v_mul_u32_u24 v8, 1366, v2"); a("v_lshrrev_b32 v8, 16, v8")
    a("v_mul_u32_u24 v5, 48, v8"); a("v_sub_u32 v2, v2, v5")
    a("s_mul_i32 s%d, s%d, 48" % (sT1, sH)); a("v_add_u32 v2, s%d, v2" % sT1)
    a("v_mul_u32_u24 v3, 12288, v8"); a("v_lshlrev_b32 v5, 4, v2"); a("v_add_u32 v3, v3, v5")
    a("v_cmp_gt_u32 vcc, 54, v1"); a("s_nop 1"); a("v_cndmask_b32 v3, v7, v3, vcc")
    a("v_lshrrev_b32 v4, 6, v2"); a("v_and_b32 v5, 63, v2")
    a("v_cmp_le_u32 s[96:97], 6, v4"); a("s_nop 1"); a("v_cndmask_b32 v6, 0, 1, s[96:97]")
    a("v_mul_u32_u24 v10, 6, v6"); a("v_sub_u32 v4, v4, v10")
    a("v_lshlrev_b32 v4, 4, v4"); a("v_and_b32 v10, 15, v5"); a("v_add_u32 v4, v4, v10"); a("v_mul_u32_u24 v4, 1152, v4")
    a("v_lshlrev_b32 v6, 6, v6"); a("v_lshrrev_b32 v5, 4, v5"); a("v_lshlrev_b32 v5, 3, v5"); a("v_add_u32 v4, v4, v6"); a("v_add_u32 v4, v4, v5")
    a("s_and_b32 s%d, s%d, 7" % (sT1, sB)); a("v_add_u32 v8, s%d, v8" % sT1)
    a("v_cmp_le_u32 s[96:97], 9, v8"); a("s_nop 1"); a("v_cndmask_b32 v6, 0, 9, s[96:97]"); a("v_sub_u32 v8, v8, v6"); a("v_lshlrev_b32 v8, 7, v8"); a("v_add_u32 v4, v4, v8")
    a("v_cndmask_b32 v4, v7, v4, vcc")
    a("s_mov_b32 s%d, 0" % sT3)
    a("s_branch %s_chk" % poll)
    a("%s:" % poll)
    a("buffer_load_dword v11, v9, %s, s%d offen sc1" % (srd(sFL), sT2))
    a("%s_chk:" % poll)
    a("s_waitcnt vmcnt(0)")
    a("v_cmp_eq_u32 vcc, 1, v11")
    a("s_add_u32 s%d, s%d, 1" % (sT3, sT3)); a("s_cmp_gt_u32 s%d, %d" % (sT3, SPIN_MAX)); a("s_cbranch_scc1 %s" % giveup)
    a("s_cmp_eq_u32 vcc_lo, -1"); a("s_cbranch_scc0 %s" % poll)
    a("s_mov_b32 s%d, 0" % sT0)
    for h in range(16):
        a("buffer_load_dwordx4 v[%d:%d], v3, %s, s%d offen%s" % (64 + 4 * h, 67 + 4 * h, srd(sPB), sT0, R_FLAGS))
        if h < 15: a("s_add_u32 s%d, s%d, %d" % (sT0, sT0, PART))
    for h in range(16):
        a("s_waitcnt vmcnt(%d)" % (15 - h))
        for r in range(4):
            src = 64 + 4 * h + r
            if h == 0:
                a("v_lshlrev_b32 v%d, 16, v%d" % (48 + 2 * r, src)); a("v_and_b32 v%d, 0xffff0000, v%d" % (49 + 2 * r, src))
            else:
                a("v_lshlrev_b32 v12, 16, v%d" % src); a("v_and_b32 v13, 0xffff0000, v%d" % src)
                a("v_add_f32 v%d, v%d, v12" % (48 + 2 * r, 48 + 2 * r)); a("v_add_f32 v%d, v%d, v13" % (49 + 2 * r, 49 + 2 * r))
    for r in range(4): a("v_cvt_pk_bf16_f32 v%d, v%d, v%d" % (56 + r, 48 + 2 * r, 49 + 2 * r))
    a("buffer_store_dwordx2 v[56:57], v4, %s, 0 offen%s" % (srd(sOUT), OUT_FLAGS))
    a("buffer_store_dwordx2 v[58:59], v4, %s, 0 offen offset:32%s" % (srd(sOUT), OUT_FLAGS))
    a("%s:" % giveup)
    if STAMP:
        sk = a.label("Lnst"); a("s_cmp_lg_u32 s%d, 4" % sWAVE); a("s_cbranch_scc1 %s" % sk)
        a.stamp_wave = 4; stamp(a, 15); stamp_flush(a)
        a("%s:" % sk)
    a("s_endpgm")
R_FLAGS = " sc1"
OUT_FLAGS = ""
sTASK2 = 101
PB0 = 143360
SPIN_MAX = 200000
sWOP = 70

PF_O_AT = 10
PF_WAVE = 1
PF_FIRST = 4
PF_AT = 0
PF0 = 2
ROTQ = (1, 0, 2, 0)
KROT = (2, 1)
CPF_AT = 11
FIRST_RULE = 1
CMP_SLACK = 6
FLAG_DELAY = 4

def O_(j, db): return (j * 8 + db) * 4
def Q_(j, s): return 96 + (j * 4 + s) * 4
def KF(f): return 144 + 4 * f
def VF(db): return 176 + 4 * db
def S_(par): return 208 + 8 * par
def P_(par): return 224 + 4 * par
def N_(j): return 232 + 4 * j
def L_(j): return 244 + j
vKA, vVA, vT, vT2, vS, vLANE = 247, 248, 252, 253, 254, 255
MF = "v_mfma_f32_16x16x32_bf16"

def interleave(mfmas, fillers):
    out = list(fillers.get(-1, []))
    for i, m in enumerate(mfmas):
        out.append(m); out += fillers.get(i, [])
    return out
def spread(items, slots):
    d = {}; n = len(items)
    for i, it in enumerate(items): d.setdefault(slots[i * len(slots) // n], []).append(it)
    return d
def merge(*ds):
    o = {}
    for d in ds:
        for k, v in d.items(): o.setdefault(k, []).extend(v)
    return o

KORD = [(kb, s) for s in range(4) for kb in range(2)]
def k_read(kb, s, half, ad=None):
    return "ds_read_b128 %s, v%d offset:%d" % (vr(KF(kb * 4 + s), 4), vKA if ad is None else ad, half * 8 * KGRP + kb * 4 * KGRP + s * 64)
def v_reads(db, half):
    A, cc = divmod(db, 4)
    o = half * 8 * VGRP + A * 128
    return ["ds_read_b64_tr_b16 %s, v%d offset:%d" % (vr(VF(db), 2), vVA + cc, o), "ds_read_b64_tr_b16 %s, v%d offset:%d" % (vr(VF(db) + 2, 2), vVA + cc, o + 4 * VGRP)]

TAB = None
def hoist_waits(lines):
    out = []
    for l in lines:
        if l.startswith("s_waitcnt lgkmcnt") and out:
            n = int(l.split("(")[1].split(")")[0])
            k = len(out) - 1; jumped = 0; ok = False
            while k >= 0:
                x = out[k]
                if x.startswith("v_mfma"): ok = True; break
                if x.endswith(":") or x.startswith(("s_cbranch", "s_barrier", "s_waitcnt")): break
                if x.startswith("ds_"): jumped += 1
                k -= 1
            if ok and n - jumped >= 0:
                out.insert(k + 1, "s_waitcnt lgkmcnt(%d)" % (n - jumped)); continue
        out.append(l)
    return out

def gen_compute(a):
    rare = []
    a("v_and_b32 v%d, 63, v0" % vLANE)
    a("s_lshr_b32 s%d, s%d, 1" % (sQI, sWAVE)); a("s_and_b32 s%d, s%d, 1" % (sRH, sWAVE))
    g, rp, c, q = 240, 241, 242, 243
    a("v_lshrrev_b32 v%d, 4, v%d" % (g, vLANE)); a("v_bfe_u32 v%d, v%d, 2, 2" % (rp, vLANE)); a("v_and_b32 v%d, 3, v%d" % (c, vLANE)); a("v_and_b32 v%d, 15, v%d" % (q, vLANE))
    vWA, vXA = 232, 244
    t, t2 = vT, vT2
    a("v_lshlrev_b32 v%d, 3, v%d" % (t, g)); a("v_add_u32 v%d, v%d, v%d" % (t, t, rp)); a("v_lshlrev_b32 v%d, 9, v%d" % (t, t))
    a("v_and_b32 v%d, 1, v%d" % (t2, g)); a("v_lshlrev_b32 v%d, 2, v%d" % (t2, t2)); a("v_add_u32 v%d, v%d, v%d" % (t2, t2, rp)); a("v_lshlrev_b32 v%d, 5, v%d" % (t2, t2))
    a("v_add_u32 v%d, v%d, v%d" % (t, t, t2)); a("v_lshlrev_b32 v%d, 3, v%d" % (t2, c)); a("v_add_u32 v%d, v%d, v%d" % (t, t, t2))
    a("s_lshl_b32 s%d, s%d, 8" % (sT0, sQI)); a("s_add_u32 s%d, s%d, %d" % (sT0, sT0, WBASE)); a("v_add_u32 v%d, s%d, v%d" % (t, sT0, t))
    assert WBASE % 256 == 0 and XBASE % 128 == 0
    for db in range(8): a("v_xor_b32 v%d, %d, v%d" % (vWA + db, db * 32, t))
    a("s_mul_i32 s%d, s%d, %d" % (sT0, sRH, 48 * 128)); a("s_add_u32 s%d, s%d, %d" % (sT0, sT0, XBASE))
    a("v_lshrrev_b32 v%d, 1, v%d" % (t, q)); a("v_xor_b32 v%d, v%d, v%d" % (t, t, g)); a("v_lshlrev_b32 v%d, 4, v%d" % (t, t))
    a("v_lshlrev_b32 v%d, 7, v%d" % (t2, q)); a("v_add_u32 v%d, v%d, v%d" % (t, t, t2)); a("v_add_u32 v%d, s%d, v%d" % (vXA, sT0, t)); a("v_xor_b32 v%d, 64, v%d" % (vXA + 1, vXA))
    a("v_lshrrev_b32 v%d, 2, v%d" % (t, q)); a("v_mul_u32_u24 v%d, %d, v%d" % (t, KGRP, t))
    a("v_and_b32 v%d, 3, v%d" % (t2, q)); a("v_lshlrev_b32 v%d, 8, v%d" % (vKA, t2)); a("v_add_u32 v%d, v%d, v%d" % (t, t, vKA))
    a("v_xor_b32 v%d, v%d, v%d" % (t2, t2, g)); a("v_lshlrev_b32 v%d, 4, v%d" % (t2, t2)); a("v_add_u32 v%d, v%d, v%d" % (vKA, t, t2))
    a("v_mul_u32_u24 v%d, %d, v%d" % (t, VGRP, g)); a("v_lshlrev_b32 v%d, 8, v%d" % (t2, rp)); a("v_add_u32 v%d, v%d, v%d" % (t, t, t2))
    a("v_lshlrev_b32 v%d, 3, v%d" % (t2, c)); a("v_add_u32 v%d, v%d, v%d" % (t, t, t2)); a("v_add_u32 v%d, %d, v%d" % (t, VOFF, t))
    for cc in range(4):
        a("v_xor_b32 v%d, %d, v%d" % (t2, cc, rp)); a("v_lshlrev_b32 v%d, 5, v%d" % (t2, t2)); a("v_add_u32 v%d, v%d, v%d" % (vVA + cc, t, t2))
    stamp(a, 0, 10)

    def ABUF(buf, db): return 144 + 32 * buf + 4 * db
    def BBUF(buf, j): return 208 + 12 * buf + 4 * j
    def q_reads(s):
        buf = s & 1; wo = ((s + 2) % 4) * 16384; xo = ((s // 2) % 2) * XSLOT
        r = []
        for j in range(3): r.append("ds_read_b128 %s, v%d offset:%d" % (vr(BBUF(buf, j), 4), vXA + (s & 1), xo + j * 2048))
        for db in range(8):
            r.append("ds_read_b64_tr_b16 %s, v%d offset:%d" % (vr(ABUF(buf, db), 2), vWA + db, wo))
            r.append("ds_read_b64_tr_b16 %s, v%d offset:%d" % (vr(ABUF(buf, db) + 2, 2), vWA + db, wo + 2048))
        return r
    a("s_barrier")
    for x in q_reads(0): a(x)
    for s in range(18):
        buf = s & 1
        a("s_waitcnt lgkmcnt(0)")
        a("s_barrier")
        mf = []
        for db in range(8):
            for j in range(3):
                cc = "0" if s == 0 else vr(O_(j, db), 4)
                mf.append("%s %s, %s, %s, %s" % (MF, vr(O_(j, db), 4), vr(ABUF(buf, db), 4), vr(BBUF(buf, j), 4), cc))
        rd = q_reads(s + 1) if s < 17 else []
        for x in interleave(mf, spread(rd, list(range(0, 17))) if rd else {}): a(x)
    stamp(a, 1, 11)
    a("s_nop 7")
    a("s_mov_b32 s%d, %s" % (sT0, f32(C_SCALE))); a("s_mov_b32 s%d, s%d" % (sT0 + 1, sT0))
    for j in range(3):
        for s in range(4):
            X, Y, D = O_(j, 2 * s), O_(j, 2 * s + 1), Q_(j, s)
            for r in range(0, 4, 2):
                a("v_pk_mul_f32 %s, %s, s[%d:%d]" % (vr(X + r, 2), vr(X + r, 2), sT0, sT0 + 1)); a("v_pk_mul_f32 %s, %s, s[%d:%d]" % (vr(Y + r, 2), vr(Y + r, 2), sT0, sT0 + 1))
            a("v_cvt_pk_bf16_f32 v%d, v%d, v%d" % (D + 0, X + 0, X + 1)); a("v_cvt_pk_bf16_f32 v%d, v%d, v%d" % (D + 1, X + 2, X + 3))
            a("v_cvt_pk_bf16_f32 v%d, v%d, v%d" % (D + 2, Y + 0, Y + 1)); a("v_cvt_pk_bf16_f32 v%d, v%d, v%d" % (D + 3, Y + 2, Y + 3))
            for r in range(0, 4, 2):
                a("v_mov_b64 %s, 0" % vr(X + r, 2)); a("v_mov_b64 %s, 0" % vr(Y + r, 2))
            a("v_permlane32_swap_b32 v%d, v%d" % (D + 0, D + 2)); a("v_permlane32_swap_b32 v%d, v%d" % (D + 1, D + 3))
            a("s_nop 1")
            a("v_permlane16_swap_b32 v%d, v%d" % (D + 0, D + 2)); a("v_permlane16_swap_b32 v%d, v%d" % (D + 1, D + 3))
    a("s_barrier")
    for kb, s_ in KORD: a(k_read(kb, s_, 0))
    a("s_waitcnt lgkmcnt(0)")
    for j in range(3):
        for kb, s_ in KORD:
            d = 176 + 8 * j + 4 * kb
            a("%s %s, %s, %s, %s" % (MF, vr(d, 4), vr(KF(kb * 4 + s_), 4), vr(Q_(j, s_), 4), "0" if s_ == 0 else vr(d, 4)))
    for r in range(224, 232, 2): a("v_mov_b64 %s, 0" % vr(r, 2))
    for j in range(3): a("v_mov_b32 v%d, 0" % L_(j))
    a("v_mov_b32 v%d, 0" % vS)
    a("s_mov_b32 s%d, %s" % (sTHR, "0x7f800000" if "norare" in OPT else f32(256.0)))
    a("s_mov_b32 s%d, 0" % sSLOT); a("s_mov_b32 s%d, 0" % sDK)
    a("s_mov_b32 s%d, 0x%x" % (sNEG, -3 * PAIR & 0xffffffff))
    a("s_mov_b64 vcc, 0")
    a("s_nop 3")
    for j in range(3):
        S = 176 + 8 * j; t, t2 = 200 + 2 * j, 201 + 2 * j
        a("v_max3_f32 v%d, v%d, v%d, v%d" % (t, S, S + 1, S + 2)); a("v_max3_f32 v%d, v%d, v%d, v%d" % (t2, S + 3, S + 4, S + 5))
        a("v_max3_f32 v%d, v%d, v%d, v%d" % (t, t, S + 6, S + 7)); a("v_max_f32 v%d, v%d, v%d" % (t, t, t2))
    for sw in ("v_permlane32_swap_b32", "v_permlane16_swap_b32"):
        for j in range(3): a("v_mov_b32 v%d, v%d" % (201 + 2 * j, 200 + 2 * j))
        a("s_nop 0")
        for j in range(3): a("%s v%d, v%d" % (sw, 200 + 2 * j, 201 + 2 * j))
        for j in range(3): a("v_max_f32 v%d, v%d, v%d" % (200 + 2 * j, 200 + 2 * j, 201 + 2 * j))
    for j in range(3):
        for i in range(4): a("v_sub_f32 v%d, 0, v%d" % (N_(j) + i, 200 + 2 * j))
    for r in range(176, 208, 2): a("v_mov_b64 %s, 0" % vr(r, 2))
    def qk_mfmas(jn, par):
        m = []
        for kb, s in KORD:
            d = S_(par) + 4 * kb
            cc = vr(N_(jn), 4) if s == 0 else vr(d, 4)
            m.append("%s %s, %s, %s, %s" % (MF, vr(d, 4), vr(KF(kb * 4 + s), 4), vr(Q_(jn, s), 4), cc))
        return m
    def pv_mfmas(jp, par):
        return ["%s %s, %s, %s, %s" % (MF, vr(O_(jp, db), 4), vr(VF(db), 4), vr(P_(par), 4), vr(O_(jp, db), 4)) for db in range(8)]
    for m in qk_mfmas(0, 0): a(m)
    a("s_nop 7")

    def rare_code(st, j, adv):
        par = (3 * st + j) & 1
        S, P = S_(par), P_(par)
        rl, cont = a.label("Lrare"), a.label("Lcont")
        r = Asm()
        r("%s:" % rl)
        if adv: r("v_subrev_u32 v%d, s%d, v%d" % (vT2, sDK, vKA))
        else: r("v_mov_b32 v%d, v%d" % (vT2, vKA))
        for kb in range(2):
            for s in range(4):
                r("ds_read_b128 %s, v%d offset:%d" % (vr(P, 4), vT2, st * 8 * KGRP + kb * 4 * KGRP + s * 64))
                r("s_waitcnt lgkmcnt(0)")
                cc = vr(N_(j), 4) if s == 0 else vr(S + 4 * kb, 4)
                r("%s %s, %s, %s, %s" % (MF, vr(S + 4 * kb, 4), vr(P, 4), vr(Q_(j, s), 4), cc))
                r("s_nop 3")
        r("s_nop 7")
        r("v_max3_f32 v%d, v%d, v%d, v%d" % (vT, S, S + 1, S + 2)); r("v_max3_f32 v%d, v%d, v%d, v%d" % (vT2, S + 3, S + 4, S + 5))
        r("v_max3_f32 v%d, v%d, v%d, v%d" % (vT, vT, S + 6, S + 7)); r("v_max_f32 v%d, v%d, v%d" % (vT, vT, vT2))
        r("v_mov_b32 v%d, v%d" % (vT2, vT)); r("s_nop 1"); r("v_permlane32_swap_b32 v%d, v%d" % (vT, vT2)); r("v_max_f32 v%d, v%d, v%d" % (vT, vT, vT2))
        r("v_mov_b32 v%d, v%d" % (vT2, vT)); r("s_nop 1"); r("v_permlane16_swap_b32 v%d, v%d" % (vT, vT2)); r("v_max_f32 v%d, v%d, v%d" % (vT, vT, vT2))
        r("v_max_f32 v%d, 0, v%d" % (vT, vT))
        r("v_sub_f32 v%d, 0, v%d" % (vT2, vT)); r("v_exp_f32 v%d, v%d" % (vT2, vT2)); r("s_nop 0")
        r("v_mul_f32 v%d, v%d, v%d" % (L_(j), L_(j), vT2))
        for db in range(8):
            for rr in range(4): r("v_mul_f32 v%d, v%d, v%d" % (O_(j, db) + rr, O_(j, db) + rr, vT2))
        for i in range(4): r("v_sub_f32 v%d, v%d, v%d" % (N_(j) + i, N_(j) + i, vT))
        for i in range(8): r("v_sub_f32 v%d, v%d, v%d" % (S + i, S + i, vT))
        for i in range(8): r("v_exp_f32 v%d, v%d" % (S + i, S + i))
        r("s_nop 0")
        r("v_add_f32 v%d, v%d, v%d" % (vS, S, S + 1))
        for i in range(2, 8): r("v_add_f32 v%d, v%d, v%d" % (vS, vS, S + i))
        for i in range(4): r("v_cvt_pk_bf16_f32 v%d, v%d, v%d" % (P + i, S + 2 * i, S + 2 * i + 1))
        r("s_nop 1")
        r("s_branch %s" % cont)
        rare.append(r.text())
        if "nobr" in OPT: return ["%s:" % cont]
        if "sccbr" in OPT: return ["s_cbranch_scc1 %s" % rl, "%s:" % cont]
        return ["s_cbranch_vccnz %s" % rl, "%s:" % cont]

    def block_tab(st, j, prev, qk=True, kload=None, vlo=None, vhi=None, barrier=False, extra=(), pre_extra=(), klate=None):
        par = (3 * st + j) & 1
        jn, jp = (j + 1) % 3, (j - 1) % 3
        S, P = S_(par), P_(par)
        pre = []
        if barrier: pre.append("s_barrier")
        endbr = []
        if "brend" in OPT:
            endbr = rare_code(st, j, st == 1 and j >= 1)
        elif prev is not None: pre += rare_code(*prev)
        pre += list(pre_extra)
        mf = qk_mfmas(jn, par ^ 1) + pv_mfmas(jp, par ^ 1)
        N = {}
        for i in range(8): N["E%d" % i] = "v_exp_f32 v%d, v%d" % (S + i, S + i)
        for i in range(4):
            N["C%d" % i] = "v_cvt_pk_bf16_f32 v%d, v%d, v%d" % (P + i, S + 2 * i, S + 2 * i + 1)
            N["A%d" % i] = "v_add_f32 v%d, v%d, v%d" % (S + 2 * i, S + 2 * i, S + 2 * i + 1)
        N["B0"] = "v_add_f32 v%d, v%d, v%d" % (S, S, S + 2); N["B1"] = "v_add_f32 v%d, v%d, v%d" % (S + 4, S + 4, S + 6)
        N["SUM"] = "v_add_f32 v%d, v%d, v%d" % (vS, S, S + 4); N["CMP"] = "v_cmp_lt_f32 vcc, s%d, v%d" % (sTHR, vS)
        N["L"] = "v_add_f32 v%d, v%d, v%d" % (L_(jp), L_(jp), vS)
        lds = {g: [] for g in range(16)}
        if "nolds" not in OPT:
            if vlo is not None:
                rs = [x for db in range(4) for x in v_reads(db, vlo)]
                for x, g in zip(rs, TAB["vlo"]): lds[g].append(x)
            if vhi is not None:
                rs = [x for db in range(4, 8) for x in v_reads(db, vhi)]
                for x, g in zip(rs, TAB["vhi"]): lds[g].append(x)
            if kload is not None:
                for (kb, s_), g in zip(KORD[:6], TAB["k"]): lds[g].append(k_read(kb, s_, kload))
            if klate is not None:
                for (kb, s_), g in zip(KORD[6:], TAB["klate"]): lds[g].append(k_read(kb, s_, klate))
        out = list(pre)
        ex = list(extra)
        for g in range(16):
            out.append(mf[g])
            if g == 15 and endbr: out += (["s_cmp_lg_u64 vcc, 0"] if "sccbr" in OPT else []) + endbr
            out += lds[g]
            if "nosm" not in OPT: out += [N[n] for n in TAB["valu"].get(g, [])]
            if g == TAB.get("scc_at", 15) and "sccbr" in OPT and "brend" not in OPT: out.append("s_cmp_lg_u64 vcc, 0")
            if g in TAB.get("extra_at", ()) and ex:
                x = ex.pop(0); out += (x if isinstance(x, list) else [x])
        for x in ex: out += (x if isinstance(x, list) else [x])
        return out

    def block(st, j, prev, qk=True, kload=None, vlo=None, vhi=None, barrier=False, extra=(), pre_extra=(), klate=None):
        if TAB is not None and qk: return block_tab(st, j, prev, qk, kload, vlo, vhi, barrier, extra, pre_extra, klate)
        if "brend" in OPT: prev = None
        if "sccbr" in OPT and prev is not None: pre_extra = list(pre_extra)
        par = (3 * st + j) & 1
        jn, jp = (j + 1) % 3, (j - 1) % 3
        S, P = S_(par), P_(par)
        pre = []
        if barrier: pre.append("s_barrier")
        if prev is not None: pre += rare_code(*prev)
        pre += list(pre_extra)
        mf = (qk_mfmas(jn, par ^ 1) if qk else []) + pv_mfmas(jp, par ^ 1)
        nq = 8 if qk else 0
        if not qk: pre.append("s_nop 1")
        it = []
        Ladd = Item("v_add_f32 v%d, v%d, v%d" % (L_(jp), L_(jp), vS), lo=0, hi=6, pri=5)
        E = [Item("v_exp_f32 v%d, v%d" % (S + i, S + i), lo=0, pri=3) for i in range(8)]
        for i in range(1, 8): pass
        A01 = Item("v_add_f32 v%d, v%d, v%d" % (vT, S, S + 1), deps=[E[0], E[1]])
        A23 = Item("v_add_f32 v%d, v%d, v%d" % (vT2, S + 2, S + 3), deps=[E[2], E[3]])
        B_ = Item("v_add_f32 v%d, v%d, v%d" % (vT, vT, vT2), deps=[A01, A23])
        A45 = Item("v_add_f32 v%d, v%d, v%d" % (vT2, S + 4, S + 5), deps=[E[4], E[5], B_])
        C_ = Item("v_add_f32 v%d, v%d, v%d" % (vT, vT, vT2), deps=[A45])
        A67 = Item("v_add_f32 v%d, v%d, v%d" % (vT2, S + 6, S + 7), deps=[E[6], E[7], C_])
        D_ = Item("v_add_f32 v%d, v%d, v%d" % (vS, vT, vT2), deps=[A67, Ladd])
        CMP = Item("v_cmp_lt_f32 vcc, s%d, v%d" % (sTHR, vS), deps=[D_], hi=len(mf) - CMP_SLACK)
        CV = [Item("v_cvt_pk_bf16_f32 v%d, v%d, v%d" % (P + i, S + 2 * i, S + 2 * i + 1), deps=[E[2 * i], E[2 * i + 1]], hi=len(mf) - 2) for i in range(4)]
        if "nosm" in OPT: it = []
        else: it = [Ladd] + E + [A01, A23, B_, A45, C_, A67, D_, CMP] + CV
        if "nolds" not in OPT:
            if vlo is not None:
                for db in range(4): it.append(Item(v_reads(db, vlo), lo=nq + db, pri=4))
            if vhi is not None:
                for db in range(4, 8): it.append(Item(v_reads(db, vhi), lo=0, hi=nq + db - 7, pri=6))
            if kload is not None:
                for i, (kb, s) in enumerate(KORD[:6]): it.append(Item(k_read(kb, s, kload), lo=max(i, 5), hi=min(15, 9 + i), pri=4))
            if klate is not None:
                for i, (kb, s) in list(enumerate(KORD))[6:]: it.append(Item(k_read(kb, s, klate), lo=0, hi=0, pri=7))
        for x in extra: it.append(Item(x, lo=8))
        return schedule(mf, it, pre)

    def tile(last, first_of_all=False):
        L = []
        L += block(0, 0, (1, 2, True), vlo=0)
        L += block(0, 1, (0, 0, False), vhi=0, kload=1)
        L += block(0, 2, (0, 1, False), klate=1)
        L += block(1, 0, (0, 2, False), vlo=1)
        adv = ["s_add_u32 s%d, s%d, 1" % (sSLOT, sSLOT), "s_and_b32 s%d, s%d, 3" % (sSLOT, sSLOT), "s_cmp_eq_u32 s%d, 0" % sSLOT,
               "s_cselect_b32 s%d, s%d, %d" % (sDK, sNEG, PAIR), "v_add_u32 v%d, s%d, v%d" % (vKA, sDK, vKA)]
        L += block(1, 1, (1, 0, False), vhi=1, kload=(None if last else 0), barrier=True, pre_extra=adv)
        L += block(1, 2, (1, 1, True), qk=not last, klate=(None if last else 0),
                   extra=[["v_add_u32 v%d, s%d, v%d" % (vVA + cc, sDK, vVA + cc)] for cc in range(4)])
        return L
    steady = tile(False)
    del rare[:]
    steady2 = tile(False)
    lastt = tile(True)
    if TAB is not None:
        body = hoist_waits(auto_lgkm(steady2, entry_lines=steady, age=TAB.get("age")))
        lastb = hoist_waits(auto_lgkm(lastt, entry_lines=steady, age=TAB.get("age")))
    else:
        body = auto_lgkm(steady2, entry_lines=steady)
        lastb = auto_lgkm(lastt, entry_lines=steady)
    print("   attention steady tile: model %d cycles (%d/unit), %d instrs" % (model_cycles(body), model_cycles(body) / 6, len(body)))
    loop = a.label("Ltile")
    _stamp(a, 6, "s_memtime")
    a("s_mov_b32 s%d, 0" % sCNT)
    a("%s:" % loop)
    for x in body: a(x)
    a("s_add_u32 s%d, s%d, 1" % (sCNT, sCNT)); a("s_cmp_lt_u32 s%d, 15" % sCNT); a("s_cbranch_scc1 %s" % loop)
    _stamp(a, 7, "s_memtime")
    for x in lastb: a(x)
    for x in rare_code(1, 2, True): a(x)
    a("v_add_f32 v%d, v%d, v%d" % (L_(2), L_(2), vS))
    a("s_nop 1")
    for m in pv_mfmas(2, 1): a(m)
    a("s_nop 7")
    stamp(a, 2, 12)
    for j in range(3):
        L = L_(j)
        a("v_mov_b32 v%d, v%d" % (vT, L)); a("s_nop 1"); a("v_permlane32_swap_b32 v%d, v%d" % (L, vT)); a("v_add_f32 v%d, v%d, v%d" % (L, L, vT))
        a("v_mov_b32 v%d, v%d" % (vT, L)); a("s_nop 1"); a("v_permlane16_swap_b32 v%d, v%d" % (L, vT)); a("v_add_f32 v%d, v%d, v%d" % (L, L, vT))
        a("v_rcp_f32 v%d, v%d" % (L, L))
    a("s_nop 1")
    def OA(s, j): return 96 + (s * 3 + j) * 4
    def OB(s, j): return 144 + (s * 3 + j) * 4
    for j in range(3):
        a("v_mov_b32 v%d, v%d" % (vT2, L_(j))); a("v_mov_b32 v%d, v%d" % (vT, L_(j)))
        for s in range(4):
            X, Y, D = O_(j, 2 * s), O_(j, 2 * s + 1), OA(s, j)
            for r in range(0, 4, 2):
                a("v_pk_mul_f32 %s, %s, %s" % (vr(X + r, 2), vr(X + r, 2), vr(vT, 2))); a("v_pk_mul_f32 %s, %s, %s" % (vr(Y + r, 2), vr(Y + r, 2), vr(vT, 2)))
            a("v_cvt_pk_bf16_f32 v%d, v%d, v%d" % (D + 0, X + 0, X + 1)); a("v_cvt_pk_bf16_f32 v%d, v%d, v%d" % (D + 1, X + 2, X + 3))
            a("v_cvt_pk_bf16_f32 v%d, v%d, v%d" % (D + 2, Y + 0, Y + 1)); a("v_cvt_pk_bf16_f32 v%d, v%d, v%d" % (D + 3, Y + 2, Y + 3))
    vA0, vA1 = 240, 241
    a("v_lshlrev_b32 v%d, 4, v%d" % (vT, vLANE))
    a("s_mul_i32 s%d, s%d, 12288" % (sT0, sWAVE)); a("s_add_u32 s%d, s%d, %d" % (sT0, sT0, EXCH)); a("v_add_u32 v%d, s%d, v%d" % (vA0, sT0, vT))
    a("s_xor_b32 s%d, s%d, 2" % (sT2, sWAVE)); a("s_mul_i32 s%d, s%d, 12288" % (sT0, sT2)); a("s_add_u32 s%d, s%d, %d" % (sT0, sT0, EXCH)); a("v_add_u32 v%d, s%d, v%d" % (vA1, sT0, vT))
    a("s_barrier")
    for i in range(12): a("ds_write_b128 v%d, %s offset:%d" % (vA0, vr(96 + 4 * i, 4), i * 1024))
    vAO, vST = 224, 228
    g, rp, c, t = 242, 243, 244, 245
    a("v_lshrrev_b32 v%d, 4, v%d" % (g, vLANE)); a("v_bfe_u32 v%d, v%d, 2, 2" % (rp, vLANE)); a("v_and_b32 v%d, 3, v%d" % (c, vLANE))
    a("v_lshlrev_b32 v%d, 2, v%d" % (t, g)); a("v_add_u32 v%d, v%d, v%d" % (t, t, rp))
    a("v_lshrrev_b32 v%d, 1, v%d" % (g, t)); a("v_and_b32 v%d, 3, v%d" % (g, g)); a("v_lshlrev_b32 v%d, 5, v%d" % (g, g))
    a("v_lshlrev_b32 v%d, 7, v%d" % (t, t)); a("v_add_u32 v%d, v%d, v%d" % (t, t, g)); a("v_lshlrev_b32 v%d, 3, v%d" % (c, c)); a("v_add_u32 v%d, v%d, v%d" % (t, t, c))
    a("s_lshl_b32 s%d, s%d, 6" % (sT0, sQI)); a("v_xor_b32 v%d, s%d, v%d" % (t, sT0, t))
    a("s_lshl_b32 s%d, s%d, 14" % (sT0, sQI)); a("s_xor_b32 s%d, s%d, 16384" % (sT1, sT0))
    a("v_add_u32 v%d, s%d, v%d" % (vAO + 0, sT0, t)); a("v_xor_b32 v%d, 32, v%d" % (vAO + 1, vAO + 0))
    a("v_add_u32 v%d, s%d, v%d" % (vAO + 2, sT1, t)); a("v_xor_b32 v%d, 32, v%d" % (vAO + 3, vAO + 2))
    a("s_mul_i32 s%d, s%d, 6144" % (sT0, sQI)); a("s_mul_i32 s%d, s%d, 3072" % (sT1, sRH)); a("s_add_u32 s%d, s%d, s%d" % (sT0, sT0, sT1))
    a("v_add_u32 v%d, s%d, v%d" % (vST, sT0, vT))
    a("s_waitcnt lgkmcnt(0)")
    a("s_barrier")
    for i in range(12): a("ds_read_b128 %s, v%d offset:%d" % (vr(144 + 4 * i, 4), vA1, i * 1024))
    stamp(a, 3, 13)
    assert PAIR % 256 == 0
    def AF(i): return 192 + 4 * (i % 8)
    def ACC(buf, z, j): return buf * 24 + (z * 3 + j) * 4
    def PK(buf, j): return 48 + buf * 12 + 4 * j
    def a_reads(G):
        c_, kk = divmod(G, 8)
        hs, s = (0, kk) if kk < 4 else (1, kk - 4)
        r = []
        for z in range(2):
            fr = AF(2 * G + z)
            r.append("ds_read_b64_tr_b16 %s, v%d offset:%d" % (vr(fr, 2), vAO + 2 * hs + z, s * 4096))
            r.append("ds_read_b64_tr_b16 %s, v%d offset:%d" % (vr(fr + 2, 2), vAO + 2 * hs + z, s * 4096 + 2048))
        return r
    LOOK = 3
    def slot_delta(c_from): return (-3 * PAIR if (16 + c_from + 1) % 4 == 0 else PAIR) & 0xffffffff
    for G in range(LOOK):
        for x in a_reads(G): a(x)
    pend_epi = []
    vPW = 229
    a("v_lshlrev_b32 v%d, 4, v%d" % (vT, vLANE))
    a("s_mul_i32 s%d, s%d, 3072" % (sT0, sWAVE)); a("s_add_u32 s%d, s%d, %d" % (sT0, sT0, PB0)); a("v_add_u32 v%d, s%d, v%d" % (vPW, sT0, vT))
    a("s_mul_i32 s%d, s%d, %d" % (sT0, sWAVE, PAIR)); a("s_add_u32 s%d, s%d, 32768" % (sT0, sT0)); a("v_add_u32 v%d, s%d, v%d" % (vPW + 1, sT0, vT))
    for c_ in range(9):
        buf = c_ & 1
        for kk in range(8):
            G = c_ * 8 + kk
            hs, s = (0, kk) if kk < 4 else (1, kk - 4)
            Gn = G + LOOK
            pre = []; rd = []; barrier = False
            if Gn < 72:
                cn, kn = divmod(Gn, 8)
                if kn == 0:
                    barrier = True
                    pre += ["v_add_u32 v%d, 0x%x, v%d" % (vAO + 0, slot_delta(cn - 1), vAO + 0), "v_add_u32 v%d, 0x%x, v%d" % (vAO + 1, slot_delta(cn - 1), vAO + 1)]
                if kn == 4 and cn > 0:
                    pre += ["v_add_u32 v%d, 0x%x, v%d" % (vAO + 2, slot_delta(cn - 1), vAO + 2), "v_add_u32 v%d, 0x%x, v%d" % (vAO + 3, slot_delta(cn - 1), vAO + 3)]
                rd = a_reads(Gn)
            elif G == 69: barrier = True
            younger = 4 * min(LOOK - 1, 71 - G)
            a("s_waitcnt lgkmcnt(%d)" % younger)
            if barrier: a("s_barrier")
            for x in pre: a(x)
            mf = []
            for z in range(2):
                for j in range(3):
                    bsrc = OA(s, j) if hs == 0 else OB(s, j)
                    cc = "0" if kk == 0 else vr(ACC(buf, z, j), 4)
                    mf.append("%s %s, %s, %s, %s" % (MF, vr(ACC(buf, z, j), 4), vr(AF(2 * G + z), 4), vr(bsrc, 4), cc))
            fill = spread(rd, [0, 1, 2, 3]) if rd else {}
            if pend_epi and kk >= 1:
                take = pend_epi[:8] if kk == 1 else pend_epi
                pend_epi = pend_epi[len(take):]
                fill = merge(fill, spread(take, [1, 2, 3, 4, 5]))
            for x in interleave(mf, fill): a(x)
        epi = []
        for j in range(3):
            d = PK(buf, j)
            for z in range(2):
                A_ = ACC(buf, z, j)
                epi.append("v_cvt_pk_bf16_f32 v%d, v%d, v%d" % (d + 2 * z, A_, A_ + 1)); epi.append("v_cvt_pk_bf16_f32 v%d, v%d, v%d" % (d + 2 * z + 1, A_ + 2, A_ + 3))
            epi.append("ds_write_b128 v%d, %s offset:%d" % (vPW + buf, vr(d, 4), j * 1024))
        pend_epi = epi
    a("s_nop 7")
    for x in pend_epi: a(x)
    a("s_waitcnt lgkmcnt(0)")
    a("s_barrier")
    stamp(a, 4, 14)
    stamp(a, 5)
    stamp_flush(a)
    a("v_mov_b32 v1, v%d" % vLANE)
    a("s_mov_b32 s%d, s%d" % (sCNT, sWAVE))
    a("s_branch L_reduce")
    for r in rare: a(r)

def mk_srd(a, b, lo, hi, off, size):
    a("s_add_u32 s%d, s%d, s%d" % (b, lo, off)); a("s_addc_u32 s%d, s%d, 0" % (b + 1, hi)); a("s_mov_b32 s%d, %d" % (b + 2, size)); a("s_mov_b32 s%d, 0x20000" % (b + 3))

def gen_k1():
    a = Asm(); a.stamp_wave = 0; a.stamp_tmp = 252
    common_prologue(a, "L_k1_end", 256)
    a("s_and_b32 s%d, s2, 7" % sXCD); a("s_lshr_b32 s%d, s2, 3" % sIDX)
    a("s_and_b32 s%d, s%d, 1" % (sB, sXCD)); a("s_lshl_b32 s%d, s%d, 3" % (sB, sB)); a("s_and_b32 s%d, s%d, 7" % (sT2, sIDX)); a("s_add_u32 s%d, s%d, s%d" % (sB, sB, sT2))
    a("s_lshr_b32 s%d, s%d, 1" % (sH, sXCD)); a("s_lshl_b32 s%d, s%d, 2" % (sH, sH)); a("s_lshr_b32 s%d, s%d, 3" % (sT2, sIDX)); a("s_add_u32 s%d, s%d, s%d" % (sH, sH, sT2))
    a("s_lshl_b32 s%d, s%d, 4" % (sT0, sB)); a("s_add_u32 s%d, s%d, s%d" % (sT0, sT0, sH))
    a("s_lshl_b32 s%d, s%d, 18" % (sT1, sT0))
    mk_srd(a, sK, 6, 7, sT1, 262144); mk_srd(a, sV, 8, 9, sT1, 262144)
    a("s_mul_i32 s%d, s%d, 110592" % (sT1, sB)); mk_srd(a, sX, 4, 5, sT1, 110592)
    a("s_lshl_b32 s%d, s%d, 9" % (sT1, sH)); mk_srd(a, sWQ, 10, 11, sT1, 0); a("s_sub_u32 s%d, 4718592, s%d" % (sWQ + 2, sT1))
    a("s_mul_i32 s%d, s%d, 294912" % (sT1, sH)); mk_srd(a, sWO, 12, 13, sT1, 294912)
    a("s_mul_i32 s%d, s%d, %d" % (sT1, sT0, PART)); a("s_add_u32 s%d, s%d, %d" % (sT1, sT1, WS_PART)); mk_srd(a, sP, 18, 19, sT1, PART)
    a("s_lshr_b32 s%d, s%d, 2" % (sT1, sH)); a("s_lshl_b32 s%d, s%d, 11" % (sT1, sT1)); mk_srd(a, sPF, 10, 11, sT1, 0); a("s_sub_u32 s%d, 4718592, s%d" % (sPF + 2, sT1))
    a("s_lshr_b32 s%d, s%d, 3" % (sT1, sB)); a("s_mul_i32 s%d, s%d, %d" % (sT1, sT1, 8 * 110592)); mk_srd(a, sPF2, 4, 5, sT1, 8 * 110592)
    a("s_mov_b32 s%d, s12" % sWOP); a("s_mov_b32 s%d, s13" % (sWOP + 1))
    a("s_mul_i32 s%d, s%d, 110592" % (sT1, sB)); mk_srd(a, sOUT, 14, 15, sT1, 110592)
    a("s_mul_i32 s%d, s%d, %d" % (sT1, sB, 16 * PART)); a("s_add_u32 s%d, s%d, %d" % (sT1, sT1, WS_PART)); mk_srd(a, sPB, 18, 19, sT1, 16 * PART)
    a("s_mul_i32 s%d, s%d, %d" % (sT1, sB, 9 * 64)); a("s_add_u32 s%d, s%d, %d" % (sT1, sT1, WS_FLAG)); mk_srd(a, sFL, 18, 19, sT1, 9 * 64)
    if STAMP:
        a("s_lshl_b32 s%d, s2, 9" % sT1); a("s_add_u32 s%d, s18, s%d" % (sSTAMP, sT1)); a("s_addc_u32 s%d, s19, 0" % (sSTAMP + 1))
    if "allc" in OPT: a("s_and_b32 s%d, s%d, 3" % (sWAVE, sWAVE))
    a("s_cmp_ge_u32 s%d, 4" % sWAVE); a("s_cbranch_scc1 L_loader")
    gen_compute(a)
    a("L_loader:")
    a.stamp_wave = 4; a.stamp_tmp = 40
    gen_loader(a)
    gen_reducer(a)
    a("L_k1_end:")
    a("s_endpgm")
    return a.text()

def build(fn, stamp=False, opt=()):
    global STAMP, OPT
    STAMP = stamp; OPT = set(opt)
    k1 = gen_k1()
    errs = hazard.check(k1, "k1")
    for e in errs[:10]: print(e)
    if errs: print("k1: %d hazard warnings" % len(errs))
    txt = HEADER + "; @launch grid=(256,1,1) block=(512,1,1) lds=%d\n" % LDS_BYTES
    txt += '.amdgcn_target "amdgcn-amd-amdhsa--gfx950"\n.text\n' + kernel_begin(KNAME) + k1 + '\n.section .rodata,"a"\n.p2align 6\n' + kernel_desc(KNAME, 256, 102, 256)
    open(fn, "w").write(txt)
    print(fn, len(txt), "bytes,", txt.count("\n"), "lines")

if __name__ == "__main__":
    def pieces(start, per):
        d = {}; st = start
        for kind in "KV":
            for lo in range(0, 8, per):
                d.setdefault(st, []).append((kind, 0, lo, lo + per)); st += 1
        return d
    def mk(start, per, i1at):
        d = pieces(start, per)
        d.setdefault(i1at, []).extend([("K", 1), ("V", 1)])
        d.setdefault(19, []).extend([("K", 2), ("V", 2)])
        return d
    PF0 = 0
    O = ["rotq", "nopfq", "notlb"]
    KSCHED = mk(12, 4, 18)
    build("v6.s", False, O); build("v6_st.s", True, ["trace"] + O)
    NL = ["noload", "nored", "norare"] + O
    base = dict(vlo=[8, 9, 10, 11, 12, 13, 14, 15], vhi=[0, 0, 1, 2, 3, 4, 5, 5], k=[6, 7, 8, 9, 10, 11], klate=[0, 1], extra_at=(12, 13, 14, 15), age=3)
    V1 = {0: ["E0"], 1: ["E1"], 2: ["E2", "C0"], 3: ["E3", "A0"], 4: ["E4", "C1"], 5: ["E5", "A1"], 6: ["E6", "B0"], 7: ["E7", "C2"], 8: ["A2", "C3"], 9: ["A3", "L"], 10: ["B1"], 11: ["SUM"], 12: ["CMP"]}
    V2 = {0: ["E0"], 1: ["E1", "L"], 2: ["E2"], 3: ["E3", "C0"], 4: ["E4"], 5: ["E5", "C1"], 6: ["E6"], 7: ["E7", "C2"], 8: ["A0", "A1"], 9: ["C3", ], 10: ["A2", "A3"], 11: ["B0", "B1"], 12: ["SUM"], 13: ["CMP"]}
    V3 = {0: ["E0", "L"], 1: ["E1"], 2: ["E2", "C0"], 3: ["E3"], 4: ["E4", "C1"], 5: ["E5", "A0"], 6: ["E6", "A1"], 7: ["E7", "C2"], 8: ["B0", "A2"], 9: ["C3"], 10: ["A3"], 11: ["B1"], 12: ["SUM"], 13: ["CMP"]}
    V4 = {0: ["E0"], 1: ["E1"], 2: ["E2"], 3: ["E3"], 4: ["E4"], 5: ["E5"], 6: ["E6"], 7: ["E7"], 8: ["C0", "C1"], 9: ["C2", "C3"], 10: ["A0", "A1"], 11: ["A2", "A3"], 12: ["B0", "B1"], 13: ["SUM", "L"], 14: ["CMP"]}
    V4[13] = ["L", "SUM"]
    base2 = dict(base, vhi=[0, 1, 2, 3, 4, 5, 6, 7], k=[8, 9, 10, 11, 12, 13])
    V5 = {0: ["E0"], 1: ["E1"], 2: ["E2"], 3: ["E3"], 4: ["E4"], 5: ["E5"], 6: ["E6"], 7: ["E7"], 8: ["C0", "C1"], 9: ["C2", "C3"], 10: ["A0", "A1"], 11: ["A2", "A3"], 12: ["B0", "B1"], 13: ["L", "SUM"], 14: ["CMP"]}
    V6 = {0: ["E0"], 1: ["E1"], 2: ["E2"], 3: ["E3"], 4: ["E4"], 5: ["E5"], 6: ["E6"], 7: ["E7"], 8: ["C0", "A0"], 9: ["C1", "A1"], 10: ["C2", "A2"], 11: ["C3", "A3"], 12: ["B0", "B1"], 13: ["L", "SUM"], 14: ["CMP"]}
    V7 = {0: ["E0"], 1: ["E1"], 2: ["E2", "C0"], 3: ["E3"], 4: ["E4", "C1"], 5: ["E5"], 6: ["E6", "C2"], 7: ["E7"], 8: ["A0", "A1"], 9: ["C3", "L"], 10: ["A2", "A3"], 11: ["B0", "B1"], 12: ["SUM"], 13: ["CMP"]}
    V8 = {0: ["L", "E0"], 1: ["E1"], 2: ["E2"], 3: ["E3"], 4: ["E4"], 5: ["E5"], 6: ["E6"], 7: ["E7"], 8: ["C0", "C1"], 9: ["C2", "C3"], 10: ["A0", "A1"], 11: ["A2", "A3"], 12: ["B0", "B1"], 13: ["SUM"], 14: ["CMP"]}
    V5e = {0: ["E0"], 1: ["E1"], 2: ["E2"], 3: ["E3"], 4: ["E4"], 5: ["E5"], 6: ["E6"], 7: ["E7"], 8: ["C0", "C1"], 9: ["C2", "C3"], 10: ["A0", "A1"], 11: ["A2", "A3"], 12: ["B0", "B1"], 13: ["L", "SUM"], 14: ["CMP"]}
    V5f = {0: ["E0"], 1: ["E1"], 2: ["E2"], 3: ["E3"], 4: ["E4"], 5: ["E5"], 6: ["E6"], 7: ["E7", "C0"], 8: ["C1", "A0"], 9: ["A1", "C2"], 10: ["C3", "A2"], 11: ["A3", "B0"], 12: ["B1", "L"], 13: ["SUM", "CMP"]}
    Vg = {0: ["E0"], 1: ["E1"], 2: ["E2"], 3: ["E3"], 4: ["E4", "C0"], 5: ["E5", "A0"], 6: ["E6", "C1"], 7: ["E7", "A1"], 8: ["C2", "A2"], 9: ["C3", "A3"], 10: ["B0", "B1"], 11: ["L", "SUM"], 12: ["CMP"]}
    Vh = {0: ["E0"], 1: ["E1"], 2: ["E2"], 3: ["E3"], 4: ["E4"], 5: ["E5"], 6: ["E6", "C0"], 7: ["E7", "C1"], 8: ["A0", "A1"], 9: ["C2", "C3"], 10: ["A2", "A3"], 11: ["B0", "B1"], 12: ["L", "SUM"], 13: ["CMP"]}
    Vi = {0: ["E0"], 1: ["E1"], 2: ["E2"], 3: ["E3"], 4: ["E4"], 5: ["E5"], 6: ["E6"], 7: ["E7"], 8: ["C0", "C1"], 9: ["C2", "C3"], 10: ["A0", "A1", "A2"], 11: ["A3", "B0"], 12: ["B1", "SUM"], 13: ["CMP"], 1: ["E1", "L"]}
    Vj = {0: ["E0", "L"], 1: ["E1"], 2: ["E2"], 3: ["E3"], 4: ["E4"], 5: ["E5"], 6: ["E6"], 7: ["E7", "C0"], 8: ["C1", "A0"], 9: ["A1", "C2"], 10: ["C3", "A2"], 11: ["A3", "B0"], 12: ["B1", "SUM"], 13: ["CMP"]}
    TAB = None
    build("v6.s", False, O); build("v6_st.s", True, ["trace"] + O)
    KS_EARLY = {2: [("K", 0)], 5: [("V", 0)], 8: [("K", 1)], 11: [("V", 1)], 16: [("K", 2)], 17: [("V", 2)], 18: [("K", 3), ("V", 3)]}
    build("r_late.s", False, O)
    KSCHED = KS_EARLY; FIRST_RULE = 2
    build("r_early.s", False, O)
    TAB = dict(base, valu=V1)
    build("r_342.s", False, O)
    TAB = dict(base2, valu=V5f)
    build("r_dense.s", False, O + ["brend"])
```

```python
import sys, struct
from asmlib import *
import hazard
from sched import Item, schedule, auto_lgkm, model_cycles

def f32(x): return "0x%08x" % struct.unpack("<I", struct.pack("<f", x))[0]
C_SCALE = 1.4426950408889634 / (128 ** 0.5)

PAIR = 35840
KGRP, VGRP = 1088, 1152
VOFF = 16 * KGRP
WBASE = 2 * PAIR
XBASE = WBASE + 4 * 16384
XSLOT = 12288
EXCH = 3 * PAIR
LDS_BYTES = 163840
PART = 108 * 1024
WS_PART = 1 << 20
WS_FLAG = 1 << 19
KNAME = 'standalone__gqa_block_cached__near_ridge_kernel'
OPT = set()
STAMP = False

sK, sV, sX, sWQ, sWO, sP = 20, 24, 28, 32, 36, 40
sWAVE, sB, sH, sLW = 44, 45, 46, 47
sT0, sT1, sT2, sT3 = 48, 49, 50, 51
sLWK, sLW3072, sLWV, sLW4096 = 52, 53, 59, 66
sTHR, sCNT, sDK, sNEG, sSLOT = 54, 55, 56, 57, 58
sSTAMP = 60
sTM = 62
sQI, sRH = 64, 65
sXCD, sIDX = 67, 68
sPF = 72
sPF2 = 76
sFL = 8
sPB = 4
sOUT = 12
def srd(b): return "s[%d:%d]" % (b, b + 3)
def vr(b, n=1): return "v%d" % b if n == 1 else "v[%d:%d]" % (b, b + n - 1)

def _stamp(a, idx, instr):
    if not STAMP: return
    a("%s s[%d:%d]" % (instr, sTM, sTM + 1)); a("s_waitcnt lgkmcnt(0)")
    if a.stamp_wave == 0: a("s_mov_b32 s%d, s%d" % (80 + idx, sTM))
    else: a("v_writelane_b32 v40, s%d, %d" % (sTM, idx))
def stamp(a, idx, cyc=None):
    _stamp(a, idx, "s_memrealtime")
    if cyc is not None: _stamp(a, cyc, "s_memtime")
DBG_WG = 37
def stamp_flush(a):
    if not STAMP: return
    if "dbg" in OPT:
        sk = a.label("Ldbgs")
        a("s_cmp_lg_u32 s2, %d" % DBG_WG); a("s_cbranch_scc1 %s" % sk)
        a("s_cmp_lg_u32 s%d, %d" % (sWAVE, a.stamp_wave)); a("s_cbranch_scc1 %s" % sk)
        a("v_mov_b32 v1, 0")
        if a.stamp_wave == 0:
            for dw, (j, j0) in zip((1, 2, 3, 5, 6, 7, 9, 10, 11), ((1, 0), (2, 0), (3, 0), (4, 0), (11, 10), (12, 11), (13, 12), (14, 13), (7, 6))):
                a("s_sub_u32 s%d, s%d, s%d" % (sT0, 80 + j, 80 + j0)); a("v_mov_b32 v2, s%d" % sT0); a("global_store_dword v1, v2, s[16:17] offset:%d" % (4 * dw))
        else:
            a("v_readlane_b32 s%d, v40, 15" % sT0); a("v_readlane_b32 s%d, v40, 16" % sT1); a("s_nop 3"); a("s_sub_u32 s%d, s%d, s%d" % (sT0, sT0, sT1)); a("v_mov_b32 v2, s%d" % sT0)
            a("global_store_dword v1, v2, s[16:17] offset:52")
            a("v_readlane_b32 s%d, v40, 36" % sT0); a("s_nop 3"); a("s_sub_u32 s%d, s%d, s%d" % (sT0, sT0, sT1)); a("v_mov_b32 v2, s%d" % sT0)
            a("global_store_dword v1, v2, s[16:17] offset:56")
        a("%s:" % sk)
        return
    sk = a.label("Lst")
    a("s_cmp_lg_u32 s%d, %d" % (sWAVE, a.stamp_wave)); a("s_cbranch_scc1 %s" % sk)
    if a.stamp_wave == 0:
        a("v_mov_b32 v1, 0")
        for i in range(16):
            if i in (8, 9, 15): continue
            a("v_mov_b32 v2, s%d" % (80 + i)); a("global_store_dword v1, v2, s[%d:%d] offset:%d" % (sSTAMP, sSTAMP + 1, 4 * i))
    else:
        a("v_and_b32 v2, 63, v0"); a("v_lshlrev_b32 v3, 2, v2")
        a("v_cmp_lt_u32 vcc, 14, v2"); a("v_cmp_eq_u32 s[96:97], 8, v2"); a("s_or_b64 vcc, vcc, s[96:97]"); a("v_cmp_eq_u32 s[96:97], 9, v2"); a("s_or_b64 vcc, vcc, s[96:97]")
        a("s_and_saveexec_b64 s[96:97], vcc")
        a("global_store_dword v3, v40, s[%d:%d]" % (sSTAMP, sSTAMP + 1))
        a("s_mov_b64 exec, s[96:97]")
    a("%s:" % sk)

def common_prologue(a, endlab, nwg):
    a("s_cmp_ge_u32 s2, %d" % nwg); a("s_cbranch_scc1 %s" % endlab)
    a("s_load_dwordx8 s[4:11], s[0:1], 0")
    a("s_load_dwordx4 s[12:15], s[0:1], 32")
    a("s_load_dwordx4 s[16:19], s[0:1], 48")
    a("v_lshrrev_b32 v1, 6, v0")
    a("s_nop 0")
    a("v_readfirstlane_b32 s%d, v1" % sWAVE)
    a("s_waitcnt lgkmcnt(0)")

class VQ:
    def __init__(s): s.q = []
    def issue(s, tag, n=1): s.q += [tag] * n
    def wait(s, tags):
        idx = [i for i, t in enumerate(s.q) if t in tags]
        if not idx: return None
        last = max(idx); n = len(s.q) - 1 - last
        s.q = s.q[last + 1:]
        return min(n, 63)

KV_FLAGS = " nt"
W_FLAGS = ""
O_FLAGS = ""
P_FLAGS = " sc0 sc1"


def gen_loader(a):
    a("s_sub_u32 s%d, s%d, 4" % (sLW, sWAVE))
    a("v_and_b32 v1, 63, v0")
    if STAMP: a("v_mov_b32 v40, 0")
    a("s_cmp_ge_u32 s%d, 2" % sLW); a("s_cbranch_scc1 L_kvloader")
    gen_wloader(a)
    a("L_kvloader:")
    gen_kvloader(a)

def mk_bar(a, q, trace_base=None):
    def bar(tags):
        n = q.wait(tags) if tags else None
        if n is not None and "nowait" not in OPT: a("s_waitcnt vmcnt(%d)" % n)
        if "trace" in OPT and bar.n < 48 and trace_base is not None: stamp(a, 16 + bar.n)
        a("s_barrier")
        bar.n += 1
    bar.n = 0
    return bar

def dma(a, vreg, srdb, soff, imm, flags):
    if "noload" in OPT: return
    a("buffer_load_dwordx4 v%d, %s, s%d offen offset:%d%s lds" % (vreg, srd(srdb), soff, imm, flags))

def emit_pf(a, chunks, lane=1):
    if not chunks: return
    sk = a.label("Lpfq"); skx = a.label("Lpfx")
    a("s_cmp_ge_u32 s%d, 28" % sIDX); a("s_cbranch_scc1 %s" % sk)
    a("s_cmp_ge_u32 s%d, 16" % sIDX); a("s_cbranch_scc1 %s" % skx)
    a("v_lshrrev_b32 v30, 4, v%d" % lane); a("v_and_b32 v31, 15, v%d" % lane)
    a("s_lshl_b32 s%d, s%d, 2" % (sT0, sIDX)); a("v_add_u32 v30, s%d, v30" % sT0); a("v_lshlrev_b32 v30, 13, v30"); a("v_lshlrev_b32 v31, 7, v31"); a("v_add_u32 v30, v30, v31")
    for cp in chunks:
        if isinstance(cp, int): a("s_mov_b32 s%d, %d" % (sT0, cp * 64 * 8192))
        else: a("s_lshl_b32 s%d, s%d, 19" % (sT0, cp[0])); a("s_add_u32 s%d, s%d, %d" % (sT0, sT0, cp[1] * 64 * 8192))
        a("buffer_load_dword v32, v30, %s, s%d offen" % (srd(sPF), sT0))
    a("s_branch %s" % sk)
    a("%s:" % skx)
    a("s_sub_u32 s%d, s%d, 16" % (sT0, sIDX)); a("s_lshl_b32 s%d, s%d, 6" % (sT0, sT0)); a("v_add_u32 v30, s%d, v%d" % (sT0, lane)); a("v_mul_u32_u24 v30, 1152, v30")
    for cp in chunks:
        if isinstance(cp, int): a("s_mov_b32 s%d, %d" % (sT0, cp * 128))
        else: a("s_lshl_b32 s%d, s%d, 7" % (sT0, cp[0])); a("s_add_u32 s%d, s%d, %d" % (sT0, sT0, cp[1] * 128))
        a("buffer_load_dword v32, v30, %s, s%d offen" % (srd(sPF2), sT0))
    a("%s:" % sk)

def code_prefetch(a, lane=1):
    if "nocpf" in OPT: return
    lab = a.label("Lcpf")
    a("s_getpc_b64 s[94:95]")
    a("%s:" % lab)
    a("s_sub_u32 s94, s94, (%s - %s)" % (lab, KNAME)); a("s_subb_u32 s95, s95, 0")
    a("s_lshl_b32 s%d, s%d, 11" % (sT0, sIDX))
    a("v_and_b32 v34, 15, v%d" % lane); a("v_lshlrev_b32 v34, 7, v34"); a("v_add_u32 v34, s%d, v34" % sT0)
    a("v_min_u32 v34, (L_k1_end - %s), v34" % KNAME)
    a("global_load_dword v35, v34, s[94:95]")

def gen_wloader(a):
    vW, vX, vO = 10, 14, 16
    a.stamp_wave = 4
    sA, sBb = sLWK, sLWV
    a("v_lshrrev_b32 v6, 5, v1"); a("v_and_b32 v7, 31, v1")
    a("s_lshl_b32 s%d, s%d, 17" % (sT1, sLW))
    a("v_lshlrev_b32 v8, 13, v6"); a("v_add_u32 v8, s%d, v8" % sT1)
    for var in range(4):
        a("v_add_u32 v5, %d, v6" % (2 * (var & 1) + 4 * (var >> 1))); a("v_lshlrev_b32 v5, 1, v5"); a("v_xor_b32 v5, v5, v7")
        a("v_lshlrev_b32 v5, 4, v5"); a("v_add_u32 v%d, v8, v5" % (vW + var))
    a("v_lshrrev_b32 v6, 3, v1"); a("v_and_b32 v7, 7, v1")
    a("s_mul_i32 s%d, s%d, 48" % (sT1, sLW)); a("v_add_u32 v8, s%d, v6" % sT1); a("v_mul_u32_u24 v8, 1152, v8")
    a("v_lshrrev_b32 v9, 1, v6")
    for i in range(2):
        a("v_add_u32 v5, %d, v9" % (4 * i)); a("v_xor_b32 v5, v5, v7"); a("v_lshlrev_b32 v5, 4, v5"); a("v_add_u32 v%d, v8, v5" % (vX + i))
    a("v_mul_u32_u24 v8, 1152, v6")
    a("v_and_b32 v5, 3, v9"); a("v_lshlrev_b32 v5, 1, v5"); a("v_xor_b32 v5, v5, v7"); a("v_lshlrev_b32 v5, 4, v5"); a("v_add_u32 v%d, v8, v5" % vO)
    a("s_lshl_b32 s%d, s%d, 13" % (sA, sLW))
    a("s_mul_i32 s%d, s%d, 6144" % (sBb, sLW))
    a("s_lshl_b32 s%d, s%d, 14" % (sLW4096, sLW))
    a("s_mul_i32 s%d, s%d, %d" % (sLW3072, sLW, 128 * 1152))
    sWK, sXK, sOK = 98, 99, 100
    sWS, sXS, sOS = 93, 92, 91
    A_, SI, B_, SJ = ROTQ
    a("s_and_b32 s%d, s%d, 7" % (sT0, sIDX)); a("s_lshr_b32 s%d, s%d, %d" % (sT0, sT0, SI)); a("s_mul_i32 s%d, s%d, %d" % (sT0, sT0, A_))
    a("s_lshr_b32 s%d, s%d, %d" % (sT1, sIDX, 3 + SJ)); a("s_mul_i32 s%d, s%d, %d" % (sT1, sT1, B_)); a("s_add_u32 s%d, s%d, s%d" % (sT0, sT0, sT1))
    for _ in range(2): a("s_cmp_ge_u32 s%d, 9" % sT0); a("s_cselect_b32 s%d, 9, 0" % sT1); a("s_sub_u32 s%d, s%d, s%d" % (sT0, sT0, sT1))
    a("s_lshl_b32 s%d, s%d, 19" % (sWK, sT0)); a("s_lshl_b32 s%d, s%d, 7" % (sXK, sT0))
    a("s_and_b32 s%d, s%d, 7" % (sT0, sB)); a("s_lshl_b32 s%d, s%d, 7" % (sOK, sT0))
    a("s_mov_b32 s%d, %d" % (sWS, 2 * 16384)); a("s_mov_b32 s%d, 0" % sXS); a("s_mov_b32 s%d, 0" % sOS)
    a("s_add_u32 s%d, s%d, %d" % (sA, sA, WBASE)); a("s_add_u32 s%d, s%d, %d" % (sBb, sBb, XBASE))
    def adv(reg, step, wrap):
        a("s_add_u32 s%d, s%d, %d" % (reg, reg, step)); a("s_cmp_eq_u32 s%d, %d" % (reg, wrap)); a("s_cselect_b32 s%d, 0, s%d" % (reg, reg))
    def iss_W():
        a("s_add_u32 m0, s%d, s%d" % (sA, sWS))
        for ii in range(8):
            if ii == 4: a("s_add_u32 m0, m0, 4096")
            a("s_add_u32 s%d, s%d, %d" % (sT0, sWK, 16384 * ii - (ii & 3) * 1024))
            dma(a, vW + (ii & 1) + 2 * (ii >> 2), sWQ, sT0, (ii & 3) * 1024, W_FLAGS)
        adv(sWK, 262144, 18 * 262144); adv(sWS, 16384, 65536)
    def iss_X():
        a("s_add_u32 m0, s%d, s%d" % (sBb, sXS))
        for ii in range(6):
            if ii == 4: a("s_add_u32 m0, m0, 4096")
            a("s_add_u32 s%d, s%d, %d" % (sT0, sXK, 9216 * ii - (ii & 3) * 1024))
            dma(a, vX + (ii & 1), sX, sT0, (ii & 3) * 1024, W_FLAGS)
        adv(sXK, 128, 9 * 128); a("s_xor_b32 s%d, s%d, %d" % (sXS, sXS, XSLOT))
    def iss_O():
        a("s_add_u32 s%d, s%d, s%d" % (sT1, sLW3072, sOK))
        a("s_add_u32 m0, s%d, s%d" % (sLW4096, sOS))
        for ii in range(16):
            if ii % 4 == 0 and ii: a("s_add_u32 m0, m0, 4096")
            a("s_add_u32 s%d, s%d, %d" % (sT0, sT1, 9216 * ii - (ii & 3) * 1024))
            dma(a, vO, sWO, sT0, (ii & 3) * 1024, O_FLAGS)
        adv(sOK, 128, 9 * 128); adv(sOS, PAIR, 4 * PAIR)
    tr = [16]
    def bar(w=None):
        if w is not None and "nowait" not in OPT: a("s_waitcnt vmcnt(%d)" % w)
        a("s_barrier")
    def loop(n, body, name):
        lab = a.label(name)
        a("s_mov_b32 s%d, 0" % sCNT); a("%s:" % lab)
        body()
        a("s_add_u32 s%d, s%d, 1" % (sCNT, sCNT)); a("s_cmp_lt_u32 s%d, %d" % (sCNT, n)); a("s_cbranch_scc1 %s" % lab)
    loop(2, lambda: (iss_X(), iss_W(), iss_W()), "Lwi")
    if STAMP: stamp(a, 16)
    bar(30)
    bar(22)
    iss_W()
    def qbody():
        bar(16)
        iss_X(); iss_W()
        bar(22)
        sk = a.label("Lwl"); a("s_cmp_eq_u32 s%d, 6" % sCNT); a("s_cbranch_scc1 %s" % sk)
        iss_W()
        a("%s:" % sk)
    loop(7, qbody, "Lwq")
    bar(8)
    bar(0)
    bar(None); bar(None)
    stamp(a, 8)
    def cpf():
        sk = a.label("Lcp"); a("s_cmp_lg_u32 s%d, 1" % sLW); a("s_cbranch_scc1 %s" % sk); code_prefetch(a); a("%s:" % sk)
    loop(CPF_AT, lambda: bar(None), "Lwa")
    cpf()
    loop(13 - CPF_AT, lambda: bar(None), "Lwb")
    loop(2, lambda: (bar(None), iss_O()), "Lwo")
    bar(16)
    iss_O()
    a("s_barrier"); a("s_barrier")
    loop(6, lambda: (bar(16), iss_O()), "Lwp")
    bar(0)
    a("s_barrier"); a("s_barrier"); a("s_barrier")
    stamp(a, 9)
    a("s_add_u32 s%d, s%d, 4" % (sCNT, sLW))
    a("s_branch L_reduce")

def gen_kvloader(a):
    vK, vV = 10, 11
    a.stamp_wave = -1
    a("s_sub_u32 s%d, s%d, 2" % (sLW, sLW))
    a("v_lshrrev_b32 v2, 4, v1"); a("v_and_b32 v3, 15, v1")
    a("s_lshl_b32 s%d, s%d, 13" % (sT0, sLW))
    a("v_lshlrev_b32 v4, 8, v2"); a("v_add_u32 v4, s%d, v4" % sT0)
    a("v_xor_b32 v5, v2, v3"); a("v_lshlrev_b32 v5, 4, v5"); a("v_add_u32 v%d, v4, v5" % vK)
    a("v_lshlrev_b32 v5, 1, v2"); a("v_xor_b32 v5, v5, v3"); a("v_lshlrev_b32 v5, 4, v5"); a("v_add_u32 v%d, v4, v5" % vV)
    a("s_mul_i32 s%d, s%d, %d" % (sLWK, sLW, 8 * KGRP)); a("s_mul_i32 s%d, s%d, %d" % (sLWV, sLW, 8 * VGRP))
    sROT = 92
    if "krot" in OPT:
        a("s_mul_i32 s%d, s%d, %d" % (sROT, sXCD, KROT[0])); a("s_mul_i32 s%d, s%d, %d" % (sT0, sIDX, KROT[1])); a("s_add_u32 s%d, s%d, s%d" % (sROT, sROT, sT0))
    q = VQ(); bar = mk_bar(a, q, None)
    def iss(T, isK, lo=0, hi=8):
        for ii in range(lo, hi):
            if "krot" in OPT:
                if ii == lo: a("s_add_u32 s%d, s%d, %d" % (sT2, sROT, T)); a("s_and_b32 s%d, s%d, 15" % (sT2, sT2)); a("s_lshl_b32 s%d, s%d, 14" % (sT2, sT2))
                if ii % 4 == 0 or ii == lo: a("s_add_u32 s%d, s%d, %d" % (sT0, sT2, (ii >> 2) * 4096))
            elif ii % 4 == 0 or ii == lo: a("s_mov_b32 s%d, %d" % (sT0, T * 16384 + (ii >> 2) * 4096))
            grp = KGRP if isK else VGRP
            a("s_add_u32 m0, s%d, %d" % (sLWK if isK else sLWV, (T % 4) * PAIR + (0 if isK else VOFF) + ii * grp - (ii & 3) * 1024))
            if ii % 4: a("s_nop 0")
            else: a("s_nop 0")
            dma(a, vK if isK else vV, sK if isK else sV, sT0, (ii & 3) * 1024, KV_FLAGS)
        q.issue("I%d" % T, hi - lo)
    def prefetch_q():
        sk = a.label("Lpfq"); skx = a.label("Lpfx")
        a("s_cmp_lg_u32 s%d, %d" % (sLW, PF_WAVE)); a("s_cbranch_scc1 %s" % sk)
        a("s_cmp_ge_u32 s%d, 28" % sIDX); a("s_cbranch_scc1 %s" % sk)
        a("s_cmp_ge_u32 s%d, 16" % sIDX); a("s_cbranch_scc1 %s" % skx)
        a("s_lshl_b32 s%d, s%d, 2" % (sT0, sIDX)); a("v_add_u32 v5, s%d, v2" % sT0); a("v_lshlrev_b32 v5, 13, v5"); a("v_lshlrev_b32 v6, 7, v3"); a("v_add_u32 v5, v5, v6")
        for cp in range(PF_FIRST, 9):
            a("s_mov_b32 s%d, %d" % (sT0, cp * 64 * 8192)); a("buffer_load_dword v%d, v5, %s, s%d offen" % (20 + cp, srd(sPF), sT0))
        a("s_branch %s" % sk)
        a("%s:" % skx)
        a("s_sub_u32 s%d, s%d, 16" % (sT0, sIDX)); a("s_lshl_b32 s%d, s%d, 6" % (sT0, sT0)); a("v_add_u32 v5, s%d, v1" % sT0); a("v_mul_u32_u24 v5, 1152, v5")
        for cp in range(PF_FIRST, 9):
            a("s_mov_b32 s%d, %d" % (sT0, cp * 128)); a("buffer_load_dword v%d, v5, %s, s%d offen" % (20 + cp, srd(sPF2), sT0))
        a("%s:" % sk)
    def clear_flags():
        sk = a.label("Lclr")
        a("s_cmp_lg_u32 s%d, 1" % sLW); a("s_cbranch_scc1 %s" % sk)
        a("v_mov_b32 v20, 0"); a("v_mov_b32 v21, 0")
        a("s_lshl_b32 s%d, s%d, 3" % (sT0, sH))
        a("v_lshlrev_b32 v5, 7, v1"); a("v_add_u32 v5, s%d, v5" % sT0); a("v_mov_b32 v7, 0x40000000"); a("v_cmp_gt_u32 vcc, 9, v1"); a("s_nop 1"); a("v_cndmask_b32 v5, v7, v5, vcc")
        a("buffer_store_dwordx2 v[20:21], v5, %s, 0 offen sc0 sc1" % srd(sFL))
        a("s_waitcnt vmcnt(0)")
        a("s_lshl_b32 s%d, s%d, 4" % (sT0, sB)); a("v_mov_b32 v5, s%d" % sT0); a("v_mov_b32 v6, 1")
        a("s_mov_b64 s[96:97], exec"); a("s_mov_b64 exec, 1")
        a("global_atomic_add v5, v6, s[16:17] sc1")
        a("s_mov_b64 exec, s[96:97]")
        a("%s:" % sk)
    if "notlb" not in OPT:
        sk = a.label("Ltlb")
        a("s_cmp_lg_u32 s%d, 0" % sLW); a("s_cbranch_scc1 %s" % sk)
        a("v_mov_b32 v5, 0")
        for i, sr in enumerate((sK, sV, sWO, sP, sOUT)): a("buffer_load_dword v%d, v5, %s, 0 offen nt" % (33 + i, srd(sr)))
        a("v_mul_u32_u24 v5, %d, v1" % (PART // 8)); a("v_lshlrev_b32 v5, 3, v5"); a("v_mov_b32 v7, 0x40000000"); a("v_cmp_gt_u32 vcc, 16, v1"); a("s_nop 1"); a("v_cndmask_b32 v5, v7, v5, vcc")
        a("buffer_load_dword v38, v5, %s, 0 offen nt" % srd(sPB))
        a("%s:" % sk)
    clear_flags()
    if "nopfq" not in OPT and PF_AT < 0: prefetch_q()
    for s in range(18):
        bar(None)
        if "nopfq" not in OPT and PF_AT == s: prefetch_q()
        for e in KSCHED.get(s, []): iss(e[1], e[0] == "K", *e[2:])
    bar(None)
    for e in KSCHED.get(18, []): iss(e[1], e[0] == "K", *e[2:])
    bar(["I0"])
    for e in KSCHED.get(19, []): iss(e[1], e[0] == "K", *e[2:])
    sTK, sKS = 93, 91
    assert FIRST_RULE == 1
    a("s_mov_b32 s%d, %d" % (sTK, 3 * 16384)); a("s_mov_b32 s%d, %d" % (sKS, 3 * PAIR))
    lab = a.label("Lkv"); a("s_mov_b32 s%d, 0" % sCNT); a("%s:" % lab)
    if "nowait" not in OPT: a("s_waitcnt vmcnt(16)")
    a("s_barrier")
    a("s_add_u32 s%d, s%d, s%d" % (sT1, sLWK, sKS)); a("s_add_u32 s%d, s%d, s%d" % (sT2, sLWV, sKS))
    for isK in (True, False):
        for ii in range(8):
            if ii % 4 == 0: a("s_add_u32 s%d, s%d, %d" % (sT0, sTK, (ii >> 2) * 4096))
            grp = KGRP if isK else VGRP
            a("s_add_u32 m0, s%d, %d" % (sT1 if isK else sT2, (0 if isK else VOFF) + ii * grp - (ii & 3) * 1024)); a("s_nop 0")
            dma(a, vK if isK else vV, sK if isK else sV, sT0, (ii & 3) * 1024, KV_FLAGS)
    a("s_add_u32 s%d, s%d, 16384" % (sTK, sTK))
    a("s_add_u32 s%d, s%d, %d" % (sKS, sKS, PAIR)); a("s_cmp_eq_u32 s%d, %d" % (sKS, 4 * PAIR)); a("s_cselect_b32 s%d, 0, s%d" % (sKS, sKS))
    a("s_add_u32 s%d, s%d, 1" % (sCNT, sCNT)); a("s_cmp_lt_u32 s%d, 13" % sCNT); a("s_cbranch_scc1 %s" % lab)
    if "nowait" not in OPT: a("s_waitcnt vmcnt(16)")
    a("s_barrier")
    if "nowait" not in OPT: a("s_waitcnt vmcnt(0)")
    a("s_barrier")
    a("s_barrier")
    if "nored" not in OPT:
        sk = a.label("Ldbg"); lp = a.label("Ldbgw")
        a("s_cmp_lg_u32 s%d, 0" % sLW); a("s_cbranch_scc1 %s" % sk)
        a("s_lshl_b32 s%d, s%d, 4" % (sT0, sB)); a("v_mov_b32 v10, s%d" % sT0); a("s_mov_b32 s%d, 0" % sT3)
        a("%s:" % lp)
        a("global_load_dword v12, v10, s[16:17] sc1"); a("s_waitcnt vmcnt(0)"); a("v_readfirstlane_b32 s%d, v12" % sT1)
        a("s_add_u32 s%d, s%d, 1" % (sT3, sT3)); a("s_cmp_gt_u32 s%d, %d" % (sT3, SPIN_MAX)); a("s_cbranch_scc1 %s" % sk)
        a("s_cmp_lt_u32 s%d, 16" % sT1); a("s_cbranch_scc1 %s" % lp)
        a("%s:" % sk)
    a("s_barrier"); a("s_barrier")
    vPR, vPO, vF, vOne = 20, 24, 25, 26
    sCH = 93
    a("v_lshlrev_b32 v%d, 4, v1" % vPO)
    a("s_mul_i32 s%d, s%d, 6144" % (sT0, sLW)); a("s_add_u32 s%d, s%d, %d" % (sT0, sT0, PB0)); a("v_add_u32 v%d, s%d, v%d" % (vPR, sT0, vPO)); a("v_add_u32 v%d, 3072, v%d" % (vPR + 1, vPR))
    a("s_mul_i32 s%d, s%d, %d" % (sT0, sLW, 2 * PAIR)); a("s_add_u32 s%d, s%d, 32768" % (sT0, sT0)); a("v_add_u32 v%d, s%d, v%d" % (vPR + 2, sT0, vPO)); a("v_add_u32 v%d, %d, v%d" % (vPR + 3, PAIR, vPR + 2))
    a("s_mul_i32 s%d, s%d, 6144" % (sT0, sLW)); a("v_add_u32 v%d, s%d, v%d" % (vPO, sT0, vPO))
    a("v_mov_b32 v%d, 1" % vOne)
    a("s_lshl_b32 s%d, s%d, 3" % (sT0, sH)); a("s_lshl_b32 s%d, s%d, 2" % (sT1, sLW)); a("s_add_u32 s%d, s%d, s%d" % (sT0, sT0, sT1))
    a("v_mov_b32 v%d, 0x40000000" % vF); a("s_nop 0"); a("v_writelane_b32 v%d, s%d, 0" % (vF, sT0))
    a("s_mov_b32 s%d, 0" % sCH)
    def flag_store(back):
        a("s_sub_u32 s%d, s%d, %d" % (sT0, sCH, back)); a("s_lshl_b32 s%d, s%d, 7" % (sT0, sT0))
        a("buffer_store_dword v%d, v%d, %s, s%d offen sc0 sc1" % (vOne, vF, srd(sFL), sT0))
    def turn(buf, guard):
        for w2 in range(2):
            for j in range(3): a("ds_read_b128 %s, v%d offset:%d" % (vr(64 + 32 * buf + 4 * (3 * w2 + j), 4), vPR + 2 * buf + w2, j * 1024))
        a("s_mul_i32 s%d, s%d, 12288" % (sT0, sCH))
        for i in range(6):
            a("s_waitcnt lgkmcnt(%d)" % (5 - i))
            if "nostore" not in OPT: a("buffer_store_dwordx4 %s, v%d, %s, s%d offen%s" % (vr(64 + 32 * buf + 4 * i, 4), vPO, srd(sP), sT0, P_FLAGS))
            if i < 5: a("s_add_u32 s%d, s%d, 1024" % (sT0, sT0))
        if "nored" not in OPT:
            sk = a.label("Lfl")
            if guard: a("s_cmp_lt_u32 s%d, 2" % sCH); a("s_cbranch_scc1 %s" % sk)
            a("s_waitcnt vmcnt(%d)" % FLW)
            flag_store(2)
            a("%s:" % sk)
        a("s_add_u32 s%d, s%d, 1" % (sCH, sCH))
    a("s_barrier")
    lab = a.label("Lsto"); a("%s:" % lab)
    a("s_barrier"); turn(0, True)
    a("s_barrier"); turn(1, True)
    a("s_cmp_lt_u32 s%d, 8" % sCH); a("s_cbranch_scc1 %s" % lab)
    a("s_barrier"); turn(0, False)
    if "nored" not in OPT:
        a("s_waitcnt vmcnt(7)"); flag_store(2)
        a("s_waitcnt vmcnt(1)"); flag_store(1)
    a("s_cmp_eq_u32 s%d, 0" % sLW); a("s_cselect_b32 s%d, 7, 6" % sCNT)
    a("s_branch L_reduce")

KSCHED = {2: [("K", 0)], 5: [("V", 0)], 8: [("K", 1)], 11: [("V", 1)], 16: [("K", 2)], 17: [("V", 2)]}

def gen_reducer(a):
    a("L_reduce:")
    if "nored" in OPT:
        a.stamp_wave = 4; stamp_flush(a); a("s_endpgm"); return
    rho = sCNT
    giveup = a.label("Lgiveup"); poll = a.label("Lpoll")
    a("s_mul_i32 s%d, s%d, 54" % (sT0, rho)); a("s_mul_hi_u32 s%d, s%d, %d" % (sT2, sT0, (2**32 + 47) // 48))
    a("v_lshlrev_b32 v9, 2, v1"); a("v_mov_b32 v7, 0x40000000")
    a("s_lshl_b32 s%d, s%d, 7" % (sT2, sT2))
    a("buffer_load_dword v11, v9, %s, s%d offen sc1" % (srd(sFL), sT2))
    a("v_add_u32 v2, s%d, v1" % sT0)
    a("v_mul_u32_u24 v8, 1366, v2"); a("v_lshrrev_b32 v8, 16, v8")
    a("v_mul_u32_u24 v5, 48, v8"); a("v_sub_u32 v2, v2, v5")
    a("s_mul_i32 s%d, s%d, 48" % (sT1, sH)); a("v_add_u32 v2, s%d, v2" % sT1)
    a("v_mul_u32_u24 v3, 12288, v8"); a("v_lshlrev_b32 v5, 4, v2"); a("v_add_u32 v3, v3, v5")
    a("v_cmp_gt_u32 vcc, 54, v1"); a("s_nop 1"); a("v_cndmask_b32 v3, v7, v3, vcc")
    a("v_lshrrev_b32 v4, 6, v2"); a("v_and_b32 v5, 63, v2")
    a("v_cmp_le_u32 s[96:97], 6, v4"); a("s_nop 1"); a("v_cndmask_b32 v6, 0, 1, s[96:97]")
    a("v_mul_u32_u24 v10, 6, v6"); a("v_sub_u32 v4, v4, v10")
    a("v_lshlrev_b32 v4, 4, v4"); a("v_and_b32 v10, 15, v5"); a("v_add_u32 v4, v4, v10"); a("v_mul_u32_u24 v4, 1152, v4")
    a("v_lshlrev_b32 v6, 6, v6"); a("v_lshrrev_b32 v5, 4, v5"); a("v_lshlrev_b32 v5, 3, v5"); a("v_add_u32 v4, v4, v6"); a("v_add_u32 v4, v4, v5")
    a("s_and_b32 s%d, s%d, 7" % (sT1, sB)); a("v_add_u32 v8, s%d, v8" % sT1)
    a("v_cmp_le_u32 s[96:97], 9, v8"); a("s_nop 1"); a("v_cndmask_b32 v6, 0, 9, s[96:97]"); a("v_sub_u32 v8, v8, v6"); a("v_lshlrev_b32 v8, 7, v8"); a("v_add_u32 v4, v4, v8")
    a("v_cndmask_b32 v4, v7, v4, vcc")
    a("s_mov_b32 s%d, 0" % sT3)
    a("s_branch %s_chk" % poll)
    a("%s:" % poll)
    a("buffer_load_dword v11, v9, %s, s%d offen sc1" % (srd(sFL), sT2))
    a("%s_chk:" % poll)
    a("s_waitcnt vmcnt(0)")
    a("v_cmp_eq_u32 vcc, 1, v11")
    a("s_add_u32 s%d, s%d, 1" % (sT3, sT3)); a("s_cmp_gt_u32 s%d, %d" % (sT3, SPIN_MAX)); a("s_cbranch_scc1 %s" % giveup)
    a("s_cmp_eq_u64 vcc, -1"); a("s_cbranch_scc0 %s" % poll)
    a("s_mov_b32 s%d, 0" % sT0)
    for h in range(16):
        a("buffer_load_dwordx4 v[%d:%d], v3, %s, s%d offen%s" % (64 + 4 * h, 67 + 4 * h, srd(sPB), sT0, R_FLAGS))
        if h < 15: a("s_add_u32 s%d, s%d, %d" % (sT0, sT0, PART))
    for h in range(16):
        a("s_waitcnt vmcnt(%d)" % (15 - h))
        for r in range(4):
            src = 64 + 4 * h + r
            if h == 0:
                a("v_lshlrev_b32 v%d, 16, v%d" % (48 + 2 * r, src)); a("v_and_b32 v%d, 0xffff0000, v%d" % (49 + 2 * r, src))
            else:
                a("v_lshlrev_b32 v12, 16, v%d" % src); a("v_and_b32 v13, 0xffff0000, v%d" % src)
                a("v_add_f32 v%d, v%d, v12" % (48 + 2 * r, 48 + 2 * r)); a("v_add_f32 v%d, v%d, v13" % (49 + 2 * r, 49 + 2 * r))
    for r in range(4): a("v_cvt_pk_bf16_f32 v%d, v%d, v%d" % (56 + r, 48 + 2 * r, 49 + 2 * r))
    a("buffer_store_dwordx2 v[56:57], v4, %s, 0 offen%s" % (srd(sOUT), OUT_FLAGS))
    a("buffer_store_dwordx2 v[58:59], v4, %s, 0 offen offset:32%s" % (srd(sOUT), OUT_FLAGS))
    a("%s:" % giveup)
    if STAMP:
        sk = a.label("Lnst"); a("s_cmp_lg_u32 s%d, 4" % sWAVE); a("s_cbranch_scc1 %s" % sk)
        a.stamp_wave = 4; stamp(a, 15); stamp_flush(a)
        a("%s:" % sk)
    a("s_endpgm")
R_FLAGS = " sc1"
OUT_FLAGS = ""
sTASK2 = 101
PB0 = 143360
SPIN_MAX = 200000
sWOP = 70

PF_O_AT = 10
PF_WAVE = 1
PF_FIRST = 4
PF_AT = 0
PF0 = 2
FLW = 12
STG_AT = 7
NSTG0 = 3
ROTQ = (1, 0, 2, 0)
KROT = (2, 1)
CPF_AT = 11
FIRST_RULE = 1
CMP_SLACK = 6
FLAG_DELAY = 4

def O_(j, db): return (j * 8 + db) * 4
def Q_(j, s): return 96 + (j * 4 + s) * 4
def KF(f): return 144 + 4 * f
def VF(db): return 176 + 4 * db
def S_(par): return 208 + 8 * par
def P_(par): return 224 + 4 * par
def N_(j): return 232 + 4 * j
def L_(j): return 244 + j
vKA, vVA, vT, vT2, vS, vLANE = 247, 248, 252, 253, 254, 255
MF = "v_mfma_f32_16x16x32_bf16"

def interleave(mfmas, fillers):
    out = list(fillers.get(-1, []))
    for i, m in enumerate(mfmas):
        out.append(m); out += fillers.get(i, [])
    return out
def spread(items, slots):
    d = {}; n = len(items)
    for i, it in enumerate(items): d.setdefault(slots[i * len(slots) // n], []).append(it)
    return d
def merge(*ds):
    o = {}
    for d in ds:
        for k, v in d.items(): o.setdefault(k, []).extend(v)
    return o

KORD = [(kb, s) for s in range(4) for kb in range(2)]
def k_read(kb, s, half, ad=None):
    return "ds_read_b128 %s, v%d offset:%d" % (vr(KF(kb * 4 + s), 4), vKA if ad is None else ad, half * 8 * KGRP + kb * 4 * KGRP + s * 64)
def v_reads(db, half):
    A, cc = divmod(db, 4)
    o = half * 8 * VGRP + A * 128
    return ["ds_read_b64_tr_b16 %s, v%d offset:%d" % (vr(VF(db), 2), vVA + cc, o), "ds_read_b64_tr_b16 %s, v%d offset:%d" % (vr(VF(db) + 2, 2), vVA + cc, o + 4 * VGRP)]

TAB = None
def hoist_waits(lines):
    out = []
    for l in lines:
        if l.startswith("s_waitcnt lgkmcnt") and out:
            n = int(l.split("(")[1].split(")")[0])
            k = len(out) - 1; jumped = 0; ok = False
            while k >= 0:
                x = out[k]
                if x.startswith("v_mfma"): ok = True; break
                if x.endswith(":") or x.startswith(("s_cbranch", "s_barrier", "s_waitcnt")): break
                if x.startswith("ds_"): jumped += 1
                k -= 1
            if ok and n - jumped >= 0:
                out.insert(k + 1, "s_waitcnt lgkmcnt(%d)" % (n - jumped)); continue
        out.append(l)
    return out

def gen_compute(a):
    rare = []
    a("v_and_b32 v%d, 63, v0" % vLANE)
    a("s_lshr_b32 s%d, s%d, 1" % (sQI, sWAVE)); a("s_and_b32 s%d, s%d, 1" % (sRH, sWAVE))
    g, rp, c, q = 240, 241, 242, 243
    a("v_lshrrev_b32 v%d, 4, v%d" % (g, vLANE)); a("v_bfe_u32 v%d, v%d, 2, 2" % (rp, vLANE)); a("v_and_b32 v%d, 3, v%d" % (c, vLANE)); a("v_and_b32 v%d, 15, v%d" % (q, vLANE))
    vWA, vXA = 232, 244
    t, t2 = vT, vT2
    a("v_lshlrev_b32 v%d, 3, v%d" % (t, g)); a("v_add_u32 v%d, v%d, v%d" % (t, t, rp)); a("v_lshlrev_b32 v%d, 9, v%d" % (t, t))
    a("v_and_b32 v%d, 1, v%d" % (t2, g)); a("v_lshlrev_b32 v%d, 2, v%d" % (t2, t2)); a("v_add_u32 v%d, v%d, v%d" % (t2, t2, rp)); a("v_lshlrev_b32 v%d, 5, v%d" % (t2, t2))
    a("v_add_u32 v%d, v%d, v%d" % (t, t, t2)); a("v_lshlrev_b32 v%d, 3, v%d" % (t2, c)); a("v_add_u32 v%d, v%d, v%d" % (t, t, t2))
    a("s_lshl_b32 s%d, s%d, 8" % (sT0, sQI)); a("s_add_u32 s%d, s%d, %d" % (sT0, sT0, WBASE)); a("v_add_u32 v%d, s%d, v%d" % (t, sT0, t))
    assert WBASE % 256 == 0 and XBASE % 128 == 0
    for db in range(8): a("v_xor_b32 v%d, %d, v%d" % (vWA + db, db * 32, t))
    a("s_mul_i32 s%d, s%d, %d" % (sT0, sRH, 48 * 128)); a("s_add_u32 s%d, s%d, %d" % (sT0, sT0, XBASE))
    a("v_lshrrev_b32 v%d, 1, v%d" % (t, q)); a("v_xor_b32 v%d, v%d, v%d" % (t, t, g)); a("v_lshlrev_b32 v%d, 4, v%d" % (t, t))
    a("v_lshlrev_b32 v%d, 7, v%d" % (t2, q)); a("v_add_u32 v%d, v%d, v%d" % (t, t, t2)); a("v_add_u32 v%d, s%d, v%d" % (vXA, sT0, t)); a("v_xor_b32 v%d, 64, v%d" % (vXA + 1, vXA))
    a("v_lshrrev_b32 v%d, 2, v%d" % (t, q)); a("v_mul_u32_u24 v%d, %d, v%d" % (t, KGRP, t))
    a("v_and_b32 v%d, 3, v%d" % (t2, q)); a("v_lshlrev_b32 v%d, 8, v%d" % (vKA, t2)); a("v_add_u32 v%d, v%d, v%d" % (t, t, vKA))
    a("v_xor_b32 v%d, v%d, v%d" % (t2, t2, g)); a("v_lshlrev_b32 v%d, 4, v%d" % (t2, t2)); a("v_add_u32 v%d, v%d, v%d" % (vKA, t, t2))
    a("v_mul_u32_u24 v%d, %d, v%d" % (t, VGRP, g)); a("v_lshlrev_b32 v%d, 8, v%d" % (t2, rp)); a("v_add_u32 v%d, v%d, v%d" % (t, t, t2))
    a("v_lshlrev_b32 v%d, 3, v%d" % (t2, c)); a("v_add_u32 v%d, v%d, v%d" % (t, t, t2)); a("v_add_u32 v%d, %d, v%d" % (t, VOFF, t))
    for cc in range(4):
        a("v_xor_b32 v%d, %d, v%d" % (t2, cc, rp)); a("v_lshlrev_b32 v%d, 5, v%d" % (t2, t2)); a("v_add_u32 v%d, v%d, v%d" % (vVA + cc, t, t2))
    stamp(a, 0, 10)

    def ABUF(buf, db): return 144 + 32 * buf + 4 * db
    def BBUF(buf, j): return 208 + 12 * buf + 4 * j
    def q_reads(s):
        buf = s & 1; wo = ((s + 2) % 4) * 16384; xo = ((s // 2) % 2) * XSLOT
        r = []
        for j in range(3): r.append("ds_read_b128 %s, v%d offset:%d" % (vr(BBUF(buf, j), 4), vXA + (s & 1), xo + j * 2048))
        for db in range(8):
            r.append("ds_read_b64_tr_b16 %s, v%d offset:%d" % (vr(ABUF(buf, db), 2), vWA + db, wo))
            r.append("ds_read_b64_tr_b16 %s, v%d offset:%d" % (vr(ABUF(buf, db) + 2, 2), vWA + db, wo + 2048))
        return r
    for r in range(0, 96, 2): a("v_mov_b64 %s, 0" % vr(r, 2))
    a("s_barrier")
    for x in q_reads(0): a(x)
    def q_stage(s, reads=True):
        buf = s & 1
        a("s_waitcnt lgkmcnt(0)")
        a("s_barrier")
        mf = []
        for db in range(8):
            for j in range(3):
                mf.append("%s %s, %s, %s, %s" % (MF, vr(O_(j, db), 4), vr(ABUF(buf, db), 4), vr(BBUF(buf, j), 4), vr(O_(j, db), 4)))
        rd = q_reads(s + 1) if reads else []
        for x in interleave(mf, spread(rd, list(range(0, 17))) if rd else {}): a(x)
    lq = a.label("Lq")
    a("s_mov_b32 s%d, 0" % sCNT); a("%s:" % lq)
    for s in range(4): q_stage(s)
    a("s_add_u32 s%d, s%d, 1" % (sCNT, sCNT)); a("s_cmp_lt_u32 s%d, 4" % sCNT); a("s_cbranch_scc1 %s" % lq)
    q_stage(16); q_stage(17, reads=False)
    stamp(a, 1, 11)
    a("s_nop 7")
    a("s_mov_b32 s%d, %s" % (sT0, f32(C_SCALE))); a("s_mov_b32 s%d, s%d" % (sT0 + 1, sT0))
    for j in range(3):
        for s in range(4):
            X, Y, D = O_(j, 2 * s), O_(j, 2 * s + 1), Q_(j, s)
            for r in range(0, 4, 2):
                a("v_pk_mul_f32 %s, %s, s[%d:%d]" % (vr(X + r, 2), vr(X + r, 2), sT0, sT0 + 1)); a("v_pk_mul_f32 %s, %s, s[%d:%d]" % (vr(Y + r, 2), vr(Y + r, 2), sT0, sT0 + 1))
            a("v_cvt_pk_bf16_f32 v%d, v%d, v%d" % (D + 0, X + 0, X + 1)); a("v_cvt_pk_bf16_f32 v%d, v%d, v%d" % (D + 1, X + 2, X + 3))
            a("v_cvt_pk_bf16_f32 v%d, v%d, v%d" % (D + 2, Y + 0, Y + 1)); a("v_cvt_pk_bf16_f32 v%d, v%d, v%d" % (D + 3, Y + 2, Y + 3))
            for r in range(0, 4, 2):
                a("v_mov_b64 %s, 0" % vr(X + r, 2)); a("v_mov_b64 %s, 0" % vr(Y + r, 2))
            a("v_permlane32_swap_b32 v%d, v%d" % (D + 0, D + 2)); a("v_permlane32_swap_b32 v%d, v%d" % (D + 1, D + 3))
            a("s_nop 1")
            a("v_permlane16_swap_b32 v%d, v%d" % (D + 0, D + 2)); a("v_permlane16_swap_b32 v%d, v%d" % (D + 1, D + 3))
    a("s_barrier")
    for kb, s_ in KORD: a(k_read(kb, s_, 0))
    a("s_waitcnt lgkmcnt(0)")
    for j in range(3):
        for kb, s_ in KORD:
            d = 176 + 8 * j + 4 * kb
            a("%s %s, %s, %s, %s" % (MF, vr(d, 4), vr(KF(kb * 4 + s_), 4), vr(Q_(j, s_), 4), "0" if s_ == 0 else vr(d, 4)))
    for r in range(224, 232, 2): a("v_mov_b64 %s, 0" % vr(r, 2))
    for j in range(3): a("v_mov_b32 v%d, 0" % L_(j))
    a("v_mov_b32 v%d, 0" % vS)
    a("s_mov_b32 s%d, %s" % (sTHR, "0x7f800000" if "norare" in OPT else f32(256.0)))
    a("s_mov_b32 s%d, 0" % sSLOT); a("s_mov_b32 s%d, 0" % sDK)
    a("s_mov_b32 s%d, 0x%x" % (sNEG, -3 * PAIR & 0xffffffff))
    a("s_mov_b64 vcc, 0")
    a("s_nop 3")
    for j in range(3):
        S = 176 + 8 * j; t, t2 = 200 + 2 * j, 201 + 2 * j
        a("v_max3_f32 v%d, v%d, v%d, v%d" % (t, S, S + 1, S + 2)); a("v_max3_f32 v%d, v%d, v%d, v%d" % (t2, S + 3, S + 4, S + 5))
        a("v_max3_f32 v%d, v%d, v%d, v%d" % (t, t, S + 6, S + 7)); a("v_max_f32 v%d, v%d, v%d" % (t, t, t2))
    for sw in ("v_permlane32_swap_b32", "v_permlane16_swap_b32"):
        for j in range(3): a("v_mov_b32 v%d, v%d" % (201 + 2 * j, 200 + 2 * j))
        a("s_nop 0")
        for j in range(3): a("%s v%d, v%d" % (sw, 200 + 2 * j, 201 + 2 * j))
        for j in range(3): a("v_max_f32 v%d, v%d, v%d" % (200 + 2 * j, 200 + 2 * j, 201 + 2 * j))
    for j in range(3):
        for i in range(4): a("v_sub_f32 v%d, 0, v%d" % (N_(j) + i, 200 + 2 * j))
    for r in range(176, 208, 2): a("v_mov_b64 %s, 0" % vr(r, 2))
    def qk_mfmas(jn, par):
        m = []
        for kb, s in KORD:
            d = S_(par) + 4 * kb
            cc = vr(N_(jn), 4) if s == 0 else vr(d, 4)
            m.append("%s %s, %s, %s, %s" % (MF, vr(d, 4), vr(KF(kb * 4 + s), 4), vr(Q_(jn, s), 4), cc))
        return m
    def pv_mfmas(jp, par):
        return ["%s %s, %s, %s, %s" % (MF, vr(O_(jp, db), 4), vr(VF(db), 4), vr(P_(par), 4), vr(O_(jp, db), 4)) for db in range(8)]
    for m in qk_mfmas(0, 0): a(m)
    a("s_nop 7")

    def rare_code(st, j, adv):
        par = (3 * st + j) & 1
        S, P = S_(par), P_(par)
        rl, cont = a.label("Lrare"), a.label("Lcont")
        r = Asm()
        r("%s:" % rl)
        if adv: r("v_subrev_u32 v%d, s%d, v%d" % (vT2, sDK, vKA))
        else: r("v_mov_b32 v%d, v%d" % (vT2, vKA))
        for kb in range(2):
            for s in range(4):
                r("ds_read_b128 %s, v%d offset:%d" % (vr(P, 4), vT2, st * 8 * KGRP + kb * 4 * KGRP + s * 64))
                r("s_waitcnt lgkmcnt(0)")
                cc = vr(N_(j), 4) if s == 0 else vr(S + 4 * kb, 4)
                r("%s %s, %s, %s, %s" % (MF, vr(S + 4 * kb, 4), vr(P, 4), vr(Q_(j, s), 4), cc))
                r("s_nop 3")
        r("s_nop 7")
        r("v_max3_f32 v%d, v%d, v%d, v%d" % (vT, S, S + 1, S + 2)); r("v_max3_f32 v%d, v%d, v%d, v%d" % (vT2, S + 3, S + 4, S + 5))
        r("v_max3_f32 v%d, v%d, v%d, v%d" % (vT, vT, S + 6, S + 7)); r("v_max_f32 v%d, v%d, v%d" % (vT, vT, vT2))
        r("v_mov_b32 v%d, v%d" % (vT2, vT)); r("s_nop 1"); r("v_permlane32_swap_b32 v%d, v%d" % (vT, vT2)); r("v_max_f32 v%d, v%d, v%d" % (vT, vT, vT2))
        r("v_mov_b32 v%d, v%d" % (vT2, vT)); r("s_nop 1"); r("v_permlane16_swap_b32 v%d, v%d" % (vT, vT2)); r("v_max_f32 v%d, v%d, v%d" % (vT, vT, vT2))
        r("v_max_f32 v%d, 0, v%d" % (vT, vT))
        r("v_sub_f32 v%d, 0, v%d" % (vT2, vT)); r("v_exp_f32 v%d, v%d" % (vT2, vT2)); r("s_nop 0")
        r("v_mul_f32 v%d, v%d, v%d" % (L_(j), L_(j), vT2))
        for db in range(8):
            for rr in range(4): r("v_mul_f32 v%d, v%d, v%d" % (O_(j, db) + rr, O_(j, db) + rr, vT2))
        for i in range(4): r("v_sub_f32 v%d, v%d, v%d" % (N_(j) + i, N_(j) + i, vT))
        for i in range(8): r("v_sub_f32 v%d, v%d, v%d" % (S + i, S + i, vT))
        for i in range(8): r("v_exp_f32 v%d, v%d" % (S + i, S + i))
        r("s_nop 0")
        r("v_add_f32 v%d, v%d, v%d" % (vS, S, S + 1))
        for i in range(2, 8): r("v_add_f32 v%d, v%d, v%d" % (vS, vS, S + i))
        for i in range(4): r("v_cvt_pk_bf16_f32 v%d, v%d, v%d" % (P + i, S + 2 * i, S + 2 * i + 1))
        r("s_nop 1")
        r("s_branch %s" % cont)
        rare.append(r.text())
        if "nobr" in OPT: return ["%s:" % cont]
        if "sccbr" in OPT: return ["s_cbranch_scc1 %s" % rl, "%s:" % cont]
        return ["s_cbranch_vccnz %s" % rl, "%s:" % cont]

    def block_tab(st, j, prev, qk=True, kload=None, vlo=None, vhi=None, barrier=False, extra=(), pre_extra=(), klate=None):
        par = (3 * st + j) & 1
        jn, jp = (j + 1) % 3, (j - 1) % 3
        S, P = S_(par), P_(par)
        pre = []
        if barrier: pre.append("s_barrier")
        endbr = []
        if "brend" in OPT:
            endbr = rare_code(st, j, st == 1 and j >= 1)
        elif prev is not None: pre += rare_code(*prev)
        pre += list(pre_extra)
        mf = qk_mfmas(jn, par ^ 1) + pv_mfmas(jp, par ^ 1)
        N = {}
        for i in range(8): N["E%d" % i] = "v_exp_f32 v%d, v%d" % (S + i, S + i)
        for i in range(4):
            N["C%d" % i] = "v_cvt_pk_bf16_f32 v%d, v%d, v%d" % (P + i, S + 2 * i, S + 2 * i + 1)
            N["A%d" % i] = "v_add_f32 v%d, v%d, v%d" % (S + 2 * i, S + 2 * i, S + 2 * i + 1)
        N["B0"] = "v_add_f32 v%d, v%d, v%d" % (S, S, S + 2); N["B1"] = "v_add_f32 v%d, v%d, v%d" % (S + 4, S + 4, S + 6)
        N["SUM"] = "v_add_f32 v%d, v%d, v%d" % (vS, S, S + 4); N["CMP"] = "v_cmp_lt_f32 vcc, s%d, v%d" % (sTHR, vS)
        N["L"] = "v_add_f32 v%d, v%d, v%d" % (L_(jp), L_(jp), vS)
        lds = {g: [] for g in range(16)}
        if "nolds" not in OPT:
            if vlo is not None:
                rs = [x for db in range(4) for x in v_reads(db, vlo)]
                for x, g in zip(rs, TAB["vlo"]): lds[g].append(x)
            if vhi is not None:
                rs = [x for db in range(4, 8) for x in v_reads(db, vhi)]
                for x, g in zip(rs, TAB["vhi"]): lds[g].append(x)
            if kload is not None:
                for (kb, s_), g in zip(KORD[:6], TAB["k"]): lds[g].append(k_read(kb, s_, kload))
            if klate is not None:
                for (kb, s_), g in zip(KORD[6:], TAB["klate"]): lds[g].append(k_read(kb, s_, klate))
        out = list(pre)
        ex = list(extra)
        for g in range(16):
            out.append(mf[g])
            if g == 15 and endbr: out += (["s_cmp_lg_u64 vcc, 0"] if "sccbr" in OPT else []) + endbr
            out += lds[g]
            if "nosm" not in OPT: out += [N[n] for n in TAB["valu"].get(g, [])]
            if g == TAB.get("scc_at", 15) and "sccbr" in OPT and "brend" not in OPT: out.append("s_cmp_lg_u64 vcc, 0")
            if g in TAB.get("extra_at", ()) and ex:
                x = ex.pop(0); out += (x if isinstance(x, list) else [x])
        for x in ex: out += (x if isinstance(x, list) else [x])
        return out

    def block(st, j, prev, qk=True, kload=None, vlo=None, vhi=None, barrier=False, extra=(), pre_extra=(), klate=None):
        if TAB is not None and qk: return block_tab(st, j, prev, qk, kload, vlo, vhi, barrier, extra, pre_extra, klate)
        if "brend" in OPT: prev = None
        if "sccbr" in OPT and prev is not None: pre_extra = list(pre_extra)
        par = (3 * st + j) & 1
        jn, jp = (j + 1) % 3, (j - 1) % 3
        S, P = S_(par), P_(par)
        pre = []
        if barrier: pre.append("s_barrier")
        if prev is not None: pre += rare_code(*prev)
        pre += list(pre_extra)
        mf = (qk_mfmas(jn, par ^ 1) if qk else []) + pv_mfmas(jp, par ^ 1)
        nq = 8 if qk else 0
        if not qk: pre.append("s_nop 1")
        it = []
        Ladd = Item("v_add_f32 v%d, v%d, v%d" % (L_(jp), L_(jp), vS), lo=0, hi=6, pri=5)
        E = [Item("v_exp_f32 v%d, v%d" % (S + i, S + i), lo=0, pri=3) for i in range(8)]
        for i in range(1, 8): pass
        A01 = Item("v_add_f32 v%d, v%d, v%d" % (vT, S, S + 1), deps=[E[0], E[1]])
        A23 = Item("v_add_f32 v%d, v%d, v%d" % (vT2, S + 2, S + 3), deps=[E[2], E[3]])
        B_ = Item("v_add_f32 v%d, v%d, v%d" % (vT, vT, vT2), deps=[A01, A23])
        A45 = Item("v_add_f32 v%d, v%d, v%d" % (vT2, S + 4, S + 5), deps=[E[4], E[5], B_])
        C_ = Item("v_add_f32 v%d, v%d, v%d" % (vT, vT, vT2), deps=[A45])
        A67 = Item("v_add_f32 v%d, v%d, v%d" % (vT2, S + 6, S + 7), deps=[E[6], E[7], C_])
        D_ = Item("v_add_f32 v%d, v%d, v%d" % (vS, vT, vT2), deps=[A67, Ladd])
        CMP = Item("v_cmp_lt_f32 vcc, s%d, v%d" % (sTHR, vS), deps=[D_], hi=len(mf) - CMP_SLACK)
        CV = [Item("v_cvt_pk_bf16_f32 v%d, v%d, v%d" % (P + i, S + 2 * i, S + 2 * i + 1), deps=[E[2 * i], E[2 * i + 1]], hi=len(mf) - 2) for i in range(4)]
        if "nosm" in OPT: it = []
        else: it = [Ladd] + E + [A01, A23, B_, A45, C_, A67, D_, CMP] + CV
        if "nolds" not in OPT:
            if vlo is not None:
                for db in range(4): it.append(Item(v_reads(db, vlo), lo=nq + db, pri=4))
            if vhi is not None:
                for db in range(4, 8): it.append(Item(v_reads(db, vhi), lo=0, hi=nq + db - 7, pri=6))
            if kload is not None:
                for i, (kb, s) in enumerate(KORD[:6]): it.append(Item(k_read(kb, s, kload), lo=max(i, 5), hi=min(15, 9 + i), pri=4))
            if klate is not None:
                for i, (kb, s) in list(enumerate(KORD))[6:]: it.append(Item(k_read(kb, s, klate), lo=0, hi=0, pri=7))
        for x in extra: it.append(Item(x, lo=8))
        return schedule(mf, it, pre)

    def tile(last, first_of_all=False):
        L = []
        L += block(0, 0, (1, 2, True), vlo=0)
        L += block(0, 1, (0, 0, False), vhi=0, kload=1)
        L += block(0, 2, (0, 1, False), klate=1)
        L += block(1, 0, (0, 2, False), vlo=1)
        adv = ["s_add_u32 s%d, s%d, 1" % (sSLOT, sSLOT), "s_and_b32 s%d, s%d, 3" % (sSLOT, sSLOT), "s_cmp_eq_u32 s%d, 0" % sSLOT,
               "s_cselect_b32 s%d, s%d, %d" % (sDK, sNEG, PAIR), "v_add_u32 v%d, s%d, v%d" % (vKA, sDK, vKA)]
        L += block(1, 1, (1, 0, False), vhi=1, kload=(None if last else 0), barrier=True, pre_extra=adv)
        L += block(1, 2, (1, 1, True), qk=not last, klate=(None if last else 0),
                   extra=[["v_add_u32 v%d, s%d, v%d" % (vVA + cc, sDK, vVA + cc)] for cc in range(4)])
        return L
    steady = tile(False)
    del rare[:]
    steady2 = tile(False)
    lastt = tile(True)
    if TAB is not None:
        body = hoist_waits(auto_lgkm(steady2, entry_lines=steady, age=TAB.get("age")))
        lastb = hoist_waits(auto_lgkm(lastt, entry_lines=steady, age=TAB.get("age")))
    else:
        body = auto_lgkm(steady2, entry_lines=steady)
        lastb = auto_lgkm(lastt, entry_lines=steady)
    print("   attention steady tile: model %d cycles (%d/unit), %d instrs" % (model_cycles(body), model_cycles(body) / 6, len(body)))
    loop = a.label("Ltile")
    _stamp(a, 6, "s_memtime")
    a("s_mov_b32 s%d, 0" % sCNT)
    a("%s:" % loop)
    for x in body: a(x)
    a("s_add_u32 s%d, s%d, 1" % (sCNT, sCNT)); a("s_cmp_lt_u32 s%d, 15" % sCNT); a("s_cbranch_scc1 %s" % loop)
    _stamp(a, 7, "s_memtime")
    for x in lastb: a(x)
    for x in rare_code(1, 2, True): a(x)
    a("v_add_f32 v%d, v%d, v%d" % (L_(2), L_(2), vS))
    a("s_nop 1")
    for m in pv_mfmas(2, 1): a(m)
    a("s_nop 7")
    stamp(a, 2, 12)
    for j in range(3):
        L = L_(j)
        a("v_mov_b32 v%d, v%d" % (vT, L)); a("s_nop 1"); a("v_permlane32_swap_b32 v%d, v%d" % (L, vT)); a("v_add_f32 v%d, v%d, v%d" % (L, L, vT))
        a("v_mov_b32 v%d, v%d" % (vT, L)); a("s_nop 1"); a("v_permlane16_swap_b32 v%d, v%d" % (L, vT)); a("v_add_f32 v%d, v%d, v%d" % (L, L, vT))
        a("v_rcp_f32 v%d, v%d" % (L, L))
    a("s_nop 1")
    def OA(s, j): return 96 + (s * 3 + j) * 4
    def OB(s, j): return 144 + (s * 3 + j) * 4
    for j in range(3):
        a("v_mov_b32 v%d, v%d" % (vT2, L_(j))); a("v_mov_b32 v%d, v%d" % (vT, L_(j)))
        for s in range(4):
            X, Y, D = O_(j, 2 * s), O_(j, 2 * s + 1), OA(s, j)
            for r in range(0, 4, 2):
                a("v_pk_mul_f32 %s, %s, %s" % (vr(X + r, 2), vr(X + r, 2), vr(vT, 2))); a("v_pk_mul_f32 %s, %s, %s" % (vr(Y + r, 2), vr(Y + r, 2), vr(vT, 2)))
            a("v_cvt_pk_bf16_f32 v%d, v%d, v%d" % (D + 0, X + 0, X + 1)); a("v_cvt_pk_bf16_f32 v%d, v%d, v%d" % (D + 1, X + 2, X + 3))
            a("v_cvt_pk_bf16_f32 v%d, v%d, v%d" % (D + 2, Y + 0, Y + 1)); a("v_cvt_pk_bf16_f32 v%d, v%d, v%d" % (D + 3, Y + 2, Y + 3))
    vA0, vA1 = 240, 241
    a("v_lshlrev_b32 v%d, 4, v%d" % (vT, vLANE))
    a("s_mul_i32 s%d, s%d, 12288" % (sT0, sWAVE)); a("s_add_u32 s%d, s%d, %d" % (sT0, sT0, EXCH)); a("v_add_u32 v%d, s%d, v%d" % (vA0, sT0, vT))
    a("s_xor_b32 s%d, s%d, 2" % (sT2, sWAVE)); a("s_mul_i32 s%d, s%d, 12288" % (sT0, sT2)); a("s_add_u32 s%d, s%d, %d" % (sT0, sT0, EXCH)); a("v_add_u32 v%d, s%d, v%d" % (vA1, sT0, vT))
    a("s_barrier")
    for i in range(12): a("ds_write_b128 v%d, %s offset:%d" % (vA0, vr(96 + 4 * i, 4), i * 1024))
    vAO, vST = 224, 228
    g, rp, c, t = 242, 243, 244, 245
    a("v_lshrrev_b32 v%d, 4, v%d" % (g, vLANE)); a("v_bfe_u32 v%d, v%d, 2, 2" % (rp, vLANE)); a("v_and_b32 v%d, 3, v%d" % (c, vLANE))
    a("v_lshlrev_b32 v%d, 2, v%d" % (t, g)); a("v_add_u32 v%d, v%d, v%d" % (t, t, rp))
    a("v_lshrrev_b32 v%d, 1, v%d" % (g, t)); a("v_and_b32 v%d, 3, v%d" % (g, g)); a("v_lshlrev_b32 v%d, 5, v%d" % (g, g))
    a("v_lshlrev_b32 v%d, 7, v%d" % (t, t)); a("v_add_u32 v%d, v%d, v%d" % (t, t, g)); a("v_lshlrev_b32 v%d, 3, v%d" % (c, c)); a("v_add_u32 v%d, v%d, v%d" % (t, t, c))
    a("s_lshl_b32 s%d, s%d, 6" % (sT0, sQI)); a("v_xor_b32 v%d, s%d, v%d" % (t, sT0, t))
    a("s_lshl_b32 s%d, s%d, 14" % (sT0, sQI)); a("s_xor_b32 s%d, s%d, 16384" % (sT1, sT0))
    a("v_add_u32 v%d, s%d, v%d" % (vAO + 0, sT0, t)); a("v_xor_b32 v%d, 32, v%d" % (vAO + 1, vAO + 0))
    a("v_add_u32 v%d, s%d, v%d" % (vAO + 2, sT1, t)); a("v_xor_b32 v%d, 32, v%d" % (vAO + 3, vAO + 2))
    a("s_mul_i32 s%d, s%d, 6144" % (sT0, sQI)); a("s_mul_i32 s%d, s%d, 3072" % (sT1, sRH)); a("s_add_u32 s%d, s%d, s%d" % (sT0, sT0, sT1))
    a("v_add_u32 v%d, s%d, v%d" % (vST, sT0, vT))
    a("s_waitcnt lgkmcnt(0)")
    a("s_barrier")
    for i in range(12): a("ds_read_b128 %s, v%d offset:%d" % (vr(144 + 4 * i, 4), vA1, i * 1024))
    stamp(a, 3, 13)
    assert PAIR % 256 == 0
    def AF(i): return 192 + 4 * (i % 8)
    def ACC(buf, z, j): return buf * 24 + (z * 3 + j) * 4
    def PK(buf, j): return 48 + buf * 12 + 4 * j
    def a_reads(G):
        c_, kk = divmod(G, 8)
        hs, s = (0, kk) if kk < 4 else (1, kk - 4)
        r = []
        for z in range(2):
            fr = AF(2 * G + z)
            r.append("ds_read_b64_tr_b16 %s, v%d offset:%d" % (vr(fr, 2), vAO + 2 * hs + z, s * 4096))
            r.append("ds_read_b64_tr_b16 %s, v%d offset:%d" % (vr(fr + 2, 2), vAO + 2 * hs + z, s * 4096 + 2048))
        return r
    LOOK = 3
    def slot_delta(c_from): return (-3 * PAIR if (16 + c_from + 1) % 4 == 0 else PAIR) & 0xffffffff
    for G in range(LOOK):
        for x in a_reads(G): a(x)
    vPW, vPWR = 229, 231
    a("v_lshlrev_b32 v%d, 4, v%d" % (vT, vLANE))
    a("s_mul_i32 s%d, s%d, 3072" % (sT0, sWAVE)); a("s_add_u32 s%d, s%d, %d" % (sT0, sT0, PB0)); a("v_add_u32 v%d, s%d, v%d" % (vPW, sT0, vT))
    a("s_mul_i32 s%d, s%d, %d" % (sT0, sWAVE, PAIR)); a("s_add_u32 s%d, s%d, 32768" % (sT0, sT0)); a("v_add_u32 v%d, s%d, v%d" % (vPWR, sT0, vT))
    a("v_add_u32 v%d, %d, v%d" % (vPW + 1, 156672, vT))
    sD, sDP, sSL = sDK, sNEG + 0, sSLOT
    sD, sDP = 56, 69
    a("s_mov_b32 s%d, 0" % sSLOT); a("s_mov_b32 s%d, 0" % sDP); a("s_mov_b32 s%d, 0x%x" % (sNEG, -3 * PAIR & 0xffffffff))
    def epilogue(buf):
        epi = []
        for j in range(3):
            d = PK(buf, j)
            for z in range(2):
                A_ = ACC(buf, z, j)
                epi.append("v_cvt_pk_bf16_f32 v%d, v%d, v%d" % (d + 2 * z, A_, A_ + 1)); epi.append("v_cvt_pk_bf16_f32 v%d, v%d, v%d" % (d + 2 * z + 1, A_ + 2, A_ + 3))
            epi.append("ds_write_b128 v%d, %s offset:%d" % (vPW + buf, vr(d, 4), j * 1024))
        return epi
    def o_step(buf, last):
        pend = epilogue(buf ^ 1)
        for kk in range(8):
            G = kk
            hs, s = (0, kk) if kk < 4 else (1, kk - 4)
            pre = []; rd = []; barrier = (kk == 5)
            if kk == 5 and not last:
                pre += ["s_add_u32 s%d, s%d, 1" % (sSLOT, sSLOT), "s_and_b32 s%d, s%d, 3" % (sSLOT, sSLOT), "s_cmp_eq_u32 s%d, 0" % sSLOT, "s_cselect_b32 s%d, s%d, %d" % (sD, sNEG, PAIR),
                        "v_add_u32 v%d, s%d, v%d" % (vAO + 0, sD, vAO + 0), "v_add_u32 v%d, s%d, v%d" % (vAO + 1, sD, vAO + 1)]
            if kk == 1:
                pre += ["v_add_u32 v%d, s%d, v%d" % (vAO + 2, sDP, vAO + 2), "v_add_u32 v%d, s%d, v%d" % (vAO + 3, sDP, vAO + 3)]
            if kk == 6 and not last: pre += ["s_mov_b32 s%d, s%d" % (sDP, sD)]
            if kk == 3 and buf == 0: pre += ["v_mov_b32 v%d, v%d" % (vPW + 1, vPWR)]
            if not (last and kk + LOOK >= 8): rd = a_reads(G + LOOK)
            younger = 4 * (LOOK - 1) if not last else 4 * min(LOOK - 1, 7 - kk)
            a("s_waitcnt lgkmcnt(%d)" % younger)
            if barrier: a("s_barrier")
            for x in pre: a(x)
            mf = []
            for z in range(2):
                for j in range(3):
                    bsrc = OA(s, j) if hs == 0 else OB(s, j)
                    cc = "0" if kk == 0 else vr(ACC(buf, z, j), 4)
                    mf.append("%s %s, %s, %s, %s" % (MF, vr(ACC(buf, z, j), 4), vr(AF(2 * G + z), 4), vr(bsrc, 4), cc))
            fill = spread(rd, [0, 1, 2, 3]) if rd else {}
            if pend and kk >= 1:
                take = pend[:8] if kk == 1 else pend
                pend = pend[len(take):]
                fill = merge(fill, spread(take, [1, 2, 3, 4, 5]))
            for x in interleave(mf, fill): a(x)
    lo = a.label("Lo")
    a("s_mov_b32 s%d, 0" % sCNT); a("%s:" % lo)
    o_step(0, False); o_step(1, False)
    a("s_add_u32 s%d, s%d, 1" % (sCNT, sCNT)); a("s_cmp_lt_u32 s%d, 4" % sCNT); a("s_cbranch_scc1 %s" % lo)
    o_step(0, True)
    a("s_nop 7")
    for x in epilogue(0): a(x)
    a("s_waitcnt lgkmcnt(0)")
    a("s_barrier")
    stamp(a, 4, 14)
    stamp(a, 5)
    stamp_flush(a)
    a("v_mov_b32 v1, v%d" % vLANE)
    a("s_mov_b32 s%d, s%d" % (sCNT, sWAVE))
    a("s_branch L_reduce")
    for r in rare: a(r)

def mk_srd(a, b, lo, hi, off, size):
    a("s_add_u32 s%d, s%d, s%d" % (b, lo, off)); a("s_addc_u32 s%d, s%d, 0" % (b + 1, hi)); a("s_mov_b32 s%d, %d" % (b + 2, size)); a("s_mov_b32 s%d, 0x20000" % (b + 3))

def gen_k1():
    a = Asm(); a.stamp_wave = 0; a.stamp_tmp = 252
    common_prologue(a, "L_k1_end", 256)
    a("s_and_b32 s%d, s2, 7" % sXCD); a("s_lshr_b32 s%d, s2, 3" % sIDX)
    a("s_and_b32 s%d, s%d, 1" % (sB, sXCD)); a("s_lshl_b32 s%d, s%d, 3" % (sB, sB)); a("s_and_b32 s%d, s%d, 7" % (sT2, sIDX)); a("s_add_u32 s%d, s%d, s%d" % (sB, sB, sT2))
    a("s_lshr_b32 s%d, s%d, 1" % (sH, sXCD)); a("s_lshl_b32 s%d, s%d, 2" % (sH, sH)); a("s_lshr_b32 s%d, s%d, 3" % (sT2, sIDX)); a("s_add_u32 s%d, s%d, s%d" % (sH, sH, sT2))
    a("s_lshl_b32 s%d, s%d, 4" % (sT0, sB)); a("s_add_u32 s%d, s%d, s%d" % (sT0, sT0, sH))
    a("s_lshl_b32 s%d, s%d, 18" % (sT1, sT0))
    mk_srd(a, sK, 6, 7, sT1, 262144); mk_srd(a, sV, 8, 9, sT1, 262144)
    a("s_mul_i32 s%d, s%d, 110592" % (sT1, sB)); mk_srd(a, sX, 4, 5, sT1, 110592)
    a("s_lshl_b32 s%d, s%d, 9" % (sT1, sH)); mk_srd(a, sWQ, 10, 11, sT1, 0); a("s_sub_u32 s%d, 4718592, s%d" % (sWQ + 2, sT1))
    a("s_mul_i32 s%d, s%d, 294912" % (sT1, sH)); mk_srd(a, sWO, 12, 13, sT1, 294912)
    a("s_mul_i32 s%d, s%d, %d" % (sT1, sT0, PART)); a("s_add_u32 s%d, s%d, %d" % (sT1, sT1, WS_PART)); mk_srd(a, sP, 18, 19, sT1, PART)
    a("s_lshr_b32 s%d, s%d, 2" % (sT1, sH)); a("s_lshl_b32 s%d, s%d, 11" % (sT1, sT1)); mk_srd(a, sPF, 10, 11, sT1, 0); a("s_sub_u32 s%d, 4718592, s%d" % (sPF + 2, sT1))
    a("s_lshr_b32 s%d, s%d, 3" % (sT1, sB)); a("s_mul_i32 s%d, s%d, %d" % (sT1, sT1, 8 * 110592)); mk_srd(a, sPF2, 4, 5, sT1, 8 * 110592)
    a("s_mov_b32 s%d, s12" % sWOP); a("s_mov_b32 s%d, s13" % (sWOP + 1))
    a("s_mul_i32 s%d, s%d, 110592" % (sT1, sB)); mk_srd(a, sOUT, 14, 15, sT1, 110592)
    a("s_mul_i32 s%d, s%d, %d" % (sT1, sB, 16 * PART)); a("s_add_u32 s%d, s%d, %d" % (sT1, sT1, WS_PART)); mk_srd(a, sPB, 18, 19, sT1, 16 * PART)
    a("s_mul_i32 s%d, s%d, %d" % (sT1, sB, 9 * 128)); a("s_add_u32 s%d, s%d, %d" % (sT1, sT1, WS_FLAG)); mk_srd(a, sFL, 18, 19, sT1, 9 * 128)
    if STAMP:
        a("s_lshl_b32 s%d, s2, 9" % sT1); a("s_add_u32 s%d, s18, s%d" % (sSTAMP, sT1)); a("s_addc_u32 s%d, s19, 0" % (sSTAMP + 1))
    if "allc" in OPT: a("s_and_b32 s%d, s%d, 3" % (sWAVE, sWAVE))
    a("s_cmp_ge_u32 s%d, 4" % sWAVE); a("s_cbranch_scc1 L_loader")
    gen_compute(a)
    a("L_loader:")
    a.stamp_wave = 4; a.stamp_tmp = 40
    gen_loader(a)
    gen_reducer(a)
    a("L_k1_end:")
    a("s_endpgm")
    return a.text()

def build(fn, stamp=False, opt=()):
    global STAMP, OPT
    STAMP = stamp; OPT = set(opt)
    k1 = gen_k1()
    errs = hazard.check(k1, "k1")
    for e in errs[:10]: print(e)
    if errs: print("k1: %d hazard warnings" % len(errs))
    txt = HEADER + "; @launch grid=(256,1,1) block=(512,1,1) lds=%d\n" % LDS_BYTES
    txt += '.amdgcn_target "amdgcn-amd-amdhsa--gfx950"\n.text\n' + kernel_begin(KNAME) + k1 + '\n.section .rodata,"a"\n.p2align 6\n' + kernel_desc(KNAME, 256, 102, 256)
    open(fn, "w").write(txt)
    print(fn, len(txt), "bytes,", txt.count("\n"), "lines")

if __name__ == "__main__":
    def pieces(start, per):
        d = {}; st = start
        for kind in "KV":
            for lo in range(0, 8, per):
                d.setdefault(st, []).append((kind, 0, lo, lo + per)); st += 1
        return d
    def mk(start, per, i1at):
        d = pieces(start, per)
        d.setdefault(i1at, []).extend([("K", 1), ("V", 1)])
        d.setdefault(19, []).extend([("K", 2), ("V", 2)])
        return d
    PF0 = 0
    O = ["rotq", "nopfq", "notlb"]
    KSCHED = mk(12, 4, 18)
    TAB = None
    build("v7.s", False, O); build("v7_st.s", True, O); build("v7_nl.s", True, O + ["noload", "nored", "norare"])
```

```python
import sys, struct
from asmlib import *
import hazard
from sched import Item, schedule, auto_lgkm, model_cycles

def f32(x): return "0x%08x" % struct.unpack("<I", struct.pack("<f", x))[0]
C_SCALE = 1.4426950408889634 / (128 ** 0.5)

PAIR = 35840
KGRP, VGRP = 1088, 1152
VOFF = 16 * KGRP
WBASE = 2 * PAIR
XBASE = WBASE + 4 * 16384
XSLOT = 12288
EXCH = 3 * PAIR
LDS_BYTES = 163840
PART = 108 * 1024
WS_PART = 1 << 20
WS_FLAG = 1 << 19
KNAME = 'standalone__gqa_block_cached__near_ridge_kernel'
OPT = set()
STAMP = False

sK, sV, sX, sWQ, sWO, sP = 20, 24, 28, 32, 36, 40
sWAVE, sB, sH, sLW = 44, 45, 46, 47
sT0, sT1, sT2, sT3 = 48, 49, 50, 51
sLWK, sLW3072, sLWV, sLW4096 = 52, 53, 59, 66
sTHR, sCNT, sDK, sNEG, sSLOT = 54, 55, 56, 57, 58
sSTAMP = 60
sTM = 62
sQI, sRH = 64, 65
sXCD, sIDX = 67, 68
sPF = 72
sPF2 = 76
sFL = 8
sPB = 4
sOUT = 12
def srd(b): return "s[%d:%d]" % (b, b + 3)
def vr(b, n=1): return "v%d" % b if n == 1 else "v[%d:%d]" % (b, b + n - 1)

def _stamp(a, idx, instr):
    if not STAMP: return
    a("%s s[%d:%d]" % (instr, sTM, sTM + 1)); a("s_waitcnt lgkmcnt(0)")
    if a.stamp_wave == 0: a("s_mov_b32 s%d, s%d" % (80 + idx, sTM))
    else: a("v_writelane_b32 v40, s%d, %d" % (sTM, idx))
def stamp(a, idx, cyc=None):
    _stamp(a, idx, "s_memrealtime")
    if cyc is not None: _stamp(a, cyc, "s_memtime")
DBG_WG = 37
def stamp_flush(a):
    if not STAMP: return
    if "dbg" in OPT:
        sk = a.label("Ldbgs")
        a("s_cmp_lg_u32 s2, %d" % DBG_WG); a("s_cbranch_scc1 %s" % sk)
        a("s_cmp_lg_u32 s%d, %d" % (sWAVE, a.stamp_wave)); a("s_cbranch_scc1 %s" % sk)
        a("v_mov_b32 v1, 0")
        if a.stamp_wave == 0:
            for dw, (j, j0) in zip((1, 2, 3, 5, 6, 7, 9, 10, 11), ((1, 0), (2, 0), (3, 0), (4, 0), (11, 10), (12, 11), (13, 12), (14, 13), (7, 6))):
                a("s_sub_u32 s%d, s%d, s%d" % (sT0, 80 + j, 80 + j0)); a("v_mov_b32 v2, s%d" % sT0); a("global_store_dword v1, v2, s[16:17] offset:%d" % (4 * dw))
        else:
            a("v_readlane_b32 s%d, v40, 15" % sT0); a("v_readlane_b32 s%d, v40, 16" % sT1); a("s_nop 3"); a("s_sub_u32 s%d, s%d, s%d" % (sT0, sT0, sT1)); a("v_mov_b32 v2, s%d" % sT0)
            a("global_store_dword v1, v2, s[16:17] offset:52")
            a("v_readlane_b32 s%d, v40, 36" % sT0); a("s_nop 3"); a("s_sub_u32 s%d, s%d, s%d" % (sT0, sT0, sT1)); a("v_mov_b32 v2, s%d" % sT0)
            a("global_store_dword v1, v2, s[16:17] offset:56")
        a("%s:" % sk)
        return
    sk = a.label("Lst")
    a("s_cmp_lg_u32 s%d, %d" % (sWAVE, a.stamp_wave)); a("s_cbranch_scc1 %s" % sk)
    if a.stamp_wave == 0:
        a("v_mov_b32 v1, 0")
        for i in range(16):
            if i in (8, 9, 15): continue
            a("v_mov_b32 v2, s%d" % (80 + i)); a("global_store_dword v1, v2, s[%d:%d] offset:%d" % (sSTAMP, sSTAMP + 1, 4 * i))
    else:
        a("v_and_b32 v2, 63, v0"); a("v_lshlrev_b32 v3, 2, v2")
        a("v_cmp_lt_u32 vcc, 14, v2"); a("v_cmp_eq_u32 s[96:97], 8, v2"); a("s_or_b64 vcc, vcc, s[96:97]"); a("v_cmp_eq_u32 s[96:97], 9, v2"); a("s_or_b64 vcc, vcc, s[96:97]")
        a("s_and_saveexec_b64 s[96:97], vcc")
        a("global_store_dword v3, v40, s[%d:%d]" % (sSTAMP, sSTAMP + 1))
        a("s_mov_b64 exec, s[96:97]")
    a("%s:" % sk)

def common_prologue(a, endlab, nwg):
    a("s_cmp_ge_u32 s2, %d" % nwg); a("s_cbranch_scc1 %s" % endlab)
    a("s_load_dwordx8 s[4:11], s[0:1], 0")
    a("s_load_dwordx4 s[12:15], s[0:1], 32")
    a("s_load_dwordx4 s[16:19], s[0:1], 48")
    a("v_lshrrev_b32 v1, 6, v0")
    a("s_nop 0")
    a("v_readfirstlane_b32 s%d, v1" % sWAVE)
    a("s_waitcnt lgkmcnt(0)")

class VQ:
    def __init__(s): s.q = []
    def issue(s, tag, n=1): s.q += [tag] * n
    def wait(s, tags):
        idx = [i for i, t in enumerate(s.q) if t in tags]
        if not idx: return None
        last = max(idx); n = len(s.q) - 1 - last
        s.q = s.q[last + 1:]
        return min(n, 63)

KV_FLAGS = " nt"
W_FLAGS = ""
O_FLAGS = ""
P_FLAGS = " sc0 sc1"


def gen_loader(a):
    a("s_sub_u32 s%d, s%d, 4" % (sLW, sWAVE))
    a("v_and_b32 v1, 63, v0")
    if STAMP: a("v_mov_b32 v40, 0")
    a("s_cmp_ge_u32 s%d, 2" % sLW); a("s_cbranch_scc1 L_kvloader")
    gen_wloader(a)
    a("L_kvloader:")
    gen_kvloader(a)

def mk_bar(a, q, trace_base=None):
    def bar(tags):
        n = q.wait(tags) if tags else None
        if n is not None and "nowait" not in OPT: a("s_waitcnt vmcnt(%d)" % n)
        if "trace" in OPT and bar.n < 48 and trace_base is not None: stamp(a, 16 + bar.n)
        a("s_barrier")
        bar.n += 1
    bar.n = 0
    return bar

def dma(a, vreg, srdb, soff, imm, flags):
    if "noload" in OPT: return
    a("buffer_load_dwordx4 v%d, %s, s%d offen offset:%d%s lds" % (vreg, srd(srdb), soff, imm, flags))

def emit_pf(a, chunks, lane=1):
    if not chunks: return
    sk = a.label("Lpfq"); skx = a.label("Lpfx")
    a("s_cmp_ge_u32 s%d, 28" % sIDX); a("s_cbranch_scc1 %s" % sk)
    a("s_cmp_ge_u32 s%d, 16" % sIDX); a("s_cbranch_scc1 %s" % skx)
    a("v_lshrrev_b32 v30, 4, v%d" % lane); a("v_and_b32 v31, 15, v%d" % lane)
    a("s_lshl_b32 s%d, s%d, 2" % (sT0, sIDX)); a("v_add_u32 v30, s%d, v30" % sT0); a("v_lshlrev_b32 v30, 13, v30"); a("v_lshlrev_b32 v31, 7, v31"); a("v_add_u32 v30, v30, v31")
    for cp in chunks:
        if isinstance(cp, int): a("s_mov_b32 s%d, %d" % (sT0, cp * 64 * 8192))
        else: a("s_lshl_b32 s%d, s%d, 19" % (sT0, cp[0])); a("s_add_u32 s%d, s%d, %d" % (sT0, sT0, cp[1] * 64 * 8192))
        a("buffer_load_dword v32, v30, %s, s%d offen" % (srd(sPF), sT0))
    a("s_branch %s" % sk)
    a("%s:" % skx)
    a("s_sub_u32 s%d, s%d, 16" % (sT0, sIDX)); a("s_lshl_b32 s%d, s%d, 6" % (sT0, sT0)); a("v_add_u32 v30, s%d, v%d" % (sT0, lane)); a("v_mul_u32_u24 v30, 1152, v30")
    for cp in chunks:
        if isinstance(cp, int): a("s_mov_b32 s%d, %d" % (sT0, cp * 128))
        else: a("s_lshl_b32 s%d, s%d, 7" % (sT0, cp[0])); a("s_add_u32 s%d, s%d, %d" % (sT0, sT0, cp[1] * 128))
        a("buffer_load_dword v32, v30, %s, s%d offen" % (srd(sPF2), sT0))
    a("%s:" % sk)

def code_prefetch(a, lane=1):
    if "nocpf" in OPT: return
    lab = a.label("Lcpf")
    a("s_getpc_b64 s[94:95]")
    a("%s:" % lab)
    a("s_sub_u32 s94, s94, (%s - %s)" % (lab, KNAME)); a("s_subb_u32 s95, s95, 0")
    a("s_lshl_b32 s%d, s%d, 11" % (sT0, sIDX))
    a("v_and_b32 v34, 15, v%d" % lane); a("v_lshlrev_b32 v34, 7, v34"); a("v_add_u32 v34, s%d, v34" % sT0)
    a("v_min_u32 v34, (L_k1_end - %s), v34" % KNAME)
    a("global_load_dword v35, v34, s[94:95]")

def gen_wloader(a):
    vW, vX, vO = 10, 14, 16
    a.stamp_wave = 4
    sA, sBb = sLWK, sLWV
    a("v_lshrrev_b32 v6, 5, v1"); a("v_and_b32 v7, 31, v1")
    a("s_lshl_b32 s%d, s%d, 17" % (sT1, sLW))
    a("v_lshlrev_b32 v8, 13, v6"); a("v_add_u32 v8, s%d, v8" % sT1)
    for var in range(4):
        a("v_add_u32 v5, %d, v6" % (2 * (var & 1) + 4 * (var >> 1))); a("v_lshlrev_b32 v5, 1, v5"); a("v_xor_b32 v5, v5, v7")
        a("v_lshlrev_b32 v5, 4, v5"); a("v_add_u32 v%d, v8, v5" % (vW + var))
    a("v_lshrrev_b32 v6, 3, v1"); a("v_and_b32 v7, 7, v1")
    a("s_mul_i32 s%d, s%d, 48" % (sT1, sLW)); a("v_add_u32 v8, s%d, v6" % sT1); a("v_mul_u32_u24 v8, 1152, v8")
    a("v_lshrrev_b32 v9, 1, v6")
    for i in range(2):
        a("v_add_u32 v5, %d, v9" % (4 * i)); a("v_xor_b32 v5, v5, v7"); a("v_lshlrev_b32 v5, 4, v5"); a("v_add_u32 v%d, v8, v5" % (vX + i))
    a("v_mul_u32_u24 v8, 1152, v6")
    a("v_and_b32 v5, 3, v9"); a("v_lshlrev_b32 v5, 1, v5"); a("v_xor_b32 v5, v5, v7"); a("v_lshlrev_b32 v5, 4, v5"); a("v_add_u32 v%d, v8, v5" % vO)
    a("s_lshl_b32 s%d, s%d, 13" % (sA, sLW))
    a("s_mul_i32 s%d, s%d, 6144" % (sBb, sLW))
    a("s_lshl_b32 s%d, s%d, 14" % (sLW4096, sLW))
    a("s_mul_i32 s%d, s%d, %d" % (sLW3072, sLW, 128 * 1152))
    sWK, sXK, sOK = 98, 99, 100
    sWS, sXS, sOS = 93, 92, 91
    A_, SI, B_, SJ = ROTQ
    a("s_and_b32 s%d, s%d, 7" % (sT0, sIDX)); a("s_lshr_b32 s%d, s%d, %d" % (sT0, sT0, SI)); a("s_mul_i32 s%d, s%d, %d" % (sT0, sT0, A_))
    a("s_lshr_b32 s%d, s%d, %d" % (sT1, sIDX, 3 + SJ)); a("s_mul_i32 s%d, s%d, %d" % (sT1, sT1, B_)); a("s_add_u32 s%d, s%d, s%d" % (sT0, sT0, sT1))
    for _ in range(2): a("s_cmp_ge_u32 s%d, 9" % sT0); a("s_cselect_b32 s%d, 9, 0" % sT1); a("s_sub_u32 s%d, s%d, s%d" % (sT0, sT0, sT1))
    a("s_lshl_b32 s%d, s%d, 19" % (sWK, sT0)); a("s_lshl_b32 s%d, s%d, 7" % (sXK, sT0))
    a("s_and_b32 s%d, s%d, 7" % (sT0, sB)); a("s_lshl_b32 s%d, s%d, 7" % (sOK, sT0))
    a("s_mov_b32 s%d, %d" % (sWS, 2 * 16384)); a("s_mov_b32 s%d, 0" % sXS); a("s_mov_b32 s%d, 0" % sOS)
    a("s_add_u32 s%d, s%d, %d" % (sA, sA, WBASE)); a("s_add_u32 s%d, s%d, %d" % (sBb, sBb, XBASE))
    def adv(reg, step, wrap):
        a("s_add_u32 s%d, s%d, %d" % (reg, reg, step)); a("s_cmp_eq_u32 s%d, %d" % (reg, wrap)); a("s_cselect_b32 s%d, 0, s%d" % (reg, reg))
    def iss_W():
        a("s_add_u32 m0, s%d, s%d" % (sA, sWS))
        for ii in range(8):
            if ii == 4: a("s_add_u32 m0, m0, 4096")
            a("s_add_u32 s%d, s%d, %d" % (sT0, sWK, 16384 * ii - (ii & 3) * 1024))
            dma(a, vW + (ii & 1) + 2 * (ii >> 2), sWQ, sT0, (ii & 3) * 1024, W_FLAGS)
        adv(sWK, 262144, 18 * 262144); adv(sWS, 16384, 65536)
    def iss_X():
        a("s_add_u32 m0, s%d, s%d" % (sBb, sXS))
        for ii in range(6):
            if ii == 4: a("s_add_u32 m0, m0, 4096")
            a("s_add_u32 s%d, s%d, %d" % (sT0, sXK, 9216 * ii - (ii & 3) * 1024))
            dma(a, vX + (ii & 1), sX, sT0, (ii & 3) * 1024, W_FLAGS)
        adv(sXK, 128, 9 * 128); a("s_xor_b32 s%d, s%d, %d" % (sXS, sXS, XSLOT))
    def iss_O():
        a("s_add_u32 s%d, s%d, s%d" % (sT1, sLW3072, sOK))
        a("s_add_u32 m0, s%d, s%d" % (sLW4096, sOS))
        for ii in range(16):
            if ii % 4 == 0 and ii: a("s_add_u32 m0, m0, 4096")
            a("s_add_u32 s%d, s%d, %d" % (sT0, sT1, 9216 * ii - (ii & 3) * 1024))
            dma(a, vO, sWO, sT0, (ii & 3) * 1024, O_FLAGS)
        adv(sOK, 128, 9 * 128); adv(sOS, PAIR, 4 * PAIR)
    tr = [16]
    def bar(w=None):
        if w is not None and "nowait" not in OPT: a("s_waitcnt vmcnt(%d)" % w)
        a("s_barrier")
    def loop(n, body, name):
        lab = a.label(name)
        a("s_mov_b32 s%d, 0" % sCNT); a("%s:" % lab)
        body()
        a("s_add_u32 s%d, s%d, 1" % (sCNT, sCNT)); a("s_cmp_lt_u32 s%d, %d" % (sCNT, n)); a("s_cbranch_scc1 %s" % lab)
    loop(2, lambda: (iss_X(), iss_W(), iss_W()), "Lwi")
    if STAMP: stamp(a, 16)
    bar(30)
    bar(22)
    iss_W()
    def qbody():
        bar(16)
        iss_X(); iss_W()
        bar(22)
        sk = a.label("Lwl"); a("s_cmp_eq_u32 s%d, 6" % sCNT); a("s_cbranch_scc1 %s" % sk)
        iss_W()
        a("%s:" % sk)
    loop(7, qbody, "Lwq")
    bar(8)
    bar(0)
    bar(None); bar(None)
    stamp(a, 8)
    def cpf():
        sk = a.label("Lcp"); a("s_cmp_lg_u32 s%d, 1" % sLW); a("s_cbranch_scc1 %s" % sk); code_prefetch(a); a("%s:" % sk)
    loop(CPF_AT, lambda: bar(None), "Lwa")
    cpf()
    loop(13 - CPF_AT, lambda: bar(None), "Lwb")
    loop(2, lambda: (bar(None), iss_O()), "Lwo")
    bar(16)
    iss_O()
    a("s_barrier"); a("s_barrier")
    loop(6, lambda: (bar(16), iss_O()), "Lwp")
    bar(0)
    a("s_barrier"); a("s_barrier"); a("s_barrier")
    stamp(a, 9)
    a("s_add_u32 s%d, s%d, 4" % (sCNT, sLW))
    a("s_branch L_reduce")

def gen_kvloader(a):
    vK, vV = 10, 11
    a.stamp_wave = -1
    a("s_sub_u32 s%d, s%d, 2" % (sLW, sLW))
    a("v_lshrrev_b32 v2, 4, v1"); a("v_and_b32 v3, 15, v1")
    a("s_lshl_b32 s%d, s%d, 13" % (sT0, sLW))
    a("v_lshlrev_b32 v4, 8, v2"); a("v_add_u32 v4, s%d, v4" % sT0)
    a("v_xor_b32 v5, v2, v3"); a("v_lshlrev_b32 v5, 4, v5"); a("v_add_u32 v%d, v4, v5" % vK)
    a("v_lshlrev_b32 v5, 1, v2"); a("v_xor_b32 v5, v5, v3"); a("v_lshlrev_b32 v5, 4, v5"); a("v_add_u32 v%d, v4, v5" % vV)
    a("s_mul_i32 s%d, s%d, %d" % (sLWK, sLW, 8 * KGRP)); a("s_mul_i32 s%d, s%d, %d" % (sLWV, sLW, 8 * VGRP))
    sROT = 92
    if "krot" in OPT:
        a("s_mul_i32 s%d, s%d, %d" % (sROT, sXCD, KROT[0])); a("s_mul_i32 s%d, s%d, %d" % (sT0, sIDX, KROT[1])); a("s_add_u32 s%d, s%d, s%d" % (sROT, sROT, sT0))
    q = VQ(); bar = mk_bar(a, q, None)
    def iss(T, isK, lo=0, hi=8):
        for ii in range(lo, hi):
            if "krot" in OPT:
                if ii == lo: a("s_add_u32 s%d, s%d, %d" % (sT2, sROT, T)); a("s_and_b32 s%d, s%d, 15" % (sT2, sT2)); a("s_lshl_b32 s%d, s%d, 14" % (sT2, sT2))
                if ii % 4 == 0 or ii == lo: a("s_add_u32 s%d, s%d, %d" % (sT0, sT2, (ii >> 2) * 4096))
            elif ii % 4 == 0 or ii == lo: a("s_mov_b32 s%d, %d" % (sT0, T * 16384 + (ii >> 2) * 4096))
            grp = KGRP if isK else VGRP
            a("s_add_u32 m0, s%d, %d" % (sLWK if isK else sLWV, (T % 4) * PAIR + (0 if isK else VOFF) + ii * grp - (ii & 3) * 1024))
            if ii % 4: a("s_nop 0")
            else: a("s_nop 0")
            dma(a, vK if isK else vV, sK if isK else sV, sT0, (ii & 3) * 1024, KV_FLAGS)
        q.issue("I%d" % T, hi - lo)
    def prefetch_q():
        sk = a.label("Lpfq"); skx = a.label("Lpfx")
        a("s_cmp_lg_u32 s%d, %d" % (sLW, PF_WAVE)); a("s_cbranch_scc1 %s" % sk)
        a("s_cmp_ge_u32 s%d, 28" % sIDX); a("s_cbranch_scc1 %s" % sk)
        a("s_cmp_ge_u32 s%d, 16" % sIDX); a("s_cbranch_scc1 %s" % skx)
        a("s_lshl_b32 s%d, s%d, 2" % (sT0, sIDX)); a("v_add_u32 v5, s%d, v2" % sT0); a("v_lshlrev_b32 v5, 13, v5"); a("v_lshlrev_b32 v6, 7, v3"); a("v_add_u32 v5, v5, v6")
        for cp in range(PF_FIRST, 9):
            a("s_mov_b32 s%d, %d" % (sT0, cp * 64 * 8192)); a("buffer_load_dword v%d, v5, %s, s%d offen" % (20 + cp, srd(sPF), sT0))
        a("s_branch %s" % sk)
        a("%s:" % skx)
        a("s_sub_u32 s%d, s%d, 16" % (sT0, sIDX)); a("s_lshl_b32 s%d, s%d, 6" % (sT0, sT0)); a("v_add_u32 v5, s%d, v1" % sT0); a("v_mul_u32_u24 v5, 1152, v5")
        for cp in range(PF_FIRST, 9):
            a("s_mov_b32 s%d, %d" % (sT0, cp * 128)); a("buffer_load_dword v%d, v5, %s, s%d offen" % (20 + cp, srd(sPF2), sT0))
        a("%s:" % sk)
    def clear_flags():
        sk = a.label("Lclr")
        a("s_cmp_lg_u32 s%d, 1" % sLW); a("s_cbranch_scc1 %s" % sk)
        a("v_mov_b32 v20, 0"); a("v_mov_b32 v21, 0")
        a("s_lshl_b32 s%d, s%d, 3" % (sT0, sH))
        a("v_lshlrev_b32 v5, 7, v1"); a("v_add_u32 v5, s%d, v5" % sT0); a("v_mov_b32 v7, 0x40000000"); a("v_cmp_gt_u32 vcc, 9, v1"); a("s_nop 1"); a("v_cndmask_b32 v5, v7, v5, vcc")
        a("buffer_store_dwordx2 v[20:21], v5, %s, 0 offen sc0 sc1" % srd(sFL))
        a("s_waitcnt vmcnt(0)")
        a("s_lshl_b32 s%d, s%d, 4" % (sT0, sB)); a("v_mov_b32 v5, s%d" % sT0); a("v_mov_b32 v6, 1")
        a("s_mov_b64 s[96:97], exec"); a("s_mov_b64 exec, 1")
        a("global_atomic_add v5, v6, s[16:17] sc1")
        a("s_mov_b64 exec, s[96:97]")
        a("%s:" % sk)
    if "cpf0" in OPT:
        sk = a.label("Lcp0"); a("s_cmp_lg_u32 s%d, 1" % sLW); a("s_cbranch_scc1 %s" % sk); code_prefetch(a); a("%s:" % sk)
    if "notlb" not in OPT:
        sk = a.label("Ltlb")
        a("s_cmp_lg_u32 s%d, 0" % sLW); a("s_cbranch_scc1 %s" % sk)
        a("v_mov_b32 v5, 0")
        for i, sr in enumerate((sK, sV, sWO, sP, sOUT)): a("buffer_load_dword v%d, v5, %s, 0 offen nt" % (33 + i, srd(sr)))
        a("v_mul_u32_u24 v5, %d, v1" % (PART // 8)); a("v_lshlrev_b32 v5, 3, v5"); a("v_mov_b32 v7, 0x40000000"); a("v_cmp_gt_u32 vcc, 16, v1"); a("s_nop 1"); a("v_cndmask_b32 v5, v7, v5, vcc")
        a("buffer_load_dword v38, v5, %s, 0 offen nt" % srd(sPB))
        a("%s:" % sk)
    clear_flags()
    if "nopfq" not in OPT and PF_AT < 0: prefetch_q()
    for s in range(18):
        bar(None)
        if "nopfq" not in OPT and PF_AT == s: prefetch_q()
        for e in KSCHED.get(s, []): iss(e[1], e[0] == "K", *e[2:])
    bar(None)
    for e in KSCHED.get(18, []): iss(e[1], e[0] == "K", *e[2:])
    bar(["I0"])
    for e in KSCHED.get(19, []): iss(e[1], e[0] == "K", *e[2:])
    sTK, sKS = 93, 91
    assert FIRST_RULE == 1
    a("s_mov_b32 s%d, %d" % (sTK, 3 * 16384)); a("s_mov_b32 s%d, %d" % (sKS, 3 * PAIR))
    lab = a.label("Lkv"); a("s_mov_b32 s%d, 0" % sCNT); a("%s:" % lab)
    if "nowait" not in OPT: a("s_waitcnt vmcnt(16)")
    a("s_barrier")
    a("s_add_u32 s%d, s%d, s%d" % (sT1, sLWK, sKS)); a("s_add_u32 s%d, s%d, s%d" % (sT2, sLWV, sKS))
    for isK in (True, False):
        for ii in range(8):
            if ii % 4 == 0: a("s_add_u32 s%d, s%d, %d" % (sT0, sTK, (ii >> 2) * 4096))
            grp = KGRP if isK else VGRP
            a("s_add_u32 m0, s%d, %d" % (sT1 if isK else sT2, (0 if isK else VOFF) + ii * grp - (ii & 3) * 1024)); a("s_nop 0")
            dma(a, vK if isK else vV, sK if isK else sV, sT0, (ii & 3) * 1024, KV_FLAGS)
    a("s_add_u32 s%d, s%d, 16384" % (sTK, sTK))
    a("s_add_u32 s%d, s%d, %d" % (sKS, sKS, PAIR)); a("s_cmp_eq_u32 s%d, %d" % (sKS, 4 * PAIR)); a("s_cselect_b32 s%d, 0, s%d" % (sKS, sKS))
    a("s_add_u32 s%d, s%d, 1" % (sCNT, sCNT)); a("s_cmp_lt_u32 s%d, 13" % sCNT); a("s_cbranch_scc1 %s" % lab)
    if "nowait" not in OPT: a("s_waitcnt vmcnt(16)")
    a("s_barrier")
    if "nowait" not in OPT: a("s_waitcnt vmcnt(0)")
    a("s_barrier")
    a("s_barrier")
    if "nored" not in OPT:
        sk = a.label("Ldbg"); lp = a.label("Ldbgw")
        a("s_cmp_lg_u32 s%d, 0" % sLW); a("s_cbranch_scc1 %s" % sk)
        a("s_lshl_b32 s%d, s%d, 4" % (sT0, sB)); a("v_mov_b32 v10, s%d" % sT0); a("s_mov_b32 s%d, 0" % sT3)
        a("%s:" % lp)
        a("global_load_dword v12, v10, s[16:17] sc1"); a("s_waitcnt vmcnt(0)"); a("v_readfirstlane_b32 s%d, v12" % sT1)
        a("s_add_u32 s%d, s%d, 1" % (sT3, sT3)); a("s_cmp_gt_u32 s%d, %d" % (sT3, SPIN_MAX)); a("s_cbranch_scc1 %s" % sk)
        a("s_cmp_lt_u32 s%d, 16" % sT1); a("s_cbranch_scc1 %s" % lp)
        a("%s:" % sk)
    a("s_barrier"); a("s_barrier")
    vPR, vPO, vF, vOne = 20, 24, 25, 26
    sCH = 93
    a("v_lshlrev_b32 v%d, 4, v1" % vPO)
    a("s_mul_i32 s%d, s%d, 6144" % (sT0, sLW)); a("s_add_u32 s%d, s%d, %d" % (sT0, sT0, PB0)); a("v_add_u32 v%d, s%d, v%d" % (vPR, sT0, vPO)); a("v_add_u32 v%d, 3072, v%d" % (vPR + 1, vPR))
    a("s_mul_i32 s%d, s%d, %d" % (sT0, sLW, 2 * PAIR)); a("s_add_u32 s%d, s%d, 32768" % (sT0, sT0)); a("v_add_u32 v%d, s%d, v%d" % (vPR + 2, sT0, vPO)); a("v_add_u32 v%d, %d, v%d" % (vPR + 3, PAIR, vPR + 2))
    a("s_mul_i32 s%d, s%d, 6144" % (sT0, sLW)); a("v_add_u32 v%d, s%d, v%d" % (vPO, sT0, vPO))
    a("v_mov_b32 v%d, 1" % vOne)
    a("s_lshl_b32 s%d, s%d, 3" % (sT0, sH)); a("s_lshl_b32 s%d, s%d, 2" % (sT1, sLW)); a("s_add_u32 s%d, s%d, s%d" % (sT0, sT0, sT1))
    a("v_mov_b32 v%d, 0x40000000" % vF); a("s_nop 0"); a("v_writelane_b32 v%d, s%d, 0" % (vF, sT0))
    a("s_mov_b32 s%d, 0" % sCH)
    def flag_store(back):
        a("s_sub_u32 s%d, s%d, %d" % (sT0, sCH, back)); a("s_lshl_b32 s%d, s%d, 7" % (sT0, sT0))
        a("buffer_store_dword v%d, v%d, %s, s%d offen sc0 sc1" % (vOne, vF, srd(sFL), sT0))
    def turn(buf, guard):
        for w2 in range(2):
            for j in range(3): a("ds_read_b128 %s, v%d offset:%d" % (vr(64 + 32 * buf + 4 * (3 * w2 + j), 4), vPR + 2 * buf + w2, j * 1024))
        a("s_mul_i32 s%d, s%d, 12288" % (sT0, sCH))
        for i in range(6):
            a("s_waitcnt lgkmcnt(%d)" % (5 - i))
            if "nostore" not in OPT: a("buffer_store_dwordx4 %s, v%d, %s, s%d offen%s" % (vr(64 + 32 * buf + 4 * i, 4), vPO, srd(sP), sT0, P_FLAGS))
            if i < 5: a("s_add_u32 s%d, s%d, 1024" % (sT0, sT0))
        if "nored" not in OPT:
            sk = a.label("Lfl")
            if guard: a("s_cmp_lt_u32 s%d, 2" % sCH); a("s_cbranch_scc1 %s" % sk)
            a("s_waitcnt vmcnt(%d)" % FLW)
            flag_store(2)
            a("%s:" % sk)
        a("s_add_u32 s%d, s%d, 1" % (sCH, sCH))
    a("s_barrier")
    lab = a.label("Lsto"); a("%s:" % lab)
    a("s_barrier"); turn(0, True)
    a("s_barrier"); turn(1, True)
    a("s_cmp_lt_u32 s%d, 8" % sCH); a("s_cbranch_scc1 %s" % lab)
    a("s_barrier"); turn(0, False)
    if "nored" not in OPT:
        a("s_waitcnt vmcnt(7)"); flag_store(2)
        a("s_waitcnt vmcnt(1)"); flag_store(1)
    a("s_cmp_eq_u32 s%d, 0" % sLW); a("s_cselect_b32 s%d, 7, 6" % sCNT)
    a("s_branch L_reduce")

KSCHED = {2: [("K", 0)], 5: [("V", 0)], 8: [("K", 1)], 11: [("V", 1)], 16: [("K", 2)], 17: [("V", 2)]}

def gen_reducer(a):
    a("L_reduce:")
    if "nored" in OPT:
        a.stamp_wave = 4; stamp_flush(a); a("s_endpgm"); return
    rho = sCNT
    giveup = a.label("Lgiveup"); poll = a.label("Lpoll")
    a("s_mul_i32 s%d, s%d, 54" % (sT0, rho)); a("s_mul_hi_u32 s%d, s%d, %d" % (sT2, sT0, (2**32 + 47) // 48))
    a("v_lshlrev_b32 v9, 2, v1"); a("v_mov_b32 v7, 0x40000000")
    a("s_lshl_b32 s%d, s%d, 7" % (sT2, sT2))
    a("buffer_load_dword v11, v9, %s, s%d offen sc1" % (srd(sFL), sT2))
    a("v_add_u32 v2, s%d, v1" % sT0)
    a("v_mul_u32_u24 v8, 1366, v2"); a("v_lshrrev_b32 v8, 16, v8")
    a("v_mul_u32_u24 v5, 48, v8"); a("v_sub_u32 v2, v2, v5")
    a("s_mul_i32 s%d, s%d, 48" % (sT1, sH)); a("v_add_u32 v2, s%d, v2" % sT1)
    a("v_mul_u32_u24 v3, 12288, v8"); a("v_lshlrev_b32 v5, 4, v2"); a("v_add_u32 v3, v3, v5")
    a("v_cmp_gt_u32 vcc, 54, v1"); a("s_nop 1"); a("v_cndmask_b32 v3, v7, v3, vcc")
    a("v_lshrrev_b32 v4, 6, v2"); a("v_and_b32 v5, 63, v2")
    a("v_cmp_le_u32 s[96:97], 6, v4"); a("s_nop 1"); a("v_cndmask_b32 v6, 0, 1, s[96:97]")
    a("v_mul_u32_u24 v10, 6, v6"); a("v_sub_u32 v4, v4, v10")
    a("v_lshlrev_b32 v4, 4, v4"); a("v_and_b32 v10, 15, v5"); a("v_add_u32 v4, v4, v10"); a("v_mul_u32_u24 v4, 1152, v4")
    a("v_lshlrev_b32 v6, 6, v6"); a("v_lshrrev_b32 v5, 4, v5"); a("v_lshlrev_b32 v5, 3, v5"); a("v_add_u32 v4, v4, v6"); a("v_add_u32 v4, v4, v5")
    a("s_and_b32 s%d, s%d, 7" % (sT1, sB)); a("v_add_u32 v8, s%d, v8" % sT1)
    a("v_cmp_le_u32 s[96:97], 9, v8"); a("s_nop 1"); a("v_cndmask_b32 v6, 0, 9, s[96:97]"); a("v_sub_u32 v8, v8, v6"); a("v_lshlrev_b32 v8, 7, v8"); a("v_add_u32 v4, v4, v8")
    a("v_cndmask_b32 v4, v7, v4, vcc")
    a("s_mov_b32 s%d, 0" % sT3)
    a("s_branch %s_chk" % poll)
    a("%s:" % poll)
    a("buffer_load_dword v11, v9, %s, s%d offen sc1" % (srd(sFL), sT2))
    a("%s_chk:" % poll)
    a("s_waitcnt vmcnt(0)")
    a("v_cmp_eq_u32 vcc, 1, v11")
    a("s_add_u32 s%d, s%d, 1" % (sT3, sT3)); a("s_cmp_gt_u32 s%d, %d" % (sT3, SPIN_MAX)); a("s_cbranch_scc1 %s" % giveup)
    a("s_cmp_eq_u64 vcc, -1"); a("s_cbranch_scc0 %s" % poll)
    a("s_mov_b32 s%d, 0" % sT0)
    for h in range(16):
        a("buffer_load_dwordx4 v[%d:%d], v3, %s, s%d offen%s" % (64 + 4 * h, 67 + 4 * h, srd(sPB), sT0, R_FLAGS))
        if h < 15: a("s_add_u32 s%d, s%d, %d" % (sT0, sT0, PART))
    if "dot2" in OPT:
        a("v_mov_b32 v12, 0x00003f80"); a("v_mov_b32 v13, 0x3f800000")
        for r in range(8): a("v_mov_b32 v%d, 0" % (48 + r))
    for h in range(16):
        a("s_waitcnt vmcnt(%d)" % (15 - h))
        for r in range(4):
            src = 64 + 4 * h + r
            if "dot2" in OPT:
                a("v_dot2c_f32_bf16 v%d, v%d, v12" % (48 + 2 * r, src)); a("v_dot2c_f32_bf16 v%d, v%d, v13" % (49 + 2 * r, src))
            elif h == 0:
                a("v_lshlrev_b32 v%d, 16, v%d" % (48 + 2 * r, src)); a("v_and_b32 v%d, 0xffff0000, v%d" % (49 + 2 * r, src))
            else:
                a("v_lshlrev_b32 v12, 16, v%d" % src); a("v_and_b32 v13, 0xffff0000, v%d" % src)
                a("v_add_f32 v%d, v%d, v12" % (48 + 2 * r, 48 + 2 * r)); a("v_add_f32 v%d, v%d, v13" % (49 + 2 * r, 49 + 2 * r))
    for r in range(4): a("v_cvt_pk_bf16_f32 v%d, v%d, v%d" % (56 + r, 48 + 2 * r, 49 + 2 * r))
    a("buffer_store_dwordx2 v[56:57], v4, %s, 0 offen%s" % (srd(sOUT), OUT_FLAGS))
    a("buffer_store_dwordx2 v[58:59], v4, %s, 0 offen offset:32%s" % (srd(sOUT), OUT_FLAGS))
    a("%s:" % giveup)
    if STAMP:
        sk = a.label("Lnst"); a("s_cmp_lg_u32 s%d, 4" % sWAVE); a("s_cbranch_scc1 %s" % sk)
        a.stamp_wave = 4; stamp(a, 15); stamp_flush(a)
        a("%s:" % sk)
    a("s_endpgm")
R_FLAGS = " sc1"
OUT_FLAGS = ""
sTASK2 = 101
PB0 = 143360
SPIN_MAX = 200000
sWOP = 70

PF_O_AT = 10
PF_WAVE = 1
PF_FIRST = 4
PF_AT = 0
PF0 = 2
FLW = 12
STG_AT = 7
NSTG0 = 3
ROTQ = (1, 0, 2, 0)
KROT = (2, 1)
CPF_AT = 11
FIRST_RULE = 1
CMP_SLACK = 6
FLAG_DELAY = 4

def O_(j, db): return (j * 8 + db) * 4
def Q_(j, s): return 96 + (j * 4 + s) * 4
def KF(f): return 144 + 4 * f
def VF(db): return 176 + 4 * db
def S_(par): return 208 + 8 * par
def P_(par): return 224 + 4 * par
def N_(j): return 232 + 4 * j
def L_(j): return 244 + j
vKA, vVA, vT, vT2, vS, vLANE = 247, 248, 252, 253, 254, 255
MF = "v_mfma_f32_16x16x32_bf16"

def interleave(mfmas, fillers):
    out = list(fillers.get(-1, []))
    for i, m in enumerate(mfmas):
        out.append(m); out += fillers.get(i, [])
    return out
def spread(items, slots):
    d = {}; n = len(items)
    for i, it in enumerate(items): d.setdefault(slots[i * len(slots) // n], []).append(it)
    return d
def merge(*ds):
    o = {}
    for d in ds:
        for k, v in d.items(): o.setdefault(k, []).extend(v)
    return o

KORD = [(kb, s) for s in range(4) for kb in range(2)]
def k_read(kb, s, half, ad=None):
    return "ds_read_b128 %s, v%d offset:%d" % (vr(KF(kb * 4 + s), 4), vKA if ad is None else ad, half * 8 * KGRP + kb * 4 * KGRP + s * 64)
def v_reads(db, half):
    A, cc = divmod(db, 4)
    o = half * 8 * VGRP + A * 128
    return ["ds_read_b64_tr_b16 %s, v%d offset:%d" % (vr(VF(db), 2), vVA + cc, o), "ds_read_b64_tr_b16 %s, v%d offset:%d" % (vr(VF(db) + 2, 2), vVA + cc, o + 4 * VGRP)]

TAB = None
def hoist_waits(lines):
    out = []
    for l in lines:
        if l.startswith("s_waitcnt lgkmcnt") and out:
            n = int(l.split("(")[1].split(")")[0])
            k = len(out) - 1; jumped = 0; ok = False
            while k >= 0:
                x = out[k]
                if x.startswith("v_mfma"): ok = True; break
                if x.endswith(":") or x.startswith(("s_cbranch", "s_barrier", "s_waitcnt")): break
                if x.startswith("ds_"): jumped += 1
                k -= 1
            if ok and n - jumped >= 0:
                out.insert(k + 1, "s_waitcnt lgkmcnt(%d)" % (n - jumped)); continue
        out.append(l)
    return out

def gen_compute(a):
    rare = []
    a("v_and_b32 v%d, 63, v0" % vLANE)
    a("s_lshr_b32 s%d, s%d, 1" % (sQI, sWAVE)); a("s_and_b32 s%d, s%d, 1" % (sRH, sWAVE))
    g, rp, c, q = 240, 241, 242, 243
    a("v_lshrrev_b32 v%d, 4, v%d" % (g, vLANE)); a("v_bfe_u32 v%d, v%d, 2, 2" % (rp, vLANE)); a("v_and_b32 v%d, 3, v%d" % (c, vLANE)); a("v_and_b32 v%d, 15, v%d" % (q, vLANE))
    vWA, vXA = 232, 244
    t, t2 = vT, vT2
    a("v_lshlrev_b32 v%d, 3, v%d" % (t, g)); a("v_add_u32 v%d, v%d, v%d" % (t, t, rp)); a("v_lshlrev_b32 v%d, 9, v%d" % (t, t))
    a("v_and_b32 v%d, 1, v%d" % (t2, g)); a("v_lshlrev_b32 v%d, 2, v%d" % (t2, t2)); a("v_add_u32 v%d, v%d, v%d" % (t2, t2, rp)); a("v_lshlrev_b32 v%d, 5, v%d" % (t2, t2))
    a("v_add_u32 v%d, v%d, v%d" % (t, t, t2)); a("v_lshlrev_b32 v%d, 3, v%d" % (t2, c)); a("v_add_u32 v%d, v%d, v%d" % (t, t, t2))
    a("s_lshl_b32 s%d, s%d, 8" % (sT0, sQI)); a("s_add_u32 s%d, s%d, %d" % (sT0, sT0, WBASE)); a("v_add_u32 v%d, s%d, v%d" % (t, sT0, t))
    assert WBASE % 256 == 0 and XBASE % 128 == 0
    for db in range(8): a("v_xor_b32 v%d, %d, v%d" % (vWA + db, db * 32, t))
    a("s_mul_i32 s%d, s%d, %d" % (sT0, sRH, 48 * 128)); a("s_add_u32 s%d, s%d, %d" % (sT0, sT0, XBASE))
    a("v_lshrrev_b32 v%d, 1, v%d" % (t, q)); a("v_xor_b32 v%d, v%d, v%d" % (t, t, g)); a("v_lshlrev_b32 v%d, 4, v%d" % (t, t))
    a("v_lshlrev_b32 v%d, 7, v%d" % (t2, q)); a("v_add_u32 v%d, v%d, v%d" % (t, t, t2)); a("v_add_u32 v%d, s%d, v%d" % (vXA, sT0, t)); a("v_xor_b32 v%d, 64, v%d" % (vXA + 1, vXA))
    a("v_lshrrev_b32 v%d, 2, v%d" % (t, q)); a("v_mul_u32_u24 v%d, %d, v%d" % (t, KGRP, t))
    a("v_and_b32 v%d, 3, v%d" % (t2, q)); a("v_lshlrev_b32 v%d, 8, v%d" % (vKA, t2)); a("v_add_u32 v%d, v%d, v%d" % (t, t, vKA))
    a("v_xor_b32 v%d, v%d, v%d" % (t2, t2, g)); a("v_lshlrev_b32 v%d, 4, v%d" % (t2, t2)); a("v_add_u32 v%d, v%d, v%d" % (vKA, t, t2))
    a("v_mul_u32_u24 v%d, %d, v%d" % (t, VGRP, g)); a("v_lshlrev_b32 v%d, 8, v%d" % (t2, rp)); a("v_add_u32 v%d, v%d, v%d" % (t, t, t2))
    a("v_lshlrev_b32 v%d, 3, v%d" % (t2, c)); a("v_add_u32 v%d, v%d, v%d" % (t, t, t2)); a("v_add_u32 v%d, %d, v%d" % (t, VOFF, t))
    for cc in range(4):
        a("v_xor_b32 v%d, %d, v%d" % (t2, cc, rp)); a("v_lshlrev_b32 v%d, 5, v%d" % (t2, t2)); a("v_add_u32 v%d, v%d, v%d" % (vVA + cc, t, t2))
    stamp(a, 0, 10)

    def ABUF(buf, db): return 144 + 32 * buf + 4 * db
    def BBUF(buf, j): return 208 + 12 * buf + 4 * j
    def q_reads(s):
        buf = s & 1; wo = ((s + 2) % 4) * 16384; xo = ((s // 2) % 2) * XSLOT
        r = []
        for j in range(3): r.append("ds_read_b128 %s, v%d offset:%d" % (vr(BBUF(buf, j), 4), vXA + (s & 1), xo + j * 2048))
        for db in range(8):
            r.append("ds_read_b64_tr_b16 %s, v%d offset:%d" % (vr(ABUF(buf, db), 2), vWA + db, wo))
            r.append("ds_read_b64_tr_b16 %s, v%d offset:%d" % (vr(ABUF(buf, db) + 2, 2), vWA + db, wo + 2048))
        return r
    for r in range(0, 96, 2): a("v_mov_b64 %s, 0" % vr(r, 2))
    a("s_barrier")
    for x in q_reads(0): a(x)
    def q_stage(s, reads=True):
        buf = s & 1
        a("s_waitcnt lgkmcnt(0)")
        a("s_barrier")
        mf = []
        for db in range(8):
            for j in range(3):
                mf.append("%s %s, %s, %s, %s" % (MF, vr(O_(j, db), 4), vr(ABUF(buf, db), 4), vr(BBUF(buf, j), 4), vr(O_(j, db), 4)))
        rd = q_reads(s + 1) if reads else []
        for x in interleave(mf, spread(rd, list(range(0, 17))) if rd else {}): a(x)
    lq = a.label("Lq")
    a("s_mov_b32 s%d, 0" % sCNT); a("%s:" % lq)
    for s in range(4): q_stage(s)
    a("s_add_u32 s%d, s%d, 1" % (sCNT, sCNT)); a("s_cmp_lt_u32 s%d, 4" % sCNT); a("s_cbranch_scc1 %s" % lq)
    q_stage(16); q_stage(17, reads=False)
    stamp(a, 1, 11)
    a("s_nop 7")
    a("s_mov_b32 s%d, %s" % (sT0, f32(C_SCALE))); a("s_mov_b32 s%d, s%d" % (sT0 + 1, sT0))
    for j in range(3):
        for s in range(4):
            X, Y, D = O_(j, 2 * s), O_(j, 2 * s + 1), Q_(j, s)
            for r in range(0, 4, 2):
                a("v_pk_mul_f32 %s, %s, s[%d:%d]" % (vr(X + r, 2), vr(X + r, 2), sT0, sT0 + 1)); a("v_pk_mul_f32 %s, %s, s[%d:%d]" % (vr(Y + r, 2), vr(Y + r, 2), sT0, sT0 + 1))
            a("v_cvt_pk_bf16_f32 v%d, v%d, v%d" % (D + 0, X + 0, X + 1)); a("v_cvt_pk_bf16_f32 v%d, v%d, v%d" % (D + 1, X + 2, X + 3))
            a("v_cvt_pk_bf16_f32 v%d, v%d, v%d" % (D + 2, Y + 0, Y + 1)); a("v_cvt_pk_bf16_f32 v%d, v%d, v%d" % (D + 3, Y + 2, Y + 3))
            for r in range(0, 4, 2):
                a("v_mov_b64 %s, 0" % vr(X + r, 2)); a("v_mov_b64 %s, 0" % vr(Y + r, 2))
            a("v_permlane32_swap_b32 v%d, v%d" % (D + 0, D + 2)); a("v_permlane32_swap_b32 v%d, v%d" % (D + 1, D + 3))
            a("s_nop 1")
            a("v_permlane16_swap_b32 v%d, v%d" % (D + 0, D + 2)); a("v_permlane16_swap_b32 v%d, v%d" % (D + 1, D + 3))
    a("s_barrier")
    for kb, s_ in KORD: a(k_read(kb, s_, 0))
    a("s_waitcnt lgkmcnt(0)")
    for j in range(3):
        for kb, s_ in KORD:
            d = 176 + 8 * j + 4 * kb
            a("%s %s, %s, %s, %s" % (MF, vr(d, 4), vr(KF(kb * 4 + s_), 4), vr(Q_(j, s_), 4), "0" if s_ == 0 else vr(d, 4)))
    for r in range(224, 232, 2): a("v_mov_b64 %s, 0" % vr(r, 2))
    for j in range(3): a("v_mov_b32 v%d, 0" % L_(j))
    a("v_mov_b32 v%d, 0" % vS)
    a("s_mov_b32 s%d, %s" % (sTHR, "0x7f800000" if "norare" in OPT else f32(256.0)))
    a("s_mov_b32 s%d, 0" % sSLOT); a("s_mov_b32 s%d, 0" % sDK)
    a("s_mov_b32 s%d, 0x%x" % (sNEG, -3 * PAIR & 0xffffffff))
    a("s_mov_b64 vcc, 0")
    a("s_nop 3")
    for j in range(3):
        S = 176 + 8 * j; t, t2 = 200 + 2 * j, 201 + 2 * j
        a("v_max3_f32 v%d, v%d, v%d, v%d" % (t, S, S + 1, S + 2)); a("v_max3_f32 v%d, v%d, v%d, v%d" % (t2, S + 3, S + 4, S + 5))
        a("v_max3_f32 v%d, v%d, v%d, v%d" % (t, t, S + 6, S + 7)); a("v_max_f32 v%d, v%d, v%d" % (t, t, t2))
    for sw in ("v_permlane32_swap_b32", "v_permlane16_swap_b32"):
        for j in range(3): a("v_mov_b32 v%d, v%d" % (201 + 2 * j, 200 + 2 * j))
        a("s_nop 0")
        for j in range(3): a("%s v%d, v%d" % (sw, 200 + 2 * j, 201 + 2 * j))
        for j in range(3): a("v_max_f32 v%d, v%d, v%d" % (200 + 2 * j, 200 + 2 * j, 201 + 2 * j))
    for j in range(3):
        for i in range(4): a("v_sub_f32 v%d, 0, v%d" % (N_(j) + i, 200 + 2 * j))
    for r in range(176, 208, 2): a("v_mov_b64 %s, 0" % vr(r, 2))
    def qk_mfmas(jn, par):
        m = []
        for kb, s in KORD:
            d = S_(par) + 4 * kb
            cc = vr(N_(jn), 4) if s == 0 else vr(d, 4)
            m.append("%s %s, %s, %s, %s" % (MF, vr(d, 4), vr(KF(kb * 4 + s), 4), vr(Q_(jn, s), 4), cc))
        return m
    def pv_mfmas(jp, par):
        return ["%s %s, %s, %s, %s" % (MF, vr(O_(jp, db), 4), vr(VF(db), 4), vr(P_(par), 4), vr(O_(jp, db), 4)) for db in range(8)]
    for m in qk_mfmas(0, 0): a(m)
    a("s_nop 7")

    def rare_code(st, j, adv):
        par = (3 * st + j) & 1
        S, P = S_(par), P_(par)
        rl, cont = a.label("Lrare"), a.label("Lcont")
        r = Asm()
        r("%s:" % rl)
        if adv: r("v_subrev_u32 v%d, s%d, v%d" % (vT2, sDK, vKA))
        else: r("v_mov_b32 v%d, v%d" % (vT2, vKA))
        for kb in range(2):
            for s in range(4):
                r("ds_read_b128 %s, v%d offset:%d" % (vr(P, 4), vT2, st * 8 * KGRP + kb * 4 * KGRP + s * 64))
                r("s_waitcnt lgkmcnt(0)")
                cc = vr(N_(j), 4) if s == 0 else vr(S + 4 * kb, 4)
                r("%s %s, %s, %s, %s" % (MF, vr(S + 4 * kb, 4), vr(P, 4), vr(Q_(j, s), 4), cc))
                r("s_nop 3")
        r("s_nop 7")
        r("v_max3_f32 v%d, v%d, v%d, v%d" % (vT, S, S + 1, S + 2)); r("v_max3_f32 v%d, v%d, v%d, v%d" % (vT2, S + 3, S + 4, S + 5))
        r("v_max3_f32 v%d, v%d, v%d, v%d" % (vT, vT, S + 6, S + 7)); r("v_max_f32 v%d, v%d, v%d" % (vT, vT, vT2))
        r("v_mov_b32 v%d, v%d" % (vT2, vT)); r("s_nop 1"); r("v_permlane32_swap_b32 v%d, v%d" % (vT, vT2)); r("v_max_f32 v%d, v%d, v%d" % (vT, vT, vT2))
        r("v_mov_b32 v%d, v%d" % (vT2, vT)); r("s_nop 1"); r("v_permlane16_swap_b32 v%d, v%d" % (vT, vT2)); r("v_max_f32 v%d, v%d, v%d" % (vT, vT, vT2))
        r("v_max_f32 v%d, 0, v%d" % (vT, vT))
        r("v_sub_f32 v%d, 0, v%d" % (vT2, vT)); r("v_exp_f32 v%d, v%d" % (vT2, vT2)); r("s_nop 0")
        r("v_mul_f32 v%d, v%d, v%d" % (L_(j), L_(j), vT2))
        for db in range(8):
            for rr in range(4): r("v_mul_f32 v%d, v%d, v%d" % (O_(j, db) + rr, O_(j, db) + rr, vT2))
        for i in range(4): r("v_sub_f32 v%d, v%d, v%d" % (N_(j) + i, N_(j) + i, vT))
        for i in range(8): r("v_sub_f32 v%d, v%d, v%d" % (S + i, S + i, vT))
        for i in range(8): r("v_exp_f32 v%d, v%d" % (S + i, S + i))
        r("s_nop 0")
        r("v_add_f32 v%d, v%d, v%d" % (vS, S, S + 1))
        for i in range(2, 8): r("v_add_f32 v%d, v%d, v%d" % (vS, vS, S + i))
        for i in range(4): r("v_cvt_pk_bf16_f32 v%d, v%d, v%d" % (P + i, S + 2 * i, S + 2 * i + 1))
        r("s_nop 1")
        r("s_branch %s" % cont)
        rare.append(r.text())
        if "nobr" in OPT: return ["%s:" % cont]
        if "sccbr" in OPT: return ["s_cbranch_scc1 %s" % rl, "%s:" % cont]
        return ["s_cbranch_vccnz %s" % rl, "%s:" % cont]

    def block_tab(st, j, prev, qk=True, kload=None, vlo=None, vhi=None, barrier=False, extra=(), pre_extra=(), klate=None):
        par = (3 * st + j) & 1
        jn, jp = (j + 1) % 3, (j - 1) % 3
        S, P = S_(par), P_(par)
        pre = []
        if barrier: pre.append("s_barrier")
        endbr = []
        if "brend" in OPT:
            endbr = rare_code(st, j, st == 1 and j >= 1)
        elif prev is not None: pre += rare_code(*prev)
        pre += list(pre_extra)
        mf = qk_mfmas(jn, par ^ 1) + pv_mfmas(jp, par ^ 1)
        N = {}
        for i in range(8): N["E%d" % i] = "v_exp_f32 v%d, v%d" % (S + i, S + i)
        for i in range(4):
            N["C%d" % i] = "v_cvt_pk_bf16_f32 v%d, v%d, v%d" % (P + i, S + 2 * i, S + 2 * i + 1)
            N["A%d" % i] = "v_add_f32 v%d, v%d, v%d" % (S + 2 * i, S + 2 * i, S + 2 * i + 1)
        N["B0"] = "v_add_f32 v%d, v%d, v%d" % (S, S, S + 2); N["B1"] = "v_add_f32 v%d, v%d, v%d" % (S + 4, S + 4, S + 6)
        N["SUM"] = "v_add_f32 v%d, v%d, v%d" % (vS, S, S + 4); N["CMP"] = "v_cmp_lt_f32 vcc, s%d, v%d" % (sTHR, vS)
        N["L"] = "v_add_f32 v%d, v%d, v%d" % (L_(jp), L_(jp), vS)
        lds = {g: [] for g in range(16)}
        if "nolds" not in OPT:
            if vlo is not None:
                rs = [x for db in range(4) for x in v_reads(db, vlo)]
                for x, g in zip(rs, TAB["vlo"]): lds[g].append(x)
            if vhi is not None:
                rs = [x for db in range(4, 8) for x in v_reads(db, vhi)]
                for x, g in zip(rs, TAB["vhi"]): lds[g].append(x)
            if kload is not None:
                for (kb, s_), g in zip(KORD[:6], TAB["k"]): lds[g].append(k_read(kb, s_, kload))
            if klate is not None:
                for (kb, s_), g in zip(KORD[6:], TAB["klate"]): lds[g].append(k_read(kb, s_, klate))
        out = list(pre)
        ex = list(extra)
        for g in range(16):
            out.append(mf[g])
            if g == 15 and endbr: out += (["s_cmp_lg_u64 vcc, 0"] if "sccbr" in OPT else []) + endbr
            out += lds[g]
            if "nosm" not in OPT: out += [N[n] for n in TAB["valu"].get(g, [])]
            if g == TAB.get("scc_at", 15) and "sccbr" in OPT and "brend" not in OPT: out.append("s_cmp_lg_u64 vcc, 0")
            if g in TAB.get("extra_at", ()) and ex:
                x = ex.pop(0); out += (x if isinstance(x, list) else [x])
        for x in ex: out += (x if isinstance(x, list) else [x])
        return out

    def block(st, j, prev, qk=True, kload=None, vlo=None, vhi=None, barrier=False, extra=(), pre_extra=(), klate=None):
        if TAB is not None and qk: return block_tab(st, j, prev, qk, kload, vlo, vhi, barrier, extra, pre_extra, klate)
        if "brend" in OPT: prev = None
        if "sccbr" in OPT and prev is not None: pre_extra = list(pre_extra)
        par = (3 * st + j) & 1
        jn, jp = (j + 1) % 3, (j - 1) % 3
        S, P = S_(par), P_(par)
        pre = []
        if barrier: pre.append("s_barrier")
        if prev is not None: pre += rare_code(*prev)
        pre += list(pre_extra)
        mf = (qk_mfmas(jn, par ^ 1) if qk else []) + pv_mfmas(jp, par ^ 1)
        nq = 8 if qk else 0
        if not qk: pre.append("s_nop 1")
        it = []
        Ladd = Item("v_add_f32 v%d, v%d, v%d" % (L_(jp), L_(jp), vS), lo=0, hi=6, pri=5)
        E = [Item("v_exp_f32 v%d, v%d" % (S + i, S + i), lo=0, pri=3) for i in range(8)]
        for i in range(1, 8): pass
        A01 = Item("v_add_f32 v%d, v%d, v%d" % (vT, S, S + 1), deps=[E[0], E[1]])
        A23 = Item("v_add_f32 v%d, v%d, v%d" % (vT2, S + 2, S + 3), deps=[E[2], E[3]])
        B_ = Item("v_add_f32 v%d, v%d, v%d" % (vT, vT, vT2), deps=[A01, A23])
        A45 = Item("v_add_f32 v%d, v%d, v%d" % (vT2, S + 4, S + 5), deps=[E[4], E[5], B_])
        C_ = Item("v_add_f32 v%d, v%d, v%d" % (vT, vT, vT2), deps=[A45])
        A67 = Item("v_add_f32 v%d, v%d, v%d" % (vT2, S + 6, S + 7), deps=[E[6], E[7], C_])
        D_ = Item("v_add_f32 v%d, v%d, v%d" % (vS, vT, vT2), deps=[A67, Ladd])
        CMP = Item("v_cmp_lt_f32 vcc, s%d, v%d" % (sTHR, vS), deps=[D_], hi=len(mf) - CMP_SLACK)
        CV = [Item("v_cvt_pk_bf16_f32 v%d, v%d, v%d" % (P + i, S + 2 * i, S + 2 * i + 1), deps=[E[2 * i], E[2 * i + 1]], hi=len(mf) - 2) for i in range(4)]
        if "nosm" in OPT: it = []
        else: it = [Ladd] + E + [A01, A23, B_, A45, C_, A67, D_, CMP] + CV
        if "nolds" not in OPT:
            if vlo is not None:
                for db in range(4): it.append(Item(v_reads(db, vlo), lo=nq + db, pri=4))
            if vhi is not None:
                for db in range(4, 8): it.append(Item(v_reads(db, vhi), lo=0, hi=nq + db - 7, pri=6))
            if kload is not None:
                for i, (kb, s) in enumerate(KORD[:6]): it.append(Item(k_read(kb, s, kload), lo=max(i, 5), hi=min(15, 9 + i), pri=4))
            if klate is not None:
                for i, (kb, s) in list(enumerate(KORD))[6:]: it.append(Item(k_read(kb, s, klate), lo=0, hi=0, pri=7))
        for x in extra: it.append(Item(x, lo=8))
        return schedule(mf, it, pre)

    def tile(last, first_of_all=False):
        L = []
        L += block(0, 0, (1, 2, True), vlo=0)
        L += block(0, 1, (0, 0, False), vhi=0, kload=1)
        L += block(0, 2, (0, 1, False), klate=1)
        L += block(1, 0, (0, 2, False), vlo=1)
        adv = ["s_add_u32 s%d, s%d, 1" % (sSLOT, sSLOT), "s_and_b32 s%d, s%d, 3" % (sSLOT, sSLOT), "s_cmp_eq_u32 s%d, 0" % sSLOT,
               "s_cselect_b32 s%d, s%d, %d" % (sDK, sNEG, PAIR), "v_add_u32 v%d, s%d, v%d" % (vKA, sDK, vKA)]
        L += block(1, 1, (1, 0, False), vhi=1, kload=(None if last else 0), barrier=True, pre_extra=adv)
        L += block(1, 2, (1, 1, True), qk=not last, klate=(None if last else 0),
                   extra=[["v_add_u32 v%d, s%d, v%d" % (vVA + cc, sDK, vVA + cc)] for cc in range(4)])
        return L
    steady = tile(False)
    del rare[:]
    steady2 = tile(False)
    nr = len(rare)
    lastt = tile(True)
    if "peel" not in OPT: del rare[nr:]
    if TAB is not None:
        body = hoist_waits(auto_lgkm(steady2, entry_lines=steady, age=TAB.get("age")))
        lastb = hoist_waits(auto_lgkm(lastt, entry_lines=steady, age=TAB.get("age")))
    else:
        body = auto_lgkm(steady2, entry_lines=steady)
        lastb = auto_lgkm(lastt, entry_lines=steady)
    print("   attention steady tile: model %d cycles (%d/unit), %d instrs" % (model_cycles(body), model_cycles(body) / 6, len(body)))
    loop = a.label("Ltile")
    _stamp(a, 6, "s_memtime")
    a("s_mov_b32 s%d, 0" % sCNT)
    a("%s:" % loop)
    for x in body: a(x)
    a("s_add_u32 s%d, s%d, 1" % (sCNT, sCNT)); a("s_cmp_lt_u32 s%d, %d" % (sCNT, 15 if "peel" in OPT else 16)); a("s_cbranch_scc1 %s" % loop)
    _stamp(a, 7, "s_memtime")
    if "peel" in OPT:
        for x in lastb: a(x)
    else: a("s_waitcnt lgkmcnt(0)")
    for x in rare_code(1, 2, True): a(x)
    a("v_add_f32 v%d, v%d, v%d" % (L_(2), L_(2), vS))
    a("s_nop 1")
    for m in pv_mfmas(2, 1): a(m)
    a("s_nop 7")
    stamp(a, 2, 12)
    for j in range(3):
        L = L_(j)
        a("v_mov_b32 v%d, v%d" % (vT, L)); a("s_nop 1"); a("v_permlane32_swap_b32 v%d, v%d" % (L, vT)); a("v_add_f32 v%d, v%d, v%d" % (L, L, vT))
        a("v_mov_b32 v%d, v%d" % (vT, L)); a("s_nop 1"); a("v_permlane16_swap_b32 v%d, v%d" % (L, vT)); a("v_add_f32 v%d, v%d, v%d" % (L, L, vT))
        a("v_rcp_f32 v%d, v%d" % (L, L))
    a("s_nop 1")
    def OA(s, j): return 96 + (s * 3 + j) * 4
    def OB(s, j): return 144 + (s * 3 + j) * 4
    for j in range(3):
        a("v_mov_b32 v%d, v%d" % (vT2, L_(j))); a("v_mov_b32 v%d, v%d" % (vT, L_(j)))
        for s in range(4):
            X, Y, D = O_(j, 2 * s), O_(j, 2 * s + 1), OA(s, j)
            for r in range(0, 4, 2):
                a("v_pk_mul_f32 %s, %s, %s" % (vr(X + r, 2), vr(X + r, 2), vr(vT, 2))); a("v_pk_mul_f32 %s, %s, %s" % (vr(Y + r, 2), vr(Y + r, 2), vr(vT, 2)))
            a("v_cvt_pk_bf16_f32 v%d, v%d, v%d" % (D + 0, X + 0, X + 1)); a("v_cvt_pk_bf16_f32 v%d, v%d, v%d" % (D + 1, X + 2, X + 3))
            a("v_cvt_pk_bf16_f32 v%d, v%d, v%d" % (D + 2, Y + 0, Y + 1)); a("v_cvt_pk_bf16_f32 v%d, v%d, v%d" % (D + 3, Y + 2, Y + 3))
    vA0, vA1 = 240, 241
    a("v_lshlrev_b32 v%d, 4, v%d" % (vT, vLANE))
    a("s_mul_i32 s%d, s%d, 12288" % (sT0, sWAVE)); a("s_add_u32 s%d, s%d, %d" % (sT0, sT0, EXCH)); a("v_add_u32 v%d, s%d, v%d" % (vA0, sT0, vT))
    a("s_xor_b32 s%d, s%d, 2" % (sT2, sWAVE)); a("s_mul_i32 s%d, s%d, 12288" % (sT0, sT2)); a("s_add_u32 s%d, s%d, %d" % (sT0, sT0, EXCH)); a("v_add_u32 v%d, s%d, v%d" % (vA1, sT0, vT))
    a("s_barrier")
    for i in range(12): a("ds_write_b128 v%d, %s offset:%d" % (vA0, vr(96 + 4 * i, 4), i * 1024))
    vAO, vST = 224, 228
    g, rp, c, t = 242, 243, 244, 245
    a("v_lshrrev_b32 v%d, 4, v%d" % (g, vLANE)); a("v_bfe_u32 v%d, v%d, 2, 2" % (rp, vLANE)); a("v_and_b32 v%d, 3, v%d" % (c, vLANE))
    a("v_lshlrev_b32 v%d, 2, v%d" % (t, g)); a("v_add_u32 v%d, v%d, v%d" % (t, t, rp))
    a("v_lshrrev_b32 v%d, 1, v%d" % (g, t)); a("v_and_b32 v%d, 3, v%d" % (g, g)); a("v_lshlrev_b32 v%d, 5, v%d" % (g, g))
    a("v_lshlrev_b32 v%d, 7, v%d" % (t, t)); a("v_add_u32 v%d, v%d, v%d" % (t, t, g)); a("v_lshlrev_b32 v%d, 3, v%d" % (c, c)); a("v_add_u32 v%d, v%d, v%d" % (t, t, c))
    a("s_lshl_b32 s%d, s%d, 6" % (sT0, sQI)); a("v_xor_b32 v%d, s%d, v%d" % (t, sT0, t))
    a("s_lshl_b32 s%d, s%d, 14" % (sT0, sQI)); a("s_xor_b32 s%d, s%d, 16384" % (sT1, sT0))
    a("v_add_u32 v%d, s%d, v%d" % (vAO + 0, sT0, t)); a("v_xor_b32 v%d, 32, v%d" % (vAO + 1, vAO + 0))
    a("v_add_u32 v%d, s%d, v%d" % (vAO + 2, sT1, t)); a("v_xor_b32 v%d, 32, v%d" % (vAO + 3, vAO + 2))
    a("s_mul_i32 s%d, s%d, 6144" % (sT0, sQI)); a("s_mul_i32 s%d, s%d, 3072" % (sT1, sRH)); a("s_add_u32 s%d, s%d, s%d" % (sT0, sT0, sT1))
    a("v_add_u32 v%d, s%d, v%d" % (vST, sT0, vT))
    a("s_waitcnt lgkmcnt(0)")
    a("s_barrier")
    for i in range(12): a("ds_read_b128 %s, v%d offset:%d" % (vr(144 + 4 * i, 4), vA1, i * 1024))
    stamp(a, 3, 13)
    assert PAIR % 256 == 0
    def AF(i): return 192 + 4 * (i % 8)
    def ACC(buf, z, j): return buf * 24 + (z * 3 + j) * 4
    def PK(buf, j): return 48 + buf * 12 + 4 * j
    def a_reads(G):
        c_, kk = divmod(G, 8)
        hs, s = (0, kk) if kk < 4 else (1, kk - 4)
        r = []
        for z in range(2):
            fr = AF(2 * G + z)
            r.append("ds_read_b64_tr_b16 %s, v%d offset:%d" % (vr(fr, 2), vAO + 2 * hs + z, s * 4096))
            r.append("ds_read_b64_tr_b16 %s, v%d offset:%d" % (vr(fr + 2, 2), vAO + 2 * hs + z, s * 4096 + 2048))
        return r
    LOOK = 3
    def slot_delta(c_from): return (-3 * PAIR if (16 + c_from + 1) % 4 == 0 else PAIR) & 0xffffffff
    for G in range(LOOK):
        for x in a_reads(G): a(x)
    vPW, vPWR = 229, 231
    a("v_lshlrev_b32 v%d, 4, v%d" % (vT, vLANE))
    a("s_mul_i32 s%d, s%d, 3072" % (sT0, sWAVE)); a("s_add_u32 s%d, s%d, %d" % (sT0, sT0, PB0)); a("v_add_u32 v%d, s%d, v%d" % (vPW, sT0, vT))
    a("s_mul_i32 s%d, s%d, %d" % (sT0, sWAVE, PAIR)); a("s_add_u32 s%d, s%d, 32768" % (sT0, sT0)); a("v_add_u32 v%d, s%d, v%d" % (vPWR, sT0, vT))
    a("v_add_u32 v%d, %d, v%d" % (vPW + 1, 156672, vT))
    sD, sDP, sSL = sDK, sNEG + 0, sSLOT
    sD, sDP = 56, 69
    a("s_mov_b32 s%d, 0" % sSLOT); a("s_mov_b32 s%d, 0" % sDP); a("s_mov_b32 s%d, 0x%x" % (sNEG, -3 * PAIR & 0xffffffff))
    def epilogue(buf):
        epi = []
        for j in range(3):
            d = PK(buf, j)
            for z in range(2):
                A_ = ACC(buf, z, j)
                epi.append("v_cvt_pk_bf16_f32 v%d, v%d, v%d" % (d + 2 * z, A_, A_ + 1)); epi.append("v_cvt_pk_bf16_f32 v%d, v%d, v%d" % (d + 2 * z + 1, A_ + 2, A_ + 3))
            epi.append("ds_write_b128 v%d, %s offset:%d" % (vPW + buf, vr(d, 4), j * 1024))
        return epi
    def o_step(buf, last):
        pend = epilogue(buf ^ 1)
        for kk in range(8):
            G = kk
            hs, s = (0, kk) if kk < 4 else (1, kk - 4)
            pre = []; rd = []; barrier = (kk == 5)
            if kk == 5 and not last:
                pre += ["s_add_u32 s%d, s%d, 1" % (sSLOT, sSLOT), "s_and_b32 s%d, s%d, 3" % (sSLOT, sSLOT), "s_cmp_eq_u32 s%d, 0" % sSLOT, "s_cselect_b32 s%d, s%d, %d" % (sD, sNEG, PAIR),
                        "v_add_u32 v%d, s%d, v%d" % (vAO + 0, sD, vAO + 0), "v_add_u32 v%d, s%d, v%d" % (vAO + 1, sD, vAO + 1)]
            if kk == 1:
                pre += ["v_add_u32 v%d, s%d, v%d" % (vAO + 2, sDP, vAO + 2), "v_add_u32 v%d, s%d, v%d" % (vAO + 3, sDP, vAO + 3)]
            if kk == 6 and not last: pre += ["s_mov_b32 s%d, s%d" % (sDP, sD)]
            if kk == 3 and buf == 0: pre += ["v_mov_b32 v%d, v%d" % (vPW + 1, vPWR)]
            if not (last and kk + LOOK >= 8): rd = a_reads(G + LOOK)
            younger = 4 * (LOOK - 1) if not last else 4 * min(LOOK - 1, 7 - kk)
            a("s_waitcnt lgkmcnt(%d)" % younger)
            if barrier: a("s_barrier")
            for x in pre: a(x)
            mf = []
            for z in range(2):
                for j in range(3):
                    bsrc = OA(s, j) if hs == 0 else OB(s, j)
                    cc = "0" if kk == 0 else vr(ACC(buf, z, j), 4)
                    mf.append("%s %s, %s, %s, %s" % (MF, vr(ACC(buf, z, j), 4), vr(AF(2 * G + z), 4), vr(bsrc, 4), cc))
            fill = spread(rd, [0, 1, 2, 3]) if rd else {}
            if pend and kk >= 1:
                take = pend[:8] if kk == 1 else pend
                pend = pend[len(take):]
                fill = merge(fill, spread(take, [1, 2, 3, 4, 5]))
            for x in interleave(mf, fill): a(x)
    lo = a.label("Lo")
    a("s_mov_b32 s%d, 0" % sCNT); a("%s:" % lo)
    o_step(0, False); o_step(1, False)
    a("s_add_u32 s%d, s%d, 1" % (sCNT, sCNT)); a("s_cmp_lt_u32 s%d, 4" % sCNT); a("s_cbranch_scc1 %s" % lo)
    o_step(0, True)
    a("s_nop 7")
    for x in epilogue(0): a(x)
    a("s_waitcnt lgkmcnt(0)")
    a("s_barrier")
    stamp(a, 4, 14)
    stamp(a, 5)
    stamp_flush(a)
    a("v_mov_b32 v1, v%d" % vLANE)
    a("s_mov_b32 s%d, s%d" % (sCNT, sWAVE))
    a("s_branch L_reduce")
    for r in rare: a(r)

def mk_srd(a, b, lo, hi, off, size):
    a("s_add_u32 s%d, s%d, s%d" % (b, lo, off)); a("s_addc_u32 s%d, s%d, 0" % (b + 1, hi)); a("s_mov_b32 s%d, %d" % (b + 2, size)); a("s_mov_b32 s%d, 0x20000" % (b + 3))

def gen_k1():
    a = Asm(); a.stamp_wave = 0; a.stamp_tmp = 252
    common_prologue(a, "L_k1_end", 256)
    a("s_and_b32 s%d, s2, 7" % sXCD); a("s_lshr_b32 s%d, s2, 3" % sIDX)
    a("s_and_b32 s%d, s%d, 1" % (sB, sXCD)); a("s_lshl_b32 s%d, s%d, 3" % (sB, sB)); a("s_and_b32 s%d, s%d, 7" % (sT2, sIDX)); a("s_add_u32 s%d, s%d, s%d" % (sB, sB, sT2))
    a("s_lshr_b32 s%d, s%d, 1" % (sH, sXCD)); a("s_lshl_b32 s%d, s%d, 2" % (sH, sH)); a("s_lshr_b32 s%d, s%d, 3" % (sT2, sIDX)); a("s_add_u32 s%d, s%d, s%d" % (sH, sH, sT2))
    a("s_lshl_b32 s%d, s%d, 4" % (sT0, sB)); a("s_add_u32 s%d, s%d, s%d" % (sT0, sT0, sH))
    a("s_lshl_b32 s%d, s%d, 18" % (sT1, sT0))
    mk_srd(a, sK, 6, 7, sT1, 262144); mk_srd(a, sV, 8, 9, sT1, 262144)
    a("s_mul_i32 s%d, s%d, 110592" % (sT1, sB)); mk_srd(a, sX, 4, 5, sT1, 110592)
    a("s_lshl_b32 s%d, s%d, 9" % (sT1, sH)); mk_srd(a, sWQ, 10, 11, sT1, 0); a("s_sub_u32 s%d, 4718592, s%d" % (sWQ + 2, sT1))
    a("s_mul_i32 s%d, s%d, 294912" % (sT1, sH)); mk_srd(a, sWO, 12, 13, sT1, 294912)
    a("s_mul_i32 s%d, s%d, %d" % (sT1, sT0, PART)); a("s_add_u32 s%d, s%d, %d" % (sT1, sT1, WS_PART)); mk_srd(a, sP, 18, 19, sT1, PART)
    a("s_lshr_b32 s%d, s%d, 2" % (sT1, sH)); a("s_lshl_b32 s%d, s%d, 11" % (sT1, sT1)); mk_srd(a, sPF, 10, 11, sT1, 0); a("s_sub_u32 s%d, 4718592, s%d" % (sPF + 2, sT1))
    a("s_lshr_b32 s%d, s%d, 3" % (sT1, sB)); a("s_mul_i32 s%d, s%d, %d" % (sT1, sT1, 8 * 110592)); mk_srd(a, sPF2, 4, 5, sT1, 8 * 110592)
    a("s_mov_b32 s%d, s12" % sWOP); a("s_mov_b32 s%d, s13" % (sWOP + 1))
    a("s_mul_i32 s%d, s%d, 110592" % (sT1, sB)); mk_srd(a, sOUT, 14, 15, sT1, 110592)
    a("s_mul_i32 s%d, s%d, %d" % (sT1, sB, 16 * PART)); a("s_add_u32 s%d, s%d, %d" % (sT1, sT1, WS_PART)); mk_srd(a, sPB, 18, 19, sT1, 16 * PART)
    a("s_mul_i32 s%d, s%d, %d" % (sT1, sB, 9 * 128)); a("s_add_u32 s%d, s%d, %d" % (sT1, sT1, WS_FLAG)); mk_srd(a, sFL, 18, 19, sT1, 9 * 128)
    if STAMP:
        a("s_lshl_b32 s%d, s2, 9" % sT1); a("s_add_u32 s%d, s18, s%d" % (sSTAMP, sT1)); a("s_addc_u32 s%d, s19, 0" % (sSTAMP + 1))
    if "allc" in OPT: a("s_and_b32 s%d, s%d, 3" % (sWAVE, sWAVE))
    a("s_cmp_ge_u32 s%d, 4" % sWAVE); a("s_cbranch_scc1 L_loader")
    gen_compute(a)
    a("L_loader:")
    a.stamp_wave = 4; a.stamp_tmp = 40
    gen_loader(a)
    gen_reducer(a)
    a("L_k1_end:")
    a("s_endpgm")
    return a.text()

def build(fn, stamp=False, opt=()):
    global STAMP, OPT
    STAMP = stamp; OPT = set(opt)
    k1 = gen_k1()
    errs = hazard.check(k1, "k1")
    for e in errs[:10]: print(e)
    if errs: print("k1: %d hazard warnings" % len(errs))
    txt = HEADER + "; @launch grid=(256,1,1) block=(512,1,1) lds=%d\n" % LDS_BYTES
    txt += '.amdgcn_target "amdgcn-amd-amdhsa--gfx950"\n.text\n' + kernel_begin(KNAME) + k1 + '\n.section .rodata,"a"\n.p2align 6\n' + kernel_desc(KNAME, 256, 102, 256)
    open(fn, "w").write(txt)
    print(fn, len(txt), "bytes,", txt.count("\n"), "lines")

if __name__ == "__main__":
    def pieces(start, per):
        d = {}; st = start
        for kind in "KV":
            for lo in range(0, 8, per):
                d.setdefault(st, []).append((kind, 0, lo, lo + per)); st += 1
        return d
    def mk(start, per, i1at):
        d = pieces(start, per)
        d.setdefault(i1at, []).extend([("K", 1), ("V", 1)])
        d.setdefault(19, []).extend([("K", 2), ("V", 2)])
        return d
    PF0 = 0
    O = ["rotq", "nopfq", "notlb"]
    KSCHED = mk(12, 4, 18)
    TAB = None
    build("v7.s", False, O); build("v7_st.s", True, O)
    build("v7_peel.s", False, O + ["peel"])
    build("v7_dot.s", False, O + ["dot2"]); build("v7_cpf0.s", False, O + ["cpf0"]); build("v7_all.s", False, O + ["dot2", "cpf0"])
```

```python
import sys, struct
from asmlib import *
import hazard
from sched import Item, schedule, auto_lgkm, model_cycles

def f32(x): return "0x%08x" % struct.unpack("<I", struct.pack("<f", x))[0]
C_SCALE = 1.4426950408889634 / (128 ** 0.5)

PAIR = 35840
KGRP, VGRP = 1088, 1152
VOFF = 16 * KGRP
WBASE = 2 * PAIR
XBASE = WBASE + 4 * 16384
XSLOT = 12288
EXCH = 3 * PAIR
LDS_BYTES = 163840
PART = 108 * 1024
WS_PART = 1 << 20
WS_FLAG = 1 << 19
KNAME = 'standalone__gqa_block_cached__near_ridge_kernel'
OPT = set()
STAMP = False

sK, sV, sX, sWQ, sWO, sP = 20, 24, 28, 32, 36, 40
sWAVE, sB, sH, sLW = 44, 45, 46, 47
sT0, sT1, sT2, sT3 = 48, 49, 50, 51
sLWK, sLW3072, sLWV, sLW4096 = 52, 53, 59, 66
sTHR, sCNT, sDK, sNEG, sSLOT = 54, 55, 56, 57, 58
sSTAMP = 60
sTM = 62
sQI, sRH = 64, 65
sXCD, sIDX = 67, 68
sPF = 72
sPF2 = 76
sFL = 8
sPB = 4
sOUT = 12
def srd(b): return "s[%d:%d]" % (b, b + 3)
def vr(b, n=1): return "v%d" % b if n == 1 else "v[%d:%d]" % (b, b + n - 1)

def _stamp(a, idx, instr):
    if not STAMP: return
    a("%s s[%d:%d]" % (instr, sTM, sTM + 1)); a("s_waitcnt lgkmcnt(0)")
    if a.stamp_wave == 0: a("s_mov_b32 s%d, s%d" % (80 + idx, sTM))
    else: a("v_writelane_b32 v40, s%d, %d" % (sTM, idx))
def stamp(a, idx, cyc=None):
    _stamp(a, idx, "s_memrealtime")
    if cyc is not None: _stamp(a, cyc, "s_memtime")
DBG_WG = 37
def stamp_flush(a):
    if not STAMP: return
    if "dbg" in OPT:
        sk = a.label("Ldbgs")
        a("s_cmp_lg_u32 s2, %d" % DBG_WG); a("s_cbranch_scc1 %s" % sk)
        a("s_cmp_lg_u32 s%d, %d" % (sWAVE, a.stamp_wave)); a("s_cbranch_scc1 %s" % sk)
        a("v_mov_b32 v1, 0")
        if a.stamp_wave == 0:
            for dw, (j, j0) in zip((1, 2, 3, 5, 6, 7, 9, 10, 11), ((1, 0), (2, 0), (3, 0), (4, 0), (11, 10), (12, 11), (13, 12), (14, 13), (7, 6))):
                a("s_sub_u32 s%d, s%d, s%d" % (sT0, 80 + j, 80 + j0)); a("v_mov_b32 v2, s%d" % sT0); a("global_store_dword v1, v2, s[16:17] offset:%d" % (4 * dw))
        else:
            a("v_readlane_b32 s%d, v40, 15" % sT0); a("v_readlane_b32 s%d, v40, 16" % sT1); a("s_nop 3"); a("s_sub_u32 s%d, s%d, s%d" % (sT0, sT0, sT1)); a("v_mov_b32 v2, s%d" % sT0)
            a("global_store_dword v1, v2, s[16:17] offset:52")
            a("v_readlane_b32 s%d, v40, 36" % sT0); a("s_nop 3"); a("s_sub_u32 s%d, s%d, s%d" % (sT0, sT0, sT1)); a("v_mov_b32 v2, s%d" % sT0)
            a("global_store_dword v1, v2, s[16:17] offset:56")
        a("%s:" % sk)
        return
    sk = a.label("Lst")
    a("s_cmp_lg_u32 s%d, %d" % (sWAVE, a.stamp_wave)); a("s_cbranch_scc1 %s" % sk)
    if a.stamp_wave == 0:
        a("v_mov_b32 v1, 0")
        for i in range(16):
            if i in (8, 9, 15): continue
            a("v_mov_b32 v2, s%d" % (80 + i)); a("global_store_dword v1, v2, s[%d:%d] offset:%d" % (sSTAMP, sSTAMP + 1, 4 * i))
    else:
        a("v_and_b32 v2, 63, v0"); a("v_lshlrev_b32 v3, 2, v2")
        a("v_cmp_lt_u32 vcc, 14, v2"); a("v_cmp_eq_u32 s[96:97], 8, v2"); a("s_or_b64 vcc, vcc, s[96:97]"); a("v_cmp_eq_u32 s[96:97], 9, v2"); a("s_or_b64 vcc, vcc, s[96:97]")
        a("s_and_saveexec_b64 s[96:97], vcc")
        a("global_store_dword v3, v40, s[%d:%d]" % (sSTAMP, sSTAMP + 1))
        a("s_mov_b64 exec, s[96:97]")
    a("%s:" % sk)

def common_prologue(a, endlab, nwg):
    if STAMP: a("s_memrealtime s[78:79]")
    a("s_cmp_ge_u32 s2, %d" % nwg); a("s_cbranch_scc1 %s" % endlab)
    a("s_load_dwordx8 s[4:11], s[0:1], 0")
    a("s_load_dwordx4 s[12:15], s[0:1], 32")
    a("s_load_dwordx4 s[16:19], s[0:1], 48")
    a("v_lshrrev_b32 v1, 6, v0")
    a("s_nop 0")
    a("v_readfirstlane_b32 s%d, v1" % sWAVE)
    a("s_waitcnt lgkmcnt(0)")

class VQ:
    def __init__(s): s.q = []
    def issue(s, tag, n=1): s.q += [tag] * n
    def wait(s, tags):
        idx = [i for i, t in enumerate(s.q) if t in tags]
        if not idx: return None
        last = max(idx); n = len(s.q) - 1 - last
        s.q = s.q[last + 1:]
        return min(n, 63)

KV_FLAGS = " nt"
W_FLAGS = ""
O_FLAGS = ""
P_FLAGS = " sc0 sc1"


def gen_loader(a):
    a("s_sub_u32 s%d, s%d, 4" % (sLW, sWAVE))
    a("v_and_b32 v1, 63, v0")
    if STAMP: a("v_mov_b32 v40, 0")
    a("s_cmp_ge_u32 s%d, 2" % sLW); a("s_cbranch_scc1 L_kvloader")
    gen_wloader(a)
    a("L_kvloader:")
    gen_kvloader(a)

def mk_bar(a, q, trace_base=None):
    def bar(tags):
        n = q.wait(tags) if tags else None
        if n is not None and "nowait" not in OPT: a("s_waitcnt vmcnt(%d)" % n)
        if "trace" in OPT and bar.n < 48 and trace_base is not None: stamp(a, 16 + bar.n)
        a("s_barrier")
        bar.n += 1
    bar.n = 0
    return bar

def dma(a, vreg, srdb, soff, imm, flags):
    if "noload" in OPT: return
    a("buffer_load_dwordx4 v%d, %s, s%d offen offset:%d%s lds" % (vreg, srd(srdb), soff, imm, flags))

def emit_pf(a, chunks, lane=1):
    if not chunks: return
    sk = a.label("Lpfq"); skx = a.label("Lpfx")
    a("s_cmp_ge_u32 s%d, 28" % sIDX); a("s_cbranch_scc1 %s" % sk)
    a("s_cmp_ge_u32 s%d, 16" % sIDX); a("s_cbranch_scc1 %s" % skx)
    a("v_lshrrev_b32 v30, 4, v%d" % lane); a("v_and_b32 v31, 15, v%d" % lane)
    a("s_lshl_b32 s%d, s%d, 2" % (sT0, sIDX)); a("v_add_u32 v30, s%d, v30" % sT0); a("v_lshlrev_b32 v30, 13, v30"); a("v_lshlrev_b32 v31, 7, v31"); a("v_add_u32 v30, v30, v31")
    for cp in chunks:
        if isinstance(cp, int): a("s_mov_b32 s%d, %d" % (sT0, cp * 64 * 8192))
        else: a("s_lshl_b32 s%d, s%d, 19" % (sT0, cp[0])); a("s_add_u32 s%d, s%d, %d" % (sT0, sT0, cp[1] * 64 * 8192))
        a("buffer_load_dword v32, v30, %s, s%d offen" % (srd(sPF), sT0))
    a("s_branch %s" % sk)
    a("%s:" % skx)
    a("s_sub_u32 s%d, s%d, 16" % (sT0, sIDX)); a("s_lshl_b32 s%d, s%d, 6" % (sT0, sT0)); a("v_add_u32 v30, s%d, v%d" % (sT0, lane)); a("v_mul_u32_u24 v30, 1152, v30")
    for cp in chunks:
        if isinstance(cp, int): a("s_mov_b32 s%d, %d" % (sT0, cp * 128))
        else: a("s_lshl_b32 s%d, s%d, 7" % (sT0, cp[0])); a("s_add_u32 s%d, s%d, %d" % (sT0, sT0, cp[1] * 128))
        a("buffer_load_dword v32, v30, %s, s%d offen" % (srd(sPF2), sT0))
    a("%s:" % sk)

def code_prefetch(a, lane=1):
    if "nocpf" in OPT: return
    lab = a.label("Lcpf")
    a("s_getpc_b64 s[94:95]")
    a("%s:" % lab)
    a("s_sub_u32 s94, s94, (%s - %s)" % (lab, KNAME)); a("s_subb_u32 s95, s95, 0")
    a("s_lshl_b32 s%d, s%d, 11" % (sT0, sIDX))
    a("v_and_b32 v34, 15, v%d" % lane); a("v_lshlrev_b32 v34, 7, v34"); a("v_add_u32 v34, s%d, v34" % sT0)
    a("v_min_u32 v34, (L_k1_end - %s), v34" % KNAME)
    a("global_load_dword v35, v34, s[94:95]")

def attn_kv4(a, is_w, iss_O=None, cpf=None):
    vK4, vV4 = 18, 19
    sL4, sMK, sMV, sTK, sKS = 86, 88, 89, 87, 90
    a("s_sub_u32 s%d, s%d, 4" % (sL4, sWAVE))
    a("v_lshrrev_b32 v2, 4, v1"); a("v_and_b32 v3, 15, v1")
    a("s_lshl_b32 s%d, s%d, 12" % (sT0, sL4)); a("v_lshlrev_b32 v4, 8, v2"); a("v_add_u32 v4, s%d, v4" % sT0)
    a("v_xor_b32 v5, v2, v3"); a("v_lshlrev_b32 v5, 4, v5"); a("v_add_u32 v%d, v4, v5" % vK4)
    a("v_lshlrev_b32 v5, 1, v2"); a("v_xor_b32 v5, v5, v3"); a("v_lshlrev_b32 v5, 4, v5"); a("v_add_u32 v%d, v4, v5" % vV4)
    a("s_mul_i32 s%d, s%d, %d" % (sMK, sL4, 4 * KGRP)); a("s_mul_i32 s%d, s%d, %d" % (sMV, sL4, 4 * VGRP)); a("s_add_u32 s%d, s%d, %d" % (sMV, sMV, VOFF))
    a("s_mov_b32 s%d, %d" % (sTK, 3 * 16384)); a("s_mov_b32 s%d, %d" % (sKS, 3 * PAIR))
    def w(n):
        if "nowait" not in OPT: a("s_waitcnt vmcnt(%d)" % n)
    def item():
        a("s_add_u32 s%d, s%d, s%d" % (sT1, sMK, sKS)); a("s_add_u32 s%d, s%d, s%d" % (sT2, sMV, sKS))
        for isK in (True, False):
            grp = KGRP if isK else VGRP
            for ii in range(4):
                a("s_add_u32 m0, s%d, %d" % (sT1 if isK else sT2, ii * (grp - 1024))); a("s_nop 0")
                dma(a, vK4 if isK else vV4, sK if isK else sV, sTK, ii * 1024, KV_FLAGS)
        a("s_add_u32 s%d, s%d, 16384" % (sTK, sTK))
        a("s_add_u32 s%d, s%d, %d" % (sKS, sKS, PAIR)); a("s_cmp_eq_u32 s%d, %d" % (sKS, 4 * PAIR)); a("s_cselect_b32 s%d, 0, s%d" % (sKS, sKS))
    if not is_w: w(16)
    a("s_barrier")
    item()
    lab = a.label("Lkv4"); a("s_mov_b32 s%d, 2" % sCNT); a("%s:" % lab)
    w(8)
    a("s_barrier")
    item()
    if is_w:
        sk = a.label("Lc4"); a("s_cmp_lg_u32 s%d, %d" % (sCNT, CPF_AT)); a("s_cbranch_scc1 %s" % sk); cpf(); a("%s:" % sk)
    a("s_add_u32 s%d, s%d, 1" % (sCNT, sCNT)); a("s_cmp_lt_u32 s%d, 14" % sCNT); a("s_cbranch_scc1 %s" % lab)
    w(8); a("s_barrier")
    if is_w: iss_O()
    w(16 if is_w else 0); a("s_barrier")
    if is_w: iss_O()
    if is_w: w(16)
    a("s_barrier")
    if is_w: iss_O()

def gen_wloader(a):
    vW, vX, vO = 10, 14, 16
    a.stamp_wave = 4
    sA, sBb = sLWK, sLWV
    a("v_lshrrev_b32 v6, 5, v1"); a("v_and_b32 v7, 31, v1")
    a("s_lshl_b32 s%d, s%d, 17" % (sT1, sLW))
    a("v_lshlrev_b32 v8, 13, v6"); a("v_add_u32 v8, s%d, v8" % sT1)
    for var in range(4):
        a("v_add_u32 v5, %d, v6" % (2 * (var & 1) + 4 * (var >> 1))); a("v_lshlrev_b32 v5, 1, v5"); a("v_xor_b32 v5, v5, v7")
        a("v_lshlrev_b32 v5, 4, v5"); a("v_add_u32 v%d, v8, v5" % (vW + var))
    a("v_lshrrev_b32 v6, 3, v1"); a("v_and_b32 v7, 7, v1")
    a("s_mul_i32 s%d, s%d, 48" % (sT1, sLW)); a("v_add_u32 v8, s%d, v6" % sT1); a("v_mul_u32_u24 v8, 1152, v8")
    a("v_lshrrev_b32 v9, 1, v6")
    for i in range(2):
        a("v_add_u32 v5, %d, v9" % (4 * i)); a("v_xor_b32 v5, v5, v7"); a("v_lshlrev_b32 v5, 4, v5"); a("v_add_u32 v%d, v8, v5" % (vX + i))
    a("v_mul_u32_u24 v8, 1152, v6")
    a("v_and_b32 v5, 3, v9"); a("v_lshlrev_b32 v5, 1, v5"); a("v_xor_b32 v5, v5, v7"); a("v_lshlrev_b32 v5, 4, v5"); a("v_add_u32 v%d, v8, v5" % vO)
    a("s_lshl_b32 s%d, s%d, 13" % (sA, sLW))
    a("s_mul_i32 s%d, s%d, 6144" % (sBb, sLW))
    a("s_lshl_b32 s%d, s%d, 14" % (sLW4096, sLW))
    a("s_mul_i32 s%d, s%d, %d" % (sLW3072, sLW, 128 * 1152))
    sWK, sXK, sOK = 98, 99, 100
    sWS, sXS, sOS = 93, 92, 91
    A_, SI, B_, SJ = ROTQ
    a("s_and_b32 s%d, s%d, 7" % (sT0, sIDX)); a("s_lshr_b32 s%d, s%d, %d" % (sT0, sT0, SI)); a("s_mul_i32 s%d, s%d, %d" % (sT0, sT0, A_))
    a("s_lshr_b32 s%d, s%d, %d" % (sT1, sIDX, 3 + SJ)); a("s_mul_i32 s%d, s%d, %d" % (sT1, sT1, B_)); a("s_add_u32 s%d, s%d, s%d" % (sT0, sT0, sT1))
    for _ in range(2): a("s_cmp_ge_u32 s%d, 9" % sT0); a("s_cselect_b32 s%d, 9, 0" % sT1); a("s_sub_u32 s%d, s%d, s%d" % (sT0, sT0, sT1))
    a("s_lshl_b32 s%d, s%d, 19" % (sWK, sT0)); a("s_lshl_b32 s%d, s%d, 7" % (sXK, sT0))
    a("s_and_b32 s%d, s%d, 7" % (sT0, sB)); a("s_lshl_b32 s%d, s%d, 7" % (sOK, sT0))
    a("s_mov_b32 s%d, %d" % (sWS, 2 * 16384)); a("s_mov_b32 s%d, 0" % sXS); a("s_mov_b32 s%d, 0" % sOS)
    a("s_add_u32 s%d, s%d, %d" % (sA, sA, WBASE)); a("s_add_u32 s%d, s%d, %d" % (sBb, sBb, XBASE))
    def adv(reg, step, wrap):
        a("s_add_u32 s%d, s%d, %d" % (reg, reg, step)); a("s_cmp_eq_u32 s%d, %d" % (reg, wrap)); a("s_cselect_b32 s%d, 0, s%d" % (reg, reg))
    def iss_W():
        a("s_add_u32 m0, s%d, s%d" % (sA, sWS))
        for ii in range(8):
            if ii == 4: a("s_add_u32 m0, m0, 4096")
            a("s_add_u32 s%d, s%d, %d" % (sT0, sWK, 16384 * ii - (ii & 3) * 1024))
            dma(a, vW + (ii & 1) + 2 * (ii >> 2), sWQ, sT0, (ii & 3) * 1024, W_FLAGS)
        adv(sWK, 262144, 18 * 262144); adv(sWS, 16384, 65536)
    def iss_X():
        a("s_add_u32 m0, s%d, s%d" % (sBb, sXS))
        for ii in range(6):
            if ii == 4: a("s_add_u32 m0, m0, 4096")
            a("s_add_u32 s%d, s%d, %d" % (sT0, sXK, 9216 * ii - (ii & 3) * 1024))
            dma(a, vX + (ii & 1), sX, sT0, (ii & 3) * 1024, W_FLAGS)
        adv(sXK, 128, 9 * 128); a("s_xor_b32 s%d, s%d, %d" % (sXS, sXS, XSLOT))
    def iss_O():
        a("s_add_u32 s%d, s%d, s%d" % (sT1, sLW3072, sOK))
        a("s_add_u32 m0, s%d, s%d" % (sLW4096, sOS))
        for ii in range(16):
            if ii % 4 == 0 and ii: a("s_add_u32 m0, m0, 4096")
            a("s_add_u32 s%d, s%d, %d" % (sT0, sT1, 9216 * ii - (ii & 3) * 1024))
            dma(a, vO, sWO, sT0, (ii & 3) * 1024, O_FLAGS)
        adv(sOK, 128, 9 * 128); adv(sOS, PAIR, 4 * PAIR)
    tr = [16]
    def bar(w=None):
        if w is not None and "nowait" not in OPT: a("s_waitcnt vmcnt(%d)" % w)
        a("s_barrier")
    def loop(n, body, name):
        lab = a.label(name)
        a("s_mov_b32 s%d, 0" % sCNT); a("%s:" % lab)
        body()
        a("s_add_u32 s%d, s%d, 1" % (sCNT, sCNT)); a("s_cmp_lt_u32 s%d, %d" % (sCNT, n)); a("s_cbranch_scc1 %s" % lab)
    if "look2" not in OPT:
        if "split0" in OPT:
            li = a.label("Lwi"); sk0 = a.label("Lwi0")
            a("s_mov_b32 s%d, 0" % sCNT); a("%s:" % li)
            iss_X(); iss_W(); iss_W()
            a("s_cmp_lg_u32 s%d, 0" % sCNT); a("s_cbranch_scc1 %s" % sk0)
            bar(8)
            a("s_mov_b32 s%d, 1" % sCNT); a("s_branch %s" % li)
            a("%s:" % sk0)
        else:
            loop(2, lambda: (iss_X(), iss_W(), iss_W()), "Lwi")
            bar(30)
        bar(22)
        iss_W()
        def qbody():
            bar(16)
            iss_X(); iss_W()
            bar(22)
            sk = a.label("Lwl"); a("s_cmp_eq_u32 s%d, 6" % sCNT); a("s_cbranch_scc1 %s" % sk)
            iss_W()
            a("%s:" % sk)
        loop(7, qbody, "Lwq")
        bar(8)
        bar(0)
    else:
        if STAMP: stamp(a, 17)
        iss_X(); iss_W(); iss_W()
        if STAMP: stamp(a, 18)
        def qbody():
            bar(8)
            iss_X(); iss_W()
            bar(14)
            iss_W()
        loop(8, qbody, "Lwq")
        bar(8)
        bar(0)
    bar(None); bar(None)
    stamp(a, 8)
    def cpf():
        sk = a.label("Lcp"); a("s_cmp_lg_u32 s%d, 1" % sLW); a("s_cbranch_scc1 %s" % sk); code_prefetch(a); a("%s:" % sk)
    if "kv4" in OPT: attn_kv4(a, True, iss_O, cpf)
    else:
        loop(CPF_AT, lambda: bar(None), "Lwa")
        cpf()
        loop(13 - CPF_AT, lambda: bar(None), "Lwb")
        loop(2, lambda: (bar(None), iss_O()), "Lwo")
        bar(16)
        iss_O()
    a("s_barrier"); a("s_barrier")
    loop(6, lambda: (bar(16), iss_O()), "Lwp")
    bar(0)
    a("s_barrier"); a("s_barrier"); a("s_barrier")
    stamp(a, 9)
    a("s_add_u32 s%d, s%d, 4" % (sCNT, sLW))
    a("s_branch L_reduce")

def gen_kvloader(a):
    vK, vV = 10, 11
    a.stamp_wave = -1
    a("s_sub_u32 s%d, s%d, 2" % (sLW, sLW))
    a("v_lshrrev_b32 v2, 4, v1"); a("v_and_b32 v3, 15, v1")
    a("s_lshl_b32 s%d, s%d, 13" % (sT0, sLW))
    a("v_lshlrev_b32 v4, 8, v2"); a("v_add_u32 v4, s%d, v4" % sT0)
    a("v_xor_b32 v5, v2, v3"); a("v_lshlrev_b32 v5, 4, v5"); a("v_add_u32 v%d, v4, v5" % vK)
    a("v_lshlrev_b32 v5, 1, v2"); a("v_xor_b32 v5, v5, v3"); a("v_lshlrev_b32 v5, 4, v5"); a("v_add_u32 v%d, v4, v5" % vV)
    a("s_mul_i32 s%d, s%d, %d" % (sLWK, sLW, 8 * KGRP)); a("s_mul_i32 s%d, s%d, %d" % (sLWV, sLW, 8 * VGRP))
    sROT = 92
    if "krot" in OPT:
        a("s_mul_i32 s%d, s%d, %d" % (sROT, sXCD, KROT[0])); a("s_mul_i32 s%d, s%d, %d" % (sT0, sIDX, KROT[1])); a("s_add_u32 s%d, s%d, s%d" % (sROT, sROT, sT0))
    q = VQ(); bar = mk_bar(a, q, None)
    def iss(T, isK, lo=0, hi=8):
        for ii in range(lo, hi):
            if "krot" in OPT:
                if ii == lo: a("s_add_u32 s%d, s%d, %d" % (sT2, sROT, T)); a("s_and_b32 s%d, s%d, 15" % (sT2, sT2)); a("s_lshl_b32 s%d, s%d, 14" % (sT2, sT2))
                if ii % 4 == 0 or ii == lo: a("s_add_u32 s%d, s%d, %d" % (sT0, sT2, (ii >> 2) * 4096))
            elif ii % 4 == 0 or ii == lo: a("s_mov_b32 s%d, %d" % (sT0, T * 16384 + (ii >> 2) * 4096))
            grp = KGRP if isK else VGRP
            a("s_add_u32 m0, s%d, %d" % (sLWK if isK else sLWV, (T % 4) * PAIR + (0 if isK else VOFF) + ii * grp - (ii & 3) * 1024))
            if ii % 4: a("s_nop 0")
            else: a("s_nop 0")
            dma(a, vK if isK else vV, sK if isK else sV, sT0, (ii & 3) * 1024, KV_FLAGS)
        q.issue("I%d" % T, hi - lo)
    def prefetch_q():
        sk = a.label("Lpfq"); skx = a.label("Lpfx")
        a("s_cmp_lg_u32 s%d, %d" % (sLW, PF_WAVE)); a("s_cbranch_scc1 %s" % sk)
        a("s_cmp_ge_u32 s%d, 28" % sIDX); a("s_cbranch_scc1 %s" % sk)
        a("s_cmp_ge_u32 s%d, 16" % sIDX); a("s_cbranch_scc1 %s" % skx)
        a("s_lshl_b32 s%d, s%d, 2" % (sT0, sIDX)); a("v_add_u32 v5, s%d, v2" % sT0); a("v_lshlrev_b32 v5, 13, v5"); a("v_lshlrev_b32 v6, 7, v3"); a("v_add_u32 v5, v5, v6")
        for cp in range(PF_FIRST, 9):
            a("s_mov_b32 s%d, %d" % (sT0, cp * 64 * 8192)); a("buffer_load_dword v%d, v5, %s, s%d offen" % (20 + cp, srd(sPF), sT0))
        a("s_branch %s" % sk)
        a("%s:" % skx)
        a("s_sub_u32 s%d, s%d, 16" % (sT0, sIDX)); a("s_lshl_b32 s%d, s%d, 6" % (sT0, sT0)); a("v_add_u32 v5, s%d, v1" % sT0); a("v_mul_u32_u24 v5, 1152, v5")
        for cp in range(PF_FIRST, 9):
            a("s_mov_b32 s%d, %d" % (sT0, cp * 128)); a("buffer_load_dword v%d, v5, %s, s%d offen" % (20 + cp, srd(sPF2), sT0))
        a("%s:" % sk)
    def clear_flags():
        sk = a.label("Lclr")
        a("s_cmp_lg_u32 s%d, 1" % sLW); a("s_cbranch_scc1 %s" % sk)
        a("v_mov_b32 v20, 0"); a("v_mov_b32 v21, 0")
        a("s_lshl_b32 s%d, s%d, 3" % (sT0, sH))
        a("v_lshlrev_b32 v5, 7, v1"); a("v_add_u32 v5, s%d, v5" % sT0); a("v_mov_b32 v7, 0x40000000"); a("v_cmp_gt_u32 vcc, 9, v1"); a("s_nop 1"); a("v_cndmask_b32 v5, v7, v5, vcc")
        a("buffer_store_dwordx2 v[20:21], v5, %s, 0 offen sc0 sc1" % srd(sFL))
        a("s_waitcnt vmcnt(0)")
        a("s_lshl_b32 s%d, s%d, 4" % (sT0, sB)); a("v_mov_b32 v5, s%d" % sT0); a("v_mov_b32 v6, 1")
        a("s_mov_b64 s[96:97], exec"); a("s_mov_b64 exec, 1")
        a("global_atomic_add v5, v6, s[16:17] sc1")
        a("s_mov_b64 exec, s[96:97]")
        a("%s:" % sk)
    if "cpf0" in OPT:
        sk = a.label("Lcp0"); a("s_cmp_lg_u32 s%d, 1" % sLW); a("s_cbranch_scc1 %s" % sk); code_prefetch(a); a("%s:" % sk)
    if "notlb" not in OPT:
        sk = a.label("Ltlb")
        a("s_cmp_lg_u32 s%d, 0" % sLW); a("s_cbranch_scc1 %s" % sk)
        a("v_mov_b32 v5, 0")
        for i, sr in enumerate((sK, sV, sWO, sP, sOUT)): a("buffer_load_dword v%d, v5, %s, 0 offen nt" % (33 + i, srd(sr)))
        a("v_mul_u32_u24 v5, %d, v1" % (PART // 8)); a("v_lshlrev_b32 v5, 3, v5"); a("v_mov_b32 v7, 0x40000000"); a("v_cmp_gt_u32 vcc, 16, v1"); a("s_nop 1"); a("v_cndmask_b32 v5, v7, v5, vcc")
        a("buffer_load_dword v38, v5, %s, 0 offen nt" % srd(sPB))
        a("%s:" % sk)
    clear_flags()
    if "nopfq" not in OPT and PF_AT < 0: prefetch_q()
    for s in range(18):
        bar(None)
        if "nopfq" not in OPT and PF_AT == s: prefetch_q()
        for e in KSCHED.get(s, []): iss(e[1], e[0] == "K", *e[2:])
    bar(None)
    for e in KSCHED.get(18, []): iss(e[1], e[0] == "K", *e[2:])
    bar(["I0"])
    for e in KSCHED.get(19, []): iss(e[1], e[0] == "K", *e[2:])
    if "kv4" in OPT:
        assert FIRST_RULE == 1
        attn_kv4(a, False)
    else:
        sTK, sKS = 93, 91
        if FIRST_RULE == 2:
            n1 = q.wait(["I1"])
            if n1 is not None and "nowait" not in OPT: a("s_waitcnt vmcnt(%d)" % n1)
            a("s_barrier")
        a("s_mov_b32 s%d, %d" % (sTK, (FIRST_RULE + 2) * 16384)); a("s_mov_b32 s%d, %d" % (sKS, ((FIRST_RULE + 2) % 4) * PAIR))
        lab = a.label("Lkv"); a("s_mov_b32 s%d, %d" % (sCNT, FIRST_RULE - 1)); a("%s:" % lab)
        if "nowait" not in OPT: a("s_waitcnt vmcnt(16)")
        a("s_barrier")
        a("s_add_u32 s%d, s%d, s%d" % (sT1, sLWK, sKS)); a("s_add_u32 s%d, s%d, s%d" % (sT2, sLWV, sKS))
        for isK in (True, False):
            for ii in range(8):
                if ii % 4 == 0: a("s_add_u32 s%d, s%d, %d" % (sT0, sTK, (ii >> 2) * 4096))
                grp = KGRP if isK else VGRP
                a("s_add_u32 m0, s%d, %d" % (sT1 if isK else sT2, (0 if isK else VOFF) + ii * grp - (ii & 3) * 1024)); a("s_nop 0")
                dma(a, vK if isK else vV, sK if isK else sV, sT0, (ii & 3) * 1024, KV_FLAGS)
        a("s_add_u32 s%d, s%d, 16384" % (sTK, sTK))
        a("s_add_u32 s%d, s%d, %d" % (sKS, sKS, PAIR)); a("s_cmp_eq_u32 s%d, %d" % (sKS, 4 * PAIR)); a("s_cselect_b32 s%d, 0, s%d" % (sKS, sKS))
        a("s_add_u32 s%d, s%d, 1" % (sCNT, sCNT)); a("s_cmp_lt_u32 s%d, 13" % sCNT); a("s_cbranch_scc1 %s" % lab)
        if "nowait" not in OPT: a("s_waitcnt vmcnt(16)")
        a("s_barrier")
        if "nowait" not in OPT: a("s_waitcnt vmcnt(0)")
        a("s_barrier")
        a("s_barrier")
    if "nored" not in OPT:
        sk = a.label("Ldbg"); lp = a.label("Ldbgw")
        a("s_cmp_lg_u32 s%d, 0" % sLW); a("s_cbranch_scc1 %s" % sk)
        a("s_lshl_b32 s%d, s%d, 4" % (sT0, sB)); a("v_mov_b32 v10, s%d" % sT0); a("s_mov_b32 s%d, 0" % sT3)
        a("%s:" % lp)
        a("global_load_dword v12, v10, s[16:17] sc1"); a("s_waitcnt vmcnt(0)"); a("v_readfirstlane_b32 s%d, v12" % sT1)
        a("s_add_u32 s%d, s%d, 1" % (sT3, sT3)); a("s_cmp_gt_u32 s%d, %d" % (sT3, SPIN_MAX)); a("s_cbranch_scc1 %s" % sk)
        a("s_cmp_lt_u32 s%d, 16" % sT1); a("s_cbranch_scc1 %s" % lp)
        a("%s:" % sk)
    a("s_barrier"); a("s_barrier")
    vPR, vPO, vF, vOne = 20, 24, 25, 26
    sCH = 93
    a("v_lshlrev_b32 v%d, 4, v1" % vPO)
    a("s_mul_i32 s%d, s%d, 6144" % (sT0, sLW)); a("s_add_u32 s%d, s%d, %d" % (sT0, sT0, PB0)); a("v_add_u32 v%d, s%d, v%d" % (vPR, sT0, vPO)); a("v_add_u32 v%d, 3072, v%d" % (vPR + 1, vPR))
    a("s_mul_i32 s%d, s%d, %d" % (sT0, sLW, 2 * PAIR)); a("s_add_u32 s%d, s%d, 32768" % (sT0, sT0)); a("v_add_u32 v%d, s%d, v%d" % (vPR + 2, sT0, vPO)); a("v_add_u32 v%d, %d, v%d" % (vPR + 3, PAIR, vPR + 2))
    a("s_mul_i32 s%d, s%d, 6144" % (sT0, sLW)); a("v_add_u32 v%d, s%d, v%d" % (vPO, sT0, vPO))
    a("v_mov_b32 v%d, 1" % vOne)
    a("s_lshl_b32 s%d, s%d, 3" % (sT0, sH)); a("s_lshl_b32 s%d, s%d, 2" % (sT1, sLW)); a("s_add_u32 s%d, s%d, s%d" % (sT0, sT0, sT1))
    a("v_mov_b32 v%d, 0x40000000" % vF); a("s_nop 0"); a("v_writelane_b32 v%d, s%d, 0" % (vF, sT0))
    a("s_mov_b32 s%d, 0" % sCH)
    def flag_store(back):
        a("s_sub_u32 s%d, s%d, %d" % (sT0, sCH, back)); a("s_lshl_b32 s%d, s%d, 7" % (sT0, sT0))
        a("buffer_store_dword v%d, v%d, %s, s%d offen sc0 sc1" % (vOne, vF, srd(sFL), sT0))
    def turn(buf, guard):
        for w2 in range(2):
            for j in range(3): a("ds_read_b128 %s, v%d offset:%d" % (vr(64 + 32 * buf + 4 * (3 * w2 + j), 4), vPR + 2 * buf + w2, j * 1024))
        a("s_mul_i32 s%d, s%d, 12288" % (sT0, sCH))
        for i in range(6):
            a("s_waitcnt lgkmcnt(%d)" % (5 - i))
            if "nostore" not in OPT: a("buffer_store_dwordx4 %s, v%d, %s, s%d offen%s" % (vr(64 + 32 * buf + 4 * i, 4), vPO, srd(sP), sT0, P_FLAGS))
            if i < 5: a("s_add_u32 s%d, s%d, 1024" % (sT0, sT0))
        if "nored" not in OPT:
            sk = a.label("Lfl")
            if guard: a("s_cmp_lt_u32 s%d, 2" % sCH); a("s_cbranch_scc1 %s" % sk)
            a("s_waitcnt vmcnt(%d)" % FLW)
            flag_store(2)
            a("%s:" % sk)
        a("s_add_u32 s%d, s%d, 1" % (sCH, sCH))
    a("s_barrier")
    lab = a.label("Lsto"); a("%s:" % lab)
    a("s_barrier"); turn(0, True)
    a("s_barrier"); turn(1, True)
    a("s_cmp_lt_u32 s%d, 8" % sCH); a("s_cbranch_scc1 %s" % lab)
    a("s_barrier"); turn(0, False)
    if "nored" not in OPT:
        a("s_waitcnt vmcnt(7)"); flag_store(2)
        a("s_waitcnt vmcnt(1)"); flag_store(1)
    a("s_cmp_eq_u32 s%d, 0" % sLW); a("s_cselect_b32 s%d, 7, 6" % sCNT)
    a("s_branch L_reduce")

KSCHED = {2: [("K", 0)], 5: [("V", 0)], 8: [("K", 1)], 11: [("V", 1)], 16: [("K", 2)], 17: [("V", 2)]}

def gen_reducer(a):
    a("L_reduce:")
    if "nored" in OPT:
        a.stamp_wave = 4; stamp_flush(a); a("s_endpgm"); return
    rho = sCNT
    giveup = a.label("Lgiveup"); poll = a.label("Lpoll")
    a("s_mul_i32 s%d, s%d, 54" % (sT0, rho)); a("s_mul_hi_u32 s%d, s%d, %d" % (sT2, sT0, (2**32 + 47) // 48))
    a("v_lshlrev_b32 v9, 2, v1"); a("v_mov_b32 v7, 0x40000000")
    a("s_lshl_b32 s%d, s%d, 7" % (sT2, sT2))
    a("buffer_load_dword v11, v9, %s, s%d offen sc1" % (srd(sFL), sT2))
    a("v_add_u32 v2, s%d, v1" % sT0)
    a("v_mul_u32_u24 v8, 1366, v2"); a("v_lshrrev_b32 v8, 16, v8")
    a("v_mul_u32_u24 v5, 48, v8"); a("v_sub_u32 v2, v2, v5")
    a("s_mul_i32 s%d, s%d, 48" % (sT1, sH)); a("v_add_u32 v2, s%d, v2" % sT1)
    a("v_mul_u32_u24 v3, 12288, v8"); a("v_lshlrev_b32 v5, 4, v2"); a("v_add_u32 v3, v3, v5")
    a("v_cmp_gt_u32 vcc, 54, v1"); a("s_nop 1"); a("v_cndmask_b32 v3, v7, v3, vcc")
    a("v_lshrrev_b32 v4, 6, v2"); a("v_and_b32 v5, 63, v2")
    a("v_cmp_le_u32 s[96:97], 6, v4"); a("s_nop 1"); a("v_cndmask_b32 v6, 0, 1, s[96:97]")
    a("v_mul_u32_u24 v10, 6, v6"); a("v_sub_u32 v4, v4, v10")
    a("v_lshlrev_b32 v4, 4, v4"); a("v_and_b32 v10, 15, v5"); a("v_add_u32 v4, v4, v10"); a("v_mul_u32_u24 v4, 1152, v4")
    a("v_lshlrev_b32 v6, 6, v6"); a("v_lshrrev_b32 v5, 4, v5"); a("v_lshlrev_b32 v5, 3, v5"); a("v_add_u32 v4, v4, v6"); a("v_add_u32 v4, v4, v5")
    a("s_and_b32 s%d, s%d, 7" % (sT1, sB)); a("v_add_u32 v8, s%d, v8" % sT1)
    a("v_cmp_le_u32 s[96:97], 9, v8"); a("s_nop 1"); a("v_cndmask_b32 v6, 0, 9, s[96:97]"); a("v_sub_u32 v8, v8, v6"); a("v_lshlrev_b32 v8, 7, v8"); a("v_add_u32 v4, v4, v8")
    a("v_cndmask_b32 v4, v7, v4, vcc")
    a("s_mov_b32 s%d, 0" % sT3)
    a("s_branch %s_chk" % poll)
    a("%s:" % poll)
    a("buffer_load_dword v11, v9, %s, s%d offen sc1" % (srd(sFL), sT2))
    a("%s_chk:" % poll)
    a("s_waitcnt vmcnt(0)")
    a("v_cmp_eq_u32 vcc, 1, v11")
    a("s_add_u32 s%d, s%d, 1" % (sT3, sT3)); a("s_cmp_gt_u32 s%d, %d" % (sT3, SPIN_MAX)); a("s_cbranch_scc1 %s" % giveup)
    a("s_cmp_eq_u64 vcc, -1"); a("s_cbranch_scc0 %s" % poll)
    a("s_mov_b32 s%d, 0" % sT0)
    for h in range(16):
        a("buffer_load_dwordx4 v[%d:%d], v3, %s, s%d offen%s" % (64 + 4 * h, 67 + 4 * h, srd(sPB), sT0, R_FLAGS))
        if h < 15: a("s_add_u32 s%d, s%d, %d" % (sT0, sT0, PART))
    if "dot2" in OPT:
        a("v_mov_b32 v12, 0x00003f80"); a("v_mov_b32 v13, 0x3f800000")
        for r in range(8): a("v_mov_b32 v%d, 0" % (48 + r))
    for h in range(16):
        a("s_waitcnt vmcnt(%d)" % (15 - h))
        for r in range(4):
            src = 64 + 4 * h + r
            if "dot2" in OPT:
                a("v_dot2c_f32_bf16 v%d, v%d, v12" % (48 + 2 * r, src)); a("v_dot2c_f32_bf16 v%d, v%d, v13" % (49 + 2 * r, src))
            elif h == 0:
                a("v_lshlrev_b32 v%d, 16, v%d" % (48 + 2 * r, src)); a("v_and_b32 v%d, 0xffff0000, v%d" % (49 + 2 * r, src))
            else:
                a("v_lshlrev_b32 v12, 16, v%d" % src); a("v_and_b32 v13, 0xffff0000, v%d" % src)
                a("v_add_f32 v%d, v%d, v12" % (48 + 2 * r, 48 + 2 * r)); a("v_add_f32 v%d, v%d, v13" % (49 + 2 * r, 49 + 2 * r))
    for r in range(4): a("v_cvt_pk_bf16_f32 v%d, v%d, v%d" % (56 + r, 48 + 2 * r, 49 + 2 * r))
    a("buffer_store_dwordx2 v[56:57], v4, %s, 0 offen%s" % (srd(sOUT), OUT_FLAGS))
    a("buffer_store_dwordx2 v[58:59], v4, %s, 0 offen offset:32%s" % (srd(sOUT), OUT_FLAGS))
    a("%s:" % giveup)
    if STAMP:
        sk = a.label("Lnst"); a("s_cmp_lg_u32 s%d, 4" % sWAVE); a("s_cbranch_scc1 %s" % sk)
        a.stamp_wave = 4; stamp(a, 15); stamp_flush(a)
        a("%s:" % sk)
    a("s_endpgm")
R_FLAGS = " sc1"
OUT_FLAGS = ""
sTASK2 = 101
PB0 = 143360
SPIN_MAX = 200000
sWOP = 70

PF_O_AT = 10
PF_WAVE = 1
PF_FIRST = 4
PF_AT = 0
PF0 = 2
FLW = 12
STG_AT = 7
NSTG0 = 3
ROTQ = (1, 0, 2, 0)
KROT = (2, 1)
CPF_AT = 11
FIRST_RULE = 1
CMP_SLACK = 6
FLAG_DELAY = 4

def O_(j, db): return (j * 8 + db) * 4
def Q_(j, s): return 96 + (j * 4 + s) * 4
def KF(f): return 144 + 4 * f
def VF(db): return 176 + 4 * db
def S_(par): return 208 + 8 * par
def P_(par): return 224 + 4 * par
def N_(j): return 232 + 4 * j
def L_(j): return 244 + j
vKA, vVA, vT, vT2, vS, vLANE = 247, 248, 252, 253, 254, 255
MF = "v_mfma_f32_16x16x32_bf16"

def interleave(mfmas, fillers):
    out = list(fillers.get(-1, []))
    for i, m in enumerate(mfmas):
        out.append(m); out += fillers.get(i, [])
    return out
def spread(items, slots):
    d = {}; n = len(items)
    for i, it in enumerate(items): d.setdefault(slots[i * len(slots) // n], []).append(it)
    return d
def merge(*ds):
    o = {}
    for d in ds:
        for k, v in d.items(): o.setdefault(k, []).extend(v)
    return o

KORD = [(kb, s) for s in range(4) for kb in range(2)]
def k_read(kb, s, half, ad=None):
    return "ds_read_b128 %s, v%d offset:%d" % (vr(KF(kb * 4 + s), 4), vKA if ad is None else ad, half * 8 * KGRP + kb * 4 * KGRP + s * 64)
def v_reads(db, half):
    A, cc = divmod(db, 4)
    o = half * 8 * VGRP + A * 128
    return ["ds_read_b64_tr_b16 %s, v%d offset:%d" % (vr(VF(db), 2), vVA + cc, o), "ds_read_b64_tr_b16 %s, v%d offset:%d" % (vr(VF(db) + 2, 2), vVA + cc, o + 4 * VGRP)]

TAB = None
def hoist_waits(lines):
    out = []
    for l in lines:
        if l.startswith("s_waitcnt lgkmcnt") and out:
            n = int(l.split("(")[1].split(")")[0])
            k = len(out) - 1; jumped = 0; ok = False
            while k >= 0:
                x = out[k]
                if x.startswith("v_mfma"): ok = True; break
                if x.endswith(":") or x.startswith(("s_cbranch", "s_barrier", "s_waitcnt")): break
                if x.startswith("ds_"): jumped += 1
                k -= 1
            if ok and n - jumped >= 0:
                out.insert(k + 1, "s_waitcnt lgkmcnt(%d)" % (n - jumped)); continue
        out.append(l)
    return out

def gen_compute(a):
    rare = []
    a("v_and_b32 v%d, 63, v0" % vLANE)
    a("s_lshr_b32 s%d, s%d, 1" % (sQI, sWAVE)); a("s_and_b32 s%d, s%d, 1" % (sRH, sWAVE))
    g, rp, c, q = 240, 241, 242, 243
    a("v_lshrrev_b32 v%d, 4, v%d" % (g, vLANE)); a("v_bfe_u32 v%d, v%d, 2, 2" % (rp, vLANE)); a("v_and_b32 v%d, 3, v%d" % (c, vLANE)); a("v_and_b32 v%d, 15, v%d" % (q, vLANE))
    vWA, vXA = 232, 244
    t, t2 = vT, vT2
    a("v_lshlrev_b32 v%d, 3, v%d" % (t, g)); a("v_add_u32 v%d, v%d, v%d" % (t, t, rp)); a("v_lshlrev_b32 v%d, 9, v%d" % (t, t))
    a("v_and_b32 v%d, 1, v%d" % (t2, g)); a("v_lshlrev_b32 v%d, 2, v%d" % (t2, t2)); a("v_add_u32 v%d, v%d, v%d" % (t2, t2, rp)); a("v_lshlrev_b32 v%d, 5, v%d" % (t2, t2))
    a("v_add_u32 v%d, v%d, v%d" % (t, t, t2)); a("v_lshlrev_b32 v%d, 3, v%d" % (t2, c)); a("v_add_u32 v%d, v%d, v%d" % (t, t, t2))
    a("s_lshl_b32 s%d, s%d, 8" % (sT0, sQI)); a("s_add_u32 s%d, s%d, %d" % (sT0, sT0, WBASE)); a("v_add_u32 v%d, s%d, v%d" % (t, sT0, t))
    assert WBASE % 256 == 0 and XBASE % 128 == 0
    for db in range(8): a("v_xor_b32 v%d, %d, v%d" % (vWA + db, db * 32, t))
    a("s_mul_i32 s%d, s%d, %d" % (sT0, sRH, 48 * 128)); a("s_add_u32 s%d, s%d, %d" % (sT0, sT0, XBASE))
    a("v_lshrrev_b32 v%d, 1, v%d" % (t, q)); a("v_xor_b32 v%d, v%d, v%d" % (t, t, g)); a("v_lshlrev_b32 v%d, 4, v%d" % (t, t))
    a("v_lshlrev_b32 v%d, 7, v%d" % (t2, q)); a("v_add_u32 v%d, v%d, v%d" % (t, t, t2)); a("v_add_u32 v%d, s%d, v%d" % (vXA, sT0, t)); a("v_xor_b32 v%d, 64, v%d" % (vXA + 1, vXA))
    a("v_lshrrev_b32 v%d, 2, v%d" % (t, q)); a("v_mul_u32_u24 v%d, %d, v%d" % (t, KGRP, t))
    a("v_and_b32 v%d, 3, v%d" % (t2, q)); a("v_lshlrev_b32 v%d, 8, v%d" % (vKA, t2)); a("v_add_u32 v%d, v%d, v%d" % (t, t, vKA))
    a("v_xor_b32 v%d, v%d, v%d" % (t2, t2, g)); a("v_lshlrev_b32 v%d, 4, v%d" % (t2, t2)); a("v_add_u32 v%d, v%d, v%d" % (vKA, t, t2))
    a("v_mul_u32_u24 v%d, %d, v%d" % (t, VGRP, g)); a("v_lshlrev_b32 v%d, 8, v%d" % (t2, rp)); a("v_add_u32 v%d, v%d, v%d" % (t, t, t2))
    a("v_lshlrev_b32 v%d, 3, v%d" % (t2, c)); a("v_add_u32 v%d, v%d, v%d" % (t, t, t2)); a("v_add_u32 v%d, %d, v%d" % (t, VOFF, t))
    for cc in range(4):
        a("v_xor_b32 v%d, %d, v%d" % (t2, cc, rp)); a("v_lshlrev_b32 v%d, 5, v%d" % (t2, t2)); a("v_add_u32 v%d, v%d, v%d" % (vVA + cc, t, t2))
    stamp(a, 0, 10)

    def ABUF(buf, db): return 144 + 32 * buf + 4 * db
    def BBUF(buf, j): return 208 + 12 * buf + 4 * j
    def q_reads(s):
        buf = s & 1; wo = ((s + 2) % 4) * 16384; xo = ((s // 2) % 2) * XSLOT
        r = []
        for j in range(3): r.append("ds_read_b128 %s, v%d offset:%d" % (vr(BBUF(buf, j), 4), vXA + (s & 1), xo + j * 2048))
        for db in range(8):
            r.append("ds_read_b64_tr_b16 %s, v%d offset:%d" % (vr(ABUF(buf, db), 2), vWA + db, wo))
            r.append("ds_read_b64_tr_b16 %s, v%d offset:%d" % (vr(ABUF(buf, db) + 2, 2), vWA + db, wo + 2048))
        return r
    for r in range(0, 96, 2): a("v_mov_b64 %s, 0" % vr(r, 2))
    a("s_barrier")
    for x in q_reads(0): a(x)
    def q_stage(s, reads=True):
        buf = s & 1
        a("s_waitcnt lgkmcnt(0)")
        a("s_barrier")
        mf = []
        for db in range(8):
            for j in range(3):
                mf.append("%s %s, %s, %s, %s" % (MF, vr(O_(j, db), 4), vr(ABUF(buf, db), 4), vr(BBUF(buf, j), 4), vr(O_(j, db), 4)))
        rd = q_reads(s + 1) if reads else []
        for x in interleave(mf, spread(rd, list(range(0, 17))) if rd else {}): a(x)
    lq = a.label("Lq")
    a("s_mov_b32 s%d, 0" % sCNT); a("%s:" % lq)
    for s in range(4): q_stage(s)
    a("s_add_u32 s%d, s%d, 1" % (sCNT, sCNT)); a("s_cmp_lt_u32 s%d, 4" % sCNT); a("s_cbranch_scc1 %s" % lq)
    q_stage(16); q_stage(17, reads=False)
    stamp(a, 1, 11)
    a("s_nop 7")
    a("s_mov_b32 s%d, %s" % (sT0, f32(C_SCALE))); a("s_mov_b32 s%d, s%d" % (sT0 + 1, sT0))
    for j in range(3):
        for s in range(4):
            X, Y, D = O_(j, 2 * s), O_(j, 2 * s + 1), Q_(j, s)
            for r in range(0, 4, 2):
                a("v_pk_mul_f32 %s, %s, s[%d:%d]" % (vr(X + r, 2), vr(X + r, 2), sT0, sT0 + 1)); a("v_pk_mul_f32 %s, %s, s[%d:%d]" % (vr(Y + r, 2), vr(Y + r, 2), sT0, sT0 + 1))
            a("v_cvt_pk_bf16_f32 v%d, v%d, v%d" % (D + 0, X + 0, X + 1)); a("v_cvt_pk_bf16_f32 v%d, v%d, v%d" % (D + 1, X + 2, X + 3))
            a("v_cvt_pk_bf16_f32 v%d, v%d, v%d" % (D + 2, Y + 0, Y + 1)); a("v_cvt_pk_bf16_f32 v%d, v%d, v%d" % (D + 3, Y + 2, Y + 3))
            for r in range(0, 4, 2):
                a("v_mov_b64 %s, 0" % vr(X + r, 2)); a("v_mov_b64 %s, 0" % vr(Y + r, 2))
            a("v_permlane32_swap_b32 v%d, v%d" % (D + 0, D + 2)); a("v_permlane32_swap_b32 v%d, v%d" % (D + 1, D + 3))
            a("s_nop 1")
            a("v_permlane16_swap_b32 v%d, v%d" % (D + 0, D + 2)); a("v_permlane16_swap_b32 v%d, v%d" % (D + 1, D + 3))
    a("s_barrier")
    for kb, s_ in KORD: a(k_read(kb, s_, 0))
    a("s_waitcnt lgkmcnt(0)")
    for j in range(3):
        for kb, s_ in KORD:
            d = 176 + 8 * j + 4 * kb
            a("%s %s, %s, %s, %s" % (MF, vr(d, 4), vr(KF(kb * 4 + s_), 4), vr(Q_(j, s_), 4), "0" if s_ == 0 else vr(d, 4)))
    for r in range(224, 232, 2): a("v_mov_b64 %s, 0" % vr(r, 2))
    for j in range(3): a("v_mov_b32 v%d, 0" % L_(j))
    a("v_mov_b32 v%d, 0" % vS)
    a("s_mov_b32 s%d, %s" % (sTHR, "0x7f800000" if "norare" in OPT else f32(256.0)))
    a("s_mov_b32 s%d, 0" % sSLOT); a("s_mov_b32 s%d, 0" % sDK)
    a("s_mov_b32 s%d, 0x%x" % (sNEG, -3 * PAIR & 0xffffffff))
    a("s_mov_b64 vcc, 0")
    a("s_nop 3")
    for j in range(3):
        S = 176 + 8 * j; t, t2 = 200 + 2 * j, 201 + 2 * j
        a("v_max3_f32 v%d, v%d, v%d, v%d" % (t, S, S + 1, S + 2)); a("v_max3_f32 v%d, v%d, v%d, v%d" % (t2, S + 3, S + 4, S + 5))
        a("v_max3_f32 v%d, v%d, v%d, v%d" % (t, t, S + 6, S + 7)); a("v_max_f32 v%d, v%d, v%d" % (t, t, t2))
    for sw in ("v_permlane32_swap_b32", "v_permlane16_swap_b32"):
        for j in range(3): a("v_mov_b32 v%d, v%d" % (201 + 2 * j, 200 + 2 * j))
        a("s_nop 0")
        for j in range(3): a("%s v%d, v%d" % (sw, 200 + 2 * j, 201 + 2 * j))
        for j in range(3): a("v_max_f32 v%d, v%d, v%d" % (200 + 2 * j, 200 + 2 * j, 201 + 2 * j))
    for j in range(3):
        for i in range(4): a("v_sub_f32 v%d, 0, v%d" % (N_(j) + i, 200 + 2 * j))
    for r in range(176, 208, 2): a("v_mov_b64 %s, 0" % vr(r, 2))
    def qk_mfmas(jn, par):
        m = []
        for kb, s in KORD:
            d = S_(par) + 4 * kb
            cc = vr(N_(jn), 4) if s == 0 else vr(d, 4)
            m.append("%s %s, %s, %s, %s" % (MF, vr(d, 4), vr(KF(kb * 4 + s), 4), vr(Q_(jn, s), 4), cc))
        return m
    def pv_mfmas(jp, par):
        return ["%s %s, %s, %s, %s" % (MF, vr(O_(jp, db), 4), vr(VF(db), 4), vr(P_(par), 4), vr(O_(jp, db), 4)) for db in range(8)]
    for m in qk_mfmas(0, 0): a(m)
    a("s_nop 7")

    def rare_code(st, j, adv):
        par = (3 * st + j) & 1
        S, P = S_(par), P_(par)
        rl, cont = a.label("Lrare"), a.label("Lcont")
        r = Asm()
        r("%s:" % rl)
        if adv: r("v_subrev_u32 v%d, s%d, v%d" % (vT2, sDK, vKA))
        else: r("v_mov_b32 v%d, v%d" % (vT2, vKA))
        for kb in range(2):
            for s in range(4):
                r("ds_read_b128 %s, v%d offset:%d" % (vr(P, 4), vT2, st * 8 * KGRP + kb * 4 * KGRP + s * 64))
                r("s_waitcnt lgkmcnt(0)")
                cc = vr(N_(j), 4) if s == 0 else vr(S + 4 * kb, 4)
                r("%s %s, %s, %s, %s" % (MF, vr(S + 4 * kb, 4), vr(P, 4), vr(Q_(j, s), 4), cc))
                r("s_nop 3")
        r("s_nop 7")
        r("v_max3_f32 v%d, v%d, v%d, v%d" % (vT, S, S + 1, S + 2)); r("v_max3_f32 v%d, v%d, v%d, v%d" % (vT2, S + 3, S + 4, S + 5))
        r("v_max3_f32 v%d, v%d, v%d, v%d" % (vT, vT, S + 6, S + 7)); r("v_max_f32 v%d, v%d, v%d" % (vT, vT, vT2))
        r("v_mov_b32 v%d, v%d" % (vT2, vT)); r("s_nop 1"); r("v_permlane32_swap_b32 v%d, v%d" % (vT, vT2)); r("v_max_f32 v%d, v%d, v%d" % (vT, vT, vT2))
        r("v_mov_b32 v%d, v%d" % (vT2, vT)); r("s_nop 1"); r("v_permlane16_swap_b32 v%d, v%d" % (vT, vT2)); r("v_max_f32 v%d, v%d, v%d" % (vT, vT, vT2))
        r("v_max_f32 v%d, 0, v%d" % (vT, vT))
        r("v_sub_f32 v%d, 0, v%d" % (vT2, vT)); r("v_exp_f32 v%d, v%d" % (vT2, vT2)); r("s_nop 0")
        r("v_mul_f32 v%d, v%d, v%d" % (L_(j), L_(j), vT2))
        for db in range(8):
            for rr in range(4): r("v_mul_f32 v%d, v%d, v%d" % (O_(j, db) + rr, O_(j, db) + rr, vT2))
        for i in range(4): r("v_sub_f32 v%d, v%d, v%d" % (N_(j) + i, N_(j) + i, vT))
        for i in range(8): r("v_sub_f32 v%d, v%d, v%d" % (S + i, S + i, vT))
        for i in range(8): r("v_exp_f32 v%d, v%d" % (S + i, S + i))
        r("s_nop 0")
        r("v_add_f32 v%d, v%d, v%d" % (vS, S, S + 1))
        for i in range(2, 8): r("v_add_f32 v%d, v%d, v%d" % (vS, vS, S + i))
        for i in range(4): r("v_cvt_pk_bf16_f32 v%d, v%d, v%d" % (P + i, S + 2 * i, S + 2 * i + 1))
        r("s_nop 1")
        r("s_branch %s" % cont)
        rare.append(r.text())
        if "nobr" in OPT: return ["%s:" % cont]
        if "sccbr" in OPT: return ["s_cbranch_scc1 %s" % rl, "%s:" % cont]
        return ["s_cbranch_vccnz %s" % rl, "%s:" % cont]

    def block_tab(st, j, prev, qk=True, kload=None, vlo=None, vhi=None, barrier=False, extra=(), pre_extra=(), klate=None):
        par = (3 * st + j) & 1
        jn, jp = (j + 1) % 3, (j - 1) % 3
        S, P = S_(par), P_(par)
        pre = []
        if barrier: pre.append("s_barrier")
        endbr = []
        if "brend" in OPT:
            endbr = rare_code(st, j, st == 1 and j >= 1)
        elif prev is not None: pre += rare_code(*prev)
        pre += list(pre_extra)
        mf = qk_mfmas(jn, par ^ 1) + pv_mfmas(jp, par ^ 1)
        N = {}
        for i in range(8): N["E%d" % i] = "v_exp_f32 v%d, v%d" % (S + i, S + i)
        for i in range(4):
            N["C%d" % i] = "v_cvt_pk_bf16_f32 v%d, v%d, v%d" % (P + i, S + 2 * i, S + 2 * i + 1)
            N["A%d" % i] = "v_add_f32 v%d, v%d, v%d" % (S + 2 * i, S + 2 * i, S + 2 * i + 1)
        N["B0"] = "v_add_f32 v%d, v%d, v%d" % (S, S, S + 2); N["B1"] = "v_add_f32 v%d, v%d, v%d" % (S + 4, S + 4, S + 6)
        N["SUM"] = "v_add_f32 v%d, v%d, v%d" % (vS, S, S + 4); N["CMP"] = "v_cmp_lt_f32 vcc, s%d, v%d" % (sTHR, vS)
        N["L"] = "v_add_f32 v%d, v%d, v%d" % (L_(jp), L_(jp), vS)
        lds = {g: [] for g in range(16)}
        if "nolds" not in OPT:
            if vlo is not None:
                rs = [x for db in range(4) for x in v_reads(db, vlo)]
                for x, g in zip(rs, TAB["vlo"]): lds[g].append(x)
            if vhi is not None:
                rs = [x for db in range(4, 8) for x in v_reads(db, vhi)]
                for x, g in zip(rs, TAB["vhi"]): lds[g].append(x)
            if kload is not None:
                for (kb, s_), g in zip(KORD[:6], TAB["k"]): lds[g].append(k_read(kb, s_, kload))
            if klate is not None:
                for (kb, s_), g in zip(KORD[6:], TAB["klate"]): lds[g].append(k_read(kb, s_, klate))
        out = list(pre)
        ex = list(extra)
        for g in range(16):
            out.append(mf[g])
            if g == 15 and endbr: out += (["s_cmp_lg_u64 vcc, 0"] if "sccbr" in OPT else []) + endbr
            out += lds[g]
            if "nosm" not in OPT: out += [N[n] for n in TAB["valu"].get(g, [])]
            if g == TAB.get("scc_at", 15) and "sccbr" in OPT and "brend" not in OPT: out.append("s_cmp_lg_u64 vcc, 0")
            if g in TAB.get("extra_at", ()) and ex:
                x = ex.pop(0); out += (x if isinstance(x, list) else [x])
        for x in ex: out += (x if isinstance(x, list) else [x])
        return out

    def block(st, j, prev, qk=True, kload=None, vlo=None, vhi=None, barrier=False, extra=(), pre_extra=(), klate=None):
        if TAB is not None and qk: return block_tab(st, j, prev, qk, kload, vlo, vhi, barrier, extra, pre_extra, klate)
        if "brend" in OPT: prev = None
        if "sccbr" in OPT and prev is not None: pre_extra = list(pre_extra)
        par = (3 * st + j) & 1
        jn, jp = (j + 1) % 3, (j - 1) % 3
        S, P = S_(par), P_(par)
        pre = []
        if barrier: pre.append("s_barrier")
        if prev is not None: pre += rare_code(*prev)
        pre += list(pre_extra)
        mf = (qk_mfmas(jn, par ^ 1) if qk else []) + pv_mfmas(jp, par ^ 1)
        nq = 8 if qk else 0
        if not qk: pre.append("s_nop 1")
        it = []
        Ladd = Item("v_add_f32 v%d, v%d, v%d" % (L_(jp), L_(jp), vS), lo=0, hi=6, pri=5)
        E = [Item("v_exp_f32 v%d, v%d" % (S + i, S + i), lo=0, pri=3) for i in range(8)]
        for i in range(1, 8): pass
        A01 = Item("v_add_f32 v%d, v%d, v%d" % (vT, S, S + 1), deps=[E[0], E[1]])
        A23 = Item("v_add_f32 v%d, v%d, v%d" % (vT2, S + 2, S + 3), deps=[E[2], E[3]])
        B_ = Item("v_add_f32 v%d, v%d, v%d" % (vT, vT, vT2), deps=[A01, A23])
        A45 = Item("v_add_f32 v%d, v%d, v%d" % (vT2, S + 4, S + 5), deps=[E[4], E[5], B_])
        C_ = Item("v_add_f32 v%d, v%d, v%d" % (vT, vT, vT2), deps=[A45])
        A67 = Item("v_add_f32 v%d, v%d, v%d" % (vT2, S + 6, S + 7), deps=[E[6], E[7], C_])
        D_ = Item("v_add_f32 v%d, v%d, v%d" % (vS, vT, vT2), deps=[A67, Ladd])
        CMP = Item("v_cmp_lt_f32 vcc, s%d, v%d" % (sTHR, vS), deps=[D_], hi=len(mf) - CMP_SLACK)
        CV = [Item("v_cvt_pk_bf16_f32 v%d, v%d, v%d" % (P + i, S + 2 * i, S + 2 * i + 1), deps=[E[2 * i], E[2 * i + 1]], hi=len(mf) - 2) for i in range(4)]
        if "nosm" in OPT: it = []
        else: it = [Ladd] + E + [A01, A23, B_, A45, C_, A67, D_, CMP] + CV
        if "nolds" not in OPT:
            if vlo is not None:
                for db in range(4): it.append(Item(v_reads(db, vlo), lo=nq + db, pri=4))
            if vhi is not None:
                for db in range(4, 8): it.append(Item(v_reads(db, vhi), lo=0, hi=nq + db - 7, pri=6))
            if kload is not None:
                for i, (kb, s) in enumerate(KORD[:6]): it.append(Item(k_read(kb, s, kload), lo=max(i, 5), hi=min(15, 9 + i), pri=4))
            if klate is not None:
                for i, (kb, s) in list(enumerate(KORD))[6:]: it.append(Item(k_read(kb, s, klate), lo=0, hi=0, pri=7))
        for x in extra: it.append(Item(x, lo=8))
        return schedule(mf, it, pre)

    def tile(last, first_of_all=False):
        L = []
        L += block(0, 0, (1, 2, True), vlo=0)
        L += block(0, 1, (0, 0, False), vhi=0, kload=1)
        L += block(0, 2, (0, 1, False), klate=1)
        L += block(1, 0, (0, 2, False), vlo=1)
        adv = ["s_add_u32 s%d, s%d, 1" % (sSLOT, sSLOT), "s_and_b32 s%d, s%d, 3" % (sSLOT, sSLOT), "s_cmp_eq_u32 s%d, 0" % sSLOT,
               "s_cselect_b32 s%d, s%d, %d" % (sDK, sNEG, PAIR), "v_add_u32 v%d, s%d, v%d" % (vKA, sDK, vKA)]
        L += block(1, 1, (1, 0, False), vhi=1, kload=(None if last else 0), barrier=True, pre_extra=adv)
        L += block(1, 2, (1, 1, True), qk=not last, klate=(None if last else 0),
                   extra=[["v_add_u32 v%d, s%d, v%d" % (vVA + cc, sDK, vVA + cc)] for cc in range(4)])
        return L
    steady = tile(False)
    del rare[:]
    steady2 = tile(False)
    nr = len(rare)
    lastt = tile(True)
    if "peel" not in OPT: del rare[nr:]
    if TAB is not None:
        body = hoist_waits(auto_lgkm(steady2, entry_lines=steady, age=TAB.get("age")))
        lastb = hoist_waits(auto_lgkm(lastt, entry_lines=steady, age=TAB.get("age")))
    else:
        body = auto_lgkm(steady2, entry_lines=steady)
        lastb = auto_lgkm(lastt, entry_lines=steady)
    if "w0" in OPT:
        import re
        body = [re.sub(r"lgkmcnt\(\d+\)", "lgkmcnt(0)", x) if x.startswith("s_waitcnt lgkmcnt") else x for x in body]
    print("   attention steady tile: model %d cycles (%d/unit), %d instrs" % (model_cycles(body), model_cycles(body) / 6, len(body)))
    loop = a.label("Ltile")
    _stamp(a, 6, "s_memtime")
    a("s_mov_b32 s%d, 0" % sCNT)
    a("%s:" % loop)
    for x in body: a(x)
    a("s_add_u32 s%d, s%d, 1" % (sCNT, sCNT)); a("s_cmp_lt_u32 s%d, %d" % (sCNT, 15 if "peel" in OPT else 16)); a("s_cbranch_scc1 %s" % loop)
    _stamp(a, 7, "s_memtime")
    if "peel" in OPT:
        for x in lastb: a(x)
    else: a("s_waitcnt lgkmcnt(0)")
    for x in rare_code(1, 2, True): a(x)
    a("v_add_f32 v%d, v%d, v%d" % (L_(2), L_(2), vS))
    a("s_nop 1")
    for m in pv_mfmas(2, 1): a(m)
    a("s_nop 7")
    stamp(a, 2, 12)
    for j in range(3):
        L = L_(j)
        a("v_mov_b32 v%d, v%d" % (vT, L)); a("s_nop 1"); a("v_permlane32_swap_b32 v%d, v%d" % (L, vT)); a("v_add_f32 v%d, v%d, v%d" % (L, L, vT))
        a("v_mov_b32 v%d, v%d" % (vT, L)); a("s_nop 1"); a("v_permlane16_swap_b32 v%d, v%d" % (L, vT)); a("v_add_f32 v%d, v%d, v%d" % (L, L, vT))
        a("v_rcp_f32 v%d, v%d" % (L, L))
    a("s_nop 1")
    def OA(s, j): return 96 + (s * 3 + j) * 4
    def OB(s, j): return 144 + (s * 3 + j) * 4
    for j in range(3):
        a("v_mov_b32 v%d, v%d" % (vT2, L_(j))); a("v_mov_b32 v%d, v%d" % (vT, L_(j)))
        for s in range(4):
            X, Y, D = O_(j, 2 * s), O_(j, 2 * s + 1), OA(s, j)
            for r in range(0, 4, 2):
                a("v_pk_mul_f32 %s, %s, %s" % (vr(X + r, 2), vr(X + r, 2), vr(vT, 2))); a("v_pk_mul_f32 %s, %s, %s" % (vr(Y + r, 2), vr(Y + r, 2), vr(vT, 2)))
            a("v_cvt_pk_bf16_f32 v%d, v%d, v%d" % (D + 0, X + 0, X + 1)); a("v_cvt_pk_bf16_f32 v%d, v%d, v%d" % (D + 1, X + 2, X + 3))
            a("v_cvt_pk_bf16_f32 v%d, v%d, v%d" % (D + 2, Y + 0, Y + 1)); a("v_cvt_pk_bf16_f32 v%d, v%d, v%d" % (D + 3, Y + 2, Y + 3))
    vA0, vA1 = 240, 241
    a("v_lshlrev_b32 v%d, 4, v%d" % (vT, vLANE))
    a("s_mul_i32 s%d, s%d, 12288" % (sT0, sWAVE)); a("s_add_u32 s%d, s%d, %d" % (sT0, sT0, EXCH)); a("v_add_u32 v%d, s%d, v%d" % (vA0, sT0, vT))
    a("s_xor_b32 s%d, s%d, 2" % (sT2, sWAVE)); a("s_mul_i32 s%d, s%d, 12288" % (sT0, sT2)); a("s_add_u32 s%d, s%d, %d" % (sT0, sT0, EXCH)); a("v_add_u32 v%d, s%d, v%d" % (vA1, sT0, vT))
    a("s_barrier")
    for i in range(12): a("ds_write_b128 v%d, %s offset:%d" % (vA0, vr(96 + 4 * i, 4), i * 1024))
    vAO, vST = 224, 228
    g, rp, c, t = 242, 243, 244, 245
    a("v_lshrrev_b32 v%d, 4, v%d" % (g, vLANE)); a("v_bfe_u32 v%d, v%d, 2, 2" % (rp, vLANE)); a("v_and_b32 v%d, 3, v%d" % (c, vLANE))
    a("v_lshlrev_b32 v%d, 2, v%d" % (t, g)); a("v_add_u32 v%d, v%d, v%d" % (t, t, rp))
    a("v_lshrrev_b32 v%d, 1, v%d" % (g, t)); a("v_and_b32 v%d, 3, v%d" % (g, g)); a("v_lshlrev_b32 v%d, 5, v%d" % (g, g))
    a("v_lshlrev_b32 v%d, 7, v%d" % (t, t)); a("v_add_u32 v%d, v%d, v%d" % (t, t, g)); a("v_lshlrev_b32 v%d, 3, v%d" % (c, c)); a("v_add_u32 v%d, v%d, v%d" % (t, t, c))
    a("s_lshl_b32 s%d, s%d, 6" % (sT0, sQI)); a("v_xor_b32 v%d, s%d, v%d" % (t, sT0, t))
    a("s_lshl_b32 s%d, s%d, 14" % (sT0, sQI)); a("s_xor_b32 s%d, s%d, 16384" % (sT1, sT0))
    a("v_add_u32 v%d, s%d, v%d" % (vAO + 0, sT0, t)); a("v_xor_b32 v%d, 32, v%d" % (vAO + 1, vAO + 0))
    a("v_add_u32 v%d, s%d, v%d" % (vAO + 2, sT1, t)); a("v_xor_b32 v%d, 32, v%d" % (vAO + 3, vAO + 2))
    a("s_mul_i32 s%d, s%d, 6144" % (sT0, sQI)); a("s_mul_i32 s%d, s%d, 3072" % (sT1, sRH)); a("s_add_u32 s%d, s%d, s%d" % (sT0, sT0, sT1))
    a("v_add_u32 v%d, s%d, v%d" % (vST, sT0, vT))
    a("s_waitcnt lgkmcnt(0)")
    a("s_barrier")
    for i in range(12): a("ds_read_b128 %s, v%d offset:%d" % (vr(144 + 4 * i, 4), vA1, i * 1024))
    stamp(a, 3, 13)
    assert PAIR % 256 == 0
    def AF(i): return 192 + 4 * (i % 8)
    def ACC(buf, z, j): return buf * 24 + (z * 3 + j) * 4
    def PK(buf, j): return 48 + buf * 12 + 4 * j
    def a_reads(G):
        c_, kk = divmod(G, 8)
        hs, s = (0, kk) if kk < 4 else (1, kk - 4)
        r = []
        for z in range(2):
            fr = AF(2 * G + z)
            r.append("ds_read_b64_tr_b16 %s, v%d offset:%d" % (vr(fr, 2), vAO + 2 * hs + z, s * 4096))
            r.append("ds_read_b64_tr_b16 %s, v%d offset:%d" % (vr(fr + 2, 2), vAO + 2 * hs + z, s * 4096 + 2048))
        return r
    LOOK = 3
    def slot_delta(c_from): return (-3 * PAIR if (16 + c_from + 1) % 4 == 0 else PAIR) & 0xffffffff
    for G in range(LOOK):
        for x in a_reads(G): a(x)
    vPW, vPWR = 229, 231
    a("v_lshlrev_b32 v%d, 4, v%d" % (vT, vLANE))
    a("s_mul_i32 s%d, s%d, 3072" % (sT0, sWAVE)); a("s_add_u32 s%d, s%d, %d" % (sT0, sT0, PB0)); a("v_add_u32 v%d, s%d, v%d" % (vPW, sT0, vT))
    a("s_mul_i32 s%d, s%d, %d" % (sT0, sWAVE, PAIR)); a("s_add_u32 s%d, s%d, 32768" % (sT0, sT0)); a("v_add_u32 v%d, s%d, v%d" % (vPWR, sT0, vT))
    a("v_add_u32 v%d, %d, v%d" % (vPW + 1, 156672, vT))
    sD, sDP, sSL = sDK, sNEG + 0, sSLOT
    sD, sDP = 56, 69
    a("s_mov_b32 s%d, 0" % sSLOT); a("s_mov_b32 s%d, 0" % sDP); a("s_mov_b32 s%d, 0x%x" % (sNEG, -3 * PAIR & 0xffffffff))
    def epilogue(buf):
        epi = []
        for j in range(3):
            d = PK(buf, j)
            for z in range(2):
                A_ = ACC(buf, z, j)
                epi.append("v_cvt_pk_bf16_f32 v%d, v%d, v%d" % (d + 2 * z, A_, A_ + 1)); epi.append("v_cvt_pk_bf16_f32 v%d, v%d, v%d" % (d + 2 * z + 1, A_ + 2, A_ + 3))
            epi.append("ds_write_b128 v%d, %s offset:%d" % (vPW + buf, vr(d, 4), j * 1024))
        return epi
    def o_step(buf, last):
        epi = epilogue(buf ^ 1)
        cvts = [x for x in epi if x.startswith("v_cvt")]; wrs = [x for x in epi if x.startswith("ds_write")]
        extra = {kk: {g: [] for g in range(6)} for kk in range(8)}
        if "ostep_old" in OPT:
            seq = epi; pos = [(1, 1), (1, 1), (1, 2), (1, 2), (1, 3), (1, 4), (1, 4), (1, 5), (2, 1), (2, 1), (2, 2), (2, 3), (2, 3), (2, 4), (2, 5)]
            for x, (kk, g) in zip(seq, pos): extra[kk][g].append(x)
        else:
            cpos = [(1, 0), (1, 1), (1, 2), (1, 3), (1, 4), (2, 0), (2, 1), (2, 2), (2, 3), (3, 0), (3, 1), (3, 2)]
            for x, (kk, g) in zip(cvts, cpos): extra[kk][g].append(x)
            for x, (kk, g) in zip(wrs, [(1, 5), (2, 5), (3, 4)]): extra[kk][g].append(x)
        for kk in range(8):
            G = kk
            hs, s = (0, kk) if kk < 4 else (1, kk - 4)
            rd = []; barrier = (kk == 5)
            if kk == 4 and not last:
                extra[4][4] += ["s_add_u32 s%d, s%d, 1" % (sSLOT, sSLOT), "s_and_b32 s%d, s%d, 3" % (sSLOT, sSLOT)]
                extra[4][5] += ["s_cmp_eq_u32 s%d, 0" % sSLOT, "s_cselect_b32 s%d, s%d, %d" % (sD, sNEG, PAIR)]
            pre = []
            if kk == 5 and not last:
                pre += ["v_add_u32 v%d, s%d, v%d" % (vAO + 0, sD, vAO + 0), "v_add_u32 v%d, s%d, v%d" % (vAO + 1, sD, vAO + 1)]
                extra[6][4].append("s_mov_b32 s%d, s%d" % (sDP, sD))
            if kk == 0:
                extra[0][4].append("v_add_u32 v%d, s%d, v%d" % (vAO + 2, sDP, vAO + 2)); extra[0][5].append("v_add_u32 v%d, s%d, v%d" % (vAO + 3, sDP, vAO + 3))
            if kk == 4 and buf == 0: extra[4][3].append("v_mov_b32 v%d, v%d" % (vPW + 1, vPWR))
            if not (last and kk + LOOK >= 8): rd = a_reads(G + LOOK)
            younger = 4 * (LOOK - 1) if not last else 4 * min(LOOK - 1, 7 - kk)
            if barrier: younger = min(younger, 4)
            a("s_waitcnt lgkmcnt(%d)" % younger)
            if barrier: a("s_barrier")
            for x in pre: a(x)
            mf = []
            for z in range(2):
                for j in range(3):
                    bsrc = OA(s, j) if hs == 0 else OB(s, j)
                    cc = "0" if kk == 0 else vr(ACC(buf, z, j), 4)
                    mf.append("%s %s, %s, %s, %s" % (MF, vr(ACC(buf, z, j), 4), vr(AF(2 * G + z), 4), vr(bsrc, 4), cc))
            fill = spread(rd, [0, 1, 2, 3]) if rd else {}
            fill = merge(fill, extra[kk])
            for x in interleave(mf, fill): a(x)
    lo = a.label("Lo")
    a("s_mov_b32 s%d, 0" % sCNT); a("%s:" % lo)
    o_step(0, False); o_step(1, False)
    a("s_add_u32 s%d, s%d, 1" % (sCNT, sCNT)); a("s_cmp_lt_u32 s%d, 4" % sCNT); a("s_cbranch_scc1 %s" % lo)
    o_step(0, True)
    a("s_nop 7")
    for x in epilogue(0): a(x)
    a("s_waitcnt lgkmcnt(0)")
    a("s_barrier")
    stamp(a, 4, 14)
    stamp(a, 5)
    stamp_flush(a)
    a("v_mov_b32 v1, v%d" % vLANE)
    a("s_mov_b32 s%d, s%d" % (sCNT, sWAVE))
    a("s_branch L_reduce")
    for r in rare: a(r)

def mk_srd(a, b, lo, hi, off, size):
    a("s_add_u32 s%d, s%d, s%d" % (b, lo, off)); a("s_addc_u32 s%d, s%d, 0" % (b + 1, hi)); a("s_mov_b32 s%d, %d" % (b + 2, size)); a("s_mov_b32 s%d, 0x20000" % (b + 3))

def gen_k1():
    a = Asm(); a.stamp_wave = 0; a.stamp_tmp = 252
    common_prologue(a, "L_k1_end", 256)
    a("s_and_b32 s%d, s2, 7" % sXCD); a("s_lshr_b32 s%d, s2, 3" % sIDX)
    a("s_and_b32 s%d, s%d, 1" % (sB, sXCD)); a("s_lshl_b32 s%d, s%d, 3" % (sB, sB)); a("s_and_b32 s%d, s%d, 7" % (sT2, sIDX)); a("s_add_u32 s%d, s%d, s%d" % (sB, sB, sT2))
    a("s_lshr_b32 s%d, s%d, 1" % (sH, sXCD)); a("s_lshl_b32 s%d, s%d, 2" % (sH, sH)); a("s_lshr_b32 s%d, s%d, 3" % (sT2, sIDX)); a("s_add_u32 s%d, s%d, s%d" % (sH, sH, sT2))
    a("s_lshl_b32 s%d, s%d, 4" % (sT0, sB)); a("s_add_u32 s%d, s%d, s%d" % (sT0, sT0, sH))
    a("s_lshl_b32 s%d, s%d, 18" % (sT1, sT0))
    mk_srd(a, sK, 6, 7, sT1, 262144); mk_srd(a, sV, 8, 9, sT1, 262144)
    a("s_mul_i32 s%d, s%d, 110592" % (sT1, sB)); mk_srd(a, sX, 4, 5, sT1, 110592)
    a("s_lshl_b32 s%d, s%d, 9" % (sT1, sH)); mk_srd(a, sWQ, 10, 11, sT1, 0); a("s_sub_u32 s%d, 4718592, s%d" % (sWQ + 2, sT1))
    a("s_mul_i32 s%d, s%d, 294912" % (sT1, sH)); mk_srd(a, sWO, 12, 13, sT1, 294912)
    a("s_mul_i32 s%d, s%d, %d" % (sT1, sT0, PART)); a("s_add_u32 s%d, s%d, %d" % (sT1, sT1, WS_PART)); mk_srd(a, sP, 18, 19, sT1, PART)
    a("s_lshr_b32 s%d, s%d, 2" % (sT1, sH)); a("s_lshl_b32 s%d, s%d, 11" % (sT1, sT1)); mk_srd(a, sPF, 10, 11, sT1, 0); a("s_sub_u32 s%d, 4718592, s%d" % (sPF + 2, sT1))
    a("s_lshr_b32 s%d, s%d, 3" % (sT1, sB)); a("s_mul_i32 s%d, s%d, %d" % (sT1, sT1, 8 * 110592)); mk_srd(a, sPF2, 4, 5, sT1, 8 * 110592)
    a("s_mov_b32 s%d, s12" % sWOP); a("s_mov_b32 s%d, s13" % (sWOP + 1))
    a("s_mul_i32 s%d, s%d, 110592" % (sT1, sB)); mk_srd(a, sOUT, 14, 15, sT1, 110592)
    a("s_mul_i32 s%d, s%d, %d" % (sT1, sB, 16 * PART)); a("s_add_u32 s%d, s%d, %d" % (sT1, sT1, WS_PART)); mk_srd(a, sPB, 18, 19, sT1, 16 * PART)
    a("s_mul_i32 s%d, s%d, %d" % (sT1, sB, 9 * 128)); a("s_add_u32 s%d, s%d, %d" % (sT1, sT1, WS_FLAG)); mk_srd(a, sFL, 18, 19, sT1, 9 * 128)
    if STAMP:
        a("s_lshl_b32 s%d, s2, 9" % sT1); a("s_add_u32 s%d, s18, s%d" % (sSTAMP, sT1)); a("s_addc_u32 s%d, s19, 0" % (sSTAMP + 1))
    if "allc" in OPT: a("s_and_b32 s%d, s%d, 3" % (sWAVE, sWAVE))
    a("s_cmp_ge_u32 s%d, 4" % sWAVE); a("s_cbranch_scc1 L_loader")
    gen_compute(a)
    a("L_loader:")
    a.stamp_wave = 4; a.stamp_tmp = 40
    gen_loader(a)
    gen_reducer(a)
    a("L_k1_end:")
    a("s_endpgm")
    return a.text()

def build(fn, stamp=False, opt=()):
    global STAMP, OPT
    STAMP = stamp; OPT = set(opt)
    k1 = gen_k1()
    errs = hazard.check(k1, "k1")
    for e in errs[:10]: print(e)
    if errs: print("k1: %d hazard warnings" % len(errs))
    txt = HEADER + "; @launch grid=(256,1,1) block=(512,1,1) lds=%d\n" % LDS_BYTES
    txt += '.amdgcn_target "amdgcn-amd-amdhsa--gfx950"\n.text\n' + kernel_begin(KNAME) + k1 + '\n.section .rodata,"a"\n.p2align 6\n' + kernel_desc(KNAME, 256, 102, 256)
    open(fn, "w").write(txt)
    print(fn, len(txt), "bytes,", txt.count("\n"), "lines")

if __name__ == "__main__":
    def pieces(start, per):
        d = {}; st = start
        for kind in "KV":
            for lo in range(0, 8, per):
                d.setdefault(st, []).append((kind, 0, lo, lo + per)); st += 1
        return d
    def mk(start, per, i1at):
        d = pieces(start, per)
        d.setdefault(i1at, []).extend([("K", 1), ("V", 1)])
        d.setdefault(19, []).extend([("K", 2), ("V", 2)])
        return d
    PF0 = 0
    O = ["rotq", "nopfq", "notlb"]
    KSCHED = mk(12, 4, 18)
    TAB = None
    build("v7.s", False, O + ["dot2"]); build("v7_st.s", True, O + ["dot2"])
    D = O + ["dot2", "split0"]
    build("v7.s", False, D); build("v7_st.s", True, D)
```

```python
import sys, struct
from asmlib import *
import hazard
from sched import Item, schedule, auto_lgkm, model_cycles

def f32(x): return "0x%08x" % struct.unpack("<I", struct.pack("<f", x))[0]
C_SCALE = 1.4426950408889634 / (128 ** 0.5)

PAIR = 35840
KGRP, VGRP = 1088, 1152
VOFF = 16 * KGRP
WBASE = 2 * PAIR
XBASE = WBASE + 4 * 16384
XSLOT = 12288
EXCH = 3 * PAIR
LDS_BYTES = 163840
PART = 108 * 1024
WS_PART = 1 << 20
WS_FLAG = 1 << 19
KNAME = 'standalone__gqa_block_cached__near_ridge_kernel'
OPT = set()
STAMP = False

sK, sV, sX, sWQ, sWO, sP = 20, 24, 28, 32, 36, 40
sWAVE, sB, sH, sLW = 44, 45, 46, 47
sT0, sT1, sT2, sT3 = 48, 49, 50, 51
sLWK, sLW3072, sLWV, sLW4096 = 52, 53, 59, 66
sTHR, sCNT, sDK, sNEG, sSLOT = 54, 55, 56, 57, 58
sSTAMP = 60
sTM = 62
sQI, sRH = 64, 65
sXCD, sIDX = 67, 68
sPF = 72
sPF2 = 76
sFL = 8
sPB = 4
sOUT = 12
def srd(b): return "s[%d:%d]" % (b, b + 3)
def vr(b, n=1): return "v%d" % b if n == 1 else "v[%d:%d]" % (b, b + n - 1)

def _stamp(a, idx, instr):
    if not STAMP: return
    a("%s s[%d:%d]" % (instr, sTM, sTM + 1)); a("s_waitcnt lgkmcnt(0)")
    if a.stamp_wave == 0: a("s_mov_b32 s%d, s%d" % (80 + idx, sTM))
    else: a("v_writelane_b32 v40, s%d, %d" % (sTM, idx))
def stamp(a, idx, cyc=None):
    _stamp(a, idx, "s_memrealtime")
    if cyc is not None: _stamp(a, cyc, "s_memtime")
DBG_WG = 37
def stamp_flush(a):
    if not STAMP: return
    if "dbg" in OPT:
        sk = a.label("Ldbgs")
        a("s_cmp_lg_u32 s2, %d" % DBG_WG); a("s_cbranch_scc1 %s" % sk)
        a("s_cmp_lg_u32 s%d, %d" % (sWAVE, a.stamp_wave)); a("s_cbranch_scc1 %s" % sk)
        a("v_mov_b32 v1, 0")
        if a.stamp_wave == 0:
            for dw, (j, j0) in zip((1, 2, 3, 5, 6, 7, 9, 10, 11), ((1, 0), (2, 0), (3, 0), (4, 0), (11, 10), (12, 11), (13, 12), (14, 13), (7, 6))):
                a("s_sub_u32 s%d, s%d, s%d" % (sT0, 80 + j, 80 + j0)); a("v_mov_b32 v2, s%d" % sT0); a("global_store_dword v1, v2, s[16:17] offset:%d" % (4 * dw))
        else:
            a("v_readlane_b32 s%d, v40, 15" % sT0); a("v_readlane_b32 s%d, v40, 16" % sT1); a("s_nop 3"); a("s_sub_u32 s%d, s%d, s%d" % (sT0, sT0, sT1)); a("v_mov_b32 v2, s%d" % sT0)
            a("global_store_dword v1, v2, s[16:17] offset:52")
            a("v_readlane_b32 s%d, v40, 36" % sT0); a("s_nop 3"); a("s_sub_u32 s%d, s%d, s%d" % (sT0, sT0, sT1)); a("v_mov_b32 v2, s%d" % sT0)
            a("global_store_dword v1, v2, s[16:17] offset:56")
        a("%s:" % sk)
        return
    sk = a.label("Lst")
    a("s_cmp_lg_u32 s%d, %d" % (sWAVE, a.stamp_wave)); a("s_cbranch_scc1 %s" % sk)
    if a.stamp_wave == 0:
        a("v_mov_b32 v1, 0")
        for i in range(16):
            if i in (8, 9, 15): continue
            a("v_mov_b32 v2, s%d" % (80 + i)); a("global_store_dword v1, v2, s[%d:%d] offset:%d" % (sSTAMP, sSTAMP + 1, 4 * i))
    else:
        a("v_and_b32 v2, 63, v0"); a("v_lshlrev_b32 v3, 2, v2")
        a("v_cmp_lt_u32 vcc, 14, v2"); a("v_cmp_eq_u32 s[96:97], 8, v2"); a("s_or_b64 vcc, vcc, s[96:97]"); a("v_cmp_eq_u32 s[96:97], 9, v2"); a("s_or_b64 vcc, vcc, s[96:97]")
        a("s_and_saveexec_b64 s[96:97], vcc")
        a("global_store_dword v3, v40, s[%d:%d]" % (sSTAMP, sSTAMP + 1))
        a("s_mov_b64 exec, s[96:97]")
    a("%s:" % sk)

def common_prologue(a, endlab, nwg):
    if STAMP: a("s_memrealtime s[78:79]")
    a("s_cmp_ge_u32 s2, %d" % nwg); a("s_cbranch_scc1 %s" % endlab)
    a("s_load_dwordx8 s[4:11], s[0:1], 0")
    a("s_load_dwordx4 s[12:15], s[0:1], 32")
    a("s_load_dwordx4 s[16:19], s[0:1], 48")
    a("v_lshrrev_b32 v1, 6, v0")
    a("s_nop 0")
    a("v_readfirstlane_b32 s%d, v1" % sWAVE)
    a("s_waitcnt lgkmcnt(0)")

class VQ:
    def __init__(s): s.q = []
    def issue(s, tag, n=1): s.q += [tag] * n
    def wait(s, tags):
        idx = [i for i, t in enumerate(s.q) if t in tags]
        if not idx: return None
        last = max(idx); n = len(s.q) - 1 - last
        s.q = s.q[last + 1:]
        return min(n, 63)

KV_FLAGS = " nt"
W_FLAGS = ""
O_FLAGS = ""
P_FLAGS = " sc0 sc1"


def gen_loader(a):
    a("s_sub_u32 s%d, s%d, 4" % (sLW, sWAVE))
    a("v_and_b32 v1, 63, v0")
    if STAMP: a("v_mov_b32 v40, 0")
    a("s_cmp_ge_u32 s%d, 2" % sLW); a("s_cbranch_scc1 L_kvloader")
    gen_wloader(a)
    a("L_kvloader:")
    gen_kvloader(a)

def mk_bar(a, q, trace_base=None):
    def bar(tags):
        n = q.wait(tags) if tags else None
        if n is not None and "nowait" not in OPT: a("s_waitcnt vmcnt(%d)" % n)
        if "trace" in OPT and bar.n < 48 and trace_base is not None: stamp(a, 16 + bar.n)
        a("s_barrier")
        bar.n += 1
    bar.n = 0
    return bar

def dma(a, vreg, srdb, soff, imm, flags):
    if "noload" in OPT: return
    a("buffer_load_dwordx4 v%d, %s, s%d offen offset:%d%s lds" % (vreg, srd(srdb), soff, imm, flags))

def emit_pf(a, chunks, lane=1):
    if not chunks: return
    sk = a.label("Lpfq"); skx = a.label("Lpfx")
    a("s_cmp_ge_u32 s%d, 28" % sIDX); a("s_cbranch_scc1 %s" % sk)
    a("s_cmp_ge_u32 s%d, 16" % sIDX); a("s_cbranch_scc1 %s" % skx)
    a("v_lshrrev_b32 v30, 4, v%d" % lane); a("v_and_b32 v31, 15, v%d" % lane)
    a("s_lshl_b32 s%d, s%d, 2" % (sT0, sIDX)); a("v_add_u32 v30, s%d, v30" % sT0); a("v_lshlrev_b32 v30, 13, v30"); a("v_lshlrev_b32 v31, 7, v31"); a("v_add_u32 v30, v30, v31")
    for cp in chunks:
        if isinstance(cp, int): a("s_mov_b32 s%d, %d" % (sT0, cp * 64 * 8192))
        else: a("s_lshl_b32 s%d, s%d, 19" % (sT0, cp[0])); a("s_add_u32 s%d, s%d, %d" % (sT0, sT0, cp[1] * 64 * 8192))
        a("buffer_load_dword v32, v30, %s, s%d offen" % (srd(sPF), sT0))
    a("s_branch %s" % sk)
    a("%s:" % skx)
    a("s_sub_u32 s%d, s%d, 16" % (sT0, sIDX)); a("s_lshl_b32 s%d, s%d, 6" % (sT0, sT0)); a("v_add_u32 v30, s%d, v%d" % (sT0, lane)); a("v_mul_u32_u24 v30, 1152, v30")
    for cp in chunks:
        if isinstance(cp, int): a("s_mov_b32 s%d, %d" % (sT0, cp * 128))
        else: a("s_lshl_b32 s%d, s%d, 7" % (sT0, cp[0])); a("s_add_u32 s%d, s%d, %d" % (sT0, sT0, cp[1] * 128))
        a("buffer_load_dword v32, v30, %s, s%d offen" % (srd(sPF2), sT0))
    a("%s:" % sk)

def code_prefetch(a, lane=1):
    if "nocpf" in OPT: return
    lab = a.label("Lcpf")
    a("s_getpc_b64 s[94:95]")
    a("%s:" % lab)
    a("s_sub_u32 s94, s94, (%s - %s)" % (lab, KNAME)); a("s_subb_u32 s95, s95, 0")
    a("s_lshl_b32 s%d, s%d, 11" % (sT0, sIDX))
    a("v_and_b32 v34, 15, v%d" % lane); a("v_lshlrev_b32 v34, 7, v34"); a("v_add_u32 v34, s%d, v34" % sT0)
    a("v_min_u32 v34, (L_k1_end - %s), v34" % KNAME)
    a("global_load_dword v35, v34, s[94:95]")

def attn_kv4(a, is_w, iss_O=None, cpf=None):
    vK4, vV4 = 18, 19
    sL4, sMK, sMV, sTK, sKS = 86, 88, 89, 87, 90
    a("s_sub_u32 s%d, s%d, 4" % (sL4, sWAVE))
    a("v_lshrrev_b32 v2, 4, v1"); a("v_and_b32 v3, 15, v1")
    a("s_lshl_b32 s%d, s%d, 12" % (sT0, sL4)); a("v_lshlrev_b32 v4, 8, v2"); a("v_add_u32 v4, s%d, v4" % sT0)
    a("v_xor_b32 v5, v2, v3"); a("v_lshlrev_b32 v5, 4, v5"); a("v_add_u32 v%d, v4, v5" % vK4)
    a("v_lshlrev_b32 v5, 1, v2"); a("v_xor_b32 v5, v5, v3"); a("v_lshlrev_b32 v5, 4, v5"); a("v_add_u32 v%d, v4, v5" % vV4)
    a("s_mul_i32 s%d, s%d, %d" % (sMK, sL4, 4 * KGRP)); a("s_mul_i32 s%d, s%d, %d" % (sMV, sL4, 4 * VGRP)); a("s_add_u32 s%d, s%d, %d" % (sMV, sMV, VOFF))
    a("s_mov_b32 s%d, %d" % (sTK, 3 * 16384)); a("s_mov_b32 s%d, %d" % (sKS, 3 * PAIR))
    def w(n):
        if "nowait" not in OPT: a("s_waitcnt vmcnt(%d)" % n)
    def item():
        a("s_add_u32 s%d, s%d, s%d" % (sT1, sMK, sKS)); a("s_add_u32 s%d, s%d, s%d" % (sT2, sMV, sKS))
        for isK in (True, False):
            grp = KGRP if isK else VGRP
            for ii in range(4):
                a("s_add_u32 m0, s%d, %d" % (sT1 if isK else sT2, ii * (grp - 1024))); a("s_nop 0")
                dma(a, vK4 if isK else vV4, sK if isK else sV, sTK, ii * 1024, KV_FLAGS)
        a("s_add_u32 s%d, s%d, 16384" % (sTK, sTK))
        a("s_add_u32 s%d, s%d, %d" % (sKS, sKS, PAIR)); a("s_cmp_eq_u32 s%d, %d" % (sKS, 4 * PAIR)); a("s_cselect_b32 s%d, 0, s%d" % (sKS, sKS))
    if not is_w: w(16)
    a("s_barrier")
    item()
    lab = a.label("Lkv4"); a("s_mov_b32 s%d, 2" % sCNT); a("%s:" % lab)
    w(8)
    a("s_barrier")
    item()
    if is_w:
        sk = a.label("Lc4"); a("s_cmp_lg_u32 s%d, %d" % (sCNT, CPF_AT)); a("s_cbranch_scc1 %s" % sk); cpf(); a("%s:" % sk)
    a("s_add_u32 s%d, s%d, 1" % (sCNT, sCNT)); a("s_cmp_lt_u32 s%d, 14" % sCNT); a("s_cbranch_scc1 %s" % lab)
    w(8); a("s_barrier")
    if is_w: iss_O()
    w(16 if is_w else 0); a("s_barrier")
    if is_w: iss_O()
    if is_w: w(16)
    a("s_barrier")
    if is_w: iss_O()

def gen_wloader(a):
    vW, vX, vO = 10, 14, 16
    a.stamp_wave = 4
    sA, sBb = sLWK, sLWV
    a("v_lshrrev_b32 v6, 5, v1"); a("v_and_b32 v7, 31, v1")
    a("s_lshl_b32 s%d, s%d, 17" % (sT1, sLW))
    a("v_lshlrev_b32 v8, 13, v6"); a("v_add_u32 v8, s%d, v8" % sT1)
    for var in range(4):
        a("v_add_u32 v5, %d, v6" % (2 * (var & 1) + 4 * (var >> 1))); a("v_lshlrev_b32 v5, 1, v5"); a("v_xor_b32 v5, v5, v7")
        a("v_lshlrev_b32 v5, 4, v5"); a("v_add_u32 v%d, v8, v5" % (vW + var))
    a("v_lshrrev_b32 v6, 3, v1"); a("v_and_b32 v7, 7, v1")
    a("s_mul_i32 s%d, s%d, 48" % (sT1, sLW)); a("v_add_u32 v8, s%d, v6" % sT1); a("v_mul_u32_u24 v8, 1152, v8")
    a("v_lshrrev_b32 v9, 1, v6")
    for i in range(2):
        a("v_add_u32 v5, %d, v9" % (4 * i)); a("v_xor_b32 v5, v5, v7"); a("v_lshlrev_b32 v5, 4, v5"); a("v_add_u32 v%d, v8, v5" % (vX + i))
    a("v_mul_u32_u24 v8, 1152, v6")
    a("v_and_b32 v5, 3, v9"); a("v_lshlrev_b32 v5, 1, v5"); a("v_xor_b32 v5, v5, v7"); a("v_lshlrev_b32 v5, 4, v5"); a("v_add_u32 v%d, v8, v5" % vO)
    a("s_lshl_b32 s%d, s%d, 13" % (sA, sLW))
    a("s_mul_i32 s%d, s%d, 6144" % (sBb, sLW))
    a("s_lshl_b32 s%d, s%d, 14" % (sLW4096, sLW))
    a("s_mul_i32 s%d, s%d, %d" % (sLW3072, sLW, 128 * 1152))
    sWK, sXK, sOK = 98, 99, 100
    sWS, sXS, sOS = 93, 92, 91
    A_, SI, B_, SJ = ROTQ
    a("s_and_b32 s%d, s%d, 7" % (sT0, sIDX)); a("s_lshr_b32 s%d, s%d, %d" % (sT0, sT0, SI)); a("s_mul_i32 s%d, s%d, %d" % (sT0, sT0, A_))
    a("s_lshr_b32 s%d, s%d, %d" % (sT1, sIDX, 3 + SJ)); a("s_mul_i32 s%d, s%d, %d" % (sT1, sT1, B_)); a("s_add_u32 s%d, s%d, s%d" % (sT0, sT0, sT1))
    for _ in range(2): a("s_cmp_ge_u32 s%d, 9" % sT0); a("s_cselect_b32 s%d, 9, 0" % sT1); a("s_sub_u32 s%d, s%d, s%d" % (sT0, sT0, sT1))
    a("s_lshl_b32 s%d, s%d, 19" % (sWK, sT0)); a("s_lshl_b32 s%d, s%d, 7" % (sXK, sT0))
    a("s_and_b32 s%d, s%d, 7" % (sT0, sB)); a("s_lshl_b32 s%d, s%d, 7" % (sOK, sT0))
    a("s_mov_b32 s%d, %d" % (sWS, 2 * 16384)); a("s_mov_b32 s%d, 0" % sXS); a("s_mov_b32 s%d, 0" % sOS)
    a("s_add_u32 s%d, s%d, %d" % (sA, sA, WBASE)); a("s_add_u32 s%d, s%d, %d" % (sBb, sBb, XBASE))
    def adv(reg, step, wrap):
        a("s_add_u32 s%d, s%d, %d" % (reg, reg, step)); a("s_cmp_eq_u32 s%d, %d" % (reg, wrap)); a("s_cselect_b32 s%d, 0, s%d" % (reg, reg))
    def iss_W():
        a("s_add_u32 m0, s%d, s%d" % (sA, sWS))
        for ii in range(8):
            if ii == 4: a("s_add_u32 m0, m0, 4096")
            a("s_add_u32 s%d, s%d, %d" % (sT0, sWK, 16384 * ii - (ii & 3) * 1024))
            dma(a, vW + (ii & 1) + 2 * (ii >> 2), sWQ, sT0, (ii & 3) * 1024, W_FLAGS)
        adv(sWK, 262144, 18 * 262144); adv(sWS, 16384, 65536)
    def iss_X():
        a("s_add_u32 m0, s%d, s%d" % (sBb, sXS))
        for ii in range(6):
            if ii == 4: a("s_add_u32 m0, m0, 4096")
            a("s_add_u32 s%d, s%d, %d" % (sT0, sXK, 9216 * ii - (ii & 3) * 1024))
            dma(a, vX + (ii & 1), sX, sT0, (ii & 3) * 1024, W_FLAGS)
        adv(sXK, 128, 9 * 128); a("s_xor_b32 s%d, s%d, %d" % (sXS, sXS, XSLOT))
    def iss_O():
        a("s_add_u32 s%d, s%d, s%d" % (sT1, sLW3072, sOK))
        a("s_add_u32 m0, s%d, s%d" % (sLW4096, sOS))
        for ii in range(16):
            if ii % 4 == 0 and ii: a("s_add_u32 m0, m0, 4096")
            a("s_add_u32 s%d, s%d, %d" % (sT0, sT1, 9216 * ii - (ii & 3) * 1024))
            dma(a, vO, sWO, sT0, (ii & 3) * 1024, O_FLAGS)
        adv(sOK, 128, 9 * 128); adv(sOS, PAIR, 4 * PAIR)
    tr = [16]
    def bar(w=None):
        if w is not None and "nowait" not in OPT: a("s_waitcnt vmcnt(%d)" % w)
        a("s_barrier")
    def loop(n, body, name):
        lab = a.label(name)
        a("s_mov_b32 s%d, 0" % sCNT); a("%s:" % lab)
        body()
        a("s_add_u32 s%d, s%d, 1" % (sCNT, sCNT)); a("s_cmp_lt_u32 s%d, %d" % (sCNT, n)); a("s_cbranch_scc1 %s" % lab)
    if "look2" not in OPT:
        if "split0" in OPT:
            li = a.label("Lwi"); sk0 = a.label("Lwi0")
            a("s_mov_b32 s%d, 0" % sCNT); a("%s:" % li)
            iss_X(); iss_W(); iss_W()
            a("s_cmp_lg_u32 s%d, 0" % sCNT); a("s_cbranch_scc1 %s" % sk0)
            bar(8)
            a("s_mov_b32 s%d, 1" % sCNT); a("s_branch %s" % li)
            a("%s:" % sk0)
        else:
            loop(2, lambda: (iss_X(), iss_W(), iss_W()), "Lwi")
            bar(30)
        bar(22)
        iss_W()
        def qbody():
            bar(16)
            iss_X(); iss_W()
            bar(22)
            sk = a.label("Lwl"); a("s_cmp_eq_u32 s%d, 6" % sCNT); a("s_cbranch_scc1 %s" % sk)
            iss_W()
            a("%s:" % sk)
        loop(7, qbody, "Lwq")
        bar(8)
        bar(0)
    else:
        if STAMP: stamp(a, 17)
        iss_X(); iss_W(); iss_W()
        if STAMP: stamp(a, 18)
        def qbody():
            bar(8)
            iss_X(); iss_W()
            bar(14)
            iss_W()
        loop(8, qbody, "Lwq")
        bar(8)
        bar(0)
    bar(None); bar(None)
    stamp(a, 8)
    def cpf():
        sk = a.label("Lcp"); a("s_cmp_lg_u32 s%d, 1" % sLW); a("s_cbranch_scc1 %s" % sk); code_prefetch(a); a("%s:" % sk)
    if "kv4" in OPT: attn_kv4(a, True, iss_O, cpf)
    else:
        loop(CPF_AT, lambda: bar(None), "Lwa")
        cpf()
        loop(13 - CPF_AT, lambda: bar(None), "Lwb")
        loop(2, lambda: (bar(None), iss_O()), "Lwo")
        bar(16)
        iss_O()
    a("s_barrier"); a("s_barrier")
    loop(6, lambda: (bar(16), iss_O()), "Lwp")
    bar(0)
    a("s_barrier"); a("s_barrier"); a("s_barrier")
    stamp(a, 9)
    a("s_add_u32 s%d, s%d, 4" % (sCNT, sLW))
    a("s_branch L_reduce")

def gen_kvloader(a):
    vK, vV = 10, 11
    a.stamp_wave = -1
    a("s_sub_u32 s%d, s%d, 2" % (sLW, sLW))
    a("v_lshrrev_b32 v2, 4, v1"); a("v_and_b32 v3, 15, v1")
    a("s_lshl_b32 s%d, s%d, 13" % (sT0, sLW))
    a("v_lshlrev_b32 v4, 8, v2"); a("v_add_u32 v4, s%d, v4" % sT0)
    a("v_xor_b32 v5, v2, v3"); a("v_lshlrev_b32 v5, 4, v5"); a("v_add_u32 v%d, v4, v5" % vK)
    a("v_lshlrev_b32 v5, 1, v2"); a("v_xor_b32 v5, v5, v3"); a("v_lshlrev_b32 v5, 4, v5"); a("v_add_u32 v%d, v4, v5" % vV)
    a("s_mul_i32 s%d, s%d, %d" % (sLWK, sLW, 8 * KGRP)); a("s_mul_i32 s%d, s%d, %d" % (sLWV, sLW, 8 * VGRP))
    sROT = 92
    if "krot" in OPT:
        a("s_mul_i32 s%d, s%d, %d" % (sROT, sXCD, KROT[0])); a("s_mul_i32 s%d, s%d, %d" % (sT0, sIDX, KROT[1])); a("s_add_u32 s%d, s%d, s%d" % (sROT, sROT, sT0))
    q = VQ(); bar = mk_bar(a, q, None)
    def iss(T, isK, lo=0, hi=8):
        for ii in range(lo, hi):
            if "krot" in OPT:
                if ii == lo: a("s_add_u32 s%d, s%d, %d" % (sT2, sROT, T)); a("s_and_b32 s%d, s%d, 15" % (sT2, sT2)); a("s_lshl_b32 s%d, s%d, 14" % (sT2, sT2))
                if ii % 4 == 0 or ii == lo: a("s_add_u32 s%d, s%d, %d" % (sT0, sT2, (ii >> 2) * 4096))
            elif ii % 4 == 0 or ii == lo: a("s_mov_b32 s%d, %d" % (sT0, T * 16384 + (ii >> 2) * 4096))
            grp = KGRP if isK else VGRP
            a("s_add_u32 m0, s%d, %d" % (sLWK if isK else sLWV, (T % 4) * PAIR + (0 if isK else VOFF) + ii * grp - (ii & 3) * 1024))
            if ii % 4: a("s_nop 0")
            else: a("s_nop 0")
            dma(a, vK if isK else vV, sK if isK else sV, sT0, (ii & 3) * 1024, KV_FLAGS)
        q.issue("I%d" % T, hi - lo)
    def prefetch_q():
        sk = a.label("Lpfq"); skx = a.label("Lpfx")
        a("s_cmp_lg_u32 s%d, %d" % (sLW, PF_WAVE)); a("s_cbranch_scc1 %s" % sk)
        a("s_cmp_ge_u32 s%d, 28" % sIDX); a("s_cbranch_scc1 %s" % sk)
        a("s_cmp_ge_u32 s%d, 16" % sIDX); a("s_cbranch_scc1 %s" % skx)
        a("s_lshl_b32 s%d, s%d, 2" % (sT0, sIDX)); a("v_add_u32 v5, s%d, v2" % sT0); a("v_lshlrev_b32 v5, 13, v5"); a("v_lshlrev_b32 v6, 7, v3"); a("v_add_u32 v5, v5, v6")
        for cp in range(PF_FIRST, 9):
            a("s_mov_b32 s%d, %d" % (sT0, cp * 64 * 8192)); a("buffer_load_dword v%d, v5, %s, s%d offen" % (20 + cp, srd(sPF), sT0))
        a("s_branch %s" % sk)
        a("%s:" % skx)
        a("s_sub_u32 s%d, s%d, 16" % (sT0, sIDX)); a("s_lshl_b32 s%d, s%d, 6" % (sT0, sT0)); a("v_add_u32 v5, s%d, v1" % sT0); a("v_mul_u32_u24 v5, 1152, v5")
        for cp in range(PF_FIRST, 9):
            a("s_mov_b32 s%d, %d" % (sT0, cp * 128)); a("buffer_load_dword v%d, v5, %s, s%d offen" % (20 + cp, srd(sPF2), sT0))
        a("%s:" % sk)
    def clear_flags():
        sk = a.label("Lclr")
        a("s_cmp_lg_u32 s%d, 1" % sLW); a("s_cbranch_scc1 %s" % sk)
        a("v_mov_b32 v20, 0"); a("v_mov_b32 v21, 0")
        a("s_lshl_b32 s%d, s%d, 3" % (sT0, sH))
        a("v_lshlrev_b32 v5, 7, v1"); a("v_add_u32 v5, s%d, v5" % sT0); a("v_mov_b32 v7, 0x40000000"); a("v_cmp_gt_u32 vcc, 9, v1"); a("s_nop 1"); a("v_cndmask_b32 v5, v7, v5, vcc")
        a("buffer_store_dwordx2 v[20:21], v5, %s, 0 offen sc0 sc1" % srd(sFL))
        a("s_waitcnt vmcnt(0)")
        a("s_lshl_b32 s%d, s%d, 4" % (sT0, sB)); a("v_mov_b32 v5, s%d" % sT0); a("v_mov_b32 v6, 1")
        a("s_mov_b64 s[96:97], exec"); a("s_mov_b64 exec, 1")
        a("global_atomic_add v5, v6, s[16:17] sc1")
        a("s_mov_b64 exec, s[96:97]")
        a("%s:" % sk)
    if "cpf0" in OPT:
        sk = a.label("Lcp0"); a("s_cmp_lg_u32 s%d, 1" % sLW); a("s_cbranch_scc1 %s" % sk); code_prefetch(a); a("%s:" % sk)
    if "notlb" not in OPT:
        sk = a.label("Ltlb")
        a("s_cmp_lg_u32 s%d, 0" % sLW); a("s_cbranch_scc1 %s" % sk)
        a("v_mov_b32 v5, 0")
        for i, sr in enumerate((sK, sV, sWO, sP, sOUT)): a("buffer_load_dword v%d, v5, %s, 0 offen nt" % (33 + i, srd(sr)))
        a("v_mul_u32_u24 v5, %d, v1" % (PART // 8)); a("v_lshlrev_b32 v5, 3, v5"); a("v_mov_b32 v7, 0x40000000"); a("v_cmp_gt_u32 vcc, 16, v1"); a("s_nop 1"); a("v_cndmask_b32 v5, v7, v5, vcc")
        a("buffer_load_dword v38, v5, %s, 0 offen nt" % srd(sPB))
        a("%s:" % sk)
    clear_flags()
    if "nopfq" not in OPT and PF_AT < 0: prefetch_q()
    for s in range(18):
        bar(None)
        if "nopfq" not in OPT and PF_AT == s: prefetch_q()
        for e in KSCHED.get(s, []): iss(e[1], e[0] == "K", *e[2:])
    bar(None)
    for e in KSCHED.get(18, []): iss(e[1], e[0] == "K", *e[2:])
    bar(["I0"])
    for e in KSCHED.get(19, []): iss(e[1], e[0] == "K", *e[2:])
    if "kv4" in OPT:
        assert FIRST_RULE == 1
        attn_kv4(a, False)
    else:
        sTK, sKS = 93, 91
        def item_dyn():
            a("s_add_u32 s%d, s%d, s%d" % (sT1, sLWK, sKS)); a("s_add_u32 s%d, s%d, s%d" % (sT2, sLWV, sKS))
            for isK in (True, False):
                for ii in range(8):
                    if ii % 4 == 0: a("s_add_u32 s%d, s%d, %d" % (sT0, sTK, (ii >> 2) * 4096))
                    grp = KGRP if isK else VGRP
                    a("s_add_u32 m0, s%d, %d" % (sT1 if isK else sT2, (0 if isK else VOFF) + ii * grp - (ii & 3) * 1024)); a("s_nop 0")
                    dma(a, vK if isK else vV, sK if isK else sV, sT0, (ii & 3) * 1024, KV_FLAGS)
            a("s_add_u32 s%d, s%d, 16384" % (sTK, sTK))
            a("s_add_u32 s%d, s%d, %d" % (sKS, sKS, PAIR)); a("s_cmp_eq_u32 s%d, %d" % (sKS, 4 * PAIR)); a("s_cselect_b32 s%d, 0, s%d" % (sKS, sKS))
        def wv(n):
            if "nowait" not in OPT: a("s_waitcnt vmcnt(%d)" % n)
        if LAG:
            a("s_mov_b32 s%d, %d" % (sTK, 2 * 16384)); a("s_mov_b32 s%d, %d" % (sKS, 2 * PAIR))
            lab = a.label("Lkvl"); a("s_mov_b32 s%d, 1" % sCNT); a("%s:" % lab)
            wv(0); a("s_barrier"); item_dyn()
            a("s_add_u32 s%d, s%d, 1" % (sCNT, sCNT)); a("s_cmp_le_u32 s%d, %d" % (sCNT, LAG)); a("s_cbranch_scc1 %s" % lab)
            item_dyn()
            first = LAG + 1
        else:
            if FIRST_RULE == 2:
                n1 = q.wait(["I1"])
                if n1 is not None: wv(n1)
                a("s_barrier")
            a("s_mov_b32 s%d, %d" % (sTK, (FIRST_RULE + 2) * 16384)); a("s_mov_b32 s%d, %d" % (sKS, ((FIRST_RULE + 2) % 4) * PAIR))
            first = FIRST_RULE
        lab = a.label("Lkv"); a("s_mov_b32 s%d, %d" % (sCNT, first - 1)); a("%s:" % lab)
        wv(16)
        a("s_barrier")
        item_dyn()
        a("s_add_u32 s%d, s%d, 1" % (sCNT, sCNT)); a("s_cmp_lt_u32 s%d, 13" % sCNT); a("s_cbranch_scc1 %s" % lab)
        wv(16)
        a("s_barrier")
        wv(0)
        a("s_barrier")
        a("s_barrier")
    if "nored" not in OPT:
        sk = a.label("Ldbg"); lp = a.label("Ldbgw")
        a("s_cmp_lg_u32 s%d, 0" % sLW); a("s_cbranch_scc1 %s" % sk)
        a("s_lshl_b32 s%d, s%d, 4" % (sT0, sB)); a("v_mov_b32 v10, s%d" % sT0); a("s_mov_b32 s%d, 0" % sT3)
        a("%s:" % lp)
        a("global_load_dword v12, v10, s[16:17] sc1"); a("s_waitcnt vmcnt(0)"); a("v_readfirstlane_b32 s%d, v12" % sT1)
        a("s_add_u32 s%d, s%d, 1" % (sT3, sT3)); a("s_cmp_gt_u32 s%d, %d" % (sT3, SPIN_MAX)); a("s_cbranch_scc1 %s" % sk)
        a("s_cmp_lt_u32 s%d, 16" % sT1); a("s_cbranch_scc1 %s" % lp)
        a("%s:" % sk)
    a("s_barrier"); a("s_barrier")
    vPR, vPO, vF, vOne = 20, 24, 25, 26
    sCH = 93
    a("v_lshlrev_b32 v%d, 4, v1" % vPO)
    a("s_mul_i32 s%d, s%d, 6144" % (sT0, sLW)); a("s_add_u32 s%d, s%d, %d" % (sT0, sT0, PB0)); a("v_add_u32 v%d, s%d, v%d" % (vPR, sT0, vPO)); a("v_add_u32 v%d, 3072, v%d" % (vPR + 1, vPR))
    a("s_mul_i32 s%d, s%d, %d" % (sT0, sLW, 2 * PAIR)); a("s_add_u32 s%d, s%d, 32768" % (sT0, sT0)); a("v_add_u32 v%d, s%d, v%d" % (vPR + 2, sT0, vPO)); a("v_add_u32 v%d, %d, v%d" % (vPR + 3, PAIR, vPR + 2))
    a("s_mul_i32 s%d, s%d, 6144" % (sT0, sLW)); a("v_add_u32 v%d, s%d, v%d" % (vPO, sT0, vPO))
    a("v_mov_b32 v%d, 1" % vOne)
    a("s_lshl_b32 s%d, s%d, 3" % (sT0, sH)); a("s_lshl_b32 s%d, s%d, 2" % (sT1, sLW)); a("s_add_u32 s%d, s%d, s%d" % (sT0, sT0, sT1))
    a("v_mov_b32 v%d, 0x40000000" % vF); a("s_nop 0"); a("v_writelane_b32 v%d, s%d, 0" % (vF, sT0))
    a("s_mov_b32 s%d, 0" % sCH)
    def flag_store(back):
        a("s_sub_u32 s%d, s%d, %d" % (sT0, sCH, back)); a("s_lshl_b32 s%d, s%d, 7" % (sT0, sT0))
        a("buffer_store_dword v%d, v%d, %s, s%d offen sc0 sc1" % (vOne, vF, srd(sFL), sT0))
    def turn(buf, guard):
        for w2 in range(2):
            for j in range(3): a("ds_read_b128 %s, v%d offset:%d" % (vr(64 + 32 * buf + 4 * (3 * w2 + j), 4), vPR + 2 * buf + w2, j * 1024))
        a("s_mul_i32 s%d, s%d, 12288" % (sT0, sCH))
        for i in range(6):
            a("s_waitcnt lgkmcnt(%d)" % (5 - i))
            if "nostore" not in OPT: a("buffer_store_dwordx4 %s, v%d, %s, s%d offen%s" % (vr(64 + 32 * buf + 4 * i, 4), vPO, srd(sP), sT0, P_FLAGS))
            if i < 5: a("s_add_u32 s%d, s%d, 1024" % (sT0, sT0))
        if "nored" not in OPT:
            sk = a.label("Lfl")
            if guard: a("s_cmp_lt_u32 s%d, 2" % sCH); a("s_cbranch_scc1 %s" % sk)
            a("s_waitcnt vmcnt(%d)" % FLW)
            flag_store(2)
            a("%s:" % sk)
        a("s_add_u32 s%d, s%d, 1" % (sCH, sCH))
    a("s_barrier")
    lab = a.label("Lsto"); a("%s:" % lab)
    a("s_barrier"); turn(0, True)
    a("s_barrier"); turn(1, True)
    a("s_cmp_lt_u32 s%d, 8" % sCH); a("s_cbranch_scc1 %s" % lab)
    a("s_barrier"); turn(0, False)
    if "nored" not in OPT:
        a("s_waitcnt vmcnt(7)"); flag_store(2)
        a("s_waitcnt vmcnt(1)"); flag_store(1)
    a("s_cmp_eq_u32 s%d, 0" % sLW); a("s_cselect_b32 s%d, 7, 6" % sCNT)
    a("s_branch L_reduce")

KSCHED = {2: [("K", 0)], 5: [("V", 0)], 8: [("K", 1)], 11: [("V", 1)], 16: [("K", 2)], 17: [("V", 2)]}

def gen_reducer(a):
    a("L_reduce:")
    if "nored" in OPT:
        a.stamp_wave = 4; stamp_flush(a); a("s_endpgm"); return
    rho = sCNT
    giveup = a.label("Lgiveup"); poll = a.label("Lpoll")
    a("s_mul_i32 s%d, s%d, 7" % (sT0, rho)); a("s_cmp_eq_u32 s%d, 7" % rho); a("s_cselect_b32 s%d, 48, s%d" % (sT0, sT0))
    a("s_mul_hi_u32 s%d, s%d, %d" % (sT2, sT0, (2**32 + 5) // 6))
    a("s_cmp_ge_u32 s%d, 6" % rho); a("s_cselect_b32 s%d, 48, 56" % sTASK2); a("s_cselect_b32 s%d, 0, -1" % sCNT2)
    a("v_lshlrev_b32 v9, 2, v1"); a("v_mov_b32 v7, 0x40000000")
    a("s_lshl_b32 s%d, s%d, 7" % (sT2, sT2))
    a("buffer_load_dword v11, v9, %s, s%d offen sc1" % (srd(sFL), sT2))
    a("v_lshrrev_b32 v2, 3, v1"); a("v_add_u32 v2, s%d, v2" % sT0)
    a("v_mul_u32_u24 v8, 10923, v2"); a("v_lshrrev_b32 v8, 16, v8")
    a("v_mul_u32_u24 v5, 6, v8"); a("v_sub_u32 v2, v2, v5")
    a("v_lshlrev_b32 v2, 3, v2"); a("v_and_b32 v5, 7, v1"); a("v_add_u32 v2, v2, v5")
    a("s_mul_i32 s%d, s%d, 48" % (sT1, sH)); a("v_add_u32 v2, s%d, v2" % sT1)
    a("v_mul_u32_u24 v3, 12288, v8"); a("v_lshlrev_b32 v5, 4, v2"); a("v_add_u32 v3, v3, v5")
    a("v_cmp_gt_u32 vcc, s%d, v1" % sTASK2); a("s_nop 1"); a("v_cndmask_b32 v3, v7, v3, vcc")
    a("v_lshrrev_b32 v4, 6, v2"); a("v_and_b32 v5, 63, v2")
    a("v_cmp_le_u32 s[96:97], 6, v4"); a("s_nop 1"); a("v_cndmask_b32 v6, 0, 1, s[96:97]")
    a("v_mul_u32_u24 v10, 6, v6"); a("v_sub_u32 v4, v4, v10")
    a("v_lshlrev_b32 v4, 4, v4"); a("v_and_b32 v10, 15, v5"); a("v_add_u32 v4, v4, v10"); a("v_mul_u32_u24 v4, 1152, v4")
    a("v_lshlrev_b32 v6, 6, v6"); a("v_lshrrev_b32 v5, 4, v5"); a("v_lshlrev_b32 v5, 3, v5"); a("v_add_u32 v4, v4, v6"); a("v_add_u32 v4, v4, v5")
    a("s_and_b32 s%d, s%d, 7" % (sT1, sB)); a("v_add_u32 v8, s%d, v8" % sT1)
    a("v_cmp_le_u32 s[96:97], 9, v8"); a("s_nop 1"); a("v_cndmask_b32 v6, 0, 9, s[96:97]"); a("v_sub_u32 v8, v8, v6"); a("v_lshlrev_b32 v8, 7, v8"); a("v_add_u32 v4, v4, v8")
    a("v_cndmask_b32 v4, v7, v4, vcc")
    a("s_mov_b32 s%d, 0" % sT3)
    a("s_branch %s_chk" % poll)
    a("%s:" % poll)
    a("buffer_load_dword v11, v9, %s, s%d offen sc1" % (srd(sFL), sT2))
    a("%s_chk:" % poll)
    a("s_waitcnt vmcnt(0)")
    a("v_cmp_eq_u32 vcc, 1, v11")
    a("s_add_u32 s%d, s%d, 1" % (sT3, sT3)); a("s_cmp_gt_u32 s%d, %d" % (sT3, SPIN_MAX)); a("s_cbranch_scc1 %s" % giveup)
    a("s_orn2_b32 vcc_hi, vcc_hi, s%d" % sCNT2)
    a("s_cmp_eq_u64 vcc, -1"); a("s_cbranch_scc0 %s" % poll)
    a("s_mov_b32 s%d, 0" % sT0)
    for h in range(16):
        a("buffer_load_dwordx4 v[%d:%d], v3, %s, s%d offen%s" % (64 + 4 * h, 67 + 4 * h, srd(sPB), sT0, R_FLAGS))
        if h < 15: a("s_add_u32 s%d, s%d, %d" % (sT0, sT0, PART))
    if "dot2" in OPT:
        a("v_mov_b32 v12, 0x00003f80"); a("v_mov_b32 v13, 0x3f800000")
        for r in range(8): a("v_mov_b32 v%d, 0" % (48 + r))
    for h in range(16):
        a("s_waitcnt vmcnt(%d)" % (15 - h))
        for r in range(4):
            src = 64 + 4 * h + r
            if "dot2" in OPT:
                a("v_dot2c_f32_bf16 v%d, v%d, v12" % (48 + 2 * r, src)); a("v_dot2c_f32_bf16 v%d, v%d, v13" % (49 + 2 * r, src))
            elif h == 0:
                a("v_lshlrev_b32 v%d, 16, v%d" % (48 + 2 * r, src)); a("v_and_b32 v%d, 0xffff0000, v%d" % (49 + 2 * r, src))
            else:
                a("v_lshlrev_b32 v12, 16, v%d" % src); a("v_and_b32 v13, 0xffff0000, v%d" % src)
                a("v_add_f32 v%d, v%d, v12" % (48 + 2 * r, 48 + 2 * r)); a("v_add_f32 v%d, v%d, v13" % (49 + 2 * r, 49 + 2 * r))
    for r in range(4): a("v_cvt_pk_bf16_f32 v%d, v%d, v%d" % (56 + r, 48 + 2 * r, 49 + 2 * r))
    a("buffer_store_dwordx2 v[56:57], v4, %s, 0 offen%s" % (srd(sOUT), OUT_FLAGS))
    a("buffer_store_dwordx2 v[58:59], v4, %s, 0 offen offset:32%s" % (srd(sOUT), OUT_FLAGS))
    a("%s:" % giveup)
    if STAMP:
        sk = a.label("Lnst"); a("s_cmp_lg_u32 s%d, 4" % sWAVE); a("s_cbranch_scc1 %s" % sk)
        a.stamp_wave = 4; stamp(a, 15); stamp_flush(a)
        a("%s:" % sk)
    a("s_endpgm")
R_FLAGS = " sc1"
OUT_FLAGS = ""
sTASK2 = 101
sCNT2 = 95
PB0 = 143360
SPIN_MAX = 200000
sWOP = 70

PF_O_AT = 10
PF_WAVE = 1
PF_FIRST = 4
PF_AT = 0
PF0 = 2
RAMP = 0
LAG = 0
RAMP_EVERY = 1
FLW = 12
STG_AT = 7
NSTG0 = 3
ROTQ = (1, 0, 2, 0)
KROT = (2, 1)
CPF_AT = 11
FIRST_RULE = 1
CMP_SLACK = 6
FLAG_DELAY = 4

def O_(j, db): return (j * 8 + db) * 4
def Q_(j, s): return 96 + (j * 4 + s) * 4
def KF(f): return 144 + 4 * f
def VF(db): return 176 + 4 * db
def S_(par): return 208 + 8 * par
def P_(par): return 224 + 4 * par
def N_(j): return 232 + 4 * j
def L_(j): return 244 + j
vKA, vVA, vT, vT2, vS, vLANE = 247, 248, 252, 253, 254, 255
MF = "v_mfma_f32_16x16x32_bf16"

def interleave(mfmas, fillers):
    out = list(fillers.get(-1, []))
    for i, m in enumerate(mfmas):
        out.append(m); out += fillers.get(i, [])
    return out
def spread(items, slots):
    d = {}; n = len(items)
    for i, it in enumerate(items): d.setdefault(slots[i * len(slots) // n], []).append(it)
    return d
def merge(*ds):
    o = {}
    for d in ds:
        for k, v in d.items(): o.setdefault(k, []).extend(v)
    return o

KORD = [(kb, s) for s in range(4) for kb in range(2)]
def k_read(kb, s, half, ad=None):
    return "ds_read_b128 %s, v%d offset:%d" % (vr(KF(kb * 4 + s), 4), vKA if ad is None else ad, half * 8 * KGRP + kb * 4 * KGRP + s * 64)
def v_reads(db, half):
    A, cc = divmod(db, 4)
    o = half * 8 * VGRP + A * 128
    return ["ds_read_b64_tr_b16 %s, v%d offset:%d" % (vr(VF(db), 2), vVA + cc, o), "ds_read_b64_tr_b16 %s, v%d offset:%d" % (vr(VF(db) + 2, 2), vVA + cc, o + 4 * VGRP)]

TAB = None
def hoist_waits(lines):
    out = []
    for l in lines:
        if l.startswith("s_waitcnt lgkmcnt") and out:
            n = int(l.split("(")[1].split(")")[0])
            k = len(out) - 1; jumped = 0; ok = False
            while k >= 0:
                x = out[k]
                if x.startswith("v_mfma"): ok = True; break
                if x.endswith(":") or x.startswith(("s_cbranch", "s_barrier", "s_waitcnt")): break
                if x.startswith("ds_"): jumped += 1
                k -= 1
            if ok and n - jumped >= 0:
                out.insert(k + 1, "s_waitcnt lgkmcnt(%d)" % (n - jumped)); continue
        out.append(l)
    return out

def gen_compute(a):
    rare = []
    a("v_and_b32 v%d, 63, v0" % vLANE)
    a("s_lshr_b32 s%d, s%d, 1" % (sQI, sWAVE)); a("s_and_b32 s%d, s%d, 1" % (sRH, sWAVE))
    g, rp, c, q = 240, 241, 242, 243
    a("v_lshrrev_b32 v%d, 4, v%d" % (g, vLANE)); a("v_bfe_u32 v%d, v%d, 2, 2" % (rp, vLANE)); a("v_and_b32 v%d, 3, v%d" % (c, vLANE)); a("v_and_b32 v%d, 15, v%d" % (q, vLANE))
    vWA, vXA = 232, 244
    t, t2 = vT, vT2
    a("v_lshlrev_b32 v%d, 3, v%d" % (t, g)); a("v_add_u32 v%d, v%d, v%d" % (t, t, rp)); a("v_lshlrev_b32 v%d, 9, v%d" % (t, t))
    a("v_and_b32 v%d, 1, v%d" % (t2, g)); a("v_lshlrev_b32 v%d, 2, v%d" % (t2, t2)); a("v_add_u32 v%d, v%d, v%d" % (t2, t2, rp)); a("v_lshlrev_b32 v%d, 5, v%d" % (t2, t2))
    a("v_add_u32 v%d, v%d, v%d" % (t, t, t2)); a("v_lshlrev_b32 v%d, 3, v%d" % (t2, c)); a("v_add_u32 v%d, v%d, v%d" % (t, t, t2))
    a("s_lshl_b32 s%d, s%d, 8" % (sT0, sQI)); a("s_add_u32 s%d, s%d, %d" % (sT0, sT0, WBASE)); a("v_add_u32 v%d, s%d, v%d" % (t, sT0, t))
    assert WBASE % 256 == 0 and XBASE % 128 == 0
    for db in range(8): a("v_xor_b32 v%d, %d, v%d" % (vWA + db, db * 32, t))
    a("s_mul_i32 s%d, s%d, %d" % (sT0, sRH, 48 * 128)); a("s_add_u32 s%d, s%d, %d" % (sT0, sT0, XBASE))
    a("v_lshrrev_b32 v%d, 1, v%d" % (t, q)); a("v_xor_b32 v%d, v%d, v%d" % (t, t, g)); a("v_lshlrev_b32 v%d, 4, v%d" % (t, t))
    a("v_lshlrev_b32 v%d, 7, v%d" % (t2, q)); a("v_add_u32 v%d, v%d, v%d" % (t, t, t2)); a("v_add_u32 v%d, s%d, v%d" % (vXA, sT0, t)); a("v_xor_b32 v%d, 64, v%d" % (vXA + 1, vXA))
    a("v_lshrrev_b32 v%d, 2, v%d" % (t, q)); a("v_mul_u32_u24 v%d, %d, v%d" % (t, KGRP, t))
    a("v_and_b32 v%d, 3, v%d" % (t2, q)); a("v_lshlrev_b32 v%d, 8, v%d" % (vKA, t2)); a("v_add_u32 v%d, v%d, v%d" % (t, t, vKA))
    a("v_xor_b32 v%d, v%d, v%d" % (t2, t2, g)); a("v_lshlrev_b32 v%d, 4, v%d" % (t2, t2)); a("v_add_u32 v%d, v%d, v%d" % (vKA, t, t2))
    a("v_mul_u32_u24 v%d, %d, v%d" % (t, VGRP, g)); a("v_lshlrev_b32 v%d, 8, v%d" % (t2, rp)); a("v_add_u32 v%d, v%d, v%d" % (t, t, t2))
    a("v_lshlrev_b32 v%d, 3, v%d" % (t2, c)); a("v_add_u32 v%d, v%d, v%d" % (t, t, t2)); a("v_add_u32 v%d, %d, v%d" % (t, VOFF, t))
    for cc in range(4):
        a("v_xor_b32 v%d, %d, v%d" % (t2, cc, rp)); a("v_lshlrev_b32 v%d, 5, v%d" % (t2, t2)); a("v_add_u32 v%d, v%d, v%d" % (vVA + cc, t, t2))
    stamp(a, 0, 10)

    def ABUF(buf, db): return 144 + 32 * buf + 4 * db
    def BBUF(buf, j): return 208 + 12 * buf + 4 * j
    def q_reads(s):
        buf = s & 1; wo = ((s + 2) % 4) * 16384; xo = ((s // 2) % 2) * XSLOT
        r = []
        for j in range(3): r.append("ds_read_b128 %s, v%d offset:%d" % (vr(BBUF(buf, j), 4), vXA + (s & 1), xo + j * 2048))
        for db in range(8):
            r.append("ds_read_b64_tr_b16 %s, v%d offset:%d" % (vr(ABUF(buf, db), 2), vWA + db, wo))
            r.append("ds_read_b64_tr_b16 %s, v%d offset:%d" % (vr(ABUF(buf, db) + 2, 2), vWA + db, wo + 2048))
        return r
    for r in range(0, 96, 2): a("v_mov_b64 %s, 0" % vr(r, 2))
    a("s_barrier")
    for x in q_reads(0): a(x)
    def q_stage(s, reads=True):
        buf = s & 1
        a("s_waitcnt lgkmcnt(0)")
        a("s_barrier")
        mf = []
        for db in range(8):
            for j in range(3):
                mf.append("%s %s, %s, %s, %s" % (MF, vr(O_(j, db), 4), vr(ABUF(buf, db), 4), vr(BBUF(buf, j), 4), vr(O_(j, db), 4)))
        rd = q_reads(s + 1) if reads else []
        for x in interleave(mf, spread(rd, list(range(0, 17))) if rd else {}): a(x)
    lq = a.label("Lq")
    a("s_mov_b32 s%d, 0" % sCNT); a("%s:" % lq)
    for s in range(4): q_stage(s)
    a("s_add_u32 s%d, s%d, 1" % (sCNT, sCNT)); a("s_cmp_lt_u32 s%d, 4" % sCNT); a("s_cbranch_scc1 %s" % lq)
    q_stage(16); q_stage(17, reads=False)
    stamp(a, 1, 11)
    a("s_nop 7")
    a("s_mov_b32 s%d, %s" % (sT0, f32(C_SCALE))); a("s_mov_b32 s%d, s%d" % (sT0 + 1, sT0))
    for j in range(3):
        for s in range(4):
            X, Y, D = O_(j, 2 * s), O_(j, 2 * s + 1), Q_(j, s)
            for r in range(0, 4, 2):
                a("v_pk_mul_f32 %s, %s, s[%d:%d]" % (vr(X + r, 2), vr(X + r, 2), sT0, sT0 + 1)); a("v_pk_mul_f32 %s, %s, s[%d:%d]" % (vr(Y + r, 2), vr(Y + r, 2), sT0, sT0 + 1))
            a("v_cvt_pk_bf16_f32 v%d, v%d, v%d" % (D + 0, X + 0, X + 1)); a("v_cvt_pk_bf16_f32 v%d, v%d, v%d" % (D + 1, X + 2, X + 3))
            a("v_cvt_pk_bf16_f32 v%d, v%d, v%d" % (D + 2, Y + 0, Y + 1)); a("v_cvt_pk_bf16_f32 v%d, v%d, v%d" % (D + 3, Y + 2, Y + 3))
            for r in range(0, 4, 2):
                a("v_mov_b64 %s, 0" % vr(X + r, 2)); a("v_mov_b64 %s, 0" % vr(Y + r, 2))
            a("v_permlane32_swap_b32 v%d, v%d" % (D + 0, D + 2)); a("v_permlane32_swap_b32 v%d, v%d" % (D + 1, D + 3))
            a("s_nop 1")
            a("v_permlane16_swap_b32 v%d, v%d" % (D + 0, D + 2)); a("v_permlane16_swap_b32 v%d, v%d" % (D + 1, D + 3))
    a("s_barrier")
    for kb, s_ in KORD: a(k_read(kb, s_, 0))
    a("s_waitcnt lgkmcnt(0)")
    for j in range(3):
        for kb, s_ in KORD:
            d = 176 + 8 * j + 4 * kb
            a("%s %s, %s, %s, %s" % (MF, vr(d, 4), vr(KF(kb * 4 + s_), 4), vr(Q_(j, s_), 4), "0" if s_ == 0 else vr(d, 4)))
    for r in range(224, 232, 2): a("v_mov_b64 %s, 0" % vr(r, 2))
    for j in range(3): a("v_mov_b32 v%d, 0" % L_(j))
    a("v_mov_b32 v%d, 0" % vS)
    a("s_mov_b32 s%d, %s" % (sTHR, "0x7f800000" if "norare" in OPT else f32(256.0)))
    a("s_mov_b32 s%d, 0" % sSLOT); a("s_mov_b32 s%d, 0" % sDK)
    a("s_mov_b32 s%d, 0x%x" % (sNEG, -3 * PAIR & 0xffffffff))
    a("s_mov_b64 vcc, 0")
    a("s_nop 3")
    for j in range(3):
        S = 176 + 8 * j; t, t2 = 200 + 2 * j, 201 + 2 * j
        a("v_max3_f32 v%d, v%d, v%d, v%d" % (t, S, S + 1, S + 2)); a("v_max3_f32 v%d, v%d, v%d, v%d" % (t2, S + 3, S + 4, S + 5))
        a("v_max3_f32 v%d, v%d, v%d, v%d" % (t, t, S + 6, S + 7)); a("v_max_f32 v%d, v%d, v%d" % (t, t, t2))
    for sw in ("v_permlane32_swap_b32", "v_permlane16_swap_b32"):
        for j in range(3): a("v_mov_b32 v%d, v%d" % (201 + 2 * j, 200 + 2 * j))
        a("s_nop 0")
        for j in range(3): a("%s v%d, v%d" % (sw, 200 + 2 * j, 201 + 2 * j))
        for j in range(3): a("v_max_f32 v%d, v%d, v%d" % (200 + 2 * j, 200 + 2 * j, 201 + 2 * j))
    for j in range(3):
        for i in range(4): a("v_sub_f32 v%d, 0, v%d" % (N_(j) + i, 200 + 2 * j))
    for r in range(176, 208, 2): a("v_mov_b64 %s, 0" % vr(r, 2))
    def qk_mfmas(jn, par):
        m = []
        for kb, s in KORD:
            d = S_(par) + 4 * kb
            cc = vr(N_(jn), 4) if s == 0 else vr(d, 4)
            m.append("%s %s, %s, %s, %s" % (MF, vr(d, 4), vr(KF(kb * 4 + s), 4), vr(Q_(jn, s), 4), cc))
        return m
    def pv_mfmas(jp, par):
        return ["%s %s, %s, %s, %s" % (MF, vr(O_(jp, db), 4), vr(VF(db), 4), vr(P_(par), 4), vr(O_(jp, db), 4)) for db in range(8)]
    for m in qk_mfmas(0, 0): a(m)
    a("s_nop 7")

    def rare_code(st, j, adv):
        par = (3 * st + j) & 1
        S, P = S_(par), P_(par)
        rl, cont = a.label("Lrare"), a.label("Lcont")
        r = Asm()
        r("%s:" % rl)
        if adv: r("v_subrev_u32 v%d, s%d, v%d" % (vT2, sDK, vKA))
        else: r("v_mov_b32 v%d, v%d" % (vT2, vKA))
        for kb in range(2):
            for s in range(4):
                r("ds_read_b128 %s, v%d offset:%d" % (vr(P, 4), vT2, st * 8 * KGRP + kb * 4 * KGRP + s * 64))
                r("s_waitcnt lgkmcnt(0)")
                cc = vr(N_(j), 4) if s == 0 else vr(S + 4 * kb, 4)
                r("%s %s, %s, %s, %s" % (MF, vr(S + 4 * kb, 4), vr(P, 4), vr(Q_(j, s), 4), cc))
                r("s_nop 3")
        r("s_nop 7")
        r("v_max3_f32 v%d, v%d, v%d, v%d" % (vT, S, S + 1, S + 2)); r("v_max3_f32 v%d, v%d, v%d, v%d" % (vT2, S + 3, S + 4, S + 5))
        r("v_max3_f32 v%d, v%d, v%d, v%d" % (vT, vT, S + 6, S + 7)); r("v_max_f32 v%d, v%d, v%d" % (vT, vT, vT2))
        r("v_mov_b32 v%d, v%d" % (vT2, vT)); r("s_nop 1"); r("v_permlane32_swap_b32 v%d, v%d" % (vT, vT2)); r("v_max_f32 v%d, v%d, v%d" % (vT, vT, vT2))
        r("v_mov_b32 v%d, v%d" % (vT2, vT)); r("s_nop 1"); r("v_permlane16_swap_b32 v%d, v%d" % (vT, vT2)); r("v_max_f32 v%d, v%d, v%d" % (vT, vT, vT2))
        r("v_max_f32 v%d, 0, v%d" % (vT, vT))
        r("v_sub_f32 v%d, 0, v%d" % (vT2, vT)); r("v_exp_f32 v%d, v%d" % (vT2, vT2)); r("s_nop 0")
        r("v_mul_f32 v%d, v%d, v%d" % (L_(j), L_(j), vT2))
        for db in range(8):
            for rr in range(4): r("v_mul_f32 v%d, v%d, v%d" % (O_(j, db) + rr, O_(j, db) + rr, vT2))
        for i in range(4): r("v_sub_f32 v%d, v%d, v%d" % (N_(j) + i, N_(j) + i, vT))
        for i in range(8): r("v_sub_f32 v%d, v%d, v%d" % (S + i, S + i, vT))
        for i in range(8): r("v_exp_f32 v%d, v%d" % (S + i, S + i))
        r("s_nop 0")
        r("v_add_f32 v%d, v%d, v%d" % (vS, S, S + 1))
        for i in range(2, 8): r("v_add_f32 v%d, v%d, v%d" % (vS, vS, S + i))
        for i in range(4): r("v_cvt_pk_bf16_f32 v%d, v%d, v%d" % (P + i, S + 2 * i, S + 2 * i + 1))
        r("s_nop 1")
        r("s_branch %s" % cont)
        rare.append(r.text())
        if "nobr" in OPT: return ["%s:" % cont]
        if "sccbr" in OPT: return ["s_cbranch_scc1 %s" % rl, "%s:" % cont]
        return ["s_cbranch_vccnz %s" % rl, "%s:" % cont]

    def block_tab(st, j, prev, qk=True, kload=None, vlo=None, vhi=None, barrier=False, extra=(), pre_extra=(), klate=None):
        par = (3 * st + j) & 1
        jn, jp = (j + 1) % 3, (j - 1) % 3
        S, P = S_(par), P_(par)
        pre = []
        if barrier: pre.append("s_barrier")
        endbr = []
        if "brend" in OPT:
            endbr = rare_code(st, j, st == 1 and j >= 1)
        elif prev is not None: pre += rare_code(*prev)
        pre += list(pre_extra)
        mf = qk_mfmas(jn, par ^ 1) + pv_mfmas(jp, par ^ 1)
        N = {}
        for i in range(8): N["E%d" % i] = "v_exp_f32 v%d, v%d" % (S + i, S + i)
        for i in range(4):
            N["C%d" % i] = "v_cvt_pk_bf16_f32 v%d, v%d, v%d" % (P + i, S + 2 * i, S + 2 * i + 1)
            N["A%d" % i] = "v_add_f32 v%d, v%d, v%d" % (S + 2 * i, S + 2 * i, S + 2 * i + 1)
        N["B0"] = "v_add_f32 v%d, v%d, v%d" % (S, S, S + 2); N["B1"] = "v_add_f32 v%d, v%d, v%d" % (S + 4, S + 4, S + 6)
        N["SUM"] = "v_add_f32 v%d, v%d, v%d" % (vS, S, S + 4); N["CMP"] = "v_cmp_lt_f32 vcc, s%d, v%d" % (sTHR, vS)
        N["L"] = "v_add_f32 v%d, v%d, v%d" % (L_(jp), L_(jp), vS)
        lds = {g: [] for g in range(16)}
        if "nolds" not in OPT:
            if vlo is not None:
                rs = [x for db in range(4) for x in v_reads(db, vlo)]
                for x, g in zip(rs, TAB["vlo"]): lds[g].append(x)
            if vhi is not None:
                rs = [x for db in range(4, 8) for x in v_reads(db, vhi)]
                for x, g in zip(rs, TAB["vhi"]): lds[g].append(x)
            if kload is not None:
                for (kb, s_), g in zip(KORD[:6], TAB["k"]): lds[g].append(k_read(kb, s_, kload))
            if klate is not None:
                for (kb, s_), g in zip(KORD[6:], TAB["klate"]): lds[g].append(k_read(kb, s_, klate))
        out = list(pre)
        ex = list(extra)
        for g in range(16):
            out.append(mf[g])
            if g == 15 and endbr: out += (["s_cmp_lg_u64 vcc, 0"] if "sccbr" in OPT else []) + endbr
            out += lds[g]
            if "nosm" not in OPT: out += [N[n] for n in TAB["valu"].get(g, [])]
            if g == TAB.get("scc_at", 15) and "sccbr" in OPT and "brend" not in OPT: out.append("s_cmp_lg_u64 vcc, 0")
            if g in TAB.get("extra_at", ()) and ex:
                x = ex.pop(0); out += (x if isinstance(x, list) else [x])
        for x in ex: out += (x if isinstance(x, list) else [x])
        return out

    def block(st, j, prev, qk=True, kload=None, vlo=None, vhi=None, barrier=False, extra=(), pre_extra=(), klate=None):
        if TAB is not None and qk: return block_tab(st, j, prev, qk, kload, vlo, vhi, barrier, extra, pre_extra, klate)
        if "brend" in OPT: prev = None
        if "sccbr" in OPT and prev is not None: pre_extra = list(pre_extra)
        par = (3 * st + j) & 1
        jn, jp = (j + 1) % 3, (j - 1) % 3
        S, P = S_(par), P_(par)
        pre = []
        if barrier: pre.append("s_barrier")
        if prev is not None: pre += rare_code(*prev)
        pre += list(pre_extra)
        mf = (qk_mfmas(jn, par ^ 1) if qk else []) + pv_mfmas(jp, par ^ 1)
        nq = 8 if qk else 0
        if not qk: pre.append("s_nop 1")
        it = []
        Ladd = Item("v_add_f32 v%d, v%d, v%d" % (L_(jp), L_(jp), vS), lo=0, hi=6, pri=5)
        E = [Item("v_exp_f32 v%d, v%d" % (S + i, S + i), lo=0, pri=3) for i in range(8)]
        for i in range(1, 8): pass
        A01 = Item("v_add_f32 v%d, v%d, v%d" % (vT, S, S + 1), deps=[E[0], E[1]])
        A23 = Item("v_add_f32 v%d, v%d, v%d" % (vT2, S + 2, S + 3), deps=[E[2], E[3]])
        B_ = Item("v_add_f32 v%d, v%d, v%d" % (vT, vT, vT2), deps=[A01, A23])
        A45 = Item("v_add_f32 v%d, v%d, v%d" % (vT2, S + 4, S + 5), deps=[E[4], E[5], B_])
        C_ = Item("v_add_f32 v%d, v%d, v%d" % (vT, vT, vT2), deps=[A45])
        A67 = Item("v_add_f32 v%d, v%d, v%d" % (vT2, S + 6, S + 7), deps=[E[6], E[7], C_])
        D_ = Item("v_add_f32 v%d, v%d, v%d" % (vS, vT, vT2), deps=[A67, Ladd])
        CMP = Item("v_cmp_lt_f32 vcc, s%d, v%d" % (sTHR, vS), deps=[D_], hi=len(mf) - CMP_SLACK)
        CV = [Item("v_cvt_pk_bf16_f32 v%d, v%d, v%d" % (P + i, S + 2 * i, S + 2 * i + 1), deps=[E[2 * i], E[2 * i + 1]], hi=len(mf) - 2) for i in range(4)]
        if "nosm" in OPT: it = []
        else: it = [Ladd] + E + [A01, A23, B_, A45, C_, A67, D_, CMP] + CV
        if "nolds" not in OPT:
            if vlo is not None:
                for db in range(4): it.append(Item(v_reads(db, vlo), lo=nq + db, pri=4))
            if vhi is not None:
                for db in range(4, 8): it.append(Item(v_reads(db, vhi), lo=0, hi=nq + db - 7, pri=6))
            if kload is not None:
                for i, (kb, s) in enumerate(KORD[:6]): it.append(Item(k_read(kb, s, kload), lo=max(i, 5), hi=min(15, 9 + i), pri=4))
            if klate is not None:
                for i, (kb, s) in list(enumerate(KORD))[6:]: it.append(Item(k_read(kb, s, klate), lo=0, hi=0, pri=7))
        for x in extra: it.append(Item(x, lo=8))
        return schedule(mf, it, pre)

    def tile(last, first_of_all=False):
        L = []
        L += block(0, 0, (1, 2, True), vlo=0)
        L += block(0, 1, (0, 0, False), vhi=0, kload=1)
        L += block(0, 2, (0, 1, False), klate=1)
        L += block(1, 0, (0, 2, False), vlo=1)
        adv = ["s_add_u32 s%d, s%d, 1" % (sSLOT, sSLOT), "s_and_b32 s%d, s%d, 3" % (sSLOT, sSLOT), "s_cmp_eq_u32 s%d, 0" % sSLOT,
               "s_cselect_b32 s%d, s%d, %d" % (sDK, sNEG, PAIR), "v_add_u32 v%d, s%d, v%d" % (vKA, sDK, vKA)]
        L += block(1, 1, (1, 0, False), vhi=1, kload=(None if last else 0), barrier=True, pre_extra=adv)
        L += block(1, 2, (1, 1, True), qk=not last, klate=(None if last else 0),
                   extra=[["v_add_u32 v%d, s%d, v%d" % (vVA + cc, sDK, vVA + cc)] for cc in range(4)])
        return L
    steady = tile(False)
    del rare[:]
    steady2 = tile(False)
    nr = len(rare)
    lastt = tile(True)
    if "peel" not in OPT: del rare[nr:]
    if TAB is not None:
        body = hoist_waits(auto_lgkm(steady2, entry_lines=steady, age=TAB.get("age")))
        lastb = hoist_waits(auto_lgkm(lastt, entry_lines=steady, age=TAB.get("age")))
    else:
        body = auto_lgkm(steady2, entry_lines=steady)
        lastb = auto_lgkm(lastt, entry_lines=steady)
    if "w0" in OPT:
        import re
        body = [re.sub(r"lgkmcnt\(\d+\)", "lgkmcnt(0)", x) if x.startswith("s_waitcnt lgkmcnt") else x for x in body]
    print("   attention steady tile: model %d cycles (%d/unit), %d instrs" % (model_cycles(body), model_cycles(body) / 6, len(body)))
    loop = a.label("Ltile")
    _stamp(a, 6, "s_memtime")
    a("s_mov_b32 s%d, 0" % sCNT)
    if RAMP:
        import re as _re
        nr2 = len(rare)
        ramp_raw = tile(False)
        rb = auto_lgkm(ramp_raw, entry_lines=steady)
        cnt = [0]
        def _mod(x):
            if not x.startswith("s_waitcnt lgkmcnt"): return x
            cnt[0] += 1
            return "s_waitcnt lgkmcnt(0)" if cnt[0] % RAMP_EVERY == 0 else x
        rb = [_mod(x) for x in rb]
        lr = a.label("Lramp")
        a("%s:" % lr)
        for x in rb: a(x)
        a("s_add_u32 s%d, s%d, 1" % (sCNT, sCNT)); a("s_cmp_lt_u32 s%d, %d" % (sCNT, RAMP)); a("s_cbranch_scc1 %s" % lr)
        a("s_waitcnt lgkmcnt(0)")
    a("%s:" % loop)
    for x in body: a(x)
    a("s_add_u32 s%d, s%d, 1" % (sCNT, sCNT)); a("s_cmp_lt_u32 s%d, %d" % (sCNT, 15 if "peel" in OPT else 16)); a("s_cbranch_scc1 %s" % loop)
    _stamp(a, 7, "s_memtime")
    if "peel" in OPT:
        for x in lastb: a(x)
    else: a("s_waitcnt lgkmcnt(0)")
    for x in rare_code(1, 2, True): a(x)
    a("v_add_f32 v%d, v%d, v%d" % (L_(2), L_(2), vS))
    a("s_nop 1")
    for m in pv_mfmas(2, 1): a(m)
    a("s_nop 7")
    stamp(a, 2, 12)
    for j in range(3):
        L = L_(j)
        a("v_mov_b32 v%d, v%d" % (vT, L)); a("s_nop 1"); a("v_permlane32_swap_b32 v%d, v%d" % (L, vT)); a("v_add_f32 v%d, v%d, v%d" % (L, L, vT))
        a("v_mov_b32 v%d, v%d" % (vT, L)); a("s_nop 1"); a("v_permlane16_swap_b32 v%d, v%d" % (L, vT)); a("v_add_f32 v%d, v%d, v%d" % (L, L, vT))
        a("v_rcp_f32 v%d, v%d" % (L, L))
    a("s_nop 1")
    def OA(s, j): return 96 + (s * 3 + j) * 4
    def OB(s, j): return 144 + (s * 3 + j) * 4
    for j in range(3):
        a("v_mov_b32 v%d, v%d" % (vT2, L_(j))); a("v_mov_b32 v%d, v%d" % (vT, L_(j)))
        for s in range(4):
            X, Y, D = O_(j, 2 * s), O_(j, 2 * s + 1), OA(s, j)
            for r in range(0, 4, 2):
                a("v_pk_mul_f32 %s, %s, %s" % (vr(X + r, 2), vr(X + r, 2), vr(vT, 2))); a("v_pk_mul_f32 %s, %s, %s" % (vr(Y + r, 2), vr(Y + r, 2), vr(vT, 2)))
            a("v_cvt_pk_bf16_f32 v%d, v%d, v%d" % (D + 0, X + 0, X + 1)); a("v_cvt_pk_bf16_f32 v%d, v%d, v%d" % (D + 1, X + 2, X + 3))
            a("v_cvt_pk_bf16_f32 v%d, v%d, v%d" % (D + 2, Y + 0, Y + 1)); a("v_cvt_pk_bf16_f32 v%d, v%d, v%d" % (D + 3, Y + 2, Y + 3))
    vA0, vA1 = 240, 241
    a("v_lshlrev_b32 v%d, 4, v%d" % (vT, vLANE))
    a("s_mul_i32 s%d, s%d, 12288" % (sT0, sWAVE)); a("s_add_u32 s%d, s%d, %d" % (sT0, sT0, EXCH)); a("v_add_u32 v%d, s%d, v%d" % (vA0, sT0, vT))
    a("s_xor_b32 s%d, s%d, 2" % (sT2, sWAVE)); a("s_mul_i32 s%d, s%d, 12288" % (sT0, sT2)); a("s_add_u32 s%d, s%d, %d" % (sT0, sT0, EXCH)); a("v_add_u32 v%d, s%d, v%d" % (vA1, sT0, vT))
    a("s_barrier")
    for i in range(12): a("ds_write_b128 v%d, %s offset:%d" % (vA0, vr(96 + 4 * i, 4), i * 1024))
    vAO, vST = 224, 228
    g, rp, c, t = 242, 243, 244, 245
    a("v_lshrrev_b32 v%d, 4, v%d" % (g, vLANE)); a("v_bfe_u32 v%d, v%d, 2, 2" % (rp, vLANE)); a("v_and_b32 v%d, 3, v%d" % (c, vLANE))
    a("v_lshlrev_b32 v%d, 2, v%d" % (t, g)); a("v_add_u32 v%d, v%d, v%d" % (t, t, rp))
    a("v_lshrrev_b32 v%d, 1, v%d" % (g, t)); a("v_and_b32 v%d, 3, v%d" % (g, g)); a("v_lshlrev_b32 v%d, 5, v%d" % (g, g))
    a("v_lshlrev_b32 v%d, 7, v%d" % (t, t)); a("v_add_u32 v%d, v%d, v%d" % (t, t, g)); a("v_lshlrev_b32 v%d, 3, v%d" % (c, c)); a("v_add_u32 v%d, v%d, v%d" % (t, t, c))
    a("s_lshl_b32 s%d, s%d, 6" % (sT0, sQI)); a("v_xor_b32 v%d, s%d, v%d" % (t, sT0, t))
    a("s_lshl_b32 s%d, s%d, 14" % (sT0, sQI)); a("s_xor_b32 s%d, s%d, 16384" % (sT1, sT0))
    a("v_add_u32 v%d, s%d, v%d" % (vAO + 0, sT0, t)); a("v_xor_b32 v%d, 32, v%d" % (vAO + 1, vAO + 0))
    a("v_add_u32 v%d, s%d, v%d" % (vAO + 2, sT1, t)); a("v_xor_b32 v%d, 32, v%d" % (vAO + 3, vAO + 2))
    a("s_mul_i32 s%d, s%d, 6144" % (sT0, sQI)); a("s_mul_i32 s%d, s%d, 3072" % (sT1, sRH)); a("s_add_u32 s%d, s%d, s%d" % (sT0, sT0, sT1))
    a("v_add_u32 v%d, s%d, v%d" % (vST, sT0, vT))
    a("s_waitcnt lgkmcnt(0)")
    a("s_barrier")
    for i in range(12): a("ds_read_b128 %s, v%d offset:%d" % (vr(144 + 4 * i, 4), vA1, i * 1024))
    stamp(a, 3, 13)
    assert PAIR % 256 == 0
    def AF(i): return 192 + 4 * (i % 8)
    def ACC(buf, z, j): return buf * 24 + (z * 3 + j) * 4
    def PK(buf, j): return 48 + buf * 12 + 4 * j
    def a_reads(G):
        c_, kk = divmod(G, 8)
        hs, s = (0, kk) if kk < 4 else (1, kk - 4)
        r = []
        for z in range(2):
            fr = AF(2 * G + z)
            r.append("ds_read_b64_tr_b16 %s, v%d offset:%d" % (vr(fr, 2), vAO + 2 * hs + z, s * 4096))
            r.append("ds_read_b64_tr_b16 %s, v%d offset:%d" % (vr(fr + 2, 2), vAO + 2 * hs + z, s * 4096 + 2048))
        return r
    LOOK = 3
    def slot_delta(c_from): return (-3 * PAIR if (16 + c_from + 1) % 4 == 0 else PAIR) & 0xffffffff
    for G in range(LOOK):
        for x in a_reads(G): a(x)
    vPW, vPWR = 229, 231
    a("v_lshlrev_b32 v%d, 4, v%d" % (vT, vLANE))
    a("s_mul_i32 s%d, s%d, 3072" % (sT0, sWAVE)); a("s_add_u32 s%d, s%d, %d" % (sT0, sT0, PB0)); a("v_add_u32 v%d, s%d, v%d" % (vPW, sT0, vT))
    a("s_mul_i32 s%d, s%d, %d" % (sT0, sWAVE, PAIR)); a("s_add_u32 s%d, s%d, 32768" % (sT0, sT0)); a("v_add_u32 v%d, s%d, v%d" % (vPWR, sT0, vT))
    a("v_add_u32 v%d, %d, v%d" % (vPW + 1, 156672, vT))
    sD, sDP, sSL = sDK, sNEG + 0, sSLOT
    sD, sDP = 56, 69
    a("s_mov_b32 s%d, 0" % sSLOT); a("s_mov_b32 s%d, 0" % sDP); a("s_mov_b32 s%d, 0x%x" % (sNEG, -3 * PAIR & 0xffffffff))
    def epilogue(buf):
        epi = []
        for j in range(3):
            d = PK(buf, j)
            for z in range(2):
                A_ = ACC(buf, z, j)
                epi.append("v_cvt_pk_bf16_f32 v%d, v%d, v%d" % (d + 2 * z, A_, A_ + 1)); epi.append("v_cvt_pk_bf16_f32 v%d, v%d, v%d" % (d + 2 * z + 1, A_ + 2, A_ + 3))
            epi.append("ds_write_b128 v%d, %s offset:%d" % (vPW + buf, vr(d, 4), j * 1024))
        return epi
    def o_step(buf, last):
        epi = epilogue(buf ^ 1)
        cvts = [x for x in epi if x.startswith("v_cvt")]; wrs = [x for x in epi if x.startswith("ds_write")]
        extra = {kk: {g: [] for g in range(6)} for kk in range(8)}
        if "ostep_old" in OPT:
            seq = epi; pos = [(1, 1), (1, 1), (1, 2), (1, 2), (1, 3), (1, 4), (1, 4), (1, 5), (2, 1), (2, 1), (2, 2), (2, 3), (2, 3), (2, 4), (2, 5)]
            for x, (kk, g) in zip(seq, pos): extra[kk][g].append(x)
        else:
            cpos = [(1, 0), (1, 1), (1, 2), (1, 3), (1, 4), (2, 0), (2, 1), (2, 2), (2, 3), (3, 0), (3, 1), (3, 2)]
            for x, (kk, g) in zip(cvts, cpos): extra[kk][g].append(x)
            for x, (kk, g) in zip(wrs, [(1, 5), (2, 5), (3, 4)]): extra[kk][g].append(x)
        for kk in range(8):
            G = kk
            hs, s = (0, kk) if kk < 4 else (1, kk - 4)
            rd = []; barrier = (kk == 5)
            if kk == 4 and not last:
                extra[4][4] += ["s_add_u32 s%d, s%d, 1" % (sSLOT, sSLOT), "s_and_b32 s%d, s%d, 3" % (sSLOT, sSLOT)]
                extra[4][5] += ["s_cmp_eq_u32 s%d, 0" % sSLOT, "s_cselect_b32 s%d, s%d, %d" % (sD, sNEG, PAIR)]
            pre = []
            if kk == 5 and not last:
                pre += ["v_add_u32 v%d, s%d, v%d" % (vAO + 0, sD, vAO + 0), "v_add_u32 v%d, s%d, v%d" % (vAO + 1, sD, vAO + 1)]
                extra[6][4].append("s_mov_b32 s%d, s%d" % (sDP, sD))
            if kk == 0:
                extra[0][4].append("v_add_u32 v%d, s%d, v%d" % (vAO + 2, sDP, vAO + 2)); extra[0][5].append("v_add_u32 v%d, s%d, v%d" % (vAO + 3, sDP, vAO + 3))
            if kk == 4 and buf == 0: extra[4][3].append("v_mov_b32 v%d, v%d" % (vPW + 1, vPWR))
            if not (last and kk + LOOK >= 8): rd = a_reads(G + LOOK)
            younger = 4 * (LOOK - 1) if not last else 4 * min(LOOK - 1, 7 - kk)
            if barrier: younger = min(younger, 4)
            a("s_waitcnt lgkmcnt(%d)" % younger)
            if barrier: a("s_barrier")
            for x in pre: a(x)
            mf = []
            for z in range(2):
                for j in range(3):
                    bsrc = OA(s, j) if hs == 0 else OB(s, j)
                    cc = "0" if kk == 0 else vr(ACC(buf, z, j), 4)
                    mf.append("%s %s, %s, %s, %s" % (MF, vr(ACC(buf, z, j), 4), vr(AF(2 * G + z), 4), vr(bsrc, 4), cc))
            fill = spread(rd, [0, 1, 2, 3]) if rd else {}
            fill = merge(fill, extra[kk])
            for x in interleave(mf, fill): a(x)
    lo = a.label("Lo")
    a("s_mov_b32 s%d, 0" % sCNT); a("%s:" % lo)
    o_step(0, False); o_step(1, False)
    a("s_add_u32 s%d, s%d, 1" % (sCNT, sCNT)); a("s_cmp_lt_u32 s%d, 4" % sCNT); a("s_cbranch_scc1 %s" % lo)
    o_step(0, True)
    a("s_nop 7")
    for x in epilogue(0): a(x)
    a("s_waitcnt lgkmcnt(0)")
    a("s_barrier")
    stamp(a, 4, 14)
    stamp(a, 5)
    stamp_flush(a)
    a("v_mov_b32 v1, v%d" % vLANE)
    a("s_mov_b32 s%d, s%d" % (sCNT, sWAVE))
    a("s_branch L_reduce")
    for r in rare: a(r)

def mk_srd(a, b, lo, hi, off, size):
    a("s_add_u32 s%d, s%d, s%d" % (b, lo, off)); a("s_addc_u32 s%d, s%d, 0" % (b + 1, hi)); a("s_mov_b32 s%d, %d" % (b + 2, size)); a("s_mov_b32 s%d, 0x20000" % (b + 3))

def gen_k1():
    a = Asm(); a.stamp_wave = 0; a.stamp_tmp = 252
    common_prologue(a, "L_k1_end", 256)
    a("s_and_b32 s%d, s2, 7" % sXCD); a("s_lshr_b32 s%d, s2, 3" % sIDX)
    a("s_and_b32 s%d, s%d, 1" % (sB, sXCD)); a("s_lshl_b32 s%d, s%d, 3" % (sB, sB)); a("s_and_b32 s%d, s%d, 7" % (sT2, sIDX)); a("s_add_u32 s%d, s%d, s%d" % (sB, sB, sT2))
    a("s_lshr_b32 s%d, s%d, 1" % (sH, sXCD)); a("s_lshl_b32 s%d, s%d, 2" % (sH, sH)); a("s_lshr_b32 s%d, s%d, 3" % (sT2, sIDX)); a("s_add_u32 s%d, s%d, s%d" % (sH, sH, sT2))
    a("s_lshl_b32 s%d, s%d, 4" % (sT0, sB)); a("s_add_u32 s%d, s%d, s%d" % (sT0, sT0, sH))
    a("s_lshl_b32 s%d, s%d, 18" % (sT1, sT0))
    mk_srd(a, sK, 6, 7, sT1, 262144); mk_srd(a, sV, 8, 9, sT1, 262144)
    a("s_mul_i32 s%d, s%d, 110592" % (sT1, sB)); mk_srd(a, sX, 4, 5, sT1, 110592)
    a("s_lshl_b32 s%d, s%d, 9" % (sT1, sH)); mk_srd(a, sWQ, 10, 11, sT1, 0); a("s_sub_u32 s%d, 4718592, s%d" % (sWQ + 2, sT1))
    a("s_mul_i32 s%d, s%d, 294912" % (sT1, sH)); mk_srd(a, sWO, 12, 13, sT1, 294912)
    a("s_mul_i32 s%d, s%d, %d" % (sT1, sT0, PART)); a("s_add_u32 s%d, s%d, %d" % (sT1, sT1, WS_PART)); mk_srd(a, sP, 18, 19, sT1, PART)
    a("s_lshr_b32 s%d, s%d, 2" % (sT1, sH)); a("s_lshl_b32 s%d, s%d, 11" % (sT1, sT1)); mk_srd(a, sPF, 10, 11, sT1, 0); a("s_sub_u32 s%d, 4718592, s%d" % (sPF + 2, sT1))
    a("s_lshr_b32 s%d, s%d, 3" % (sT1, sB)); a("s_mul_i32 s%d, s%d, %d" % (sT1, sT1, 8 * 110592)); mk_srd(a, sPF2, 4, 5, sT1, 8 * 110592)
    a("s_mov_b32 s%d, s12" % sWOP); a("s_mov_b32 s%d, s13" % (sWOP + 1))
    a("s_mul_i32 s%d, s%d, 110592" % (sT1, sB)); mk_srd(a, sOUT, 14, 15, sT1, 110592)
    a("s_mul_i32 s%d, s%d, %d" % (sT1, sB, 16 * PART)); a("s_add_u32 s%d, s%d, %d" % (sT1, sT1, WS_PART)); mk_srd(a, sPB, 18, 19, sT1, 16 * PART)
    a("s_mul_i32 s%d, s%d, %d" % (sT1, sB, 9 * 128)); a("s_add_u32 s%d, s%d, %d" % (sT1, sT1, WS_FLAG)); mk_srd(a, sFL, 18, 19, sT1, 9 * 128)
    if STAMP:
        a("s_lshl_b32 s%d, s2, 9" % sT1); a("s_add_u32 s%d, s18, s%d" % (sSTAMP, sT1)); a("s_addc_u32 s%d, s19, 0" % (sSTAMP + 1))
    if "allc" in OPT: a("s_and_b32 s%d, s%d, 3" % (sWAVE, sWAVE))
    a("s_cmp_ge_u32 s%d, 4" % sWAVE); a("s_cbranch_scc1 L_loader")
    gen_compute(a)
    a("L_loader:")
    a.stamp_wave = 4; a.stamp_tmp = 40
    gen_loader(a)
    gen_reducer(a)
    a("L_k1_end:")
    a("s_endpgm")
    return a.text()

def build(fn, stamp=False, opt=()):
    global STAMP, OPT
    STAMP = stamp; OPT = set(opt)
    k1 = gen_k1()
    errs = hazard.check(k1, "k1")
    for e in errs[:10]: print(e)
    if errs: print("k1: %d hazard warnings" % len(errs))
    txt = HEADER + "; @launch grid=(256,1,1) block=(512,1,1) lds=%d\n" % LDS_BYTES
    txt += '.amdgcn_target "amdgcn-amd-amdhsa--gfx950"\n.text\n' + kernel_begin(KNAME) + k1 + '\n.section .rodata,"a"\n.p2align 6\n' + kernel_desc(KNAME, 256, 102, 256)
    open(fn, "w").write(txt)
    print(fn, len(txt), "bytes,", txt.count("\n"), "lines")

if __name__ == "__main__":
    def pieces(start, per):
        d = {}; st = start
        for kind in "KV":
            for lo in range(0, 8, per):
                d.setdefault(st, []).append((kind, 0, lo, lo + per)); st += 1
        return d
    def mk(start, per, i1at):
        d = pieces(start, per)
        d.setdefault(i1at, []).extend([("K", 1), ("V", 1)])
        d.setdefault(19, []).extend([("K", 2), ("V", 2)])
        return d
    PF0 = 0
    O = ["rotq", "nopfq", "notlb"]
    KSCHED = mk(12, 4, 18)
    TAB = None
    build("v7.s", False, O + ["dot2"]); build("v7_st.s", True, O + ["dot2"])
    D = O + ["dot2", "split0"]
    build("v7.s", False, D); build("v7_st.s", True, D)
    build("z_late.s", False, D)
    RAMP = 2; build("z_rp2.s", False, D); RAMP = 0
    KS0 = dict(KSCHED)
    KSCHED = {2: [("K", 0)], 5: [("V", 0)], 8: [("K", 1)], 11: [("V", 1)], 16: [("K", 2)], 17: [("V", 2)], 18: [("K", 3), ("V", 3)]}
    FIRST_RULE = 2
    build("z_early.s", False, D)
    KSCHED = KS0; FIRST_RULE = 1
```

```python
import sys, struct
from asmlib import *
import hazard
from sched import Item, schedule, auto_lgkm, model_cycles

def f32(x): return "0x%08x" % struct.unpack("<I", struct.pack("<f", x))[0]
C_SCALE = 1.4426950408889634 / (128 ** 0.5)

PAIR = 35840
KGRP, VGRP = 1088, 1152
VOFF = 16 * KGRP
WBASE = 2 * PAIR
XBASE = WBASE + 4 * 16384
XSLOT = 12288
EXCH = 3 * PAIR
LDS_BYTES = 163840
PART = 108 * 1024
WS_PART = 1 << 20
WS_FLAG = 1 << 19
KNAME = 'standalone__gqa_block_cached__near_ridge_kernel'
OPT = set()
STAMP = False

sK, sV, sX, sWQ, sWO, sP = 20, 24, 28, 32, 36, 40
sWAVE, sB, sH, sLW = 44, 45, 46, 47
sT0, sT1, sT2, sT3 = 48, 49, 50, 51
sLWK, sLW3072, sLWV, sLW4096 = 52, 53, 59, 66
sTHR, sCNT, sDK, sNEG, sSLOT = 54, 55, 56, 57, 58
sSTAMP = 60
sTM = 62
sQI, sRH = 64, 65
sXCD, sIDX = 67, 68
sPF = 72
sPF2 = 76
sFL = 8
sPB = 4
sOUT = 12
def srd(b): return "s[%d:%d]" % (b, b + 3)
def vr(b, n=1): return "v%d" % b if n == 1 else "v[%d:%d]" % (b, b + n - 1)

def _stamp(a, idx, instr):
    if not STAMP: return
    a("%s s[%d:%d]" % (instr, sTM, sTM + 1)); a("s_waitcnt lgkmcnt(0)")
    if a.stamp_wave == 0: a("s_mov_b32 s%d, s%d" % (80 + idx, sTM))
    else: a("v_writelane_b32 v40, s%d, %d" % (sTM, idx))
def stamp(a, idx, cyc=None):
    _stamp(a, idx, "s_memrealtime")
    if cyc is not None: _stamp(a, cyc, "s_memtime")
DBG_WG = 37
def stamp_flush(a):
    if not STAMP: return
    if "dbg" in OPT:
        sk = a.label("Ldbgs")
        a("s_cmp_lg_u32 s2, %d" % DBG_WG); a("s_cbranch_scc1 %s" % sk)
        a("s_cmp_lg_u32 s%d, %d" % (sWAVE, a.stamp_wave)); a("s_cbranch_scc1 %s" % sk)
        a("v_mov_b32 v1, 0")
        if a.stamp_wave == 0:
            for dw, (j, j0) in zip((1, 2, 3, 5, 6, 7, 9, 10, 11), ((1, 0), (2, 0), (3, 0), (4, 0), (11, 10), (12, 11), (13, 12), (14, 13), (7, 6))):
                a("s_sub_u32 s%d, s%d, s%d" % (sT0, 80 + j, 80 + j0)); a("v_mov_b32 v2, s%d" % sT0); a("global_store_dword v1, v2, s[16:17] offset:%d" % (4 * dw))
        else:
            a("v_readlane_b32 s%d, v40, 15" % sT0); a("v_readlane_b32 s%d, v40, 16" % sT1); a("s_nop 3"); a("s_sub_u32 s%d, s%d, s%d" % (sT0, sT0, sT1)); a("v_mov_b32 v2, s%d" % sT0)
            a("global_store_dword v1, v2, s[16:17] offset:52")
            a("v_readlane_b32 s%d, v40, 36" % sT0); a("s_nop 3"); a("s_sub_u32 s%d, s%d, s%d" % (sT0, sT0, sT1)); a("v_mov_b32 v2, s%d" % sT0)
            a("global_store_dword v1, v2, s[16:17] offset:56")
        a("%s:" % sk)
        return
    sk = a.label("Lst")
    a("s_cmp_lg_u32 s%d, %d" % (sWAVE, a.stamp_wave)); a("s_cbranch_scc1 %s" % sk)
    if a.stamp_wave == 0:
        a("v_mov_b32 v1, 0")
        for i in range(16):
            if i in (8, 9, 15): continue
            a("v_mov_b32 v2, s%d" % (80 + i)); a("global_store_dword v1, v2, s[%d:%d] offset:%d" % (sSTAMP, sSTAMP + 1, 4 * i))
    else:
        a("v_and_b32 v2, 63, v0"); a("v_lshlrev_b32 v3, 2, v2")
        a("v_cmp_lt_u32 vcc, 14, v2"); a("v_cmp_eq_u32 s[96:97], 8, v2"); a("s_or_b64 vcc, vcc, s[96:97]"); a("v_cmp_eq_u32 s[96:97], 9, v2"); a("s_or_b64 vcc, vcc, s[96:97]")
        a("s_and_saveexec_b64 s[96:97], vcc")
        a("global_store_dword v3, v40, s[%d:%d]" % (sSTAMP, sSTAMP + 1))
        a("s_mov_b64 exec, s[96:97]")
    a("%s:" % sk)

def common_prologue(a, endlab, nwg):
    if STAMP: a("s_memrealtime s[78:79]")
    a("s_cmp_ge_u32 s2, %d" % nwg); a("s_cbranch_scc1 %s" % endlab)
    a("s_load_dwordx8 s[4:11], s[0:1], 0")
    a("s_load_dwordx4 s[12:15], s[0:1], 32")
    a("s_load_dwordx4 s[16:19], s[0:1], 48")
    a("v_lshrrev_b32 v1, 6, v0")
    a("s_nop 0")
    a("v_readfirstlane_b32 s%d, v1" % sWAVE)
    a("s_waitcnt lgkmcnt(0)")

class VQ:
    def __init__(s): s.q = []
    def issue(s, tag, n=1): s.q += [tag] * n
    def wait(s, tags):
        idx = [i for i, t in enumerate(s.q) if t in tags]
        if not idx: return None
        last = max(idx); n = len(s.q) - 1 - last
        s.q = s.q[last + 1:]
        return min(n, 63)

KV_FLAGS = " nt"
W_FLAGS = ""
O_FLAGS = ""
P_FLAGS = " sc0 sc1"


def gen_loader(a):
    a("s_sub_u32 s%d, s%d, 4" % (sLW, sWAVE))
    a("v_and_b32 v1, 63, v0")
    if STAMP: a("v_mov_b32 v40, 0")
    a("s_cmp_ge_u32 s%d, 2" % sLW); a("s_cbranch_scc1 L_kvloader")
    gen_wloader(a)
    a("L_kvloader:")
    gen_kvloader(a)

def mk_bar(a, q, trace_base=None):
    def bar(tags):
        n = q.wait(tags) if tags else None
        if n is not None and "nowait" not in OPT: a("s_waitcnt vmcnt(%d)" % n)
        if "trace" in OPT and bar.n < 48 and trace_base is not None: stamp(a, 16 + bar.n)
        a("s_barrier")
        bar.n += 1
    bar.n = 0
    return bar

def dma(a, vreg, srdb, soff, imm, flags):
    if "noload" in OPT: return
    a("buffer_load_dwordx4 v%d, %s, s%d offen offset:%d%s lds" % (vreg, srd(srdb), soff, imm, flags))

def emit_pf(a, chunks, lane=1):
    if not chunks: return
    sk = a.label("Lpfq"); skx = a.label("Lpfx")
    a("s_cmp_ge_u32 s%d, 28" % sIDX); a("s_cbranch_scc1 %s" % sk)
    a("s_cmp_ge_u32 s%d, 16" % sIDX); a("s_cbranch_scc1 %s" % skx)
    a("v_lshrrev_b32 v30, 4, v%d" % lane); a("v_and_b32 v31, 15, v%d" % lane)
    a("s_lshl_b32 s%d, s%d, 2" % (sT0, sIDX)); a("v_add_u32 v30, s%d, v30" % sT0); a("v_lshlrev_b32 v30, 13, v30"); a("v_lshlrev_b32 v31, 7, v31"); a("v_add_u32 v30, v30, v31")
    for cp in chunks:
        if isinstance(cp, int): a("s_mov_b32 s%d, %d" % (sT0, cp * 64 * 8192))
        else: a("s_lshl_b32 s%d, s%d, 19" % (sT0, cp[0])); a("s_add_u32 s%d, s%d, %d" % (sT0, sT0, cp[1] * 64 * 8192))
        a("buffer_load_dword v32, v30, %s, s%d offen" % (srd(sPF), sT0))
    a("s_branch %s" % sk)
    a("%s:" % skx)
    a("s_sub_u32 s%d, s%d, 16" % (sT0, sIDX)); a("s_lshl_b32 s%d, s%d, 6" % (sT0, sT0)); a("v_add_u32 v30, s%d, v%d" % (sT0, lane)); a("v_mul_u32_u24 v30, 1152, v30")
    for cp in chunks:
        if isinstance(cp, int): a("s_mov_b32 s%d, %d" % (sT0, cp * 128))
        else: a("s_lshl_b32 s%d, s%d, 7" % (sT0, cp[0])); a("s_add_u32 s%d, s%d, %d" % (sT0, sT0, cp[1] * 128))
        a("buffer_load_dword v32, v30, %s, s%d offen" % (srd(sPF2), sT0))
    a("%s:" % sk)

def code_prefetch(a, lane=1):
    if "nocpf" in OPT: return
    lab = a.label("Lcpf")
    a("s_getpc_b64 s[94:95]")
    a("%s:" % lab)
    a("s_sub_u32 s94, s94, (%s - %s)" % (lab, KNAME)); a("s_subb_u32 s95, s95, 0")
    a("s_lshl_b32 s%d, s%d, 11" % (sT0, sIDX))
    a("v_and_b32 v34, 15, v%d" % lane); a("v_lshlrev_b32 v34, 7, v34"); a("v_add_u32 v34, s%d, v34" % sT0)
    a("v_min_u32 v34, (L_k1_end - %s), v34" % KNAME)
    a("global_load_dword v35, v34, s[94:95]")

def attn_kv4(a, is_w, iss_O=None, cpf=None):
    vK4, vV4 = 18, 19
    sL4, sMK, sMV, sTK, sKS = 86, 88, 89, 87, 90
    a("s_sub_u32 s%d, s%d, 4" % (sL4, sWAVE))
    a("v_lshrrev_b32 v2, 4, v1"); a("v_and_b32 v3, 15, v1")
    a("s_lshl_b32 s%d, s%d, 12" % (sT0, sL4)); a("v_lshlrev_b32 v4, 8, v2"); a("v_add_u32 v4, s%d, v4" % sT0)
    a("v_xor_b32 v5, v2, v3"); a("v_lshlrev_b32 v5, 4, v5"); a("v_add_u32 v%d, v4, v5" % vK4)
    a("v_lshlrev_b32 v5, 1, v2"); a("v_xor_b32 v5, v5, v3"); a("v_lshlrev_b32 v5, 4, v5"); a("v_add_u32 v%d, v4, v5" % vV4)
    a("s_mul_i32 s%d, s%d, %d" % (sMK, sL4, 4 * KGRP)); a("s_mul_i32 s%d, s%d, %d" % (sMV, sL4, 4 * VGRP)); a("s_add_u32 s%d, s%d, %d" % (sMV, sMV, VOFF))
    a("s_mov_b32 s%d, %d" % (sTK, 3 * 16384)); a("s_mov_b32 s%d, %d" % (sKS, 3 * PAIR))
    def w(n):
        if "nowait" not in OPT: a("s_waitcnt vmcnt(%d)" % n)
    def item():
        a("s_add_u32 s%d, s%d, s%d" % (sT1, sMK, sKS)); a("s_add_u32 s%d, s%d, s%d" % (sT2, sMV, sKS))
        for isK in (True, False):
            grp = KGRP if isK else VGRP
            for ii in range(4):
                a("s_add_u32 m0, s%d, %d" % (sT1 if isK else sT2, ii * (grp - 1024))); a("s_nop 0")
                dma(a, vK4 if isK else vV4, sK if isK else sV, sTK, ii * 1024, KV_FLAGS)
        a("s_add_u32 s%d, s%d, 16384" % (sTK, sTK))
        a("s_add_u32 s%d, s%d, %d" % (sKS, sKS, PAIR)); a("s_cmp_eq_u32 s%d, %d" % (sKS, 4 * PAIR)); a("s_cselect_b32 s%d, 0, s%d" % (sKS, sKS))
    if not is_w: w(16)
    a("s_barrier")
    item()
    lab = a.label("Lkv4"); a("s_mov_b32 s%d, 2" % sCNT); a("%s:" % lab)
    w(8)
    a("s_barrier")
    item()
    if is_w:
        sk = a.label("Lc4"); a("s_cmp_lg_u32 s%d, %d" % (sCNT, CPF_AT)); a("s_cbranch_scc1 %s" % sk); cpf(); a("%s:" % sk)
    a("s_add_u32 s%d, s%d, 1" % (sCNT, sCNT)); a("s_cmp_lt_u32 s%d, 14" % sCNT); a("s_cbranch_scc1 %s" % lab)
    w(8); a("s_barrier")
    if is_w: iss_O()
    w(16 if is_w else 0); a("s_barrier")
    if is_w: iss_O()
    if is_w: w(16)
    a("s_barrier")
    if is_w: iss_O()

def gen_wloader(a):
    vW, vX, vO = 10, 14, 16
    a.stamp_wave = 4
    sA, sBb = sLWK, sLWV
    a("v_lshrrev_b32 v6, 5, v1"); a("v_and_b32 v7, 31, v1")
    a("s_lshl_b32 s%d, s%d, 17" % (sT1, sLW))
    a("v_lshlrev_b32 v8, 13, v6"); a("v_add_u32 v8, s%d, v8" % sT1)
    for var in range(4):
        a("v_add_u32 v5, %d, v6" % (2 * (var & 1) + 4 * (var >> 1))); a("v_lshlrev_b32 v5, 1, v5"); a("v_xor_b32 v5, v5, v7")
        a("v_lshlrev_b32 v5, 4, v5"); a("v_add_u32 v%d, v8, v5" % (vW + var))
    a("v_lshrrev_b32 v6, 3, v1"); a("v_and_b32 v7, 7, v1")
    a("s_mul_i32 s%d, s%d, 48" % (sT1, sLW)); a("v_add_u32 v8, s%d, v6" % sT1); a("v_mul_u32_u24 v8, 1152, v8")
    a("v_lshrrev_b32 v9, 1, v6")
    for i in range(2):
        a("v_add_u32 v5, %d, v9" % (4 * i)); a("v_xor_b32 v5, v5, v7"); a("v_lshlrev_b32 v5, 4, v5"); a("v_add_u32 v%d, v8, v5" % (vX + i))
    a("v_mul_u32_u24 v8, 1152, v6")
    a("v_and_b32 v5, 3, v9"); a("v_lshlrev_b32 v5, 1, v5"); a("v_xor_b32 v5, v5, v7"); a("v_lshlrev_b32 v5, 4, v5"); a("v_add_u32 v%d, v8, v5" % vO)
    a("s_lshl_b32 s%d, s%d, 13" % (sA, sLW))
    a("s_mul_i32 s%d, s%d, 6144" % (sBb, sLW))
    a("s_lshl_b32 s%d, s%d, 14" % (sLW4096, sLW))
    a("s_mul_i32 s%d, s%d, %d" % (sLW3072, sLW, 128 * 1152))
    sWK, sXK, sOK = 98, 99, 100
    sWS, sXS, sOS = 93, 92, 91
    A_, SI, B_, SJ = ROTQ
    a("s_and_b32 s%d, s%d, 7" % (sT0, sIDX)); a("s_lshr_b32 s%d, s%d, %d" % (sT0, sT0, SI)); a("s_mul_i32 s%d, s%d, %d" % (sT0, sT0, A_))
    a("s_lshr_b32 s%d, s%d, %d" % (sT1, sIDX, 3 + SJ)); a("s_mul_i32 s%d, s%d, %d" % (sT1, sT1, B_)); a("s_add_u32 s%d, s%d, s%d" % (sT0, sT0, sT1))
    for _ in range(2): a("s_cmp_ge_u32 s%d, 9" % sT0); a("s_cselect_b32 s%d, 9, 0" % sT1); a("s_sub_u32 s%d, s%d, s%d" % (sT0, sT0, sT1))
    a("s_lshl_b32 s%d, s%d, 19" % (sWK, sT0)); a("s_lshl_b32 s%d, s%d, 7" % (sXK, sT0))
    a("s_and_b32 s%d, s%d, 7" % (sT0, sB)); a("s_lshl_b32 s%d, s%d, 7" % (sOK, sT0))
    a("s_mov_b32 s%d, %d" % (sWS, 2 * 16384)); a("s_mov_b32 s%d, 0" % sXS); a("s_mov_b32 s%d, 0" % sOS)
    a("s_add_u32 s%d, s%d, %d" % (sA, sA, WBASE)); a("s_add_u32 s%d, s%d, %d" % (sBb, sBb, XBASE))
    def adv(reg, step, wrap):
        a("s_add_u32 s%d, s%d, %d" % (reg, reg, step)); a("s_cmp_eq_u32 s%d, %d" % (reg, wrap)); a("s_cselect_b32 s%d, 0, s%d" % (reg, reg))
    def iss_W():
        a("s_add_u32 m0, s%d, s%d" % (sA, sWS))
        for ii in range(8):
            if ii == 4: a("s_add_u32 m0, m0, 4096")
            a("s_add_u32 s%d, s%d, %d" % (sT0, sWK, 16384 * ii - (ii & 3) * 1024))
            dma(a, vW + (ii & 1) + 2 * (ii >> 2), sWQ, sT0, (ii & 3) * 1024, W_FLAGS)
        adv(sWK, 262144, 18 * 262144); adv(sWS, 16384, 65536)
    def iss_X():
        a("s_add_u32 m0, s%d, s%d" % (sBb, sXS))
        for ii in range(6):
            if ii == 4: a("s_add_u32 m0, m0, 4096")
            a("s_add_u32 s%d, s%d, %d" % (sT0, sXK, 9216 * ii - (ii & 3) * 1024))
            dma(a, vX + (ii & 1), sX, sT0, (ii & 3) * 1024, W_FLAGS)
        adv(sXK, 128, 9 * 128); a("s_xor_b32 s%d, s%d, %d" % (sXS, sXS, XSLOT))
    def iss_O():
        a("s_add_u32 s%d, s%d, s%d" % (sT1, sLW3072, sOK))
        a("s_add_u32 m0, s%d, s%d" % (sLW4096, sOS))
        for ii in range(16):
            if ii % 4 == 0 and ii: a("s_add_u32 m0, m0, 4096")
            a("s_add_u32 s%d, s%d, %d" % (sT0, sT1, 9216 * ii - (ii & 3) * 1024))
            dma(a, vO, sWO, sT0, (ii & 3) * 1024, O_FLAGS)
        adv(sOK, 128, 9 * 128); adv(sOS, PAIR, 4 * PAIR)
    tr = [16]
    def bar(w=None):
        if w is not None and "nowait" not in OPT: a("s_waitcnt vmcnt(%d)" % w)
        a("s_barrier")
    def loop(n, body, name):
        lab = a.label(name)
        a("s_mov_b32 s%d, 0" % sCNT); a("%s:" % lab)
        body()
        a("s_add_u32 s%d, s%d, 1" % (sCNT, sCNT)); a("s_cmp_lt_u32 s%d, %d" % (sCNT, n)); a("s_cbranch_scc1 %s" % lab)
    if "look2" not in OPT:
        if "split0" in OPT:
            li = a.label("Lwi"); sk0 = a.label("Lwi0")
            a("s_mov_b32 s%d, 0" % sCNT); a("%s:" % li)
            iss_X(); iss_W(); iss_W()
            a("s_cmp_lg_u32 s%d, 0" % sCNT); a("s_cbranch_scc1 %s" % sk0)
            bar(8)
            a("s_mov_b32 s%d, 1" % sCNT); a("s_branch %s" % li)
            a("%s:" % sk0)
        else:
            loop(2, lambda: (iss_X(), iss_W(), iss_W()), "Lwi")
            bar(30)
        bar(22)
        iss_W()
        def qbody():
            bar(16)
            iss_X(); iss_W()
            bar(22)
            sk = a.label("Lwl"); a("s_cmp_eq_u32 s%d, 6" % sCNT); a("s_cbranch_scc1 %s" % sk)
            iss_W()
            a("%s:" % sk)
        loop(7, qbody, "Lwq")
        bar(8)
        bar(0)
    else:
        if STAMP: stamp(a, 17)
        iss_X(); iss_W(); iss_W()
        if STAMP: stamp(a, 18)
        def qbody():
            bar(8)
            iss_X(); iss_W()
            bar(14)
            iss_W()
        loop(8, qbody, "Lwq")
        bar(8)
        bar(0)
    bar(None); bar(None)
    stamp(a, 8)
    def cpf():
        sk = a.label("Lcp"); a("s_cmp_lg_u32 s%d, 1" % sLW); a("s_cbranch_scc1 %s" % sk); code_prefetch(a); a("%s:" % sk)
    if "kv4" in OPT: attn_kv4(a, True, iss_O, cpf)
    else:
        loop(CPF_AT, lambda: bar(None), "Lwa")
        cpf()
        loop(13 - CPF_AT, lambda: bar(None), "Lwb")
        loop(2, lambda: (bar(None), iss_O()), "Lwo")
        bar(16)
        iss_O()
    a("s_barrier"); a("s_barrier")
    loop(6, lambda: (bar(16), iss_O()), "Lwp")
    bar(0)
    a("s_barrier"); a("s_barrier"); a("s_barrier")
    stamp(a, 9)
    a("s_add_u32 s%d, s%d, 4" % (sCNT, sLW))
    a("s_branch L_reduce")

def gen_kvloader(a):
    vK, vV = 10, 11
    a.stamp_wave = -1
    a("s_sub_u32 s%d, s%d, 2" % (sLW, sLW))
    a("v_lshrrev_b32 v2, 4, v1"); a("v_and_b32 v3, 15, v1")
    a("s_lshl_b32 s%d, s%d, 13" % (sT0, sLW))
    a("v_lshlrev_b32 v4, 8, v2"); a("v_add_u32 v4, s%d, v4" % sT0)
    a("v_xor_b32 v5, v2, v3"); a("v_lshlrev_b32 v5, 4, v5"); a("v_add_u32 v%d, v4, v5" % vK)
    a("v_lshlrev_b32 v5, 1, v2"); a("v_xor_b32 v5, v5, v3"); a("v_lshlrev_b32 v5, 4, v5"); a("v_add_u32 v%d, v4, v5" % vV)
    a("s_mul_i32 s%d, s%d, %d" % (sLWK, sLW, 8 * KGRP)); a("s_mul_i32 s%d, s%d, %d" % (sLWV, sLW, 8 * VGRP))
    sROT = 92
    if "krot" in OPT:
        a("s_mul_i32 s%d, s%d, %d" % (sROT, sXCD, KROT[0])); a("s_mul_i32 s%d, s%d, %d" % (sT0, sIDX, KROT[1])); a("s_add_u32 s%d, s%d, s%d" % (sROT, sROT, sT0))
    q = VQ(); bar = mk_bar(a, q, None)
    def iss(T, isK, lo=0, hi=8):
        for ii in range(lo, hi):
            if "krot" in OPT:
                if ii == lo: a("s_add_u32 s%d, s%d, %d" % (sT2, sROT, T)); a("s_and_b32 s%d, s%d, 15" % (sT2, sT2)); a("s_lshl_b32 s%d, s%d, 14" % (sT2, sT2))
                if ii % 4 == 0 or ii == lo: a("s_add_u32 s%d, s%d, %d" % (sT0, sT2, (ii >> 2) * 4096))
            elif ii % 4 == 0 or ii == lo: a("s_mov_b32 s%d, %d" % (sT0, T * 16384 + (ii >> 2) * 4096))
            grp = KGRP if isK else VGRP
            a("s_add_u32 m0, s%d, %d" % (sLWK if isK else sLWV, (T % 4) * PAIR + (0 if isK else VOFF) + ii * grp - (ii & 3) * 1024))
            if ii % 4: a("s_nop 0")
            else: a("s_nop 0")
            dma(a, vK if isK else vV, sK if isK else sV, sT0, (ii & 3) * 1024, KV_FLAGS)
        q.issue("I%d" % T, hi - lo)
    def prefetch_q():
        sk = a.label("Lpfq"); skx = a.label("Lpfx")
        a("s_cmp_lg_u32 s%d, %d" % (sLW, PF_WAVE)); a("s_cbranch_scc1 %s" % sk)
        a("s_cmp_ge_u32 s%d, 28" % sIDX); a("s_cbranch_scc1 %s" % sk)
        a("s_cmp_ge_u32 s%d, 16" % sIDX); a("s_cbranch_scc1 %s" % skx)
        a("s_lshl_b32 s%d, s%d, 2" % (sT0, sIDX)); a("v_add_u32 v5, s%d, v2" % sT0); a("v_lshlrev_b32 v5, 13, v5"); a("v_lshlrev_b32 v6, 7, v3"); a("v_add_u32 v5, v5, v6")
        for cp in range(PF_FIRST, 9):
            a("s_mov_b32 s%d, %d" % (sT0, cp * 64 * 8192)); a("buffer_load_dword v%d, v5, %s, s%d offen" % (20 + cp, srd(sPF), sT0))
        a("s_branch %s" % sk)
        a("%s:" % skx)
        a("s_sub_u32 s%d, s%d, 16" % (sT0, sIDX)); a("s_lshl_b32 s%d, s%d, 6" % (sT0, sT0)); a("v_add_u32 v5, s%d, v1" % sT0); a("v_mul_u32_u24 v5, 1152, v5")
        for cp in range(PF_FIRST, 9):
            a("s_mov_b32 s%d, %d" % (sT0, cp * 128)); a("buffer_load_dword v%d, v5, %s, s%d offen" % (20 + cp, srd(sPF2), sT0))
        a("%s:" % sk)
    def clear_flags():
        sk = a.label("Lclr")
        a("s_cmp_lg_u32 s%d, 1" % sLW); a("s_cbranch_scc1 %s" % sk)
        a("v_mov_b32 v20, 0"); a("v_mov_b32 v21, 0")
        a("s_lshl_b32 s%d, s%d, 3" % (sT0, sH))
        a("v_lshlrev_b32 v5, 7, v1"); a("v_add_u32 v5, s%d, v5" % sT0); a("v_mov_b32 v7, 0x40000000"); a("v_cmp_gt_u32 vcc, 9, v1"); a("s_nop 1"); a("v_cndmask_b32 v5, v7, v5, vcc")
        a("buffer_store_dwordx2 v[20:21], v5, %s, 0 offen sc0 sc1" % srd(sFL))
        a("s_waitcnt vmcnt(0)")
        a("s_lshl_b32 s%d, s%d, 4" % (sT0, sB)); a("v_mov_b32 v5, s%d" % sT0); a("v_mov_b32 v6, 1")
        a("s_mov_b64 s[96:97], exec"); a("s_mov_b64 exec, 1")
        a("global_atomic_add v5, v6, s[16:17] sc1")
        a("s_mov_b64 exec, s[96:97]")
        a("%s:" % sk)
    if "cpf0" in OPT:
        sk = a.label("Lcp0"); a("s_cmp_lg_u32 s%d, 1" % sLW); a("s_cbranch_scc1 %s" % sk); code_prefetch(a); a("%s:" % sk)
    if "notlb" not in OPT:
        sk = a.label("Ltlb")
        a("s_cmp_lg_u32 s%d, 0" % sLW); a("s_cbranch_scc1 %s" % sk)
        a("v_mov_b32 v5, 0")
        for i, sr in enumerate((sK, sV, sWO, sP, sOUT)): a("buffer_load_dword v%d, v5, %s, 0 offen nt" % (33 + i, srd(sr)))
        a("v_mul_u32_u24 v5, %d, v1" % (PART // 8)); a("v_lshlrev_b32 v5, 3, v5"); a("v_mov_b32 v7, 0x40000000"); a("v_cmp_gt_u32 vcc, 16, v1"); a("s_nop 1"); a("v_cndmask_b32 v5, v7, v5, vcc")
        a("buffer_load_dword v38, v5, %s, 0 offen nt" % srd(sPB))
        a("%s:" % sk)
    clear_flags()
    if "nopfq" not in OPT and PF_AT < 0: prefetch_q()
    for s in range(18):
        bar(None)
        if "nopfq" not in OPT and PF_AT == s: prefetch_q()
        for e in KSCHED.get(s, []): iss(e[1], e[0] == "K", *e[2:])
    bar(None)
    for e in KSCHED.get(18, []): iss(e[1], e[0] == "K", *e[2:])
    bar(["I0", "I1"] if "wait01" in OPT else ["I0"])
    for e in KSCHED.get(19, []): iss(e[1], e[0] == "K", *e[2:])
    if "kv4" in OPT:
        assert FIRST_RULE == 1
        attn_kv4(a, False)
    else:
        sTK, sKS = 93, 91
        def item_dyn():
            a("s_add_u32 s%d, s%d, s%d" % (sT1, sLWK, sKS)); a("s_add_u32 s%d, s%d, s%d" % (sT2, sLWV, sKS))
            for isK in (True, False):
                for ii in range(8):
                    if ii % 4 == 0: a("s_add_u32 s%d, s%d, %d" % (sT0, sTK, (ii >> 2) * 4096))
                    grp = KGRP if isK else VGRP
                    a("s_add_u32 m0, s%d, %d" % (sT1 if isK else sT2, (0 if isK else VOFF) + ii * grp - (ii & 3) * 1024)); a("s_nop 0")
                    dma(a, vK if isK else vV, sK if isK else sV, sT0, (ii & 3) * 1024, KV_FLAGS)
            a("s_add_u32 s%d, s%d, 16384" % (sTK, sTK))
            a("s_add_u32 s%d, s%d, %d" % (sKS, sKS, PAIR)); a("s_cmp_eq_u32 s%d, %d" % (sKS, 4 * PAIR)); a("s_cselect_b32 s%d, 0, s%d" % (sKS, sKS))
        def wv(n):
            if "nowait" not in OPT: a("s_waitcnt vmcnt(%d)" % n)
        if LAG:
            a("s_mov_b32 s%d, %d" % (sTK, 2 * 16384)); a("s_mov_b32 s%d, %d" % (sKS, 2 * PAIR))
            lab = a.label("Lkvl"); a("s_mov_b32 s%d, 1" % sCNT); a("%s:" % lab)
            wv(0); a("s_barrier"); item_dyn()
            a("s_add_u32 s%d, s%d, 1" % (sCNT, sCNT)); a("s_cmp_le_u32 s%d, %d" % (sCNT, LAG)); a("s_cbranch_scc1 %s" % lab)
            item_dyn()
            first = LAG + 1
        else:
            if FIRST_RULE == 2:
                n1 = q.wait(["I1"])
                if n1 is not None: wv(n1)
                a("s_barrier")
            a("s_mov_b32 s%d, %d" % (sTK, (FIRST_RULE + 2) * 16384)); a("s_mov_b32 s%d, %d" % (sKS, ((FIRST_RULE + 2) % 4) * PAIR))
            first = FIRST_RULE
        lab = a.label("Lkv"); a("s_mov_b32 s%d, %d" % (sCNT, first - 1)); a("%s:" % lab)
        wv(16)
        a("s_barrier")
        item_dyn()
        a("s_add_u32 s%d, s%d, 1" % (sCNT, sCNT)); a("s_cmp_lt_u32 s%d, 13" % sCNT); a("s_cbranch_scc1 %s" % lab)
        wv(16)
        a("s_barrier")
        wv(0)
        a("s_barrier")
        a("s_barrier")
    if "nored" not in OPT:
        sk = a.label("Ldbg"); lp = a.label("Ldbgw")
        a("s_cmp_lg_u32 s%d, 0" % sLW); a("s_cbranch_scc1 %s" % sk)
        a("s_lshl_b32 s%d, s%d, 4" % (sT0, sB)); a("v_mov_b32 v10, s%d" % sT0); a("s_mov_b32 s%d, 0" % sT3)
        a("%s:" % lp)
        a("global_load_dword v12, v10, s[16:17] sc1"); a("s_waitcnt vmcnt(0)"); a("v_readfirstlane_b32 s%d, v12" % sT1)
        a("s_add_u32 s%d, s%d, 1" % (sT3, sT3)); a("s_cmp_gt_u32 s%d, %d" % (sT3, SPIN_MAX)); a("s_cbranch_scc1 %s" % sk)
        a("s_cmp_lt_u32 s%d, 16" % sT1); a("s_cbranch_scc1 %s" % lp)
        a("%s:" % sk)
    a("s_barrier"); a("s_barrier")
    vPR, vPO, vF, vOne = 20, 24, 25, 26
    sCH = 93
    a("v_lshlrev_b32 v%d, 4, v1" % vPO)
    a("s_mul_i32 s%d, s%d, 6144" % (sT0, sLW)); a("s_add_u32 s%d, s%d, %d" % (sT0, sT0, PB0)); a("v_add_u32 v%d, s%d, v%d" % (vPR, sT0, vPO)); a("v_add_u32 v%d, 3072, v%d" % (vPR + 1, vPR))
    a("s_mul_i32 s%d, s%d, %d" % (sT0, sLW, 2 * PAIR)); a("s_add_u32 s%d, s%d, 32768" % (sT0, sT0)); a("v_add_u32 v%d, s%d, v%d" % (vPR + 2, sT0, vPO)); a("v_add_u32 v%d, %d, v%d" % (vPR + 3, PAIR, vPR + 2))
    a("s_mul_i32 s%d, s%d, 6144" % (sT0, sLW)); a("v_add_u32 v%d, s%d, v%d" % (vPO, sT0, vPO))
    a("v_mov_b32 v%d, 1" % vOne)
    a("s_lshl_b32 s%d, s%d, 3" % (sT0, sH)); a("s_lshl_b32 s%d, s%d, 2" % (sT1, sLW)); a("s_add_u32 s%d, s%d, s%d" % (sT0, sT0, sT1))
    a("v_mov_b32 v%d, 0x40000000" % vF); a("s_nop 0"); a("v_writelane_b32 v%d, s%d, 0" % (vF, sT0))
    a("s_mov_b32 s%d, 0" % sCH)
    def flag_store(back):
        a("s_sub_u32 s%d, s%d, %d" % (sT0, sCH, back)); a("s_lshl_b32 s%d, s%d, 7" % (sT0, sT0))
        a("buffer_store_dword v%d, v%d, %s, s%d offen sc0 sc1" % (vOne, vF, srd(sFL), sT0))
    def turn(buf, guard):
        for w2 in range(2):
            for j in range(3): a("ds_read_b128 %s, v%d offset:%d" % (vr(64 + 32 * buf + 4 * (3 * w2 + j), 4), vPR + 2 * buf + w2, j * 1024))
        a("s_mul_i32 s%d, s%d, 12288" % (sT0, sCH))
        for i in range(6):
            a("s_waitcnt lgkmcnt(%d)" % (5 - i))
            if "nostore" not in OPT: a("buffer_store_dwordx4 %s, v%d, %s, s%d offen%s" % (vr(64 + 32 * buf + 4 * i, 4), vPO, srd(sP), sT0, P_FLAGS))
            if i < 5: a("s_add_u32 s%d, s%d, 1024" % (sT0, sT0))
        if "nored" not in OPT:
            sk = a.label("Lfl")
            if guard: a("s_cmp_lt_u32 s%d, 2" % sCH); a("s_cbranch_scc1 %s" % sk)
            a("s_waitcnt vmcnt(%d)" % FLW)
            flag_store(2)
            a("%s:" % sk)
        a("s_add_u32 s%d, s%d, 1" % (sCH, sCH))
    a("s_barrier")
    lab = a.label("Lsto"); a("%s:" % lab)
    a("s_barrier"); turn(0, True)
    a("s_barrier"); turn(1, True)
    a("s_cmp_lt_u32 s%d, 8" % sCH); a("s_cbranch_scc1 %s" % lab)
    a("s_barrier"); turn(0, False)
    if "nored" not in OPT:
        a("s_waitcnt vmcnt(7)"); flag_store(2)
        a("s_waitcnt vmcnt(1)"); flag_store(1)
    a("s_cmp_eq_u32 s%d, 0" % sLW); a("s_cselect_b32 s%d, 7, 6" % sCNT)
    a("s_branch L_reduce")

KSCHED = {2: [("K", 0)], 5: [("V", 0)], 8: [("K", 1)], 11: [("V", 1)], 16: [("K", 2)], 17: [("V", 2)]}

def gen_reducer(a):
    a("L_reduce:")
    if "nored" in OPT:
        a.stamp_wave = 4; stamp_flush(a); a("s_endpgm"); return
    rho = sCNT
    giveup = a.label("Lgiveup"); poll = a.label("Lpoll")
    a("s_mul_i32 s%d, s%d, 7" % (sT0, rho)); a("s_cmp_eq_u32 s%d, 7" % rho); a("s_cselect_b32 s%d, 48, s%d" % (sT0, sT0))
    a("s_mul_hi_u32 s%d, s%d, %d" % (sT2, sT0, (2**32 + 5) // 6))
    a("s_cmp_ge_u32 s%d, 6" % rho); a("s_cselect_b32 s%d, 48, 56" % sTASK2); a("s_cselect_b32 s%d, 0, -1" % sCNT2)
    a("v_lshlrev_b32 v9, 2, v1"); a("v_mov_b32 v7, 0x40000000")
    a("s_lshl_b32 s%d, s%d, 7" % (sT2, sT2))
    a("buffer_load_dword v11, v9, %s, s%d offen sc1" % (srd(sFL), sT2))
    a("v_lshrrev_b32 v2, 3, v1"); a("v_add_u32 v2, s%d, v2" % sT0)
    a("v_mul_u32_u24 v8, 10923, v2"); a("v_lshrrev_b32 v8, 16, v8")
    a("v_mul_u32_u24 v5, 6, v8"); a("v_sub_u32 v2, v2, v5")
    a("v_lshlrev_b32 v2, 3, v2"); a("v_and_b32 v5, 7, v1"); a("v_add_u32 v2, v2, v5")
    a("s_mul_i32 s%d, s%d, 48" % (sT1, sH)); a("v_add_u32 v2, s%d, v2" % sT1)
    a("v_mul_u32_u24 v3, 12288, v8"); a("v_lshlrev_b32 v5, 4, v2"); a("v_add_u32 v3, v3, v5")
    a("v_cmp_gt_u32 vcc, s%d, v1" % sTASK2); a("s_nop 1"); a("v_cndmask_b32 v3, v7, v3, vcc")
    a("v_lshrrev_b32 v4, 6, v2"); a("v_and_b32 v5, 63, v2")
    a("v_cmp_le_u32 s[96:97], 6, v4"); a("s_nop 1"); a("v_cndmask_b32 v6, 0, 1, s[96:97]")
    a("v_mul_u32_u24 v10, 6, v6"); a("v_sub_u32 v4, v4, v10")
    a("v_lshlrev_b32 v4, 4, v4"); a("v_and_b32 v10, 15, v5"); a("v_add_u32 v4, v4, v10"); a("v_mul_u32_u24 v4, 1152, v4")
    a("v_lshlrev_b32 v6, 6, v6"); a("v_lshrrev_b32 v5, 4, v5"); a("v_lshlrev_b32 v5, 3, v5"); a("v_add_u32 v4, v4, v6"); a("v_add_u32 v4, v4, v5")
    a("s_and_b32 s%d, s%d, 7" % (sT1, sB)); a("v_add_u32 v8, s%d, v8" % sT1)
    a("v_cmp_le_u32 s[96:97], 9, v8"); a("s_nop 1"); a("v_cndmask_b32 v6, 0, 9, s[96:97]"); a("v_sub_u32 v8, v8, v6"); a("v_lshlrev_b32 v8, 7, v8"); a("v_add_u32 v4, v4, v8")
    a("v_cndmask_b32 v4, v7, v4, vcc")
    a("s_mov_b32 s%d, 0" % sT3)
    a("s_branch %s_chk" % poll)
    a("%s:" % poll)
    a("buffer_load_dword v11, v9, %s, s%d offen sc1" % (srd(sFL), sT2))
    a("%s_chk:" % poll)
    a("s_waitcnt vmcnt(0)")
    a("v_cmp_eq_u32 vcc, 1, v11")
    a("s_add_u32 s%d, s%d, 1" % (sT3, sT3)); a("s_cmp_gt_u32 s%d, %d" % (sT3, SPIN_MAX)); a("s_cbranch_scc1 %s" % giveup)
    a("s_orn2_b32 vcc_hi, vcc_hi, s%d" % sCNT2)
    a("s_cmp_eq_u64 vcc, -1"); a("s_cbranch_scc0 %s" % poll)
    a("s_mov_b32 s%d, 0" % sT0)
    for h in range(16):
        a("buffer_load_dwordx4 v[%d:%d], v3, %s, s%d offen%s" % (64 + 4 * h, 67 + 4 * h, srd(sPB), sT0, R_FLAGS))
        if h < 15: a("s_add_u32 s%d, s%d, %d" % (sT0, sT0, PART))
    if "dot2" in OPT:
        a("v_mov_b32 v12, 0x00003f80"); a("v_mov_b32 v13, 0x3f800000")
        for r in range(8): a("v_mov_b32 v%d, 0" % (48 + r))
    for h in range(16):
        a("s_waitcnt vmcnt(%d)" % (15 - h))
        for r in range(4):
            src = 64 + 4 * h + r
            if "dot2" in OPT:
                a("v_dot2c_f32_bf16 v%d, v%d, v12" % (48 + 2 * r, src)); a("v_dot2c_f32_bf16 v%d, v%d, v13" % (49 + 2 * r, src))
            elif h == 0:
                a("v_lshlrev_b32 v%d, 16, v%d" % (48 + 2 * r, src)); a("v_and_b32 v%d, 0xffff0000, v%d" % (49 + 2 * r, src))
            else:
                a("v_lshlrev_b32 v12, 16, v%d" % src); a("v_and_b32 v13, 0xffff0000, v%d" % src)
                a("v_add_f32 v%d, v%d, v12" % (48 + 2 * r, 48 + 2 * r)); a("v_add_f32 v%d, v%d, v13" % (49 + 2 * r, 49 + 2 * r))
    for r in range(4): a("v_cvt_pk_bf16_f32 v%d, v%d, v%d" % (56 + r, 48 + 2 * r, 49 + 2 * r))
    a("buffer_store_dwordx2 v[56:57], v4, %s, 0 offen%s" % (srd(sOUT), OUT_FLAGS))
    a("buffer_store_dwordx2 v[58:59], v4, %s, 0 offen offset:32%s" % (srd(sOUT), OUT_FLAGS))
    a("%s:" % giveup)
    if STAMP:
        sk = a.label("Lnst"); a("s_cmp_lg_u32 s%d, 4" % sWAVE); a("s_cbranch_scc1 %s" % sk)
        a.stamp_wave = 4; stamp(a, 15); stamp_flush(a)
        a("%s:" % sk)
    a("s_endpgm")
R_FLAGS = " sc1"
OUT_FLAGS = ""
sTASK2 = 101
sCNT2 = 95
PB0 = 143360
SPIN_MAX = 200000
sWOP = 70

PF_O_AT = 10
PF_WAVE = 1
PF_FIRST = 4
PF_AT = 0
PF0 = 2
RAMP = 0
LAG = 0
RAMP_EVERY = 1
FLW = 12
STG_AT = 7
NSTG0 = 3
ROTQ = (1, 0, 2, 0)
KROT = (2, 1)
CPF_AT = 11
FIRST_RULE = 1
CMP_SLACK = 6
FLAG_DELAY = 4

def O_(j, db): return (j * 8 + db) * 4
def Q_(j, s): return 96 + (j * 4 + s) * 4
def KF(f): return 144 + 4 * f
def VF(db): return 176 + 4 * db
def S_(par): return 208 + 8 * par
def P_(par): return 224 + 4 * par
def N_(j): return 232 + 4 * j
def L_(j): return 244 + j
vKA, vVA, vT, vT2, vS, vLANE = 247, 248, 252, 253, 254, 255
MF = "v_mfma_f32_16x16x32_bf16"

def interleave(mfmas, fillers):
    out = list(fillers.get(-1, []))
    for i, m in enumerate(mfmas):
        out.append(m); out += fillers.get(i, [])
    return out
def spread(items, slots):
    d = {}; n = len(items)
    for i, it in enumerate(items): d.setdefault(slots[i * len(slots) // n], []).append(it)
    return d
def merge(*ds):
    o = {}
    for d in ds:
        for k, v in d.items(): o.setdefault(k, []).extend(v)
    return o

KORD = [(kb, s) for s in range(4) for kb in range(2)]
def k_read(kb, s, half, ad=None):
    return "ds_read_b128 %s, v%d offset:%d" % (vr(KF(kb * 4 + s), 4), vKA if ad is None else ad, half * 8 * KGRP + kb * 4 * KGRP + s * 64)
def v_reads(db, half):
    A, cc = divmod(db, 4)
    o = half * 8 * VGRP + A * 128
    return ["ds_read_b64_tr_b16 %s, v%d offset:%d" % (vr(VF(db), 2), vVA + cc, o), "ds_read_b64_tr_b16 %s, v%d offset:%d" % (vr(VF(db) + 2, 2), vVA + cc, o + 4 * VGRP)]

TAB = None
def hoist_waits(lines):
    out = []
    for l in lines:
        if l.startswith("s_waitcnt lgkmcnt") and out:
            n = int(l.split("(")[1].split(")")[0])
            k = len(out) - 1; jumped = 0; ok = False
            while k >= 0:
                x = out[k]
                if x.startswith("v_mfma"): ok = True; break
                if x.endswith(":") or x.startswith(("s_cbranch", "s_barrier", "s_waitcnt")): break
                if x.startswith("ds_"): jumped += 1
                k -= 1
            if ok and n - jumped >= 0:
                out.insert(k + 1, "s_waitcnt lgkmcnt(%d)" % (n - jumped)); continue
        out.append(l)
    return out

def gen_compute(a):
    rare = []
    a("v_and_b32 v%d, 63, v0" % vLANE)
    a("s_lshr_b32 s%d, s%d, 1" % (sQI, sWAVE)); a("s_and_b32 s%d, s%d, 1" % (sRH, sWAVE))
    g, rp, c, q = 240, 241, 242, 243
    a("v_lshrrev_b32 v%d, 4, v%d" % (g, vLANE)); a("v_bfe_u32 v%d, v%d, 2, 2" % (rp, vLANE)); a("v_and_b32 v%d, 3, v%d" % (c, vLANE)); a("v_and_b32 v%d, 15, v%d" % (q, vLANE))
    vWA, vXA = 232, 244
    t, t2 = vT, vT2
    a("v_lshlrev_b32 v%d, 3, v%d" % (t, g)); a("v_add_u32 v%d, v%d, v%d" % (t, t, rp)); a("v_lshlrev_b32 v%d, 9, v%d" % (t, t))
    a("v_and_b32 v%d, 1, v%d" % (t2, g)); a("v_lshlrev_b32 v%d, 2, v%d" % (t2, t2)); a("v_add_u32 v%d, v%d, v%d" % (t2, t2, rp)); a("v_lshlrev_b32 v%d, 5, v%d" % (t2, t2))
    a("v_add_u32 v%d, v%d, v%d" % (t, t, t2)); a("v_lshlrev_b32 v%d, 3, v%d" % (t2, c)); a("v_add_u32 v%d, v%d, v%d" % (t, t, t2))
    a("s_lshl_b32 s%d, s%d, 8" % (sT0, sQI)); a("s_add_u32 s%d, s%d, %d" % (sT0, sT0, WBASE)); a("v_add_u32 v%d, s%d, v%d" % (t, sT0, t))
    assert WBASE % 256 == 0 and XBASE % 128 == 0
    for db in range(8): a("v_xor_b32 v%d, %d, v%d" % (vWA + db, db * 32, t))
    a("s_mul_i32 s%d, s%d, %d" % (sT0, sRH, 48 * 128)); a("s_add_u32 s%d, s%d, %d" % (sT0, sT0, XBASE))
    a("v_lshrrev_b32 v%d, 1, v%d" % (t, q)); a("v_xor_b32 v%d, v%d, v%d" % (t, t, g)); a("v_lshlrev_b32 v%d, 4, v%d" % (t, t))
    a("v_lshlrev_b32 v%d, 7, v%d" % (t2, q)); a("v_add_u32 v%d, v%d, v%d" % (t, t, t2)); a("v_add_u32 v%d, s%d, v%d" % (vXA, sT0, t)); a("v_xor_b32 v%d, 64, v%d" % (vXA + 1, vXA))
    a("v_lshrrev_b32 v%d, 2, v%d" % (t, q)); a("v_mul_u32_u24 v%d, %d, v%d" % (t, KGRP, t))
    a("v_and_b32 v%d, 3, v%d" % (t2, q)); a("v_lshlrev_b32 v%d, 8, v%d" % (vKA, t2)); a("v_add_u32 v%d, v%d, v%d" % (t, t, vKA))
    a("v_xor_b32 v%d, v%d, v%d" % (t2, t2, g)); a("v_lshlrev_b32 v%d, 4, v%d" % (t2, t2)); a("v_add_u32 v%d, v%d, v%d" % (vKA, t, t2))
    a("v_mul_u32_u24 v%d, %d, v%d" % (t, VGRP, g)); a("v_lshlrev_b32 v%d, 8, v%d" % (t2, rp)); a("v_add_u32 v%d, v%d, v%d" % (t, t, t2))
    a("v_lshlrev_b32 v%d, 3, v%d" % (t2, c)); a("v_add_u32 v%d, v%d, v%d" % (t, t, t2)); a("v_add_u32 v%d, %d, v%d" % (t, VOFF, t))
    for cc in range(4):
        a("v_xor_b32 v%d, %d, v%d" % (t2, cc, rp)); a("v_lshlrev_b32 v%d, 5, v%d" % (t2, t2)); a("v_add_u32 v%d, v%d, v%d" % (vVA + cc, t, t2))
    stamp(a, 0, 10)

    def ABUF(buf, db): return 144 + 32 * buf + 4 * db
    def BBUF(buf, j): return 208 + 12 * buf + 4 * j
    def q_reads(s):
        buf = s & 1; wo = ((s + 2) % 4) * 16384; xo = ((s // 2) % 2) * XSLOT
        r = []
        for j in range(3): r.append("ds_read_b128 %s, v%d offset:%d" % (vr(BBUF(buf, j), 4), vXA + (s & 1), xo + j * 2048))
        for db in range(8):
            r.append("ds_read_b64_tr_b16 %s, v%d offset:%d" % (vr(ABUF(buf, db), 2), vWA + db, wo))
            r.append("ds_read_b64_tr_b16 %s, v%d offset:%d" % (vr(ABUF(buf, db) + 2, 2), vWA + db, wo + 2048))
        return r
    for r in range(0, 96, 2): a("v_mov_b64 %s, 0" % vr(r, 2))
    a("s_barrier")
    for x in q_reads(0): a(x)
    def q_stage(s, reads=True):
        buf = s & 1
        a("s_waitcnt lgkmcnt(0)")
        a("s_barrier")
        mf = []
        for db in range(8):
            for j in range(3):
                mf.append("%s %s, %s, %s, %s" % (MF, vr(O_(j, db), 4), vr(ABUF(buf, db), 4), vr(BBUF(buf, j), 4), vr(O_(j, db), 4)))
        rd = q_reads(s + 1) if reads else []
        for x in interleave(mf, spread(rd, list(range(0, 17))) if rd else {}): a(x)
    lq = a.label("Lq")
    a("s_mov_b32 s%d, 0" % sCNT); a("%s:" % lq)
    for s in range(4): q_stage(s)
    a("s_add_u32 s%d, s%d, 1" % (sCNT, sCNT)); a("s_cmp_lt_u32 s%d, 4" % sCNT); a("s_cbranch_scc1 %s" % lq)
    q_stage(16); q_stage(17, reads=False)
    stamp(a, 1, 11)
    a("s_nop 7")
    a("s_mov_b32 s%d, %s" % (sT0, f32(C_SCALE))); a("s_mov_b32 s%d, s%d" % (sT0 + 1, sT0))
    for j in range(3):
        for s in range(4):
            X, Y, D = O_(j, 2 * s), O_(j, 2 * s + 1), Q_(j, s)
            for r in range(0, 4, 2):
                a("v_pk_mul_f32 %s, %s, s[%d:%d]" % (vr(X + r, 2), vr(X + r, 2), sT0, sT0 + 1)); a("v_pk_mul_f32 %s, %s, s[%d:%d]" % (vr(Y + r, 2), vr(Y + r, 2), sT0, sT0 + 1))
            a("v_cvt_pk_bf16_f32 v%d, v%d, v%d" % (D + 0, X + 0, X + 1)); a("v_cvt_pk_bf16_f32 v%d, v%d, v%d" % (D + 1, X + 2, X + 3))
            a("v_cvt_pk_bf16_f32 v%d, v%d, v%d" % (D + 2, Y + 0, Y + 1)); a("v_cvt_pk_bf16_f32 v%d, v%d, v%d" % (D + 3, Y + 2, Y + 3))
            for r in range(0, 4, 2):
                a("v_mov_b64 %s, 0" % vr(X + r, 2)); a("v_mov_b64 %s, 0" % vr(Y + r, 2))
            a("v_permlane32_swap_b32 v%d, v%d" % (D + 0, D + 2)); a("v_permlane32_swap_b32 v%d, v%d" % (D + 1, D + 3))
            a("s_nop 1")
            a("v_permlane16_swap_b32 v%d, v%d" % (D + 0, D + 2)); a("v_permlane16_swap_b32 v%d, v%d" % (D + 1, D + 3))
    a("s_barrier")
    for kb, s_ in KORD: a(k_read(kb, s_, 0))
    a("s_waitcnt lgkmcnt(0)")
    for j in range(3):
        for kb, s_ in KORD:
            d = 176 + 8 * j + 4 * kb
            a("%s %s, %s, %s, %s" % (MF, vr(d, 4), vr(KF(kb * 4 + s_), 4), vr(Q_(j, s_), 4), "0" if s_ == 0 else vr(d, 4)))
    for r in range(224, 232, 2): a("v_mov_b64 %s, 0" % vr(r, 2))
    for j in range(3): a("v_mov_b32 v%d, 0" % L_(j))
    a("v_mov_b32 v%d, 0" % vS)
    a("s_mov_b32 s%d, %s" % (sTHR, "0x7f800000" if "norare" in OPT else f32(256.0)))
    a("s_mov_b32 s%d, 0" % sSLOT); a("s_mov_b32 s%d, 0" % sDK)
    a("s_mov_b32 s%d, 0x%x" % (sNEG, -3 * PAIR & 0xffffffff))
    a("s_mov_b64 vcc, 0")
    a("s_nop 3")
    for j in range(3):
        S = 176 + 8 * j; t, t2 = 200 + 2 * j, 201 + 2 * j
        a("v_max3_f32 v%d, v%d, v%d, v%d" % (t, S, S + 1, S + 2)); a("v_max3_f32 v%d, v%d, v%d, v%d" % (t2, S + 3, S + 4, S + 5))
        a("v_max3_f32 v%d, v%d, v%d, v%d" % (t, t, S + 6, S + 7)); a("v_max_f32 v%d, v%d, v%d" % (t, t, t2))
    for sw in ("v_permlane32_swap_b32", "v_permlane16_swap_b32"):
        for j in range(3): a("v_mov_b32 v%d, v%d" % (201 + 2 * j, 200 + 2 * j))
        a("s_nop 0")
        for j in range(3): a("%s v%d, v%d" % (sw, 200 + 2 * j, 201 + 2 * j))
        for j in range(3): a("v_max_f32 v%d, v%d, v%d" % (200 + 2 * j, 200 + 2 * j, 201 + 2 * j))
    for j in range(3):
        for i in range(4): a("v_sub_f32 v%d, 0, v%d" % (N_(j) + i, 200 + 2 * j))
    for r in range(176, 208, 2): a("v_mov_b64 %s, 0" % vr(r, 2))
    def qk_mfmas(jn, par):
        m = []
        for kb, s in KORD:
            d = S_(par) + 4 * kb
            cc = vr(N_(jn), 4) if s == 0 else vr(d, 4)
            m.append("%s %s, %s, %s, %s" % (MF, vr(d, 4), vr(KF(kb * 4 + s), 4), vr(Q_(jn, s), 4), cc))
        return m
    def pv_mfmas(jp, par):
        return ["%s %s, %s, %s, %s" % (MF, vr(O_(jp, db), 4), vr(VF(db), 4), vr(P_(par), 4), vr(O_(jp, db), 4)) for db in range(8)]
    for m in qk_mfmas(0, 0): a(m)
    a("s_nop 7")

    def rare_code(st, j, adv):
        par = (3 * st + j) & 1
        S, P = S_(par), P_(par)
        rl, cont = a.label("Lrare"), a.label("Lcont")
        r = Asm()
        r("%s:" % rl)
        if adv: r("v_subrev_u32 v%d, s%d, v%d" % (vT2, sDK, vKA))
        else: r("v_mov_b32 v%d, v%d" % (vT2, vKA))
        for kb in range(2):
            for s in range(4):
                r("ds_read_b128 %s, v%d offset:%d" % (vr(P, 4), vT2, st * 8 * KGRP + kb * 4 * KGRP + s * 64))
                r("s_waitcnt lgkmcnt(0)")
                cc = vr(N_(j), 4) if s == 0 else vr(S + 4 * kb, 4)
                r("%s %s, %s, %s, %s" % (MF, vr(S + 4 * kb, 4), vr(P, 4), vr(Q_(j, s), 4), cc))
                r("s_nop 3")
        r("s_nop 7")
        r("v_max3_f32 v%d, v%d, v%d, v%d" % (vT, S, S + 1, S + 2)); r("v_max3_f32 v%d, v%d, v%d, v%d" % (vT2, S + 3, S + 4, S + 5))
        r("v_max3_f32 v%d, v%d, v%d, v%d" % (vT, vT, S + 6, S + 7)); r("v_max_f32 v%d, v%d, v%d" % (vT, vT, vT2))
        r("v_mov_b32 v%d, v%d" % (vT2, vT)); r("s_nop 1"); r("v_permlane32_swap_b32 v%d, v%d" % (vT, vT2)); r("v_max_f32 v%d, v%d, v%d" % (vT, vT, vT2))
        r("v_mov_b32 v%d, v%d" % (vT2, vT)); r("s_nop 1"); r("v_permlane16_swap_b32 v%d, v%d" % (vT, vT2)); r("v_max_f32 v%d, v%d, v%d" % (vT, vT, vT2))
        r("v_max_f32 v%d, 0, v%d" % (vT, vT))
        r("v_sub_f32 v%d, 0, v%d" % (vT2, vT)); r("v_exp_f32 v%d, v%d" % (vT2, vT2)); r("s_nop 0")
        r("v_mul_f32 v%d, v%d, v%d" % (L_(j), L_(j), vT2))
        for db in range(8):
            for rr in range(4): r("v_mul_f32 v%d, v%d, v%d" % (O_(j, db) + rr, O_(j, db) + rr, vT2))
        for i in range(4): r("v_sub_f32 v%d, v%d, v%d" % (N_(j) + i, N_(j) + i, vT))
        for i in range(8): r("v_sub_f32 v%d, v%d, v%d" % (S + i, S + i, vT))
        for i in range(8): r("v_exp_f32 v%d, v%d" % (S + i, S + i))
        r("s_nop 0")
        r("v_add_f32 v%d, v%d, v%d" % (vS, S, S + 1))
        for i in range(2, 8): r("v_add_f32 v%d, v%d, v%d" % (vS, vS, S + i))
        for i in range(4): r("v_cvt_pk_bf16_f32 v%d, v%d, v%d" % (P + i, S + 2 * i, S + 2 * i + 1))
        r("s_nop 1")
        r("s_branch %s" % cont)
        rare.append(r.text())
        if "nobr" in OPT: return ["%s:" % cont]
        if "sccbr" in OPT: return ["s_cbranch_scc1 %s" % rl, "%s:" % cont]
        return ["s_cbranch_vccnz %s" % rl, "%s:" % cont]

    def block_tab(st, j, prev, qk=True, kload=None, vlo=None, vhi=None, barrier=False, extra=(), pre_extra=(), klate=None):
        par = (3 * st + j) & 1
        jn, jp = (j + 1) % 3, (j - 1) % 3
        S, P = S_(par), P_(par)
        pre = []
        if barrier: pre.append("s_barrier")
        endbr = []
        if "brend" in OPT:
            endbr = rare_code(st, j, st == 1 and j >= 1)
        elif prev is not None: pre += rare_code(*prev)
        pre += list(pre_extra)
        mf = qk_mfmas(jn, par ^ 1) + pv_mfmas(jp, par ^ 1)
        N = {}
        for i in range(8): N["E%d" % i] = "v_exp_f32 v%d, v%d" % (S + i, S + i)
        for i in range(4):
            N["C%d" % i] = "v_cvt_pk_bf16_f32 v%d, v%d, v%d" % (P + i, S + 2 * i, S + 2 * i + 1)
            N["A%d" % i] = "v_add_f32 v%d, v%d, v%d" % (S + 2 * i, S + 2 * i, S + 2 * i + 1)
        N["B0"] = "v_add_f32 v%d, v%d, v%d" % (S, S, S + 2); N["B1"] = "v_add_f32 v%d, v%d, v%d" % (S + 4, S + 4, S + 6)
        N["SUM"] = "v_add_f32 v%d, v%d, v%d" % (vS, S, S + 4); N["CMP"] = "v_cmp_lt_f32 vcc, s%d, v%d" % (sTHR, vS)
        N["L"] = "v_add_f32 v%d, v%d, v%d" % (L_(jp), L_(jp), vS)
        lds = {g: [] for g in range(16)}
        if "nolds" not in OPT:
            if vlo is not None:
                rs = [x for db in range(4) for x in v_reads(db, vlo)]
                for x, g in zip(rs, TAB["vlo"]): lds[g].append(x)
            if vhi is not None:
                rs = [x for db in range(4, 8) for x in v_reads(db, vhi)]
                for x, g in zip(rs, TAB["vhi"]): lds[g].append(x)
            if kload is not None:
                for (kb, s_), g in zip(KORD[:6], TAB["k"]): lds[g].append(k_read(kb, s_, kload))
            if klate is not None:
                for (kb, s_), g in zip(KORD[6:], TAB["klate"]): lds[g].append(k_read(kb, s_, klate))
        out = list(pre)
        ex = list(extra)
        for g in range(16):
            out.append(mf[g])
            if g == 15 and endbr: out += (["s_cmp_lg_u64 vcc, 0"] if "sccbr" in OPT else []) + endbr
            out += lds[g]
            if "nosm" not in OPT: out += [N[n] for n in TAB["valu"].get(g, [])]
            if g == TAB.get("scc_at", 15) and "sccbr" in OPT and "brend" not in OPT: out.append("s_cmp_lg_u64 vcc, 0")
            if g in TAB.get("extra_at", ()) and ex:
                x = ex.pop(0); out += (x if isinstance(x, list) else [x])
        for x in ex: out += (x if isinstance(x, list) else [x])
        return out

    def block(st, j, prev, qk=True, kload=None, vlo=None, vhi=None, barrier=False, extra=(), pre_extra=(), klate=None):
        if TAB is not None and qk: return block_tab(st, j, prev, qk, kload, vlo, vhi, barrier, extra, pre_extra, klate)
        if "brend" in OPT: prev = None
        if "sccbr" in OPT and prev is not None: pre_extra = list(pre_extra)
        par = (3 * st + j) & 1
        jn, jp = (j + 1) % 3, (j - 1) % 3
        S, P = S_(par), P_(par)
        pre = []
        if barrier: pre.append("s_barrier")
        if prev is not None: pre += rare_code(*prev)
        pre += list(pre_extra)
        mf = (qk_mfmas(jn, par ^ 1) if qk else []) + pv_mfmas(jp, par ^ 1)
        nq = 8 if qk else 0
        if not qk: pre.append("s_nop 1")
        it = []
        Ladd = Item("v_add_f32 v%d, v%d, v%d" % (L_(jp), L_(jp), vS), lo=0, hi=6, pri=5)
        E = [Item("v_exp_f32 v%d, v%d" % (S + i, S + i), lo=0, pri=3) for i in range(8)]
        for i in range(1, 8): pass
        A01 = Item("v_add_f32 v%d, v%d, v%d" % (vT, S, S + 1), deps=[E[0], E[1]])
        A23 = Item("v_add_f32 v%d, v%d, v%d" % (vT2, S + 2, S + 3), deps=[E[2], E[3]])
        B_ = Item("v_add_f32 v%d, v%d, v%d" % (vT, vT, vT2), deps=[A01, A23])
        A45 = Item("v_add_f32 v%d, v%d, v%d" % (vT2, S + 4, S + 5), deps=[E[4], E[5], B_])
        C_ = Item("v_add_f32 v%d, v%d, v%d" % (vT, vT, vT2), deps=[A45])
        A67 = Item("v_add_f32 v%d, v%d, v%d" % (vT2, S + 6, S + 7), deps=[E[6], E[7], C_])
        D_ = Item("v_add_f32 v%d, v%d, v%d" % (vS, vT, vT2), deps=[A67, Ladd])
        CMP = Item("v_cmp_lt_f32 vcc, s%d, v%d" % (sTHR, vS), deps=[D_], hi=len(mf) - CMP_SLACK)
        CV = [Item("v_cvt_pk_bf16_f32 v%d, v%d, v%d" % (P + i, S + 2 * i, S + 2 * i + 1), deps=[E[2 * i], E[2 * i + 1]], hi=len(mf) - 2) for i in range(4)]
        if "nosm" in OPT: it = []
        else: it = [Ladd] + E + [A01, A23, B_, A45, C_, A67, D_, CMP] + CV
        if "nolds" not in OPT:
            if vlo is not None:
                for db in range(4): it.append(Item(v_reads(db, vlo), lo=nq + db, pri=4))
            if vhi is not None:
                for db in range(4, 8): it.append(Item(v_reads(db, vhi), lo=0, hi=nq + db - 7, pri=6))
            if kload is not None:
                for i, (kb, s) in enumerate(KORD[:6]): it.append(Item(k_read(kb, s, kload), lo=max(i, 5), hi=min(15, 9 + i), pri=4))
            if klate is not None:
                for i, (kb, s) in list(enumerate(KORD))[6:]: it.append(Item(k_read(kb, s, klate), lo=0, hi=0, pri=7))
        for x in extra: it.append(Item(x, lo=8))
        return schedule(mf, it, pre)

    def tile(last, first_of_all=False):
        L = []
        L += block(0, 0, (1, 2, True), vlo=0)
        L += block(0, 1, (0, 0, False), vhi=0, kload=1)
        L += block(0, 2, (0, 1, False), klate=1)
        L += block(1, 0, (0, 2, False), vlo=1)
        adv = ["s_add_u32 s%d, s%d, 1" % (sSLOT, sSLOT), "s_and_b32 s%d, s%d, 3" % (sSLOT, sSLOT), "s_cmp_eq_u32 s%d, 0" % sSLOT,
               "s_cselect_b32 s%d, s%d, %d" % (sDK, sNEG, PAIR), "v_add_u32 v%d, s%d, v%d" % (vKA, sDK, vKA)]
        L += block(1, 1, (1, 0, False), vhi=1, kload=(None if last else 0), barrier=True, pre_extra=adv)
        L += block(1, 2, (1, 1, True), qk=not last, klate=(None if last else 0),
                   extra=[["v_add_u32 v%d, s%d, v%d" % (vVA + cc, sDK, vVA + cc)] for cc in range(4)])
        return L
    steady = tile(False)
    del rare[:]
    steady2 = tile(False)
    nr = len(rare)
    lastt = tile(True)
    if "peel" not in OPT: del rare[nr:]
    if TAB is not None:
        body = hoist_waits(auto_lgkm(steady2, entry_lines=steady, age=TAB.get("age")))
        lastb = hoist_waits(auto_lgkm(lastt, entry_lines=steady, age=TAB.get("age")))
    else:
        body = auto_lgkm(steady2, entry_lines=steady)
        lastb = auto_lgkm(lastt, entry_lines=steady)
    if "w0" in OPT:
        import re
        body = [re.sub(r"lgkmcnt\(\d+\)", "lgkmcnt(0)", x) if x.startswith("s_waitcnt lgkmcnt") else x for x in body]
    print("   attention steady tile: model %d cycles (%d/unit), %d instrs" % (model_cycles(body), model_cycles(body) / 6, len(body)))
    loop = a.label("Ltile")
    _stamp(a, 6, "s_memtime")
    a("s_mov_b32 s%d, 0" % sCNT)
    if RAMP:
        import re as _re
        nr2 = len(rare)
        ramp_raw = tile(False)
        rb = auto_lgkm(ramp_raw, entry_lines=steady)
        cnt = [0]
        def _mod(x):
            if not x.startswith("s_waitcnt lgkmcnt"): return x
            cnt[0] += 1
            return "s_waitcnt lgkmcnt(0)" if cnt[0] % RAMP_EVERY == 0 else x
        rb = [_mod(x) for x in rb]
        lr = a.label("Lramp")
        a("%s:" % lr)
        for x in rb: a(x)
        a("s_add_u32 s%d, s%d, 1" % (sCNT, sCNT)); a("s_cmp_lt_u32 s%d, %d" % (sCNT, RAMP)); a("s_cbranch_scc1 %s" % lr)
        a("s_waitcnt lgkmcnt(0)")
    a("%s:" % loop)
    for x in body: a(x)
    a("s_add_u32 s%d, s%d, 1" % (sCNT, sCNT)); a("s_cmp_lt_u32 s%d, %d" % (sCNT, 15 if "peel" in OPT else 16)); a("s_cbranch_scc1 %s" % loop)
    _stamp(a, 7, "s_memtime")
    if "peel" in OPT:
        for x in lastb: a(x)
    else: a("s_waitcnt lgkmcnt(0)")
    for x in rare_code(1, 2, True): a(x)
    a("v_add_f32 v%d, v%d, v%d" % (L_(2), L_(2), vS))
    a("s_nop 1")
    for m in pv_mfmas(2, 1): a(m)
    a("s_nop 7")
    stamp(a, 2, 12)
    for j in range(3):
        L = L_(j)
        a("v_mov_b32 v%d, v%d" % (vT, L)); a("s_nop 1"); a("v_permlane32_swap_b32 v%d, v%d" % (L, vT)); a("v_add_f32 v%d, v%d, v%d" % (L, L, vT))
        a("v_mov_b32 v%d, v%d" % (vT, L)); a("s_nop 1"); a("v_permlane16_swap_b32 v%d, v%d" % (L, vT)); a("v_add_f32 v%d, v%d, v%d" % (L, L, vT))
        a("v_rcp_f32 v%d, v%d" % (L, L))
    a("s_nop 1")
    def OA(s, j): return 96 + (s * 3 + j) * 4
    def OB(s, j): return 144 + (s * 3 + j) * 4
    for j in range(3):
        a("v_mov_b32 v%d, v%d" % (vT2, L_(j))); a("v_mov_b32 v%d, v%d" % (vT, L_(j)))
        for s in range(4):
            X, Y, D = O_(j, 2 * s), O_(j, 2 * s + 1), OA(s, j)
            for r in range(0, 4, 2):
                a("v_pk_mul_f32 %s, %s, %s" % (vr(X + r, 2), vr(X + r, 2), vr(vT, 2))); a("v_pk_mul_f32 %s, %s, %s" % (vr(Y + r, 2), vr(Y + r, 2), vr(vT, 2)))
            a("v_cvt_pk_bf16_f32 v%d, v%d, v%d" % (D + 0, X + 0, X + 1)); a("v_cvt_pk_bf16_f32 v%d, v%d, v%d" % (D + 1, X + 2, X + 3))
            a("v_cvt_pk_bf16_f32 v%d, v%d, v%d" % (D + 2, Y + 0, Y + 1)); a("v_cvt_pk_bf16_f32 v%d, v%d, v%d" % (D + 3, Y + 2, Y + 3))
    vA0, vA1 = 240, 241
    a("v_lshlrev_b32 v%d, 4, v%d" % (vT, vLANE))
    a("s_mul_i32 s%d, s%d, 12288" % (sT0, sWAVE)); a("s_add_u32 s%d, s%d, %d" % (sT0, sT0, EXCH)); a("v_add_u32 v%d, s%d, v%d" % (vA0, sT0, vT))
    a("s_xor_b32 s%d, s%d, 2" % (sT2, sWAVE)); a("s_mul_i32 s%d, s%d, 12288" % (sT0, sT2)); a("s_add_u32 s%d, s%d, %d" % (sT0, sT0, EXCH)); a("v_add_u32 v%d, s%d, v%d" % (vA1, sT0, vT))
    a("s_barrier")
    for i in range(12): a("ds_write_b128 v%d, %s offset:%d" % (vA0, vr(96 + 4 * i, 4), i * 1024))
    vAO, vST = 224, 228
    g, rp, c, t = 242, 243, 244, 245
    a("v_lshrrev_b32 v%d, 4, v%d" % (g, vLANE)); a("v_bfe_u32 v%d, v%d, 2, 2" % (rp, vLANE)); a("v_and_b32 v%d, 3, v%d" % (c, vLANE))
    a("v_lshlrev_b32 v%d, 2, v%d" % (t, g)); a("v_add_u32 v%d, v%d, v%d" % (t, t, rp))
    a("v_lshrrev_b32 v%d, 1, v%d" % (g, t)); a("v_and_b32 v%d, 3, v%d" % (g, g)); a("v_lshlrev_b32 v%d, 5, v%d" % (g, g))
    a("v_lshlrev_b32 v%d, 7, v%d" % (t, t)); a("v_add_u32 v%d, v%d, v%d" % (t, t, g)); a("v_lshlrev_b32 v%d, 3, v%d" % (c, c)); a("v_add_u32 v%d, v%d, v%d" % (t, t, c))
    a("s_lshl_b32 s%d, s%d, 6" % (sT0, sQI)); a("v_xor_b32 v%d, s%d, v%d" % (t, sT0, t))
    a("s_lshl_b32 s%d, s%d, 14" % (sT0, sQI)); a("s_xor_b32 s%d, s%d, 16384" % (sT1, sT0))
    a("v_add_u32 v%d, s%d, v%d" % (vAO + 0, sT0, t)); a("v_xor_b32 v%d, 32, v%d" % (vAO + 1, vAO + 0))
    a("v_add_u32 v%d, s%d, v%d" % (vAO + 2, sT1, t)); a("v_xor_b32 v%d, 32, v%d" % (vAO + 3, vAO + 2))
    a("s_mul_i32 s%d, s%d, 6144" % (sT0, sQI)); a("s_mul_i32 s%d, s%d, 3072" % (sT1, sRH)); a("s_add_u32 s%d, s%d, s%d" % (sT0, sT0, sT1))
    a("v_add_u32 v%d, s%d, v%d" % (vST, sT0, vT))
    a("s_waitcnt lgkmcnt(0)")
    a("s_barrier")
    for i in range(12): a("ds_read_b128 %s, v%d offset:%d" % (vr(144 + 4 * i, 4), vA1, i * 1024))
    stamp(a, 3, 13)
    assert PAIR % 256 == 0
    def AF(i): return 192 + 4 * (i % 8)
    def ACC(buf, z, j): return buf * 24 + (z * 3 + j) * 4
    def PK(buf, j): return 48 + buf * 12 + 4 * j
    def a_reads(G):
        c_, kk = divmod(G, 8)
        hs, s = (0, kk) if kk < 4 else (1, kk - 4)
        r = []
        for z in range(2):
            fr = AF(2 * G + z)
            r.append("ds_read_b64_tr_b16 %s, v%d offset:%d" % (vr(fr, 2), vAO + 2 * hs + z, s * 4096))
            r.append("ds_read_b64_tr_b16 %s, v%d offset:%d" % (vr(fr + 2, 2), vAO + 2 * hs + z, s * 4096 + 2048))
        return r
    LOOK = 3
    def slot_delta(c_from): return (-3 * PAIR if (16 + c_from + 1) % 4 == 0 else PAIR) & 0xffffffff
    for G in range(LOOK):
        for x in a_reads(G): a(x)
    vPW, vPWR = 229, 231
    a("v_lshlrev_b32 v%d, 4, v%d" % (vT, vLANE))
    a("s_mul_i32 s%d, s%d, 3072" % (sT0, sWAVE)); a("s_add_u32 s%d, s%d, %d" % (sT0, sT0, PB0)); a("v_add_u32 v%d, s%d, v%d" % (vPW, sT0, vT))
    a("s_mul_i32 s%d, s%d, %d" % (sT0, sWAVE, PAIR)); a("s_add_u32 s%d, s%d, 32768" % (sT0, sT0)); a("v_add_u32 v%d, s%d, v%d" % (vPWR, sT0, vT))
    a("v_add_u32 v%d, %d, v%d" % (vPW + 1, 156672, vT))
    sD, sDP, sSL = sDK, sNEG + 0, sSLOT
    sD, sDP = 56, 69
    a("s_mov_b32 s%d, 0" % sSLOT); a("s_mov_b32 s%d, 0" % sDP); a("s_mov_b32 s%d, 0x%x" % (sNEG, -3 * PAIR & 0xffffffff))
    def epilogue(buf):
        epi = []
        for j in range(3):
            d = PK(buf, j)
            for z in range(2):
                A_ = ACC(buf, z, j)
                epi.append("v_cvt_pk_bf16_f32 v%d, v%d, v%d" % (d + 2 * z, A_, A_ + 1)); epi.append("v_cvt_pk_bf16_f32 v%d, v%d, v%d" % (d + 2 * z + 1, A_ + 2, A_ + 3))
            epi.append("ds_write_b128 v%d, %s offset:%d" % (vPW + buf, vr(d, 4), j * 1024))
        return epi
    def o_step(buf, last):
        epi = epilogue(buf ^ 1)
        cvts = [x for x in epi if x.startswith("v_cvt")]; wrs = [x for x in epi if x.startswith("ds_write")]
        extra = {kk: {g: [] for g in range(6)} for kk in range(8)}
        if "ostep_old" in OPT:
            seq = epi; pos = [(1, 1), (1, 1), (1, 2), (1, 2), (1, 3), (1, 4), (1, 4), (1, 5), (2, 1), (2, 1), (2, 2), (2, 3), (2, 3), (2, 4), (2, 5)]
            for x, (kk, g) in zip(seq, pos): extra[kk][g].append(x)
        else:
            cpos = [(1, 0), (1, 1), (1, 2), (1, 3), (1, 4), (2, 0), (2, 1), (2, 2), (2, 3), (3, 0), (3, 1), (3, 2)]
            for x, (kk, g) in zip(cvts, cpos): extra[kk][g].append(x)
            for x, (kk, g) in zip(wrs, [(1, 5), (2, 5), (3, 4)]): extra[kk][g].append(x)
        for kk in range(8):
            G = kk
            hs, s = (0, kk) if kk < 4 else (1, kk - 4)
            rd = []; barrier = (kk == 5)
            if kk == 4 and not last:
                extra[4][4] += ["s_add_u32 s%d, s%d, 1" % (sSLOT, sSLOT), "s_and_b32 s%d, s%d, 3" % (sSLOT, sSLOT)]
                extra[4][5] += ["s_cmp_eq_u32 s%d, 0" % sSLOT, "s_cselect_b32 s%d, s%d, %d" % (sD, sNEG, PAIR)]
            pre = []
            if kk == 5 and not last:
                pre += ["v_add_u32 v%d, s%d, v%d" % (vAO + 0, sD, vAO + 0), "v_add_u32 v%d, s%d, v%d" % (vAO + 1, sD, vAO + 1)]
                extra[6][4].append("s_mov_b32 s%d, s%d" % (sDP, sD))
            if kk == 0:
                extra[0][4].append("v_add_u32 v%d, s%d, v%d" % (vAO + 2, sDP, vAO + 2)); extra[0][5].append("v_add_u32 v%d, s%d, v%d" % (vAO + 3, sDP, vAO + 3))
            if kk == 4 and buf == 0: extra[4][3].append("v_mov_b32 v%d, v%d" % (vPW + 1, vPWR))
            if not (last and kk + LOOK >= 8): rd = a_reads(G + LOOK)
            younger = 4 * (LOOK - 1) if not last else 4 * min(LOOK - 1, 7 - kk)
            if barrier: younger = min(younger, 4)
            a("s_waitcnt lgkmcnt(%d)" % younger)
            if barrier: a("s_barrier")
            for x in pre: a(x)
            mf = []
            for z in range(2):
                for j in range(3):
                    bsrc = OA(s, j) if hs == 0 else OB(s, j)
                    cc = "0" if kk == 0 else vr(ACC(buf, z, j), 4)
                    mf.append("%s %s, %s, %s, %s" % (MF, vr(ACC(buf, z, j), 4), vr(AF(2 * G + z), 4), vr(bsrc, 4), cc))
            fill = spread(rd, [0, 1, 2, 3]) if rd else {}
            fill = merge(fill, extra[kk])
            for x in interleave(mf, fill): a(x)
    lo = a.label("Lo")
    a("s_mov_b32 s%d, 0" % sCNT); a("%s:" % lo)
    o_step(0, False); o_step(1, False)
    a("s_add_u32 s%d, s%d, 1" % (sCNT, sCNT)); a("s_cmp_lt_u32 s%d, 4" % sCNT); a("s_cbranch_scc1 %s" % lo)
    o_step(0, True)
    a("s_nop 7")
    for x in epilogue(0): a(x)
    a("s_waitcnt lgkmcnt(0)")
    a("s_barrier")
    stamp(a, 4, 14)
    stamp(a, 5)
    stamp_flush(a)
    a("v_mov_b32 v1, v%d" % vLANE)
    a("s_mov_b32 s%d, s%d" % (sCNT, sWAVE))
    a("s_branch L_reduce")
    for r in rare: a(r)

def mk_srd(a, b, lo, hi, off, size):
    a("s_add_u32 s%d, s%d, s%d" % (b, lo, off)); a("s_addc_u32 s%d, s%d, 0" % (b + 1, hi)); a("s_mov_b32 s%d, %d" % (b + 2, size)); a("s_mov_b32 s%d, 0x20000" % (b + 3))

def gen_k1():
    a = Asm(); a.stamp_wave = 0; a.stamp_tmp = 252
    common_prologue(a, "L_k1_end", 256)
    a("s_and_b32 s%d, s2, 7" % sXCD); a("s_lshr_b32 s%d, s2, 3" % sIDX)
    a("s_and_b32 s%d, s%d, 1" % (sB, sXCD)); a("s_lshl_b32 s%d, s%d, 3" % (sB, sB)); a("s_and_b32 s%d, s%d, 7" % (sT2, sIDX)); a("s_add_u32 s%d, s%d, s%d" % (sB, sB, sT2))
    a("s_lshr_b32 s%d, s%d, 1" % (sH, sXCD)); a("s_lshl_b32 s%d, s%d, 2" % (sH, sH)); a("s_lshr_b32 s%d, s%d, 3" % (sT2, sIDX)); a("s_add_u32 s%d, s%d, s%d" % (sH, sH, sT2))
    a("s_lshl_b32 s%d, s%d, 4" % (sT0, sB)); a("s_add_u32 s%d, s%d, s%d" % (sT0, sT0, sH))
    a("s_lshl_b32 s%d, s%d, 18" % (sT1, sT0))
    mk_srd(a, sK, 6, 7, sT1, 262144); mk_srd(a, sV, 8, 9, sT1, 262144)
    a("s_mul_i32 s%d, s%d, 110592" % (sT1, sB)); mk_srd(a, sX, 4, 5, sT1, 110592)
    a("s_lshl_b32 s%d, s%d, 9" % (sT1, sH)); mk_srd(a, sWQ, 10, 11, sT1, 0); a("s_sub_u32 s%d, 4718592, s%d" % (sWQ + 2, sT1))
    a("s_mul_i32 s%d, s%d, 294912" % (sT1, sH)); mk_srd(a, sWO, 12, 13, sT1, 294912)
    a("s_mul_i32 s%d, s%d, %d" % (sT1, sT0, PART)); a("s_add_u32 s%d, s%d, %d" % (sT1, sT1, WS_PART)); mk_srd(a, sP, 18, 19, sT1, PART)
    a("s_lshr_b32 s%d, s%d, 2" % (sT1, sH)); a("s_lshl_b32 s%d, s%d, 11" % (sT1, sT1)); mk_srd(a, sPF, 10, 11, sT1, 0); a("s_sub_u32 s%d, 4718592, s%d" % (sPF + 2, sT1))
    a("s_lshr_b32 s%d, s%d, 3" % (sT1, sB)); a("s_mul_i32 s%d, s%d, %d" % (sT1, sT1, 8 * 110592)); mk_srd(a, sPF2, 4, 5, sT1, 8 * 110592)
    a("s_mov_b32 s%d, s12" % sWOP); a("s_mov_b32 s%d, s13" % (sWOP + 1))
    a("s_mul_i32 s%d, s%d, 110592" % (sT1, sB)); mk_srd(a, sOUT, 14, 15, sT1, 110592)
    a("s_mul_i32 s%d, s%d, %d" % (sT1, sB, 16 * PART)); a("s_add_u32 s%d, s%d, %d" % (sT1, sT1, WS_PART)); mk_srd(a, sPB, 18, 19, sT1, 16 * PART)
    a("s_mul_i32 s%d, s%d, %d" % (sT1, sB, 9 * 128)); a("s_add_u32 s%d, s%d, %d" % (sT1, sT1, WS_FLAG)); mk_srd(a, sFL, 18, 19, sT1, 9 * 128)
    if STAMP:
        a("s_lshl_b32 s%d, s2, 9" % sT1); a("s_add_u32 s%d, s18, s%d" % (sSTAMP, sT1)); a("s_addc_u32 s%d, s19, 0" % (sSTAMP + 1))
    if "allc" in OPT: a("s_and_b32 s%d, s%d, 3" % (sWAVE, sWAVE))
    a("s_cmp_ge_u32 s%d, 4" % sWAVE); a("s_cbranch_scc1 L_loader")
    gen_compute(a)
    a("L_loader:")
    a.stamp_wave = 4; a.stamp_tmp = 40
    gen_loader(a)
    gen_reducer(a)
    a("L_k1_end:")
    a("s_endpgm")
    return a.text()

def build(fn, stamp=False, opt=()):
    global STAMP, OPT
    STAMP = stamp; OPT = set(opt)
    k1 = gen_k1()
    errs = hazard.check(k1, "k1")
    for e in errs[:10]: print(e)
    if errs: print("k1: %d hazard warnings" % len(errs))
    txt = HEADER + "; @launch grid=(256,1,1) block=(512,1,1) lds=%d\n" % LDS_BYTES
    txt += '.amdgcn_target "amdgcn-amd-amdhsa--gfx950"\n.text\n' + kernel_begin(KNAME) + k1 + '\n.section .rodata,"a"\n.p2align 6\n' + kernel_desc(KNAME, 256, 102, 256)
    open(fn, "w").write(txt)
    print(fn, len(txt), "bytes,", txt.count("\n"), "lines")

if __name__ == "__main__":
    def pieces(start, per):
        d = {}; st = start
        for kind in "KV":
            for lo in range(0, 8, per):
                d.setdefault(st, []).append((kind, 0, lo, lo + per)); st += 1
        return d
    def mk(start, per, i1at):
        d = pieces(start, per)
        d.setdefault(i1at, []).extend([("K", 1), ("V", 1)])
        d.setdefault(19, []).extend([("K", 2), ("V", 2)])
        return d
    PF0 = 0
    O = ["rotq", "nopfq", "notlb"]
    KSCHED = mk(12, 4, 18)
    TAB = None
    build("v7.s", False, O + ["dot2"]); build("v7_st.s", True, O + ["dot2"])
    D = O + ["dot2", "split0"]
    build("v7.s", False, D); build("v7_st.s", True, D)
    build("z_late.s", False, D)
    RAMP = 1; build("z_rp1.s", False, D)
    RAMP = 2; build("z_rp2.s", False, D)
    RAMP = 3; build("z_rp3.s", False, D)
    RAMP = 3; RAMP_EVERY = 2; build("z_rp3h.s", False, D)
    RAMP = 0; RAMP_EVERY = 1
    build("z_w01.s", False, D + ["wait01"])
```

```python
import sys, struct
from asmlib import *
import hazard
from sched import Item, schedule, auto_lgkm, model_cycles

def f32(x): return "0x%08x" % struct.unpack("<I", struct.pack("<f", x))[0]
C_SCALE = 1.4426950408889634 / (128 ** 0.5)

PAIR = 35840
KGRP, VGRP = 1088, 1152
VOFF = 16 * KGRP
WBASE = 2 * PAIR
XBASE = WBASE + 4 * 16384
XSLOT = 12288
EXCH = 3 * PAIR
LDS_BYTES = 163840
PART = 108 * 1024
WS_PART = 1 << 20
WS_FLAG = 1 << 19
KNAME = 'standalone__gqa_block_cached__near_ridge_kernel'
OPT = set()
STAMP = False

sK, sV, sX, sWQ, sWO, sP = 20, 24, 28, 32, 36, 40
sWAVE, sB, sH, sLW = 44, 45, 46, 47
sT0, sT1, sT2, sT3 = 48, 49, 50, 51
sLWK, sLW3072, sLWV, sLW4096 = 52, 53, 59, 66
sTHR, sCNT, sDK, sNEG, sSLOT = 54, 55, 56, 57, 58
sSTAMP = 60
sTM = 62
sQI, sRH = 64, 65
sXCD, sIDX = 67, 68
sPF = 72
sPF2 = 76
sFL = 8
sPB = 4
sOUT = 12
def srd(b): return "s[%d:%d]" % (b, b + 3)
def vr(b, n=1): return "v%d" % b if n == 1 else "v[%d:%d]" % (b, b + n - 1)

def _stamp(a, idx, instr):
    if not STAMP: return
    a("%s s[%d:%d]" % (instr, sTM, sTM + 1)); a("s_waitcnt lgkmcnt(0)")
    if a.stamp_wave == 0: a("s_mov_b32 s%d, s%d" % (80 + idx, sTM))
    else: a("v_writelane_b32 v40, s%d, %d" % (sTM, idx))
def stamp(a, idx, cyc=None):
    _stamp(a, idx, "s_memrealtime")
    if cyc is not None: _stamp(a, cyc, "s_memtime")
DBG_WG = 37
def stamp_flush(a):
    if not STAMP: return
    if "dbg" in OPT:
        sk = a.label("Ldbgs")
        a("s_cmp_lg_u32 s2, %d" % DBG_WG); a("s_cbranch_scc1 %s" % sk)
        a("s_cmp_lg_u32 s%d, %d" % (sWAVE, a.stamp_wave)); a("s_cbranch_scc1 %s" % sk)
        a("v_mov_b32 v1, 0")
        if a.stamp_wave == 0:
            for dw, (j, j0) in zip((1, 2, 3, 5, 6, 7, 9, 10, 11), ((1, 0), (2, 0), (3, 0), (4, 0), (11, 10), (12, 11), (13, 12), (14, 13), (7, 6))):
                a("s_sub_u32 s%d, s%d, s%d" % (sT0, 80 + j, 80 + j0)); a("v_mov_b32 v2, s%d" % sT0); a("global_store_dword v1, v2, s[16:17] offset:%d" % (4 * dw))
        else:
            a("v_readlane_b32 s%d, v40, 15" % sT0); a("v_readlane_b32 s%d, v40, 16" % sT1); a("s_nop 3"); a("s_sub_u32 s%d, s%d, s%d" % (sT0, sT0, sT1)); a("v_mov_b32 v2, s%d" % sT0)
            a("global_store_dword v1, v2, s[16:17] offset:52")
            a("v_readlane_b32 s%d, v40, 36" % sT0); a("s_nop 3"); a("s_sub_u32 s%d, s%d, s%d" % (sT0, sT0, sT1)); a("v_mov_b32 v2, s%d" % sT0)
            a("global_store_dword v1, v2, s[16:17] offset:56")
        a("%s:" % sk)
        return
    sk = a.label("Lst")
    a("s_cmp_lg_u32 s%d, %d" % (sWAVE, a.stamp_wave)); a("s_cbranch_scc1 %s" % sk)
    if a.stamp_wave == 0:
        a("v_mov_b32 v1, 0")
        for i in range(16):
            if i in (8, 9, 15): continue
            a("v_mov_b32 v2, s%d" % (80 + i)); a("global_store_dword v1, v2, s[%d:%d] offset:%d" % (sSTAMP, sSTAMP + 1, 4 * i))
    else:
        a("v_and_b32 v2, 63, v0"); a("v_lshlrev_b32 v3, 2, v2")
        a("v_cmp_lt_u32 vcc, 14, v2"); a("v_cmp_eq_u32 s[96:97], 8, v2"); a("s_or_b64 vcc, vcc, s[96:97]"); a("v_cmp_eq_u32 s[96:97], 9, v2"); a("s_or_b64 vcc, vcc, s[96:97]")
        a("s_and_saveexec_b64 s[96:97], vcc")
        a("global_store_dword v3, v40, s[%d:%d]" % (sSTAMP, sSTAMP + 1))
        a("s_mov_b64 exec, s[96:97]")
    a("%s:" % sk)

def common_prologue(a, endlab, nwg):
    if STAMP: a("s_memrealtime s[78:79]")
    a("s_cmp_ge_u32 s2, %d" % nwg); a("s_cbranch_scc1 %s" % endlab)
    a("s_load_dwordx8 s[4:11], s[0:1], 0")
    a("s_load_dwordx4 s[12:15], s[0:1], 32")
    a("s_load_dwordx4 s[16:19], s[0:1], 48")
    a("v_lshrrev_b32 v1, 6, v0")
    a("s_nop 0")
    a("v_readfirstlane_b32 s%d, v1" % sWAVE)
    a("s_waitcnt lgkmcnt(0)")

class VQ:
    def __init__(s): s.q = []
    def issue(s, tag, n=1): s.q += [tag] * n
    def wait(s, tags):
        idx = [i for i, t in enumerate(s.q) if t in tags]
        if not idx: return None
        last = max(idx); n = len(s.q) - 1 - last
        s.q = s.q[last + 1:]
        return min(n, 63)

KV_FLAGS = " nt"
W_FLAGS = ""
O_FLAGS = ""
P_FLAGS = " sc0 sc1"


def gen_loader(a):
    a("s_sub_u32 s%d, s%d, 4" % (sLW, sWAVE))
    a("v_and_b32 v1, 63, v0")
    if STAMP: a("v_mov_b32 v40, 0")
    a("s_cmp_ge_u32 s%d, 2" % sLW); a("s_cbranch_scc1 L_kvloader")
    gen_wloader(a)
    a("L_kvloader:")
    gen_kvloader(a)

def mk_bar(a, q, trace_base=None):
    def bar(tags):
        n = q.wait(tags) if tags else None
        if n is not None and "nowait" not in OPT: a("s_waitcnt vmcnt(%d)" % n)
        if "trace" in OPT and bar.n < 48 and trace_base is not None: stamp(a, 16 + bar.n)
        a("s_barrier")
        bar.n += 1
    bar.n = 0
    return bar

def dma(a, vreg, srdb, soff, imm, flags):
    if "noload" in OPT: return
    a("buffer_load_dwordx4 v%d, %s, s%d offen offset:%d%s lds" % (vreg, srd(srdb), soff, imm, flags))

def emit_pf(a, chunks, lane=1):
    if not chunks: return
    sk = a.label("Lpfq"); skx = a.label("Lpfx")
    a("s_cmp_ge_u32 s%d, 28" % sIDX); a("s_cbranch_scc1 %s" % sk)
    a("s_cmp_ge_u32 s%d, 16" % sIDX); a("s_cbranch_scc1 %s" % skx)
    a("v_lshrrev_b32 v30, 4, v%d" % lane); a("v_and_b32 v31, 15, v%d" % lane)
    a("s_lshl_b32 s%d, s%d, 2" % (sT0, sIDX)); a("v_add_u32 v30, s%d, v30" % sT0); a("v_lshlrev_b32 v30, 13, v30"); a("v_lshlrev_b32 v31, 7, v31"); a("v_add_u32 v30, v30, v31")
    for cp in chunks:
        if isinstance(cp, int): a("s_mov_b32 s%d, %d" % (sT0, cp * 64 * 8192))
        else: a("s_lshl_b32 s%d, s%d, 19" % (sT0, cp[0])); a("s_add_u32 s%d, s%d, %d" % (sT0, sT0, cp[1] * 64 * 8192))
        a("buffer_load_dword v32, v30, %s, s%d offen" % (srd(sPF), sT0))
    a("s_branch %s" % sk)
    a("%s:" % skx)
    a("s_sub_u32 s%d, s%d, 16" % (sT0, sIDX)); a("s_lshl_b32 s%d, s%d, 6" % (sT0, sT0)); a("v_add_u32 v30, s%d, v%d" % (sT0, lane)); a("v_mul_u32_u24 v30, 1152, v30")
    for cp in chunks:
        if isinstance(cp, int): a("s_mov_b32 s%d, %d" % (sT0, cp * 128))
        else: a("s_lshl_b32 s%d, s%d, 7" % (sT0, cp[0])); a("s_add_u32 s%d, s%d, %d" % (sT0, sT0, cp[1] * 128))
        a("buffer_load_dword v32, v30, %s, s%d offen" % (srd(sPF2), sT0))
    a("%s:" % sk)

def code_prefetch(a, lane=1):
    if "nocpf" in OPT: return
    lab = a.label("Lcpf")
    a("s_getpc_b64 s[94:95]")
    a("%s:" % lab)
    a("s_sub_u32 s94, s94, (%s - %s)" % (lab, KNAME)); a("s_subb_u32 s95, s95, 0")
    a("s_lshl_b32 s%d, s%d, 11" % (sT0, sIDX))
    a("v_and_b32 v34, 15, v%d" % lane); a("v_lshlrev_b32 v34, 7, v34"); a("v_add_u32 v34, s%d, v34" % sT0)
    a("v_min_u32 v34, (L_k1_end - %s), v34" % KNAME)
    a("global_load_dword v35, v34, s[94:95]")

def attn_kv4(a, is_w, iss_O=None, cpf=None):
    vK4, vV4 = 18, 19
    sL4, sMK, sMV, sTK, sKS = 86, 88, 89, 87, 90
    a("s_sub_u32 s%d, s%d, 4" % (sL4, sWAVE))
    a("v_lshrrev_b32 v2, 4, v1"); a("v_and_b32 v3, 15, v1")
    a("s_lshl_b32 s%d, s%d, 12" % (sT0, sL4)); a("v_lshlrev_b32 v4, 8, v2"); a("v_add_u32 v4, s%d, v4" % sT0)
    a("v_xor_b32 v5, v2, v3"); a("v_lshlrev_b32 v5, 4, v5"); a("v_add_u32 v%d, v4, v5" % vK4)
    a("v_lshlrev_b32 v5, 1, v2"); a("v_xor_b32 v5, v5, v3"); a("v_lshlrev_b32 v5, 4, v5"); a("v_add_u32 v%d, v4, v5" % vV4)
    a("s_mul_i32 s%d, s%d, %d" % (sMK, sL4, 4 * KGRP)); a("s_mul_i32 s%d, s%d, %d" % (sMV, sL4, 4 * VGRP)); a("s_add_u32 s%d, s%d, %d" % (sMV, sMV, VOFF))
    a("s_mov_b32 s%d, %d" % (sTK, 3 * 16384)); a("s_mov_b32 s%d, %d" % (sKS, 3 * PAIR))
    def w(n):
        if "nowait" not in OPT: a("s_waitcnt vmcnt(%d)" % n)
    def item():
        a("s_add_u32 s%d, s%d, s%d" % (sT1, sMK, sKS)); a("s_add_u32 s%d, s%d, s%d" % (sT2, sMV, sKS))
        for isK in (True, False):
            grp = KGRP if isK else VGRP
            for ii in range(4):
                a("s_add_u32 m0, s%d, %d" % (sT1 if isK else sT2, ii * (grp - 1024))); a("s_nop 0")
                dma(a, vK4 if isK else vV4, sK if isK else sV, sTK, ii * 1024, KV_FLAGS)
        a("s_add_u32 s%d, s%d, 16384" % (sTK, sTK))
        a("s_add_u32 s%d, s%d, %d" % (sKS, sKS, PAIR)); a("s_cmp_eq_u32 s%d, %d" % (sKS, 4 * PAIR)); a("s_cselect_b32 s%d, 0, s%d" % (sKS, sKS))
    if not is_w: w(16)
    a("s_barrier")
    item()
    lab = a.label("Lkv4"); a("s_mov_b32 s%d, 2" % sCNT); a("%s:" % lab)
    w(8)
    a("s_barrier")
    item()
    if is_w:
        sk = a.label("Lc4"); a("s_cmp_lg_u32 s%d, %d" % (sCNT, CPF_AT)); a("s_cbranch_scc1 %s" % sk); cpf(); a("%s:" % sk)
    a("s_add_u32 s%d, s%d, 1" % (sCNT, sCNT)); a("s_cmp_lt_u32 s%d, 14" % sCNT); a("s_cbranch_scc1 %s" % lab)
    w(8); a("s_barrier")
    if is_w: iss_O()
    w(16 if is_w else 0); a("s_barrier")
    if is_w: iss_O()
    if is_w: w(16)
    a("s_barrier")
    if is_w: iss_O()

def gen_wloader(a):
    vW, vX, vO = 10, 14, 16
    a.stamp_wave = 4
    sA, sBb = sLWK, sLWV
    a("v_lshrrev_b32 v6, 5, v1"); a("v_and_b32 v7, 31, v1")
    a("s_lshl_b32 s%d, s%d, 17" % (sT1, sLW))
    a("v_lshlrev_b32 v8, 13, v6"); a("v_add_u32 v8, s%d, v8" % sT1)
    for var in range(4):
        a("v_add_u32 v5, %d, v6" % (2 * (var & 1) + 4 * (var >> 1))); a("v_lshlrev_b32 v5, 1, v5"); a("v_xor_b32 v5, v5, v7")
        a("v_lshlrev_b32 v5, 4, v5"); a("v_add_u32 v%d, v8, v5" % (vW + var))
    a("v_lshrrev_b32 v6, 3, v1"); a("v_and_b32 v7, 7, v1")
    a("s_mul_i32 s%d, s%d, 48" % (sT1, sLW)); a("v_add_u32 v8, s%d, v6" % sT1); a("v_mul_u32_u24 v8, 1152, v8")
    a("v_lshrrev_b32 v9, 1, v6")
    for i in range(2):
        a("v_add_u32 v5, %d, v9" % (4 * i)); a("v_xor_b32 v5, v5, v7"); a("v_lshlrev_b32 v5, 4, v5"); a("v_add_u32 v%d, v8, v5" % (vX + i))
    a("v_mul_u32_u24 v8, 1152, v6")
    a("v_and_b32 v5, 3, v9"); a("v_lshlrev_b32 v5, 1, v5"); a("v_xor_b32 v5, v5, v7"); a("v_lshlrev_b32 v5, 4, v5"); a("v_add_u32 v%d, v8, v5" % vO)
    a("s_lshl_b32 s%d, s%d, 13" % (sA, sLW))
    a("s_mul_i32 s%d, s%d, 6144" % (sBb, sLW))
    a("s_lshl_b32 s%d, s%d, 14" % (sLW4096, sLW))
    a("s_mul_i32 s%d, s%d, %d" % (sLW3072, sLW, 128 * 1152))
    sWK, sXK, sOK = 98, 99, 100
    sWS, sXS, sOS = 93, 92, 91
    A_, SI, B_, SJ = ROTQ
    a("s_and_b32 s%d, s%d, 7" % (sT0, sIDX)); a("s_lshr_b32 s%d, s%d, %d" % (sT0, sT0, SI)); a("s_mul_i32 s%d, s%d, %d" % (sT0, sT0, A_))
    a("s_lshr_b32 s%d, s%d, %d" % (sT1, sIDX, 3 + SJ)); a("s_mul_i32 s%d, s%d, %d" % (sT1, sT1, B_)); a("s_add_u32 s%d, s%d, s%d" % (sT0, sT0, sT1))
    for _ in range(2): a("s_cmp_ge_u32 s%d, 9" % sT0); a("s_cselect_b32 s%d, 9, 0" % sT1); a("s_sub_u32 s%d, s%d, s%d" % (sT0, sT0, sT1))
    a("s_lshl_b32 s%d, s%d, 19" % (sWK, sT0)); a("s_lshl_b32 s%d, s%d, 7" % (sXK, sT0))
    a("s_and_b32 s%d, s%d, 7" % (sT0, sB)); a("s_lshl_b32 s%d, s%d, 7" % (sOK, sT0))
    a("s_mov_b32 s%d, %d" % (sWS, 2 * 16384)); a("s_mov_b32 s%d, 0" % sXS); a("s_mov_b32 s%d, 0" % sOS)
    a("s_add_u32 s%d, s%d, %d" % (sA, sA, WBASE)); a("s_add_u32 s%d, s%d, %d" % (sBb, sBb, XBASE))
    def adv(reg, step, wrap):
        a("s_add_u32 s%d, s%d, %d" % (reg, reg, step)); a("s_cmp_eq_u32 s%d, %d" % (reg, wrap)); a("s_cselect_b32 s%d, 0, s%d" % (reg, reg))
    def iss_W():
        a("s_add_u32 m0, s%d, s%d" % (sA, sWS))
        for ii in range(8):
            if ii == 4: a("s_add_u32 m0, m0, 4096")
            a("s_add_u32 s%d, s%d, %d" % (sT0, sWK, 16384 * ii - (ii & 3) * 1024))
            dma(a, vW + (ii & 1) + 2 * (ii >> 2), sWQ, sT0, (ii & 3) * 1024, W_FLAGS)
        adv(sWK, 262144, 18 * 262144); adv(sWS, 16384, 65536)
    def iss_X():
        a("s_add_u32 m0, s%d, s%d" % (sBb, sXS))
        for ii in range(6):
            if ii == 4: a("s_add_u32 m0, m0, 4096")
            a("s_add_u32 s%d, s%d, %d" % (sT0, sXK, 9216 * ii - (ii & 3) * 1024))
            dma(a, vX + (ii & 1), sX, sT0, (ii & 3) * 1024, W_FLAGS)
        adv(sXK, 128, 9 * 128); a("s_xor_b32 s%d, s%d, %d" % (sXS, sXS, XSLOT))
    def iss_O():
        a("s_add_u32 s%d, s%d, s%d" % (sT1, sLW3072, sOK))
        a("s_add_u32 m0, s%d, s%d" % (sLW4096, sOS))
        for ii in range(16):
            if ii % 4 == 0 and ii: a("s_add_u32 m0, m0, 4096")
            a("s_add_u32 s%d, s%d, %d" % (sT0, sT1, 9216 * ii - (ii & 3) * 1024))
            dma(a, vO, sWO, sT0, (ii & 3) * 1024, O_FLAGS)
        adv(sOK, 128, 9 * 128); adv(sOS, PAIR, 4 * PAIR)
    tr = [16]
    def bar(w=None):
        if w is not None and "nowait" not in OPT: a("s_waitcnt vmcnt(%d)" % w)
        a("s_barrier")
    def loop(n, body, name):
        lab = a.label(name)
        a("s_mov_b32 s%d, 0" % sCNT); a("%s:" % lab)
        body()
        a("s_add_u32 s%d, s%d, 1" % (sCNT, sCNT)); a("s_cmp_lt_u32 s%d, %d" % (sCNT, n)); a("s_cbranch_scc1 %s" % lab)
    if "look2" not in OPT:
        if "split0" in OPT:
            li = a.label("Lwi"); sk0 = a.label("Lwi0")
            a("s_mov_b32 s%d, 0" % sCNT); a("%s:" % li)
            iss_X(); iss_W(); iss_W()
            a("s_cmp_lg_u32 s%d, 0" % sCNT); a("s_cbranch_scc1 %s" % sk0)
            bar(8)
            a("s_mov_b32 s%d, 1" % sCNT); a("s_branch %s" % li)
            a("%s:" % sk0)
        else:
            loop(2, lambda: (iss_X(), iss_W(), iss_W()), "Lwi")
            bar(30)
        bar(22)
        iss_W()
        def qbody():
            bar(16)
            iss_X(); iss_W()
            bar(22)
            sk = a.label("Lwl"); a("s_cmp_eq_u32 s%d, 6" % sCNT); a("s_cbranch_scc1 %s" % sk)
            iss_W()
            a("%s:" % sk)
        loop(7, qbody, "Lwq")
        bar(8)
        bar(0)
    else:
        if STAMP: stamp(a, 17)
        iss_X(); iss_W(); iss_W()
        if STAMP: stamp(a, 18)
        def qbody():
            bar(8)
            iss_X(); iss_W()
            bar(14)
            iss_W()
        loop(8, qbody, "Lwq")
        bar(8)
        bar(0)
    bar(None); bar(None)
    stamp(a, 8)
    def cpf():
        sk = a.label("Lcp"); a("s_cmp_lg_u32 s%d, 1" % sLW); a("s_cbranch_scc1 %s" % sk); code_prefetch(a); a("%s:" % sk)
    if "kv4" in OPT: attn_kv4(a, True, iss_O, cpf)
    else:
        loop(CPF_AT, lambda: bar(None), "Lwa")
        cpf()
        loop(13 - CPF_AT, lambda: bar(None), "Lwb")
        loop(2, lambda: (bar(None), iss_O()), "Lwo")
        bar(16)
        iss_O()
    a("s_barrier"); a("s_barrier")
    loop(6, lambda: (bar(16), iss_O()), "Lwp")
    bar(0)
    a("s_barrier"); a("s_barrier"); a("s_barrier")
    stamp(a, 9)
    a("s_add_u32 s%d, s%d, 4" % (sCNT, sLW))
    a("s_branch L_reduce")

def gen_kvloader(a):
    vK, vV = 10, 11
    a.stamp_wave = -1
    a("s_sub_u32 s%d, s%d, 2" % (sLW, sLW))
    a("v_lshrrev_b32 v2, 4, v1"); a("v_and_b32 v3, 15, v1")
    a("s_lshl_b32 s%d, s%d, 13" % (sT0, sLW))
    a("v_lshlrev_b32 v4, 8, v2"); a("v_add_u32 v4, s%d, v4" % sT0)
    a("v_xor_b32 v5, v2, v3"); a("v_lshlrev_b32 v5, 4, v5"); a("v_add_u32 v%d, v4, v5" % vK)
    a("v_lshlrev_b32 v5, 1, v2"); a("v_xor_b32 v5, v5, v3"); a("v_lshlrev_b32 v5, 4, v5"); a("v_add_u32 v%d, v4, v5" % vV)
    a("s_mul_i32 s%d, s%d, %d" % (sLWK, sLW, 8 * KGRP)); a("s_mul_i32 s%d, s%d, %d" % (sLWV, sLW, 8 * VGRP))
    sROT = 92
    if "krot" in OPT:
        a("s_mul_i32 s%d, s%d, %d" % (sROT, sXCD, KROT[0])); a("s_mul_i32 s%d, s%d, %d" % (sT0, sIDX, KROT[1])); a("s_add_u32 s%d, s%d, s%d" % (sROT, sROT, sT0))
    q = VQ(); bar = mk_bar(a, q, None)
    def iss(T, isK, lo=0, hi=8):
        for ii in range(lo, hi):
            if "krot" in OPT:
                if ii == lo: a("s_add_u32 s%d, s%d, %d" % (sT2, sROT, T)); a("s_and_b32 s%d, s%d, 15" % (sT2, sT2)); a("s_lshl_b32 s%d, s%d, 14" % (sT2, sT2))
                if ii % 4 == 0 or ii == lo: a("s_add_u32 s%d, s%d, %d" % (sT0, sT2, (ii >> 2) * 4096))
            elif ii % 4 == 0 or ii == lo: a("s_mov_b32 s%d, %d" % (sT0, T * 16384 + (ii >> 2) * 4096))
            grp = KGRP if isK else VGRP
            a("s_add_u32 m0, s%d, %d" % (sLWK if isK else sLWV, (T % 4) * PAIR + (0 if isK else VOFF) + ii * grp - (ii & 3) * 1024))
            if ii % 4: a("s_nop 0")
            else: a("s_nop 0")
            dma(a, vK if isK else vV, sK if isK else sV, sT0, (ii & 3) * 1024, KV_FLAGS)
        q.issue("I%d" % T, hi - lo)
    def prefetch_q():
        sk = a.label("Lpfq"); skx = a.label("Lpfx")
        a("s_cmp_lg_u32 s%d, %d" % (sLW, PF_WAVE)); a("s_cbranch_scc1 %s" % sk)
        a("s_cmp_ge_u32 s%d, 28" % sIDX); a("s_cbranch_scc1 %s" % sk)
        a("s_cmp_ge_u32 s%d, 16" % sIDX); a("s_cbranch_scc1 %s" % skx)
        a("s_lshl_b32 s%d, s%d, 2" % (sT0, sIDX)); a("v_add_u32 v5, s%d, v2" % sT0); a("v_lshlrev_b32 v5, 13, v5"); a("v_lshlrev_b32 v6, 7, v3"); a("v_add_u32 v5, v5, v6")
        for cp in range(PF_FIRST, 9):
            a("s_mov_b32 s%d, %d" % (sT0, cp * 64 * 8192)); a("buffer_load_dword v%d, v5, %s, s%d offen" % (20 + cp, srd(sPF), sT0))
        a("s_branch %s" % sk)
        a("%s:" % skx)
        a("s_sub_u32 s%d, s%d, 16" % (sT0, sIDX)); a("s_lshl_b32 s%d, s%d, 6" % (sT0, sT0)); a("v_add_u32 v5, s%d, v1" % sT0); a("v_mul_u32_u24 v5, 1152, v5")
        for cp in range(PF_FIRST, 9):
            a("s_mov_b32 s%d, %d" % (sT0, cp * 128)); a("buffer_load_dword v%d, v5, %s, s%d offen" % (20 + cp, srd(sPF2), sT0))
        a("%s:" % sk)
    def clear_flags():
        sk = a.label("Lclr")
        a("s_cmp_lg_u32 s%d, 1" % sLW); a("s_cbranch_scc1 %s" % sk)
        a("v_mov_b32 v20, 0"); a("v_mov_b32 v21, 0")
        a("s_lshl_b32 s%d, s%d, 3" % (sT0, sH))
        a("v_lshlrev_b32 v5, 7, v1"); a("v_add_u32 v5, s%d, v5" % sT0); a("v_mov_b32 v7, 0x40000000"); a("v_cmp_gt_u32 vcc, 9, v1"); a("s_nop 1"); a("v_cndmask_b32 v5, v7, v5, vcc")
        a("buffer_store_dwordx2 v[20:21], v5, %s, 0 offen sc0 sc1" % srd(sFL))
        a("s_waitcnt vmcnt(0)")
        a("s_lshl_b32 s%d, s%d, 4" % (sT0, sB)); a("v_mov_b32 v5, s%d" % sT0); a("v_mov_b32 v6, 1")
        a("s_mov_b64 s[96:97], exec"); a("s_mov_b64 exec, 1")
        a("global_atomic_add v5, v6, s[16:17] sc1")
        a("s_mov_b64 exec, s[96:97]")
        a("%s:" % sk)
    if "cpf0" in OPT:
        sk = a.label("Lcp0"); a("s_cmp_lg_u32 s%d, 1" % sLW); a("s_cbranch_scc1 %s" % sk); code_prefetch(a); a("%s:" % sk)
    if "notlb" not in OPT:
        sk = a.label("Ltlb")
        a("s_cmp_lg_u32 s%d, 0" % sLW); a("s_cbranch_scc1 %s" % sk)
        a("v_mov_b32 v5, 0")
        for i, sr in enumerate((sK, sV, sWO, sP, sOUT)): a("buffer_load_dword v%d, v5, %s, 0 offen nt" % (33 + i, srd(sr)))
        a("v_mul_u32_u24 v5, %d, v1" % (PART // 8)); a("v_lshlrev_b32 v5, 3, v5"); a("v_mov_b32 v7, 0x40000000"); a("v_cmp_gt_u32 vcc, 16, v1"); a("s_nop 1"); a("v_cndmask_b32 v5, v7, v5, vcc")
        a("buffer_load_dword v38, v5, %s, 0 offen nt" % srd(sPB))
        a("%s:" % sk)
    clear_flags()
    if "nopfq" not in OPT and PF_AT < 0: prefetch_q()
    for s in range(18):
        bar(None)
        if "nopfq" not in OPT and PF_AT == s: prefetch_q()
        for e in KSCHED.get(s, []): iss(e[1], e[0] == "K", *e[2:])
    bar(None)
    for e in KSCHED.get(18, []): iss(e[1], e[0] == "K", *e[2:])
    bar(["I0", "I1"] if "wait01" in OPT else ["I0"])
    for e in KSCHED.get(19, []): iss(e[1], e[0] == "K", *e[2:])
    if "kv4" in OPT:
        assert FIRST_RULE == 1
        attn_kv4(a, False)
    else:
        sTK, sKS = 93, 91
        def item_dyn():
            a("s_add_u32 s%d, s%d, s%d" % (sT1, sLWK, sKS)); a("s_add_u32 s%d, s%d, s%d" % (sT2, sLWV, sKS))
            for isK in (True, False):
                for ii in range(8):
                    if ii % 4 == 0: a("s_add_u32 s%d, s%d, %d" % (sT0, sTK, (ii >> 2) * 4096))
                    grp = KGRP if isK else VGRP
                    a("s_add_u32 m0, s%d, %d" % (sT1 if isK else sT2, (0 if isK else VOFF) + ii * grp - (ii & 3) * 1024)); a("s_nop 0")
                    dma(a, vK if isK else vV, sK if isK else sV, sT0, (ii & 3) * 1024, KV_FLAGS)
            a("s_add_u32 s%d, s%d, 16384" % (sTK, sTK))
            a("s_add_u32 s%d, s%d, %d" % (sKS, sKS, PAIR)); a("s_cmp_eq_u32 s%d, %d" % (sKS, 4 * PAIR)); a("s_cselect_b32 s%d, 0, s%d" % (sKS, sKS))
        def wv(n):
            if "nowait" not in OPT: a("s_waitcnt vmcnt(%d)" % n)
        if LAG:
            a("s_mov_b32 s%d, %d" % (sTK, 2 * 16384)); a("s_mov_b32 s%d, %d" % (sKS, 2 * PAIR))
            lab = a.label("Lkvl"); a("s_mov_b32 s%d, 1" % sCNT); a("%s:" % lab)
            wv(0); a("s_barrier"); item_dyn()
            a("s_add_u32 s%d, s%d, 1" % (sCNT, sCNT)); a("s_cmp_le_u32 s%d, %d" % (sCNT, LAG)); a("s_cbranch_scc1 %s" % lab)
            item_dyn()
            first = LAG + 1
        else:
            if FIRST_RULE == 2:
                n1 = q.wait(["I1"])
                if n1 is not None: wv(n1)
                a("s_barrier")
            a("s_mov_b32 s%d, %d" % (sTK, (FIRST_RULE + 2) * 16384)); a("s_mov_b32 s%d, %d" % (sKS, ((FIRST_RULE + 2) % 4) * PAIR))
            first = FIRST_RULE
        lab = a.label("Lkv"); a("s_mov_b32 s%d, %d" % (sCNT, first - 1)); a("%s:" % lab)
        wv(16)
        a("s_barrier")
        item_dyn()
        a("s_add_u32 s%d, s%d, 1" % (sCNT, sCNT)); a("s_cmp_lt_u32 s%d, 13" % sCNT); a("s_cbranch_scc1 %s" % lab)
        wv(16)
        a("s_barrier")
        wv(0)
        a("s_barrier")
        a("s_barrier")
    if "nored" not in OPT:
        sk = a.label("Ldbg"); lp = a.label("Ldbgw")
        a("s_cmp_lg_u32 s%d, 0" % sLW); a("s_cbranch_scc1 %s" % sk)
        a("s_lshl_b32 s%d, s%d, 4" % (sT0, sB)); a("v_mov_b32 v10, s%d" % sT0); a("s_mov_b32 s%d, 0" % sT3)
        a("%s:" % lp)
        a("global_load_dword v12, v10, s[16:17] sc1"); a("s_waitcnt vmcnt(0)"); a("v_readfirstlane_b32 s%d, v12" % sT1)
        a("s_add_u32 s%d, s%d, 1" % (sT3, sT3)); a("s_cmp_gt_u32 s%d, %d" % (sT3, SPIN_MAX)); a("s_cbranch_scc1 %s" % sk)
        a("s_cmp_lt_u32 s%d, 16" % sT1); a("s_cbranch_scc1 %s" % lp)
        a("%s:" % sk)
    a("s_barrier"); a("s_barrier")
    vPR, vPO, vF, vOne = 20, 24, 25, 26
    sCH = 93
    a("v_lshlrev_b32 v%d, 4, v1" % vPO)
    a("s_mul_i32 s%d, s%d, 6144" % (sT0, sLW)); a("s_add_u32 s%d, s%d, %d" % (sT0, sT0, PB0)); a("v_add_u32 v%d, s%d, v%d" % (vPR, sT0, vPO)); a("v_add_u32 v%d, 3072, v%d" % (vPR + 1, vPR))
    a("s_mul_i32 s%d, s%d, %d" % (sT0, sLW, 2 * PAIR)); a("s_add_u32 s%d, s%d, 32768" % (sT0, sT0)); a("v_add_u32 v%d, s%d, v%d" % (vPR + 2, sT0, vPO)); a("v_add_u32 v%d, %d, v%d" % (vPR + 3, PAIR, vPR + 2))
    a("s_mul_i32 s%d, s%d, 6144" % (sT0, sLW)); a("v_add_u32 v%d, s%d, v%d" % (vPO, sT0, vPO))
    a("v_mov_b32 v%d, 1" % vOne)
    a("s_lshl_b32 s%d, s%d, 3" % (sT0, sH)); a("s_lshl_b32 s%d, s%d, 2" % (sT1, sLW)); a("s_add_u32 s%d, s%d, s%d" % (sT0, sT0, sT1))
    a("v_mov_b32 v%d, 0x40000000" % vF); a("s_nop 0"); a("v_writelane_b32 v%d, s%d, 0" % (vF, sT0))
    a("s_mov_b32 s%d, 0" % sCH)
    def flag_store(back):
        a("s_sub_u32 s%d, s%d, %d" % (sT0, sCH, back)); a("s_lshl_b32 s%d, s%d, 7" % (sT0, sT0))
        a("buffer_store_dword v%d, v%d, %s, s%d offen sc0 sc1" % (vOne, vF, srd(sFL), sT0))
    def turn(buf, guard):
        for w2 in range(2):
            for j in range(3): a("ds_read_b128 %s, v%d offset:%d" % (vr(64 + 32 * buf + 4 * (3 * w2 + j), 4), vPR + 2 * buf + w2, j * 1024))
        a("s_mul_i32 s%d, s%d, 12288" % (sT0, sCH))
        for i in range(6):
            a("s_waitcnt lgkmcnt(%d)" % (5 - i))
            if "nostore" not in OPT: a("buffer_store_dwordx4 %s, v%d, %s, s%d offen%s" % (vr(64 + 32 * buf + 4 * i, 4), vPO, srd(sP), sT0, P_FLAGS))
            if i < 5: a("s_add_u32 s%d, s%d, 1024" % (sT0, sT0))
        if "nored" not in OPT:
            sk = a.label("Lfl")
            if guard: a("s_cmp_lt_u32 s%d, 2" % sCH); a("s_cbranch_scc1 %s" % sk)
            a("s_waitcnt vmcnt(%d)" % FLW)
            flag_store(2)
            a("%s:" % sk)
        a("s_add_u32 s%d, s%d, 1" % (sCH, sCH))
    a("s_barrier")
    lab = a.label("Lsto"); a("%s:" % lab)
    a("s_barrier"); turn(0, True)
    a("s_barrier"); turn(1, True)
    a("s_cmp_lt_u32 s%d, 8" % sCH); a("s_cbranch_scc1 %s" % lab)
    a("s_barrier"); turn(0, False)
    if "nored" not in OPT:
        a("s_waitcnt vmcnt(7)"); flag_store(2)
        a("s_waitcnt vmcnt(1)"); flag_store(1)
    a("s_cmp_eq_u32 s%d, 0" % sLW); a("s_cselect_b32 s%d, 7, 6" % sCNT)
    a("s_branch L_reduce")

KSCHED = {2: [("K", 0)], 5: [("V", 0)], 8: [("K", 1)], 11: [("V", 1)], 16: [("K", 2)], 17: [("V", 2)]}

def gen_reducer(a):
    a("L_reduce:")
    if "nored" in OPT:
        a.stamp_wave = 4; stamp_flush(a); a("s_endpgm"); return
    rho = sCNT
    giveup = a.label("Lgiveup"); poll = a.label("Lpoll")
    a("s_mul_i32 s%d, s%d, 7" % (sT0, rho)); a("s_cmp_eq_u32 s%d, 7" % rho); a("s_cselect_b32 s%d, 48, s%d" % (sT0, sT0))
    a("s_mul_hi_u32 s%d, s%d, %d" % (sT2, sT0, (2**32 + 5) // 6))
    a("s_cmp_ge_u32 s%d, 6" % rho); a("s_cselect_b32 s%d, 48, 56" % sTASK2); a("s_cselect_b32 s%d, 0, -1" % sCNT2)
    a("v_lshlrev_b32 v9, 2, v1"); a("v_mov_b32 v7, 0x40000000")
    a("s_lshl_b32 s%d, s%d, 7" % (sT2, sT2))
    a("buffer_load_dword v11, v9, %s, s%d offen sc1" % (srd(sFL), sT2))
    a("v_lshrrev_b32 v2, 3, v1"); a("v_add_u32 v2, s%d, v2" % sT0)
    a("v_mul_u32_u24 v8, 10923, v2"); a("v_lshrrev_b32 v8, 16, v8")
    a("v_mul_u32_u24 v5, 6, v8"); a("v_sub_u32 v2, v2, v5")
    a("v_lshlrev_b32 v2, 3, v2"); a("v_and_b32 v5, 7, v1"); a("v_add_u32 v2, v2, v5")
    a("s_mul_i32 s%d, s%d, 48" % (sT1, sH)); a("v_add_u32 v2, s%d, v2" % sT1)
    a("v_mul_u32_u24 v3, 12288, v8"); a("v_lshlrev_b32 v5, 4, v2"); a("v_add_u32 v3, v3, v5")
    a("v_cmp_gt_u32 vcc, s%d, v1" % sTASK2); a("s_nop 1"); a("v_cndmask_b32 v3, v7, v3, vcc")
    a("v_lshrrev_b32 v4, 6, v2"); a("v_and_b32 v5, 63, v2")
    a("v_cmp_le_u32 s[96:97], 6, v4"); a("s_nop 1"); a("v_cndmask_b32 v6, 0, 1, s[96:97]")
    a("v_mul_u32_u24 v10, 6, v6"); a("v_sub_u32 v4, v4, v10")
    a("v_lshlrev_b32 v4, 4, v4"); a("v_and_b32 v10, 15, v5"); a("v_add_u32 v4, v4, v10"); a("v_mul_u32_u24 v4, 1152, v4")
    a("v_lshlrev_b32 v6, 6, v6"); a("v_lshrrev_b32 v5, 4, v5"); a("v_lshlrev_b32 v5, 3, v5"); a("v_add_u32 v4, v4, v6"); a("v_add_u32 v4, v4, v5")
    a("s_and_b32 s%d, s%d, 7" % (sT1, sB)); a("v_add_u32 v8, s%d, v8" % sT1)
    a("v_cmp_le_u32 s[96:97], 9, v8"); a("s_nop 1"); a("v_cndmask_b32 v6, 0, 9, s[96:97]"); a("v_sub_u32 v8, v8, v6"); a("v_lshlrev_b32 v8, 7, v8"); a("v_add_u32 v4, v4, v8")
    a("v_cndmask_b32 v4, v7, v4, vcc")
    a("s_mov_b32 s%d, 0" % sT3)
    a("s_branch %s_chk" % poll)
    a("%s:" % poll)
    a("buffer_load_dword v11, v9, %s, s%d offen sc1" % (srd(sFL), sT2))
    a("%s_chk:" % poll)
    a("s_waitcnt vmcnt(0)")
    a("v_cmp_eq_u32 vcc, 1, v11")
    a("s_add_u32 s%d, s%d, 1" % (sT3, sT3)); a("s_cmp_gt_u32 s%d, %d" % (sT3, SPIN_MAX)); a("s_cbranch_scc1 %s" % giveup)
    a("s_orn2_b32 vcc_hi, vcc_hi, s%d" % sCNT2)
    a("s_cmp_eq_u64 vcc, -1"); a("s_cbranch_scc0 %s" % poll)
    a("s_mov_b32 s%d, 0" % sT0)
    for h in range(16):
        a("buffer_load_dwordx4 v[%d:%d], v3, %s, s%d offen%s" % (64 + 4 * h, 67 + 4 * h, srd(sPB), sT0, R_FLAGS))
        if h < 15: a("s_add_u32 s%d, s%d, %d" % (sT0, sT0, PART))
    if "dot2" in OPT:
        a("v_mov_b32 v12, 0x00003f80"); a("v_mov_b32 v13, 0x3f800000")
        for r in range(8): a("v_mov_b32 v%d, 0" % (48 + r))
    for h in range(16):
        a("s_waitcnt vmcnt(%d)" % (15 - h))
        for r in range(4):
            src = 64 + 4 * h + r
            if "dot2" in OPT:
                a("v_dot2c_f32_bf16 v%d, v%d, v12" % (48 + 2 * r, src)); a("v_dot2c_f32_bf16 v%d, v%d, v13" % (49 + 2 * r, src))
            elif h == 0:
                a("v_lshlrev_b32 v%d, 16, v%d" % (48 + 2 * r, src)); a("v_and_b32 v%d, 0xffff0000, v%d" % (49 + 2 * r, src))
            else:
                a("v_lshlrev_b32 v12, 16, v%d" % src); a("v_and_b32 v13, 0xffff0000, v%d" % src)
                a("v_add_f32 v%d, v%d, v12" % (48 + 2 * r, 48 + 2 * r)); a("v_add_f32 v%d, v%d, v13" % (49 + 2 * r, 49 + 2 * r))
    for r in range(4): a("v_cvt_pk_bf16_f32 v%d, v%d, v%d" % (56 + r, 48 + 2 * r, 49 + 2 * r))
    a("buffer_store_dwordx2 v[56:57], v4, %s, 0 offen%s" % (srd(sOUT), OUT_FLAGS))
    a("buffer_store_dwordx2 v[58:59], v4, %s, 0 offen offset:32%s" % (srd(sOUT), OUT_FLAGS))
    a("%s:" % giveup)
    if STAMP:
        sk = a.label("Lnst"); a("s_cmp_lg_u32 s%d, 4" % sWAVE); a("s_cbranch_scc1 %s" % sk)
        a.stamp_wave = 4; stamp(a, 15); stamp_flush(a)
        a("%s:" % sk)
    a("s_endpgm")
R_FLAGS = " sc1"
OUT_FLAGS = ""
sTASK2 = 101
sCNT2 = 95
PB0 = 143360
SPIN_MAX = 200000
sWOP = 70

PF_O_AT = 10
PF_WAVE = 1
PF_FIRST = 4
PF_AT = 0
PF0 = 2
RAMP = 0
LAG = 0
RAMP_EVERY = 1
FLW = 12
STG_AT = 7
NSTG0 = 3
ROTQ = (1, 0, 2, 0)
KROT = (2, 1)
CPF_AT = 11
FIRST_RULE = 1
CMP_SLACK = 6
FLAG_DELAY = 4

def O_(j, db): return (j * 8 + db) * 4
def Q_(j, s): return 96 + (j * 4 + s) * 4
def KF(f): return 144 + 4 * f
def VF(db): return 176 + 4 * db
def S_(par): return 208 + 8 * par
def P_(par): return 224 + 4 * par
def N_(j): return 232 + 4 * j
def L_(j): return 244 + j
vKA, vVA, vT, vT2, vS, vLANE = 247, 248, 252, 253, 254, 255
MF = "v_mfma_f32_16x16x32_bf16"

def interleave(mfmas, fillers):
    out = list(fillers.get(-1, []))
    for i, m in enumerate(mfmas):
        out.append(m); out += fillers.get(i, [])
    return out
def spread(items, slots):
    d = {}; n = len(items)
    for i, it in enumerate(items): d.setdefault(slots[i * len(slots) // n], []).append(it)
    return d
def merge(*ds):
    o = {}
    for d in ds:
        for k, v in d.items(): o.setdefault(k, []).extend(v)
    return o

KORD = [(kb, s) for s in range(4) for kb in range(2)]
def k_read(kb, s, half, ad=None):
    return "ds_read_b128 %s, v%d offset:%d" % (vr(KF(kb * 4 + s), 4), vKA if ad is None else ad, half * 8 * KGRP + kb * 4 * KGRP + s * 64)
def v_reads(db, half):
    A, cc = divmod(db, 4)
    o = half * 8 * VGRP + A * 128
    return ["ds_read_b64_tr_b16 %s, v%d offset:%d" % (vr(VF(db), 2), vVA + cc, o), "ds_read_b64_tr_b16 %s, v%d offset:%d" % (vr(VF(db) + 2, 2), vVA + cc, o + 4 * VGRP)]

TAB = None
def hoist_waits(lines):
    out = []
    for l in lines:
        if l.startswith("s_waitcnt lgkmcnt") and out:
            n = int(l.split("(")[1].split(")")[0])
            k = len(out) - 1; jumped = 0; ok = False
            while k >= 0:
                x = out[k]
                if x.startswith("v_mfma"): ok = True; break
                if x.endswith(":") or x.startswith(("s_cbranch", "s_barrier", "s_waitcnt")): break
                if x.startswith("ds_"): jumped += 1
                k -= 1
            if ok and n - jumped >= 0:
                out.insert(k + 1, "s_waitcnt lgkmcnt(%d)" % (n - jumped)); continue
        out.append(l)
    return out

def gen_compute(a):
    rare = []
    a("v_and_b32 v%d, 63, v0" % vLANE)
    a("s_lshr_b32 s%d, s%d, 1" % (sQI, sWAVE)); a("s_and_b32 s%d, s%d, 1" % (sRH, sWAVE))
    g, rp, c, q = 240, 241, 242, 243
    a("v_lshrrev_b32 v%d, 4, v%d" % (g, vLANE)); a("v_bfe_u32 v%d, v%d, 2, 2" % (rp, vLANE)); a("v_and_b32 v%d, 3, v%d" % (c, vLANE)); a("v_and_b32 v%d, 15, v%d" % (q, vLANE))
    vWA, vXA = 232, 244
    t, t2 = vT, vT2
    a("v_lshlrev_b32 v%d, 3, v%d" % (t, g)); a("v_add_u32 v%d, v%d, v%d" % (t, t, rp)); a("v_lshlrev_b32 v%d, 9, v%d" % (t, t))
    a("v_and_b32 v%d, 1, v%d" % (t2, g)); a("v_lshlrev_b32 v%d, 2, v%d" % (t2, t2)); a("v_add_u32 v%d, v%d, v%d" % (t2, t2, rp)); a("v_lshlrev_b32 v%d, 5, v%d" % (t2, t2))
    a("v_add_u32 v%d, v%d, v%d" % (t, t, t2)); a("v_lshlrev_b32 v%d, 3, v%d" % (t2, c)); a("v_add_u32 v%d, v%d, v%d" % (t, t, t2))
    a("s_lshl_b32 s%d, s%d, 8" % (sT0, sQI)); a("s_add_u32 s%d, s%d, %d" % (sT0, sT0, WBASE)); a("v_add_u32 v%d, s%d, v%d" % (t, sT0, t))
    assert WBASE % 256 == 0 and XBASE % 128 == 0
    for db in range(8): a("v_xor_b32 v%d, %d, v%d" % (vWA + db, db * 32, t))
    a("s_mul_i32 s%d, s%d, %d" % (sT0, sRH, 48 * 128)); a("s_add_u32 s%d, s%d, %d" % (sT0, sT0, XBASE))
    a("v_lshrrev_b32 v%d, 1, v%d" % (t, q)); a("v_xor_b32 v%d, v%d, v%d" % (t, t, g)); a("v_lshlrev_b32 v%d, 4, v%d" % (t, t))
    a("v_lshlrev_b32 v%d, 7, v%d" % (t2, q)); a("v_add_u32 v%d, v%d, v%d" % (t, t, t2)); a("v_add_u32 v%d, s%d, v%d" % (vXA, sT0, t)); a("v_xor_b32 v%d, 64, v%d" % (vXA + 1, vXA))
    a("v_lshrrev_b32 v%d, 2, v%d" % (t, q)); a("v_mul_u32_u24 v%d, %d, v%d" % (t, KGRP, t))
    a("v_and_b32 v%d, 3, v%d" % (t2, q)); a("v_lshlrev_b32 v%d, 8, v%d" % (vKA, t2)); a("v_add_u32 v%d, v%d, v%d" % (t, t, vKA))
    a("v_xor_b32 v%d, v%d, v%d" % (t2, t2, g)); a("v_lshlrev_b32 v%d, 4, v%d" % (t2, t2)); a("v_add_u32 v%d, v%d, v%d" % (vKA, t, t2))
    a("v_mul_u32_u24 v%d, %d, v%d" % (t, VGRP, g)); a("v_lshlrev_b32 v%d, 8, v%d" % (t2, rp)); a("v_add_u32 v%d, v%d, v%d" % (t, t, t2))
    a("v_lshlrev_b32 v%d, 3, v%d" % (t2, c)); a("v_add_u32 v%d, v%d, v%d" % (t, t, t2)); a("v_add_u32 v%d, %d, v%d" % (t, VOFF, t))
    for cc in range(4):
        a("v_xor_b32 v%d, %d, v%d" % (t2, cc, rp)); a("v_lshlrev_b32 v%d, 5, v%d" % (t2, t2)); a("v_add_u32 v%d, v%d, v%d" % (vVA + cc, t, t2))
    stamp(a, 0, 10)

    def ABUF(buf, db): return 144 + 32 * buf + 4 * db
    def BBUF(buf, j): return 208 + 12 * buf + 4 * j
    def q_reads(s):
        buf = s & 1; wo = ((s + 2) % 4) * 16384; xo = ((s // 2) % 2) * XSLOT
        r = []
        for j in range(3): r.append("ds_read_b128 %s, v%d offset:%d" % (vr(BBUF(buf, j), 4), vXA + (s & 1), xo + j * 2048))
        for db in range(8):
            r.append("ds_read_b64_tr_b16 %s, v%d offset:%d" % (vr(ABUF(buf, db), 2), vWA + db, wo))
            r.append("ds_read_b64_tr_b16 %s, v%d offset:%d" % (vr(ABUF(buf, db) + 2, 2), vWA + db, wo + 2048))
        return r
    for r in range(0, 96, 2): a("v_mov_b64 %s, 0" % vr(r, 2))
    a("s_barrier")
    for x in q_reads(0): a(x)
    def q_stage(s, reads=True):
        buf = s & 1
        a("s_waitcnt lgkmcnt(0)")
        a("s_barrier")
        mf = []
        for db in range(8):
            for j in range(3):
                mf.append("%s %s, %s, %s, %s" % (MF, vr(O_(j, db), 4), vr(ABUF(buf, db), 4), vr(BBUF(buf, j), 4), vr(O_(j, db), 4)))
        rd = q_reads(s + 1) if reads else []
        for x in interleave(mf, spread(rd, list(range(0, 17))) if rd else {}): a(x)
    lq = a.label("Lq")
    a("s_mov_b32 s%d, 0" % sCNT); a("%s:" % lq)
    for s in range(4): q_stage(s)
    a("s_add_u32 s%d, s%d, 1" % (sCNT, sCNT)); a("s_cmp_lt_u32 s%d, 4" % sCNT); a("s_cbranch_scc1 %s" % lq)
    q_stage(16); q_stage(17, reads=False)
    stamp(a, 1, 11)
    a("s_nop 7")
    a("s_mov_b32 s%d, %s" % (sT0, f32(C_SCALE))); a("s_mov_b32 s%d, s%d" % (sT0 + 1, sT0))
    for j in range(3):
        for s in range(4):
            X, Y, D = O_(j, 2 * s), O_(j, 2 * s + 1), Q_(j, s)
            for r in range(0, 4, 2):
                a("v_pk_mul_f32 %s, %s, s[%d:%d]" % (vr(X + r, 2), vr(X + r, 2), sT0, sT0 + 1)); a("v_pk_mul_f32 %s, %s, s[%d:%d]" % (vr(Y + r, 2), vr(Y + r, 2), sT0, sT0 + 1))
            a("v_cvt_pk_bf16_f32 v%d, v%d, v%d" % (D + 0, X + 0, X + 1)); a("v_cvt_pk_bf16_f32 v%d, v%d, v%d" % (D + 1, X + 2, X + 3))
            a("v_cvt_pk_bf16_f32 v%d, v%d, v%d" % (D + 2, Y + 0, Y + 1)); a("v_cvt_pk_bf16_f32 v%d, v%d, v%d" % (D + 3, Y + 2, Y + 3))
            for r in range(0, 4, 2):
                a("v_mov_b64 %s, 0" % vr(X + r, 2)); a("v_mov_b64 %s, 0" % vr(Y + r, 2))
            a("v_permlane32_swap_b32 v%d, v%d" % (D + 0, D + 2)); a("v_permlane32_swap_b32 v%d, v%d" % (D + 1, D + 3))
            a("s_nop 1")
            a("v_permlane16_swap_b32 v%d, v%d" % (D + 0, D + 2)); a("v_permlane16_swap_b32 v%d, v%d" % (D + 1, D + 3))
    a("s_barrier")
    for kb, s_ in KORD: a(k_read(kb, s_, 0))
    a("s_waitcnt lgkmcnt(0)")
    for j in range(3):
        for kb, s_ in KORD:
            d = 176 + 8 * j + 4 * kb
            a("%s %s, %s, %s, %s" % (MF, vr(d, 4), vr(KF(kb * 4 + s_), 4), vr(Q_(j, s_), 4), "0" if s_ == 0 else vr(d, 4)))
    for r in range(224, 232, 2): a("v_mov_b64 %s, 0" % vr(r, 2))
    for j in range(3): a("v_mov_b32 v%d, 0" % L_(j))
    a("v_mov_b32 v%d, 0" % vS)
    a("s_mov_b32 s%d, %s" % (sTHR, "0x7f800000" if "norare" in OPT else f32(256.0)))
    a("s_mov_b32 s%d, 0" % sSLOT); a("s_mov_b32 s%d, 0" % sDK)
    a("s_mov_b32 s%d, 0x%x" % (sNEG, -3 * PAIR & 0xffffffff))
    a("s_mov_b64 vcc, 0")
    a("s_nop 3")
    for j in range(3):
        S = 176 + 8 * j; t, t2 = 200 + 2 * j, 201 + 2 * j
        a("v_max3_f32 v%d, v%d, v%d, v%d" % (t, S, S + 1, S + 2)); a("v_max3_f32 v%d, v%d, v%d, v%d" % (t2, S + 3, S + 4, S + 5))
        a("v_max3_f32 v%d, v%d, v%d, v%d" % (t, t, S + 6, S + 7)); a("v_max_f32 v%d, v%d, v%d" % (t, t, t2))
    for sw in ("v_permlane32_swap_b32", "v_permlane16_swap_b32"):
        for j in range(3): a("v_mov_b32 v%d, v%d" % (201 + 2 * j, 200 + 2 * j))
        a("s_nop 0")
        for j in range(3): a("%s v%d, v%d" % (sw, 200 + 2 * j, 201 + 2 * j))
        for j in range(3): a("v_max_f32 v%d, v%d, v%d" % (200 + 2 * j, 200 + 2 * j, 201 + 2 * j))
    for j in range(3):
        for i in range(4): a("v_sub_f32 v%d, 0, v%d" % (N_(j) + i, 200 + 2 * j))
    for r in range(176, 208, 2): a("v_mov_b64 %s, 0" % vr(r, 2))
    def qk_mfmas(jn, par):
        m = []
        for kb, s in KORD:
            d = S_(par) + 4 * kb
            cc = vr(N_(jn), 4) if s == 0 else vr(d, 4)
            m.append("%s %s, %s, %s, %s" % (MF, vr(d, 4), vr(KF(kb * 4 + s), 4), vr(Q_(jn, s), 4), cc))
        return m
    def pv_mfmas(jp, par):
        return ["%s %s, %s, %s, %s" % (MF, vr(O_(jp, db), 4), vr(VF(db), 4), vr(P_(par), 4), vr(O_(jp, db), 4)) for db in range(8)]
    for m in qk_mfmas(0, 0): a(m)
    a("s_nop 7")

    def rare_code(st, j, adv):
        par = (3 * st + j) & 1
        S, P = S_(par), P_(par)
        rl, cont = a.label("Lrare"), a.label("Lcont")
        r = Asm()
        r("%s:" % rl)
        if adv: r("v_subrev_u32 v%d, s%d, v%d" % (vT2, sDK, vKA))
        else: r("v_mov_b32 v%d, v%d" % (vT2, vKA))
        for kb in range(2):
            for s in range(4):
                r("ds_read_b128 %s, v%d offset:%d" % (vr(P, 4), vT2, st * 8 * KGRP + kb * 4 * KGRP + s * 64))
                r("s_waitcnt lgkmcnt(0)")
                cc = vr(N_(j), 4) if s == 0 else vr(S + 4 * kb, 4)
                r("%s %s, %s, %s, %s" % (MF, vr(S + 4 * kb, 4), vr(P, 4), vr(Q_(j, s), 4), cc))
                r("s_nop 3")
        r("s_nop 7")
        r("v_max3_f32 v%d, v%d, v%d, v%d" % (vT, S, S + 1, S + 2)); r("v_max3_f32 v%d, v%d, v%d, v%d" % (vT2, S + 3, S + 4, S + 5))
        r("v_max3_f32 v%d, v%d, v%d, v%d" % (vT, vT, S + 6, S + 7)); r("v_max_f32 v%d, v%d, v%d" % (vT, vT, vT2))
        r("v_mov_b32 v%d, v%d" % (vT2, vT)); r("s_nop 1"); r("v_permlane32_swap_b32 v%d, v%d" % (vT, vT2)); r("v_max_f32 v%d, v%d, v%d" % (vT, vT, vT2))
        r("v_mov_b32 v%d, v%d" % (vT2, vT)); r("s_nop 1"); r("v_permlane16_swap_b32 v%d, v%d" % (vT, vT2)); r("v_max_f32 v%d, v%d, v%d" % (vT, vT, vT2))
        r("v_max_f32 v%d, 0, v%d" % (vT, vT))
        r("v_sub_f32 v%d, 0, v%d" % (vT2, vT)); r("v_exp_f32 v%d, v%d" % (vT2, vT2)); r("s_nop 0")
        r("v_mul_f32 v%d, v%d, v%d" % (L_(j), L_(j), vT2))
        for db in range(8):
            for rr in range(4): r("v_mul_f32 v%d, v%d, v%d" % (O_(j, db) + rr, O_(j, db) + rr, vT2))
        for i in range(4): r("v_sub_f32 v%d, v%d, v%d" % (N_(j) + i, N_(j) + i, vT))
        for i in range(8): r("v_sub_f32 v%d, v%d, v%d" % (S + i, S + i, vT))
        for i in range(8): r("v_exp_f32 v%d, v%d" % (S + i, S + i))
        r("s_nop 0")
        r("v_add_f32 v%d, v%d, v%d" % (vS, S, S + 1))
        for i in range(2, 8): r("v_add_f32 v%d, v%d, v%d" % (vS, vS, S + i))
        for i in range(4): r("v_cvt_pk_bf16_f32 v%d, v%d, v%d" % (P + i, S + 2 * i, S + 2 * i + 1))
        r("s_nop 1")
        r("s_branch %s" % cont)
        rare.append(r.text())
        if "nobr" in OPT: return ["%s:" % cont]
        if "sccbr" in OPT: return ["s_cbranch_scc1 %s" % rl, "%s:" % cont]
        return ["s_cbranch_vccnz %s" % rl, "%s:" % cont]

    def block_tab(st, j, prev, qk=True, kload=None, vlo=None, vhi=None, barrier=False, extra=(), pre_extra=(), klate=None):
        par = (3 * st + j) & 1
        jn, jp = (j + 1) % 3, (j - 1) % 3
        S, P = S_(par), P_(par)
        pre = []
        if barrier: pre.append("s_barrier")
        endbr = []
        if "brend" in OPT:
            endbr = rare_code(st, j, st == 1 and j >= 1)
        elif prev is not None: pre += rare_code(*prev)
        pre += list(pre_extra)
        mf = qk_mfmas(jn, par ^ 1) + pv_mfmas(jp, par ^ 1)
        N = {}
        for i in range(8): N["E%d" % i] = "v_exp_f32 v%d, v%d" % (S + i, S + i)
        for i in range(4):
            N["C%d" % i] = "v_cvt_pk_bf16_f32 v%d, v%d, v%d" % (P + i, S + 2 * i, S + 2 * i + 1)
            N["A%d" % i] = "v_add_f32 v%d, v%d, v%d" % (S + 2 * i, S + 2 * i, S + 2 * i + 1)
        N["B0"] = "v_add_f32 v%d, v%d, v%d" % (S, S, S + 2); N["B1"] = "v_add_f32 v%d, v%d, v%d" % (S + 4, S + 4, S + 6)
        N["SUM"] = "v_add_f32 v%d, v%d, v%d" % (vS, S, S + 4); N["CMP"] = "v_cmp_lt_f32 vcc, s%d, v%d" % (sTHR, vS)
        N["L"] = "v_add_f32 v%d, v%d, v%d" % (L_(jp), L_(jp), vS)
        lds = {g: [] for g in range(16)}
        if "nolds" not in OPT:
            if vlo is not None:
                rs = [x for db in range(4) for x in v_reads(db, vlo)]
                for x, g in zip(rs, TAB["vlo"]): lds[g].append(x)
            if vhi is not None:
                rs = [x for db in range(4, 8) for x in v_reads(db, vhi)]
                for x, g in zip(rs, TAB["vhi"]): lds[g].append(x)
            if kload is not None:
                for (kb, s_), g in zip(KORD[:6], TAB["k"]): lds[g].append(k_read(kb, s_, kload))
            if klate is not None:
                for (kb, s_), g in zip(KORD[6:], TAB["klate"]): lds[g].append(k_read(kb, s_, klate))
        out = list(pre)
        ex = list(extra)
        for g in range(16):
            out.append(mf[g])
            if g == 15 and endbr: out += (["s_cmp_lg_u64 vcc, 0"] if "sccbr" in OPT else []) + endbr
            out += lds[g]
            if "nosm" not in OPT: out += [N[n] for n in TAB["valu"].get(g, [])]
            if g == TAB.get("scc_at", 15) and "sccbr" in OPT and "brend" not in OPT: out.append("s_cmp_lg_u64 vcc, 0")
            if g in TAB.get("extra_at", ()) and ex:
                x = ex.pop(0); out += (x if isinstance(x, list) else [x])
        for x in ex: out += (x if isinstance(x, list) else [x])
        return out

    def block(st, j, prev, qk=True, kload=None, vlo=None, vhi=None, barrier=False, extra=(), pre_extra=(), klate=None):
        if TAB is not None and qk: return block_tab(st, j, prev, qk, kload, vlo, vhi, barrier, extra, pre_extra, klate)
        if "brend" in OPT: prev = None
        if "sccbr" in OPT and prev is not None: pre_extra = list(pre_extra)
        par = (3 * st + j) & 1
        jn, jp = (j + 1) % 3, (j - 1) % 3
        S, P = S_(par), P_(par)
        pre = []
        if barrier: pre.append("s_barrier")
        if prev is not None: pre += rare_code(*prev)
        pre += list(pre_extra)
        mf = (qk_mfmas(jn, par ^ 1) if qk else []) + pv_mfmas(jp, par ^ 1)
        nq = 8 if qk else 0
        if not qk: pre.append("s_nop 1")
        it = []
        Ladd = Item("v_add_f32 v%d, v%d, v%d" % (L_(jp), L_(jp), vS), lo=0, hi=6, pri=5)
        E = [Item("v_exp_f32 v%d, v%d" % (S + i, S + i), lo=0, pri=3) for i in range(8)]
        for i in range(1, 8): pass
        A01 = Item("v_add_f32 v%d, v%d, v%d" % (vT, S, S + 1), deps=[E[0], E[1]])
        A23 = Item("v_add_f32 v%d, v%d, v%d" % (vT2, S + 2, S + 3), deps=[E[2], E[3]])
        B_ = Item("v_add_f32 v%d, v%d, v%d" % (vT, vT, vT2), deps=[A01, A23])
        A45 = Item("v_add_f32 v%d, v%d, v%d" % (vT2, S + 4, S + 5), deps=[E[4], E[5], B_])
        C_ = Item("v_add_f32 v%d, v%d, v%d" % (vT, vT, vT2), deps=[A45])
        A67 = Item("v_add_f32 v%d, v%d, v%d" % (vT2, S + 6, S + 7), deps=[E[6], E[7], C_])
        D_ = Item("v_add_f32 v%d, v%d, v%d" % (vS, vT, vT2), deps=[A67, Ladd])
        CMP = Item("v_cmp_lt_f32 vcc, s%d, v%d" % (sTHR, vS), deps=[D_], hi=len(mf) - CMP_SLACK)
        CV = [Item("v_cvt_pk_bf16_f32 v%d, v%d, v%d" % (P + i, S + 2 * i, S + 2 * i + 1), deps=[E[2 * i], E[2 * i + 1]], hi=len(mf) - 2) for i in range(4)]
        if "nosm" in OPT: it = []
        else: it = [Ladd] + E + [A01, A23, B_, A45, C_, A67, D_, CMP] + CV
        if "nolds" not in OPT:
            if vlo is not None:
                for db in range(4): it.append(Item(v_reads(db, vlo), lo=nq + db, pri=4))
            if vhi is not None:
                for db in range(4, 8): it.append(Item(v_reads(db, vhi), lo=0, hi=nq + db - 7, pri=6))
            if kload is not None:
                for i, (kb, s) in enumerate(KORD[:6]): it.append(Item(k_read(kb, s, kload), lo=max(i, 5), hi=min(15, 9 + i), pri=4))
            if klate is not None:
                for i, (kb, s) in list(enumerate(KORD))[6:]: it.append(Item(k_read(kb, s, klate), lo=0, hi=0, pri=7))
        for x in extra: it.append(Item(x, lo=8))
        return schedule(mf, it, pre)

    def tile(last, first_of_all=False):
        L = []
        L += block(0, 0, (1, 2, True), vlo=0)
        L += block(0, 1, (0, 0, False), vhi=0, kload=1)
        L += block(0, 2, (0, 1, False), klate=1)
        L += block(1, 0, (0, 2, False), vlo=1)
        adv = ["s_add_u32 s%d, s%d, 1" % (sSLOT, sSLOT), "s_and_b32 s%d, s%d, 3" % (sSLOT, sSLOT), "s_cmp_eq_u32 s%d, 0" % sSLOT,
               "s_cselect_b32 s%d, s%d, %d" % (sDK, sNEG, PAIR), "v_add_u32 v%d, s%d, v%d" % (vKA, sDK, vKA)]
        L += block(1, 1, (1, 0, False), vhi=1, kload=(None if last else 0), barrier=True, pre_extra=adv)
        L += block(1, 2, (1, 1, True), qk=not last, klate=(None if last else 0),
                   extra=[["v_add_u32 v%d, s%d, v%d" % (vVA + cc, sDK, vVA + cc)] for cc in range(4)])
        return L
    steady = tile(False)
    del rare[:]
    steady2 = tile(False)
    nr = len(rare)
    lastt = tile(True)
    if "peel" not in OPT: del rare[nr:]
    if TAB is not None:
        body = hoist_waits(auto_lgkm(steady2, entry_lines=steady, age=TAB.get("age")))
        lastb = hoist_waits(auto_lgkm(lastt, entry_lines=steady, age=TAB.get("age")))
    else:
        body = auto_lgkm(steady2, entry_lines=steady)
        lastb = auto_lgkm(lastt, entry_lines=steady)
    if "w0" in OPT:
        import re
        body = [re.sub(r"lgkmcnt\(\d+\)", "lgkmcnt(0)", x) if x.startswith("s_waitcnt lgkmcnt") else x for x in body]
    print("   attention steady tile: model %d cycles (%d/unit), %d instrs" % (model_cycles(body), model_cycles(body) / 6, len(body)))
    loop = a.label("Ltile")
    _stamp(a, 6, "s_memtime")
    a("s_mov_b32 s%d, 0" % sCNT)
    if RAMP:
        import re as _re
        nr2 = len(rare)
        ramp_raw = tile(False)
        rb = auto_lgkm(ramp_raw, entry_lines=steady)
        cnt = [0]
        def _mod(x):
            if not x.startswith("s_waitcnt lgkmcnt"): return x
            cnt[0] += 1
            return "s_waitcnt lgkmcnt(0)" if cnt[0] % RAMP_EVERY == 0 else x
        rb = [_mod(x) for x in rb]
        lr = a.label("Lramp")
        a("%s:" % lr)
        for x in rb: a(x)
        a("s_add_u32 s%d, s%d, 1" % (sCNT, sCNT)); a("s_cmp_lt_u32 s%d, %d" % (sCNT, RAMP)); a("s_cbranch_scc1 %s" % lr)
        a("s_waitcnt lgkmcnt(0)")
    a("%s:" % loop)
    for x in body: a(x)
    a("s_add_u32 s%d, s%d, 1" % (sCNT, sCNT)); a("s_cmp_lt_u32 s%d, %d" % (sCNT, 15 if "peel" in OPT else 16)); a("s_cbranch_scc1 %s" % loop)
    _stamp(a, 7, "s_memtime")
    if "peel" in OPT:
        for x in lastb: a(x)
    else: a("s_waitcnt lgkmcnt(0)")
    for x in rare_code(1, 2, True): a(x)
    a("v_add_f32 v%d, v%d, v%d" % (L_(2), L_(2), vS))
    a("s_nop 1")
    for m in pv_mfmas(2, 1): a(m)
    a("s_nop 7")
    stamp(a, 2, 12)
    for j in range(3):
        L = L_(j)
        a("v_mov_b32 v%d, v%d" % (vT, L)); a("s_nop 1"); a("v_permlane32_swap_b32 v%d, v%d" % (L, vT)); a("v_add_f32 v%d, v%d, v%d" % (L, L, vT))
        a("v_mov_b32 v%d, v%d" % (vT, L)); a("s_nop 1"); a("v_permlane16_swap_b32 v%d, v%d" % (L, vT)); a("v_add_f32 v%d, v%d, v%d" % (L, L, vT))
        a("v_rcp_f32 v%d, v%d" % (L, L))
    a("s_nop 1")
    def OA(s, j): return 96 + (s * 3 + j) * 4
    def OB(s, j): return 144 + (s * 3 + j) * 4
    for j in range(3):
        a("v_mov_b32 v%d, v%d" % (vT2, L_(j))); a("v_mov_b32 v%d, v%d" % (vT, L_(j)))
        for s in range(4):
            X, Y, D = O_(j, 2 * s), O_(j, 2 * s + 1), OA(s, j)
            for r in range(0, 4, 2):
                a("v_pk_mul_f32 %s, %s, %s" % (vr(X + r, 2), vr(X + r, 2), vr(vT, 2))); a("v_pk_mul_f32 %s, %s, %s" % (vr(Y + r, 2), vr(Y + r, 2), vr(vT, 2)))
            a("v_cvt_pk_bf16_f32 v%d, v%d, v%d" % (D + 0, X + 0, X + 1)); a("v_cvt_pk_bf16_f32 v%d, v%d, v%d" % (D + 1, X + 2, X + 3))
            a("v_cvt_pk_bf16_f32 v%d, v%d, v%d" % (D + 2, Y + 0, Y + 1)); a("v_cvt_pk_bf16_f32 v%d, v%d, v%d" % (D + 3, Y + 2, Y + 3))
    vA0, vA1 = 240, 241
    a("v_lshlrev_b32 v%d, 4, v%d" % (vT, vLANE))
    a("s_mul_i32 s%d, s%d, 12288" % (sT0, sWAVE)); a("s_add_u32 s%d, s%d, %d" % (sT0, sT0, EXCH)); a("v_add_u32 v%d, s%d, v%d" % (vA0, sT0, vT))
    a("s_xor_b32 s%d, s%d, 2" % (sT2, sWAVE)); a("s_mul_i32 s%d, s%d, 12288" % (sT0, sT2)); a("s_add_u32 s%d, s%d, %d" % (sT0, sT0, EXCH)); a("v_add_u32 v%d, s%d, v%d" % (vA1, sT0, vT))
    a("s_barrier")
    for i in range(12): a("ds_write_b128 v%d, %s offset:%d" % (vA0, vr(96 + 4 * i, 4), i * 1024))
    vAO, vST = 224, 228
    g, rp, c, t = 242, 243, 244, 245
    a("v_lshrrev_b32 v%d, 4, v%d" % (g, vLANE)); a("v_bfe_u32 v%d, v%d, 2, 2" % (rp, vLANE)); a("v_and_b32 v%d, 3, v%d" % (c, vLANE))
    a("v_lshlrev_b32 v%d, 2, v%d" % (t, g)); a("v_add_u32 v%d, v%d, v%d" % (t, t, rp))
    a("v_lshrrev_b32 v%d, 1, v%d" % (g, t)); a("v_and_b32 v%d, 3, v%d" % (g, g)); a("v_lshlrev_b32 v%d, 5, v%d" % (g, g))
    a("v_lshlrev_b32 v%d, 7, v%d" % (t, t)); a("v_add_u32 v%d, v%d, v%d" % (t, t, g)); a("v_lshlrev_b32 v%d, 3, v%d" % (c, c)); a("v_add_u32 v%d, v%d, v%d" % (t, t, c))
    a("s_lshl_b32 s%d, s%d, 6" % (sT0, sQI)); a("v_xor_b32 v%d, s%d, v%d" % (t, sT0, t))
    a("s_lshl_b32 s%d, s%d, 14" % (sT0, sQI)); a("s_xor_b32 s%d, s%d, 16384" % (sT1, sT0))
    a("v_add_u32 v%d, s%d, v%d" % (vAO + 0, sT0, t)); a("v_xor_b32 v%d, 32, v%d" % (vAO + 1, vAO + 0))
    a("v_add_u32 v%d, s%d, v%d" % (vAO + 2, sT1, t)); a("v_xor_b32 v%d, 32, v%d" % (vAO + 3, vAO + 2))
    a("s_mul_i32 s%d, s%d, 6144" % (sT0, sQI)); a("s_mul_i32 s%d, s%d, 3072" % (sT1, sRH)); a("s_add_u32 s%d, s%d, s%d" % (sT0, sT0, sT1))
    a("v_add_u32 v%d, s%d, v%d" % (vST, sT0, vT))
    a("s_waitcnt lgkmcnt(0)")
    a("s_barrier")
    for i in range(12): a("ds_read_b128 %s, v%d offset:%d" % (vr(144 + 4 * i, 4), vA1, i * 1024))
    stamp(a, 3, 13)
    assert PAIR % 256 == 0
    def AF(i): return 192 + 4 * (i % 8)
    def ACC(buf, z, j): return buf * 24 + (z * 3 + j) * 4
    def PK(buf, j): return 48 + buf * 12 + 4 * j
    def a_reads(G):
        c_, kk = divmod(G, 8)
        hs, s = (0, kk) if kk < 4 else (1, kk - 4)
        r = []
        for z in range(2):
            fr = AF(2 * G + z)
            r.append("ds_read_b64_tr_b16 %s, v%d offset:%d" % (vr(fr, 2), vAO + 2 * hs + z, s * 4096))
            r.append("ds_read_b64_tr_b16 %s, v%d offset:%d" % (vr(fr + 2, 2), vAO + 2 * hs + z, s * 4096 + 2048))
        return r
    LOOK = 3
    def slot_delta(c_from): return (-3 * PAIR if (16 + c_from + 1) % 4 == 0 else PAIR) & 0xffffffff
    for G in range(LOOK):
        for x in a_reads(G): a(x)
    vPW, vPWR = 229, 231
    a("v_lshlrev_b32 v%d, 4, v%d" % (vT, vLANE))
    a("s_mul_i32 s%d, s%d, 3072" % (sT0, sWAVE)); a("s_add_u32 s%d, s%d, %d" % (sT0, sT0, PB0)); a("v_add_u32 v%d, s%d, v%d" % (vPW, sT0, vT))
    a("s_mul_i32 s%d, s%d, %d" % (sT0, sWAVE, PAIR)); a("s_add_u32 s%d, s%d, 32768" % (sT0, sT0)); a("v_add_u32 v%d, s%d, v%d" % (vPWR, sT0, vT))
    a("v_add_u32 v%d, %d, v%d" % (vPW + 1, 156672, vT))
    sD, sDP, sSL = sDK, sNEG + 0, sSLOT
    sD, sDP = 56, 69
    a("s_mov_b32 s%d, 0" % sSLOT); a("s_mov_b32 s%d, 0" % sDP); a("s_mov_b32 s%d, 0x%x" % (sNEG, -3 * PAIR & 0xffffffff))
    def epilogue(buf):
        epi = []
        for j in range(3):
            d = PK(buf, j)
            for z in range(2):
                A_ = ACC(buf, z, j)
                epi.append("v_cvt_pk_bf16_f32 v%d, v%d, v%d" % (d + 2 * z, A_, A_ + 1)); epi.append("v_cvt_pk_bf16_f32 v%d, v%d, v%d" % (d + 2 * z + 1, A_ + 2, A_ + 3))
            epi.append("ds_write_b128 v%d, %s offset:%d" % (vPW + buf, vr(d, 4), j * 1024))
        return epi
    def o_step(buf, last):
        epi = epilogue(buf ^ 1)
        cvts = [x for x in epi if x.startswith("v_cvt")]; wrs = [x for x in epi if x.startswith("ds_write")]
        extra = {kk: {g: [] for g in range(6)} for kk in range(8)}
        if "ostep_old" in OPT:
            seq = epi; pos = [(1, 1), (1, 1), (1, 2), (1, 2), (1, 3), (1, 4), (1, 4), (1, 5), (2, 1), (2, 1), (2, 2), (2, 3), (2, 3), (2, 4), (2, 5)]
            for x, (kk, g) in zip(seq, pos): extra[kk][g].append(x)
        else:
            cpos = [(1, 0), (1, 1), (1, 2), (1, 3), (1, 4), (2, 0), (2, 1), (2, 2), (2, 3), (3, 0), (3, 1), (3, 2)]
            for x, (kk, g) in zip(cvts, cpos): extra[kk][g].append(x)
            for x, (kk, g) in zip(wrs, [(1, 5), (2, 5), (3, 4)]): extra[kk][g].append(x)
        for kk in range(8):
            G = kk
            hs, s = (0, kk) if kk < 4 else (1, kk - 4)
            rd = []; barrier = (kk == 5)
            if kk == 4 and not last:
                extra[4][4] += ["s_add_u32 s%d, s%d, 1" % (sSLOT, sSLOT), "s_and_b32 s%d, s%d, 3" % (sSLOT, sSLOT)]
                extra[4][5] += ["s_cmp_eq_u32 s%d, 0" % sSLOT, "s_cselect_b32 s%d, s%d, %d" % (sD, sNEG, PAIR)]
            pre = []
            if kk == 5 and not last:
                pre += ["v_add_u32 v%d, s%d, v%d" % (vAO + 0, sD, vAO + 0), "v_add_u32 v%d, s%d, v%d" % (vAO + 1, sD, vAO + 1)]
                extra[6][4].append("s_mov_b32 s%d, s%d" % (sDP, sD))
            if kk == 0:
                extra[0][4].append("v_add_u32 v%d, s%d, v%d" % (vAO + 2, sDP, vAO + 2)); extra[0][5].append("v_add_u32 v%d, s%d, v%d" % (vAO + 3, sDP, vAO + 3))
            if kk == 4 and buf == 0: extra[4][3].append("v_mov_b32 v%d, v%d" % (vPW + 1, vPWR))
            if not (last and kk + LOOK >= 8): rd = a_reads(G + LOOK)
            younger = 4 * (LOOK - 1) if not last else 4 * min(LOOK - 1, 7 - kk)
            if barrier: younger = min(younger, 4)
            a("s_waitcnt lgkmcnt(%d)" % younger)
            if barrier: a("s_barrier")
            for x in pre: a(x)
            mf = []
            for z in range(2):
                for j in range(3):
                    bsrc = OA(s, j) if hs == 0 else OB(s, j)
                    cc = "0" if kk == 0 else vr(ACC(buf, z, j), 4)
                    mf.append("%s %s, %s, %s, %s" % (MF, vr(ACC(buf, z, j), 4), vr(AF(2 * G + z), 4), vr(bsrc, 4), cc))
            fill = spread(rd, [0, 1, 2, 3]) if rd else {}
            fill = merge(fill, extra[kk])
            for x in interleave(mf, fill): a(x)
    lo = a.label("Lo")
    a("s_mov_b32 s%d, 0" % sCNT); a("%s:" % lo)
    o_step(0, False); o_step(1, False)
    a("s_add_u32 s%d, s%d, 1" % (sCNT, sCNT)); a("s_cmp_lt_u32 s%d, 4" % sCNT); a("s_cbranch_scc1 %s" % lo)
    o_step(0, True)
    a("s_nop 7")
    for x in epilogue(0): a(x)
    a("s_waitcnt lgkmcnt(0)")
    a("s_barrier")
    stamp(a, 4, 14)
    stamp(a, 5)
    stamp_flush(a)
    a("v_mov_b32 v1, v%d" % vLANE)
    a("s_mov_b32 s%d, s%d" % (sCNT, sWAVE))
    a("s_branch L_reduce")
    for r in rare: a(r)

def mk_srd(a, b, lo, hi, off, size):
    a("s_add_u32 s%d, s%d, s%d" % (b, lo, off)); a("s_addc_u32 s%d, s%d, 0" % (b + 1, hi)); a("s_mov_b32 s%d, %d" % (b + 2, size)); a("s_mov_b32 s%d, 0x20000" % (b + 3))

def gen_k1():
    a = Asm(); a.stamp_wave = 0; a.stamp_tmp = 252
    common_prologue(a, "L_k1_end", 256)
    a("s_and_b32 s%d, s2, 7" % sXCD); a("s_lshr_b32 s%d, s2, 3" % sIDX)
    a("s_and_b32 s%d, s%d, 1" % (sB, sXCD)); a("s_lshl_b32 s%d, s%d, 3" % (sB, sB)); a("s_and_b32 s%d, s%d, 7" % (sT2, sIDX)); a("s_add_u32 s%d, s%d, s%d" % (sB, sB, sT2))
    a("s_lshr_b32 s%d, s%d, 1" % (sH, sXCD)); a("s_lshl_b32 s%d, s%d, 2" % (sH, sH)); a("s_lshr_b32 s%d, s%d, 3" % (sT2, sIDX)); a("s_add_u32 s%d, s%d, s%d" % (sH, sH, sT2))
    a("s_lshl_b32 s%d, s%d, 4" % (sT0, sB)); a("s_add_u32 s%d, s%d, s%d" % (sT0, sT0, sH))
    a("s_lshl_b32 s%d, s%d, 18" % (sT1, sT0))
    mk_srd(a, sK, 6, 7, sT1, 262144); mk_srd(a, sV, 8, 9, sT1, 262144)
    a("s_mul_i32 s%d, s%d, 110592" % (sT1, sB)); mk_srd(a, sX, 4, 5, sT1, 110592)
    a("s_lshl_b32 s%d, s%d, 9" % (sT1, sH)); mk_srd(a, sWQ, 10, 11, sT1, 0); a("s_sub_u32 s%d, 4718592, s%d" % (sWQ + 2, sT1))
    a("s_mul_i32 s%d, s%d, 294912" % (sT1, sH)); mk_srd(a, sWO, 12, 13, sT1, 294912)
    a("s_mul_i32 s%d, s%d, %d" % (sT1, sT0, PART)); a("s_add_u32 s%d, s%d, %d" % (sT1, sT1, WS_PART)); mk_srd(a, sP, 18, 19, sT1, PART)
    a("s_lshr_b32 s%d, s%d, 2" % (sT1, sH)); a("s_lshl_b32 s%d, s%d, 11" % (sT1, sT1)); mk_srd(a, sPF, 10, 11, sT1, 0); a("s_sub_u32 s%d, 4718592, s%d" % (sPF + 2, sT1))
    a("s_lshr_b32 s%d, s%d, 3" % (sT1, sB)); a("s_mul_i32 s%d, s%d, %d" % (sT1, sT1, 8 * 110592)); mk_srd(a, sPF2, 4, 5, sT1, 8 * 110592)
    a("s_mov_b32 s%d, s12" % sWOP); a("s_mov_b32 s%d, s13" % (sWOP + 1))
    a("s_mul_i32 s%d, s%d, 110592" % (sT1, sB)); mk_srd(a, sOUT, 14, 15, sT1, 110592)
    a("s_mul_i32 s%d, s%d, %d" % (sT1, sB, 16 * PART)); a("s_add_u32 s%d, s%d, %d" % (sT1, sT1, WS_PART)); mk_srd(a, sPB, 18, 19, sT1, 16 * PART)
    a("s_mul_i32 s%d, s%d, %d" % (sT1, sB, 9 * 128)); a("s_add_u32 s%d, s%d, %d" % (sT1, sT1, WS_FLAG)); mk_srd(a, sFL, 18, 19, sT1, 9 * 128)
    if STAMP:
        a("s_lshl_b32 s%d, s2, 9" % sT1); a("s_add_u32 s%d, s18, s%d" % (sSTAMP, sT1)); a("s_addc_u32 s%d, s19, 0" % (sSTAMP + 1))
    if "allc" in OPT: a("s_and_b32 s%d, s%d, 3" % (sWAVE, sWAVE))
    a("s_cmp_ge_u32 s%d, 4" % sWAVE); a("s_cbranch_scc1 L_loader")
    gen_compute(a)
    a("L_loader:")
    a.stamp_wave = 4; a.stamp_tmp = 40
    gen_loader(a)
    gen_reducer(a)
    a("L_k1_end:")
    a("s_endpgm")
    return a.text()

def build(fn, stamp=False, opt=()):
    global STAMP, OPT
    STAMP = stamp; OPT = set(opt)
    k1 = gen_k1()
    errs = hazard.check(k1, "k1")
    for e in errs[:10]: print(e)
    if errs: print("k1: %d hazard warnings" % len(errs))
    txt = HEADER + "; @launch grid=(256,1,1) block=(512,1,1) lds=%d\n" % LDS_BYTES
    txt += '.amdgcn_target "amdgcn-amd-amdhsa--gfx950"\n.text\n' + kernel_begin(KNAME) + k1 + '\n.section .rodata,"a"\n.p2align 6\n' + kernel_desc(KNAME, 256, 102, 256)
    open(fn, "w").write(txt)
    print(fn, len(txt), "bytes,", txt.count("\n"), "lines")

if __name__ == "__main__":
    def pieces(start, per):
        d = {}; st = start
        for kind in "KV":
            for lo in range(0, 8, per):
                d.setdefault(st, []).append((kind, 0, lo, lo + per)); st += 1
        return d
    def mk(start, per, i1at):
        d = pieces(start, per)
        d.setdefault(i1at, []).extend([("K", 1), ("V", 1)])
        d.setdefault(19, []).extend([("K", 2), ("V", 2)])
        return d
    PF0 = 0
    O = ["rotq", "nopfq", "notlb"]
    KSCHED = mk(12, 4, 18)
    TAB = None
    build("v7.s", False, O + ["dot2"]); build("v7_st.s", True, O + ["dot2"])
    D = O + ["dot2", "split0"]
    build("v7.s", False, D); build("v7_st.s", True, D)
    build("z_late.s", False, D)
    build("z_c0.s", False, D + ["cpf0"])
    RAMP = 2; build("z_rp2c0.s", False, D + ["cpf0"]); RAMP = 0
    CPF_AT = 2; build("z_c2.s", False, D); CPF_AT = 11
```

```python
import sys, struct
from asmlib import *
import hazard
from sched import Item, schedule, auto_lgkm, model_cycles

def f32(x): return "0x%08x" % struct.unpack("<I", struct.pack("<f", x))[0]
C_SCALE = 1.4426950408889634 / (128 ** 0.5)

PAIR = 35840
KGRP, VGRP = 1088, 1152
VOFF = 16 * KGRP
WBASE = 2 * PAIR
XBASE = WBASE + 4 * 16384
XSLOT = 12288
EXCH = 3 * PAIR
LDS_BYTES = 163840
PART = 108 * 1024
WS_PART = 1 << 20
WS_FLAG = 1 << 19
KNAME = 'standalone__gqa_block_cached__near_ridge_kernel'
OPT = set()
STAMP = False

sK, sV, sX, sWQ, sWO, sP = 20, 24, 28, 32, 36, 40
sWAVE, sB, sH, sLW = 44, 45, 46, 47
sT0, sT1, sT2, sT3 = 48, 49, 50, 51
sLWK, sLW3072, sLWV, sLW4096 = 52, 53, 59, 66
sTHR, sCNT, sDK, sNEG, sSLOT = 54, 55, 56, 57, 58
sSTAMP = 60
sTM = 62
sQI, sRH = 64, 65
sXCD, sIDX = 67, 68
sPF = 72
sPF2 = 76
sFL = 8
sPB = 4
sOUT = 12
def srd(b): return "s[%d:%d]" % (b, b + 3)
def vr(b, n=1): return "v%d" % b if n == 1 else "v[%d:%d]" % (b, b + n - 1)

def _stamp(a, idx, instr):
    if not STAMP: return
    a("%s s[%d:%d]" % (instr, sTM, sTM + 1)); a("s_waitcnt lgkmcnt(0)")
    if a.stamp_wave == 0: a("s_mov_b32 s%d, s%d" % (80 + idx, sTM))
    else: a("v_writelane_b32 v40, s%d, %d" % (sTM, idx))
def stamp(a, idx, cyc=None):
    _stamp(a, idx, "s_memrealtime")
    if cyc is not None: _stamp(a, cyc, "s_memtime")
DBG_WG = 37
def stamp_flush(a):
    if not STAMP: return
    if "dbg" in OPT:
        sk = a.label("Ldbgs")
        a("s_cmp_lg_u32 s2, %d" % DBG_WG); a("s_cbranch_scc1 %s" % sk)
        a("s_cmp_lg_u32 s%d, %d" % (sWAVE, a.stamp_wave)); a("s_cbranch_scc1 %s" % sk)
        a("v_mov_b32 v1, 0")
        if a.stamp_wave == 0:
            for dw, (j, j0) in zip((1, 2, 3, 5, 6, 7, 9, 10, 11), ((1, 0), (2, 0), (3, 0), (4, 0), (11, 10), (12, 11), (13, 12), (14, 13), (7, 6))):
                a("s_sub_u32 s%d, s%d, s%d" % (sT0, 80 + j, 80 + j0)); a("v_mov_b32 v2, s%d" % sT0); a("global_store_dword v1, v2, s[16:17] offset:%d" % (4 * dw))
        else:
            a("v_readlane_b32 s%d, v40, 15" % sT0); a("v_readlane_b32 s%d, v40, 16" % sT1); a("s_nop 3"); a("s_sub_u32 s%d, s%d, s%d" % (sT0, sT0, sT1)); a("v_mov_b32 v2, s%d" % sT0)
            a("global_store_dword v1, v2, s[16:17] offset:52")
            a("v_readlane_b32 s%d, v40, 36" % sT0); a("s_nop 3"); a("s_sub_u32 s%d, s%d, s%d" % (sT0, sT0, sT1)); a("v_mov_b32 v2, s%d" % sT0)
            a("global_store_dword v1, v2, s[16:17] offset:56")
        a("%s:" % sk)
        return
    sk = a.label("Lst")
    a("s_cmp_lg_u32 s%d, %d" % (sWAVE, a.stamp_wave)); a("s_cbranch_scc1 %s" % sk)
    if a.stamp_wave == 0:
        a("v_mov_b32 v1, 0")
        for i in range(16):
            if i in (8, 9, 15): continue
            a("v_mov_b32 v2, s%d" % (80 + i)); a("global_store_dword v1, v2, s[%d:%d] offset:%d" % (sSTAMP, sSTAMP + 1, 4 * i))
    else:
        a("v_and_b32 v2, 63, v0"); a("v_lshlrev_b32 v3, 2, v2")
        a("v_cmp_lt_u32 vcc, 14, v2"); a("v_cmp_eq_u32 s[96:97], 8, v2"); a("s_or_b64 vcc, vcc, s[96:97]"); a("v_cmp_eq_u32 s[96:97], 9, v2"); a("s_or_b64 vcc, vcc, s[96:97]")
        a("s_and_saveexec_b64 s[96:97], vcc")
        a("global_store_dword v3, v40, s[%d:%d]" % (sSTAMP, sSTAMP + 1))
        a("s_mov_b64 exec, s[96:97]")
    a("%s:" % sk)

def common_prologue(a, endlab, nwg):
    if STAMP: a("s_memrealtime s[78:79]")
    a("s_cmp_ge_u32 s2, %d" % nwg); a("s_cbranch_scc1 %s" % endlab)
    a("s_load_dwordx8 s[4:11], s[0:1], 0")
    a("s_load_dwordx4 s[12:15], s[0:1], 32")
    a("s_load_dwordx4 s[16:19], s[0:1], 48")
    a("v_lshrrev_b32 v1, 6, v0")
    a("s_nop 0")
    a("v_readfirstlane_b32 s%d, v1" % sWAVE)
    a("s_waitcnt lgkmcnt(0)")

class VQ:
    def __init__(s): s.q = []
    def issue(s, tag, n=1): s.q += [tag] * n
    def wait(s, tags):
        idx = [i for i, t in enumerate(s.q) if t in tags]
        if not idx: return None
        last = max(idx); n = len(s.q) - 1 - last
        s.q = s.q[last + 1:]
        return min(n, 63)

KV_FLAGS = " nt"
W_FLAGS = ""
O_FLAGS = ""
P_FLAGS = " sc0 sc1"


def gen_loader(a):
    a("s_sub_u32 s%d, s%d, 4" % (sLW, sWAVE))
    a("v_and_b32 v1, 63, v0")
    if STAMP: a("v_mov_b32 v40, 0")
    a("s_cmp_ge_u32 s%d, 2" % sLW); a("s_cbranch_scc1 L_kvloader")
    gen_wloader(a)
    a("L_kvloader:")
    gen_kvloader(a)

def mk_bar(a, q, trace_base=None):
    def bar(tags):
        n = q.wait(tags) if tags else None
        if n is not None and "nowait" not in OPT: a("s_waitcnt vmcnt(%d)" % n)
        if "trace" in OPT and bar.n < 48 and trace_base is not None: stamp(a, 16 + bar.n)
        a("s_barrier")
        bar.n += 1
    bar.n = 0
    return bar

def dma(a, vreg, srdb, soff, imm, flags):
    if "noload" in OPT: return
    a("buffer_load_dwordx4 v%d, %s, s%d offen offset:%d%s lds" % (vreg, srd(srdb), soff, imm, flags))

def emit_pf(a, chunks, lane=1):
    if not chunks: return
    sk = a.label("Lpfq"); skx = a.label("Lpfx")
    a("s_cmp_ge_u32 s%d, 28" % sIDX); a("s_cbranch_scc1 %s" % sk)
    a("s_cmp_ge_u32 s%d, 16" % sIDX); a("s_cbranch_scc1 %s" % skx)
    a("v_lshrrev_b32 v30, 4, v%d" % lane); a("v_and_b32 v31, 15, v%d" % lane)
    a("s_lshl_b32 s%d, s%d, 2" % (sT0, sIDX)); a("v_add_u32 v30, s%d, v30" % sT0); a("v_lshlrev_b32 v30, 13, v30"); a("v_lshlrev_b32 v31, 7, v31"); a("v_add_u32 v30, v30, v31")
    for cp in chunks:
        if isinstance(cp, int): a("s_mov_b32 s%d, %d" % (sT0, cp * 64 * 8192))
        else: a("s_lshl_b32 s%d, s%d, 19" % (sT0, cp[0])); a("s_add_u32 s%d, s%d, %d" % (sT0, sT0, cp[1] * 64 * 8192))
        a("buffer_load_dword v32, v30, %s, s%d offen" % (srd(sPF), sT0))
    a("s_branch %s" % sk)
    a("%s:" % skx)
    a("s_sub_u32 s%d, s%d, 16" % (sT0, sIDX)); a("s_lshl_b32 s%d, s%d, 6" % (sT0, sT0)); a("v_add_u32 v30, s%d, v%d" % (sT0, lane)); a("v_mul_u32_u24 v30, 1152, v30")
    for cp in chunks:
        if isinstance(cp, int): a("s_mov_b32 s%d, %d" % (sT0, cp * 128))
        else: a("s_lshl_b32 s%d, s%d, 7" % (sT0, cp[0])); a("s_add_u32 s%d, s%d, %d" % (sT0, sT0, cp[1] * 128))
        a("buffer_load_dword v32, v30, %s, s%d offen" % (srd(sPF2), sT0))
    a("%s:" % sk)

def code_prefetch(a, lane=1):
    if "nocpf" in OPT: return
    lab = a.label("Lcpf")
    a("s_getpc_b64 s[94:95]")
    a("%s:" % lab)
    a("s_sub_u32 s94, s94, (%s - %s)" % (lab, KNAME)); a("s_subb_u32 s95, s95, 0")
    a("s_lshl_b32 s%d, s%d, 11" % (sT0, sIDX))
    a("v_and_b32 v34, 15, v%d" % lane); a("v_lshlrev_b32 v34, 7, v34"); a("v_add_u32 v34, s%d, v34" % sT0)
    a("v_min_u32 v34, (L_k1_end - %s), v34" % KNAME)
    a("global_load_dword v35, v34, s[94:95]")

def attn_kv4(a, is_w, iss_O=None, cpf=None):
    vK4, vV4 = 18, 19
    sL4, sMK, sMV, sTK, sKS = 86, 88, 89, 87, 90
    a("s_sub_u32 s%d, s%d, 4" % (sL4, sWAVE))
    a("v_lshrrev_b32 v2, 4, v1"); a("v_and_b32 v3, 15, v1")
    a("s_lshl_b32 s%d, s%d, 12" % (sT0, sL4)); a("v_lshlrev_b32 v4, 8, v2"); a("v_add_u32 v4, s%d, v4" % sT0)
    a("v_xor_b32 v5, v2, v3"); a("v_lshlrev_b32 v5, 4, v5"); a("v_add_u32 v%d, v4, v5" % vK4)
    a("v_lshlrev_b32 v5, 1, v2"); a("v_xor_b32 v5, v5, v3"); a("v_lshlrev_b32 v5, 4, v5"); a("v_add_u32 v%d, v4, v5" % vV4)
    a("s_mul_i32 s%d, s%d, %d" % (sMK, sL4, 4 * KGRP)); a("s_mul_i32 s%d, s%d, %d" % (sMV, sL4, 4 * VGRP)); a("s_add_u32 s%d, s%d, %d" % (sMV, sMV, VOFF))
    a("s_mov_b32 s%d, %d" % (sTK, 3 * 16384)); a("s_mov_b32 s%d, %d" % (sKS, 3 * PAIR))
    def w(n):
        if "nowait" not in OPT: a("s_waitcnt vmcnt(%d)" % n)
    def item():
        a("s_add_u32 s%d, s%d, s%d" % (sT1, sMK, sKS)); a("s_add_u32 s%d, s%d, s%d" % (sT2, sMV, sKS))
        for isK in (True, False):
            grp = KGRP if isK else VGRP
            for ii in range(4):
                a("s_add_u32 m0, s%d, %d" % (sT1 if isK else sT2, ii * (grp - 1024))); a("s_nop 0")
                dma(a, vK4 if isK else vV4, sK if isK else sV, sTK, ii * 1024, KV_FLAGS)
        a("s_add_u32 s%d, s%d, 16384" % (sTK, sTK))
        a("s_add_u32 s%d, s%d, %d" % (sKS, sKS, PAIR)); a("s_cmp_eq_u32 s%d, %d" % (sKS, 4 * PAIR)); a("s_cselect_b32 s%d, 0, s%d" % (sKS, sKS))
    if not is_w: w(16)
    a("s_barrier")
    item()
    lab = a.label("Lkv4"); a("s_mov_b32 s%d, 2" % sCNT); a("%s:" % lab)
    w(8)
    a("s_barrier")
    item()
    if is_w:
        sk = a.label("Lc4"); a("s_cmp_lg_u32 s%d, %d" % (sCNT, CPF_AT)); a("s_cbranch_scc1 %s" % sk); cpf(); a("%s:" % sk)
    a("s_add_u32 s%d, s%d, 1" % (sCNT, sCNT)); a("s_cmp_lt_u32 s%d, 14" % sCNT); a("s_cbranch_scc1 %s" % lab)
    w(8); a("s_barrier")
    if is_w: iss_O()
    w(16 if is_w else 0); a("s_barrier")
    if is_w: iss_O()
    if is_w: w(16)
    a("s_barrier")
    if is_w: iss_O()

def gen_wloader(a):
    vW, vX, vO = 10, 14, 16
    a.stamp_wave = 4
    sA, sBb = sLWK, sLWV
    a("v_lshrrev_b32 v6, 5, v1"); a("v_and_b32 v7, 31, v1")
    a("s_lshl_b32 s%d, s%d, 17" % (sT1, sLW))
    a("v_lshlrev_b32 v8, 13, v6"); a("v_add_u32 v8, s%d, v8" % sT1)
    for var in range(4):
        a("v_add_u32 v5, %d, v6" % (2 * (var & 1) + 4 * (var >> 1))); a("v_lshlrev_b32 v5, 1, v5"); a("v_xor_b32 v5, v5, v7")
        a("v_lshlrev_b32 v5, 4, v5"); a("v_add_u32 v%d, v8, v5" % (vW + var))
    a("v_lshrrev_b32 v6, 3, v1"); a("v_and_b32 v7, 7, v1")
    a("s_mul_i32 s%d, s%d, 48" % (sT1, sLW)); a("v_add_u32 v8, s%d, v6" % sT1); a("v_mul_u32_u24 v8, 1152, v8")
    a("v_lshrrev_b32 v9, 1, v6")
    for i in range(2):
        a("v_add_u32 v5, %d, v9" % (4 * i)); a("v_xor_b32 v5, v5, v7"); a("v_lshlrev_b32 v5, 4, v5"); a("v_add_u32 v%d, v8, v5" % (vX + i))
    a("v_mul_u32_u24 v8, 1152, v6")
    a("v_and_b32 v5, 3, v9"); a("v_lshlrev_b32 v5, 1, v5"); a("v_xor_b32 v5, v5, v7"); a("v_lshlrev_b32 v5, 4, v5"); a("v_add_u32 v%d, v8, v5" % vO)
    a("s_lshl_b32 s%d, s%d, 13" % (sA, sLW))
    a("s_mul_i32 s%d, s%d, 6144" % (sBb, sLW))
    a("s_lshl_b32 s%d, s%d, 14" % (sLW4096, sLW))
    a("s_mul_i32 s%d, s%d, %d" % (sLW3072, sLW, 128 * 1152))
    sWK, sXK, sOK = 98, 99, 100
    sWS, sXS, sOS = 93, 92, 91
    A_, SI, B_, SJ = ROTQ
    a("s_and_b32 s%d, s%d, 7" % (sT0, sIDX)); a("s_lshr_b32 s%d, s%d, %d" % (sT0, sT0, SI)); a("s_mul_i32 s%d, s%d, %d" % (sT0, sT0, A_))
    a("s_lshr_b32 s%d, s%d, %d" % (sT1, sIDX, 3 + SJ)); a("s_mul_i32 s%d, s%d, %d" % (sT1, sT1, B_)); a("s_add_u32 s%d, s%d, s%d" % (sT0, sT0, sT1))
    for _ in range(2): a("s_cmp_ge_u32 s%d, 9" % sT0); a("s_cselect_b32 s%d, 9, 0" % sT1); a("s_sub_u32 s%d, s%d, s%d" % (sT0, sT0, sT1))
    a("s_lshl_b32 s%d, s%d, 19" % (sWK, sT0)); a("s_lshl_b32 s%d, s%d, 7" % (sXK, sT0))
    a("s_and_b32 s%d, s%d, 7" % (sT0, sB)); a("s_lshl_b32 s%d, s%d, 7" % (sOK, sT0))
    a("s_mov_b32 s%d, %d" % (sWS, 2 * 16384)); a("s_mov_b32 s%d, 0" % sXS); a("s_mov_b32 s%d, 0" % sOS)
    a("s_add_u32 s%d, s%d, %d" % (sA, sA, WBASE)); a("s_add_u32 s%d, s%d, %d" % (sBb, sBb, XBASE))
    def adv(reg, step, wrap):
        a("s_add_u32 s%d, s%d, %d" % (reg, reg, step)); a("s_cmp_eq_u32 s%d, %d" % (reg, wrap)); a("s_cselect_b32 s%d, 0, s%d" % (reg, reg))
    def iss_W():
        a("s_add_u32 m0, s%d, s%d" % (sA, sWS))
        for ii in range(8):
            if ii == 4: a("s_add_u32 m0, m0, 4096")
            a("s_add_u32 s%d, s%d, %d" % (sT0, sWK, 16384 * ii - (ii & 3) * 1024))
            dma(a, vW + (ii & 1) + 2 * (ii >> 2), sWQ, sT0, (ii & 3) * 1024, W_FLAGS)
        adv(sWK, 262144, 18 * 262144); adv(sWS, 16384, 65536)
    def iss_X():
        a("s_add_u32 m0, s%d, s%d" % (sBb, sXS))
        for ii in range(6):
            if ii == 4: a("s_add_u32 m0, m0, 4096")
            a("s_add_u32 s%d, s%d, %d" % (sT0, sXK, 9216 * ii - (ii & 3) * 1024))
            dma(a, vX + (ii & 1), sX, sT0, (ii & 3) * 1024, W_FLAGS)
        adv(sXK, 128, 9 * 128); a("s_xor_b32 s%d, s%d, %d" % (sXS, sXS, XSLOT))
    def iss_O():
        a("s_add_u32 s%d, s%d, s%d" % (sT1, sLW3072, sOK))
        a("s_add_u32 m0, s%d, s%d" % (sLW4096, sOS))
        for ii in range(16):
            if ii % 4 == 0 and ii: a("s_add_u32 m0, m0, 4096")
            a("s_add_u32 s%d, s%d, %d" % (sT0, sT1, 9216 * ii - (ii & 3) * 1024))
            dma(a, vO, sWO, sT0, (ii & 3) * 1024, O_FLAGS)
        adv(sOK, 128, 9 * 128); adv(sOS, PAIR, 4 * PAIR)
    tr = [16]
    def bar(w=None):
        if w is not None and "nowait" not in OPT: a("s_waitcnt vmcnt(%d)" % w)
        a("s_barrier")
    def loop(n, body, name):
        lab = a.label(name)
        a("s_mov_b32 s%d, 0" % sCNT); a("%s:" % lab)
        body()
        a("s_add_u32 s%d, s%d, 1" % (sCNT, sCNT)); a("s_cmp_lt_u32 s%d, %d" % (sCNT, n)); a("s_cbranch_scc1 %s" % lab)
    if "look2" not in OPT:
        if "split0" in OPT:
            li = a.label("Lwi"); sk0 = a.label("Lwi0")
            a("s_mov_b32 s%d, 0" % sCNT); a("%s:" % li)
            iss_X(); iss_W(); iss_W()
            a("s_cmp_lg_u32 s%d, 0" % sCNT); a("s_cbranch_scc1 %s" % sk0)
            bar(8)
            a("s_mov_b32 s%d, 1" % sCNT); a("s_branch %s" % li)
            a("%s:" % sk0)
        else:
            loop(2, lambda: (iss_X(), iss_W(), iss_W()), "Lwi")
            bar(30)
        bar(22)
        iss_W()
        def qbody():
            bar(16)
            iss_X(); iss_W()
            bar(22)
            sk = a.label("Lwl"); a("s_cmp_eq_u32 s%d, 6" % sCNT); a("s_cbranch_scc1 %s" % sk)
            iss_W()
            a("%s:" % sk)
        loop(7, qbody, "Lwq")
        bar(8)
        bar(0)
    else:
        if STAMP: stamp(a, 17)
        iss_X(); iss_W(); iss_W()
        if STAMP: stamp(a, 18)
        def qbody():
            bar(8)
            iss_X(); iss_W()
            bar(14)
            iss_W()
        loop(8, qbody, "Lwq")
        bar(8)
        bar(0)
    bar(None); bar(None)
    stamp(a, 8)
    def cpf():
        sk = a.label("Lcp"); a("s_cmp_lg_u32 s%d, 1" % sLW); a("s_cbranch_scc1 %s" % sk); code_prefetch(a); a("%s:" % sk)
    if "kv4" in OPT: attn_kv4(a, True, iss_O, cpf)
    else:
        loop(CPF_AT, lambda: bar(None), "Lwa")
        cpf()
        loop(13 - CPF_AT, lambda: bar(None), "Lwb")
        loop(2, lambda: (bar(None), iss_O()), "Lwo")
        bar(16)
        iss_O()
    a("s_barrier"); a("s_barrier")
    loop(6, lambda: (bar(16), iss_O()), "Lwp")
    bar(0)
    a("s_barrier"); a("s_barrier"); a("s_barrier")
    stamp(a, 9)
    a("s_add_u32 s%d, s%d, 4" % (sCNT, sLW))
    a("s_branch L_reduce")

def gen_kvloader(a):
    vK, vV = 10, 11
    a.stamp_wave = -1
    a("s_sub_u32 s%d, s%d, 2" % (sLW, sLW))
    a("v_lshrrev_b32 v2, 4, v1"); a("v_and_b32 v3, 15, v1")
    a("s_lshl_b32 s%d, s%d, 13" % (sT0, sLW))
    a("v_lshlrev_b32 v4, 8, v2"); a("v_add_u32 v4, s%d, v4" % sT0)
    a("v_xor_b32 v5, v2, v3"); a("v_lshlrev_b32 v5, 4, v5"); a("v_add_u32 v%d, v4, v5" % vK)
    a("v_lshlrev_b32 v5, 1, v2"); a("v_xor_b32 v5, v5, v3"); a("v_lshlrev_b32 v5, 4, v5"); a("v_add_u32 v%d, v4, v5" % vV)
    a("s_mul_i32 s%d, s%d, %d" % (sLWK, sLW, 8 * KGRP)); a("s_mul_i32 s%d, s%d, %d" % (sLWV, sLW, 8 * VGRP))
    sROT = 92
    if "krot" in OPT:
        a("s_mul_i32 s%d, s%d, %d" % (sROT, sXCD, KROT[0])); a("s_mul_i32 s%d, s%d, %d" % (sT0, sIDX, KROT[1])); a("s_add_u32 s%d, s%d, s%d" % (sROT, sROT, sT0))
    q = VQ(); bar = mk_bar(a, q, None)
    def iss(T, isK, lo=0, hi=8):
        for ii in range(lo, hi):
            if "krot" in OPT:
                if ii == lo: a("s_add_u32 s%d, s%d, %d" % (sT2, sROT, T)); a("s_and_b32 s%d, s%d, 15" % (sT2, sT2)); a("s_lshl_b32 s%d, s%d, 14" % (sT2, sT2))
                if ii % 4 == 0 or ii == lo: a("s_add_u32 s%d, s%d, %d" % (sT0, sT2, (ii >> 2) * 4096))
            elif ii % 4 == 0 or ii == lo: a("s_mov_b32 s%d, %d" % (sT0, T * 16384 + (ii >> 2) * 4096))
            grp = KGRP if isK else VGRP
            a("s_add_u32 m0, s%d, %d" % (sLWK if isK else sLWV, (T % 4) * PAIR + (0 if isK else VOFF) + ii * grp - (ii & 3) * 1024))
            if ii % 4: a("s_nop 0")
            else: a("s_nop 0")
            dma(a, vK if isK else vV, sK if isK else sV, sT0, (ii & 3) * 1024, KV_FLAGS)
        q.issue("I%d" % T, hi - lo)
    def prefetch_q():
        sk = a.label("Lpfq"); skx = a.label("Lpfx")
        a("s_cmp_lg_u32 s%d, %d" % (sLW, PF_WAVE)); a("s_cbranch_scc1 %s" % sk)
        a("s_cmp_ge_u32 s%d, 28" % sIDX); a("s_cbranch_scc1 %s" % sk)
        a("s_cmp_ge_u32 s%d, 16" % sIDX); a("s_cbranch_scc1 %s" % skx)
        a("s_lshl_b32 s%d, s%d, 2" % (sT0, sIDX)); a("v_add_u32 v5, s%d, v2" % sT0); a("v_lshlrev_b32 v5, 13, v5"); a("v_lshlrev_b32 v6, 7, v3"); a("v_add_u32 v5, v5, v6")
        for cp in range(PF_FIRST, 9):
            a("s_mov_b32 s%d, %d" % (sT0, cp * 64 * 8192)); a("buffer_load_dword v%d, v5, %s, s%d offen" % (20 + cp, srd(sPF), sT0))
        a("s_branch %s" % sk)
        a("%s:" % skx)
        a("s_sub_u32 s%d, s%d, 16" % (sT0, sIDX)); a("s_lshl_b32 s%d, s%d, 6" % (sT0, sT0)); a("v_add_u32 v5, s%d, v1" % sT0); a("v_mul_u32_u24 v5, 1152, v5")
        for cp in range(PF_FIRST, 9):
            a("s_mov_b32 s%d, %d" % (sT0, cp * 128)); a("buffer_load_dword v%d, v5, %s, s%d offen" % (20 + cp, srd(sPF2), sT0))
        a("%s:" % sk)
    def clear_flags():
        sk = a.label("Lclr")
        a("s_cmp_lg_u32 s%d, 1" % sLW); a("s_cbranch_scc1 %s" % sk)
        a("v_mov_b32 v20, 0"); a("v_mov_b32 v21, 0")
        a("s_lshl_b32 s%d, s%d, 3" % (sT0, sH))
        a("v_lshlrev_b32 v5, 7, v1"); a("v_add_u32 v5, s%d, v5" % sT0); a("v_mov_b32 v7, 0x40000000"); a("v_cmp_gt_u32 vcc, 9, v1"); a("s_nop 1"); a("v_cndmask_b32 v5, v7, v5, vcc")
        a("buffer_store_dwordx2 v[20:21], v5, %s, 0 offen sc0 sc1" % srd(sFL))
        a("s_waitcnt vmcnt(0)")
        a("s_lshl_b32 s%d, s%d, 4" % (sT0, sB)); a("v_mov_b32 v5, s%d" % sT0); a("v_mov_b32 v6, 1")
        a("s_mov_b64 s[96:97], exec"); a("s_mov_b64 exec, 1")
        a("global_atomic_add v5, v6, s[16:17] sc1")
        a("s_mov_b64 exec, s[96:97]")
        a("%s:" % sk)
    if "cpf0" in OPT:
        sk = a.label("Lcp0"); a("s_cmp_lg_u32 s%d, 1" % sLW); a("s_cbranch_scc1 %s" % sk); code_prefetch(a); a("%s:" % sk)
    if "notlb" not in OPT:
        sk = a.label("Ltlb")
        a("s_cmp_lg_u32 s%d, 0" % sLW); a("s_cbranch_scc1 %s" % sk)
        a("v_mov_b32 v5, 0")
        for i, sr in enumerate((sK, sV, sWO, sP, sOUT)): a("buffer_load_dword v%d, v5, %s, 0 offen nt" % (33 + i, srd(sr)))
        a("v_mul_u32_u24 v5, %d, v1" % (PART // 8)); a("v_lshlrev_b32 v5, 3, v5"); a("v_mov_b32 v7, 0x40000000"); a("v_cmp_gt_u32 vcc, 16, v1"); a("s_nop 1"); a("v_cndmask_b32 v5, v7, v5, vcc")
        a("buffer_load_dword v38, v5, %s, 0 offen nt" % srd(sPB))
        a("%s:" % sk)
    clear_flags()
    if "nopfq" not in OPT and PF_AT < 0: prefetch_q()
    for s in range(18):
        bar(None)
        if "nopfq" not in OPT and PF_AT == s: prefetch_q()
        for e in KSCHED.get(s, []): iss(e[1], e[0] == "K", *e[2:])
    bar(None)
    for e in KSCHED.get(18, []): iss(e[1], e[0] == "K", *e[2:])
    bar(["I0", "I1"] if "wait01" in OPT else ["I0"])
    for e in KSCHED.get(19, []): iss(e[1], e[0] == "K", *e[2:])
    if "kv4" in OPT:
        assert FIRST_RULE == 1
        attn_kv4(a, False)
    else:
        sTK, sKS = 93, 91
        def item_dyn():
            a("s_add_u32 s%d, s%d, s%d" % (sT1, sLWK, sKS)); a("s_add_u32 s%d, s%d, s%d" % (sT2, sLWV, sKS))
            for isK in (True, False):
                for ii in range(8):
                    if ii % 4 == 0: a("s_add_u32 s%d, s%d, %d" % (sT0, sTK, (ii >> 2) * 4096))
                    grp = KGRP if isK else VGRP
                    a("s_add_u32 m0, s%d, %d" % (sT1 if isK else sT2, (0 if isK else VOFF) + ii * grp - (ii & 3) * 1024)); a("s_nop 0")
                    dma(a, vK if isK else vV, sK if isK else sV, sT0, (ii & 3) * 1024, KV_FLAGS)
            a("s_add_u32 s%d, s%d, 16384" % (sTK, sTK))
            a("s_add_u32 s%d, s%d, %d" % (sKS, sKS, PAIR)); a("s_cmp_eq_u32 s%d, %d" % (sKS, 4 * PAIR)); a("s_cselect_b32 s%d, 0, s%d" % (sKS, sKS))
        def wv(n):
            if "nowait" not in OPT: a("s_waitcnt vmcnt(%d)" % n)
        if LAG:
            a("s_mov_b32 s%d, %d" % (sTK, 2 * 16384)); a("s_mov_b32 s%d, %d" % (sKS, 2 * PAIR))
            lab = a.label("Lkvl"); a("s_mov_b32 s%d, 1" % sCNT); a("%s:" % lab)
            wv(0); a("s_barrier"); item_dyn()
            a("s_add_u32 s%d, s%d, 1" % (sCNT, sCNT)); a("s_cmp_le_u32 s%d, %d" % (sCNT, LAG)); a("s_cbranch_scc1 %s" % lab)
            item_dyn()
            first = LAG + 1
        else:
            if FIRST_RULE == 2:
                n1 = q.wait(["I1"])
                if n1 is not None: wv(n1)
                a("s_barrier")
            a("s_mov_b32 s%d, %d" % (sTK, (FIRST_RULE + 2) * 16384)); a("s_mov_b32 s%d, %d" % (sKS, ((FIRST_RULE + 2) % 4) * PAIR))
            first = FIRST_RULE
        lab = a.label("Lkv"); a("s_mov_b32 s%d, %d" % (sCNT, first - 1)); a("%s:" % lab)
        wv(16)
        a("s_barrier")
        item_dyn()
        a("s_add_u32 s%d, s%d, 1" % (sCNT, sCNT)); a("s_cmp_lt_u32 s%d, 13" % sCNT); a("s_cbranch_scc1 %s" % lab)
        wv(16)
        a("s_barrier")
        wv(0)
        a("s_barrier")
        a("s_barrier")
    if "nored" not in OPT:
        sk = a.label("Ldbg"); lp = a.label("Ldbgw")
        a("s_cmp_lg_u32 s%d, 0" % sLW); a("s_cbranch_scc1 %s" % sk)
        a("s_lshl_b32 s%d, s%d, 4" % (sT0, sB)); a("v_mov_b32 v10, s%d" % sT0); a("s_mov_b32 s%d, 0" % sT3)
        a("%s:" % lp)
        a("global_load_dword v12, v10, s[16:17] sc1"); a("s_waitcnt vmcnt(0)"); a("v_readfirstlane_b32 s%d, v12" % sT1)
        a("s_add_u32 s%d, s%d, 1" % (sT3, sT3)); a("s_cmp_gt_u32 s%d, %d" % (sT3, SPIN_MAX)); a("s_cbranch_scc1 %s" % sk)
        a("s_cmp_lt_u32 s%d, 16" % sT1); a("s_cbranch_scc1 %s" % lp)
        a("%s:" % sk)
    a("s_barrier"); a("s_barrier")
    vPR, vPO, vF, vOne = 20, 24, 25, 26
    sCH = 93
    a("v_lshlrev_b32 v%d, 4, v1" % vPO)
    a("s_mul_i32 s%d, s%d, 6144" % (sT0, sLW)); a("s_add_u32 s%d, s%d, %d" % (sT0, sT0, PB0)); a("v_add_u32 v%d, s%d, v%d" % (vPR, sT0, vPO)); a("v_add_u32 v%d, 3072, v%d" % (vPR + 1, vPR))
    a("s_mul_i32 s%d, s%d, %d" % (sT0, sLW, 2 * PAIR)); a("s_add_u32 s%d, s%d, 32768" % (sT0, sT0)); a("v_add_u32 v%d, s%d, v%d" % (vPR + 2, sT0, vPO)); a("v_add_u32 v%d, %d, v%d" % (vPR + 3, PAIR, vPR + 2))
    a("s_mul_i32 s%d, s%d, 6144" % (sT0, sLW)); a("v_add_u32 v%d, s%d, v%d" % (vPO, sT0, vPO))
    a("v_mov_b32 v%d, 1" % vOne)
    a("s_lshl_b32 s%d, s%d, 3" % (sT0, sH)); a("s_lshl_b32 s%d, s%d, 2" % (sT1, sLW)); a("s_add_u32 s%d, s%d, s%d" % (sT0, sT0, sT1))
    a("v_mov_b32 v%d, 0x40000000" % vF); a("s_nop 0"); a("v_writelane_b32 v%d, s%d, 0" % (vF, sT0))
    a("s_mov_b32 s%d, 0" % sCH)
    def flag_store(back):
        a("s_sub_u32 s%d, s%d, %d" % (sT0, sCH, back)); a("s_lshl_b32 s%d, s%d, 7" % (sT0, sT0))
        a("buffer_store_dword v%d, v%d, %s, s%d offen sc0 sc1" % (vOne, vF, srd(sFL), sT0))
    def turn(buf, guard):
        for w2 in range(2):
            for j in range(3): a("ds_read_b128 %s, v%d offset:%d" % (vr(64 + 32 * buf + 4 * (3 * w2 + j), 4), vPR + 2 * buf + w2, j * 1024))
        a("s_mul_i32 s%d, s%d, 12288" % (sT0, sCH))
        for i in range(6):
            a("s_waitcnt lgkmcnt(%d)" % (5 - i))
            if "nostore" not in OPT: a("buffer_store_dwordx4 %s, v%d, %s, s%d offen%s" % (vr(64 + 32 * buf + 4 * i, 4), vPO, srd(sP), sT0, P_FLAGS))
            if i < 5: a("s_add_u32 s%d, s%d, 1024" % (sT0, sT0))
        if "nored" not in OPT:
            sk = a.label("Lfl")
            if guard: a("s_cmp_lt_u32 s%d, 2" % sCH); a("s_cbranch_scc1 %s" % sk)
            a("s_waitcnt vmcnt(%d)" % FLW)
            flag_store(2)
            a("%s:" % sk)
        a("s_add_u32 s%d, s%d, 1" % (sCH, sCH))
    a("s_barrier")
    lab = a.label("Lsto"); a("%s:" % lab)
    a("s_barrier"); turn(0, True)
    a("s_barrier"); turn(1, True)
    a("s_cmp_lt_u32 s%d, 8" % sCH); a("s_cbranch_scc1 %s" % lab)
    a("s_barrier"); turn(0, False)
    if "nored" not in OPT:
        a("s_waitcnt vmcnt(7)"); flag_store(2)
        a("s_waitcnt vmcnt(1)"); flag_store(1)
    a("s_cmp_eq_u32 s%d, 0" % sLW); a("s_cselect_b32 s%d, 7, 6" % sCNT)
    a("s_branch L_reduce")

KSCHED = {2: [("K", 0)], 5: [("V", 0)], 8: [("K", 1)], 11: [("V", 1)], 16: [("K", 2)], 17: [("V", 2)]}

def gen_reducer(a):
    a("L_reduce:")
    if "nored" in OPT:
        a.stamp_wave = 4; stamp_flush(a); a("s_endpgm"); return
    rho = sCNT
    giveup = a.label("Lgiveup"); poll = a.label("Lpoll")
    a("s_mul_i32 s%d, s%d, 7" % (sT0, rho)); a("s_cmp_eq_u32 s%d, 7" % rho); a("s_cselect_b32 s%d, 48, s%d" % (sT0, sT0))
    a("s_mul_hi_u32 s%d, s%d, %d" % (sT2, sT0, (2**32 + 5) // 6))
    a("s_cmp_ge_u32 s%d, 6" % rho); a("s_cselect_b32 s%d, 48, 56" % sTASK2); a("s_cselect_b32 s%d, 0, -1" % sCNT2)
    a("v_lshlrev_b32 v9, 2, v1"); a("v_mov_b32 v7, 0x40000000")
    a("s_lshl_b32 s%d, s%d, 7" % (sT2, sT2))
    a("buffer_load_dword v11, v9, %s, s%d offen sc1" % (srd(sFL), sT2))
    a("v_lshrrev_b32 v2, 3, v1"); a("v_add_u32 v2, s%d, v2" % sT0)
    a("v_mul_u32_u24 v8, 10923, v2"); a("v_lshrrev_b32 v8, 16, v8")
    a("v_mul_u32_u24 v5, 6, v8"); a("v_sub_u32 v2, v2, v5")
    a("v_lshlrev_b32 v2, 3, v2"); a("v_and_b32 v5, 7, v1"); a("v_add_u32 v2, v2, v5")
    a("s_mul_i32 s%d, s%d, 48" % (sT1, sH)); a("v_add_u32 v2, s%d, v2" % sT1)
    a("v_mul_u32_u24 v3, 12288, v8"); a("v_lshlrev_b32 v5, 4, v2"); a("v_add_u32 v3, v3, v5")
    a("v_cmp_gt_u32 vcc, s%d, v1" % sTASK2); a("s_nop 1"); a("v_cndmask_b32 v3, v7, v3, vcc")
    a("v_lshrrev_b32 v4, 6, v2"); a("v_and_b32 v5, 63, v2")
    a("v_cmp_le_u32 s[96:97], 6, v4"); a("s_nop 1"); a("v_cndmask_b32 v6, 0, 1, s[96:97]")
    a("v_mul_u32_u24 v10, 6, v6"); a("v_sub_u32 v4, v4, v10")
    a("v_lshlrev_b32 v4, 4, v4"); a("v_and_b32 v10, 15, v5"); a("v_add_u32 v4, v4, v10"); a("v_mul_u32_u24 v4, 1152, v4")
    a("v_lshlrev_b32 v6, 6, v6"); a("v_lshrrev_b32 v5, 4, v5"); a("v_lshlrev_b32 v5, 3, v5"); a("v_add_u32 v4, v4, v6"); a("v_add_u32 v4, v4, v5")
    a("s_and_b32 s%d, s%d, 7" % (sT1, sB)); a("v_add_u32 v8, s%d, v8" % sT1)
    a("v_cmp_le_u32 s[96:97], 9, v8"); a("s_nop 1"); a("v_cndmask_b32 v6, 0, 9, s[96:97]"); a("v_sub_u32 v8, v8, v6"); a("v_lshlrev_b32 v8, 7, v8"); a("v_add_u32 v4, v4, v8")
    a("v_cndmask_b32 v4, v7, v4, vcc")
    a("s_mov_b32 s%d, 0" % sT3)
    a("s_branch %s_chk" % poll)
    a("%s:" % poll)
    a("buffer_load_dword v11, v9, %s, s%d offen sc1" % (srd(sFL), sT2))
    a("%s_chk:" % poll)
    a("s_waitcnt vmcnt(0)")
    a("v_cmp_eq_u32 vcc, 1, v11")
    a("s_add_u32 s%d, s%d, 1" % (sT3, sT3)); a("s_cmp_gt_u32 s%d, %d" % (sT3, SPIN_MAX)); a("s_cbranch_scc1 %s" % giveup)
    a("s_orn2_b32 vcc_hi, vcc_hi, s%d" % sCNT2)
    a("s_cmp_eq_u64 vcc, -1"); a("s_cbranch_scc0 %s" % poll)
    a("s_mov_b32 s%d, 0" % sT0)
    for h in range(16):
        a("buffer_load_dwordx4 v[%d:%d], v3, %s, s%d offen%s" % (64 + 4 * h, 67 + 4 * h, srd(sPB), sT0, R_FLAGS))
        if h < 15: a("s_add_u32 s%d, s%d, %d" % (sT0, sT0, PART))
    if "dot2" in OPT:
        a("v_mov_b32 v12, 0x00003f80"); a("v_mov_b32 v13, 0x3f800000")
        for r in range(8): a("v_mov_b32 v%d, 0" % (48 + r))
    for h in range(16):
        a("s_waitcnt vmcnt(%d)" % (15 - h))
        for r in range(4):
            src = 64 + 4 * h + r
            if "dot2" in OPT:
                a("v_dot2c_f32_bf16 v%d, v%d, v12" % (48 + 2 * r, src)); a("v_dot2c_f32_bf16 v%d, v%d, v13" % (49 + 2 * r, src))
            elif h == 0:
                a("v_lshlrev_b32 v%d, 16, v%d" % (48 + 2 * r, src)); a("v_and_b32 v%d, 0xffff0000, v%d" % (49 + 2 * r, src))
            else:
                a("v_lshlrev_b32 v12, 16, v%d" % src); a("v_and_b32 v13, 0xffff0000, v%d" % src)
                a("v_add_f32 v%d, v%d, v12" % (48 + 2 * r, 48 + 2 * r)); a("v_add_f32 v%d, v%d, v13" % (49 + 2 * r, 49 + 2 * r))
    for r in range(4): a("v_cvt_pk_bf16_f32 v%d, v%d, v%d" % (56 + r, 48 + 2 * r, 49 + 2 * r))
    a("buffer_store_dwordx2 v[56:57], v4, %s, 0 offen%s" % (srd(sOUT), OUT_FLAGS))
    a("buffer_store_dwordx2 v[58:59], v4, %s, 0 offen offset:32%s" % (srd(sOUT), OUT_FLAGS))
    a("%s:" % giveup)
    if STAMP:
        sk = a.label("Lnst"); a("s_cmp_lg_u32 s%d, 4" % sWAVE); a("s_cbranch_scc1 %s" % sk)
        a.stamp_wave = 4; stamp(a, 15); stamp_flush(a)
        a("%s:" % sk)
    a("s_endpgm")
R_FLAGS = " sc1"
OUT_FLAGS = ""
sTASK2 = 101
sCNT2 = 95
PB0 = 143360
SPIN_MAX = 200000
sWOP = 70

PF_O_AT = 10
PF_WAVE = 1
PF_FIRST = 4
PF_AT = 0
PF0 = 2
RAMP = 0
LAG = 0
RAMP_EVERY = 1
FLW = 12
STG_AT = 7
NSTG0 = 3
ROTQ = (1, 0, 2, 0)
KROT = (2, 1)
CPF_AT = 11
FIRST_RULE = 1
CMP_SLACK = 6
FLAG_DELAY = 4

def O_(j, db): return (j * 8 + db) * 4
def Q_(j, s): return 96 + (j * 4 + s) * 4
def KF(f): return 144 + 4 * f
def VF(db): return 176 + 4 * db
def S_(par): return 208 + 8 * par
def P_(par): return 224 + 4 * par
def N_(j): return 232 + 4 * j
def L_(j): return 244 + j
vKA, vVA, vT, vT2, vS, vLANE = 247, 248, 252, 253, 254, 255
MF = "v_mfma_f32_16x16x32_bf16"

def interleave(mfmas, fillers):
    out = list(fillers.get(-1, []))
    for i, m in enumerate(mfmas):
        out.append(m); out += fillers.get(i, [])
    return out
def spread(items, slots):
    d = {}; n = len(items)
    for i, it in enumerate(items): d.setdefault(slots[i * len(slots) // n], []).append(it)
    return d
def merge(*ds):
    o = {}
    for d in ds:
        for k, v in d.items(): o.setdefault(k, []).extend(v)
    return o

KORD = [(kb, s) for s in range(4) for kb in range(2)]
def k_read(kb, s, half, ad=None):
    return "ds_read_b128 %s, v%d offset:%d" % (vr(KF(kb * 4 + s), 4), vKA if ad is None else ad, half * 8 * KGRP + kb * 4 * KGRP + s * 64)
def v_reads(db, half):
    A, cc = divmod(db, 4)
    o = half * 8 * VGRP + A * 128
    return ["ds_read_b64_tr_b16 %s, v%d offset:%d" % (vr(VF(db), 2), vVA + cc, o), "ds_read_b64_tr_b16 %s, v%d offset:%d" % (vr(VF(db) + 2, 2), vVA + cc, o + 4 * VGRP)]

TAB = None
def hoist_waits(lines):
    out = []
    for l in lines:
        if l.startswith("s_waitcnt lgkmcnt") and out:
            n = int(l.split("(")[1].split(")")[0])
            k = len(out) - 1; jumped = 0; ok = False
            while k >= 0:
                x = out[k]
                if x.startswith("v_mfma"): ok = True; break
                if x.endswith(":") or x.startswith(("s_cbranch", "s_barrier", "s_waitcnt")): break
                if x.startswith("ds_"): jumped += 1
                k -= 1
            if ok and n - jumped >= 0:
                out.insert(k + 1, "s_waitcnt lgkmcnt(%d)" % (n - jumped)); continue
        out.append(l)
    return out

def gen_compute(a):
    rare = []
    a("v_and_b32 v%d, 63, v0" % vLANE)
    a("s_lshr_b32 s%d, s%d, 1" % (sQI, sWAVE)); a("s_and_b32 s%d, s%d, 1" % (sRH, sWAVE))
    g, rp, c, q = 240, 241, 242, 243
    a("v_lshrrev_b32 v%d, 4, v%d" % (g, vLANE)); a("v_bfe_u32 v%d, v%d, 2, 2" % (rp, vLANE)); a("v_and_b32 v%d, 3, v%d" % (c, vLANE)); a("v_and_b32 v%d, 15, v%d" % (q, vLANE))
    vWA, vXA = 232, 244
    t, t2 = vT, vT2
    a("v_lshlrev_b32 v%d, 3, v%d" % (t, g)); a("v_add_u32 v%d, v%d, v%d" % (t, t, rp)); a("v_lshlrev_b32 v%d, 9, v%d" % (t, t))
    a("v_and_b32 v%d, 1, v%d" % (t2, g)); a("v_lshlrev_b32 v%d, 2, v%d" % (t2, t2)); a("v_add_u32 v%d, v%d, v%d" % (t2, t2, rp)); a("v_lshlrev_b32 v%d, 5, v%d" % (t2, t2))
    a("v_add_u32 v%d, v%d, v%d" % (t, t, t2)); a("v_lshlrev_b32 v%d, 3, v%d" % (t2, c)); a("v_add_u32 v%d, v%d, v%d" % (t, t, t2))
    a("s_lshl_b32 s%d, s%d, 8" % (sT0, sQI)); a("s_add_u32 s%d, s%d, %d" % (sT0, sT0, WBASE)); a("v_add_u32 v%d, s%d, v%d" % (t, sT0, t))
    assert WBASE % 256 == 0 and XBASE % 128 == 0
    for db in range(8): a("v_xor_b32 v%d, %d, v%d" % (vWA + db, db * 32, t))
    a("s_mul_i32 s%d, s%d, %d" % (sT0, sRH, 48 * 128)); a("s_add_u32 s%d, s%d, %d" % (sT0, sT0, XBASE))
    a("v_lshrrev_b32 v%d, 1, v%d" % (t, q)); a("v_xor_b32 v%d, v%d, v%d" % (t, t, g)); a("v_lshlrev_b32 v%d, 4, v%d" % (t, t))
    a("v_lshlrev_b32 v%d, 7, v%d" % (t2, q)); a("v_add_u32 v%d, v%d, v%d" % (t, t, t2)); a("v_add_u32 v%d, s%d, v%d" % (vXA, sT0, t)); a("v_xor_b32 v%d, 64, v%d" % (vXA + 1, vXA))
    a("v_lshrrev_b32 v%d, 2, v%d" % (t, q)); a("v_mul_u32_u24 v%d, %d, v%d" % (t, KGRP, t))
    a("v_and_b32 v%d, 3, v%d" % (t2, q)); a("v_lshlrev_b32 v%d, 8, v%d" % (vKA, t2)); a("v_add_u32 v%d, v%d, v%d" % (t, t, vKA))
    a("v_xor_b32 v%d, v%d, v%d" % (t2, t2, g)); a("v_lshlrev_b32 v%d, 4, v%d" % (t2, t2)); a("v_add_u32 v%d, v%d, v%d" % (vKA, t, t2))
    a("v_mul_u32_u24 v%d, %d, v%d" % (t, VGRP, g)); a("v_lshlrev_b32 v%d, 8, v%d" % (t2, rp)); a("v_add_u32 v%d, v%d, v%d" % (t, t, t2))
    a("v_lshlrev_b32 v%d, 3, v%d" % (t2, c)); a("v_add_u32 v%d, v%d, v%d" % (t, t, t2)); a("v_add_u32 v%d, %d, v%d" % (t, VOFF, t))
    for cc in range(4):
        a("v_xor_b32 v%d, %d, v%d" % (t2, cc, rp)); a("v_lshlrev_b32 v%d, 5, v%d" % (t2, t2)); a("v_add_u32 v%d, v%d, v%d" % (vVA + cc, t, t2))
    stamp(a, 0, 10)

    def ABUF(buf, db): return 144 + 32 * buf + 4 * db
    def BBUF(buf, j): return 208 + 12 * buf + 4 * j
    def q_reads(s):
        buf = s & 1; wo = ((s + 2) % 4) * 16384; xo = ((s // 2) % 2) * XSLOT
        r = []
        for j in range(3): r.append("ds_read_b128 %s, v%d offset:%d" % (vr(BBUF(buf, j), 4), vXA + (s & 1), xo + j * 2048))
        for db in range(8):
            r.append("ds_read_b64_tr_b16 %s, v%d offset:%d" % (vr(ABUF(buf, db), 2), vWA + db, wo))
            r.append("ds_read_b64_tr_b16 %s, v%d offset:%d" % (vr(ABUF(buf, db) + 2, 2), vWA + db, wo + 2048))
        return r
    for r in range(0, 96, 2): a("v_mov_b64 %s, 0" % vr(r, 2))
    a("s_barrier")
    for x in q_reads(0): a(x)
    def q_stage(s, reads=True):
        buf = s & 1
        a("s_waitcnt lgkmcnt(0)")
        a("s_barrier")
        mf = []
        for db in range(8):
            for j in range(3):
                mf.append("%s %s, %s, %s, %s" % (MF, vr(O_(j, db), 4), vr(ABUF(buf, db), 4), vr(BBUF(buf, j), 4), vr(O_(j, db), 4)))
        rd = q_reads(s + 1) if reads else []
        for x in interleave(mf, spread(rd, list(range(0, 17))) if rd else {}): a(x)
    lq = a.label("Lq")
    a("s_mov_b32 s%d, 0" % sCNT); a("%s:" % lq)
    for s in range(4): q_stage(s)
    a("s_add_u32 s%d, s%d, 1" % (sCNT, sCNT)); a("s_cmp_lt_u32 s%d, 4" % sCNT); a("s_cbranch_scc1 %s" % lq)
    q_stage(16); q_stage(17, reads=False)
    stamp(a, 1, 11)
    a("s_nop 7")
    a("s_mov_b32 s%d, %s" % (sT0, f32(C_SCALE))); a("s_mov_b32 s%d, s%d" % (sT0 + 1, sT0))
    for j in range(3):
        for s in range(4):
            X, Y, D = O_(j, 2 * s), O_(j, 2 * s + 1), Q_(j, s)
            for r in range(0, 4, 2):
                a("v_pk_mul_f32 %s, %s, s[%d:%d]" % (vr(X + r, 2), vr(X + r, 2), sT0, sT0 + 1)); a("v_pk_mul_f32 %s, %s, s[%d:%d]" % (vr(Y + r, 2), vr(Y + r, 2), sT0, sT0 + 1))
            a("v_cvt_pk_bf16_f32 v%d, v%d, v%d" % (D + 0, X + 0, X + 1)); a("v_cvt_pk_bf16_f32 v%d, v%d, v%d" % (D + 1, X + 2, X + 3))
            a("v_cvt_pk_bf16_f32 v%d, v%d, v%d" % (D + 2, Y + 0, Y + 1)); a("v_cvt_pk_bf16_f32 v%d, v%d, v%d" % (D + 3, Y + 2, Y + 3))
            for r in range(0, 4, 2):
                a("v_mov_b64 %s, 0" % vr(X + r, 2)); a("v_mov_b64 %s, 0" % vr(Y + r, 2))
            a("v_permlane32_swap_b32 v%d, v%d" % (D + 0, D + 2)); a("v_permlane32_swap_b32 v%d, v%d" % (D + 1, D + 3))
            a("s_nop 1")
            a("v_permlane16_swap_b32 v%d, v%d" % (D + 0, D + 2)); a("v_permlane16_swap_b32 v%d, v%d" % (D + 1, D + 3))
    a("s_barrier")
    for kb, s_ in KORD: a(k_read(kb, s_, 0))
    a("s_waitcnt lgkmcnt(0)")
    for j in range(3):
        for kb, s_ in KORD:
            d = 176 + 8 * j + 4 * kb
            a("%s %s, %s, %s, %s" % (MF, vr(d, 4), vr(KF(kb * 4 + s_), 4), vr(Q_(j, s_), 4), "0" if s_ == 0 else vr(d, 4)))
    for r in range(224, 232, 2): a("v_mov_b64 %s, 0" % vr(r, 2))
    for j in range(3): a("v_mov_b32 v%d, 0" % L_(j))
    a("v_mov_b32 v%d, 0" % vS)
    a("s_mov_b32 s%d, %s" % (sTHR, "0x7f800000" if "norare" in OPT else f32(256.0)))
    a("s_mov_b32 s%d, 0" % sSLOT); a("s_mov_b32 s%d, 0" % sDK)
    a("s_mov_b32 s%d, 0x%x" % (sNEG, -3 * PAIR & 0xffffffff))
    a("s_mov_b64 vcc, 0")
    a("s_nop 3")
    for j in range(3):
        S = 176 + 8 * j; t, t2 = 200 + 2 * j, 201 + 2 * j
        a("v_max3_f32 v%d, v%d, v%d, v%d" % (t, S, S + 1, S + 2)); a("v_max3_f32 v%d, v%d, v%d, v%d" % (t2, S + 3, S + 4, S + 5))
        a("v_max3_f32 v%d, v%d, v%d, v%d" % (t, t, S + 6, S + 7)); a("v_max_f32 v%d, v%d, v%d" % (t, t, t2))
    for sw in ("v_permlane32_swap_b32", "v_permlane16_swap_b32"):
        for j in range(3): a("v_mov_b32 v%d, v%d" % (201 + 2 * j, 200 + 2 * j))
        a("s_nop 0")
        for j in range(3): a("%s v%d, v%d" % (sw, 200 + 2 * j, 201 + 2 * j))
        for j in range(3): a("v_max_f32 v%d, v%d, v%d" % (200 + 2 * j, 200 + 2 * j, 201 + 2 * j))
    for j in range(3):
        for i in range(4): a("v_sub_f32 v%d, 0, v%d" % (N_(j) + i, 200 + 2 * j))
    for r in range(176, 208, 2): a("v_mov_b64 %s, 0" % vr(r, 2))
    def qk_mfmas(jn, par):
        m = []
        for kb, s in KORD:
            d = S_(par) + 4 * kb
            cc = vr(N_(jn), 4) if s == 0 else vr(d, 4)
            m.append("%s %s, %s, %s, %s" % (MF, vr(d, 4), vr(KF(kb * 4 + s), 4), vr(Q_(jn, s), 4), cc))
        return m
    def pv_mfmas(jp, par):
        return ["%s %s, %s, %s, %s" % (MF, vr(O_(jp, db), 4), vr(VF(db), 4), vr(P_(par), 4), vr(O_(jp, db), 4)) for db in range(8)]
    for m in qk_mfmas(0, 0): a(m)
    a("s_nop 7")

    def rare_code(st, j, adv):
        par = (3 * st + j) & 1
        S, P = S_(par), P_(par)
        rl, cont = a.label("Lrare"), a.label("Lcont")
        r = Asm()
        r("%s:" % rl)
        if adv: r("v_subrev_u32 v%d, s%d, v%d" % (vT2, sDK, vKA))
        else: r("v_mov_b32 v%d, v%d" % (vT2, vKA))
        for kb in range(2):
            for s in range(4):
                r("ds_read_b128 %s, v%d offset:%d" % (vr(P, 4), vT2, st * 8 * KGRP + kb * 4 * KGRP + s * 64))
                r("s_waitcnt lgkmcnt(0)")
                cc = vr(N_(j), 4) if s == 0 else vr(S + 4 * kb, 4)
                r("%s %s, %s, %s, %s" % (MF, vr(S + 4 * kb, 4), vr(P, 4), vr(Q_(j, s), 4), cc))
                r("s_nop 3")
        r("s_nop 7")
        r("v_max3_f32 v%d, v%d, v%d, v%d" % (vT, S, S + 1, S + 2)); r("v_max3_f32 v%d, v%d, v%d, v%d" % (vT2, S + 3, S + 4, S + 5))
        r("v_max3_f32 v%d, v%d, v%d, v%d" % (vT, vT, S + 6, S + 7)); r("v_max_f32 v%d, v%d, v%d" % (vT, vT, vT2))
        r("v_mov_b32 v%d, v%d" % (vT2, vT)); r("s_nop 1"); r("v_permlane32_swap_b32 v%d, v%d" % (vT, vT2)); r("v_max_f32 v%d, v%d, v%d" % (vT, vT, vT2))
        r("v_mov_b32 v%d, v%d" % (vT2, vT)); r("s_nop 1"); r("v_permlane16_swap_b32 v%d, v%d" % (vT, vT2)); r("v_max_f32 v%d, v%d, v%d" % (vT, vT, vT2))
        r("v_max_f32 v%d, 0, v%d" % (vT, vT))
        r("v_sub_f32 v%d, 0, v%d" % (vT2, vT)); r("v_exp_f32 v%d, v%d" % (vT2, vT2)); r("s_nop 0")
        r("v_mul_f32 v%d, v%d, v%d" % (L_(j), L_(j), vT2))
        for db in range(8):
            for rr in range(4): r("v_mul_f32 v%d, v%d, v%d" % (O_(j, db) + rr, O_(j, db) + rr, vT2))
        for i in range(4): r("v_sub_f32 v%d, v%d, v%d" % (N_(j) + i, N_(j) + i, vT))
        for i in range(8): r("v_sub_f32 v%d, v%d, v%d" % (S + i, S + i, vT))
        for i in range(8): r("v_exp_f32 v%d, v%d" % (S + i, S + i))
        r("s_nop 0")
        r("v_add_f32 v%d, v%d, v%d" % (vS, S, S + 1))
        for i in range(2, 8): r("v_add_f32 v%d, v%d, v%d" % (vS, vS, S + i))
        for i in range(4): r("v_cvt_pk_bf16_f32 v%d, v%d, v%d" % (P + i, S + 2 * i, S + 2 * i + 1))
        r("s_nop 1")
        r("s_branch %s" % cont)
        rare.append(r.text())
        if "nobr" in OPT: return ["%s:" % cont]
        if "sccbr" in OPT: return ["s_cbranch_scc1 %s" % rl, "%s:" % cont]
        return ["s_cbranch_vccnz %s" % rl, "%s:" % cont]

    def block_tab(st, j, prev, qk=True, kload=None, vlo=None, vhi=None, barrier=False, extra=(), pre_extra=(), klate=None):
        par = (3 * st + j) & 1
        jn, jp = (j + 1) % 3, (j - 1) % 3
        S, P = S_(par), P_(par)
        pre = []
        if barrier: pre.append("s_barrier")
        endbr = []
        if "brend" in OPT:
            endbr = rare_code(st, j, st == 1 and j >= 1)
        elif prev is not None: pre += rare_code(*prev)
        pre += list(pre_extra)
        mf = qk_mfmas(jn, par ^ 1) + pv_mfmas(jp, par ^ 1)
        N = {}
        for i in range(8): N["E%d" % i] = "v_exp_f32 v%d, v%d" % (S + i, S + i)
        for i in range(4):
            N["C%d" % i] = "v_cvt_pk_bf16_f32 v%d, v%d, v%d" % (P + i, S + 2 * i, S + 2 * i + 1)
            N["A%d" % i] = "v_add_f32 v%d, v%d, v%d" % (S + 2 * i, S + 2 * i, S + 2 * i + 1)
        N["B0"] = "v_add_f32 v%d, v%d, v%d" % (S, S, S + 2); N["B1"] = "v_add_f32 v%d, v%d, v%d" % (S + 4, S + 4, S + 6)
        N["SUM"] = "v_add_f32 v%d, v%d, v%d" % (vS, S, S + 4); N["CMP"] = "v_cmp_lt_f32 vcc, s%d, v%d" % (sTHR, vS)
        N["L"] = "v_add_f32 v%d, v%d, v%d" % (L_(jp), L_(jp), vS)
        lds = {g: [] for g in range(16)}
        if "nolds" not in OPT:
            if vlo is not None:
                rs = [x for db in range(4) for x in v_reads(db, vlo)]
                for x, g in zip(rs, TAB["vlo"]): lds[g].append(x)
            if vhi is not None:
                rs = [x for db in range(4, 8) for x in v_reads(db, vhi)]
                for x, g in zip(rs, TAB["vhi"]): lds[g].append(x)
            if kload is not None:
                for (kb, s_), g in zip(KORD[:6], TAB["k"]): lds[g].append(k_read(kb, s_, kload))
            if klate is not None:
                for (kb, s_), g in zip(KORD[6:], TAB["klate"]): lds[g].append(k_read(kb, s_, klate))
        out = list(pre)
        ex = list(extra)
        for g in range(16):
            out.append(mf[g])
            if g == 15 and endbr: out += (["s_cmp_lg_u64 vcc, 0"] if "sccbr" in OPT else []) + endbr
            out += lds[g]
            if "nosm" not in OPT: out += [N[n] for n in TAB["valu"].get(g, [])]
            if g == TAB.get("scc_at", 15) and "sccbr" in OPT and "brend" not in OPT: out.append("s_cmp_lg_u64 vcc, 0")
            if g in TAB.get("extra_at", ()) and ex:
                x = ex.pop(0); out += (x if isinstance(x, list) else [x])
        for x in ex: out += (x if isinstance(x, list) else [x])
        return out

    def block(st, j, prev, qk=True, kload=None, vlo=None, vhi=None, barrier=False, extra=(), pre_extra=(), klate=None):
        if TAB is not None and qk: return block_tab(st, j, prev, qk, kload, vlo, vhi, barrier, extra, pre_extra, klate)
        if "brend" in OPT: prev = None
        if "sccbr" in OPT and prev is not None: pre_extra = list(pre_extra)
        par = (3 * st + j) & 1
        jn, jp = (j + 1) % 3, (j - 1) % 3
        S, P = S_(par), P_(par)
        pre = []
        if barrier: pre.append("s_barrier")
        if prev is not None: pre += rare_code(*prev)
        pre += list(pre_extra)
        mf = (qk_mfmas(jn, par ^ 1) if qk else []) + pv_mfmas(jp, par ^ 1)
        nq = 8 if qk else 0
        if not qk: pre.append("s_nop 1")
        it = []
        Ladd = Item("v_add_f32 v%d, v%d, v%d" % (L_(jp), L_(jp), vS), lo=0, hi=6, pri=5)
        E = [Item("v_exp_f32 v%d, v%d" % (S + i, S + i), lo=0, pri=3) for i in range(8)]
        for i in range(1, 8): pass
        A01 = Item("v_add_f32 v%d, v%d, v%d" % (vT, S, S + 1), deps=[E[0], E[1]])
        A23 = Item("v_add_f32 v%d, v%d, v%d" % (vT2, S + 2, S + 3), deps=[E[2], E[3]])
        B_ = Item("v_add_f32 v%d, v%d, v%d" % (vT, vT, vT2), deps=[A01, A23])
        A45 = Item("v_add_f32 v%d, v%d, v%d" % (vT2, S + 4, S + 5), deps=[E[4], E[5], B_])
        C_ = Item("v_add_f32 v%d, v%d, v%d" % (vT, vT, vT2), deps=[A45])
        A67 = Item("v_add_f32 v%d, v%d, v%d" % (vT2, S + 6, S + 7), deps=[E[6], E[7], C_])
        D_ = Item("v_add_f32 v%d, v%d, v%d" % (vS, vT, vT2), deps=[A67, Ladd])
        CMP = Item("v_cmp_lt_f32 vcc, s%d, v%d" % (sTHR, vS), deps=[D_], hi=len(mf) - CMP_SLACK)
        CV = [Item("v_cvt_pk_bf16_f32 v%d, v%d, v%d" % (P + i, S + 2 * i, S + 2 * i + 1), deps=[E[2 * i], E[2 * i + 1]], hi=len(mf) - 2) for i in range(4)]
        if "nosm" in OPT: it = []
        else: it = [Ladd] + E + [A01, A23, B_, A45, C_, A67, D_, CMP] + CV
        if "nolds" not in OPT:
            if vlo is not None:
                for db in range(4): it.append(Item(v_reads(db, vlo), lo=nq + db, pri=4))
            if vhi is not None:
                for db in range(4, 8): it.append(Item(v_reads(db, vhi), lo=0, hi=nq + db - 7, pri=6))
            if kload is not None:
                for i, (kb, s) in enumerate(KORD[:6]): it.append(Item(k_read(kb, s, kload), lo=max(i, 5), hi=min(15, 9 + i), pri=4))
            if klate is not None:
                for i, (kb, s) in list(enumerate(KORD))[6:]: it.append(Item(k_read(kb, s, klate), lo=0, hi=0, pri=7))
        for x in extra: it.append(Item(x, lo=8))
        return schedule(mf, it, pre)

    def tile(last, first_of_all=False):
        L = []
        L += block(0, 0, (1, 2, True), vlo=0)
        L += block(0, 1, (0, 0, False), vhi=0, kload=1)
        L += block(0, 2, (0, 1, False), klate=1)
        L += block(1, 0, (0, 2, False), vlo=1)
        adv = ["s_add_u32 s%d, s%d, 1" % (sSLOT, sSLOT), "s_and_b32 s%d, s%d, 3" % (sSLOT, sSLOT), "s_cmp_eq_u32 s%d, 0" % sSLOT,
               "s_cselect_b32 s%d, s%d, %d" % (sDK, sNEG, PAIR), "v_add_u32 v%d, s%d, v%d" % (vKA, sDK, vKA)]
        L += block(1, 1, (1, 0, False), vhi=1, kload=(None if last else 0), barrier=True, pre_extra=adv)
        L += block(1, 2, (1, 1, True), qk=not last, klate=(None if last else 0),
                   extra=[["v_add_u32 v%d, s%d, v%d" % (vVA + cc, sDK, vVA + cc)] for cc in range(4)])
        return L
    steady = tile(False)
    del rare[:]
    steady2 = tile(False)
    nr = len(rare)
    lastt = tile(True)
    if "peel" not in OPT: del rare[nr:]
    if TAB is not None:
        body = hoist_waits(auto_lgkm(steady2, entry_lines=steady, age=TAB.get("age")))
        lastb = hoist_waits(auto_lgkm(lastt, entry_lines=steady, age=TAB.get("age")))
    else:
        body = auto_lgkm(steady2, entry_lines=steady)
        lastb = auto_lgkm(lastt, entry_lines=steady)
    if "w0" in OPT:
        import re
        body = [re.sub(r"lgkmcnt\(\d+\)", "lgkmcnt(0)", x) if x.startswith("s_waitcnt lgkmcnt") else x for x in body]
    print("   attention steady tile: model %d cycles (%d/unit), %d instrs" % (model_cycles(body), model_cycles(body) / 6, len(body)))
    loop = a.label("Ltile")
    _stamp(a, 6, "s_memtime")
    a("s_mov_b32 s%d, 0" % sCNT)
    if RAMP:
        import re as _re
        nr2 = len(rare)
        ramp_raw = tile(False)
        rb = auto_lgkm(ramp_raw, entry_lines=steady)
        cnt = [0]
        def _mod(x):
            if not x.startswith("s_waitcnt lgkmcnt"): return x
            cnt[0] += 1
            return "s_waitcnt lgkmcnt(0)" if cnt[0] % RAMP_EVERY == 0 else x
        rb = [_mod(x) for x in rb]
        lr = a.label("Lramp")
        a("%s:" % lr)
        for x in rb: a(x)
        a("s_add_u32 s%d, s%d, 1" % (sCNT, sCNT)); a("s_cmp_lt_u32 s%d, %d" % (sCNT, RAMP)); a("s_cbranch_scc1 %s" % lr)
        a("s_waitcnt lgkmcnt(0)")
    a("%s:" % loop)
    for x in body: a(x)
    a("s_add_u32 s%d, s%d, 1" % (sCNT, sCNT)); a("s_cmp_lt_u32 s%d, %d" % (sCNT, 15 if "peel" in OPT else 16)); a("s_cbranch_scc1 %s" % loop)
    _stamp(a, 7, "s_memtime")
    if "peel" in OPT:
        for x in lastb: a(x)
    else: a("s_waitcnt lgkmcnt(0)")
    for x in rare_code(1, 2, True): a(x)
    a("v_add_f32 v%d, v%d, v%d" % (L_(2), L_(2), vS))
    a("s_nop 1")
    for m in pv_mfmas(2, 1): a(m)
    a("s_nop 7")
    stamp(a, 2, 12)
    for j in range(3):
        L = L_(j)
        a("v_mov_b32 v%d, v%d" % (vT, L)); a("s_nop 1"); a("v_permlane32_swap_b32 v%d, v%d" % (L, vT)); a("v_add_f32 v%d, v%d, v%d" % (L, L, vT))
        a("v_mov_b32 v%d, v%d" % (vT, L)); a("s_nop 1"); a("v_permlane16_swap_b32 v%d, v%d" % (L, vT)); a("v_add_f32 v%d, v%d, v%d" % (L, L, vT))
        a("v_rcp_f32 v%d, v%d" % (L, L))
    a("s_nop 1")
    def OA(s, j): return 96 + (s * 3 + j) * 4
    def OB(s, j): return 144 + (s * 3 + j) * 4
    for j in range(3):
        a("v_mov_b32 v%d, v%d" % (vT2, L_(j))); a("v_mov_b32 v%d, v%d" % (vT, L_(j)))
        for s in range(4):
            X, Y, D = O_(j, 2 * s), O_(j, 2 * s + 1), OA(s, j)
            for r in range(0, 4, 2):
                a("v_pk_mul_f32 %s, %s, %s" % (vr(X + r, 2), vr(X + r, 2), vr(vT, 2))); a("v_pk_mul_f32 %s, %s, %s" % (vr(Y + r, 2), vr(Y + r, 2), vr(vT, 2)))
            a("v_cvt_pk_bf16_f32 v%d, v%d, v%d" % (D + 0, X + 0, X + 1)); a("v_cvt_pk_bf16_f32 v%d, v%d, v%d" % (D + 1, X + 2, X + 3))
            a("v_cvt_pk_bf16_f32 v%d, v%d, v%d" % (D + 2, Y + 0, Y + 1)); a("v_cvt_pk_bf16_f32 v%d, v%d, v%d" % (D + 3, Y + 2, Y + 3))
    vA0, vA1 = 240, 241
    a("v_lshlrev_b32 v%d, 4, v%d" % (vT, vLANE))
    a("s_mul_i32 s%d, s%d, 12288" % (sT0, sWAVE)); a("s_add_u32 s%d, s%d, %d" % (sT0, sT0, EXCH)); a("v_add_u32 v%d, s%d, v%d" % (vA0, sT0, vT))
    a("s_xor_b32 s%d, s%d, 2" % (sT2, sWAVE)); a("s_mul_i32 s%d, s%d, 12288" % (sT0, sT2)); a("s_add_u32 s%d, s%d, %d" % (sT0, sT0, EXCH)); a("v_add_u32 v%d, s%d, v%d" % (vA1, sT0, vT))
    a("s_barrier")
    for i in range(12): a("ds_write_b128 v%d, %s offset:%d" % (vA0, vr(96 + 4 * i, 4), i * 1024))
    vAO, vST = 224, 228
    g, rp, c, t = 242, 243, 244, 245
    a("v_lshrrev_b32 v%d, 4, v%d" % (g, vLANE)); a("v_bfe_u32 v%d, v%d, 2, 2" % (rp, vLANE)); a("v_and_b32 v%d, 3, v%d" % (c, vLANE))
    a("v_lshlrev_b32 v%d, 2, v%d" % (t, g)); a("v_add_u32 v%d, v%d, v%d" % (t, t, rp))
    a("v_lshrrev_b32 v%d, 1, v%d" % (g, t)); a("v_and_b32 v%d, 3, v%d" % (g, g)); a("v_lshlrev_b32 v%d, 5, v%d" % (g, g))
    a("v_lshlrev_b32 v%d, 7, v%d" % (t, t)); a("v_add_u32 v%d, v%d, v%d" % (t, t, g)); a("v_lshlrev_b32 v%d, 3, v%d" % (c, c)); a("v_add_u32 v%d, v%d, v%d" % (t, t, c))
    a("s_lshl_b32 s%d, s%d, 6" % (sT0, sQI)); a("v_xor_b32 v%d, s%d, v%d" % (t, sT0, t))
    a("s_lshl_b32 s%d, s%d, 14" % (sT0, sQI)); a("s_xor_b32 s%d, s%d, 16384" % (sT1, sT0))
    a("v_add_u32 v%d, s%d, v%d" % (vAO + 0, sT0, t)); a("v_xor_b32 v%d, 32, v%d" % (vAO + 1, vAO + 0))
    a("v_add_u32 v%d, s%d, v%d" % (vAO + 2, sT1, t)); a("v_xor_b32 v%d, 32, v%d" % (vAO + 3, vAO + 2))
    a("s_mul_i32 s%d, s%d, 6144" % (sT0, sQI)); a("s_mul_i32 s%d, s%d, 3072" % (sT1, sRH)); a("s_add_u32 s%d, s%d, s%d" % (sT0, sT0, sT1))
    a("v_add_u32 v%d, s%d, v%d" % (vST, sT0, vT))
    a("s_waitcnt lgkmcnt(0)")
    a("s_barrier")
    for i in range(12): a("ds_read_b128 %s, v%d offset:%d" % (vr(144 + 4 * i, 4), vA1, i * 1024))
    stamp(a, 3, 13)
    assert PAIR % 256 == 0
    def AF(i): return 192 + 4 * (i % 8)
    def ACC(buf, z, j): return buf * 24 + (z * 3 + j) * 4
    def PK(buf, j): return 48 + buf * 12 + 4 * j
    def a_reads(G):
        c_, kk = divmod(G, 8)
        hs, s = (0, kk) if kk < 4 else (1, kk - 4)
        r = []
        for z in range(2):
            fr = AF(2 * G + z)
            r.append("ds_read_b64_tr_b16 %s, v%d offset:%d" % (vr(fr, 2), vAO + 2 * hs + z, s * 4096))
            r.append("ds_read_b64_tr_b16 %s, v%d offset:%d" % (vr(fr + 2, 2), vAO + 2 * hs + z, s * 4096 + 2048))
        return r
    LOOK = 3
    def slot_delta(c_from): return (-3 * PAIR if (16 + c_from + 1) % 4 == 0 else PAIR) & 0xffffffff
    for G in range(LOOK):
        for x in a_reads(G): a(x)
    vPW, vPWR = 229, 231
    a("v_lshlrev_b32 v%d, 4, v%d" % (vT, vLANE))
    a("s_mul_i32 s%d, s%d, 3072" % (sT0, sWAVE)); a("s_add_u32 s%d, s%d, %d" % (sT0, sT0, PB0)); a("v_add_u32 v%d, s%d, v%d" % (vPW, sT0, vT))
    a("s_mul_i32 s%d, s%d, %d" % (sT0, sWAVE, PAIR)); a("s_add_u32 s%d, s%d, 32768" % (sT0, sT0)); a("v_add_u32 v%d, s%d, v%d" % (vPWR, sT0, vT))
    a("v_add_u32 v%d, %d, v%d" % (vPW + 1, 156672, vT))
    sD, sDP, sSL = sDK, sNEG + 0, sSLOT
    sD, sDP = 56, 69
    a("s_mov_b32 s%d, 0" % sSLOT); a("s_mov_b32 s%d, 0" % sDP); a("s_mov_b32 s%d, 0x%x" % (sNEG, -3 * PAIR & 0xffffffff))
    def epilogue(buf):
        epi = []
        for j in range(3):
            d = PK(buf, j)
            for z in range(2):
                A_ = ACC(buf, z, j)
                epi.append("v_cvt_pk_bf16_f32 v%d, v%d, v%d" % (d + 2 * z, A_, A_ + 1)); epi.append("v_cvt_pk_bf16_f32 v%d, v%d, v%d" % (d + 2 * z + 1, A_ + 2, A_ + 3))
            epi.append("ds_write_b128 v%d, %s offset:%d" % (vPW + buf, vr(d, 4), j * 1024))
        return epi
    def o_step(buf, last):
        epi = epilogue(buf ^ 1)
        cvts = [x for x in epi if x.startswith("v_cvt")]; wrs = [x for x in epi if x.startswith("ds_write")]
        extra = {kk: {g: [] for g in range(6)} for kk in range(8)}
        if "ostep_old" in OPT:
            seq = epi; pos = [(1, 1), (1, 1), (1, 2), (1, 2), (1, 3), (1, 4), (1, 4), (1, 5), (2, 1), (2, 1), (2, 2), (2, 3), (2, 3), (2, 4), (2, 5)]
            for x, (kk, g) in zip(seq, pos): extra[kk][g].append(x)
        else:
            cpos = [(1, 0), (1, 1), (1, 2), (1, 3), (1, 4), (2, 0), (2, 1), (2, 2), (2, 3), (3, 0), (3, 1), (3, 2)]
            for x, (kk, g) in zip(cvts, cpos): extra[kk][g].append(x)
            for x, (kk, g) in zip(wrs, [(1, 5), (2, 5), (3, 4)]): extra[kk][g].append(x)
        for kk in range(8):
            G = kk
            hs, s = (0, kk) if kk < 4 else (1, kk - 4)
            rd = []; barrier = (kk == 5)
            if kk == 4 and not last:
                extra[4][4] += ["s_add_u32 s%d, s%d, 1" % (sSLOT, sSLOT), "s_and_b32 s%d, s%d, 3" % (sSLOT, sSLOT)]
                extra[4][5] += ["s_cmp_eq_u32 s%d, 0" % sSLOT, "s_cselect_b32 s%d, s%d, %d" % (sD, sNEG, PAIR)]
            pre = []
            if kk == 5 and not last:
                pre += ["v_add_u32 v%d, s%d, v%d" % (vAO + 0, sD, vAO + 0), "v_add_u32 v%d, s%d, v%d" % (vAO + 1, sD, vAO + 1)]
                extra[6][4].append("s_mov_b32 s%d, s%d" % (sDP, sD))
            if kk == 0:
                extra[0][4].append("v_add_u32 v%d, s%d, v%d" % (vAO + 2, sDP, vAO + 2)); extra[0][5].append("v_add_u32 v%d, s%d, v%d" % (vAO + 3, sDP, vAO + 3))
            if kk == 4 and buf == 0: extra[4][3].append("v_mov_b32 v%d, v%d" % (vPW + 1, vPWR))
            if not (last and kk + LOOK >= 8): rd = a_reads(G + LOOK)
            younger = 4 * (LOOK - 1) if not last else 4 * min(LOOK - 1, 7 - kk)
            if barrier: younger = min(younger, 4)
            a("s_waitcnt lgkmcnt(%d)" % younger)
            if barrier: a("s_barrier")
            for x in pre: a(x)
            mf = []
            for z in range(2):
                for j in range(3):
                    bsrc = OA(s, j) if hs == 0 else OB(s, j)
                    cc = "0" if kk == 0 else vr(ACC(buf, z, j), 4)
                    mf.append("%s %s, %s, %s, %s" % (MF, vr(ACC(buf, z, j), 4), vr(AF(2 * G + z), 4), vr(bsrc, 4), cc))
            fill = spread(rd, [0, 1, 2, 3]) if rd else {}
            fill = merge(fill, extra[kk])
            for x in interleave(mf, fill): a(x)
    lo = a.label("Lo")
    a("s_mov_b32 s%d, 0" % sCNT); a("%s:" % lo)
    o_step(0, False); o_step(1, False)
    a("s_add_u32 s%d, s%d, 1" % (sCNT, sCNT)); a("s_cmp_lt_u32 s%d, 4" % sCNT); a("s_cbranch_scc1 %s" % lo)
    o_step(0, True)
    a("s_nop 7")
    for x in epilogue(0): a(x)
    a("s_waitcnt lgkmcnt(0)")
    a("s_barrier")
    stamp(a, 4, 14)
    stamp(a, 5)
    stamp_flush(a)
    a("v_mov_b32 v1, v%d" % vLANE)
    a("s_mov_b32 s%d, s%d" % (sCNT, sWAVE))
    a("s_branch L_reduce")
    for r in rare: a(r)

def mk_srd(a, b, lo, hi, off, size):
    a("s_add_u32 s%d, s%d, s%d" % (b, lo, off)); a("s_addc_u32 s%d, s%d, 0" % (b + 1, hi)); a("s_mov_b32 s%d, %d" % (b + 2, size)); a("s_mov_b32 s%d, 0x20000" % (b + 3))

def gen_k1():
    a = Asm(); a.stamp_wave = 0; a.stamp_tmp = 252
    common_prologue(a, "L_k1_end", 256)
    a("s_and_b32 s%d, s2, 7" % sXCD); a("s_lshr_b32 s%d, s2, 3" % sIDX)
    a("s_and_b32 s%d, s%d, 1" % (sB, sXCD)); a("s_lshl_b32 s%d, s%d, 3" % (sB, sB)); a("s_and_b32 s%d, s%d, 7" % (sT2, sIDX)); a("s_add_u32 s%d, s%d, s%d" % (sB, sB, sT2))
    a("s_lshr_b32 s%d, s%d, 1" % (sH, sXCD)); a("s_lshl_b32 s%d, s%d, 2" % (sH, sH)); a("s_lshr_b32 s%d, s%d, 3" % (sT2, sIDX)); a("s_add_u32 s%d, s%d, s%d" % (sH, sH, sT2))
    a("s_lshl_b32 s%d, s%d, 4" % (sT0, sB)); a("s_add_u32 s%d, s%d, s%d" % (sT0, sT0, sH))
    a("s_lshl_b32 s%d, s%d, 18" % (sT1, sT0))
    mk_srd(a, sK, 6, 7, sT1, 262144); mk_srd(a, sV, 8, 9, sT1, 262144)
    a("s_mul_i32 s%d, s%d, 110592" % (sT1, sB)); mk_srd(a, sX, 4, 5, sT1, 110592)
    a("s_lshl_b32 s%d, s%d, 9" % (sT1, sH)); mk_srd(a, sWQ, 10, 11, sT1, 0); a("s_sub_u32 s%d, 4718592, s%d" % (sWQ + 2, sT1))
    a("s_mul_i32 s%d, s%d, 294912" % (sT1, sH)); mk_srd(a, sWO, 12, 13, sT1, 294912)
    a("s_mul_i32 s%d, s%d, %d" % (sT1, sT0, PART)); a("s_add_u32 s%d, s%d, %d" % (sT1, sT1, WS_PART)); mk_srd(a, sP, 18, 19, sT1, PART)
    a("s_lshr_b32 s%d, s%d, 2" % (sT1, sH)); a("s_lshl_b32 s%d, s%d, 11" % (sT1, sT1)); mk_srd(a, sPF, 10, 11, sT1, 0); a("s_sub_u32 s%d, 4718592, s%d" % (sPF + 2, sT1))
    a("s_lshr_b32 s%d, s%d, 3" % (sT1, sB)); a("s_mul_i32 s%d, s%d, %d" % (sT1, sT1, 8 * 110592)); mk_srd(a, sPF2, 4, 5, sT1, 8 * 110592)
    a("s_mov_b32 s%d, s12" % sWOP); a("s_mov_b32 s%d, s13" % (sWOP + 1))
    a("s_mul_i32 s%d, s%d, 110592" % (sT1, sB)); mk_srd(a, sOUT, 14, 15, sT1, 110592)
    a("s_mul_i32 s%d, s%d, %d" % (sT1, sB, 16 * PART)); a("s_add_u32 s%d, s%d, %d" % (sT1, sT1, WS_PART)); mk_srd(a, sPB, 18, 19, sT1, 16 * PART)
    a("s_mul_i32 s%d, s%d, %d" % (sT1, sB, 9 * 128)); a("s_add_u32 s%d, s%d, %d" % (sT1, sT1, WS_FLAG)); mk_srd(a, sFL, 18, 19, sT1, 9 * 128)
    if STAMP:
        a("s_lshl_b32 s%d, s2, 9" % sT1); a("s_add_u32 s%d, s18, s%d" % (sSTAMP, sT1)); a("s_addc_u32 s%d, s19, 0" % (sSTAMP + 1))
    if "allc" in OPT: a("s_and_b32 s%d, s%d, 3" % (sWAVE, sWAVE))
    a("s_cmp_ge_u32 s%d, 4" % sWAVE); a("s_cbranch_scc1 L_loader")
    gen_compute(a)
    a("L_loader:")
    a.stamp_wave = 4; a.stamp_tmp = 40
    gen_loader(a)
    gen_reducer(a)
    a("L_k1_end:")
    a("s_endpgm")
    return a.text()

def build(fn, stamp=False, opt=()):
    global STAMP, OPT
    STAMP = stamp; OPT = set(opt)
    k1 = gen_k1()
    errs = hazard.check(k1, "k1")
    for e in errs[:10]: print(e)
    if errs: print("k1: %d hazard warnings" % len(errs))
    txt = HEADER + "; @launch grid=(256,1,1) block=(512,1,1) lds=%d\n" % LDS_BYTES
    txt += '.amdgcn_target "amdgcn-amd-amdhsa--gfx950"\n.text\n' + kernel_begin(KNAME) + k1 + '\n.section .rodata,"a"\n.p2align 6\n' + kernel_desc(KNAME, 256, 102, 256)
    open(fn, "w").write(txt)
    print(fn, len(txt), "bytes,", txt.count("\n"), "lines")

if __name__ == "__main__":
    def pieces(start, per):
        d = {}; st = start
        for kind in "KV":
            for lo in range(0, 8, per):
                d.setdefault(st, []).append((kind, 0, lo, lo + per)); st += 1
        return d
    def mk(start, per, i1at):
        d = pieces(start, per)
        d.setdefault(i1at, []).extend([("K", 1), ("V", 1)])
        d.setdefault(19, []).extend([("K", 2), ("V", 2)])
        return d
    PF0 = 0
    O = ["rotq", "nopfq", "notlb"]
    KSCHED = mk(12, 4, 18)
    TAB = None
    build("v7.s", False, O + ["dot2"]); build("v7_st.s", True, O + ["dot2"])
    D = O + ["dot2", "split0"]
    build("v7.s", False, D); build("v7_st.s", True, D)
    build("z_late.s", False, D)
    C = D + ["cpf0"]
    for r in (2, 3, 4, 6):
        RAMP = r; build("z_rp%dc0.s" % r, False, C); build("z_rp%dc0_st.s" % r, True, C)
    RAMP = 0; build("z_late_st.s", True, D); build("z_c0_st.s", True, C)
```

```python
import sys, struct
from asmlib import *
import hazard
from sched import Item, schedule, auto_lgkm, model_cycles

def f32(x): return "0x%08x" % struct.unpack("<I", struct.pack("<f", x))[0]
C_SCALE = 1.4426950408889634 / (128 ** 0.5)

PAIR = 35840
KGRP, VGRP = 1088, 1152
VOFF = 16 * KGRP
WBASE = 2 * PAIR
XBASE = WBASE + 4 * 16384
XSLOT = 12288
EXCH = 3 * PAIR
LDS_BYTES = 163840
PART = 108 * 1024
WS_PART = 1 << 20
WS_FLAG = 1 << 19
KNAME = 'standalone__gqa_block_cached__near_ridge_kernel'
OPT = set()
STAMP = False

sK, sV, sX, sWQ, sWO, sP = 20, 24, 28, 32, 36, 40
sWAVE, sB, sH, sLW = 44, 45, 46, 47
sT0, sT1, sT2, sT3 = 48, 49, 50, 51
sLWK, sLW3072, sLWV, sLW4096 = 52, 53, 59, 66
sTHR, sCNT, sDK, sNEG, sSLOT = 54, 55, 56, 57, 58
sSTAMP = 60
sTM = 62
sQI, sRH = 64, 65
sXCD, sIDX = 67, 68
sPF = 72
sPF2 = 76
sFL = 8
sPB = 4
sOUT = 12
def srd(b): return "s[%d:%d]" % (b, b + 3)
def vr(b, n=1): return "v%d" % b if n == 1 else "v[%d:%d]" % (b, b + n - 1)

def _stamp(a, idx, instr):
    if not STAMP: return
    a("%s s[%d:%d]" % (instr, sTM, sTM + 1)); a("s_waitcnt lgkmcnt(0)")
    if a.stamp_wave == 0: a("s_mov_b32 s%d, s%d" % (80 + idx, sTM))
    else: a("v_writelane_b32 v40, s%d, %d" % (sTM, idx))
def stamp(a, idx, cyc=None):
    _stamp(a, idx, "s_memrealtime")
    if cyc is not None: _stamp(a, cyc, "s_memtime")
DBG_WG = 37
def stamp_flush(a):
    if not STAMP: return
    if "dbg" in OPT:
        sk = a.label("Ldbgs")
        a("s_cmp_lg_u32 s2, %d" % DBG_WG); a("s_cbranch_scc1 %s" % sk)
        a("s_cmp_lg_u32 s%d, %d" % (sWAVE, a.stamp_wave)); a("s_cbranch_scc1 %s" % sk)
        a("v_mov_b32 v1, 0")
        if a.stamp_wave == 0:
            for dw, (j, j0) in zip((1, 2, 3, 5, 6, 7, 9, 10, 11), ((1, 0), (2, 0), (3, 0), (4, 0), (11, 10), (12, 11), (13, 12), (14, 13), (7, 6))):
                a("s_sub_u32 s%d, s%d, s%d" % (sT0, 80 + j, 80 + j0)); a("v_mov_b32 v2, s%d" % sT0); a("global_store_dword v1, v2, s[16:17] offset:%d" % (4 * dw))
        else:
            a("v_readlane_b32 s%d, v40, 15" % sT0); a("v_readlane_b32 s%d, v40, 16" % sT1); a("s_nop 3"); a("s_sub_u32 s%d, s%d, s%d" % (sT0, sT0, sT1)); a("v_mov_b32 v2, s%d" % sT0)
            a("global_store_dword v1, v2, s[16:17] offset:52")
            a("v_readlane_b32 s%d, v40, 36" % sT0); a("s_nop 3"); a("s_sub_u32 s%d, s%d, s%d" % (sT0, sT0, sT1)); a("v_mov_b32 v2, s%d" % sT0)
            a("global_store_dword v1, v2, s[16:17] offset:56")
        a("%s:" % sk)
        return
    sk = a.label("Lst")
    a("s_cmp_lg_u32 s%d, %d" % (sWAVE, a.stamp_wave)); a("s_cbranch_scc1 %s" % sk)
    if a.stamp_wave == 0:
        a("v_mov_b32 v1, 0")
        for i in range(16):
            if i in (8, 9, 15): continue
            a("v_mov_b32 v2, s%d" % (80 + i)); a("global_store_dword v1, v2, s[%d:%d] offset:%d" % (sSTAMP, sSTAMP + 1, 4 * i))
    else:
        a("v_and_b32 v2, 63, v0"); a("v_lshlrev_b32 v3, 2, v2")
        a("v_cmp_lt_u32 vcc, 14, v2"); a("v_cmp_eq_u32 s[96:97], 8, v2"); a("s_or_b64 vcc, vcc, s[96:97]"); a("v_cmp_eq_u32 s[96:97], 9, v2"); a("s_or_b64 vcc, vcc, s[96:97]")
        a("s_and_saveexec_b64 s[96:97], vcc")
        a("global_store_dword v3, v40, s[%d:%d]" % (sSTAMP, sSTAMP + 1))
        a("s_mov_b64 exec, s[96:97]")
    a("%s:" % sk)

def common_prologue(a, endlab, nwg):
    if STAMP: a("s_memrealtime s[84:85]")
    a("s_cmp_ge_u32 s2, %d" % nwg); a("s_cbranch_scc1 %s" % endlab)
    a("s_load_dwordx8 s[4:11], s[0:1], 0")
    a("s_load_dwordx4 s[12:15], s[0:1], 32")
    a("s_load_dwordx4 s[16:19], s[0:1], 48")
    a("v_lshrrev_b32 v1, 6, v0")
    a("s_nop 0")
    a("v_readfirstlane_b32 s%d, v1" % sWAVE)
    a("s_waitcnt lgkmcnt(0)")

class VQ:
    def __init__(s): s.q = []
    def issue(s, tag, n=1): s.q += [tag] * n
    def wait(s, tags):
        idx = [i for i, t in enumerate(s.q) if t in tags]
        if not idx: return None
        last = max(idx); n = len(s.q) - 1 - last
        s.q = s.q[last + 1:]
        return min(n, 63)

KV_FLAGS = " nt"
W_FLAGS = ""
O_FLAGS = ""
P_FLAGS = " sc0 sc1"


def gen_loader(a):
    a("s_sub_u32 s%d, s%d, 4" % (sLW, sWAVE))
    a("v_and_b32 v1, 63, v0")
    if STAMP: a("v_mov_b32 v40, 0")
    a("s_cmp_ge_u32 s%d, 2" % sLW); a("s_cbranch_scc1 L_kvloader")
    gen_wloader(a)
    a("L_kvloader:")
    gen_kvloader(a)

def mk_bar(a, q, trace_base=None):
    def bar(tags):
        n = q.wait(tags) if tags else None
        if n is not None and "nowait" not in OPT: a("s_waitcnt vmcnt(%d)" % n)
        if "trace" in OPT and bar.n < 48 and trace_base is not None: stamp(a, 16 + bar.n)
        a("s_barrier")
        bar.n += 1
    bar.n = 0
    return bar

def dma(a, vreg, srdb, soff, imm, flags):
    if "noload" in OPT: return
    a("buffer_load_dwordx4 v%d, %s, s%d offen offset:%d%s lds" % (vreg, srd(srdb), soff, imm, flags))

def emit_pf(a, chunks, lane=1):
    if not chunks: return
    sk = a.label("Lpfq"); skx = a.label("Lpfx")
    a("s_cmp_ge_u32 s%d, 28" % sIDX); a("s_cbranch_scc1 %s" % sk)
    a("s_cmp_ge_u32 s%d, 16" % sIDX); a("s_cbranch_scc1 %s" % skx)
    a("v_lshrrev_b32 v30, 4, v%d" % lane); a("v_and_b32 v31, 15, v%d" % lane)
    a("s_lshl_b32 s%d, s%d, 2" % (sT0, sIDX)); a("v_add_u32 v30, s%d, v30" % sT0); a("v_lshlrev_b32 v30, 13, v30"); a("v_lshlrev_b32 v31, 7, v31"); a("v_add_u32 v30, v30, v31")
    for cp in chunks:
        if isinstance(cp, int): a("s_mov_b32 s%d, %d" % (sT0, cp * 64 * 8192))
        else: a("s_lshl_b32 s%d, s%d, 19" % (sT0, cp[0])); a("s_add_u32 s%d, s%d, %d" % (sT0, sT0, cp[1] * 64 * 8192))
        a("buffer_load_dword v32, v30, %s, s%d offen" % (srd(sPF), sT0))
    a("s_branch %s" % sk)
    a("%s:" % skx)
    a("s_sub_u32 s%d, s%d, 16" % (sT0, sIDX)); a("s_lshl_b32 s%d, s%d, 6" % (sT0, sT0)); a("v_add_u32 v30, s%d, v%d" % (sT0, lane)); a("v_mul_u32_u24 v30, 1152, v30")
    for cp in chunks:
        if isinstance(cp, int): a("s_mov_b32 s%d, %d" % (sT0, cp * 128))
        else: a("s_lshl_b32 s%d, s%d, 7" % (sT0, cp[0])); a("s_add_u32 s%d, s%d, %d" % (sT0, sT0, cp[1] * 128))
        a("buffer_load_dword v32, v30, %s, s%d offen" % (srd(sPF2), sT0))
    a("%s:" % sk)

def code_prefetch(a, lane=1):
    if "nocpf" in OPT: return
    lab = a.label("Lcpf")
    a("s_getpc_b64 s[94:95]")
    a("%s:" % lab)
    a("s_sub_u32 s94, s94, (%s - %s)" % (lab, KNAME)); a("s_subb_u32 s95, s95, 0")
    a("s_lshl_b32 s%d, s%d, 11" % (sT0, sIDX))
    a("v_and_b32 v34, 15, v%d" % lane); a("v_lshlrev_b32 v34, 7, v34"); a("v_add_u32 v34, s%d, v34" % sT0)
    a("v_min_u32 v34, (L_k1_end - %s), v34" % KNAME)
    a("global_load_dword v35, v34, s[94:95]")

def attn_kv4(a, is_w, iss_O=None, cpf=None):
    vK4, vV4 = 18, 19
    sL4, sMK, sMV, sTK, sKS = 86, 88, 89, 87, 90
    a("s_sub_u32 s%d, s%d, 4" % (sL4, sWAVE))
    a("v_lshrrev_b32 v2, 4, v1"); a("v_and_b32 v3, 15, v1")
    a("s_lshl_b32 s%d, s%d, 12" % (sT0, sL4)); a("v_lshlrev_b32 v4, 8, v2"); a("v_add_u32 v4, s%d, v4" % sT0)
    a("v_xor_b32 v5, v2, v3"); a("v_lshlrev_b32 v5, 4, v5"); a("v_add_u32 v%d, v4, v5" % vK4)
    a("v_lshlrev_b32 v5, 1, v2"); a("v_xor_b32 v5, v5, v3"); a("v_lshlrev_b32 v5, 4, v5"); a("v_add_u32 v%d, v4, v5" % vV4)
    a("s_mul_i32 s%d, s%d, %d" % (sMK, sL4, 4 * KGRP)); a("s_mul_i32 s%d, s%d, %d" % (sMV, sL4, 4 * VGRP)); a("s_add_u32 s%d, s%d, %d" % (sMV, sMV, VOFF))
    a("s_mov_b32 s%d, %d" % (sTK, 3 * 16384)); a("s_mov_b32 s%d, %d" % (sKS, 3 * PAIR))
    def w(n):
        if "nowait" not in OPT: a("s_waitcnt vmcnt(%d)" % n)
    def item():
        a("s_add_u32 s%d, s%d, s%d" % (sT1, sMK, sKS)); a("s_add_u32 s%d, s%d, s%d" % (sT2, sMV, sKS))
        for isK in (True, False):
            grp = KGRP if isK else VGRP
            for ii in range(4):
                a("s_add_u32 m0, s%d, %d" % (sT1 if isK else sT2, ii * (grp - 1024))); a("s_nop 0")
                dma(a, vK4 if isK else vV4, sK if isK else sV, sTK, ii * 1024, KV_FLAGS)
        a("s_add_u32 s%d, s%d, 16384" % (sTK, sTK))
        a("s_add_u32 s%d, s%d, %d" % (sKS, sKS, PAIR)); a("s_cmp_eq_u32 s%d, %d" % (sKS, 4 * PAIR)); a("s_cselect_b32 s%d, 0, s%d" % (sKS, sKS))
    if not is_w: w(16)
    a("s_barrier")
    item()
    lab = a.label("Lkv4"); a("s_mov_b32 s%d, 2" % sCNT); a("%s:" % lab)
    w(8)
    a("s_barrier")
    item()
    if is_w:
        sk = a.label("Lc4"); a("s_cmp_lg_u32 s%d, %d" % (sCNT, CPF_AT)); a("s_cbranch_scc1 %s" % sk); cpf(); a("%s:" % sk)
    a("s_add_u32 s%d, s%d, 1" % (sCNT, sCNT)); a("s_cmp_lt_u32 s%d, 14" % sCNT); a("s_cbranch_scc1 %s" % lab)
    w(8); a("s_barrier")
    if is_w: iss_O()
    w(16 if is_w else 0); a("s_barrier")
    if is_w: iss_O()
    if is_w: w(16)
    a("s_barrier")
    if is_w: iss_O()

def gen_wloader(a):
    vW, vX, vO = 10, 14, 16
    a.stamp_wave = 4
    sA, sBb = sLWK, sLWV
    a("v_lshrrev_b32 v6, 5, v1"); a("v_and_b32 v7, 31, v1")
    a("s_lshl_b32 s%d, s%d, 17" % (sT1, sLW))
    a("v_lshlrev_b32 v8, 13, v6"); a("v_add_u32 v8, s%d, v8" % sT1)
    for var in range(4):
        a("v_add_u32 v5, %d, v6" % (2 * (var & 1) + 4 * (var >> 1))); a("v_lshlrev_b32 v5, 1, v5"); a("v_xor_b32 v5, v5, v7")
        a("v_lshlrev_b32 v5, 4, v5"); a("v_add_u32 v%d, v8, v5" % (vW + var))
    a("v_lshrrev_b32 v6, 3, v1"); a("v_and_b32 v7, 7, v1")
    a("s_mul_i32 s%d, s%d, 48" % (sT1, sLW)); a("v_add_u32 v8, s%d, v6" % sT1); a("v_mul_u32_u24 v8, 1152, v8")
    a("v_lshrrev_b32 v9, 1, v6")
    for i in range(2):
        a("v_add_u32 v5, %d, v9" % (4 * i)); a("v_xor_b32 v5, v5, v7"); a("v_lshlrev_b32 v5, 4, v5"); a("v_add_u32 v%d, v8, v5" % (vX + i))
    a("v_mul_u32_u24 v8, 1152, v6")
    a("v_and_b32 v5, 3, v9"); a("v_lshlrev_b32 v5, 1, v5"); a("v_xor_b32 v5, v5, v7"); a("v_lshlrev_b32 v5, 4, v5"); a("v_add_u32 v%d, v8, v5" % vO)
    a("s_lshl_b32 s%d, s%d, 13" % (sA, sLW))
    a("s_mul_i32 s%d, s%d, 6144" % (sBb, sLW))
    a("s_lshl_b32 s%d, s%d, 14" % (sLW4096, sLW))
    a("s_mul_i32 s%d, s%d, %d" % (sLW3072, sLW, 128 * 1152))
    sWK, sXK, sOK = 98, 99, 100
    sWS, sXS, sOS = 93, 92, 91
    A_, SI, B_, SJ = ROTQ
    a("s_and_b32 s%d, s%d, 7" % (sT0, sIDX)); a("s_lshr_b32 s%d, s%d, %d" % (sT0, sT0, SI)); a("s_mul_i32 s%d, s%d, %d" % (sT0, sT0, A_))
    a("s_lshr_b32 s%d, s%d, %d" % (sT1, sIDX, 3 + SJ)); a("s_mul_i32 s%d, s%d, %d" % (sT1, sT1, B_)); a("s_add_u32 s%d, s%d, s%d" % (sT0, sT0, sT1))
    for _ in range(2): a("s_cmp_ge_u32 s%d, 9" % sT0); a("s_cselect_b32 s%d, 9, 0" % sT1); a("s_sub_u32 s%d, s%d, s%d" % (sT0, sT0, sT1))
    a("s_lshl_b32 s%d, s%d, 19" % (sWK, sT0)); a("s_lshl_b32 s%d, s%d, 7" % (sXK, sT0))
    a("s_and_b32 s%d, s%d, 7" % (sT0, sB)); a("s_lshl_b32 s%d, s%d, 7" % (sOK, sT0))
    a("s_mov_b32 s%d, %d" % (sWS, 2 * 16384)); a("s_mov_b32 s%d, 0" % sXS); a("s_mov_b32 s%d, 0" % sOS)
    a("s_add_u32 s%d, s%d, %d" % (sA, sA, WBASE)); a("s_add_u32 s%d, s%d, %d" % (sBb, sBb, XBASE))
    def adv(reg, step, wrap):
        a("s_add_u32 s%d, s%d, %d" % (reg, reg, step)); a("s_cmp_eq_u32 s%d, %d" % (reg, wrap)); a("s_cselect_b32 s%d, 0, s%d" % (reg, reg))
    def iss_W():
        a("s_add_u32 m0, s%d, s%d" % (sA, sWS))
        for ii in range(8):
            if ii == 4: a("s_add_u32 m0, m0, 4096")
            a("s_add_u32 s%d, s%d, %d" % (sT0, sWK, 16384 * ii - (ii & 3) * 1024))
            dma(a, vW + (ii & 1) + 2 * (ii >> 2), sWQ, sT0, (ii & 3) * 1024, W_FLAGS)
        adv(sWK, 262144, 18 * 262144); adv(sWS, 16384, 65536)
    def iss_X():
        a("s_add_u32 m0, s%d, s%d" % (sBb, sXS))
        for ii in range(6):
            if ii == 4: a("s_add_u32 m0, m0, 4096")
            a("s_add_u32 s%d, s%d, %d" % (sT0, sXK, 9216 * ii - (ii & 3) * 1024))
            dma(a, vX + (ii & 1), sX, sT0, (ii & 3) * 1024, W_FLAGS)
        adv(sXK, 128, 9 * 128); a("s_xor_b32 s%d, s%d, %d" % (sXS, sXS, XSLOT))
    def iss_O():
        a("s_add_u32 s%d, s%d, s%d" % (sT1, sLW3072, sOK))
        a("s_add_u32 m0, s%d, s%d" % (sLW4096, sOS))
        for ii in range(16):
            if ii % 4 == 0 and ii: a("s_add_u32 m0, m0, 4096")
            a("s_add_u32 s%d, s%d, %d" % (sT0, sT1, 9216 * ii - (ii & 3) * 1024))
            dma(a, vO, sWO, sT0, (ii & 3) * 1024, O_FLAGS)
        adv(sOK, 128, 9 * 128); adv(sOS, PAIR, 4 * PAIR)
    tr = [16]
    def bar(w=None):
        if w is not None and "nowait" not in OPT: a("s_waitcnt vmcnt(%d)" % w)
        a("s_barrier")
    def loop(n, body, name):
        lab = a.label(name)
        a("s_mov_b32 s%d, 0" % sCNT); a("%s:" % lab)
        body()
        a("s_add_u32 s%d, s%d, 1" % (sCNT, sCNT)); a("s_cmp_lt_u32 s%d, %d" % (sCNT, n)); a("s_cbranch_scc1 %s" % lab)
    a("s_waitcnt lgkmcnt(0)")
    early_srds(a)
    if STAMP: a("v_writelane_b32 v40, s84, 16"); stamp(a, 17)
    if "look2" not in OPT:
        if "split0" in OPT:
            li = a.label("Lwi"); sk0 = a.label("Lwi0")
            a("s_mov_b32 s%d, 0" % sCNT); a("%s:" % li)
            iss_X(); iss_W(); iss_W()
            a("s_cmp_lg_u32 s%d, 0" % sCNT); a("s_cbranch_scc1 %s" % sk0)
            late_srds(a, "w")
            if STAMP: stamp(a, 18)
            if "nowait" not in OPT: a("s_waitcnt vmcnt(8)")
            if STAMP: stamp(a, 19)
            bar(None)
            a("s_mov_b32 s%d, 1" % sCNT); a("s_branch %s" % li)
            a("%s:" % sk0)
        else:
            loop(2, lambda: (iss_X(), iss_W(), iss_W()), "Lwi")
            bar(30)
        bar(22)
        iss_W()
        def qbody():
            bar(16)
            iss_X(); iss_W()
            bar(22)
            sk = a.label("Lwl"); a("s_cmp_eq_u32 s%d, 6" % sCNT); a("s_cbranch_scc1 %s" % sk)
            iss_W()
            a("%s:" % sk)
        loop(7, qbody, "Lwq")
        bar(8)
        bar(0)
    else:
        if STAMP: stamp(a, 17)
        iss_X(); iss_W(); iss_W()
        if STAMP: stamp(a, 18)
        def qbody():
            bar(8)
            iss_X(); iss_W()
            bar(14)
            iss_W()
        loop(8, qbody, "Lwq")
        bar(8)
        bar(0)
    bar(None); bar(None)
    stamp(a, 8)
    def cpf():
        sk = a.label("Lcp"); a("s_cmp_lg_u32 s%d, 1" % sLW); a("s_cbranch_scc1 %s" % sk); code_prefetch(a); a("%s:" % sk)
    if "kv4" in OPT: attn_kv4(a, True, iss_O, cpf)
    else:
        loop(CPF_AT, lambda: bar(None), "Lwa")
        cpf()
        loop(13 - CPF_AT, lambda: bar(None), "Lwb")
        loop(2, lambda: (bar(None), iss_O()), "Lwo")
        bar(16)
        iss_O()
    a("s_barrier"); a("s_barrier")
    loop(6, lambda: (bar(16), iss_O()), "Lwp")
    bar(0)
    a("s_barrier"); a("s_barrier"); a("s_barrier")
    stamp(a, 9)
    a("s_add_u32 s%d, s%d, 4" % (sCNT, sLW))
    a("s_branch L_reduce")

def gen_kvloader(a):
    vK, vV = 10, 11
    a.stamp_wave = -1
    a("s_sub_u32 s%d, s%d, 2" % (sLW, sLW))
    a("v_lshrrev_b32 v2, 4, v1"); a("v_and_b32 v3, 15, v1")
    a("s_lshl_b32 s%d, s%d, 13" % (sT0, sLW))
    a("v_lshlrev_b32 v4, 8, v2"); a("v_add_u32 v4, s%d, v4" % sT0)
    a("v_xor_b32 v5, v2, v3"); a("v_lshlrev_b32 v5, 4, v5"); a("v_add_u32 v%d, v4, v5" % vK)
    a("v_lshlrev_b32 v5, 1, v2"); a("v_xor_b32 v5, v5, v3"); a("v_lshlrev_b32 v5, 4, v5"); a("v_add_u32 v%d, v4, v5" % vV)
    a("s_mul_i32 s%d, s%d, %d" % (sLWK, sLW, 8 * KGRP)); a("s_mul_i32 s%d, s%d, %d" % (sLWV, sLW, 8 * VGRP))
    sROT = 92
    if "krot" in OPT:
        a("s_mul_i32 s%d, s%d, %d" % (sROT, sXCD, KROT[0])); a("s_mul_i32 s%d, s%d, %d" % (sT0, sIDX, KROT[1])); a("s_add_u32 s%d, s%d, s%d" % (sROT, sROT, sT0))
    q = VQ(); bar = mk_bar(a, q, None)
    def iss(T, isK, lo=0, hi=8):
        for ii in range(lo, hi):
            if "krot" in OPT:
                if ii == lo: a("s_add_u32 s%d, s%d, %d" % (sT2, sROT, T)); a("s_and_b32 s%d, s%d, 15" % (sT2, sT2)); a("s_lshl_b32 s%d, s%d, 14" % (sT2, sT2))
                if ii % 4 == 0 or ii == lo: a("s_add_u32 s%d, s%d, %d" % (sT0, sT2, (ii >> 2) * 4096))
            elif ii % 4 == 0 or ii == lo: a("s_mov_b32 s%d, %d" % (sT0, T * 16384 + (ii >> 2) * 4096))
            grp = KGRP if isK else VGRP
            a("s_add_u32 m0, s%d, %d" % (sLWK if isK else sLWV, (T % 4) * PAIR + (0 if isK else VOFF) + ii * grp - (ii & 3) * 1024))
            if ii % 4: a("s_nop 0")
            else: a("s_nop 0")
            dma(a, vK if isK else vV, sK if isK else sV, sT0, (ii & 3) * 1024, KV_FLAGS)
        q.issue("I%d" % T, hi - lo)
    def prefetch_q():
        sk = a.label("Lpfq"); skx = a.label("Lpfx")
        a("s_cmp_lg_u32 s%d, %d" % (sLW, PF_WAVE)); a("s_cbranch_scc1 %s" % sk)
        a("s_cmp_ge_u32 s%d, 28" % sIDX); a("s_cbranch_scc1 %s" % sk)
        a("s_cmp_ge_u32 s%d, 16" % sIDX); a("s_cbranch_scc1 %s" % skx)
        a("s_lshl_b32 s%d, s%d, 2" % (sT0, sIDX)); a("v_add_u32 v5, s%d, v2" % sT0); a("v_lshlrev_b32 v5, 13, v5"); a("v_lshlrev_b32 v6, 7, v3"); a("v_add_u32 v5, v5, v6")
        for cp in range(PF_FIRST, 9):
            a("s_mov_b32 s%d, %d" % (sT0, cp * 64 * 8192)); a("buffer_load_dword v%d, v5, %s, s%d offen" % (20 + cp, srd(sPF), sT0))
        a("s_branch %s" % sk)
        a("%s:" % skx)
        a("s_sub_u32 s%d, s%d, 16" % (sT0, sIDX)); a("s_lshl_b32 s%d, s%d, 6" % (sT0, sT0)); a("v_add_u32 v5, s%d, v1" % sT0); a("v_mul_u32_u24 v5, 1152, v5")
        for cp in range(PF_FIRST, 9):
            a("s_mov_b32 s%d, %d" % (sT0, cp * 128)); a("buffer_load_dword v%d, v5, %s, s%d offen" % (20 + cp, srd(sPF2), sT0))
        a("%s:" % sk)
    def clear_flags():
        sk = a.label("Lclr")
        a("s_cmp_lg_u32 s%d, 1" % sLW); a("s_cbranch_scc1 %s" % sk)
        a("v_mov_b32 v20, 0"); a("v_mov_b32 v21, 0")
        a("s_lshl_b32 s%d, s%d, 3" % (sT0, sH))
        a("v_lshlrev_b32 v5, 7, v1"); a("v_add_u32 v5, s%d, v5" % sT0); a("v_mov_b32 v7, 0x40000000"); a("v_cmp_gt_u32 vcc, 9, v1"); a("s_nop 1"); a("v_cndmask_b32 v5, v7, v5, vcc")
        a("buffer_store_dwordx2 v[20:21], v5, %s, 0 offen sc0 sc1" % srd(sFL))
        a("s_waitcnt vmcnt(0)")
        a("s_lshl_b32 s%d, s%d, 4" % (sT0, sB)); a("v_mov_b32 v5, s%d" % sT0); a("v_mov_b32 v6, 1")
        a("s_mov_b64 s[96:97], exec"); a("s_mov_b64 exec, 1")
        a("global_atomic_add v5, v6, s[16:17] sc1")
        a("s_mov_b64 exec, s[96:97]")
        a("%s:" % sk)
    if "cpf0" in OPT:
        sk = a.label("Lcp0"); a("s_cmp_lg_u32 s%d, 1" % sLW); a("s_cbranch_scc1 %s" % sk); code_prefetch(a); a("%s:" % sk)
    if "notlb" not in OPT:
        sk = a.label("Ltlb")
        a("s_cmp_lg_u32 s%d, 0" % sLW); a("s_cbranch_scc1 %s" % sk)
        a("v_mov_b32 v5, 0")
        for i, sr in enumerate((sK, sV, sWO, sP, sOUT)): a("buffer_load_dword v%d, v5, %s, 0 offen nt" % (33 + i, srd(sr)))
        a("v_mul_u32_u24 v5, %d, v1" % (PART // 8)); a("v_lshlrev_b32 v5, 3, v5"); a("v_mov_b32 v7, 0x40000000"); a("v_cmp_gt_u32 vcc, 16, v1"); a("s_nop 1"); a("v_cndmask_b32 v5, v7, v5, vcc")
        a("buffer_load_dword v38, v5, %s, 0 offen nt" % srd(sPB))
        a("%s:" % sk)
    clear_flags()
    if "nopfq" not in OPT and PF_AT < 0: prefetch_q()
    for s in range(18):
        bar(None)
        if "nopfq" not in OPT and PF_AT == s: prefetch_q()
        for e in KSCHED.get(s, []): iss(e[1], e[0] == "K", *e[2:])
    bar(None)
    for e in KSCHED.get(18, []): iss(e[1], e[0] == "K", *e[2:])
    bar(["I0", "I1"] if "wait01" in OPT else ["I0"])
    for e in KSCHED.get(19, []): iss(e[1], e[0] == "K", *e[2:])
    if "kv4" in OPT:
        assert FIRST_RULE == 1
        attn_kv4(a, False)
    else:
        sTK, sKS = 93, 91
        def item_dyn():
            a("s_add_u32 s%d, s%d, s%d" % (sT1, sLWK, sKS)); a("s_add_u32 s%d, s%d, s%d" % (sT2, sLWV, sKS))
            for isK in (True, False):
                for ii in range(8):
                    if ii % 4 == 0: a("s_add_u32 s%d, s%d, %d" % (sT0, sTK, (ii >> 2) * 4096))
                    grp = KGRP if isK else VGRP
                    a("s_add_u32 m0, s%d, %d" % (sT1 if isK else sT2, (0 if isK else VOFF) + ii * grp - (ii & 3) * 1024)); a("s_nop 0")
                    dma(a, vK if isK else vV, sK if isK else sV, sT0, (ii & 3) * 1024, KV_FLAGS)
            a("s_add_u32 s%d, s%d, 16384" % (sTK, sTK))
            a("s_add_u32 s%d, s%d, %d" % (sKS, sKS, PAIR)); a("s_cmp_eq_u32 s%d, %d" % (sKS, 4 * PAIR)); a("s_cselect_b32 s%d, 0, s%d" % (sKS, sKS))
        def wv(n):
            if "nowait" not in OPT: a("s_waitcnt vmcnt(%d)" % n)
        if LAG:
            a("s_mov_b32 s%d, %d" % (sTK, 2 * 16384)); a("s_mov_b32 s%d, %d" % (sKS, 2 * PAIR))
            lab = a.label("Lkvl"); a("s_mov_b32 s%d, 1" % sCNT); a("%s:" % lab)
            wv(0); a("s_barrier"); item_dyn()
            a("s_add_u32 s%d, s%d, 1" % (sCNT, sCNT)); a("s_cmp_le_u32 s%d, %d" % (sCNT, LAG)); a("s_cbranch_scc1 %s" % lab)
            item_dyn()
            first = LAG + 1
        else:
            if FIRST_RULE == 2:
                n1 = q.wait(["I1"])
                if n1 is not None: wv(n1)
                a("s_barrier")
            a("s_mov_b32 s%d, %d" % (sTK, (FIRST_RULE + 2) * 16384)); a("s_mov_b32 s%d, %d" % (sKS, ((FIRST_RULE + 2) % 4) * PAIR))
            first = FIRST_RULE
        lab = a.label("Lkv"); a("s_mov_b32 s%d, %d" % (sCNT, first - 1)); a("%s:" % lab)
        wv(16)
        a("s_barrier")
        item_dyn()
        a("s_add_u32 s%d, s%d, 1" % (sCNT, sCNT)); a("s_cmp_lt_u32 s%d, 13" % sCNT); a("s_cbranch_scc1 %s" % lab)
        wv(16)
        a("s_barrier")
        wv(0)
        a("s_barrier")
        a("s_barrier")
    if "nored" not in OPT:
        sk = a.label("Ldbg"); lp = a.label("Ldbgw")
        a("s_cmp_lg_u32 s%d, 0" % sLW); a("s_cbranch_scc1 %s" % sk)
        a("s_lshl_b32 s%d, s%d, 4" % (sT0, sB)); a("v_mov_b32 v10, s%d" % sT0); a("s_mov_b32 s%d, 0" % sT3)
        a("%s:" % lp)
        a("global_load_dword v12, v10, s[16:17] sc1"); a("s_waitcnt vmcnt(0)"); a("v_readfirstlane_b32 s%d, v12" % sT1)
        a("s_add_u32 s%d, s%d, 1" % (sT3, sT3)); a("s_cmp_gt_u32 s%d, %d" % (sT3, SPIN_MAX)); a("s_cbranch_scc1 %s" % sk)
        a("s_cmp_lt_u32 s%d, 16" % sT1); a("s_cbranch_scc1 %s" % lp)
        a("%s:" % sk)
    a("s_barrier"); a("s_barrier")
    vPR, vPO, vF, vOne = 20, 24, 25, 26
    sCH = 93
    a("v_lshlrev_b32 v%d, 4, v1" % vPO)
    a("s_mul_i32 s%d, s%d, 6144" % (sT0, sLW)); a("s_add_u32 s%d, s%d, %d" % (sT0, sT0, PB0)); a("v_add_u32 v%d, s%d, v%d" % (vPR, sT0, vPO)); a("v_add_u32 v%d, 3072, v%d" % (vPR + 1, vPR))
    a("s_mul_i32 s%d, s%d, %d" % (sT0, sLW, 2 * PAIR)); a("s_add_u32 s%d, s%d, 32768" % (sT0, sT0)); a("v_add_u32 v%d, s%d, v%d" % (vPR + 2, sT0, vPO)); a("v_add_u32 v%d, %d, v%d" % (vPR + 3, PAIR, vPR + 2))
    a("s_mul_i32 s%d, s%d, 6144" % (sT0, sLW)); a("v_add_u32 v%d, s%d, v%d" % (vPO, sT0, vPO))
    a("v_mov_b32 v%d, 1" % vOne)
    a("s_lshl_b32 s%d, s%d, 3" % (sT0, sH)); a("s_lshl_b32 s%d, s%d, 2" % (sT1, sLW)); a("s_add_u32 s%d, s%d, s%d" % (sT0, sT0, sT1))
    a("v_mov_b32 v%d, 0x40000000" % vF); a("s_nop 0"); a("v_writelane_b32 v%d, s%d, 0" % (vF, sT0))
    a("s_mov_b32 s%d, 0" % sCH)
    def flag_store(back):
        a("s_sub_u32 s%d, s%d, %d" % (sT0, sCH, back)); a("s_lshl_b32 s%d, s%d, 7" % (sT0, sT0))
        a("buffer_store_dword v%d, v%d, %s, s%d offen sc0 sc1" % (vOne, vF, srd(sFL), sT0))
    def turn(buf, guard):
        for w2 in range(2):
            for j in range(3): a("ds_read_b128 %s, v%d offset:%d" % (vr(64 + 32 * buf + 4 * (3 * w2 + j), 4), vPR + 2 * buf + w2, j * 1024))
        a("s_mul_i32 s%d, s%d, 12288" % (sT0, sCH))
        for i in range(6):
            a("s_waitcnt lgkmcnt(%d)" % (5 - i))
            if "nostore" not in OPT: a("buffer_store_dwordx4 %s, v%d, %s, s%d offen%s" % (vr(64 + 32 * buf + 4 * i, 4), vPO, srd(sP), sT0, P_FLAGS))
            if i < 5: a("s_add_u32 s%d, s%d, 1024" % (sT0, sT0))
        if "nored" not in OPT:
            sk = a.label("Lfl")
            if guard: a("s_cmp_lt_u32 s%d, 2" % sCH); a("s_cbranch_scc1 %s" % sk)
            a("s_waitcnt vmcnt(%d)" % FLW)
            flag_store(2)
            a("%s:" % sk)
        a("s_add_u32 s%d, s%d, 1" % (sCH, sCH))
    a("s_barrier")
    lab = a.label("Lsto"); a("%s:" % lab)
    a("s_barrier"); turn(0, True)
    a("s_barrier"); turn(1, True)
    a("s_cmp_lt_u32 s%d, 8" % sCH); a("s_cbranch_scc1 %s" % lab)
    a("s_barrier"); turn(0, False)
    if "nored" not in OPT:
        a("s_waitcnt vmcnt(7)"); flag_store(2)
        a("s_waitcnt vmcnt(1)"); flag_store(1)
    a("s_cmp_eq_u32 s%d, 0" % sLW); a("s_cselect_b32 s%d, 7, 6" % sCNT)
    a("s_branch L_reduce")

KSCHED = {2: [("K", 0)], 5: [("V", 0)], 8: [("K", 1)], 11: [("V", 1)], 16: [("K", 2)], 17: [("V", 2)]}

def gen_reducer(a):
    a("L_reduce:")
    if "nored" in OPT:
        a.stamp_wave = 4; stamp_flush(a); a("s_endpgm"); return
    rho = sCNT
    giveup = a.label("Lgiveup"); poll = a.label("Lpoll")
    a("s_mul_i32 s%d, s%d, 7" % (sT0, rho)); a("s_cmp_eq_u32 s%d, 7" % rho); a("s_cselect_b32 s%d, 48, s%d" % (sT0, sT0))
    a("s_mul_hi_u32 s%d, s%d, %d" % (sT2, sT0, (2**32 + 5) // 6))
    a("s_cmp_ge_u32 s%d, 6" % rho); a("s_cselect_b32 s%d, 48, 56" % sTASK2); a("s_cselect_b32 s%d, 0, -1" % sCNT2)
    a("v_lshlrev_b32 v9, 2, v1"); a("v_mov_b32 v7, 0x40000000")
    a("s_lshl_b32 s%d, s%d, 7" % (sT2, sT2))
    a("buffer_load_dword v11, v9, %s, s%d offen sc1" % (srd(sFL), sT2))
    a("v_lshrrev_b32 v2, 3, v1"); a("v_add_u32 v2, s%d, v2" % sT0)
    a("v_mul_u32_u24 v8, 10923, v2"); a("v_lshrrev_b32 v8, 16, v8")
    a("v_mul_u32_u24 v5, 6, v8"); a("v_sub_u32 v2, v2, v5")
    a("v_lshlrev_b32 v2, 3, v2"); a("v_and_b32 v5, 7, v1"); a("v_add_u32 v2, v2, v5")
    a("s_mul_i32 s%d, s%d, 48" % (sT1, sH)); a("v_add_u32 v2, s%d, v2" % sT1)
    a("v_mul_u32_u24 v3, 12288, v8"); a("v_lshlrev_b32 v5, 4, v2"); a("v_add_u32 v3, v3, v5")
    a("v_cmp_gt_u32 vcc, s%d, v1" % sTASK2); a("s_nop 1"); a("v_cndmask_b32 v3, v7, v3, vcc")
    a("v_lshrrev_b32 v4, 6, v2"); a("v_and_b32 v5, 63, v2")
    a("v_cmp_le_u32 s[96:97], 6, v4"); a("s_nop 1"); a("v_cndmask_b32 v6, 0, 1, s[96:97]")
    a("v_mul_u32_u24 v10, 6, v6"); a("v_sub_u32 v4, v4, v10")
    a("v_lshlrev_b32 v4, 4, v4"); a("v_and_b32 v10, 15, v5"); a("v_add_u32 v4, v4, v10"); a("v_mul_u32_u24 v4, 1152, v4")
    a("v_lshlrev_b32 v6, 6, v6"); a("v_lshrrev_b32 v5, 4, v5"); a("v_lshlrev_b32 v5, 3, v5"); a("v_add_u32 v4, v4, v6"); a("v_add_u32 v4, v4, v5")
    a("s_and_b32 s%d, s%d, 7" % (sT1, sB)); a("v_add_u32 v8, s%d, v8" % sT1)
    a("v_cmp_le_u32 s[96:97], 9, v8"); a("s_nop 1"); a("v_cndmask_b32 v6, 0, 9, s[96:97]"); a("v_sub_u32 v8, v8, v6"); a("v_lshlrev_b32 v8, 7, v8"); a("v_add_u32 v4, v4, v8")
    a("v_cndmask_b32 v4, v7, v4, vcc")
    a("s_mov_b32 s%d, 0" % sT3)
    a("s_branch %s_chk" % poll)
    a("%s:" % poll)
    a("buffer_load_dword v11, v9, %s, s%d offen sc1" % (srd(sFL), sT2))
    a("%s_chk:" % poll)
    a("s_waitcnt vmcnt(0)")
    a("v_cmp_eq_u32 vcc, 1, v11")
    a("s_add_u32 s%d, s%d, 1" % (sT3, sT3)); a("s_cmp_gt_u32 s%d, %d" % (sT3, SPIN_MAX)); a("s_cbranch_scc1 %s" % giveup)
    a("s_orn2_b32 vcc_hi, vcc_hi, s%d" % sCNT2)
    a("s_cmp_eq_u64 vcc, -1"); a("s_cbranch_scc0 %s" % poll)
    a("s_mov_b32 s%d, 0" % sT0)
    for h in range(16):
        a("buffer_load_dwordx4 v[%d:%d], v3, %s, s%d offen%s" % (64 + 4 * h, 67 + 4 * h, srd(sPB), sT0, R_FLAGS))
        if h < 15: a("s_add_u32 s%d, s%d, %d" % (sT0, sT0, PART))
    if "dot2" in OPT:
        a("v_mov_b32 v12, 0x00003f80"); a("v_mov_b32 v13, 0x3f800000")
        for r in range(8): a("v_mov_b32 v%d, 0" % (48 + r))
    for h in range(16):
        a("s_waitcnt vmcnt(%d)" % (15 - h))
        for r in range(4):
            src = 64 + 4 * h + r
            if "dot2" in OPT:
                a("v_dot2c_f32_bf16 v%d, v%d, v12" % (48 + 2 * r, src)); a("v_dot2c_f32_bf16 v%d, v%d, v13" % (49 + 2 * r, src))
            elif h == 0:
                a("v_lshlrev_b32 v%d, 16, v%d" % (48 + 2 * r, src)); a("v_and_b32 v%d, 0xffff0000, v%d" % (49 + 2 * r, src))
            else:
                a("v_lshlrev_b32 v12, 16, v%d" % src); a("v_and_b32 v13, 0xffff0000, v%d" % src)
                a("v_add_f32 v%d, v%d, v12" % (48 + 2 * r, 48 + 2 * r)); a("v_add_f32 v%d, v%d, v13" % (49 + 2 * r, 49 + 2 * r))
    for r in range(4): a("v_cvt_pk_bf16_f32 v%d, v%d, v%d" % (56 + r, 48 + 2 * r, 49 + 2 * r))
    a("buffer_store_dwordx2 v[56:57], v4, %s, 0 offen%s" % (srd(sOUT), OUT_FLAGS))
    a("buffer_store_dwordx2 v[58:59], v4, %s, 0 offen offset:32%s" % (srd(sOUT), OUT_FLAGS))
    a("%s:" % giveup)
    if STAMP:
        sk = a.label("Lnst"); a("s_cmp_lg_u32 s%d, 4" % sWAVE); a("s_cbranch_scc1 %s" % sk)
        a.stamp_wave = 4; stamp(a, 15); stamp_flush(a)
        a("%s:" % sk)
    a("s_endpgm")
R_FLAGS = " sc1"
OUT_FLAGS = ""
sTASK2 = 101
sCNT2 = 95
PB0 = 143360
SPIN_MAX = 200000
sWOP = 70

PF_O_AT = 10
PF_WAVE = 1
PF_FIRST = 4
PF_AT = 0
PF0 = 2
RAMP = 0
LAG = 0
RAMP_EVERY = 1
FLW = 12
STG_AT = 7
NSTG0 = 3
ROTQ = (1, 0, 2, 0)
KROT = (2, 1)
CPF_AT = 11
FIRST_RULE = 1
CMP_SLACK = 6
FLAG_DELAY = 4

def O_(j, db): return (j * 8 + db) * 4
def Q_(j, s): return 96 + (j * 4 + s) * 4
def KF(f): return 144 + 4 * f
def VF(db): return 176 + 4 * db
def S_(par): return 208 + 8 * par
def P_(par): return 224 + 4 * par
def N_(j): return 232 + 4 * j
def L_(j): return 244 + j
vKA, vVA, vT, vT2, vS, vLANE = 247, 248, 252, 253, 254, 255
MF = "v_mfma_f32_16x16x32_bf16"

def interleave(mfmas, fillers):
    out = list(fillers.get(-1, []))
    for i, m in enumerate(mfmas):
        out.append(m); out += fillers.get(i, [])
    return out
def spread(items, slots):
    d = {}; n = len(items)
    for i, it in enumerate(items): d.setdefault(slots[i * len(slots) // n], []).append(it)
    return d
def merge(*ds):
    o = {}
    for d in ds:
        for k, v in d.items(): o.setdefault(k, []).extend(v)
    return o

KORD = [(kb, s) for s in range(4) for kb in range(2)]
def k_read(kb, s, half, ad=None):
    return "ds_read_b128 %s, v%d offset:%d" % (vr(KF(kb * 4 + s), 4), vKA if ad is None else ad, half * 8 * KGRP + kb * 4 * KGRP + s * 64)
def v_reads(db, half):
    A, cc = divmod(db, 4)
    o = half * 8 * VGRP + A * 128
    return ["ds_read_b64_tr_b16 %s, v%d offset:%d" % (vr(VF(db), 2), vVA + cc, o), "ds_read_b64_tr_b16 %s, v%d offset:%d" % (vr(VF(db) + 2, 2), vVA + cc, o + 4 * VGRP)]

TAB = None
def hoist_waits(lines):
    out = []
    for l in lines:
        if l.startswith("s_waitcnt lgkmcnt") and out:
            n = int(l.split("(")[1].split(")")[0])
            k = len(out) - 1; jumped = 0; ok = False
            while k >= 0:
                x = out[k]
                if x.startswith("v_mfma"): ok = True; break
                if x.endswith(":") or x.startswith(("s_cbranch", "s_barrier", "s_waitcnt")): break
                if x.startswith("ds_"): jumped += 1
                k -= 1
            if ok and n - jumped >= 0:
                out.insert(k + 1, "s_waitcnt lgkmcnt(%d)" % (n - jumped)); continue
        out.append(l)
    return out

def gen_compute(a):
    rare = []
    a("v_and_b32 v%d, 63, v0" % vLANE)
    a("s_lshr_b32 s%d, s%d, 1" % (sQI, sWAVE)); a("s_and_b32 s%d, s%d, 1" % (sRH, sWAVE))
    g, rp, c, q = 240, 241, 242, 243
    a("v_lshrrev_b32 v%d, 4, v%d" % (g, vLANE)); a("v_bfe_u32 v%d, v%d, 2, 2" % (rp, vLANE)); a("v_and_b32 v%d, 3, v%d" % (c, vLANE)); a("v_and_b32 v%d, 15, v%d" % (q, vLANE))
    vWA, vXA = 232, 244
    t, t2 = vT, vT2
    a("v_lshlrev_b32 v%d, 3, v%d" % (t, g)); a("v_add_u32 v%d, v%d, v%d" % (t, t, rp)); a("v_lshlrev_b32 v%d, 9, v%d" % (t, t))
    a("v_and_b32 v%d, 1, v%d" % (t2, g)); a("v_lshlrev_b32 v%d, 2, v%d" % (t2, t2)); a("v_add_u32 v%d, v%d, v%d" % (t2, t2, rp)); a("v_lshlrev_b32 v%d, 5, v%d" % (t2, t2))
    a("v_add_u32 v%d, v%d, v%d" % (t, t, t2)); a("v_lshlrev_b32 v%d, 3, v%d" % (t2, c)); a("v_add_u32 v%d, v%d, v%d" % (t, t, t2))
    a("s_lshl_b32 s%d, s%d, 8" % (sT0, sQI)); a("s_add_u32 s%d, s%d, %d" % (sT0, sT0, WBASE)); a("v_add_u32 v%d, s%d, v%d" % (t, sT0, t))
    assert WBASE % 256 == 0 and XBASE % 128 == 0
    for db in range(8): a("v_xor_b32 v%d, %d, v%d" % (vWA + db, db * 32, t))
    a("s_mul_i32 s%d, s%d, %d" % (sT0, sRH, 48 * 128)); a("s_add_u32 s%d, s%d, %d" % (sT0, sT0, XBASE))
    a("v_lshrrev_b32 v%d, 1, v%d" % (t, q)); a("v_xor_b32 v%d, v%d, v%d" % (t, t, g)); a("v_lshlrev_b32 v%d, 4, v%d" % (t, t))
    a("v_lshlrev_b32 v%d, 7, v%d" % (t2, q)); a("v_add_u32 v%d, v%d, v%d" % (t, t, t2)); a("v_add_u32 v%d, s%d, v%d" % (vXA, sT0, t)); a("v_xor_b32 v%d, 64, v%d" % (vXA + 1, vXA))
    a("v_lshrrev_b32 v%d, 2, v%d" % (t, q)); a("v_mul_u32_u24 v%d, %d, v%d" % (t, KGRP, t))
    a("v_and_b32 v%d, 3, v%d" % (t2, q)); a("v_lshlrev_b32 v%d, 8, v%d" % (vKA, t2)); a("v_add_u32 v%d, v%d, v%d" % (t, t, vKA))
    a("v_xor_b32 v%d, v%d, v%d" % (t2, t2, g)); a("v_lshlrev_b32 v%d, 4, v%d" % (t2, t2)); a("v_add_u32 v%d, v%d, v%d" % (vKA, t, t2))
    a("v_mul_u32_u24 v%d, %d, v%d" % (t, VGRP, g)); a("v_lshlrev_b32 v%d, 8, v%d" % (t2, rp)); a("v_add_u32 v%d, v%d, v%d" % (t, t, t2))
    a("v_lshlrev_b32 v%d, 3, v%d" % (t2, c)); a("v_add_u32 v%d, v%d, v%d" % (t, t, t2)); a("v_add_u32 v%d, %d, v%d" % (t, VOFF, t))
    for cc in range(4):
        a("v_xor_b32 v%d, %d, v%d" % (t2, cc, rp)); a("v_lshlrev_b32 v%d, 5, v%d" % (t2, t2)); a("v_add_u32 v%d, v%d, v%d" % (vVA + cc, t, t2))
    stamp(a, 0, 10)

    def ABUF(buf, db): return 144 + 32 * buf + 4 * db
    def BBUF(buf, j): return 208 + 12 * buf + 4 * j
    def q_reads(s):
        buf = s & 1; wo = ((s + 2) % 4) * 16384; xo = ((s // 2) % 2) * XSLOT
        r = []
        for j in range(3): r.append("ds_read_b128 %s, v%d offset:%d" % (vr(BBUF(buf, j), 4), vXA + (s & 1), xo + j * 2048))
        for db in range(8):
            r.append("ds_read_b64_tr_b16 %s, v%d offset:%d" % (vr(ABUF(buf, db), 2), vWA + db, wo))
            r.append("ds_read_b64_tr_b16 %s, v%d offset:%d" % (vr(ABUF(buf, db) + 2, 2), vWA + db, wo + 2048))
        return r
    for r in range(0, 96, 2): a("v_mov_b64 %s, 0" % vr(r, 2))
    a("s_barrier")
    for x in q_reads(0): a(x)
    def q_stage(s, reads=True):
        buf = s & 1
        a("s_waitcnt lgkmcnt(0)")
        a("s_barrier")
        mf = []
        for db in range(8):
            for j in range(3):
                mf.append("%s %s, %s, %s, %s" % (MF, vr(O_(j, db), 4), vr(ABUF(buf, db), 4), vr(BBUF(buf, j), 4), vr(O_(j, db), 4)))
        rd = q_reads(s + 1) if reads else []
        for x in interleave(mf, spread(rd, list(range(0, 17))) if rd else {}): a(x)
    lq = a.label("Lq")
    a("s_mov_b32 s%d, 0" % sCNT); a("%s:" % lq)
    for s in range(4): q_stage(s)
    a("s_add_u32 s%d, s%d, 1" % (sCNT, sCNT)); a("s_cmp_lt_u32 s%d, 4" % sCNT); a("s_cbranch_scc1 %s" % lq)
    q_stage(16); q_stage(17, reads=False)
    stamp(a, 1, 11)
    a("s_nop 7")
    a("s_mov_b32 s%d, %s" % (sT0, f32(C_SCALE))); a("s_mov_b32 s%d, s%d" % (sT0 + 1, sT0))
    for j in range(3):
        for s in range(4):
            X, Y, D = O_(j, 2 * s), O_(j, 2 * s + 1), Q_(j, s)
            for r in range(0, 4, 2):
                a("v_pk_mul_f32 %s, %s, s[%d:%d]" % (vr(X + r, 2), vr(X + r, 2), sT0, sT0 + 1)); a("v_pk_mul_f32 %s, %s, s[%d:%d]" % (vr(Y + r, 2), vr(Y + r, 2), sT0, sT0 + 1))
            a("v_cvt_pk_bf16_f32 v%d, v%d, v%d" % (D + 0, X + 0, X + 1)); a("v_cvt_pk_bf16_f32 v%d, v%d, v%d" % (D + 1, X + 2, X + 3))
            a("v_cvt_pk_bf16_f32 v%d, v%d, v%d" % (D + 2, Y + 0, Y + 1)); a("v_cvt_pk_bf16_f32 v%d, v%d, v%d" % (D + 3, Y + 2, Y + 3))
            for r in range(0, 4, 2):
                a("v_mov_b64 %s, 0" % vr(X + r, 2)); a("v_mov_b64 %s, 0" % vr(Y + r, 2))
            a("v_permlane32_swap_b32 v%d, v%d" % (D + 0, D + 2)); a("v_permlane32_swap_b32 v%d, v%d" % (D + 1, D + 3))
            a("s_nop 1")
            a("v_permlane16_swap_b32 v%d, v%d" % (D + 0, D + 2)); a("v_permlane16_swap_b32 v%d, v%d" % (D + 1, D + 3))
    a("s_barrier")
    for kb, s_ in KORD: a(k_read(kb, s_, 0))
    a("s_waitcnt lgkmcnt(0)")
    for j in range(3):
        for kb, s_ in KORD:
            d = 176 + 8 * j + 4 * kb
            a("%s %s, %s, %s, %s" % (MF, vr(d, 4), vr(KF(kb * 4 + s_), 4), vr(Q_(j, s_), 4), "0" if s_ == 0 else vr(d, 4)))
    for r in range(224, 232, 2): a("v_mov_b64 %s, 0" % vr(r, 2))
    for j in range(3): a("v_mov_b32 v%d, 0" % L_(j))
    a("v_mov_b32 v%d, 0" % vS)
    a("s_mov_b32 s%d, %s" % (sTHR, "0x7f800000" if "norare" in OPT else f32(256.0)))
    a("s_mov_b32 s%d, 0" % sSLOT); a("s_mov_b32 s%d, 0" % sDK)
    a("s_mov_b32 s%d, 0x%x" % (sNEG, -3 * PAIR & 0xffffffff))
    a("s_mov_b64 vcc, 0")
    a("s_nop 3")
    for j in range(3):
        S = 176 + 8 * j; t, t2 = 200 + 2 * j, 201 + 2 * j
        a("v_max3_f32 v%d, v%d, v%d, v%d" % (t, S, S + 1, S + 2)); a("v_max3_f32 v%d, v%d, v%d, v%d" % (t2, S + 3, S + 4, S + 5))
        a("v_max3_f32 v%d, v%d, v%d, v%d" % (t, t, S + 6, S + 7)); a("v_max_f32 v%d, v%d, v%d" % (t, t, t2))
    for sw in ("v_permlane32_swap_b32", "v_permlane16_swap_b32"):
        for j in range(3): a("v_mov_b32 v%d, v%d" % (201 + 2 * j, 200 + 2 * j))
        a("s_nop 0")
        for j in range(3): a("%s v%d, v%d" % (sw, 200 + 2 * j, 201 + 2 * j))
        for j in range(3): a("v_max_f32 v%d, v%d, v%d" % (200 + 2 * j, 200 + 2 * j, 201 + 2 * j))
    for j in range(3):
        for i in range(4): a("v_sub_f32 v%d, 0, v%d" % (N_(j) + i, 200 + 2 * j))
    for r in range(176, 208, 2): a("v_mov_b64 %s, 0" % vr(r, 2))
    def qk_mfmas(jn, par):
        m = []
        for kb, s in KORD:
            d = S_(par) + 4 * kb
            cc = vr(N_(jn), 4) if s == 0 else vr(d, 4)
            m.append("%s %s, %s, %s, %s" % (MF, vr(d, 4), vr(KF(kb * 4 + s), 4), vr(Q_(jn, s), 4), cc))
        return m
    def pv_mfmas(jp, par):
        return ["%s %s, %s, %s, %s" % (MF, vr(O_(jp, db), 4), vr(VF(db), 4), vr(P_(par), 4), vr(O_(jp, db), 4)) for db in range(8)]
    for m in qk_mfmas(0, 0): a(m)
    a("s_nop 7")

    def rare_code(st, j, adv):
        par = (3 * st + j) & 1
        S, P = S_(par), P_(par)
        rl, cont = a.label("Lrare"), a.label("Lcont")
        r = Asm()
        r("%s:" % rl)
        if adv: r("v_subrev_u32 v%d, s%d, v%d" % (vT2, sDK, vKA))
        else: r("v_mov_b32 v%d, v%d" % (vT2, vKA))
        for kb in range(2):
            for s in range(4):
                r("ds_read_b128 %s, v%d offset:%d" % (vr(P, 4), vT2, st * 8 * KGRP + kb * 4 * KGRP + s * 64))
                r("s_waitcnt lgkmcnt(0)")
                cc = vr(N_(j), 4) if s == 0 else vr(S + 4 * kb, 4)
                r("%s %s, %s, %s, %s" % (MF, vr(S + 4 * kb, 4), vr(P, 4), vr(Q_(j, s), 4), cc))
                r("s_nop 3")
        r("s_nop 7")
        r("v_max3_f32 v%d, v%d, v%d, v%d" % (vT, S, S + 1, S + 2)); r("v_max3_f32 v%d, v%d, v%d, v%d" % (vT2, S + 3, S + 4, S + 5))
        r("v_max3_f32 v%d, v%d, v%d, v%d" % (vT, vT, S + 6, S + 7)); r("v_max_f32 v%d, v%d, v%d" % (vT, vT, vT2))
        r("v_mov_b32 v%d, v%d" % (vT2, vT)); r("s_nop 1"); r("v_permlane32_swap_b32 v%d, v%d" % (vT, vT2)); r("v_max_f32 v%d, v%d, v%d" % (vT, vT, vT2))
        r("v_mov_b32 v%d, v%d" % (vT2, vT)); r("s_nop 1"); r("v_permlane16_swap_b32 v%d, v%d" % (vT, vT2)); r("v_max_f32 v%d, v%d, v%d" % (vT, vT, vT2))
        r("v_max_f32 v%d, 0, v%d" % (vT, vT))
        r("v_sub_f32 v%d, 0, v%d" % (vT2, vT)); r("v_exp_f32 v%d, v%d" % (vT2, vT2)); r("s_nop 0")
        r("v_mul_f32 v%d, v%d, v%d" % (L_(j), L_(j), vT2))
        for db in range(8):
            for rr in range(4): r("v_mul_f32 v%d, v%d, v%d" % (O_(j, db) + rr, O_(j, db) + rr, vT2))
        for i in range(4): r("v_sub_f32 v%d, v%d, v%d" % (N_(j) + i, N_(j) + i, vT))
        for i in range(8): r("v_sub_f32 v%d, v%d, v%d" % (S + i, S + i, vT))
        for i in range(8): r("v_exp_f32 v%d, v%d" % (S + i, S + i))
        r("s_nop 0")
        r("v_add_f32 v%d, v%d, v%d" % (vS, S, S + 1))
        for i in range(2, 8): r("v_add_f32 v%d, v%d, v%d" % (vS, vS, S + i))
        for i in range(4): r("v_cvt_pk_bf16_f32 v%d, v%d, v%d" % (P + i, S + 2 * i, S + 2 * i + 1))
        r("s_nop 1")
        r("s_branch %s" % cont)
        rare.append(r.text())
        if "nobr" in OPT: return ["%s:" % cont]
        if "sccbr" in OPT: return ["s_cbranch_scc1 %s" % rl, "%s:" % cont]
        return ["s_cbranch_vccnz %s" % rl, "%s:" % cont]

    def block_tab(st, j, prev, qk=True, kload=None, vlo=None, vhi=None, barrier=False, extra=(), pre_extra=(), klate=None):
        par = (3 * st + j) & 1
        jn, jp = (j + 1) % 3, (j - 1) % 3
        S, P = S_(par), P_(par)
        pre = []
        if barrier: pre.append("s_barrier")
        endbr = []
        if "brend" in OPT:
            endbr = rare_code(st, j, st == 1 and j >= 1)
        elif prev is not None: pre += rare_code(*prev)
        pre += list(pre_extra)
        mf = qk_mfmas(jn, par ^ 1) + pv_mfmas(jp, par ^ 1)
        N = {}
        for i in range(8): N["E%d" % i] = "v_exp_f32 v%d, v%d" % (S + i, S + i)
        for i in range(4):
            N["C%d" % i] = "v_cvt_pk_bf16_f32 v%d, v%d, v%d" % (P + i, S + 2 * i, S + 2 * i + 1)
            N["A%d" % i] = "v_add_f32 v%d, v%d, v%d" % (S + 2 * i, S + 2 * i, S + 2 * i + 1)
        N["B0"] = "v_add_f32 v%d, v%d, v%d" % (S, S, S + 2); N["B1"] = "v_add_f32 v%d, v%d, v%d" % (S + 4, S + 4, S + 6)
        N["SUM"] = "v_add_f32 v%d, v%d, v%d" % (vS, S, S + 4); N["CMP"] = "v_cmp_lt_f32 vcc, s%d, v%d" % (sTHR, vS)
        N["L"] = "v_add_f32 v%d, v%d, v%d" % (L_(jp), L_(jp), vS)
        lds = {g: [] for g in range(16)}
        if "nolds" not in OPT:
            if vlo is not None:
                rs = [x for db in range(4) for x in v_reads(db, vlo)]
                for x, g in zip(rs, TAB["vlo"]): lds[g].append(x)
            if vhi is not None:
                rs = [x for db in range(4, 8) for x in v_reads(db, vhi)]
                for x, g in zip(rs, TAB["vhi"]): lds[g].append(x)
            if kload is not None:
                for (kb, s_), g in zip(KORD[:6], TAB["k"]): lds[g].append(k_read(kb, s_, kload))
            if klate is not None:
                for (kb, s_), g in zip(KORD[6:], TAB["klate"]): lds[g].append(k_read(kb, s_, klate))
        out = list(pre)
        ex = list(extra)
        for g in range(16):
            out.append(mf[g])
            if g == 15 and endbr: out += (["s_cmp_lg_u64 vcc, 0"] if "sccbr" in OPT else []) + endbr
            out += lds[g]
            if "nosm" not in OPT: out += [N[n] for n in TAB["valu"].get(g, [])]
            if g == TAB.get("scc_at", 15) and "sccbr" in OPT and "brend" not in OPT: out.append("s_cmp_lg_u64 vcc, 0")
            if g in TAB.get("extra_at", ()) and ex:
                x = ex.pop(0); out += (x if isinstance(x, list) else [x])
        for x in ex: out += (x if isinstance(x, list) else [x])
        return out

    def block(st, j, prev, qk=True, kload=None, vlo=None, vhi=None, barrier=False, extra=(), pre_extra=(), klate=None):
        if TAB is not None and qk: return block_tab(st, j, prev, qk, kload, vlo, vhi, barrier, extra, pre_extra, klate)
        if "brend" in OPT: prev = None
        if "sccbr" in OPT and prev is not None: pre_extra = list(pre_extra)
        par = (3 * st + j) & 1
        jn, jp = (j + 1) % 3, (j - 1) % 3
        S, P = S_(par), P_(par)
        pre = []
        if barrier: pre.append("s_barrier")
        if prev is not None: pre += rare_code(*prev)
        pre += list(pre_extra)
        mf = (qk_mfmas(jn, par ^ 1) if qk else []) + pv_mfmas(jp, par ^ 1)
        nq = 8 if qk else 0
        if not qk: pre.append("s_nop 1")
        it = []
        Ladd = Item("v_add_f32 v%d, v%d, v%d" % (L_(jp), L_(jp), vS), lo=0, hi=6, pri=5)
        E = [Item("v_exp_f32 v%d, v%d" % (S + i, S + i), lo=0, pri=3) for i in range(8)]
        for i in range(1, 8): pass
        A01 = Item("v_add_f32 v%d, v%d, v%d" % (vT, S, S + 1), deps=[E[0], E[1]])
        A23 = Item("v_add_f32 v%d, v%d, v%d" % (vT2, S + 2, S + 3), deps=[E[2], E[3]])
        B_ = Item("v_add_f32 v%d, v%d, v%d" % (vT, vT, vT2), deps=[A01, A23])
        A45 = Item("v_add_f32 v%d, v%d, v%d" % (vT2, S + 4, S + 5), deps=[E[4], E[5], B_])
        C_ = Item("v_add_f32 v%d, v%d, v%d" % (vT, vT, vT2), deps=[A45])
        A67 = Item("v_add_f32 v%d, v%d, v%d" % (vT2, S + 6, S + 7), deps=[E[6], E[7], C_])
        D_ = Item("v_add_f32 v%d, v%d, v%d" % (vS, vT, vT2), deps=[A67, Ladd])
        CMP = Item("v_cmp_lt_f32 vcc, s%d, v%d" % (sTHR, vS), deps=[D_], hi=len(mf) - CMP_SLACK)
        CV = [Item("v_cvt_pk_bf16_f32 v%d, v%d, v%d" % (P + i, S + 2 * i, S + 2 * i + 1), deps=[E[2 * i], E[2 * i + 1]], hi=len(mf) - 2) for i in range(4)]
        if "nosm" in OPT: it = []
        else: it = [Ladd] + E + [A01, A23, B_, A45, C_, A67, D_, CMP] + CV
        if "nolds" not in OPT:
            if vlo is not None:
                for db in range(4): it.append(Item(v_reads(db, vlo), lo=nq + db, pri=4))
            if vhi is not None:
                for db in range(4, 8): it.append(Item(v_reads(db, vhi), lo=0, hi=nq + db - 7, pri=6))
            if kload is not None:
                for i, (kb, s) in enumerate(KORD[:6]): it.append(Item(k_read(kb, s, kload), lo=max(i, 5), hi=min(15, 9 + i), pri=4))
            if klate is not None:
                for i, (kb, s) in list(enumerate(KORD))[6:]: it.append(Item(k_read(kb, s, klate), lo=0, hi=0, pri=7))
        for x in extra: it.append(Item(x, lo=8))
        return schedule(mf, it, pre)

    def tile(last, first_of_all=False):
        L = []
        L += block(0, 0, (1, 2, True), vlo=0)
        L += block(0, 1, (0, 0, False), vhi=0, kload=1)
        L += block(0, 2, (0, 1, False), klate=1)
        L += block(1, 0, (0, 2, False), vlo=1)
        adv = ["s_add_u32 s%d, s%d, 1" % (sSLOT, sSLOT), "s_and_b32 s%d, s%d, 3" % (sSLOT, sSLOT), "s_cmp_eq_u32 s%d, 0" % sSLOT,
               "s_cselect_b32 s%d, s%d, %d" % (sDK, sNEG, PAIR), "v_add_u32 v%d, s%d, v%d" % (vKA, sDK, vKA)]
        L += block(1, 1, (1, 0, False), vhi=1, kload=(None if last else 0), barrier=True, pre_extra=adv)
        L += block(1, 2, (1, 1, True), qk=not last, klate=(None if last else 0),
                   extra=[["v_add_u32 v%d, s%d, v%d" % (vVA + cc, sDK, vVA + cc)] for cc in range(4)])
        return L
    steady = tile(False)
    del rare[:]
    steady2 = tile(False)
    nr = len(rare)
    lastt = tile(True)
    if "peel" not in OPT: del rare[nr:]
    if TAB is not None:
        body = hoist_waits(auto_lgkm(steady2, entry_lines=steady, age=TAB.get("age")))
        lastb = hoist_waits(auto_lgkm(lastt, entry_lines=steady, age=TAB.get("age")))
    else:
        body = auto_lgkm(steady2, entry_lines=steady)
        lastb = auto_lgkm(lastt, entry_lines=steady)
    if "w0" in OPT:
        import re
        body = [re.sub(r"lgkmcnt\(\d+\)", "lgkmcnt(0)", x) if x.startswith("s_waitcnt lgkmcnt") else x for x in body]
    print("   attention steady tile: model %d cycles (%d/unit), %d instrs" % (model_cycles(body), model_cycles(body) / 6, len(body)))
    loop = a.label("Ltile")
    _stamp(a, 6, "s_memtime")
    a("s_mov_b32 s%d, 0" % sCNT)
    if RAMP:
        import re as _re
        nr2 = len(rare)
        tab_save = globals()["TAB"]; globals()["TAB"] = None
        assert "brend" not in OPT
        ramp_raw = tile(False)
        globals()["TAB"] = tab_save
        rb = auto_lgkm(ramp_raw, entry_lines=ramp_raw)
        cnt = [0]
        def _mod(x):
            if not x.startswith("s_waitcnt lgkmcnt"): return x
            cnt[0] += 1
            return "s_waitcnt lgkmcnt(0)" if cnt[0] % RAMP_EVERY == 0 else x
        rb = [_mod(x) for x in rb]
        lr = a.label("Lramp")
        a("%s:" % lr)
        for x in rb: a(x)
        a("s_add_u32 s%d, s%d, 1" % (sCNT, sCNT)); a("s_cmp_lt_u32 s%d, %d" % (sCNT, RAMP)); a("s_cbranch_scc1 %s" % lr)
        a("s_waitcnt lgkmcnt(0)")
    a("%s:" % loop)
    for x in body: a(x)
    a("s_add_u32 s%d, s%d, 1" % (sCNT, sCNT)); a("s_cmp_lt_u32 s%d, %d" % (sCNT, 15 if "peel" in OPT else 16)); a("s_cbranch_scc1 %s" % loop)
    _stamp(a, 7, "s_memtime")
    if "peel" in OPT:
        for x in lastb: a(x)
    else: a("s_waitcnt lgkmcnt(0)")
    for x in rare_code(1, 2, True): a(x)
    a("v_add_f32 v%d, v%d, v%d" % (L_(2), L_(2), vS))
    a("s_nop 1")
    for m in pv_mfmas(2, 1): a(m)
    a("s_nop 7")
    stamp(a, 2, 12)
    for j in range(3):
        L = L_(j)
        a("v_mov_b32 v%d, v%d" % (vT, L)); a("s_nop 1"); a("v_permlane32_swap_b32 v%d, v%d" % (L, vT)); a("v_add_f32 v%d, v%d, v%d" % (L, L, vT))
        a("v_mov_b32 v%d, v%d" % (vT, L)); a("s_nop 1"); a("v_permlane16_swap_b32 v%d, v%d" % (L, vT)); a("v_add_f32 v%d, v%d, v%d" % (L, L, vT))
        a("v_rcp_f32 v%d, v%d" % (L, L))
    a("s_nop 1")
    def OA(s, j): return 96 + (s * 3 + j) * 4
    def OB(s, j): return 144 + (s * 3 + j) * 4
    for j in range(3):
        a("v_mov_b32 v%d, v%d" % (vT2, L_(j))); a("v_mov_b32 v%d, v%d" % (vT, L_(j)))
        for s in range(4):
            X, Y, D = O_(j, 2 * s), O_(j, 2 * s + 1), OA(s, j)
            for r in range(0, 4, 2):
                a("v_pk_mul_f32 %s, %s, %s" % (vr(X + r, 2), vr(X + r, 2), vr(vT, 2))); a("v_pk_mul_f32 %s, %s, %s" % (vr(Y + r, 2), vr(Y + r, 2), vr(vT, 2)))
            a("v_cvt_pk_bf16_f32 v%d, v%d, v%d" % (D + 0, X + 0, X + 1)); a("v_cvt_pk_bf16_f32 v%d, v%d, v%d" % (D + 1, X + 2, X + 3))
            a("v_cvt_pk_bf16_f32 v%d, v%d, v%d" % (D + 2, Y + 0, Y + 1)); a("v_cvt_pk_bf16_f32 v%d, v%d, v%d" % (D + 3, Y + 2, Y + 3))
    vA0, vA1 = 240, 241
    a("v_lshlrev_b32 v%d, 4, v%d" % (vT, vLANE))
    a("s_mul_i32 s%d, s%d, 12288" % (sT0, sWAVE)); a("s_add_u32 s%d, s%d, %d" % (sT0, sT0, EXCH)); a("v_add_u32 v%d, s%d, v%d" % (vA0, sT0, vT))
    a("s_xor_b32 s%d, s%d, 2" % (sT2, sWAVE)); a("s_mul_i32 s%d, s%d, 12288" % (sT0, sT2)); a("s_add_u32 s%d, s%d, %d" % (sT0, sT0, EXCH)); a("v_add_u32 v%d, s%d, v%d" % (vA1, sT0, vT))
    a("s_barrier")
    for i in range(12): a("ds_write_b128 v%d, %s offset:%d" % (vA0, vr(96 + 4 * i, 4), i * 1024))
    vAO, vST = 224, 228
    g, rp, c, t = 242, 243, 244, 245
    a("v_lshrrev_b32 v%d, 4, v%d" % (g, vLANE)); a("v_bfe_u32 v%d, v%d, 2, 2" % (rp, vLANE)); a("v_and_b32 v%d, 3, v%d" % (c, vLANE))
    a("v_lshlrev_b32 v%d, 2, v%d" % (t, g)); a("v_add_u32 v%d, v%d, v%d" % (t, t, rp))
    a("v_lshrrev_b32 v%d, 1, v%d" % (g, t)); a("v_and_b32 v%d, 3, v%d" % (g, g)); a("v_lshlrev_b32 v%d, 5, v%d" % (g, g))
    a("v_lshlrev_b32 v%d, 7, v%d" % (t, t)); a("v_add_u32 v%d, v%d, v%d" % (t, t, g)); a("v_lshlrev_b32 v%d, 3, v%d" % (c, c)); a("v_add_u32 v%d, v%d, v%d" % (t, t, c))
    a("s_lshl_b32 s%d, s%d, 6" % (sT0, sQI)); a("v_xor_b32 v%d, s%d, v%d" % (t, sT0, t))
    a("s_lshl_b32 s%d, s%d, 14" % (sT0, sQI)); a("s_xor_b32 s%d, s%d, 16384" % (sT1, sT0))
    a("v_add_u32 v%d, s%d, v%d" % (vAO + 0, sT0, t)); a("v_xor_b32 v%d, 32, v%d" % (vAO + 1, vAO + 0))
    a("v_add_u32 v%d, s%d, v%d" % (vAO + 2, sT1, t)); a("v_xor_b32 v%d, 32, v%d" % (vAO + 3, vAO + 2))
    a("s_mul_i32 s%d, s%d, 6144" % (sT0, sQI)); a("s_mul_i32 s%d, s%d, 3072" % (sT1, sRH)); a("s_add_u32 s%d, s%d, s%d" % (sT0, sT0, sT1))
    a("v_add_u32 v%d, s%d, v%d" % (vST, sT0, vT))
    a("s_waitcnt lgkmcnt(0)")
    a("s_barrier")
    for i in range(12): a("ds_read_b128 %s, v%d offset:%d" % (vr(144 + 4 * i, 4), vA1, i * 1024))
    stamp(a, 3, 13)
    assert PAIR % 256 == 0
    def AF(i): return 192 + 4 * (i % 8)
    def ACC(buf, z, j): return buf * 24 + (z * 3 + j) * 4
    def PK(buf, j): return 48 + buf * 12 + 4 * j
    def a_reads(G):
        c_, kk = divmod(G, 8)
        hs, s = (0, kk) if kk < 4 else (1, kk - 4)
        r = []
        for z in range(2):
            fr = AF(2 * G + z)
            r.append("ds_read_b64_tr_b16 %s, v%d offset:%d" % (vr(fr, 2), vAO + 2 * hs + z, s * 4096))
            r.append("ds_read_b64_tr_b16 %s, v%d offset:%d" % (vr(fr + 2, 2), vAO + 2 * hs + z, s * 4096 + 2048))
        return r
    LOOK = 3
    def slot_delta(c_from): return (-3 * PAIR if (16 + c_from + 1) % 4 == 0 else PAIR) & 0xffffffff
    for G in range(LOOK):
        for x in a_reads(G): a(x)
    vPW, vPWR = 229, 231
    a("v_lshlrev_b32 v%d, 4, v%d" % (vT, vLANE))
    a("s_mul_i32 s%d, s%d, 3072" % (sT0, sWAVE)); a("s_add_u32 s%d, s%d, %d" % (sT0, sT0, PB0)); a("v_add_u32 v%d, s%d, v%d" % (vPW, sT0, vT))
    a("s_mul_i32 s%d, s%d, %d" % (sT0, sWAVE, PAIR)); a("s_add_u32 s%d, s%d, 32768" % (sT0, sT0)); a("v_add_u32 v%d, s%d, v%d" % (vPWR, sT0, vT))
    a("v_add_u32 v%d, %d, v%d" % (vPW + 1, 156672, vT))
    sD, sDP, sSL = sDK, sNEG + 0, sSLOT
    sD, sDP = 56, 69
    a("s_mov_b32 s%d, 0" % sSLOT); a("s_mov_b32 s%d, 0" % sDP); a("s_mov_b32 s%d, 0x%x" % (sNEG, -3 * PAIR & 0xffffffff))
    def epilogue(buf):
        epi = []
        for j in range(3):
            d = PK(buf, j)
            for z in range(2):
                A_ = ACC(buf, z, j)
                epi.append("v_cvt_pk_bf16_f32 v%d, v%d, v%d" % (d + 2 * z, A_, A_ + 1)); epi.append("v_cvt_pk_bf16_f32 v%d, v%d, v%d" % (d + 2 * z + 1, A_ + 2, A_ + 3))
            epi.append("ds_write_b128 v%d, %s offset:%d" % (vPW + buf, vr(d, 4), j * 1024))
        return epi
    def o_step(buf, last):
        epi = epilogue(buf ^ 1)
        cvts = [x for x in epi if x.startswith("v_cvt")]; wrs = [x for x in epi if x.startswith("ds_write")]
        extra = {kk: {g: [] for g in range(6)} for kk in range(8)}
        if "ostep_old" in OPT:
            seq = epi; pos = [(1, 1), (1, 1), (1, 2), (1, 2), (1, 3), (1, 4), (1, 4), (1, 5), (2, 1), (2, 1), (2, 2), (2, 3), (2, 3), (2, 4), (2, 5)]
            for x, (kk, g) in zip(seq, pos): extra[kk][g].append(x)
        else:
            cpos = [(1, 0), (1, 1), (1, 2), (1, 3), (1, 4), (2, 0), (2, 1), (2, 2), (2, 3), (3, 0), (3, 1), (3, 2)]
            for x, (kk, g) in zip(cvts, cpos): extra[kk][g].append(x)
            for x, (kk, g) in zip(wrs, [(1, 5), (2, 5), (3, 4)]): extra[kk][g].append(x)
        for kk in range(8):
            G = kk
            hs, s = (0, kk) if kk < 4 else (1, kk - 4)
            rd = []; barrier = (kk == 5)
            if kk == 4 and not last:
                extra[4][4] += ["s_add_u32 s%d, s%d, 1" % (sSLOT, sSLOT), "s_and_b32 s%d, s%d, 3" % (sSLOT, sSLOT)]
                extra[4][5] += ["s_cmp_eq_u32 s%d, 0" % sSLOT, "s_cselect_b32 s%d, s%d, %d" % (sD, sNEG, PAIR)]
            pre = []
            if kk == 5 and not last:
                pre += ["v_add_u32 v%d, s%d, v%d" % (vAO + 0, sD, vAO + 0), "v_add_u32 v%d, s%d, v%d" % (vAO + 1, sD, vAO + 1)]
                extra[6][4].append("s_mov_b32 s%d, s%d" % (sDP, sD))
            if kk == 0:
                extra[0][4].append("v_add_u32 v%d, s%d, v%d" % (vAO + 2, sDP, vAO + 2)); extra[0][5].append("v_add_u32 v%d, s%d, v%d" % (vAO + 3, sDP, vAO + 3))
            if kk == 4 and buf == 0: extra[4][3].append("v_mov_b32 v%d, v%d" % (vPW + 1, vPWR))
            if not (last and kk + LOOK >= 8): rd = a_reads(G + LOOK)
            younger = 4 * (LOOK - 1) if not last else 4 * min(LOOK - 1, 7 - kk)
            if barrier: younger = min(younger, 4)
            a("s_waitcnt lgkmcnt(%d)" % younger)
            if barrier: a("s_barrier")
            for x in pre: a(x)
            mf = []
            for z in range(2):
                for j in range(3):
                    bsrc = OA(s, j) if hs == 0 else OB(s, j)
                    cc = "0" if kk == 0 else vr(ACC(buf, z, j), 4)
                    mf.append("%s %s, %s, %s, %s" % (MF, vr(ACC(buf, z, j), 4), vr(AF(2 * G + z), 4), vr(bsrc, 4), cc))
            fill = spread(rd, [0, 1, 2, 3]) if rd else {}
            fill = merge(fill, extra[kk])
            for x in interleave(mf, fill): a(x)
    lo = a.label("Lo")
    a("s_mov_b32 s%d, 0" % sCNT); a("%s:" % lo)
    o_step(0, False); o_step(1, False)
    a("s_add_u32 s%d, s%d, 1" % (sCNT, sCNT)); a("s_cmp_lt_u32 s%d, 4" % sCNT); a("s_cbranch_scc1 %s" % lo)
    o_step(0, True)
    a("s_nop 7")
    for x in epilogue(0): a(x)
    a("s_waitcnt lgkmcnt(0)")
    a("s_barrier")
    stamp(a, 4, 14)
    stamp(a, 5)
    stamp_flush(a)
    a("v_mov_b32 v1, v%d" % vLANE)
    a("s_mov_b32 s%d, s%d" % (sCNT, sWAVE))
    a("s_branch L_reduce")
    for r in rare: a(r)

def mk_srd(a, b, lo, hi, off, size):
    a("s_add_u32 s%d, s%d, s%d" % (b, lo, off)); a("s_addc_u32 s%d, s%d, 0" % (b + 1, hi)); a("s_mov_b32 s%d, %d" % (b + 2, size)); a("s_mov_b32 s%d, 0x20000" % (b + 3))

def late_srds(a, role):
    a("s_lshl_b32 s%d, s%d, 4" % (sT0, sB)); a("s_add_u32 s%d, s%d, s%d" % (sT0, sT0, sH))
    if role == "kv":
        a("s_lshl_b32 s%d, s%d, 18" % (sT1, sT0)); mk_srd(a, sK, 6, 7, sT1, 262144); mk_srd(a, sV, 8, 9, sT1, 262144)
        a("s_mul_i32 s%d, s%d, %d" % (sT1, sT0, PART)); a("s_add_u32 s%d, s%d, %d" % (sT1, sT1, WS_PART)); mk_srd(a, sP, 18, 19, sT1, PART)
    if role == "w":
        a("s_mul_i32 s%d, s%d, 294912" % (sT1, sH)); mk_srd(a, sWO, 12, 13, sT1, 294912)
    a("s_mul_i32 s%d, s%d, 110592" % (sT1, sB)); mk_srd(a, sOUT, 14, 15, sT1, 110592)
    a("s_mul_i32 s%d, s%d, %d" % (sT1, sB, 16 * PART)); a("s_add_u32 s%d, s%d, %d" % (sT1, sT1, WS_PART)); mk_srd(a, sPB, 18, 19, sT1, 16 * PART)
    a("s_mul_i32 s%d, s%d, %d" % (sT1, sB, 9 * 128)); a("s_add_u32 s%d, s%d, %d" % (sT1, sT1, WS_FLAG)); mk_srd(a, sFL, 18, 19, sT1, 9 * 128)
    if STAMP:
        a("s_lshl_b32 s%d, s2, 9" % sT1); a("s_add_u32 s%d, s18, s%d" % (sSTAMP, sT1)); a("s_addc_u32 s%d, s19, 0" % (sSTAMP + 1))

def early_srds(a):
    a("s_mul_i32 s%d, s%d, 110592" % (sT1, sB)); mk_srd(a, sX, 4, 5, sT1, 110592)
    a("s_lshl_b32 s%d, s%d, 9" % (sT1, sH)); mk_srd(a, sWQ, 10, 11, sT1, 0); a("s_sub_u32 s%d, 4718592, s%d" % (sWQ + 2, sT1))

def gen_k1():
    a = Asm(); a.stamp_wave = 0; a.stamp_tmp = 252
    if STAMP: a("s_memrealtime s[84:85]")
    a("s_cmp_ge_u32 s2, 256"); a("s_cbranch_scc1 L_k1_end")
    a("s_load_dwordx8 s[4:11], s[0:1], 0")
    a("s_load_dwordx4 s[12:15], s[0:1], 32")
    a("s_load_dwordx4 s[16:19], s[0:1], 48")
    a("v_lshrrev_b32 v1, 6, v0")
    a("s_and_b32 s%d, s2, 7" % sXCD); a("s_lshr_b32 s%d, s2, 3" % sIDX)
    a("v_readfirstlane_b32 s%d, v1" % sWAVE)
    a("s_and_b32 s%d, s%d, 1" % (sB, sXCD)); a("s_lshl_b32 s%d, s%d, 3" % (sB, sB)); a("s_and_b32 s%d, s%d, 7" % (sT2, sIDX)); a("s_add_u32 s%d, s%d, s%d" % (sB, sB, sT2))
    a("s_lshr_b32 s%d, s%d, 1" % (sH, sXCD)); a("s_lshl_b32 s%d, s%d, 2" % (sH, sH)); a("s_lshr_b32 s%d, s%d, 3" % (sT2, sIDX)); a("s_add_u32 s%d, s%d, s%d" % (sH, sH, sT2))
    a("v_and_b32 v1, 63, v0")
    a("s_sub_u32 s%d, s%d, 4" % (sLW, sWAVE))
    a("s_cmp_lt_u32 s%d, 2" % sLW); a("s_cbranch_scc0 L_notw")
    a.stamp_wave = 4; a.stamp_tmp = 40
    if STAMP: a("v_mov_b32 v40, 0")
    gen_wloader(a)
    a("L_notw:")
    a("s_cmp_ge_u32 s%d, 4" % sWAVE); a("s_cbranch_scc1 L_kvloader")
    a.stamp_wave = 0
    a("s_waitcnt lgkmcnt(0)")
    late_srds(a, "c")
    gen_compute(a)
    a("L_kvloader:")
    a.stamp_wave = 4
    if STAMP: a("v_mov_b32 v40, 0")
    a("s_waitcnt lgkmcnt(0)")
    late_srds(a, "kv")
    gen_kvloader(a)
    gen_reducer(a)
    a("L_k1_end:")
    a("s_endpgm")
    return a.text()

def build(fn, stamp=False, opt=()):
    global STAMP, OPT
    STAMP = stamp; OPT = set(opt)
    k1 = gen_k1()
    errs = hazard.check(k1, "k1")
    for e in errs[:10]: print(e)
    if errs: print("k1: %d hazard warnings" % len(errs))
    txt = HEADER + "; @launch grid=(256,1,1) block=(512,1,1) lds=%d\n" % LDS_BYTES
    txt += '.amdgcn_target "amdgcn-amd-amdhsa--gfx950"\n.text\n' + kernel_begin(KNAME) + k1 + '\n.section .rodata,"a"\n.p2align 6\n' + kernel_desc(KNAME, 256, 102, 256)
    open(fn, "w").write(txt)
    print(fn, len(txt), "bytes,", txt.count("\n"), "lines")

if __name__ == "__main__":
    def pieces(start, per):
        d = {}; st = start
        for kind in "KV":
            for lo in range(0, 8, per):
                d.setdefault(st, []).append((kind, 0, lo, lo + per)); st += 1
        return d
    def mk(start, per, i1at):
        d = pieces(start, per)
        d.setdefault(i1at, []).extend([("K", 1), ("V", 1)])
        d.setdefault(19, []).extend([("K", 2), ("V", 2)])
        return d
    PF0 = 0
    O = ["rotq", "nopfq", "notlb"]
    KSCHED = mk(12, 4, 18)
    TAB = None
    D = O + ["dot2", "split0"]
    C = D + ["cpf0"]
    RAMP = 2; build("v8.s", False, C); build("v8_st.s", True, C)
    build("v8k4.s", False, C + ["kv4"]); build("v8k4_st.s", True, C + ["kv4"])
    RAMP = 1; build("v8r1.s", False, C); build("v8r1_st.s", True, C)
    RAMP = 0; build("v8r0.s", False, C); build("v8r0_st.s", True, C); build("v8r0k4_st.s", True, C + ["kv4"])
```

```python
import sys, struct
from asmlib import *
import hazard
from sched import Item, schedule, auto_lgkm, model_cycles

def f32(x): return "0x%08x" % struct.unpack("<I", struct.pack("<f", x))[0]
C_SCALE = 1.4426950408889634 / (128 ** 0.5)

PAIR = 35840
KGRP, VGRP = 1088, 1152
VOFF = 16 * KGRP
WBASE = 2 * PAIR
XBASE = WBASE + 4 * 16384
XSLOT = 12288
EXCH = 3 * PAIR
LDS_BYTES = 163840
PART = 108 * 1024
WS_PART = 1 << 20
WS_FLAG = 1 << 19
KNAME = 'standalone__gqa_block_cached__near_ridge_kernel'
OPT = set()
STAMP = False

sK, sV, sX, sWQ, sWO, sP = 20, 24, 28, 32, 36, 40
sWAVE, sB, sH, sLW = 44, 45, 46, 47
sT0, sT1, sT2, sT3 = 48, 49, 50, 51
sLWK, sLW3072, sLWV, sLW4096 = 52, 53, 59, 66
sTHR, sCNT, sDK, sNEG, sSLOT = 54, 55, 56, 57, 58
sSTAMP = 60
sTM = 62
sQI, sRH = 64, 65
sXCD, sIDX = 67, 68
sPF = 72
sPF2 = 76
sFL = 8
sPB = 4
sOUT = 12
def srd(b): return "s[%d:%d]" % (b, b + 3)
def vr(b, n=1): return "v%d" % b if n == 1 else "v[%d:%d]" % (b, b + n - 1)

def _stamp(a, idx, instr):
    if not STAMP: return
    a("%s s[%d:%d]" % (instr, sTM, sTM + 1)); a("s_waitcnt lgkmcnt(0)")
    if a.stamp_wave == 0: a("s_mov_b32 s%d, s%d" % (80 + idx, sTM))
    else: a("v_writelane_b32 v40, s%d, %d" % (sTM, idx))
def stamp(a, idx, cyc=None):
    _stamp(a, idx, "s_memrealtime")
    if cyc is not None: _stamp(a, cyc, "s_memtime")
DBG_WG = 37
def stamp_flush(a):
    if not STAMP: return
    if "dbg" in OPT:
        sk = a.label("Ldbgs")
        a("s_cmp_lg_u32 s2, %d" % DBG_WG); a("s_cbranch_scc1 %s" % sk)
        a("s_cmp_lg_u32 s%d, %d" % (sWAVE, a.stamp_wave)); a("s_cbranch_scc1 %s" % sk)
        a("v_mov_b32 v1, 0")
        if a.stamp_wave == 0:
            for dw, (j, j0) in zip((1, 2, 3, 5, 6, 7, 9, 10, 11), ((1, 0), (2, 0), (3, 0), (4, 0), (11, 10), (12, 11), (13, 12), (14, 13), (7, 6))):
                a("s_sub_u32 s%d, s%d, s%d" % (sT0, 80 + j, 80 + j0)); a("v_mov_b32 v2, s%d" % sT0); a("global_store_dword v1, v2, s[16:17] offset:%d" % (4 * dw))
        else:
            a("v_readlane_b32 s%d, v40, 15" % sT0); a("v_readlane_b32 s%d, v40, 16" % sT1); a("s_nop 3"); a("s_sub_u32 s%d, s%d, s%d" % (sT0, sT0, sT1)); a("v_mov_b32 v2, s%d" % sT0)
            a("global_store_dword v1, v2, s[16:17] offset:52")
            a("v_readlane_b32 s%d, v40, 36" % sT0); a("s_nop 3"); a("s_sub_u32 s%d, s%d, s%d" % (sT0, sT0, sT1)); a("v_mov_b32 v2, s%d" % sT0)
            a("global_store_dword v1, v2, s[16:17] offset:56")
        a("%s:" % sk)
        return
    sk = a.label("Lst")
    a("s_cmp_lg_u32 s%d, %d" % (sWAVE, a.stamp_wave)); a("s_cbranch_scc1 %s" % sk)
    if a.stamp_wave == 0:
        a("v_mov_b32 v1, 0")
        for i in range(16):
            if i in (8, 9, 15): continue
            a("v_mov_b32 v2, s%d" % (80 + i)); a("global_store_dword v1, v2, s[%d:%d] offset:%d" % (sSTAMP, sSTAMP + 1, 4 * i))
    else:
        a("v_and_b32 v2, 63, v0"); a("v_lshlrev_b32 v3, 2, v2")
        a("v_cmp_lt_u32 vcc, 14, v2"); a("v_cmp_eq_u32 s[96:97], 8, v2"); a("s_or_b64 vcc, vcc, s[96:97]"); a("v_cmp_eq_u32 s[96:97], 9, v2"); a("s_or_b64 vcc, vcc, s[96:97]")
        a("s_and_saveexec_b64 s[96:97], vcc")
        a("global_store_dword v3, v40, s[%d:%d]" % (sSTAMP, sSTAMP + 1))
        a("s_mov_b64 exec, s[96:97]")
    a("%s:" % sk)

def common_prologue(a, endlab, nwg):
    if STAMP: a("s_memrealtime s[84:85]")
    a("s_cmp_ge_u32 s2, %d" % nwg); a("s_cbranch_scc1 %s" % endlab)
    a("s_load_dwordx8 s[4:11], s[0:1], 0")
    a("s_load_dwordx4 s[12:15], s[0:1], 32")
    a("s_load_dwordx4 s[16:19], s[0:1], 48")
    a("v_lshrrev_b32 v1, 6, v0")
    a("s_nop 0")
    a("v_readfirstlane_b32 s%d, v1" % sWAVE)
    a("s_waitcnt lgkmcnt(0)")

class VQ:
    def __init__(s): s.q = []
    def issue(s, tag, n=1): s.q += [tag] * n
    def wait(s, tags):
        idx = [i for i, t in enumerate(s.q) if t in tags]
        if not idx: return None
        last = max(idx); n = len(s.q) - 1 - last
        s.q = s.q[last + 1:]
        return min(n, 63)

KV_FLAGS = " nt"
W_FLAGS = ""
O_FLAGS = ""
P_FLAGS = " sc0 sc1"


def gen_loader(a):
    a("s_sub_u32 s%d, s%d, 4" % (sLW, sWAVE))
    a("v_and_b32 v1, 63, v0")
    if STAMP: a("v_mov_b32 v40, 0")
    a("s_cmp_ge_u32 s%d, 2" % sLW); a("s_cbranch_scc1 L_kvloader")
    gen_wloader(a)
    a("L_kvloader:")
    gen_kvloader(a)

def mk_bar(a, q, trace_base=None):
    def bar(tags):
        n = q.wait(tags) if tags else None
        if n is not None and "nowait" not in OPT: a("s_waitcnt vmcnt(%d)" % n)
        if "trace" in OPT and bar.n < 48 and trace_base is not None: stamp(a, 16 + bar.n)
        a("s_barrier")
        bar.n += 1
    bar.n = 0
    return bar

def dma(a, vreg, srdb, soff, imm, flags):
    if "noload" in OPT: return
    a("buffer_load_dwordx4 v%d, %s, s%d offen offset:%d%s lds" % (vreg, srd(srdb), soff, imm, flags))

def emit_pf(a, chunks, lane=1):
    if not chunks: return
    sk = a.label("Lpfq"); skx = a.label("Lpfx")
    a("s_cmp_ge_u32 s%d, 28" % sIDX); a("s_cbranch_scc1 %s" % sk)
    a("s_cmp_ge_u32 s%d, 16" % sIDX); a("s_cbranch_scc1 %s" % skx)
    a("v_lshrrev_b32 v30, 4, v%d" % lane); a("v_and_b32 v31, 15, v%d" % lane)
    a("s_lshl_b32 s%d, s%d, 2" % (sT0, sIDX)); a("v_add_u32 v30, s%d, v30" % sT0); a("v_lshlrev_b32 v30, 13, v30"); a("v_lshlrev_b32 v31, 7, v31"); a("v_add_u32 v30, v30, v31")
    for cp in chunks:
        if isinstance(cp, int): a("s_mov_b32 s%d, %d" % (sT0, cp * 64 * 8192))
        else: a("s_lshl_b32 s%d, s%d, 19" % (sT0, cp[0])); a("s_add_u32 s%d, s%d, %d" % (sT0, sT0, cp[1] * 64 * 8192))
        a("buffer_load_dword v32, v30, %s, s%d offen" % (srd(sPF), sT0))
    a("s_branch %s" % sk)
    a("%s:" % skx)
    a("s_sub_u32 s%d, s%d, 16" % (sT0, sIDX)); a("s_lshl_b32 s%d, s%d, 6" % (sT0, sT0)); a("v_add_u32 v30, s%d, v%d" % (sT0, lane)); a("v_mul_u32_u24 v30, 1152, v30")
    for cp in chunks:
        if isinstance(cp, int): a("s_mov_b32 s%d, %d" % (sT0, cp * 128))
        else: a("s_lshl_b32 s%d, s%d, 7" % (sT0, cp[0])); a("s_add_u32 s%d, s%d, %d" % (sT0, sT0, cp[1] * 128))
        a("buffer_load_dword v32, v30, %s, s%d offen" % (srd(sPF2), sT0))
    a("%s:" % sk)

def code_prefetch(a, lane=1):
    if "nocpf" in OPT: return
    lab = a.label("Lcpf")
    a("s_getpc_b64 s[94:95]")
    a("%s:" % lab)
    a("s_sub_u32 s94, s94, (%s - %s)" % (lab, KNAME)); a("s_subb_u32 s95, s95, 0")
    a("s_lshl_b32 s%d, s%d, 11" % (sT0, sIDX))
    a("v_and_b32 v34, 15, v%d" % lane); a("v_lshlrev_b32 v34, 7, v34"); a("v_add_u32 v34, s%d, v34" % sT0)
    a("v_min_u32 v34, (L_k1_end - %s), v34" % KNAME)
    a("global_load_dword v35, v34, s[94:95]")

def attn_kv4(a, is_w, iss_O=None, cpf=None):
    vK4, vV4 = 18, 19
    sL4, sMK, sMV, sTK, sKS = 86, 88, 89, 87, 90
    a("s_sub_u32 s%d, s%d, 4" % (sL4, sWAVE))
    a("v_lshrrev_b32 v2, 4, v1"); a("v_and_b32 v3, 15, v1")
    a("s_lshl_b32 s%d, s%d, 12" % (sT0, sL4)); a("v_lshlrev_b32 v4, 8, v2"); a("v_add_u32 v4, s%d, v4" % sT0)
    a("v_xor_b32 v5, v2, v3"); a("v_lshlrev_b32 v5, 4, v5"); a("v_add_u32 v%d, v4, v5" % vK4)
    a("v_lshlrev_b32 v5, 1, v2"); a("v_xor_b32 v5, v5, v3"); a("v_lshlrev_b32 v5, 4, v5"); a("v_add_u32 v%d, v4, v5" % vV4)
    a("s_mul_i32 s%d, s%d, %d" % (sMK, sL4, 4 * KGRP)); a("s_mul_i32 s%d, s%d, %d" % (sMV, sL4, 4 * VGRP)); a("s_add_u32 s%d, s%d, %d" % (sMV, sMV, VOFF))
    a("s_mov_b32 s%d, %d" % (sTK, 3 * 16384)); a("s_mov_b32 s%d, %d" % (sKS, 3 * PAIR))
    def w(n):
        if "nowait" not in OPT: a("s_waitcnt vmcnt(%d)" % n)
    def item():
        a("s_add_u32 s%d, s%d, s%d" % (sT1, sMK, sKS)); a("s_add_u32 s%d, s%d, s%d" % (sT2, sMV, sKS))
        for isK in (True, False):
            grp = KGRP if isK else VGRP
            for ii in range(4):
                a("s_add_u32 m0, s%d, %d" % (sT1 if isK else sT2, ii * (grp - 1024))); a("s_nop 0")
                dma(a, vK4 if isK else vV4, sK if isK else sV, sTK, ii * 1024, KV_FLAGS)
        a("s_add_u32 s%d, s%d, 16384" % (sTK, sTK))
        a("s_add_u32 s%d, s%d, %d" % (sKS, sKS, PAIR)); a("s_cmp_eq_u32 s%d, %d" % (sKS, 4 * PAIR)); a("s_cselect_b32 s%d, 0, s%d" % (sKS, sKS))
    if not is_w: w(16)
    a("s_barrier")
    item()
    lab = a.label("Lkv4"); a("s_mov_b32 s%d, 2" % sCNT); a("%s:" % lab)
    w(8)
    a("s_barrier")
    item()
    if is_w:
        sk = a.label("Lc4"); a("s_cmp_lg_u32 s%d, %d" % (sCNT, CPF_AT)); a("s_cbranch_scc1 %s" % sk); cpf(); a("%s:" % sk)
    a("s_add_u32 s%d, s%d, 1" % (sCNT, sCNT)); a("s_cmp_lt_u32 s%d, 14" % sCNT); a("s_cbranch_scc1 %s" % lab)
    w(8); a("s_barrier")
    if is_w: iss_O()
    w(16 if is_w else 0); a("s_barrier")
    if is_w: iss_O()
    if is_w: w(16)
    a("s_barrier")
    if is_w: iss_O()

def gen_wloader(a):
    vW, vX, vO = 10, 14, 16
    a.stamp_wave = 4
    sA, sBb = sLWK, sLWV
    a("v_lshrrev_b32 v6, 5, v1"); a("v_and_b32 v7, 31, v1")
    a("s_lshl_b32 s%d, s%d, 17" % (sT1, sLW))
    a("v_lshlrev_b32 v8, 13, v6"); a("v_add_u32 v8, s%d, v8" % sT1)
    for var in range(4):
        a("v_add_u32 v5, %d, v6" % (2 * (var & 1) + 4 * (var >> 1))); a("v_lshlrev_b32 v5, 1, v5"); a("v_xor_b32 v5, v5, v7")
        a("v_lshlrev_b32 v5, 4, v5"); a("v_add_u32 v%d, v8, v5" % (vW + var))
    a("v_lshrrev_b32 v6, 3, v1"); a("v_and_b32 v7, 7, v1")
    a("s_mul_i32 s%d, s%d, 48" % (sT1, sLW)); a("v_add_u32 v8, s%d, v6" % sT1); a("v_mul_u32_u24 v8, 1152, v8")
    a("v_lshrrev_b32 v9, 1, v6")
    for i in range(2):
        a("v_add_u32 v5, %d, v9" % (4 * i)); a("v_xor_b32 v5, v5, v7"); a("v_lshlrev_b32 v5, 4, v5"); a("v_add_u32 v%d, v8, v5" % (vX + i))
    a("v_mul_u32_u24 v8, 1152, v6")
    a("v_and_b32 v5, 3, v9"); a("v_lshlrev_b32 v5, 1, v5"); a("v_xor_b32 v5, v5, v7"); a("v_lshlrev_b32 v5, 4, v5"); a("v_add_u32 v%d, v8, v5" % vO)
    a("s_lshl_b32 s%d, s%d, 13" % (sA, sLW))
    a("s_mul_i32 s%d, s%d, 6144" % (sBb, sLW))
    a("s_lshl_b32 s%d, s%d, 14" % (sLW4096, sLW))
    a("s_mul_i32 s%d, s%d, %d" % (sLW3072, sLW, 128 * 1152))
    sWK, sXK, sOK = 98, 99, 100
    sWS, sXS, sOS = 93, 92, 91
    A_, SI, B_, SJ = ROTQ
    a("s_and_b32 s%d, s%d, 7" % (sT0, sIDX)); a("s_lshr_b32 s%d, s%d, %d" % (sT0, sT0, SI)); a("s_mul_i32 s%d, s%d, %d" % (sT0, sT0, A_))
    a("s_lshr_b32 s%d, s%d, %d" % (sT1, sIDX, 3 + SJ)); a("s_mul_i32 s%d, s%d, %d" % (sT1, sT1, B_)); a("s_add_u32 s%d, s%d, s%d" % (sT0, sT0, sT1))
    for _ in range(2): a("s_cmp_ge_u32 s%d, 9" % sT0); a("s_cselect_b32 s%d, 9, 0" % sT1); a("s_sub_u32 s%d, s%d, s%d" % (sT0, sT0, sT1))
    a("s_lshl_b32 s%d, s%d, 19" % (sWK, sT0)); a("s_lshl_b32 s%d, s%d, 7" % (sXK, sT0))
    a("s_and_b32 s%d, s%d, 7" % (sT0, sB)); a("s_lshl_b32 s%d, s%d, 7" % (sOK, sT0))
    a("s_mov_b32 s%d, %d" % (sWS, 2 * 16384)); a("s_mov_b32 s%d, 0" % sXS); a("s_mov_b32 s%d, 0" % sOS)
    a("s_add_u32 s%d, s%d, %d" % (sA, sA, WBASE)); a("s_add_u32 s%d, s%d, %d" % (sBb, sBb, XBASE))
    def adv(reg, step, wrap):
        a("s_add_u32 s%d, s%d, %d" % (reg, reg, step)); a("s_cmp_eq_u32 s%d, %d" % (reg, wrap)); a("s_cselect_b32 s%d, 0, s%d" % (reg, reg))
    def iss_W():
        a("s_add_u32 m0, s%d, s%d" % (sA, sWS))
        for ii in range(8):
            if ii == 4: a("s_add_u32 m0, m0, 4096")
            a("s_add_u32 s%d, s%d, %d" % (sT0, sWK, 16384 * ii - (ii & 3) * 1024))
            dma(a, vW + (ii & 1) + 2 * (ii >> 2), sWQ, sT0, (ii & 3) * 1024, W_FLAGS)
        adv(sWK, 262144, 18 * 262144); adv(sWS, 16384, 65536)
    def iss_X():
        a("s_add_u32 m0, s%d, s%d" % (sBb, sXS))
        for ii in range(6):
            if ii == 4: a("s_add_u32 m0, m0, 4096")
            a("s_add_u32 s%d, s%d, %d" % (sT0, sXK, 9216 * ii - (ii & 3) * 1024))
            dma(a, vX + (ii & 1), sX, sT0, (ii & 3) * 1024, W_FLAGS)
        adv(sXK, 128, 9 * 128); a("s_xor_b32 s%d, s%d, %d" % (sXS, sXS, XSLOT))
    def iss_O():
        a("s_add_u32 s%d, s%d, s%d" % (sT1, sLW3072, sOK))
        a("s_add_u32 m0, s%d, s%d" % (sLW4096, sOS))
        for ii in range(16):
            if ii % 4 == 0 and ii: a("s_add_u32 m0, m0, 4096")
            a("s_add_u32 s%d, s%d, %d" % (sT0, sT1, 9216 * ii - (ii & 3) * 1024))
            dma(a, vO, sWO, sT0, (ii & 3) * 1024, O_FLAGS)
        adv(sOK, 128, 9 * 128); adv(sOS, PAIR, 4 * PAIR)
    tr = [16]
    def bar(w=None):
        if w is not None and "nowait" not in OPT: a("s_waitcnt vmcnt(%d)" % w)
        a("s_barrier")
    def loop(n, body, name):
        lab = a.label(name)
        a("s_mov_b32 s%d, 0" % sCNT); a("%s:" % lab)
        body()
        a("s_add_u32 s%d, s%d, 1" % (sCNT, sCNT)); a("s_cmp_lt_u32 s%d, %d" % (sCNT, n)); a("s_cbranch_scc1 %s" % lab)
    a("s_waitcnt lgkmcnt(0)")
    early_srds(a)
    if STAMP: a("v_writelane_b32 v40, s84, 16"); stamp(a, 17)
    if "look2" not in OPT:
        if "split0" in OPT:
            li = a.label("Lwi"); sk0 = a.label("Lwi0")
            a("s_mov_b32 s%d, 0" % sCNT); a("%s:" % li)
            iss_X(); iss_W(); iss_W()
            a("s_cmp_lg_u32 s%d, 0" % sCNT); a("s_cbranch_scc1 %s" % sk0)
            late_srds(a, "w")
            if STAMP: stamp(a, 18)
            if "nowait" not in OPT: a("s_waitcnt vmcnt(8)")
            if STAMP: stamp(a, 19)
            bar(None)
            a("s_mov_b32 s%d, 1" % sCNT); a("s_branch %s" % li)
            a("%s:" % sk0)
        else:
            loop(2, lambda: (iss_X(), iss_W(), iss_W()), "Lwi")
            bar(30)
        bar(22)
        iss_W()
        def qbody():
            bar(16)
            iss_X(); iss_W()
            bar(22)
            sk = a.label("Lwl"); a("s_cmp_eq_u32 s%d, 6" % sCNT); a("s_cbranch_scc1 %s" % sk)
            iss_W()
            a("%s:" % sk)
        loop(7, qbody, "Lwq")
        bar(8)
        bar(0)
    else:
        if STAMP: stamp(a, 17)
        iss_X(); iss_W(); iss_W()
        if STAMP: stamp(a, 18)
        def qbody():
            bar(8)
            iss_X(); iss_W()
            bar(14)
            iss_W()
        loop(8, qbody, "Lwq")
        bar(8)
        bar(0)
    bar(None); bar(None)
    stamp(a, 8)
    def cpf():
        sk = a.label("Lcp"); a("s_cmp_lg_u32 s%d, 1" % sLW); a("s_cbranch_scc1 %s" % sk); code_prefetch(a); a("%s:" % sk)
    if "kv4" in OPT: attn_kv4(a, True, iss_O, cpf)
    else:
        loop(CPF_AT, lambda: bar(None), "Lwa")
        cpf()
        loop(13 - CPF_AT, lambda: bar(None), "Lwb")
        loop(2, lambda: (bar(None), iss_O()), "Lwo")
        bar(16)
        iss_O()
    a("s_barrier"); a("s_barrier")
    loop(6, lambda: (bar(16), iss_O()), "Lwp")
    bar(0)
    a("s_barrier"); a("s_barrier"); a("s_barrier")
    stamp(a, 9)
    a("s_add_u32 s%d, s%d, 4" % (sCNT, sLW))
    a("s_branch L_reduce")

def gen_kvloader(a):
    vK, vV = 10, 11
    a.stamp_wave = -1
    a("s_sub_u32 s%d, s%d, 2" % (sLW, sLW))
    a("v_lshrrev_b32 v2, 4, v1"); a("v_and_b32 v3, 15, v1")
    a("s_lshl_b32 s%d, s%d, 13" % (sT0, sLW))
    a("v_lshlrev_b32 v4, 8, v2"); a("v_add_u32 v4, s%d, v4" % sT0)
    a("v_xor_b32 v5, v2, v3"); a("v_lshlrev_b32 v5, 4, v5"); a("v_add_u32 v%d, v4, v5" % vK)
    a("v_lshlrev_b32 v5, 1, v2"); a("v_xor_b32 v5, v5, v3"); a("v_lshlrev_b32 v5, 4, v5"); a("v_add_u32 v%d, v4, v5" % vV)
    a("s_mul_i32 s%d, s%d, %d" % (sLWK, sLW, 8 * KGRP)); a("s_mul_i32 s%d, s%d, %d" % (sLWV, sLW, 8 * VGRP))
    sROT = 92
    if "krot" in OPT:
        a("s_mul_i32 s%d, s%d, %d" % (sROT, sXCD, KROT[0])); a("s_mul_i32 s%d, s%d, %d" % (sT0, sIDX, KROT[1])); a("s_add_u32 s%d, s%d, s%d" % (sROT, sROT, sT0))
    q = VQ(); bar = mk_bar(a, q, None)
    def iss(T, isK, lo=0, hi=8):
        for ii in range(lo, hi):
            if "krot" in OPT:
                if ii == lo: a("s_add_u32 s%d, s%d, %d" % (sT2, sROT, T)); a("s_and_b32 s%d, s%d, 15" % (sT2, sT2)); a("s_lshl_b32 s%d, s%d, 14" % (sT2, sT2))
                if ii % 4 == 0 or ii == lo: a("s_add_u32 s%d, s%d, %d" % (sT0, sT2, (ii >> 2) * 4096))
            elif ii % 4 == 0 or ii == lo: a("s_mov_b32 s%d, %d" % (sT0, T * 16384 + (ii >> 2) * 4096))
            grp = KGRP if isK else VGRP
            a("s_add_u32 m0, s%d, %d" % (sLWK if isK else sLWV, (T % 4) * PAIR + (0 if isK else VOFF) + ii * grp - (ii & 3) * 1024))
            if ii % 4: a("s_nop 0")
            else: a("s_nop 0")
            dma(a, vK if isK else vV, sK if isK else sV, sT0, (ii & 3) * 1024, KV_FLAGS)
        q.issue("I%d" % T, hi - lo)
    def prefetch_q():
        sk = a.label("Lpfq"); skx = a.label("Lpfx")
        a("s_cmp_lg_u32 s%d, %d" % (sLW, PF_WAVE)); a("s_cbranch_scc1 %s" % sk)
        a("s_cmp_ge_u32 s%d, 28" % sIDX); a("s_cbranch_scc1 %s" % sk)
        a("s_cmp_ge_u32 s%d, 16" % sIDX); a("s_cbranch_scc1 %s" % skx)
        a("s_lshl_b32 s%d, s%d, 2" % (sT0, sIDX)); a("v_add_u32 v5, s%d, v2" % sT0); a("v_lshlrev_b32 v5, 13, v5"); a("v_lshlrev_b32 v6, 7, v3"); a("v_add_u32 v5, v5, v6")
        for cp in range(PF_FIRST, 9):
            a("s_mov_b32 s%d, %d" % (sT0, cp * 64 * 8192)); a("buffer_load_dword v%d, v5, %s, s%d offen" % (20 + cp, srd(sPF), sT0))
        a("s_branch %s" % sk)
        a("%s:" % skx)
        a("s_sub_u32 s%d, s%d, 16" % (sT0, sIDX)); a("s_lshl_b32 s%d, s%d, 6" % (sT0, sT0)); a("v_add_u32 v5, s%d, v1" % sT0); a("v_mul_u32_u24 v5, 1152, v5")
        for cp in range(PF_FIRST, 9):
            a("s_mov_b32 s%d, %d" % (sT0, cp * 128)); a("buffer_load_dword v%d, v5, %s, s%d offen" % (20 + cp, srd(sPF2), sT0))
        a("%s:" % sk)
    def clear_flags():
        sk = a.label("Lclr")
        a("s_cmp_lg_u32 s%d, 1" % sLW); a("s_cbranch_scc1 %s" % sk)
        a("v_mov_b32 v20, 0"); a("v_mov_b32 v21, 0")
        a("s_lshl_b32 s%d, s%d, 3" % (sT0, sH))
        a("v_lshlrev_b32 v5, 7, v1"); a("v_add_u32 v5, s%d, v5" % sT0); a("v_mov_b32 v7, 0x40000000"); a("v_cmp_gt_u32 vcc, 9, v1"); a("s_nop 1"); a("v_cndmask_b32 v5, v7, v5, vcc")
        a("buffer_store_dwordx2 v[20:21], v5, %s, 0 offen sc0 sc1" % srd(sFL))
        a("s_waitcnt vmcnt(0)")
        a("s_lshl_b32 s%d, s%d, 4" % (sT0, sB)); a("v_mov_b32 v5, s%d" % sT0); a("v_mov_b32 v6, 1")
        a("s_mov_b64 s[96:97], exec"); a("s_mov_b64 exec, 1")
        a("global_atomic_add v5, v6, s[16:17] sc1")
        a("s_mov_b64 exec, s[96:97]")
        a("%s:" % sk)
    if "cpf0" in OPT:
        sk = a.label("Lcp0"); a("s_cmp_lg_u32 s%d, 1" % sLW); a("s_cbranch_scc1 %s" % sk); code_prefetch(a); a("%s:" % sk)
    if "notlb" not in OPT:
        sk = a.label("Ltlb")
        a("s_cmp_lg_u32 s%d, 0" % sLW); a("s_cbranch_scc1 %s" % sk)
        a("v_mov_b32 v5, 0")
        for i, sr in enumerate((sK, sV, sWO, sP, sOUT)): a("buffer_load_dword v%d, v5, %s, 0 offen nt" % (33 + i, srd(sr)))
        a("v_mul_u32_u24 v5, %d, v1" % (PART // 8)); a("v_lshlrev_b32 v5, 3, v5"); a("v_mov_b32 v7, 0x40000000"); a("v_cmp_gt_u32 vcc, 16, v1"); a("s_nop 1"); a("v_cndmask_b32 v5, v7, v5, vcc")
        a("buffer_load_dword v38, v5, %s, 0 offen nt" % srd(sPB))
        a("%s:" % sk)
    clear_flags()
    if "nopfq" not in OPT and PF_AT < 0: prefetch_q()
    for s in range(18):
        bar(None)
        if "nopfq" not in OPT and PF_AT == s: prefetch_q()
        for e in KSCHED.get(s, []): iss(e[1], e[0] == "K", *e[2:])
    bar(None)
    for e in KSCHED.get(18, []): iss(e[1], e[0] == "K", *e[2:])
    bar(["I0", "I1"] if "wait01" in OPT else ["I0"])
    for e in KSCHED.get(19, []): iss(e[1], e[0] == "K", *e[2:])
    if "kv4" in OPT:
        assert FIRST_RULE == 1
        attn_kv4(a, False)
    else:
        sTK, sKS = 93, 91
        def item_dyn():
            a("s_add_u32 s%d, s%d, s%d" % (sT1, sLWK, sKS)); a("s_add_u32 s%d, s%d, s%d" % (sT2, sLWV, sKS))
            for isK in (True, False):
                for ii in range(8):
                    if ii % 4 == 0: a("s_add_u32 s%d, s%d, %d" % (sT0, sTK, (ii >> 2) * 4096))
                    grp = KGRP if isK else VGRP
                    a("s_add_u32 m0, s%d, %d" % (sT1 if isK else sT2, (0 if isK else VOFF) + ii * grp - (ii & 3) * 1024)); a("s_nop 0")
                    dma(a, vK if isK else vV, sK if isK else sV, sT0, (ii & 3) * 1024, KV_FLAGS)
            a("s_add_u32 s%d, s%d, 16384" % (sTK, sTK))
            a("s_add_u32 s%d, s%d, %d" % (sKS, sKS, PAIR)); a("s_cmp_eq_u32 s%d, %d" % (sKS, 4 * PAIR)); a("s_cselect_b32 s%d, 0, s%d" % (sKS, sKS))
        def wv(n):
            if "nowait" not in OPT: a("s_waitcnt vmcnt(%d)" % n)
        if LAG:
            a("s_mov_b32 s%d, %d" % (sTK, 2 * 16384)); a("s_mov_b32 s%d, %d" % (sKS, 2 * PAIR))
            lab = a.label("Lkvl"); a("s_mov_b32 s%d, 1" % sCNT); a("%s:" % lab)
            wv(0); a("s_barrier"); item_dyn()
            a("s_add_u32 s%d, s%d, 1" % (sCNT, sCNT)); a("s_cmp_le_u32 s%d, %d" % (sCNT, LAG)); a("s_cbranch_scc1 %s" % lab)
            item_dyn()
            first = LAG + 1
        else:
            if FIRST_RULE == 2:
                n1 = q.wait(["I1"])
                if n1 is not None: wv(n1)
                a("s_barrier")
            a("s_mov_b32 s%d, %d" % (sTK, (FIRST_RULE + 2) * 16384)); a("s_mov_b32 s%d, %d" % (sKS, ((FIRST_RULE + 2) % 4) * PAIR))
            first = FIRST_RULE
        lab = a.label("Lkv"); a("s_mov_b32 s%d, %d" % (sCNT, first - 1)); a("%s:" % lab)
        wv(16)
        a("s_barrier")
        item_dyn()
        a("s_add_u32 s%d, s%d, 1" % (sCNT, sCNT)); a("s_cmp_lt_u32 s%d, 13" % sCNT); a("s_cbranch_scc1 %s" % lab)
        wv(16)
        a("s_barrier")
        wv(0)
        a("s_barrier")
        a("s_barrier")
    if "nored" not in OPT:
        sk = a.label("Ldbg"); lp = a.label("Ldbgw")
        a("s_cmp_lg_u32 s%d, 0" % sLW); a("s_cbranch_scc1 %s" % sk)
        a("s_lshl_b32 s%d, s%d, 4" % (sT0, sB)); a("v_mov_b32 v10, s%d" % sT0); a("s_mov_b32 s%d, 0" % sT3)
        a("%s:" % lp)
        a("global_load_dword v12, v10, s[16:17] sc1"); a("s_waitcnt vmcnt(0)"); a("v_readfirstlane_b32 s%d, v12" % sT1)
        a("s_add_u32 s%d, s%d, 1" % (sT3, sT3)); a("s_cmp_gt_u32 s%d, %d" % (sT3, SPIN_MAX)); a("s_cbranch_scc1 %s" % sk)
        a("s_cmp_lt_u32 s%d, 16" % sT1); a("s_cbranch_scc1 %s" % lp)
        a("%s:" % sk)
    a("s_barrier"); a("s_barrier")
    vPR, vPO, vF, vOne = 20, 24, 25, 26
    sCH = 93
    a("v_lshlrev_b32 v%d, 4, v1" % vPO)
    a("s_mul_i32 s%d, s%d, 6144" % (sT0, sLW)); a("s_add_u32 s%d, s%d, %d" % (sT0, sT0, PB0)); a("v_add_u32 v%d, s%d, v%d" % (vPR, sT0, vPO)); a("v_add_u32 v%d, 3072, v%d" % (vPR + 1, vPR))
    a("s_mul_i32 s%d, s%d, %d" % (sT0, sLW, 2 * PAIR)); a("s_add_u32 s%d, s%d, 32768" % (sT0, sT0)); a("v_add_u32 v%d, s%d, v%d" % (vPR + 2, sT0, vPO)); a("v_add_u32 v%d, %d, v%d" % (vPR + 3, PAIR, vPR + 2))
    a("s_mul_i32 s%d, s%d, 6144" % (sT0, sLW)); a("v_add_u32 v%d, s%d, v%d" % (vPO, sT0, vPO))
    a("v_mov_b32 v%d, 1" % vOne)
    a("s_lshl_b32 s%d, s%d, 3" % (sT0, sH)); a("s_lshl_b32 s%d, s%d, 2" % (sT1, sLW)); a("s_add_u32 s%d, s%d, s%d" % (sT0, sT0, sT1))
    a("v_mov_b32 v%d, 0x40000000" % vF); a("s_nop 0"); a("v_writelane_b32 v%d, s%d, 0" % (vF, sT0))
    a("s_mov_b32 s%d, 0" % sCH)
    def flag_store(back):
        a("s_sub_u32 s%d, s%d, %d" % (sT0, sCH, back)); a("s_lshl_b32 s%d, s%d, 7" % (sT0, sT0))
        a("buffer_store_dword v%d, v%d, %s, s%d offen sc0 sc1" % (vOne, vF, srd(sFL), sT0))
    def turn(buf, guard):
        for w2 in range(2):
            for j in range(3): a("ds_read_b128 %s, v%d offset:%d" % (vr(64 + 32 * buf + 4 * (3 * w2 + j), 4), vPR + 2 * buf + w2, j * 1024))
        a("s_mul_i32 s%d, s%d, 12288" % (sT0, sCH))
        for i in range(6):
            a("s_waitcnt lgkmcnt(%d)" % (5 - i))
            if "nostore" not in OPT: a("buffer_store_dwordx4 %s, v%d, %s, s%d offen%s" % (vr(64 + 32 * buf + 4 * i, 4), vPO, srd(sP), sT0, P_FLAGS))
            if i < 5: a("s_add_u32 s%d, s%d, 1024" % (sT0, sT0))
        if "nored" not in OPT:
            sk = a.label("Lfl")
            if guard: a("s_cmp_lt_u32 s%d, 2" % sCH); a("s_cbranch_scc1 %s" % sk)
            a("s_waitcnt vmcnt(%d)" % FLW)
            flag_store(2)
            a("%s:" % sk)
        a("s_add_u32 s%d, s%d, 1" % (sCH, sCH))
    a("s_barrier")
    lab = a.label("Lsto"); a("%s:" % lab)
    a("s_barrier"); turn(0, True)
    a("s_barrier"); turn(1, True)
    a("s_cmp_lt_u32 s%d, 8" % sCH); a("s_cbranch_scc1 %s" % lab)
    a("s_barrier"); turn(0, False)
    if "nored" not in OPT:
        a("s_waitcnt vmcnt(7)"); flag_store(2)
        a("s_waitcnt vmcnt(1)"); flag_store(1)
    a("s_cmp_eq_u32 s%d, 0" % sLW); a("s_cselect_b32 s%d, 7, 6" % sCNT)
    a("s_branch L_reduce")

KSCHED = {2: [("K", 0)], 5: [("V", 0)], 8: [("K", 1)], 11: [("V", 1)], 16: [("K", 2)], 17: [("V", 2)]}

def gen_reducer(a):
    a("L_reduce:")
    if "nored" in OPT:
        a.stamp_wave = 4; stamp_flush(a); a("s_endpgm"); return
    rho = sCNT
    giveup = a.label("Lgiveup"); poll = a.label("Lpoll")
    a("s_mul_i32 s%d, s%d, 7" % (sT0, rho)); a("s_cmp_eq_u32 s%d, 7" % rho); a("s_cselect_b32 s%d, 48, s%d" % (sT0, sT0))
    a("s_mul_hi_u32 s%d, s%d, %d" % (sT2, sT0, (2**32 + 5) // 6))
    a("s_cmp_ge_u32 s%d, 6" % rho); a("s_cselect_b32 s%d, 48, 56" % sTASK2); a("s_cselect_b32 s%d, 0, -1" % sCNT2)
    a("v_lshlrev_b32 v9, 2, v1"); a("v_mov_b32 v7, 0x40000000")
    a("s_lshl_b32 s%d, s%d, 7" % (sT2, sT2))
    a("buffer_load_dword v11, v9, %s, s%d offen sc1" % (srd(sFL), sT2))
    a("v_lshrrev_b32 v2, 3, v1"); a("v_add_u32 v2, s%d, v2" % sT0)
    a("v_mul_u32_u24 v8, 10923, v2"); a("v_lshrrev_b32 v8, 16, v8")
    a("v_mul_u32_u24 v5, 6, v8"); a("v_sub_u32 v2, v2, v5")
    a("v_lshlrev_b32 v2, 3, v2"); a("v_and_b32 v5, 7, v1"); a("v_add_u32 v2, v2, v5")
    a("s_mul_i32 s%d, s%d, 48" % (sT1, sH)); a("v_add_u32 v2, s%d, v2" % sT1)
    a("v_mul_u32_u24 v3, 12288, v8"); a("v_lshlrev_b32 v5, 4, v2"); a("v_add_u32 v3, v3, v5")
    a("v_cmp_gt_u32 vcc, s%d, v1" % sTASK2); a("s_nop 1"); a("v_cndmask_b32 v3, v7, v3, vcc")
    a("v_lshrrev_b32 v4, 6, v2"); a("v_and_b32 v5, 63, v2")
    a("v_cmp_le_u32 s[96:97], 6, v4"); a("s_nop 1"); a("v_cndmask_b32 v6, 0, 1, s[96:97]")
    a("v_mul_u32_u24 v10, 6, v6"); a("v_sub_u32 v4, v4, v10")
    a("v_lshlrev_b32 v4, 4, v4"); a("v_and_b32 v10, 15, v5"); a("v_add_u32 v4, v4, v10"); a("v_mul_u32_u24 v4, 1152, v4")
    a("v_lshlrev_b32 v6, 6, v6"); a("v_lshrrev_b32 v5, 4, v5"); a("v_lshlrev_b32 v5, 3, v5"); a("v_add_u32 v4, v4, v6"); a("v_add_u32 v4, v4, v5")
    a("s_and_b32 s%d, s%d, 7" % (sT1, sB)); a("v_add_u32 v8, s%d, v8" % sT1)
    a("v_cmp_le_u32 s[96:97], 9, v8"); a("s_nop 1"); a("v_cndmask_b32 v6, 0, 9, s[96:97]"); a("v_sub_u32 v8, v8, v6"); a("v_lshlrev_b32 v8, 7, v8"); a("v_add_u32 v4, v4, v8")
    a("v_cndmask_b32 v4, v7, v4, vcc")
    a("s_mov_b32 s%d, 0" % sT3)
    a("s_branch %s_chk" % poll)
    a("%s:" % poll)
    a("buffer_load_dword v11, v9, %s, s%d offen sc1" % (srd(sFL), sT2))
    a("%s_chk:" % poll)
    a("s_waitcnt vmcnt(0)")
    a("v_cmp_eq_u32 vcc, 1, v11")
    a("s_add_u32 s%d, s%d, 1" % (sT3, sT3)); a("s_cmp_gt_u32 s%d, %d" % (sT3, SPIN_MAX)); a("s_cbranch_scc1 %s" % giveup)
    a("s_orn2_b32 vcc_hi, vcc_hi, s%d" % sCNT2)
    a("s_cmp_eq_u64 vcc, -1"); a("s_cbranch_scc0 %s" % poll)
    a("s_mov_b32 s%d, 0" % sT0)
    for h in range(16):
        a("buffer_load_dwordx4 v[%d:%d], v3, %s, s%d offen%s" % (64 + 4 * h, 67 + 4 * h, srd(sPB), sT0, R_FLAGS))
        if h < 15: a("s_add_u32 s%d, s%d, %d" % (sT0, sT0, PART))
    if "dot2" in OPT:
        a("v_mov_b32 v12, 0x00003f80"); a("v_mov_b32 v13, 0x3f800000")
        for r in range(8): a("v_mov_b32 v%d, 0" % (48 + r))
    for h in range(16):
        a("s_waitcnt vmcnt(%d)" % (15 - h))
        for r in range(4):
            src = 64 + 4 * h + r
            if "dot2" in OPT:
                a("v_dot2c_f32_bf16 v%d, v%d, v12" % (48 + 2 * r, src)); a("v_dot2c_f32_bf16 v%d, v%d, v13" % (49 + 2 * r, src))
            elif h == 0:
                a("v_lshlrev_b32 v%d, 16, v%d" % (48 + 2 * r, src)); a("v_and_b32 v%d, 0xffff0000, v%d" % (49 + 2 * r, src))
            else:
                a("v_lshlrev_b32 v12, 16, v%d" % src); a("v_and_b32 v13, 0xffff0000, v%d" % src)
                a("v_add_f32 v%d, v%d, v12" % (48 + 2 * r, 48 + 2 * r)); a("v_add_f32 v%d, v%d, v13" % (49 + 2 * r, 49 + 2 * r))
    for r in range(4): a("v_cvt_pk_bf16_f32 v%d, v%d, v%d" % (56 + r, 48 + 2 * r, 49 + 2 * r))
    a("buffer_store_dwordx2 v[56:57], v4, %s, 0 offen%s" % (srd(sOUT), OUT_FLAGS))
    a("buffer_store_dwordx2 v[58:59], v4, %s, 0 offen offset:32%s" % (srd(sOUT), OUT_FLAGS))
    a("%s:" % giveup)
    if STAMP:
        sk = a.label("Lnst"); a("s_cmp_lg_u32 s%d, 4" % sWAVE); a("s_cbranch_scc1 %s" % sk)
        a.stamp_wave = 4; stamp(a, 15); stamp_flush(a)
        a("%s:" % sk)
    a("s_endpgm")
R_FLAGS = " sc1"
OUT_FLAGS = ""
sTASK2 = 101
sCNT2 = 95
PB0 = 143360
SPIN_MAX = 200000
sWOP = 70

PF_O_AT = 10
PF_WAVE = 1
PF_FIRST = 4
PF_AT = 0
PF0 = 2
RAMP = 0
ALIGN_T = None
ALIGN_R = None
ALIGN_Q = None
ALIGN_O = None
LAG = 0
RAMP_EVERY = 1
FLW = 12
STG_AT = 7
NSTG0 = 3
ROTQ = (1, 0, 2, 0)
KROT = (2, 1)
CPF_AT = 11
FIRST_RULE = 1
CMP_SLACK = 6
FLAG_DELAY = 4

def O_(j, db): return (j * 8 + db) * 4
def Q_(j, s): return 96 + (j * 4 + s) * 4
def KF(f): return 144 + 4 * f
def VF(db): return 176 + 4 * db
def S_(par): return 208 + 8 * par
def P_(par): return 224 + 4 * par
def N_(j): return 232 + 4 * j
def L_(j): return 244 + j
vKA, vVA, vT, vT2, vS, vLANE = 247, 248, 252, 253, 254, 255
MF = "v_mfma_f32_16x16x32_bf16"

def interleave(mfmas, fillers):
    out = list(fillers.get(-1, []))
    for i, m in enumerate(mfmas):
        out.append(m); out += fillers.get(i, [])
    return out
def spread(items, slots):
    d = {}; n = len(items)
    for i, it in enumerate(items): d.setdefault(slots[i * len(slots) // n], []).append(it)
    return d
def merge(*ds):
    o = {}
    for d in ds:
        for k, v in d.items(): o.setdefault(k, []).extend(v)
    return o

KORD = [(kb, s) for s in range(4) for kb in range(2)]
def k_read(kb, s, half, ad=None):
    return "ds_read_b128 %s, v%d offset:%d" % (vr(KF(kb * 4 + s), 4), vKA if ad is None else ad, half * 8 * KGRP + kb * 4 * KGRP + s * 64)
def v_reads(db, half):
    A, cc = divmod(db, 4)
    o = half * 8 * VGRP + A * 128
    return ["ds_read_b64_tr_b16 %s, v%d offset:%d" % (vr(VF(db), 2), vVA + cc, o), "ds_read_b64_tr_b16 %s, v%d offset:%d" % (vr(VF(db) + 2, 2), vVA + cc, o + 4 * VGRP)]

TAB = None
def hoist_waits(lines):
    out = []
    for l in lines:
        if l.startswith("s_waitcnt lgkmcnt") and out:
            n = int(l.split("(")[1].split(")")[0])
            k = len(out) - 1; jumped = 0; ok = False
            while k >= 0:
                x = out[k]
                if x.startswith("v_mfma"): ok = True; break
                if x.endswith(":") or x.startswith(("s_cbranch", "s_barrier", "s_waitcnt")): break
                if x.startswith("ds_"): jumped += 1
                k -= 1
            if ok and n - jumped >= 0:
                out.insert(k + 1, "s_waitcnt lgkmcnt(%d)" % (n - jumped)); continue
        out.append(l)
    return out

def gen_compute(a):
    rare = []
    a("v_and_b32 v%d, 63, v0" % vLANE)
    a("s_lshr_b32 s%d, s%d, 1" % (sQI, sWAVE)); a("s_and_b32 s%d, s%d, 1" % (sRH, sWAVE))
    g, rp, c, q = 240, 241, 242, 243
    a("v_lshrrev_b32 v%d, 4, v%d" % (g, vLANE)); a("v_bfe_u32 v%d, v%d, 2, 2" % (rp, vLANE)); a("v_and_b32 v%d, 3, v%d" % (c, vLANE)); a("v_and_b32 v%d, 15, v%d" % (q, vLANE))
    vWA, vXA = 232, 244
    t, t2 = vT, vT2
    a("v_lshlrev_b32 v%d, 3, v%d" % (t, g)); a("v_add_u32 v%d, v%d, v%d" % (t, t, rp)); a("v_lshlrev_b32 v%d, 9, v%d" % (t, t))
    a("v_and_b32 v%d, 1, v%d" % (t2, g)); a("v_lshlrev_b32 v%d, 2, v%d" % (t2, t2)); a("v_add_u32 v%d, v%d, v%d" % (t2, t2, rp)); a("v_lshlrev_b32 v%d, 5, v%d" % (t2, t2))
    a("v_add_u32 v%d, v%d, v%d" % (t, t, t2)); a("v_lshlrev_b32 v%d, 3, v%d" % (t2, c)); a("v_add_u32 v%d, v%d, v%d" % (t, t, t2))
    a("s_lshl_b32 s%d, s%d, 8" % (sT0, sQI)); a("s_add_u32 s%d, s%d, %d" % (sT0, sT0, WBASE)); a("v_add_u32 v%d, s%d, v%d" % (t, sT0, t))
    assert WBASE % 256 == 0 and XBASE % 128 == 0
    for db in range(8): a("v_xor_b32 v%d, %d, v%d" % (vWA + db, db * 32, t))
    a("s_mul_i32 s%d, s%d, %d" % (sT0, sRH, 48 * 128)); a("s_add_u32 s%d, s%d, %d" % (sT0, sT0, XBASE))
    a("v_lshrrev_b32 v%d, 1, v%d" % (t, q)); a("v_xor_b32 v%d, v%d, v%d" % (t, t, g)); a("v_lshlrev_b32 v%d, 4, v%d" % (t, t))
    a("v_lshlrev_b32 v%d, 7, v%d" % (t2, q)); a("v_add_u32 v%d, v%d, v%d" % (t, t, t2)); a("v_add_u32 v%d, s%d, v%d" % (vXA, sT0, t)); a("v_xor_b32 v%d, 64, v%d" % (vXA + 1, vXA))
    a("v_lshrrev_b32 v%d, 2, v%d" % (t, q)); a("v_mul_u32_u24 v%d, %d, v%d" % (t, KGRP, t))
    a("v_and_b32 v%d, 3, v%d" % (t2, q)); a("v_lshlrev_b32 v%d, 8, v%d" % (vKA, t2)); a("v_add_u32 v%d, v%d, v%d" % (t, t, vKA))
    a("v_xor_b32 v%d, v%d, v%d" % (t2, t2, g)); a("v_lshlrev_b32 v%d, 4, v%d" % (t2, t2)); a("v_add_u32 v%d, v%d, v%d" % (vKA, t, t2))
    a("v_mul_u32_u24 v%d, %d, v%d" % (t, VGRP, g)); a("v_lshlrev_b32 v%d, 8, v%d" % (t2, rp)); a("v_add_u32 v%d, v%d, v%d" % (t, t, t2))
    a("v_lshlrev_b32 v%d, 3, v%d" % (t2, c)); a("v_add_u32 v%d, v%d, v%d" % (t, t, t2)); a("v_add_u32 v%d, %d, v%d" % (t, VOFF, t))
    for cc in range(4):
        a("v_xor_b32 v%d, %d, v%d" % (t2, cc, rp)); a("v_lshlrev_b32 v%d, 5, v%d" % (t2, t2)); a("v_add_u32 v%d, v%d, v%d" % (vVA + cc, t, t2))
    stamp(a, 0, 10)

    def ABUF(buf, db): return 144 + 32 * buf + 4 * db
    def BBUF(buf, j): return 208 + 12 * buf + 4 * j
    def q_reads(s):
        buf = s & 1; wo = ((s + 2) % 4) * 16384; xo = ((s // 2) % 2) * XSLOT
        r = []
        for j in range(3): r.append("ds_read_b128 %s, v%d offset:%d" % (vr(BBUF(buf, j), 4), vXA + (s & 1), xo + j * 2048))
        for db in range(8):
            r.append("ds_read_b64_tr_b16 %s, v%d offset:%d" % (vr(ABUF(buf, db), 2), vWA + db, wo))
            r.append("ds_read_b64_tr_b16 %s, v%d offset:%d" % (vr(ABUF(buf, db) + 2, 2), vWA + db, wo + 2048))
        return r
    for r in range(0, 96, 2): a("v_mov_b64 %s, 0" % vr(r, 2))
    a("s_barrier")
    for x in q_reads(0): a(x)
    def q_stage(s, reads=True):
        buf = s & 1
        a("s_waitcnt lgkmcnt(0)")
        a("s_barrier")
        mf = []
        for db in range(8):
            for j in range(3):
                mf.append("%s %s, %s, %s, %s" % (MF, vr(O_(j, db), 4), vr(ABUF(buf, db), 4), vr(BBUF(buf, j), 4), vr(O_(j, db), 4)))
        rd = q_reads(s + 1) if reads else []
        for x in interleave(mf, spread(rd, list(range(0, 17))) if rd else {}): a(x)
    lq = a.label("Lq")
    a("s_mov_b32 s%d, 0" % sCNT)
    if ALIGN_Q is not None:
        a(".p2align 6")
        for _ in range(ALIGN_Q): a("s_nop 0")
    a("%s:" % lq)
    for s in range(4): q_stage(s)
    a("s_add_u32 s%d, s%d, 1" % (sCNT, sCNT)); a("s_cmp_lt_u32 s%d, 4" % sCNT); a("s_cbranch_scc1 %s" % lq)
    q_stage(16); q_stage(17, reads=False)
    stamp(a, 1, 11)
    a("s_nop 7")
    a("s_mov_b32 s%d, %s" % (sT0, f32(C_SCALE))); a("s_mov_b32 s%d, s%d" % (sT0 + 1, sT0))
    for j in range(3):
        for s in range(4):
            X, Y, D = O_(j, 2 * s), O_(j, 2 * s + 1), Q_(j, s)
            for r in range(0, 4, 2):
                a("v_pk_mul_f32 %s, %s, s[%d:%d]" % (vr(X + r, 2), vr(X + r, 2), sT0, sT0 + 1)); a("v_pk_mul_f32 %s, %s, s[%d:%d]" % (vr(Y + r, 2), vr(Y + r, 2), sT0, sT0 + 1))
            a("v_cvt_pk_bf16_f32 v%d, v%d, v%d" % (D + 0, X + 0, X + 1)); a("v_cvt_pk_bf16_f32 v%d, v%d, v%d" % (D + 1, X + 2, X + 3))
            a("v_cvt_pk_bf16_f32 v%d, v%d, v%d" % (D + 2, Y + 0, Y + 1)); a("v_cvt_pk_bf16_f32 v%d, v%d, v%d" % (D + 3, Y + 2, Y + 3))
            for r in range(0, 4, 2):
                a("v_mov_b64 %s, 0" % vr(X + r, 2)); a("v_mov_b64 %s, 0" % vr(Y + r, 2))
            a("v_permlane32_swap_b32 v%d, v%d" % (D + 0, D + 2)); a("v_permlane32_swap_b32 v%d, v%d" % (D + 1, D + 3))
            a("s_nop 1")
            a("v_permlane16_swap_b32 v%d, v%d" % (D + 0, D + 2)); a("v_permlane16_swap_b32 v%d, v%d" % (D + 1, D + 3))
    a("s_barrier")
    for kb, s_ in KORD: a(k_read(kb, s_, 0))
    a("s_waitcnt lgkmcnt(0)")
    for j in range(3):
        for kb, s_ in KORD:
            d = 176 + 8 * j + 4 * kb
            a("%s %s, %s, %s, %s" % (MF, vr(d, 4), vr(KF(kb * 4 + s_), 4), vr(Q_(j, s_), 4), "0" if s_ == 0 else vr(d, 4)))
    for r in range(224, 232, 2): a("v_mov_b64 %s, 0" % vr(r, 2))
    for j in range(3): a("v_mov_b32 v%d, 0" % L_(j))
    a("v_mov_b32 v%d, 0" % vS)
    a("s_mov_b32 s%d, %s" % (sTHR, "0x7f800000" if "norare" in OPT else f32(256.0)))
    a("s_mov_b32 s%d, 0" % sSLOT); a("s_mov_b32 s%d, 0" % sDK)
    a("s_mov_b32 s%d, 0x%x" % (sNEG, -3 * PAIR & 0xffffffff))
    a("s_mov_b64 vcc, 0")
    a("s_nop 3")
    for j in range(3):
        S = 176 + 8 * j; t, t2 = 200 + 2 * j, 201 + 2 * j
        a("v_max3_f32 v%d, v%d, v%d, v%d" % (t, S, S + 1, S + 2)); a("v_max3_f32 v%d, v%d, v%d, v%d" % (t2, S + 3, S + 4, S + 5))
        a("v_max3_f32 v%d, v%d, v%d, v%d" % (t, t, S + 6, S + 7)); a("v_max_f32 v%d, v%d, v%d" % (t, t, t2))
    for sw in ("v_permlane32_swap_b32", "v_permlane16_swap_b32"):
        for j in range(3): a("v_mov_b32 v%d, v%d" % (201 + 2 * j, 200 + 2 * j))
        a("s_nop 0")
        for j in range(3): a("%s v%d, v%d" % (sw, 200 + 2 * j, 201 + 2 * j))
        for j in range(3): a("v_max_f32 v%d, v%d, v%d" % (200 + 2 * j, 200 + 2 * j, 201 + 2 * j))
    for j in range(3):
        for i in range(4): a("v_sub_f32 v%d, 0, v%d" % (N_(j) + i, 200 + 2 * j))
    for r in range(176, 208, 2): a("v_mov_b64 %s, 0" % vr(r, 2))
    def qk_mfmas(jn, par):
        m = []
        for kb, s in KORD:
            d = S_(par) + 4 * kb
            cc = vr(N_(jn), 4) if s == 0 else vr(d, 4)
            m.append("%s %s, %s, %s, %s" % (MF, vr(d, 4), vr(KF(kb * 4 + s), 4), vr(Q_(jn, s), 4), cc))
        return m
    def pv_mfmas(jp, par):
        return ["%s %s, %s, %s, %s" % (MF, vr(O_(jp, db), 4), vr(VF(db), 4), vr(P_(par), 4), vr(O_(jp, db), 4)) for db in range(8)]
    for m in qk_mfmas(0, 0): a(m)
    a("s_nop 7")

    def rare_code(st, j, adv):
        par = (3 * st + j) & 1
        S, P = S_(par), P_(par)
        rl, cont = a.label("Lrare"), a.label("Lcont")
        r = Asm()
        r("%s:" % rl)
        if adv: r("v_subrev_u32 v%d, s%d, v%d" % (vT2, sDK, vKA))
        else: r("v_mov_b32 v%d, v%d" % (vT2, vKA))
        for kb in range(2):
            for s in range(4):
                r("ds_read_b128 %s, v%d offset:%d" % (vr(P, 4), vT2, st * 8 * KGRP + kb * 4 * KGRP + s * 64))
                r("s_waitcnt lgkmcnt(0)")
                cc = vr(N_(j), 4) if s == 0 else vr(S + 4 * kb, 4)
                r("%s %s, %s, %s, %s" % (MF, vr(S + 4 * kb, 4), vr(P, 4), vr(Q_(j, s), 4), cc))
                r("s_nop 3")
        r("s_nop 7")
        r("v_max3_f32 v%d, v%d, v%d, v%d" % (vT, S, S + 1, S + 2)); r("v_max3_f32 v%d, v%d, v%d, v%d" % (vT2, S + 3, S + 4, S + 5))
        r("v_max3_f32 v%d, v%d, v%d, v%d" % (vT, vT, S + 6, S + 7)); r("v_max_f32 v%d, v%d, v%d" % (vT, vT, vT2))
        r("v_mov_b32 v%d, v%d" % (vT2, vT)); r("s_nop 1"); r("v_permlane32_swap_b32 v%d, v%d" % (vT, vT2)); r("v_max_f32 v%d, v%d, v%d" % (vT, vT, vT2))
        r("v_mov_b32 v%d, v%d" % (vT2, vT)); r("s_nop 1"); r("v_permlane16_swap_b32 v%d, v%d" % (vT, vT2)); r("v_max_f32 v%d, v%d, v%d" % (vT, vT, vT2))
        r("v_max_f32 v%d, 0, v%d" % (vT, vT))
        r("v_sub_f32 v%d, 0, v%d" % (vT2, vT)); r("v_exp_f32 v%d, v%d" % (vT2, vT2)); r("s_nop 0")
        r("v_mul_f32 v%d, v%d, v%d" % (L_(j), L_(j), vT2))
        for db in range(8):
            for rr in range(4): r("v_mul_f32 v%d, v%d, v%d" % (O_(j, db) + rr, O_(j, db) + rr, vT2))
        for i in range(4): r("v_sub_f32 v%d, v%d, v%d" % (N_(j) + i, N_(j) + i, vT))
        for i in range(8): r("v_sub_f32 v%d, v%d, v%d" % (S + i, S + i, vT))
        for i in range(8): r("v_exp_f32 v%d, v%d" % (S + i, S + i))
        r("s_nop 0")
        r("v_add_f32 v%d, v%d, v%d" % (vS, S, S + 1))
        for i in range(2, 8): r("v_add_f32 v%d, v%d, v%d" % (vS, vS, S + i))
        for i in range(4): r("v_cvt_pk_bf16_f32 v%d, v%d, v%d" % (P + i, S + 2 * i, S + 2 * i + 1))
        r("s_nop 1")
        r("s_branch %s" % cont)
        rare.append(r.text())
        if "nobr" in OPT: return ["%s:" % cont]
        if "sccbr" in OPT: return ["s_cbranch_scc1 %s" % rl, "%s:" % cont]
        return ["s_cbranch_vccnz %s" % rl, "%s:" % cont]

    def block_tab(st, j, prev, qk=True, kload=None, vlo=None, vhi=None, barrier=False, extra=(), pre_extra=(), klate=None):
        par = (3 * st + j) & 1
        jn, jp = (j + 1) % 3, (j - 1) % 3
        S, P = S_(par), P_(par)
        pre = []
        if barrier: pre.append("s_barrier")
        endbr = []
        if "brend" in OPT:
            endbr = rare_code(st, j, st == 1 and j >= 1)
        elif prev is not None: pre += rare_code(*prev)
        pre += list(pre_extra)
        mf = qk_mfmas(jn, par ^ 1) + pv_mfmas(jp, par ^ 1)
        N = {}
        for i in range(8): N["E%d" % i] = "v_exp_f32 v%d, v%d" % (S + i, S + i)
        for i in range(4):
            N["C%d" % i] = "v_cvt_pk_bf16_f32 v%d, v%d, v%d" % (P + i, S + 2 * i, S + 2 * i + 1)
            N["A%d" % i] = "v_add_f32 v%d, v%d, v%d" % (S + 2 * i, S + 2 * i, S + 2 * i + 1)
        N["B0"] = "v_add_f32 v%d, v%d, v%d" % (S, S, S + 2); N["B1"] = "v_add_f32 v%d, v%d, v%d" % (S + 4, S + 4, S + 6)
        N["SUM"] = "v_add_f32 v%d, v%d, v%d" % (vS, S, S + 4); N["CMP"] = "v_cmp_lt_f32 vcc, s%d, v%d" % (sTHR, vS)
        N["L"] = "v_add_f32 v%d, v%d, v%d" % (L_(jp), L_(jp), vS)
        lds = {g: [] for g in range(16)}
        if "nolds" not in OPT:
            if vlo is not None:
                rs = [x for db in range(4) for x in v_reads(db, vlo)]
                for x, g in zip(rs, TAB["vlo"]): lds[g].append(x)
            if vhi is not None:
                rs = [x for db in range(4, 8) for x in v_reads(db, vhi)]
                for x, g in zip(rs, TAB["vhi"]): lds[g].append(x)
            if kload is not None:
                for (kb, s_), g in zip(KORD[:6], TAB["k"]): lds[g].append(k_read(kb, s_, kload))
            if klate is not None:
                for (kb, s_), g in zip(KORD[6:], TAB["klate"]): lds[g].append(k_read(kb, s_, klate))
        out = list(pre)
        ex = list(extra)
        for g in range(16):
            out.append(mf[g])
            if g == 15 and endbr: out += (["s_cmp_lg_u64 vcc, 0"] if "sccbr" in OPT else []) + endbr
            out += lds[g]
            if "nosm" not in OPT: out += [N[n] for n in TAB["valu"].get(g, [])]
            if g == TAB.get("scc_at", 15) and "sccbr" in OPT and "brend" not in OPT: out.append("s_cmp_lg_u64 vcc, 0")
            if g in TAB.get("extra_at", ()) and ex:
                x = ex.pop(0); out += (x if isinstance(x, list) else [x])
        for x in ex: out += (x if isinstance(x, list) else [x])
        return out

    def block(st, j, prev, qk=True, kload=None, vlo=None, vhi=None, barrier=False, extra=(), pre_extra=(), klate=None):
        if TAB is not None and qk: return block_tab(st, j, prev, qk, kload, vlo, vhi, barrier, extra, pre_extra, klate)
        if "brend" in OPT: prev = None
        if "sccbr" in OPT and prev is not None: pre_extra = list(pre_extra)
        par = (3 * st + j) & 1
        jn, jp = (j + 1) % 3, (j - 1) % 3
        S, P = S_(par), P_(par)
        pre = []
        if barrier: pre.append("s_barrier")
        if prev is not None: pre += rare_code(*prev)
        pre += list(pre_extra)
        mf = (qk_mfmas(jn, par ^ 1) if qk else []) + pv_mfmas(jp, par ^ 1)
        nq = 8 if qk else 0
        if not qk: pre.append("s_nop 1")
        it = []
        Ladd = Item("v_add_f32 v%d, v%d, v%d" % (L_(jp), L_(jp), vS), lo=0, hi=6, pri=5)
        E = [Item("v_exp_f32 v%d, v%d" % (S + i, S + i), lo=0, pri=3) for i in range(8)]
        for i in range(1, 8): pass
        A01 = Item("v_add_f32 v%d, v%d, v%d" % (vT, S, S + 1), deps=[E[0], E[1]])
        A23 = Item("v_add_f32 v%d, v%d, v%d" % (vT2, S + 2, S + 3), deps=[E[2], E[3]])
        B_ = Item("v_add_f32 v%d, v%d, v%d" % (vT, vT, vT2), deps=[A01, A23])
        A45 = Item("v_add_f32 v%d, v%d, v%d" % (vT2, S + 4, S + 5), deps=[E[4], E[5], B_])
        C_ = Item("v_add_f32 v%d, v%d, v%d" % (vT, vT, vT2), deps=[A45])
        A67 = Item("v_add_f32 v%d, v%d, v%d" % (vT2, S + 6, S + 7), deps=[E[6], E[7], C_])
        D_ = Item("v_add_f32 v%d, v%d, v%d" % (vS, vT, vT2), deps=[A67, Ladd])
        CMP = Item("v_cmp_lt_f32 vcc, s%d, v%d" % (sTHR, vS), deps=[D_], hi=len(mf) - CMP_SLACK)
        CV = [Item("v_cvt_pk_bf16_f32 v%d, v%d, v%d" % (P + i, S + 2 * i, S + 2 * i + 1), deps=[E[2 * i], E[2 * i + 1]], hi=len(mf) - 2) for i in range(4)]
        if "nosm" in OPT: it = []
        else: it = [Ladd] + E + [A01, A23, B_, A45, C_, A67, D_, CMP] + CV
        if "nolds" not in OPT:
            if vlo is not None:
                for db in range(4): it.append(Item(v_reads(db, vlo), lo=nq + db, pri=4))
            if vhi is not None:
                for db in range(4, 8): it.append(Item(v_reads(db, vhi), lo=0, hi=nq + db - 7, pri=6))
            if kload is not None:
                for i, (kb, s) in enumerate(KORD[:6]): it.append(Item(k_read(kb, s, kload), lo=max(i, 5), hi=min(15, 9 + i), pri=4))
            if klate is not None:
                for i, (kb, s) in list(enumerate(KORD))[6:]: it.append(Item(k_read(kb, s, klate), lo=0, hi=0, pri=7))
        for x in extra: it.append(Item(x, lo=8))
        return schedule(mf, it, pre)

    def tile(last, first_of_all=False):
        L = []
        L += block(0, 0, (1, 2, True), vlo=0)
        L += block(0, 1, (0, 0, False), vhi=0, kload=1)
        L += block(0, 2, (0, 1, False), klate=1)
        L += block(1, 0, (0, 2, False), vlo=1)
        adv = ["s_add_u32 s%d, s%d, 1" % (sSLOT, sSLOT), "s_and_b32 s%d, s%d, 3" % (sSLOT, sSLOT), "s_cmp_eq_u32 s%d, 0" % sSLOT,
               "s_cselect_b32 s%d, s%d, %d" % (sDK, sNEG, PAIR), "v_add_u32 v%d, s%d, v%d" % (vKA, sDK, vKA)]
        L += block(1, 1, (1, 0, False), vhi=1, kload=(None if last else 0), barrier=True, pre_extra=adv)
        L += block(1, 2, (1, 1, True), qk=not last, klate=(None if last else 0),
                   extra=[["v_add_u32 v%d, s%d, v%d" % (vVA + cc, sDK, vVA + cc)] for cc in range(4)])
        return L
    steady = tile(False)
    del rare[:]
    steady2 = tile(False)
    nr = len(rare)
    lastt = tile(True)
    if "peel" not in OPT: del rare[nr:]
    if TAB is not None:
        body = hoist_waits(auto_lgkm(steady2, entry_lines=steady, age=TAB.get("age")))
        lastb = hoist_waits(auto_lgkm(lastt, entry_lines=steady, age=TAB.get("age")))
    else:
        body = auto_lgkm(steady2, entry_lines=steady)
        lastb = auto_lgkm(lastt, entry_lines=steady)
    if "w0" in OPT:
        import re
        body = [re.sub(r"lgkmcnt\(\d+\)", "lgkmcnt(0)", x) if x.startswith("s_waitcnt lgkmcnt") else x for x in body]
    print("   attention steady tile: model %d cycles (%d/unit), %d instrs" % (model_cycles(body), model_cycles(body) / 6, len(body)))
    loop = a.label("Ltile")
    _stamp(a, 6, "s_memtime")
    a("s_mov_b32 s%d, 0" % sCNT)
    if RAMP:
        import re as _re
        nr2 = len(rare)
        tab_save = globals()["TAB"]; globals()["TAB"] = None
        assert "brend" not in OPT
        ramp_raw = tile(False)
        globals()["TAB"] = tab_save
        rb = auto_lgkm(ramp_raw, entry_lines=ramp_raw)
        cnt = [0]
        def _mod(x):
            if not x.startswith("s_waitcnt lgkmcnt"): return x
            cnt[0] += 1
            return "s_waitcnt lgkmcnt(0)" if cnt[0] % RAMP_EVERY == 0 else x
        rb = [_mod(x) for x in rb]
        lr = a.label("Lramp")
        if ALIGN_R is not None: a(".p2align 6")
        a("%s:" % lr)
        for x in rb: a(x)
        a("s_add_u32 s%d, s%d, 1" % (sCNT, sCNT)); a("s_cmp_lt_u32 s%d, %d" % (sCNT, RAMP)); a("s_cbranch_scc1 %s" % lr)
        a("s_waitcnt lgkmcnt(0)")
    if ALIGN_T is not None:
        a(".p2align 6")
        for _ in range(ALIGN_T): a("s_nop 0")
    a("%s:" % loop)
    for x in body: a(x)
    a("s_add_u32 s%d, s%d, 1" % (sCNT, sCNT)); a("s_cmp_lt_u32 s%d, %d" % (sCNT, 15 if "peel" in OPT else 16)); a("s_cbranch_scc1 %s" % loop)
    _stamp(a, 7, "s_memtime")
    if "peel" in OPT:
        for x in lastb: a(x)
    else: a("s_waitcnt lgkmcnt(0)")
    for x in rare_code(1, 2, True): a(x)
    a("v_add_f32 v%d, v%d, v%d" % (L_(2), L_(2), vS))
    a("s_nop 1")
    for m in pv_mfmas(2, 1): a(m)
    a("s_nop 7")
    stamp(a, 2, 12)
    for j in range(3):
        L = L_(j)
        a("v_mov_b32 v%d, v%d" % (vT, L)); a("s_nop 1"); a("v_permlane32_swap_b32 v%d, v%d" % (L, vT)); a("v_add_f32 v%d, v%d, v%d" % (L, L, vT))
        a("v_mov_b32 v%d, v%d" % (vT, L)); a("s_nop 1"); a("v_permlane16_swap_b32 v%d, v%d" % (L, vT)); a("v_add_f32 v%d, v%d, v%d" % (L, L, vT))
        a("v_rcp_f32 v%d, v%d" % (L, L))
    a("s_nop 1")
    def OA(s, j): return 96 + (s * 3 + j) * 4
    def OB(s, j): return 144 + (s * 3 + j) * 4
    for j in range(3):
        a("v_mov_b32 v%d, v%d" % (vT2, L_(j))); a("v_mov_b32 v%d, v%d" % (vT, L_(j)))
        for s in range(4):
            X, Y, D = O_(j, 2 * s), O_(j, 2 * s + 1), OA(s, j)
            for r in range(0, 4, 2):
                a("v_pk_mul_f32 %s, %s, %s" % (vr(X + r, 2), vr(X + r, 2), vr(vT, 2))); a("v_pk_mul_f32 %s, %s, %s" % (vr(Y + r, 2), vr(Y + r, 2), vr(vT, 2)))
            a("v_cvt_pk_bf16_f32 v%d, v%d, v%d" % (D + 0, X + 0, X + 1)); a("v_cvt_pk_bf16_f32 v%d, v%d, v%d" % (D + 1, X + 2, X + 3))
            a("v_cvt_pk_bf16_f32 v%d, v%d, v%d" % (D + 2, Y + 0, Y + 1)); a("v_cvt_pk_bf16_f32 v%d, v%d, v%d" % (D + 3, Y + 2, Y + 3))
    vA0, vA1 = 240, 241
    a("v_lshlrev_b32 v%d, 4, v%d" % (vT, vLANE))
    a("s_mul_i32 s%d, s%d, 12288" % (sT0, sWAVE)); a("s_add_u32 s%d, s%d, %d" % (sT0, sT0, EXCH)); a("v_add_u32 v%d, s%d, v%d" % (vA0, sT0, vT))
    a("s_xor_b32 s%d, s%d, 2" % (sT2, sWAVE)); a("s_mul_i32 s%d, s%d, 12288" % (sT0, sT2)); a("s_add_u32 s%d, s%d, %d" % (sT0, sT0, EXCH)); a("v_add_u32 v%d, s%d, v%d" % (vA1, sT0, vT))
    a("s_barrier")
    for i in range(12): a("ds_write_b128 v%d, %s offset:%d" % (vA0, vr(96 + 4 * i, 4), i * 1024))
    vAO, vST = 224, 228
    g, rp, c, t = 242, 243, 244, 245
    a("v_lshrrev_b32 v%d, 4, v%d" % (g, vLANE)); a("v_bfe_u32 v%d, v%d, 2, 2" % (rp, vLANE)); a("v_and_b32 v%d, 3, v%d" % (c, vLANE))
    a("v_lshlrev_b32 v%d, 2, v%d" % (t, g)); a("v_add_u32 v%d, v%d, v%d" % (t, t, rp))
    a("v_lshrrev_b32 v%d, 1, v%d" % (g, t)); a("v_and_b32 v%d, 3, v%d" % (g, g)); a("v_lshlrev_b32 v%d, 5, v%d" % (g, g))
    a("v_lshlrev_b32 v%d, 7, v%d" % (t, t)); a("v_add_u32 v%d, v%d, v%d" % (t, t, g)); a("v_lshlrev_b32 v%d, 3, v%d" % (c, c)); a("v_add_u32 v%d, v%d, v%d" % (t, t, c))
    a("s_lshl_b32 s%d, s%d, 6" % (sT0, sQI)); a("v_xor_b32 v%d, s%d, v%d" % (t, sT0, t))
    a("s_lshl_b32 s%d, s%d, 14" % (sT0, sQI)); a("s_xor_b32 s%d, s%d, 16384" % (sT1, sT0))
    a("v_add_u32 v%d, s%d, v%d" % (vAO + 0, sT0, t)); a("v_xor_b32 v%d, 32, v%d" % (vAO + 1, vAO + 0))
    a("v_add_u32 v%d, s%d, v%d" % (vAO + 2, sT1, t)); a("v_xor_b32 v%d, 32, v%d" % (vAO + 3, vAO + 2))
    a("s_mul_i32 s%d, s%d, 6144" % (sT0, sQI)); a("s_mul_i32 s%d, s%d, 3072" % (sT1, sRH)); a("s_add_u32 s%d, s%d, s%d" % (sT0, sT0, sT1))
    a("v_add_u32 v%d, s%d, v%d" % (vST, sT0, vT))
    a("s_waitcnt lgkmcnt(0)")
    a("s_barrier")
    for i in range(12): a("ds_read_b128 %s, v%d offset:%d" % (vr(144 + 4 * i, 4), vA1, i * 1024))
    stamp(a, 3, 13)
    assert PAIR % 256 == 0
    def AF(i): return 192 + 4 * (i % 8)
    def ACC(buf, z, j): return buf * 24 + (z * 3 + j) * 4
    def PK(buf, j): return 48 + buf * 12 + 4 * j
    def a_reads(G):
        c_, kk = divmod(G, 8)
        hs, s = (0, kk) if kk < 4 else (1, kk - 4)
        r = []
        for z in range(2):
            fr = AF(2 * G + z)
            r.append("ds_read_b64_tr_b16 %s, v%d offset:%d" % (vr(fr, 2), vAO + 2 * hs + z, s * 4096))
            r.append("ds_read_b64_tr_b16 %s, v%d offset:%d" % (vr(fr + 2, 2), vAO + 2 * hs + z, s * 4096 + 2048))
        return r
    LOOK = 3
    def slot_delta(c_from): return (-3 * PAIR if (16 + c_from + 1) % 4 == 0 else PAIR) & 0xffffffff
    for G in range(LOOK):
        for x in a_reads(G): a(x)
    vPW, vPWR = 229, 231
    a("v_lshlrev_b32 v%d, 4, v%d" % (vT, vLANE))
    a("s_mul_i32 s%d, s%d, 3072" % (sT0, sWAVE)); a("s_add_u32 s%d, s%d, %d" % (sT0, sT0, PB0)); a("v_add_u32 v%d, s%d, v%d" % (vPW, sT0, vT))
    a("s_mul_i32 s%d, s%d, %d" % (sT0, sWAVE, PAIR)); a("s_add_u32 s%d, s%d, 32768" % (sT0, sT0)); a("v_add_u32 v%d, s%d, v%d" % (vPWR, sT0, vT))
    a("v_add_u32 v%d, %d, v%d" % (vPW + 1, 156672, vT))
    sD, sDP, sSL = sDK, sNEG + 0, sSLOT
    sD, sDP = 56, 69
    a("s_mov_b32 s%d, 0" % sSLOT); a("s_mov_b32 s%d, 0" % sDP); a("s_mov_b32 s%d, 0x%x" % (sNEG, -3 * PAIR & 0xffffffff))
    def epilogue(buf):
        epi = []
        for j in range(3):
            d = PK(buf, j)
            for z in range(2):
                A_ = ACC(buf, z, j)
                epi.append("v_cvt_pk_bf16_f32 v%d, v%d, v%d" % (d + 2 * z, A_, A_ + 1)); epi.append("v_cvt_pk_bf16_f32 v%d, v%d, v%d" % (d + 2 * z + 1, A_ + 2, A_ + 3))
            epi.append("ds_write_b128 v%d, %s offset:%d" % (vPW + buf, vr(d, 4), j * 1024))
        return epi
    def o_step(buf, last):
        epi = epilogue(buf ^ 1)
        cvts = [x for x in epi if x.startswith("v_cvt")]; wrs = [x for x in epi if x.startswith("ds_write")]
        extra = {kk: {g: [] for g in range(6)} for kk in range(8)}
        if "ostep_old" in OPT:
            seq = epi; pos = [(1, 1), (1, 1), (1, 2), (1, 2), (1, 3), (1, 4), (1, 4), (1, 5), (2, 1), (2, 1), (2, 2), (2, 3), (2, 3), (2, 4), (2, 5)]
            for x, (kk, g) in zip(seq, pos): extra[kk][g].append(x)
        else:
            cpos = [(1, 0), (1, 1), (1, 2), (1, 3), (1, 4), (2, 0), (2, 1), (2, 2), (2, 3), (3, 0), (3, 1), (3, 2)]
            for x, (kk, g) in zip(cvts, cpos): extra[kk][g].append(x)
            for x, (kk, g) in zip(wrs, [(1, 5), (2, 5), (3, 4)]): extra[kk][g].append(x)
        for kk in range(8):
            G = kk
            hs, s = (0, kk) if kk < 4 else (1, kk - 4)
            rd = []; barrier = (kk == 5)
            if kk == 4 and not last:
                extra[4][4] += ["s_add_u32 s%d, s%d, 1" % (sSLOT, sSLOT), "s_and_b32 s%d, s%d, 3" % (sSLOT, sSLOT)]
                extra[4][5] += ["s_cmp_eq_u32 s%d, 0" % sSLOT, "s_cselect_b32 s%d, s%d, %d" % (sD, sNEG, PAIR)]
            pre = []
            if kk == 5 and not last:
                pre += ["v_add_u32 v%d, s%d, v%d" % (vAO + 0, sD, vAO + 0), "v_add_u32 v%d, s%d, v%d" % (vAO + 1, sD, vAO + 1)]
                extra[6][4].append("s_mov_b32 s%d, s%d" % (sDP, sD))
            if kk == 0:
                extra[0][4].append("v_add_u32 v%d, s%d, v%d" % (vAO + 2, sDP, vAO + 2)); extra[0][5].append("v_add_u32 v%d, s%d, v%d" % (vAO + 3, sDP, vAO + 3))
            if kk == 4 and buf == 0: extra[4][3].append("v_mov_b32 v%d, v%d" % (vPW + 1, vPWR))
            if not (last and kk + LOOK >= 8): rd = a_reads(G + LOOK)
            younger = 4 * (LOOK - 1) if not last else 4 * min(LOOK - 1, 7 - kk)
            if barrier: younger = min(younger, 4)
            a("s_waitcnt lgkmcnt(%d)" % younger)
            if barrier: a("s_barrier")
            for x in pre: a(x)
            mf = []
            for z in range(2):
                for j in range(3):
                    bsrc = OA(s, j) if hs == 0 else OB(s, j)
                    cc = "0" if kk == 0 else vr(ACC(buf, z, j), 4)
                    mf.append("%s %s, %s, %s, %s" % (MF, vr(ACC(buf, z, j), 4), vr(AF(2 * G + z), 4), vr(bsrc, 4), cc))
            fill = spread(rd, [0, 1, 2, 3]) if rd else {}
            fill = merge(fill, extra[kk])
            for x in interleave(mf, fill): a(x)
    lo = a.label("Lo")
    a("s_mov_b32 s%d, 0" % sCNT)
    if ALIGN_O is not None:
        a(".p2align 6")
        for _ in range(ALIGN_O): a("s_nop 0")
    a("%s:" % lo)
    o_step(0, False); o_step(1, False)
    a("s_add_u32 s%d, s%d, 1" % (sCNT, sCNT)); a("s_cmp_lt_u32 s%d, 4" % sCNT); a("s_cbranch_scc1 %s" % lo)
    o_step(0, True)
    a("s_nop 7")
    for x in epilogue(0): a(x)
    a("s_waitcnt lgkmcnt(0)")
    a("s_barrier")
    stamp(a, 4, 14)
    stamp(a, 5)
    stamp_flush(a)
    a("v_mov_b32 v1, v%d" % vLANE)
    a("s_mov_b32 s%d, s%d" % (sCNT, sWAVE))
    a("s_branch L_reduce")
    for r in rare: a(r)

def mk_srd(a, b, lo, hi, off, size):
    a("s_add_u32 s%d, s%d, s%d" % (b, lo, off)); a("s_addc_u32 s%d, s%d, 0" % (b + 1, hi)); a("s_mov_b32 s%d, %d" % (b + 2, size)); a("s_mov_b32 s%d, 0x20000" % (b + 3))

def late_srds(a, role):
    a("s_lshl_b32 s%d, s%d, 4" % (sT0, sB)); a("s_add_u32 s%d, s%d, s%d" % (sT0, sT0, sH))
    if role == "kv":
        a("s_lshl_b32 s%d, s%d, 18" % (sT1, sT0)); mk_srd(a, sK, 6, 7, sT1, 262144); mk_srd(a, sV, 8, 9, sT1, 262144)
        a("s_mul_i32 s%d, s%d, %d" % (sT1, sT0, PART)); a("s_add_u32 s%d, s%d, %d" % (sT1, sT1, WS_PART)); mk_srd(a, sP, 18, 19, sT1, PART)
    if role == "w":
        if "kv4" in OPT: a("s_lshl_b32 s%d, s%d, 18" % (sT1, sT0)); mk_srd(a, sK, 6, 7, sT1, 262144); mk_srd(a, sV, 8, 9, sT1, 262144)
        a("s_mul_i32 s%d, s%d, 294912" % (sT1, sH)); mk_srd(a, sWO, 12, 13, sT1, 294912)
    a("s_mul_i32 s%d, s%d, 110592" % (sT1, sB)); mk_srd(a, sOUT, 14, 15, sT1, 110592)
    a("s_mul_i32 s%d, s%d, %d" % (sT1, sB, 16 * PART)); a("s_add_u32 s%d, s%d, %d" % (sT1, sT1, WS_PART)); mk_srd(a, sPB, 18, 19, sT1, 16 * PART)
    a("s_mul_i32 s%d, s%d, %d" % (sT1, sB, 9 * 128)); a("s_add_u32 s%d, s%d, %d" % (sT1, sT1, WS_FLAG)); mk_srd(a, sFL, 18, 19, sT1, 9 * 128)
    if STAMP:
        a("s_lshl_b32 s%d, s2, 9" % sT1); a("s_add_u32 s%d, s18, s%d" % (sSTAMP, sT1)); a("s_addc_u32 s%d, s19, 0" % (sSTAMP + 1))

def early_srds(a):
    a("s_mul_i32 s%d, s%d, 110592" % (sT1, sB)); mk_srd(a, sX, 4, 5, sT1, 110592)
    a("s_lshl_b32 s%d, s%d, 9" % (sT1, sH)); mk_srd(a, sWQ, 10, 11, sT1, 0); a("s_sub_u32 s%d, 4718592, s%d" % (sWQ + 2, sT1))

def gen_k1():
    a = Asm(); a.stamp_wave = 0; a.stamp_tmp = 252
    if STAMP: a("s_memrealtime s[84:85]")
    a("s_cmp_ge_u32 s2, 256"); a("s_cbranch_scc1 L_k1_end")
    a("s_load_dwordx8 s[4:11], s[0:1], 0")
    a("s_load_dwordx4 s[12:15], s[0:1], 32")
    a("s_load_dwordx4 s[16:19], s[0:1], 48")
    a("v_lshrrev_b32 v1, 6, v0")
    a("s_and_b32 s%d, s2, 7" % sXCD); a("s_lshr_b32 s%d, s2, 3" % sIDX)
    a("v_readfirstlane_b32 s%d, v1" % sWAVE)
    a("s_and_b32 s%d, s%d, 1" % (sB, sXCD)); a("s_lshl_b32 s%d, s%d, 3" % (sB, sB)); a("s_and_b32 s%d, s%d, 7" % (sT2, sIDX)); a("s_add_u32 s%d, s%d, s%d" % (sB, sB, sT2))
    a("s_lshr_b32 s%d, s%d, 1" % (sH, sXCD)); a("s_lshl_b32 s%d, s%d, 2" % (sH, sH)); a("s_lshr_b32 s%d, s%d, 3" % (sT2, sIDX)); a("s_add_u32 s%d, s%d, s%d" % (sH, sH, sT2))
    a("v_and_b32 v1, 63, v0")
    a("s_sub_u32 s%d, s%d, 4" % (sLW, sWAVE))
    a("s_cmp_lt_u32 s%d, 2" % sLW); a("s_cbranch_scc0 L_notw")
    a.stamp_wave = 4; a.stamp_tmp = 40
    if STAMP: a("v_mov_b32 v40, 0")
    gen_wloader(a)
    a("L_notw:")
    a("s_cmp_ge_u32 s%d, 4" % sWAVE); a("s_cbranch_scc1 L_kvloader")
    a.stamp_wave = 0
    a("s_waitcnt lgkmcnt(0)")
    late_srds(a, "c")
    gen_compute(a)
    a("L_kvloader:")
    a.stamp_wave = 4
    if STAMP: a("v_mov_b32 v40, 0")
    a("s_waitcnt lgkmcnt(0)")
    late_srds(a, "kv")
    gen_kvloader(a)
    gen_reducer(a)
    a("L_k1_end:")
    a("s_endpgm")
    return a.text()

def build(fn, stamp=False, opt=()):
    global STAMP, OPT
    STAMP = stamp; OPT = set(opt)
    k1 = gen_k1()
    errs = hazard.check(k1, "k1")
    for e in errs[:10]: print(e)
    if errs: print("k1: %d hazard warnings" % len(errs))
    txt = HEADER + "; @launch grid=(256,1,1) block=(512,1,1) lds=%d\n" % LDS_BYTES
    txt += '.amdgcn_target "amdgcn-amd-amdhsa--gfx950"\n.text\n' + kernel_begin(KNAME) + k1 + '\n.section .rodata,"a"\n.p2align 6\n' + kernel_desc(KNAME, 256, 102, 256)
    open(fn, "w").write(txt)
    print(fn, len(txt), "bytes,", txt.count("\n"), "lines")

if __name__ == "__main__":
    def pieces(start, per):
        d = {}; st = start
        for kind in "KV":
            for lo in range(0, 8, per):
                d.setdefault(st, []).append((kind, 0, lo, lo + per)); st += 1
        return d
    def mk(start, per, i1at):
        d = pieces(start, per)
        d.setdefault(i1at, []).extend([("K", 1), ("V", 1)])
        d.setdefault(19, []).extend([("K", 2), ("V", 2)])
        return d
    PF0 = 0
    O = ["rotq", "nopfq", "notlb"]
    KSCHED = mk(12, 4, 18)
    TAB = None
    D = O + ["dot2", "split0"]
    C = D + ["cpf0"]
    RAMP = 2; ALIGN_T = 0; ALIGN_R = 0
    build("v8.s", False, C); build("v8_st.s", True, C)
```

```python
import sys, struct
from asmlib import *
import hazard
from sched import Item, schedule, auto_lgkm, model_cycles

def f32(x): return "0x%08x" % struct.unpack("<I", struct.pack("<f", x))[0]
C_SCALE = 1.4426950408889634 / (128 ** 0.5)

PAIR = 35840
KGRP, VGRP = 1088, 1152
VOFF = 16 * KGRP
WBASE = 2 * PAIR
XBASE = WBASE + 4 * 16384
XSLOT = 12288
EXCH = 3 * PAIR
LDS_BYTES = 163840
PART = 108 * 1024
WS_PART = 1 << 20
WS_FLAG = 1 << 19
KNAME = 'standalone__gqa_block_cached__near_ridge_kernel'
OPT = set()
STAMP = False

sK, sV, sX, sWQ, sWO, sP = 20, 24, 28, 32, 36, 40
sWAVE, sB, sH, sLW = 44, 45, 46, 47
sT0, sT1, sT2, sT3 = 48, 49, 50, 51
sLWK, sLW3072, sLWV, sLW4096 = 52, 53, 59, 66
sTHR, sCNT, sDK, sNEG, sSLOT = 54, 55, 56, 57, 58
sSTAMP = 60
sTM = 62
sQI, sRH = 64, 65
sXCD, sIDX = 67, 68
sPF = 72
sPF2 = 76
sFL = 8
sPB = 4
sOUT = 12
def srd(b): return "s[%d:%d]" % (b, b + 3)
def vr(b, n=1): return "v%d" % b if n == 1 else "v[%d:%d]" % (b, b + n - 1)

def _stamp(a, idx, instr):
    if not STAMP: return
    a("%s s[%d:%d]" % (instr, sTM, sTM + 1)); a("s_waitcnt lgkmcnt(0)")
    if a.stamp_wave == 0: a("s_mov_b32 s%d, s%d" % (80 + idx, sTM))
    else: a("v_writelane_b32 v40, s%d, %d" % (sTM, idx))
def stamp(a, idx, cyc=None):
    _stamp(a, idx, "s_memrealtime")
    if cyc is not None: _stamp(a, cyc, "s_memtime")
DBG_WG = 37
def stamp_flush(a):
    if not STAMP: return
    if "dbg" in OPT:
        sk = a.label("Ldbgs")
        a("s_cmp_lg_u32 s2, %d" % DBG_WG); a("s_cbranch_scc1 %s" % sk)
        a("s_cmp_lg_u32 s%d, %d" % (sWAVE, a.stamp_wave)); a("s_cbranch_scc1 %s" % sk)
        a("v_mov_b32 v1, 0")
        if a.stamp_wave == 0:
            for dw, (j, j0) in zip((1, 2, 3, 5, 6, 7, 9, 10, 11), ((1, 0), (2, 0), (3, 0), (4, 0), (11, 10), (12, 11), (13, 12), (14, 13), (7, 6))):
                a("s_sub_u32 s%d, s%d, s%d" % (sT0, 80 + j, 80 + j0)); a("v_mov_b32 v2, s%d" % sT0); a("global_store_dword v1, v2, s[16:17] offset:%d" % (4 * dw))
        else:
            a("v_readlane_b32 s%d, v40, 15" % sT0); a("v_readlane_b32 s%d, v40, 16" % sT1); a("s_nop 3"); a("s_sub_u32 s%d, s%d, s%d" % (sT0, sT0, sT1)); a("v_mov_b32 v2, s%d" % sT0)
            a("global_store_dword v1, v2, s[16:17] offset:52")
            a("v_readlane_b32 s%d, v40, 36" % sT0); a("s_nop 3"); a("s_sub_u32 s%d, s%d, s%d" % (sT0, sT0, sT1)); a("v_mov_b32 v2, s%d" % sT0)
            a("global_store_dword v1, v2, s[16:17] offset:56")
        a("%s:" % sk)
        return
    sk = a.label("Lst")
    a("s_cmp_lg_u32 s%d, %d" % (sWAVE, a.stamp_wave)); a("s_cbranch_scc1 %s" % sk)
    if a.stamp_wave == 0:
        a("v_mov_b32 v1, 0")
        for i in range(16):
            if i in (8, 9, 15): continue
            a("v_mov_b32 v2, s%d" % (80 + i)); a("global_store_dword v1, v2, s[%d:%d] offset:%d" % (sSTAMP, sSTAMP + 1, 4 * i))
    else:
        a("v_and_b32 v2, 63, v0"); a("v_lshlrev_b32 v3, 2, v2")
        a("v_cmp_lt_u32 vcc, 14, v2"); a("v_cmp_eq_u32 s[96:97], 8, v2"); a("s_or_b64 vcc, vcc, s[96:97]"); a("v_cmp_eq_u32 s[96:97], 9, v2"); a("s_or_b64 vcc, vcc, s[96:97]")
        a("s_and_saveexec_b64 s[96:97], vcc")
        a("global_store_dword v3, v40, s[%d:%d]" % (sSTAMP, sSTAMP + 1))
        a("s_mov_b64 exec, s[96:97]")
    a("%s:" % sk)

def common_prologue(a, endlab, nwg):
    if STAMP: a("s_memrealtime s[84:85]")
    a("s_cmp_ge_u32 s2, %d" % nwg); a("s_cbranch_scc1 %s" % endlab)
    a("s_load_dwordx8 s[4:11], s[0:1], 0")
    a("s_load_dwordx4 s[12:15], s[0:1], 32")
    a("s_load_dwordx4 s[16:19], s[0:1], 48")
    a("v_lshrrev_b32 v1, 6, v0")
    a("s_nop 0")
    a("v_readfirstlane_b32 s%d, v1" % sWAVE)
    a("s_waitcnt lgkmcnt(0)")

class VQ:
    def __init__(s): s.q = []
    def issue(s, tag, n=1): s.q += [tag] * n
    def wait(s, tags):
        idx = [i for i, t in enumerate(s.q) if t in tags]
        if not idx: return None
        last = max(idx); n = len(s.q) - 1 - last
        s.q = s.q[last + 1:]
        return min(n, 63)

KV_FLAGS = " nt"
W_FLAGS = ""
O_FLAGS = ""
P_FLAGS = " sc0 sc1"


def gen_loader(a):
    a("s_sub_u32 s%d, s%d, 4" % (sLW, sWAVE))
    a("v_and_b32 v1, 63, v0")
    if STAMP: a("v_mov_b32 v40, 0")
    a("s_cmp_ge_u32 s%d, 2" % sLW); a("s_cbranch_scc1 L_kvloader")
    gen_wloader(a)
    a("L_kvloader:")
    gen_kvloader(a)

def mk_bar(a, q, trace_base=None):
    def bar(tags):
        n = q.wait(tags) if tags else None
        if n is not None and "nowait" not in OPT: a("s_waitcnt vmcnt(%d)" % n)
        if "trace" in OPT and bar.n < 48 and trace_base is not None: stamp(a, 16 + bar.n)
        a("s_barrier")
        bar.n += 1
    bar.n = 0
    return bar

def dma(a, vreg, srdb, soff, imm, flags):
    if "noload" in OPT: return
    a("buffer_load_dwordx4 v%d, %s, s%d offen offset:%d%s lds" % (vreg, srd(srdb), soff, imm, flags))

def emit_pf(a, chunks, lane=1):
    if not chunks: return
    sk = a.label("Lpfq"); skx = a.label("Lpfx")
    a("s_cmp_ge_u32 s%d, 28" % sIDX); a("s_cbranch_scc1 %s" % sk)
    a("s_cmp_ge_u32 s%d, 16" % sIDX); a("s_cbranch_scc1 %s" % skx)
    a("v_lshrrev_b32 v30, 4, v%d" % lane); a("v_and_b32 v31, 15, v%d" % lane)
    a("s_lshl_b32 s%d, s%d, 2" % (sT0, sIDX)); a("v_add_u32 v30, s%d, v30" % sT0); a("v_lshlrev_b32 v30, 13, v30"); a("v_lshlrev_b32 v31, 7, v31"); a("v_add_u32 v30, v30, v31")
    for cp in chunks:
        if isinstance(cp, int): a("s_mov_b32 s%d, %d" % (sT0, cp * 64 * 8192))
        else: a("s_lshl_b32 s%d, s%d, 19" % (sT0, cp[0])); a("s_add_u32 s%d, s%d, %d" % (sT0, sT0, cp[1] * 64 * 8192))
        a("buffer_load_dword v32, v30, %s, s%d offen" % (srd(sPF), sT0))
    a("s_branch %s" % sk)
    a("%s:" % skx)
    a("s_sub_u32 s%d, s%d, 16" % (sT0, sIDX)); a("s_lshl_b32 s%d, s%d, 6" % (sT0, sT0)); a("v_add_u32 v30, s%d, v%d" % (sT0, lane)); a("v_mul_u32_u24 v30, 1152, v30")
    for cp in chunks:
        if isinstance(cp, int): a("s_mov_b32 s%d, %d" % (sT0, cp * 128))
        else: a("s_lshl_b32 s%d, s%d, 7" % (sT0, cp[0])); a("s_add_u32 s%d, s%d, %d" % (sT0, sT0, cp[1] * 128))
        a("buffer_load_dword v32, v30, %s, s%d offen" % (srd(sPF2), sT0))
    a("%s:" % sk)

def code_prefetch(a, lane=1):
    if "nocpf" in OPT: return
    lab = a.label("Lcpf")
    a("s_getpc_b64 s[94:95]")
    a("%s:" % lab)
    a("s_sub_u32 s94, s94, (%s - %s)" % (lab, KNAME)); a("s_subb_u32 s95, s95, 0")
    a("s_lshl_b32 s%d, s%d, 11" % (sT0, sIDX))
    a("v_and_b32 v34, 15, v%d" % lane); a("v_lshlrev_b32 v34, 7, v34"); a("v_add_u32 v34, s%d, v34" % sT0)
    a("v_min_u32 v34, (L_k1_end - %s), v34" % KNAME)
    a("global_load_dword v35, v34, s[94:95]")

def attn_kv4(a, is_w, iss_O=None, cpf=None):
    vK4, vV4 = 18, 19
    sL4, sMK, sMV, sTK, sKS = 86, 88, 89, 87, 90
    a("s_sub_u32 s%d, s%d, 4" % (sL4, sWAVE))
    a("v_lshrrev_b32 v2, 4, v1"); a("v_and_b32 v3, 15, v1")
    a("s_lshl_b32 s%d, s%d, 12" % (sT0, sL4)); a("v_lshlrev_b32 v4, 8, v2"); a("v_add_u32 v4, s%d, v4" % sT0)
    a("v_xor_b32 v5, v2, v3"); a("v_lshlrev_b32 v5, 4, v5"); a("v_add_u32 v%d, v4, v5" % vK4)
    a("v_lshlrev_b32 v5, 1, v2"); a("v_xor_b32 v5, v5, v3"); a("v_lshlrev_b32 v5, 4, v5"); a("v_add_u32 v%d, v4, v5" % vV4)
    a("s_mul_i32 s%d, s%d, %d" % (sMK, sL4, 4 * KGRP)); a("s_mul_i32 s%d, s%d, %d" % (sMV, sL4, 4 * VGRP)); a("s_add_u32 s%d, s%d, %d" % (sMV, sMV, VOFF))
    a("s_mov_b32 s%d, %d" % (sTK, 3 * 16384)); a("s_mov_b32 s%d, %d" % (sKS, 3 * PAIR))
    def w(n):
        if "nowait" not in OPT: a("s_waitcnt vmcnt(%d)" % n)
    def item():
        a("s_add_u32 s%d, s%d, s%d" % (sT1, sMK, sKS)); a("s_add_u32 s%d, s%d, s%d" % (sT2, sMV, sKS))
        for isK in (True, False):
            grp = KGRP if isK else VGRP
            for ii in range(4):
                a("s_add_u32 m0, s%d, %d" % (sT1 if isK else sT2, ii * (grp - 1024))); a("s_nop 0")
                dma(a, vK4 if isK else vV4, sK if isK else sV, sTK, ii * 1024, KV_FLAGS)
        a("s_add_u32 s%d, s%d, 16384" % (sTK, sTK))
        a("s_add_u32 s%d, s%d, %d" % (sKS, sKS, PAIR)); a("s_cmp_eq_u32 s%d, %d" % (sKS, 4 * PAIR)); a("s_cselect_b32 s%d, 0, s%d" % (sKS, sKS))
    if not is_w: w(16)
    a("s_barrier")
    item()
    lab = a.label("Lkv4"); a("s_mov_b32 s%d, 2" % sCNT); a("%s:" % lab)
    w(8)
    a("s_barrier")
    item()
    if is_w:
        sk = a.label("Lc4"); a("s_cmp_lg_u32 s%d, %d" % (sCNT, CPF_AT)); a("s_cbranch_scc1 %s" % sk); cpf(); a("%s:" % sk)
    a("s_add_u32 s%d, s%d, 1" % (sCNT, sCNT)); a("s_cmp_lt_u32 s%d, 14" % sCNT); a("s_cbranch_scc1 %s" % lab)
    w(8); a("s_barrier")
    if is_w: iss_O()
    w(16 if is_w else 0); a("s_barrier")
    if is_w: iss_O()
    if is_w: w(16)
    a("s_barrier")
    if is_w: iss_O()

def gen_wloader(a):
    vW, vX, vO = 10, 14, 16
    a.stamp_wave = 4
    sA, sBb = sLWK, sLWV
    a("v_lshrrev_b32 v6, 5, v1"); a("v_and_b32 v7, 31, v1")
    a("s_lshl_b32 s%d, s%d, 17" % (sT1, sLW))
    a("v_lshlrev_b32 v8, 13, v6"); a("v_add_u32 v8, s%d, v8" % sT1)
    for var in range(4):
        a("v_add_u32 v5, %d, v6" % (2 * (var & 1) + 4 * (var >> 1))); a("v_lshlrev_b32 v5, 1, v5"); a("v_xor_b32 v5, v5, v7")
        a("v_lshlrev_b32 v5, 4, v5"); a("v_add_u32 v%d, v8, v5" % (vW + var))
    a("v_lshrrev_b32 v6, 3, v1"); a("v_and_b32 v7, 7, v1")
    a("s_mul_i32 s%d, s%d, 48" % (sT1, sLW)); a("v_add_u32 v8, s%d, v6" % sT1); a("v_mul_u32_u24 v8, 1152, v8")
    a("v_lshrrev_b32 v9, 1, v6")
    for i in range(2):
        a("v_add_u32 v5, %d, v9" % (4 * i)); a("v_xor_b32 v5, v5, v7"); a("v_lshlrev_b32 v5, 4, v5"); a("v_add_u32 v%d, v8, v5" % (vX + i))
    a("v_mul_u32_u24 v8, 1152, v6")
    a("v_and_b32 v5, 3, v9"); a("v_lshlrev_b32 v5, 1, v5"); a("v_xor_b32 v5, v5, v7"); a("v_lshlrev_b32 v5, 4, v5"); a("v_add_u32 v%d, v8, v5" % vO)
    a("s_lshl_b32 s%d, s%d, 13" % (sA, sLW))
    a("s_mul_i32 s%d, s%d, 6144" % (sBb, sLW))
    a("s_lshl_b32 s%d, s%d, 14" % (sLW4096, sLW))
    a("s_mul_i32 s%d, s%d, %d" % (sLW3072, sLW, 128 * 1152))
    sWK, sXK, sOK = 98, 99, 100
    sWS, sXS, sOS = 93, 92, 91
    A_, SI, B_, SJ = ROTQ
    a("s_and_b32 s%d, s%d, 7" % (sT0, sIDX)); a("s_lshr_b32 s%d, s%d, %d" % (sT0, sT0, SI)); a("s_mul_i32 s%d, s%d, %d" % (sT0, sT0, A_))
    a("s_lshr_b32 s%d, s%d, %d" % (sT1, sIDX, 3 + SJ)); a("s_mul_i32 s%d, s%d, %d" % (sT1, sT1, B_)); a("s_add_u32 s%d, s%d, s%d" % (sT0, sT0, sT1))
    for _ in range(2): a("s_cmp_ge_u32 s%d, 9" % sT0); a("s_cselect_b32 s%d, 9, 0" % sT1); a("s_sub_u32 s%d, s%d, s%d" % (sT0, sT0, sT1))
    a("s_lshl_b32 s%d, s%d, 19" % (sWK, sT0)); a("s_lshl_b32 s%d, s%d, 7" % (sXK, sT0))
    a("s_and_b32 s%d, s%d, 7" % (sT0, sB)); a("s_lshl_b32 s%d, s%d, 7" % (sOK, sT0))
    a("s_mov_b32 s%d, %d" % (sWS, 2 * 16384)); a("s_mov_b32 s%d, 0" % sXS); a("s_mov_b32 s%d, 0" % sOS)
    a("s_add_u32 s%d, s%d, %d" % (sA, sA, WBASE)); a("s_add_u32 s%d, s%d, %d" % (sBb, sBb, XBASE))
    def adv(reg, step, wrap):
        a("s_add_u32 s%d, s%d, %d" % (reg, reg, step)); a("s_cmp_eq_u32 s%d, %d" % (reg, wrap)); a("s_cselect_b32 s%d, 0, s%d" % (reg, reg))
    def iss_W():
        a("s_add_u32 m0, s%d, s%d" % (sA, sWS))
        for ii in range(8):
            if ii == 4: a("s_add_u32 m0, m0, 4096")
            a("s_add_u32 s%d, s%d, %d" % (sT0, sWK, 16384 * ii - (ii & 3) * 1024))
            dma(a, vW + (ii & 1) + 2 * (ii >> 2), sWQ, sT0, (ii & 3) * 1024, W_FLAGS)
        adv(sWK, 262144, 18 * 262144); adv(sWS, 16384, 65536)
    def iss_X():
        a("s_add_u32 m0, s%d, s%d" % (sBb, sXS))
        for ii in range(6):
            if ii == 4: a("s_add_u32 m0, m0, 4096")
            a("s_add_u32 s%d, s%d, %d" % (sT0, sXK, 9216 * ii - (ii & 3) * 1024))
            dma(a, vX + (ii & 1), sX, sT0, (ii & 3) * 1024, W_FLAGS)
        adv(sXK, 128, 9 * 128); a("s_xor_b32 s%d, s%d, %d" % (sXS, sXS, XSLOT))
    def iss_O():
        a("s_add_u32 s%d, s%d, s%d" % (sT1, sLW3072, sOK))
        a("s_add_u32 m0, s%d, s%d" % (sLW4096, sOS))
        for ii in range(16):
            if ii % 4 == 0 and ii: a("s_add_u32 m0, m0, 4096")
            a("s_add_u32 s%d, s%d, %d" % (sT0, sT1, 9216 * ii - (ii & 3) * 1024))
            dma(a, vO, sWO, sT0, (ii & 3) * 1024, O_FLAGS)
        adv(sOK, 128, 9 * 128); adv(sOS, PAIR, 4 * PAIR)
    tr = [16]
    def bar(w=None):
        if w is not None and "nowait" not in OPT: a("s_waitcnt vmcnt(%d)" % w)
        a("s_barrier")
    def loop(n, body, name):
        lab = a.label(name)
        a("s_mov_b32 s%d, 0" % sCNT); a("%s:" % lab)
        body()
        a("s_add_u32 s%d, s%d, 1" % (sCNT, sCNT)); a("s_cmp_lt_u32 s%d, %d" % (sCNT, n)); a("s_cbranch_scc1 %s" % lab)
    a("s_waitcnt lgkmcnt(0)")
    early_srds(a)
    if STAMP: a("v_writelane_b32 v40, s84, 16"); stamp(a, 17)
    if "look2" not in OPT:
        if "split0" in OPT:
            li = a.label("Lwi"); sk0 = a.label("Lwi0")
            a("s_mov_b32 s%d, 0" % sCNT); a("%s:" % li)
            iss_X(); iss_W(); iss_W()
            a("s_cmp_lg_u32 s%d, 0" % sCNT); a("s_cbranch_scc1 %s" % sk0)
            late_srds(a, "w")
            if STAMP: stamp(a, 18)
            if "nowait" not in OPT: a("s_waitcnt vmcnt(8)")
            if STAMP: stamp(a, 19)
            bar(None)
            a("s_mov_b32 s%d, 1" % sCNT); a("s_branch %s" % li)
            a("%s:" % sk0)
        else:
            loop(2, lambda: (iss_X(), iss_W(), iss_W()), "Lwi")
            bar(30)
        bar(22)
        iss_W()
        def qbody():
            bar(16)
            iss_X(); iss_W()
            bar(22)
            sk = a.label("Lwl"); a("s_cmp_eq_u32 s%d, 6" % sCNT); a("s_cbranch_scc1 %s" % sk)
            iss_W()
            a("%s:" % sk)
        loop(7, qbody, "Lwq")
        bar(8)
        bar(0)
    else:
        if STAMP: stamp(a, 17)
        iss_X(); iss_W(); iss_W()
        if STAMP: stamp(a, 18)
        def qbody():
            bar(8)
            iss_X(); iss_W()
            bar(14)
            iss_W()
        loop(8, qbody, "Lwq")
        bar(8)
        bar(0)
    bar(None); bar(None)
    stamp(a, 8)
    def cpf():
        sk = a.label("Lcp"); a("s_cmp_lg_u32 s%d, 1" % sLW); a("s_cbranch_scc1 %s" % sk); code_prefetch(a); a("%s:" % sk)
    if "kv4" in OPT: attn_kv4(a, True, iss_O, cpf)
    else:
        loop(CPF_AT, lambda: bar(None), "Lwa")
        cpf()
        loop(13 - CPF_AT, lambda: bar(None), "Lwb")
        loop(2, lambda: (bar(None), iss_O()), "Lwo")
        bar(16)
        iss_O()
    a("s_barrier"); a("s_barrier")
    loop(6, lambda: (bar(16), iss_O()), "Lwp")
    bar(0)
    a("s_barrier"); a("s_barrier"); a("s_barrier")
    stamp(a, 9)
    a("s_add_u32 s%d, s%d, 4" % (sCNT, sLW))
    a("s_branch L_reduce")

def gen_kvloader(a):
    vK, vV = 10, 11
    a.stamp_wave = -1
    a("s_sub_u32 s%d, s%d, 2" % (sLW, sLW))
    a("v_lshrrev_b32 v2, 4, v1"); a("v_and_b32 v3, 15, v1")
    a("s_lshl_b32 s%d, s%d, 13" % (sT0, sLW))
    a("v_lshlrev_b32 v4, 8, v2"); a("v_add_u32 v4, s%d, v4" % sT0)
    a("v_xor_b32 v5, v2, v3"); a("v_lshlrev_b32 v5, 4, v5"); a("v_add_u32 v%d, v4, v5" % vK)
    a("v_lshlrev_b32 v5, 1, v2"); a("v_xor_b32 v5, v5, v3"); a("v_lshlrev_b32 v5, 4, v5"); a("v_add_u32 v%d, v4, v5" % vV)
    a("s_mul_i32 s%d, s%d, %d" % (sLWK, sLW, 8 * KGRP)); a("s_mul_i32 s%d, s%d, %d" % (sLWV, sLW, 8 * VGRP))
    sROT = 92
    if "krot" in OPT:
        a("s_mul_i32 s%d, s%d, %d" % (sROT, sXCD, KROT[0])); a("s_mul_i32 s%d, s%d, %d" % (sT0, sIDX, KROT[1])); a("s_add_u32 s%d, s%d, s%d" % (sROT, sROT, sT0))
    q = VQ(); bar = mk_bar(a, q, None)
    def iss(T, isK, lo=0, hi=8):
        for ii in range(lo, hi):
            if "krot" in OPT:
                if ii == lo: a("s_add_u32 s%d, s%d, %d" % (sT2, sROT, T)); a("s_and_b32 s%d, s%d, 15" % (sT2, sT2)); a("s_lshl_b32 s%d, s%d, 14" % (sT2, sT2))
                if ii % 4 == 0 or ii == lo: a("s_add_u32 s%d, s%d, %d" % (sT0, sT2, (ii >> 2) * 4096))
            elif ii % 4 == 0 or ii == lo: a("s_mov_b32 s%d, %d" % (sT0, T * 16384 + (ii >> 2) * 4096))
            grp = KGRP if isK else VGRP
            a("s_add_u32 m0, s%d, %d" % (sLWK if isK else sLWV, (T % 4) * PAIR + (0 if isK else VOFF) + ii * grp - (ii & 3) * 1024))
            if ii % 4: a("s_nop 0")
            else: a("s_nop 0")
            dma(a, vK if isK else vV, sK if isK else sV, sT0, (ii & 3) * 1024, KV_FLAGS)
        q.issue("I%d" % T, hi - lo)
    def prefetch_q():
        sk = a.label("Lpfq"); skx = a.label("Lpfx")
        a("s_cmp_lg_u32 s%d, %d" % (sLW, PF_WAVE)); a("s_cbranch_scc1 %s" % sk)
        a("s_cmp_ge_u32 s%d, 28" % sIDX); a("s_cbranch_scc1 %s" % sk)
        a("s_cmp_ge_u32 s%d, 16" % sIDX); a("s_cbranch_scc1 %s" % skx)
        a("s_lshl_b32 s%d, s%d, 2" % (sT0, sIDX)); a("v_add_u32 v5, s%d, v2" % sT0); a("v_lshlrev_b32 v5, 13, v5"); a("v_lshlrev_b32 v6, 7, v3"); a("v_add_u32 v5, v5, v6")
        for cp in range(PF_FIRST, 9):
            a("s_mov_b32 s%d, %d" % (sT0, cp * 64 * 8192)); a("buffer_load_dword v%d, v5, %s, s%d offen" % (20 + cp, srd(sPF), sT0))
        a("s_branch %s" % sk)
        a("%s:" % skx)
        a("s_sub_u32 s%d, s%d, 16" % (sT0, sIDX)); a("s_lshl_b32 s%d, s%d, 6" % (sT0, sT0)); a("v_add_u32 v5, s%d, v1" % sT0); a("v_mul_u32_u24 v5, 1152, v5")
        for cp in range(PF_FIRST, 9):
            a("s_mov_b32 s%d, %d" % (sT0, cp * 128)); a("buffer_load_dword v%d, v5, %s, s%d offen" % (20 + cp, srd(sPF2), sT0))
        a("%s:" % sk)
    def clear_flags():
        sk = a.label("Lclr")
        a("s_cmp_lg_u32 s%d, 1" % sLW); a("s_cbranch_scc1 %s" % sk)
        a("v_mov_b32 v20, 0"); a("v_mov_b32 v21, 0")
        a("s_lshl_b32 s%d, s%d, 3" % (sT0, sH))
        a("v_lshlrev_b32 v5, 7, v1"); a("v_add_u32 v5, s%d, v5" % sT0); a("v_mov_b32 v7, 0x40000000"); a("v_cmp_gt_u32 vcc, 9, v1"); a("s_nop 1"); a("v_cndmask_b32 v5, v7, v5, vcc")
        a("buffer_store_dwordx2 v[20:21], v5, %s, 0 offen sc0 sc1" % srd(sFL))
        a("s_waitcnt vmcnt(0)")
        a("s_lshl_b32 s%d, s%d, 4" % (sT0, sB)); a("v_mov_b32 v5, s%d" % sT0); a("v_mov_b32 v6, 1")
        a("s_mov_b64 s[96:97], exec"); a("s_mov_b64 exec, 1")
        a("global_atomic_add v5, v6, s[16:17] sc1")
        a("s_mov_b64 exec, s[96:97]")
        a("%s:" % sk)
    if "cpf0" in OPT:
        sk = a.label("Lcp0"); a("s_cmp_lg_u32 s%d, 1" % sLW); a("s_cbranch_scc1 %s" % sk); code_prefetch(a); a("%s:" % sk)
    if "notlb" not in OPT:
        sk = a.label("Ltlb")
        a("s_cmp_lg_u32 s%d, 0" % sLW); a("s_cbranch_scc1 %s" % sk)
        a("v_mov_b32 v5, 0")
        for i, sr in enumerate((sK, sV, sWO, sP, sOUT)): a("buffer_load_dword v%d, v5, %s, 0 offen nt" % (33 + i, srd(sr)))
        a("v_mul_u32_u24 v5, %d, v1" % (PART // 8)); a("v_lshlrev_b32 v5, 3, v5"); a("v_mov_b32 v7, 0x40000000"); a("v_cmp_gt_u32 vcc, 16, v1"); a("s_nop 1"); a("v_cndmask_b32 v5, v7, v5, vcc")
        a("buffer_load_dword v38, v5, %s, 0 offen nt" % srd(sPB))
        a("%s:" % sk)
    clear_flags()
    if "nopfq" not in OPT and PF_AT < 0: prefetch_q()
    for s in range(18):
        bar(None)
        if "nopfq" not in OPT and PF_AT == s: prefetch_q()
        for e in KSCHED.get(s, []): iss(e[1], e[0] == "K", *e[2:])
    bar(None)
    for e in KSCHED.get(18, []): iss(e[1], e[0] == "K", *e[2:])
    bar(["I0", "I1"] if "wait01" in OPT else ["I0"])
    for e in KSCHED.get(19, []): iss(e[1], e[0] == "K", *e[2:])
    if "kv4" in OPT:
        assert FIRST_RULE == 1
        attn_kv4(a, False)
    else:
        sTK, sKS = 93, 91
        def item_dyn():
            a("s_add_u32 s%d, s%d, s%d" % (sT1, sLWK, sKS)); a("s_add_u32 s%d, s%d, s%d" % (sT2, sLWV, sKS))
            for isK in (True, False):
                for ii in range(8):
                    if ii % 4 == 0: a("s_add_u32 s%d, s%d, %d" % (sT0, sTK, (ii >> 2) * 4096))
                    grp = KGRP if isK else VGRP
                    a("s_add_u32 m0, s%d, %d" % (sT1 if isK else sT2, (0 if isK else VOFF) + ii * grp - (ii & 3) * 1024)); a("s_nop 0")
                    dma(a, vK if isK else vV, sK if isK else sV, sT0, (ii & 3) * 1024, KV_FLAGS)
            a("s_add_u32 s%d, s%d, 16384" % (sTK, sTK))
            a("s_add_u32 s%d, s%d, %d" % (sKS, sKS, PAIR)); a("s_cmp_eq_u32 s%d, %d" % (sKS, 4 * PAIR)); a("s_cselect_b32 s%d, 0, s%d" % (sKS, sKS))
        def wv(n):
            if "nowait" not in OPT: a("s_waitcnt vmcnt(%d)" % n)
        if LAG:
            a("s_mov_b32 s%d, %d" % (sTK, 2 * 16384)); a("s_mov_b32 s%d, %d" % (sKS, 2 * PAIR))
            lab = a.label("Lkvl"); a("s_mov_b32 s%d, 1" % sCNT); a("%s:" % lab)
            wv(0); a("s_barrier"); item_dyn()
            a("s_add_u32 s%d, s%d, 1" % (sCNT, sCNT)); a("s_cmp_le_u32 s%d, %d" % (sCNT, LAG)); a("s_cbranch_scc1 %s" % lab)
            item_dyn()
            first = LAG + 1
        else:
            if FIRST_RULE == 2:
                n1 = q.wait(["I1"])
                if n1 is not None: wv(n1)
                a("s_barrier")
            a("s_mov_b32 s%d, %d" % (sTK, (FIRST_RULE + 2) * 16384)); a("s_mov_b32 s%d, %d" % (sKS, ((FIRST_RULE + 2) % 4) * PAIR))
            first = FIRST_RULE
        lab = a.label("Lkv"); a("s_mov_b32 s%d, %d" % (sCNT, first - 1)); a("%s:" % lab)
        wv(16)
        a("s_barrier")
        item_dyn()
        a("s_add_u32 s%d, s%d, 1" % (sCNT, sCNT)); a("s_cmp_lt_u32 s%d, 13" % sCNT); a("s_cbranch_scc1 %s" % lab)
        wv(16)
        a("s_barrier")
        wv(0)
        a("s_barrier")
        a("s_barrier")
    if "nored" not in OPT:
        sk = a.label("Ldbg"); lp = a.label("Ldbgw")
        a("s_cmp_lg_u32 s%d, 0" % sLW); a("s_cbranch_scc1 %s" % sk)
        a("s_lshl_b32 s%d, s%d, 4" % (sT0, sB)); a("v_mov_b32 v10, s%d" % sT0); a("s_mov_b32 s%d, 0" % sT3)
        a("%s:" % lp)
        a("global_load_dword v12, v10, s[16:17] sc1"); a("s_waitcnt vmcnt(0)"); a("v_readfirstlane_b32 s%d, v12" % sT1)
        a("s_add_u32 s%d, s%d, 1" % (sT3, sT3)); a("s_cmp_gt_u32 s%d, %d" % (sT3, SPIN_MAX)); a("s_cbranch_scc1 %s" % sk)
        a("s_cmp_lt_u32 s%d, 16" % sT1); a("s_cbranch_scc1 %s" % lp)
        a("%s:" % sk)
    a("s_barrier"); a("s_barrier")
    vPR, vPO, vF, vOne = 20, 24, 25, 26
    sCH = 93
    a("v_lshlrev_b32 v%d, 4, v1" % vPO)
    a("s_mul_i32 s%d, s%d, 6144" % (sT0, sLW)); a("s_add_u32 s%d, s%d, %d" % (sT0, sT0, PB0)); a("v_add_u32 v%d, s%d, v%d" % (vPR, sT0, vPO)); a("v_add_u32 v%d, 3072, v%d" % (vPR + 1, vPR))
    a("s_mul_i32 s%d, s%d, %d" % (sT0, sLW, 2 * PAIR)); a("s_add_u32 s%d, s%d, 32768" % (sT0, sT0)); a("v_add_u32 v%d, s%d, v%d" % (vPR + 2, sT0, vPO)); a("v_add_u32 v%d, %d, v%d" % (vPR + 3, PAIR, vPR + 2))
    a("s_mul_i32 s%d, s%d, 6144" % (sT0, sLW)); a("v_add_u32 v%d, s%d, v%d" % (vPO, sT0, vPO))
    a("v_mov_b32 v%d, 1" % vOne)
    a("s_lshl_b32 s%d, s%d, 3" % (sT0, sH)); a("s_lshl_b32 s%d, s%d, 2" % (sT1, sLW)); a("s_add_u32 s%d, s%d, s%d" % (sT0, sT0, sT1))
    a("v_mov_b32 v%d, 0x40000000" % vF); a("s_nop 0"); a("v_writelane_b32 v%d, s%d, 0" % (vF, sT0))
    a("s_mov_b32 s%d, 0" % sCH)
    def flag_store(back):
        a("s_sub_u32 s%d, s%d, %d" % (sT0, sCH, back)); a("s_lshl_b32 s%d, s%d, 7" % (sT0, sT0))
        a("buffer_store_dword v%d, v%d, %s, s%d offen sc0 sc1" % (vOne, vF, srd(sFL), sT0))
    def turn(buf, guard):
        for w2 in range(2):
            for j in range(3): a("ds_read_b128 %s, v%d offset:%d" % (vr(64 + 32 * buf + 4 * (3 * w2 + j), 4), vPR + 2 * buf + w2, j * 1024))
        a("s_mul_i32 s%d, s%d, 12288" % (sT0, sCH))
        for i in range(6):
            a("s_waitcnt lgkmcnt(%d)" % (5 - i))
            if "nostore" not in OPT: a("buffer_store_dwordx4 %s, v%d, %s, s%d offen%s" % (vr(64 + 32 * buf + 4 * i, 4), vPO, srd(sP), sT0, P_FLAGS))
            if i < 5: a("s_add_u32 s%d, s%d, 1024" % (sT0, sT0))
        if "nored" not in OPT:
            sk = a.label("Lfl")
            if guard: a("s_cmp_lt_u32 s%d, 2" % sCH); a("s_cbranch_scc1 %s" % sk)
            a("s_waitcnt vmcnt(%d)" % FLW)
            flag_store(2)
            a("%s:" % sk)
        a("s_add_u32 s%d, s%d, 1" % (sCH, sCH))
    a("s_barrier")
    lab = a.label("Lsto"); a("%s:" % lab)
    a("s_barrier"); turn(0, True)
    a("s_barrier"); turn(1, True)
    a("s_cmp_lt_u32 s%d, 8" % sCH); a("s_cbranch_scc1 %s" % lab)
    a("s_barrier"); turn(0, False)
    if "nored" not in OPT:
        a("s_waitcnt vmcnt(7)"); flag_store(2)
        a("s_waitcnt vmcnt(1)"); flag_store(1)
    a("s_cmp_eq_u32 s%d, 0" % sLW); a("s_cselect_b32 s%d, 7, 6" % sCNT)
    a("s_branch L_reduce")

KSCHED = {2: [("K", 0)], 5: [("V", 0)], 8: [("K", 1)], 11: [("V", 1)], 16: [("K", 2)], 17: [("V", 2)]}

def gen_reducer(a):
    a("L_reduce:")
    if "nored" in OPT:
        a.stamp_wave = 4; stamp_flush(a); a("s_endpgm"); return
    rho = sCNT
    giveup = a.label("Lgiveup"); poll = a.label("Lpoll")
    a("s_mul_i32 s%d, s%d, 7" % (sT0, rho)); a("s_cmp_eq_u32 s%d, 7" % rho); a("s_cselect_b32 s%d, 48, s%d" % (sT0, sT0))
    a("s_mul_hi_u32 s%d, s%d, %d" % (sT2, sT0, (2**32 + 5) // 6))
    a("s_cmp_ge_u32 s%d, 6" % rho); a("s_cselect_b32 s%d, 48, 56" % sTASK2); a("s_cselect_b32 s%d, 0, -1" % sCNT2)
    a("v_lshlrev_b32 v9, 2, v1"); a("v_mov_b32 v7, 0x40000000")
    a("s_lshl_b32 s%d, s%d, 7" % (sT2, sT2))
    a("buffer_load_dword v11, v9, %s, s%d offen sc1" % (srd(sFL), sT2))
    a("v_lshrrev_b32 v2, 3, v1"); a("v_add_u32 v2, s%d, v2" % sT0)
    a("v_mul_u32_u24 v8, 10923, v2"); a("v_lshrrev_b32 v8, 16, v8")
    a("v_mul_u32_u24 v5, 6, v8"); a("v_sub_u32 v2, v2, v5")
    a("v_lshlrev_b32 v2, 3, v2"); a("v_and_b32 v5, 7, v1"); a("v_add_u32 v2, v2, v5")
    a("s_mul_i32 s%d, s%d, 48" % (sT1, sH)); a("v_add_u32 v2, s%d, v2" % sT1)
    a("v_mul_u32_u24 v3, 12288, v8"); a("v_lshlrev_b32 v5, 4, v2"); a("v_add_u32 v3, v3, v5")
    a("v_cmp_gt_u32 vcc, s%d, v1" % sTASK2); a("s_nop 1"); a("v_cndmask_b32 v3, v7, v3, vcc")
    a("v_lshrrev_b32 v4, 6, v2"); a("v_and_b32 v5, 63, v2")
    a("v_cmp_le_u32 s[96:97], 6, v4"); a("s_nop 1"); a("v_cndmask_b32 v6, 0, 1, s[96:97]")
    a("v_mul_u32_u24 v10, 6, v6"); a("v_sub_u32 v4, v4, v10")
    a("v_lshlrev_b32 v4, 4, v4"); a("v_and_b32 v10, 15, v5"); a("v_add_u32 v4, v4, v10"); a("v_mul_u32_u24 v4, 1152, v4")
    a("v_lshlrev_b32 v6, 6, v6"); a("v_lshrrev_b32 v5, 4, v5"); a("v_lshlrev_b32 v5, 3, v5"); a("v_add_u32 v4, v4, v6"); a("v_add_u32 v4, v4, v5")
    a("s_and_b32 s%d, s%d, 7" % (sT1, sB)); a("v_add_u32 v8, s%d, v8" % sT1)
    a("v_cmp_le_u32 s[96:97], 9, v8"); a("s_nop 1"); a("v_cndmask_b32 v6, 0, 9, s[96:97]"); a("v_sub_u32 v8, v8, v6"); a("v_lshlrev_b32 v8, 7, v8"); a("v_add_u32 v4, v4, v8")
    a("v_cndmask_b32 v4, v7, v4, vcc")
    a("s_mov_b32 s%d, 0" % sT3)
    a("s_branch %s_chk" % poll)
    a("%s:" % poll)
    a("buffer_load_dword v11, v9, %s, s%d offen sc1" % (srd(sFL), sT2))
    a("%s_chk:" % poll)
    a("s_waitcnt vmcnt(0)")
    a("v_cmp_eq_u32 vcc, 1, v11")
    a("s_add_u32 s%d, s%d, 1" % (sT3, sT3)); a("s_cmp_gt_u32 s%d, %d" % (sT3, SPIN_MAX)); a("s_cbranch_scc1 %s" % giveup)
    a("s_orn2_b32 vcc_hi, vcc_hi, s%d" % sCNT2)
    a("s_cmp_eq_u64 vcc, -1"); a("s_cbranch_scc0 %s" % poll)
    a("s_mov_b32 s%d, 0" % sT0)
    for h in range(16):
        a("buffer_load_dwordx4 v[%d:%d], v3, %s, s%d offen%s" % (64 + 4 * h, 67 + 4 * h, srd(sPB), sT0, R_FLAGS))
        if h < 15: a("s_add_u32 s%d, s%d, %d" % (sT0, sT0, PART))
    if "dot2" in OPT:
        a("v_mov_b32 v12, 0x00003f80"); a("v_mov_b32 v13, 0x3f800000")
        for r in range(8): a("v_mov_b32 v%d, 0" % (48 + r))
    for h in range(16):
        a("s_waitcnt vmcnt(%d)" % (15 - h))
        for r in range(4):
            src = 64 + 4 * h + r
            if "dot2" in OPT:
                a("v_dot2c_f32_bf16 v%d, v%d, v12" % (48 + 2 * r, src)); a("v_dot2c_f32_bf16 v%d, v%d, v13" % (49 + 2 * r, src))
            elif h == 0:
                a("v_lshlrev_b32 v%d, 16, v%d" % (48 + 2 * r, src)); a("v_and_b32 v%d, 0xffff0000, v%d" % (49 + 2 * r, src))
            else:
                a("v_lshlrev_b32 v12, 16, v%d" % src); a("v_and_b32 v13, 0xffff0000, v%d" % src)
                a("v_add_f32 v%d, v%d, v12" % (48 + 2 * r, 48 + 2 * r)); a("v_add_f32 v%d, v%d, v13" % (49 + 2 * r, 49 + 2 * r))
    for r in range(4): a("v_cvt_pk_bf16_f32 v%d, v%d, v%d" % (56 + r, 48 + 2 * r, 49 + 2 * r))
    a("buffer_store_dwordx2 v[56:57], v4, %s, 0 offen%s" % (srd(sOUT), OUT_FLAGS))
    a("buffer_store_dwordx2 v[58:59], v4, %s, 0 offen offset:32%s" % (srd(sOUT), OUT_FLAGS))
    a("%s:" % giveup)
    if STAMP:
        sk = a.label("Lnst"); a("s_cmp_lg_u32 s%d, 4" % sWAVE); a("s_cbranch_scc1 %s" % sk)
        a.stamp_wave = 4; stamp(a, 15); stamp_flush(a)
        a("%s:" % sk)
    a("s_endpgm")
R_FLAGS = " sc1"
OUT_FLAGS = ""
sTASK2 = 101
sCNT2 = 95
PB0 = 143360
SPIN_MAX = 200000
sWOP = 70

PF_O_AT = 10
PF_WAVE = 1
PF_FIRST = 4
PF_AT = 0
PF0 = 2
RAMP = 0
ALIGN_T = None
ALIGN_R = None
ALIGN_Q = None
ALIGN_O = None
LAG = 0
RAMP_EVERY = 1
FLW = 12
STG_AT = 7
NSTG0 = 3
ROTQ = (1, 0, 2, 0)
KROT = (2, 1)
CPF_AT = 11
FIRST_RULE = 1
CMP_SLACK = 6
FLAG_DELAY = 4

def O_(j, db): return (j * 8 + db) * 4
def Q_(j, s): return 96 + (j * 4 + s) * 4
def KF(f): return 144 + 4 * f
def VF(db): return 176 + 4 * db
def S_(par): return 208 + 8 * par
def P_(par): return 224 + 4 * par
def N_(j): return 232 + 4 * j
def L_(j): return 244 + j
vKA, vVA, vT, vT2, vS, vLANE = 247, 248, 252, 253, 254, 255
MF = "v_mfma_f32_16x16x32_bf16"

def interleave(mfmas, fillers):
    out = list(fillers.get(-1, []))
    for i, m in enumerate(mfmas):
        out.append(m); out += fillers.get(i, [])
    return out
def spread(items, slots):
    d = {}; n = len(items)
    for i, it in enumerate(items): d.setdefault(slots[i * len(slots) // n], []).append(it)
    return d
def merge(*ds):
    o = {}
    for d in ds:
        for k, v in d.items(): o.setdefault(k, []).extend(v)
    return o

KORD = [(kb, s) for s in range(4) for kb in range(2)]
def k_read(kb, s, half, ad=None):
    return "ds_read_b128 %s, v%d offset:%d" % (vr(KF(kb * 4 + s), 4), vKA if ad is None else ad, half * 8 * KGRP + kb * 4 * KGRP + s * 64)
def v_reads(db, half):
    A, cc = divmod(db, 4)
    o = half * 8 * VGRP + A * 128
    return ["ds_read_b64_tr_b16 %s, v%d offset:%d" % (vr(VF(db), 2), vVA + cc, o), "ds_read_b64_tr_b16 %s, v%d offset:%d" % (vr(VF(db) + 2, 2), vVA + cc, o + 4 * VGRP)]

TAB = None
def hoist_waits(lines):
    out = []
    for l in lines:
        if l.startswith("s_waitcnt lgkmcnt") and out:
            n = int(l.split("(")[1].split(")")[0])
            k = len(out) - 1; jumped = 0; ok = False
            while k >= 0:
                x = out[k]
                if x.startswith("v_mfma"): ok = True; break
                if x.endswith(":") or x.startswith(("s_cbranch", "s_barrier", "s_waitcnt")): break
                if x.startswith("ds_"): jumped += 1
                k -= 1
            if ok and n - jumped >= 0:
                out.insert(k + 1, "s_waitcnt lgkmcnt(%d)" % (n - jumped)); continue
        out.append(l)
    return out

def gen_compute(a):
    rare = []
    a("v_and_b32 v%d, 63, v0" % vLANE)
    a("s_lshr_b32 s%d, s%d, 1" % (sQI, sWAVE)); a("s_and_b32 s%d, s%d, 1" % (sRH, sWAVE))
    g, rp, c, q = 240, 241, 242, 243
    a("v_lshrrev_b32 v%d, 4, v%d" % (g, vLANE)); a("v_bfe_u32 v%d, v%d, 2, 2" % (rp, vLANE)); a("v_and_b32 v%d, 3, v%d" % (c, vLANE)); a("v_and_b32 v%d, 15, v%d" % (q, vLANE))
    vWA, vXA = 232, 244
    t, t2 = vT, vT2
    a("v_lshlrev_b32 v%d, 3, v%d" % (t, g)); a("v_add_u32 v%d, v%d, v%d" % (t, t, rp)); a("v_lshlrev_b32 v%d, 9, v%d" % (t, t))
    a("v_and_b32 v%d, 1, v%d" % (t2, g)); a("v_lshlrev_b32 v%d, 2, v%d" % (t2, t2)); a("v_add_u32 v%d, v%d, v%d" % (t2, t2, rp)); a("v_lshlrev_b32 v%d, 5, v%d" % (t2, t2))
    a("v_add_u32 v%d, v%d, v%d" % (t, t, t2)); a("v_lshlrev_b32 v%d, 3, v%d" % (t2, c)); a("v_add_u32 v%d, v%d, v%d" % (t, t, t2))
    a("s_lshl_b32 s%d, s%d, 8" % (sT0, sQI)); a("s_add_u32 s%d, s%d, %d" % (sT0, sT0, WBASE)); a("v_add_u32 v%d, s%d, v%d" % (t, sT0, t))
    assert WBASE % 256 == 0 and XBASE % 128 == 0
    for db in range(8): a("v_xor_b32 v%d, %d, v%d" % (vWA + db, db * 32, t))
    a("s_mul_i32 s%d, s%d, %d" % (sT0, sRH, 48 * 128)); a("s_add_u32 s%d, s%d, %d" % (sT0, sT0, XBASE))
    a("v_lshrrev_b32 v%d, 1, v%d" % (t, q)); a("v_xor_b32 v%d, v%d, v%d" % (t, t, g)); a("v_lshlrev_b32 v%d, 4, v%d" % (t, t))
    a("v_lshlrev_b32 v%d, 7, v%d" % (t2, q)); a("v_add_u32 v%d, v%d, v%d" % (t, t, t2)); a("v_add_u32 v%d, s%d, v%d" % (vXA, sT0, t)); a("v_xor_b32 v%d, 64, v%d" % (vXA + 1, vXA))
    a("v_lshrrev_b32 v%d, 2, v%d" % (t, q)); a("v_mul_u32_u24 v%d, %d, v%d" % (t, KGRP, t))
    a("v_and_b32 v%d, 3, v%d" % (t2, q)); a("v_lshlrev_b32 v%d, 8, v%d" % (vKA, t2)); a("v_add_u32 v%d, v%d, v%d" % (t, t, vKA))
    a("v_xor_b32 v%d, v%d, v%d" % (t2, t2, g)); a("v_lshlrev_b32 v%d, 4, v%d" % (t2, t2)); a("v_add_u32 v%d, v%d, v%d" % (vKA, t, t2))
    a("v_mul_u32_u24 v%d, %d, v%d" % (t, VGRP, g)); a("v_lshlrev_b32 v%d, 8, v%d" % (t2, rp)); a("v_add_u32 v%d, v%d, v%d" % (t, t, t2))
    a("v_lshlrev_b32 v%d, 3, v%d" % (t2, c)); a("v_add_u32 v%d, v%d, v%d" % (t, t, t2)); a("v_add_u32 v%d, %d, v%d" % (t, VOFF, t))
    for cc in range(4):
        a("v_xor_b32 v%d, %d, v%d" % (t2, cc, rp)); a("v_lshlrev_b32 v%d, 5, v%d" % (t2, t2)); a("v_add_u32 v%d, v%d, v%d" % (vVA + cc, t, t2))
    stamp(a, 0, 10)

    def ABUF(buf, db): return 144 + 32 * buf + 4 * db
    def BBUF(buf, j): return 208 + 12 * buf + 4 * j
    def q_reads(s):
        buf = s & 1; wo = ((s + 2) % 4) * 16384; xo = ((s // 2) % 2) * XSLOT
        r = []
        for j in range(3): r.append("ds_read_b128 %s, v%d offset:%d" % (vr(BBUF(buf, j), 4), vXA + (s & 1), xo + j * 2048))
        for db in range(8):
            r.append("ds_read_b64_tr_b16 %s, v%d offset:%d" % (vr(ABUF(buf, db), 2), vWA + db, wo))
            r.append("ds_read_b64_tr_b16 %s, v%d offset:%d" % (vr(ABUF(buf, db) + 2, 2), vWA + db, wo + 2048))
        return r
    for r in range(0, 96, 2): a("v_mov_b64 %s, 0" % vr(r, 2))
    a("s_barrier")
    for x in q_reads(0): a(x)
    def q_stage(s, reads=True):
        buf = s & 1
        a("s_waitcnt lgkmcnt(0)")
        a("s_barrier")
        mf = []
        for db in range(8):
            for j in range(3):
                mf.append("%s %s, %s, %s, %s" % (MF, vr(O_(j, db), 4), vr(ABUF(buf, db), 4), vr(BBUF(buf, j), 4), vr(O_(j, db), 4)))
        rd = q_reads(s + 1) if reads else []
        for x in interleave(mf, spread(rd, list(range(0, 17))) if rd else {}): a(x)
    lq = a.label("Lq")
    a("s_mov_b32 s%d, 0" % sCNT)
    if ALIGN_Q is not None:
        a(".p2align 6")
        for _ in range(ALIGN_Q): a("s_nop 0")
    a("%s:" % lq)
    for s in range(4): q_stage(s)
    a("s_add_u32 s%d, s%d, 1" % (sCNT, sCNT)); a("s_cmp_lt_u32 s%d, 4" % sCNT); a("s_cbranch_scc1 %s" % lq)
    q_stage(16); q_stage(17, reads=False)
    stamp(a, 1, 11)
    a("s_nop 7")
    a("s_mov_b32 s%d, %s" % (sT0, f32(C_SCALE))); a("s_mov_b32 s%d, s%d" % (sT0 + 1, sT0))
    for j in range(3):
        for s in range(4):
            X, Y, D = O_(j, 2 * s), O_(j, 2 * s + 1), Q_(j, s)
            for r in range(0, 4, 2):
                a("v_pk_mul_f32 %s, %s, s[%d:%d]" % (vr(X + r, 2), vr(X + r, 2), sT0, sT0 + 1)); a("v_pk_mul_f32 %s, %s, s[%d:%d]" % (vr(Y + r, 2), vr(Y + r, 2), sT0, sT0 + 1))
            a("v_cvt_pk_bf16_f32 v%d, v%d, v%d" % (D + 0, X + 0, X + 1)); a("v_cvt_pk_bf16_f32 v%d, v%d, v%d" % (D + 1, X + 2, X + 3))
            a("v_cvt_pk_bf16_f32 v%d, v%d, v%d" % (D + 2, Y + 0, Y + 1)); a("v_cvt_pk_bf16_f32 v%d, v%d, v%d" % (D + 3, Y + 2, Y + 3))
            for r in range(0, 4, 2):
                a("v_mov_b64 %s, 0" % vr(X + r, 2)); a("v_mov_b64 %s, 0" % vr(Y + r, 2))
            a("v_permlane32_swap_b32 v%d, v%d" % (D + 0, D + 2)); a("v_permlane32_swap_b32 v%d, v%d" % (D + 1, D + 3))
            a("s_nop 1")
            a("v_permlane16_swap_b32 v%d, v%d" % (D + 0, D + 2)); a("v_permlane16_swap_b32 v%d, v%d" % (D + 1, D + 3))
    a("s_barrier")
    for kb, s_ in KORD: a(k_read(kb, s_, 0))
    a("s_waitcnt lgkmcnt(0)")
    for j in range(3):
        for kb, s_ in KORD:
            d = 176 + 8 * j + 4 * kb
            a("%s %s, %s, %s, %s" % (MF, vr(d, 4), vr(KF(kb * 4 + s_), 4), vr(Q_(j, s_), 4), "0" if s_ == 0 else vr(d, 4)))
    for r in range(224, 232, 2): a("v_mov_b64 %s, 0" % vr(r, 2))
    for j in range(3): a("v_mov_b32 v%d, 0" % L_(j))
    a("v_mov_b32 v%d, 0" % vS)
    a("s_mov_b32 s%d, %s" % (sTHR, "0x7f800000" if "norare" in OPT else f32(256.0)))
    a("s_mov_b32 s%d, 0" % sSLOT); a("s_mov_b32 s%d, 0" % sDK)
    a("s_mov_b32 s%d, 0x%x" % (sNEG, -3 * PAIR & 0xffffffff))
    a("s_mov_b64 vcc, 0")
    a("s_nop 3")
    for j in range(3):
        S = 176 + 8 * j; t, t2 = 200 + 2 * j, 201 + 2 * j
        a("v_max3_f32 v%d, v%d, v%d, v%d" % (t, S, S + 1, S + 2)); a("v_max3_f32 v%d, v%d, v%d, v%d" % (t2, S + 3, S + 4, S + 5))
        a("v_max3_f32 v%d, v%d, v%d, v%d" % (t, t, S + 6, S + 7)); a("v_max_f32 v%d, v%d, v%d" % (t, t, t2))
    for sw in ("v_permlane32_swap_b32", "v_permlane16_swap_b32"):
        for j in range(3): a("v_mov_b32 v%d, v%d" % (201 + 2 * j, 200 + 2 * j))
        a("s_nop 0")
        for j in range(3): a("%s v%d, v%d" % (sw, 200 + 2 * j, 201 + 2 * j))
        for j in range(3): a("v_max_f32 v%d, v%d, v%d" % (200 + 2 * j, 200 + 2 * j, 201 + 2 * j))
    for j in range(3):
        for i in range(4): a("v_sub_f32 v%d, 0, v%d" % (N_(j) + i, 200 + 2 * j))
    for r in range(176, 208, 2): a("v_mov_b64 %s, 0" % vr(r, 2))
    def qk_mfmas(jn, par):
        m = []
        for kb, s in KORD:
            d = S_(par) + 4 * kb
            cc = vr(N_(jn), 4) if s == 0 else vr(d, 4)
            m.append("%s %s, %s, %s, %s" % (MF, vr(d, 4), vr(KF(kb * 4 + s), 4), vr(Q_(jn, s), 4), cc))
        return m
    def pv_mfmas(jp, par):
        return ["%s %s, %s, %s, %s" % (MF, vr(O_(jp, db), 4), vr(VF(db), 4), vr(P_(par), 4), vr(O_(jp, db), 4)) for db in range(8)]
    for m in qk_mfmas(0, 0): a(m)
    a("s_nop 7")

    def rare_code(st, j, adv):
        par = (3 * st + j) & 1
        S, P = S_(par), P_(par)
        rl, cont = a.label("Lrare"), a.label("Lcont")
        r = Asm()
        r("%s:" % rl)
        if adv: r("v_subrev_u32 v%d, s%d, v%d" % (vT2, sDK, vKA))
        else: r("v_mov_b32 v%d, v%d" % (vT2, vKA))
        for kb in range(2):
            for s in range(4):
                r("ds_read_b128 %s, v%d offset:%d" % (vr(P, 4), vT2, st * 8 * KGRP + kb * 4 * KGRP + s * 64))
                r("s_waitcnt lgkmcnt(0)")
                cc = vr(N_(j), 4) if s == 0 else vr(S + 4 * kb, 4)
                r("%s %s, %s, %s, %s" % (MF, vr(S + 4 * kb, 4), vr(P, 4), vr(Q_(j, s), 4), cc))
                r("s_nop 3")
        r("s_nop 7")
        r("v_max3_f32 v%d, v%d, v%d, v%d" % (vT, S, S + 1, S + 2)); r("v_max3_f32 v%d, v%d, v%d, v%d" % (vT2, S + 3, S + 4, S + 5))
        r("v_max3_f32 v%d, v%d, v%d, v%d" % (vT, vT, S + 6, S + 7)); r("v_max_f32 v%d, v%d, v%d" % (vT, vT, vT2))
        r("v_mov_b32 v%d, v%d" % (vT2, vT)); r("s_nop 1"); r("v_permlane32_swap_b32 v%d, v%d" % (vT, vT2)); r("v_max_f32 v%d, v%d, v%d" % (vT, vT, vT2))
        r("v_mov_b32 v%d, v%d" % (vT2, vT)); r("s_nop 1"); r("v_permlane16_swap_b32 v%d, v%d" % (vT, vT2)); r("v_max_f32 v%d, v%d, v%d" % (vT, vT, vT2))
        r("v_max_f32 v%d, 0, v%d" % (vT, vT))
        r("v_sub_f32 v%d, 0, v%d" % (vT2, vT)); r("v_exp_f32 v%d, v%d" % (vT2, vT2)); r("s_nop 0")
        r("v_mul_f32 v%d, v%d, v%d" % (L_(j), L_(j), vT2))
        for db in range(8):
            for rr in range(4): r("v_mul_f32 v%d, v%d, v%d" % (O_(j, db) + rr, O_(j, db) + rr, vT2))
        for i in range(4): r("v_sub_f32 v%d, v%d, v%d" % (N_(j) + i, N_(j) + i, vT))
        for i in range(8): r("v_sub_f32 v%d, v%d, v%d" % (S + i, S + i, vT))
        for i in range(8): r("v_exp_f32 v%d, v%d" % (S + i, S + i))
        r("s_nop 0")
        r("v_add_f32 v%d, v%d, v%d" % (vS, S, S + 1))
        for i in range(2, 8): r("v_add_f32 v%d, v%d, v%d" % (vS, vS, S + i))
        for i in range(4): r("v_cvt_pk_bf16_f32 v%d, v%d, v%d" % (P + i, S + 2 * i, S + 2 * i + 1))
        r("s_nop 1")
        r("s_branch %s" % cont)
        rare.append(r.text())
        if "nobr" in OPT: return ["%s:" % cont]
        if "sccbr" in OPT: return ["s_cbranch_scc1 %s" % rl, "%s:" % cont]
        return ["s_cbranch_vccnz %s" % rl, "%s:" % cont]

    def block_tab(st, j, prev, qk=True, kload=None, vlo=None, vhi=None, barrier=False, extra=(), pre_extra=(), klate=None):
        par = (3 * st + j) & 1
        jn, jp = (j + 1) % 3, (j - 1) % 3
        S, P = S_(par), P_(par)
        pre = []
        if barrier: pre.append("s_barrier")
        endbr = []
        if "brend" in OPT:
            endbr = rare_code(st, j, st == 1 and j >= 1)
        elif prev is not None: pre += rare_code(*prev)
        pre += list(pre_extra)
        mf = qk_mfmas(jn, par ^ 1) + pv_mfmas(jp, par ^ 1)
        N = {}
        for i in range(8): N["E%d" % i] = "v_exp_f32 v%d, v%d" % (S + i, S + i)
        for i in range(4):
            N["C%d" % i] = "v_cvt_pk_bf16_f32 v%d, v%d, v%d" % (P + i, S + 2 * i, S + 2 * i + 1)
            N["A%d" % i] = "v_add_f32 v%d, v%d, v%d" % (S + 2 * i, S + 2 * i, S + 2 * i + 1)
        N["B0"] = "v_add_f32 v%d, v%d, v%d" % (S, S, S + 2); N["B1"] = "v_add_f32 v%d, v%d, v%d" % (S + 4, S + 4, S + 6)
        N["SUM"] = "v_add_f32 v%d, v%d, v%d" % (vS, S, S + 4); N["CMP"] = "v_cmp_lt_f32 vcc, s%d, v%d" % (sTHR, vS)
        N["L"] = "v_add_f32 v%d, v%d, v%d" % (L_(jp), L_(jp), vS)
        lds = {g: [] for g in range(16)}
        if "nolds" not in OPT:
            if vlo is not None:
                rs = [x for db in range(4) for x in v_reads(db, vlo)]
                for x, g in zip(rs, TAB["vlo"]): lds[g].append(x)
            if vhi is not None:
                rs = [x for db in range(4, 8) for x in v_reads(db, vhi)]
                for x, g in zip(rs, TAB["vhi"]): lds[g].append(x)
            if kload is not None:
                for (kb, s_), g in zip(KORD[:6], TAB["k"]): lds[g].append(k_read(kb, s_, kload))
            if klate is not None:
                for (kb, s_), g in zip(KORD[6:], TAB["klate"]): lds[g].append(k_read(kb, s_, klate))
        out = list(pre)
        ex = list(extra)
        for g in range(16):
            out.append(mf[g])
            if g == 15 and endbr: out += (["s_cmp_lg_u64 vcc, 0"] if "sccbr" in OPT else []) + endbr
            out += lds[g]
            if "nosm" not in OPT: out += [N[n] for n in TAB["valu"].get(g, [])]
            if g == TAB.get("scc_at", 15) and "sccbr" in OPT and "brend" not in OPT: out.append("s_cmp_lg_u64 vcc, 0")
            if g in TAB.get("extra_at", ()) and ex:
                x = ex.pop(0); out += (x if isinstance(x, list) else [x])
        for x in ex: out += (x if isinstance(x, list) else [x])
        return out

    def block(st, j, prev, qk=True, kload=None, vlo=None, vhi=None, barrier=False, extra=(), pre_extra=(), klate=None):
        if TAB is not None and qk: return block_tab(st, j, prev, qk, kload, vlo, vhi, barrier, extra, pre_extra, klate)
        if "brend" in OPT: prev = None
        if "sccbr" in OPT and prev is not None: pre_extra = list(pre_extra)
        par = (3 * st + j) & 1
        jn, jp = (j + 1) % 3, (j - 1) % 3
        S, P = S_(par), P_(par)
        pre = []
        if barrier: pre.append("s_barrier")
        if prev is not None: pre += rare_code(*prev)
        pre += list(pre_extra)
        mf = (qk_mfmas(jn, par ^ 1) if qk else []) + pv_mfmas(jp, par ^ 1)
        nq = 8 if qk else 0
        if not qk: pre.append("s_nop 1")
        it = []
        Ladd = Item("v_add_f32 v%d, v%d, v%d" % (L_(jp), L_(jp), vS), lo=0, hi=6, pri=5)
        E = [Item("v_exp_f32 v%d, v%d" % (S + i, S + i), lo=0, pri=3) for i in range(8)]
        for i in range(1, 8): pass
        A01 = Item("v_add_f32 v%d, v%d, v%d" % (vT, S, S + 1), deps=[E[0], E[1]])
        A23 = Item("v_add_f32 v%d, v%d, v%d" % (vT2, S + 2, S + 3), deps=[E[2], E[3]])
        B_ = Item("v_add_f32 v%d, v%d, v%d" % (vT, vT, vT2), deps=[A01, A23])
        A45 = Item("v_add_f32 v%d, v%d, v%d" % (vT2, S + 4, S + 5), deps=[E[4], E[5], B_])
        C_ = Item("v_add_f32 v%d, v%d, v%d" % (vT, vT, vT2), deps=[A45])
        A67 = Item("v_add_f32 v%d, v%d, v%d" % (vT2, S + 6, S + 7), deps=[E[6], E[7], C_])
        D_ = Item("v_add_f32 v%d, v%d, v%d" % (vS, vT, vT2), deps=[A67, Ladd])
        CMP = Item("v_cmp_lt_f32 vcc, s%d, v%d" % (sTHR, vS), deps=[D_], hi=len(mf) - CMP_SLACK)
        CV = [Item("v_cvt_pk_bf16_f32 v%d, v%d, v%d" % (P + i, S + 2 * i, S + 2 * i + 1), deps=[E[2 * i], E[2 * i + 1]], hi=len(mf) - 2) for i in range(4)]
        if "nosm" in OPT: it = []
        else: it = [Ladd] + E + [A01, A23, B_, A45, C_, A67, D_, CMP] + CV
        if "nolds" not in OPT:
            if vlo is not None:
                for db in range(4): it.append(Item(v_reads(db, vlo), lo=nq + db, pri=4))
            if vhi is not None:
                for db in range(4, 8): it.append(Item(v_reads(db, vhi), lo=0, hi=nq + db - 7, pri=6))
            if kload is not None:
                for i, (kb, s) in enumerate(KORD[:6]): it.append(Item(k_read(kb, s, kload), lo=max(i, 5), hi=min(15, 9 + i), pri=4))
            if klate is not None:
                for i, (kb, s) in list(enumerate(KORD))[6:]: it.append(Item(k_read(kb, s, klate), lo=0, hi=0, pri=7))
        for x in extra: it.append(Item(x, lo=8))
        return schedule(mf, it, pre)

    def tile(last, first_of_all=False):
        L = []
        L += block(0, 0, (1, 2, True), vlo=0)
        L += block(0, 1, (0, 0, False), vhi=0, kload=1)
        L += block(0, 2, (0, 1, False), klate=1)
        L += block(1, 0, (0, 2, False), vlo=1)
        adv = ["s_add_u32 s%d, s%d, 1" % (sSLOT, sSLOT), "s_and_b32 s%d, s%d, 3" % (sSLOT, sSLOT), "s_cmp_eq_u32 s%d, 0" % sSLOT,
               "s_cselect_b32 s%d, s%d, %d" % (sDK, sNEG, PAIR), "v_add_u32 v%d, s%d, v%d" % (vKA, sDK, vKA)]
        L += block(1, 1, (1, 0, False), vhi=1, kload=(None if last else 0), barrier=True, pre_extra=adv)
        L += block(1, 2, (1, 1, True), qk=not last, klate=(None if last else 0),
                   extra=[["v_add_u32 v%d, s%d, v%d" % (vVA + cc, sDK, vVA + cc)] for cc in range(4)])
        return L
    steady = tile(False)
    del rare[:]
    steady2 = tile(False)
    nr = len(rare)
    lastt = tile(True)
    if "peel" not in OPT: del rare[nr:]
    if TAB is not None:
        body = hoist_waits(auto_lgkm(steady2, entry_lines=steady, age=TAB.get("age")))
        lastb = hoist_waits(auto_lgkm(lastt, entry_lines=steady, age=TAB.get("age")))
    else:
        body = auto_lgkm(steady2, entry_lines=steady)
        lastb = auto_lgkm(lastt, entry_lines=steady)
    if "w0" in OPT:
        import re
        body = [re.sub(r"lgkmcnt\(\d+\)", "lgkmcnt(0)", x) if x.startswith("s_waitcnt lgkmcnt") else x for x in body]
    print("   attention steady tile: model %d cycles (%d/unit), %d instrs" % (model_cycles(body), model_cycles(body) / 6, len(body)))
    loop = a.label("Ltile")
    _stamp(a, 6, "s_memtime")
    a("s_mov_b32 s%d, 0" % sCNT)
    if RAMP:
        import re as _re
        nr2 = len(rare)
        tab_save = globals()["TAB"]; globals()["TAB"] = None
        assert "brend" not in OPT
        ramp_raw = tile(False)
        globals()["TAB"] = tab_save
        rb = auto_lgkm(ramp_raw, entry_lines=ramp_raw)
        cnt = [0]
        def _mod(x):
            if not x.startswith("s_waitcnt lgkmcnt"): return x
            cnt[0] += 1
            return "s_waitcnt lgkmcnt(0)" if cnt[0] % RAMP_EVERY == 0 else x
        rb = [_mod(x) for x in rb]
        lr = a.label("Lramp")
        if ALIGN_R is not None: a(".p2align 6")
        a("%s:" % lr)
        for x in rb: a(x)
        a("s_add_u32 s%d, s%d, 1" % (sCNT, sCNT)); a("s_cmp_lt_u32 s%d, %d" % (sCNT, RAMP)); a("s_cbranch_scc1 %s" % lr)
        a("s_waitcnt lgkmcnt(0)")
    if ALIGN_T is not None:
        a(".p2align 6")
        for _ in range(ALIGN_T): a("s_nop 0")
    a("%s:" % loop)
    for x in body: a(x)
    a("s_add_u32 s%d, s%d, 1" % (sCNT, sCNT)); a("s_cmp_lt_u32 s%d, %d" % (sCNT, 15 if "peel" in OPT else 16)); a("s_cbranch_scc1 %s" % loop)
    _stamp(a, 7, "s_memtime")
    if "peel" in OPT:
        for x in lastb: a(x)
    else: a("s_waitcnt lgkmcnt(0)")
    for x in rare_code(1, 2, True): a(x)
    a("v_add_f32 v%d, v%d, v%d" % (L_(2), L_(2), vS))
    def OA(s, j): return 96 + (s * 3 + j) * 4
    def OB(s, j): return 144 + (s * 3 + j) * 4
    vA0, vA1 = 240, 241
    vAO = 224
    a("s_barrier")
    side = []
    T3 = [232, 233, 234]
    for j in range(3): side.append("v_mov_b32 v%d, v%d" % (T3[j], L_(j)))
    for j in range(3): side.append("v_permlane32_swap_b32 v%d, v%d" % (L_(j), T3[j]))
    for j in range(3): side.append("v_add_f32 v%d, v%d, v%d" % (L_(j), L_(j), T3[j]))
    for j in range(3): side.append("v_mov_b32 v%d, v%d" % (T3[j], L_(j)))
    for j in range(3): side.append("v_permlane16_swap_b32 v%d, v%d" % (L_(j), T3[j]))
    for j in range(3): side.append("v_add_f32 v%d, v%d, v%d" % (L_(j), L_(j), T3[j]))
    for j in range(3): side.append("v_rcp_f32 v%d, v%d" % (L_(j), L_(j)))
    g, rp, c, t, l16 = 144, 145, 146, 147, 148
    side += ["v_lshlrev_b32 v%d, 4, v%d" % (l16, vLANE),
             "s_mul_i32 s%d, s%d, 12288" % (sT0, sWAVE), "s_add_u32 s%d, s%d, %d" % (sT0, sT0, EXCH), "v_add_u32 v%d, s%d, v%d" % (vA0, sT0, l16),
             "s_xor_b32 s%d, s%d, 2" % (sT2, sWAVE), "s_mul_i32 s%d, s%d, 12288" % (sT0, sT2), "s_add_u32 s%d, s%d, %d" % (sT0, sT0, EXCH), "v_add_u32 v%d, s%d, v%d" % (vA1, sT0, l16),
             "v_lshrrev_b32 v%d, 4, v%d" % (g, vLANE), "v_bfe_u32 v%d, v%d, 2, 2" % (rp, vLANE), "v_and_b32 v%d, 3, v%d" % (c, vLANE),
             "v_lshlrev_b32 v%d, 2, v%d" % (t, g), "v_add_u32 v%d, v%d, v%d" % (t, t, rp),
             "v_lshrrev_b32 v%d, 1, v%d" % (g, t), "v_and_b32 v%d, 3, v%d" % (g, g), "v_lshlrev_b32 v%d, 5, v%d" % (g, g),
             "v_lshlrev_b32 v%d, 7, v%d" % (t, t), "v_add_u32 v%d, v%d, v%d" % (t, t, g), "v_lshlrev_b32 v%d, 3, v%d" % (c, c), "v_add_u32 v%d, v%d, v%d" % (t, t, c),
             "s_lshl_b32 s%d, s%d, 6" % (sT0, sQI), "v_xor_b32 v%d, s%d, v%d" % (t, sT0, t),
             "s_lshl_b32 s%d, s%d, 14" % (sT0, sQI), "s_xor_b32 s%d, s%d, 16384" % (sT1, sT0),
             "v_add_u32 v%d, s%d, v%d" % (vAO + 0, sT0, t), "v_xor_b32 v%d, 32, v%d" % (vAO + 1, vAO + 0),
             "v_add_u32 v%d, s%d, v%d" % (vAO + 2, sT1, t), "v_xor_b32 v%d, 32, v%d" % (vAO + 3, vAO + 2)]
    pvl = pv_mfmas(2, 1)
    per = (len(side) + 7) // 8
    a("s_nop 0")
    for i, m in enumerate(pvl):
        a(m)
        for x in side[i * per:(i + 1) * per]: a(x)
    stamp(a, 2, 12)
    def scale_op(j):
        if j == 0: return vr(244, 2), " op_sel_hi:[1,0]"
        if j == 1: return vr(244, 2), " op_sel:[0,1] op_sel_hi:[1,1]"
        return vr(246, 2), " op_sel_hi:[1,0]"
    for j in range(3):
        if j == 2: a("s_nop 1")
        sc, mod = scale_op(j)
        for s in range(4):
            X, Y, D = O_(j, 2 * s), O_(j, 2 * s + 1), OA(s, j)
            for r in range(0, 4, 2):
                a("v_pk_mul_f32 %s, %s, %s%s" % (vr(X + r, 2), vr(X + r, 2), sc, mod)); a("v_pk_mul_f32 %s, %s, %s%s" % (vr(Y + r, 2), vr(Y + r, 2), sc, mod))
            a("v_cvt_pk_bf16_f32 v%d, v%d, v%d" % (D + 0, X + 0, X + 1)); a("v_cvt_pk_bf16_f32 v%d, v%d, v%d" % (D + 1, X + 2, X + 3))
            a("v_cvt_pk_bf16_f32 v%d, v%d, v%d" % (D + 2, Y + 0, Y + 1)); a("v_cvt_pk_bf16_f32 v%d, v%d, v%d" % (D + 3, Y + 2, Y + 3))
            a("ds_write_b128 v%d, %s offset:%d" % (vA0, vr(D, 4), (s * 3 + j) * 1024))
    a("s_waitcnt lgkmcnt(0)")
    a("s_barrier")
    for i in range(12): a("ds_read_b128 %s, v%d offset:%d" % (vr(144 + 4 * i, 4), vA1, i * 1024))
    stamp(a, 3, 13)
    assert PAIR % 256 == 0
    def AF(i): return 192 + 4 * (i % 8)
    def ACC(buf, z, j): return buf * 24 + (z * 3 + j) * 4
    def PK(buf, j): return 48 + buf * 12 + 4 * j
    def a_reads(G):
        c_, kk = divmod(G, 8)
        hs, s = (0, kk) if kk < 4 else (1, kk - 4)
        r = []
        for z in range(2):
            fr = AF(2 * G + z)
            r.append("ds_read_b64_tr_b16 %s, v%d offset:%d" % (vr(fr, 2), vAO + 2 * hs + z, s * 4096))
            r.append("ds_read_b64_tr_b16 %s, v%d offset:%d" % (vr(fr + 2, 2), vAO + 2 * hs + z, s * 4096 + 2048))
        return r
    LOOK = 3
    def slot_delta(c_from): return (-3 * PAIR if (16 + c_from + 1) % 4 == 0 else PAIR) & 0xffffffff
    for G in range(LOOK):
        for x in a_reads(G): a(x)
    vPW, vPWR = 229, 231
    a("v_lshlrev_b32 v%d, 4, v%d" % (vT, vLANE))
    a("s_mul_i32 s%d, s%d, 3072" % (sT0, sWAVE)); a("s_add_u32 s%d, s%d, %d" % (sT0, sT0, PB0)); a("v_add_u32 v%d, s%d, v%d" % (vPW, sT0, vT))
    a("s_mul_i32 s%d, s%d, %d" % (sT0, sWAVE, PAIR)); a("s_add_u32 s%d, s%d, 32768" % (sT0, sT0)); a("v_add_u32 v%d, s%d, v%d" % (vPWR, sT0, vT))
    a("v_add_u32 v%d, %d, v%d" % (vPW + 1, 156672, vT))
    sD, sDP, sSL = sDK, sNEG + 0, sSLOT
    sD, sDP = 56, 69
    a("s_mov_b32 s%d, 0" % sSLOT); a("s_mov_b32 s%d, 0" % sDP); a("s_mov_b32 s%d, 0x%x" % (sNEG, -3 * PAIR & 0xffffffff))
    def epilogue(buf):
        epi = []
        for j in range(3):
            d = PK(buf, j)
            for z in range(2):
                A_ = ACC(buf, z, j)
                epi.append("v_cvt_pk_bf16_f32 v%d, v%d, v%d" % (d + 2 * z, A_, A_ + 1)); epi.append("v_cvt_pk_bf16_f32 v%d, v%d, v%d" % (d + 2 * z + 1, A_ + 2, A_ + 3))
            epi.append("ds_write_b128 v%d, %s offset:%d" % (vPW + buf, vr(d, 4), j * 1024))
        return epi
    def o_step(buf, last):
        epi = epilogue(buf ^ 1)
        cvts = [x for x in epi if x.startswith("v_cvt")]; wrs = [x for x in epi if x.startswith("ds_write")]
        extra = {kk: {g: [] for g in range(6)} for kk in range(8)}
        if "ostep_old" in OPT:
            seq = epi; pos = [(1, 1), (1, 1), (1, 2), (1, 2), (1, 3), (1, 4), (1, 4), (1, 5), (2, 1), (2, 1), (2, 2), (2, 3), (2, 3), (2, 4), (2, 5)]
            for x, (kk, g) in zip(seq, pos): extra[kk][g].append(x)
        else:
            cpos = [(1, 0), (1, 1), (1, 2), (1, 3), (1, 4), (2, 0), (2, 1), (2, 2), (2, 3), (3, 0), (3, 1), (3, 2)]
            for x, (kk, g) in zip(cvts, cpos): extra[kk][g].append(x)
            for x, (kk, g) in zip(wrs, [(1, 5), (2, 5), (3, 4)]): extra[kk][g].append(x)
        for kk in range(8):
            G = kk
            hs, s = (0, kk) if kk < 4 else (1, kk - 4)
            rd = []; barrier = (kk == 5)
            if kk == 4 and not last:
                extra[4][4] += ["s_add_u32 s%d, s%d, 1" % (sSLOT, sSLOT), "s_and_b32 s%d, s%d, 3" % (sSLOT, sSLOT)]
                extra[4][5] += ["s_cmp_eq_u32 s%d, 0" % sSLOT, "s_cselect_b32 s%d, s%d, %d" % (sD, sNEG, PAIR)]
            pre = []
            if kk == 5 and not last:
                pre += ["v_add_u32 v%d, s%d, v%d" % (vAO + 0, sD, vAO + 0), "v_add_u32 v%d, s%d, v%d" % (vAO + 1, sD, vAO + 1)]
                extra[6][4].append("s_mov_b32 s%d, s%d" % (sDP, sD))
            if kk == 0:
                extra[0][4].append("v_add_u32 v%d, s%d, v%d" % (vAO + 2, sDP, vAO + 2)); extra[0][5].append("v_add_u32 v%d, s%d, v%d" % (vAO + 3, sDP, vAO + 3))
            if kk == 4 and buf == 0: extra[4][3].append("v_mov_b32 v%d, v%d" % (vPW + 1, vPWR))
            if not (last and kk + LOOK >= 8): rd = a_reads(G + LOOK)
            younger = 4 * (LOOK - 1) if not last else 4 * min(LOOK - 1, 7 - kk)
            if barrier: younger = min(younger, 4)
            a("s_waitcnt lgkmcnt(%d)" % younger)
            if barrier: a("s_barrier")
            for x in pre: a(x)
            mf = []
            for z in range(2):
                for j in range(3):
                    bsrc = OA(s, j) if hs == 0 else OB(s, j)
                    cc = "0" if kk == 0 else vr(ACC(buf, z, j), 4)
                    mf.append("%s %s, %s, %s, %s" % (MF, vr(ACC(buf, z, j), 4), vr(AF(2 * G + z), 4), vr(bsrc, 4), cc))
            fill = spread(rd, [0, 1, 2, 3]) if rd else {}
            fill = merge(fill, extra[kk])
            for x in interleave(mf, fill): a(x)
    lo = a.label("Lo")
    a("s_mov_b32 s%d, 0" % sCNT)
    if ALIGN_O is not None:
        a(".p2align 6")
        for _ in range(ALIGN_O): a("s_nop 0")
    a("%s:" % lo)
    o_step(0, False); o_step(1, False)
    a("s_add_u32 s%d, s%d, 1" % (sCNT, sCNT)); a("s_cmp_lt_u32 s%d, 4" % sCNT); a("s_cbranch_scc1 %s" % lo)
    o_step(0, True)
    a("s_nop 7")
    for x in epilogue(0): a(x)
    a("s_waitcnt lgkmcnt(0)")
    a("s_barrier")
    stamp(a, 4, 14)
    stamp(a, 5)
    stamp_flush(a)
    a("v_mov_b32 v1, v%d" % vLANE)
    a("s_mov_b32 s%d, s%d" % (sCNT, sWAVE))
    a("s_branch L_reduce")
    for r in rare: a(r)

def mk_srd(a, b, lo, hi, off, size):
    a("s_add_u32 s%d, s%d, s%d" % (b, lo, off)); a("s_addc_u32 s%d, s%d, 0" % (b + 1, hi)); a("s_mov_b32 s%d, %d" % (b + 2, size)); a("s_mov_b32 s%d, 0x20000" % (b + 3))

def late_srds(a, role):
    a("s_lshl_b32 s%d, s%d, 4" % (sT0, sB)); a("s_add_u32 s%d, s%d, s%d" % (sT0, sT0, sH))
    if role == "kv":
        a("s_lshl_b32 s%d, s%d, 18" % (sT1, sT0)); mk_srd(a, sK, 6, 7, sT1, 262144); mk_srd(a, sV, 8, 9, sT1, 262144)
        a("s_mul_i32 s%d, s%d, %d" % (sT1, sT0, PART)); a("s_add_u32 s%d, s%d, %d" % (sT1, sT1, WS_PART)); mk_srd(a, sP, 18, 19, sT1, PART)
    if role == "w":
        if "kv4" in OPT: a("s_lshl_b32 s%d, s%d, 18" % (sT1, sT0)); mk_srd(a, sK, 6, 7, sT1, 262144); mk_srd(a, sV, 8, 9, sT1, 262144)
        a("s_mul_i32 s%d, s%d, 294912" % (sT1, sH)); mk_srd(a, sWO, 12, 13, sT1, 294912)
    a("s_mul_i32 s%d, s%d, 110592" % (sT1, sB)); mk_srd(a, sOUT, 14, 15, sT1, 110592)
    a("s_mul_i32 s%d, s%d, %d" % (sT1, sB, 16 * PART)); a("s_add_u32 s%d, s%d, %d" % (sT1, sT1, WS_PART)); mk_srd(a, sPB, 18, 19, sT1, 16 * PART)
    a("s_mul_i32 s%d, s%d, %d" % (sT1, sB, 9 * 128)); a("s_add_u32 s%d, s%d, %d" % (sT1, sT1, WS_FLAG)); mk_srd(a, sFL, 18, 19, sT1, 9 * 128)
    if STAMP:
        a("s_lshl_b32 s%d, s2, 9" % sT1); a("s_add_u32 s%d, s18, s%d" % (sSTAMP, sT1)); a("s_addc_u32 s%d, s19, 0" % (sSTAMP + 1))

def early_srds(a):
    a("s_mul_i32 s%d, s%d, 110592" % (sT1, sB)); mk_srd(a, sX, 4, 5, sT1, 110592)
    a("s_lshl_b32 s%d, s%d, 9" % (sT1, sH)); mk_srd(a, sWQ, 10, 11, sT1, 0); a("s_sub_u32 s%d, 4718592, s%d" % (sWQ + 2, sT1))

def gen_k1():
    a = Asm(); a.stamp_wave = 0; a.stamp_tmp = 252
    if STAMP: a("s_memrealtime s[84:85]")
    a("s_cmp_ge_u32 s2, 256"); a("s_cbranch_scc1 L_k1_end")
    a("s_load_dwordx8 s[4:11], s[0:1], 0")
    a("s_load_dwordx4 s[12:15], s[0:1], 32")
    a("s_load_dwordx4 s[16:19], s[0:1], 48")
    a("v_lshrrev_b32 v1, 6, v0")
    a("s_and_b32 s%d, s2, 7" % sXCD); a("s_lshr_b32 s%d, s2, 3" % sIDX)
    a("v_readfirstlane_b32 s%d, v1" % sWAVE)
    a("s_and_b32 s%d, s%d, 1" % (sB, sXCD)); a("s_lshl_b32 s%d, s%d, 3" % (sB, sB)); a("s_and_b32 s%d, s%d, 7" % (sT2, sIDX)); a("s_add_u32 s%d, s%d, s%d" % (sB, sB, sT2))
    a("s_lshr_b32 s%d, s%d, 1" % (sH, sXCD)); a("s_lshl_b32 s%d, s%d, 2" % (sH, sH)); a("s_lshr_b32 s%d, s%d, 3" % (sT2, sIDX)); a("s_add_u32 s%d, s%d, s%d" % (sH, sH, sT2))
    a("v_and_b32 v1, 63, v0")
    a("s_sub_u32 s%d, s%d, 4" % (sLW, sWAVE))
    a("s_cmp_lt_u32 s%d, 2" % sLW); a("s_cbranch_scc0 L_notw")
    a.stamp_wave = 4; a.stamp_tmp = 40
    if STAMP: a("v_mov_b32 v40, 0")
    gen_wloader(a)
    a("L_notw:")
    a("s_cmp_ge_u32 s%d, 4" % sWAVE); a("s_cbranch_scc1 L_kvloader")
    a.stamp_wave = 0
    a("s_waitcnt lgkmcnt(0)")
    late_srds(a, "c")
    gen_compute(a)
    a("L_kvloader:")
    a.stamp_wave = 4
    if STAMP: a("v_mov_b32 v40, 0")
    a("s_waitcnt lgkmcnt(0)")
    late_srds(a, "kv")
    gen_kvloader(a)
    gen_reducer(a)
    a("L_k1_end:")
    a("s_endpgm")
    return a.text()

def build(fn, stamp=False, opt=()):
    global STAMP, OPT
    STAMP = stamp; OPT = set(opt)
    k1 = gen_k1()
    errs = hazard.check(k1, "k1")
    for e in errs[:10]: print(e)
    if errs: print("k1: %d hazard warnings" % len(errs))
    txt = HEADER + "; @launch grid=(256,1,1) block=(512,1,1) lds=%d\n" % LDS_BYTES
    txt += '.amdgcn_target "amdgcn-amd-amdhsa--gfx950"\n.text\n' + kernel_begin(KNAME) + k1 + '\n.section .rodata,"a"\n.p2align 6\n' + kernel_desc(KNAME, 256, 102, 256)
    open(fn, "w").write(txt)
    print(fn, len(txt), "bytes,", txt.count("\n"), "lines")

if __name__ == "__main__":
    def pieces(start, per):
        d = {}; st = start
        for kind in "KV":
            for lo in range(0, 8, per):
                d.setdefault(st, []).append((kind, 0, lo, lo + per)); st += 1
        return d
    def mk(start, per, i1at):
        d = pieces(start, per)
        d.setdefault(i1at, []).extend([("K", 1), ("V", 1)])
        d.setdefault(19, []).extend([("K", 2), ("V", 2)])
        return d
    PF0 = 0
    O = ["rotq", "nopfq", "notlb"]
    KSCHED = mk(12, 4, 18)
    TAB = None
    D = O + ["dot2", "split0"]
    C = D + ["cpf0"]
    RAMP = 2; ALIGN_T = 0; ALIGN_R = 0
    build("v8.s", False, C); build("v8_st.s", True, C)
```

```python
import sys, struct
from asmlib import *
import hazard
from sched import Item, schedule, auto_lgkm, model_cycles

def f32(x): return "0x%08x" % struct.unpack("<I", struct.pack("<f", x))[0]
C_SCALE = 1.4426950408889634 / (128 ** 0.5)

PAIR = 35840
KGRP, VGRP = 1088, 1152
VOFF = 16 * KGRP
WBASE = 2 * PAIR
XBASE = WBASE + 4 * 16384
XSLOT = 12288
EXCH = 3 * PAIR
LDS_BYTES = 163840
PART = 108 * 1024
WS_PART = 1 << 20
WS_FLAG = 1 << 19
KNAME = 'standalone__gqa_block_cached__near_ridge_kernel'
OPT = set()
STAMP = False

sK, sV, sX, sWQ, sWO, sP = 20, 24, 28, 32, 36, 40
sWAVE, sB, sH, sLW = 44, 45, 46, 47
sT0, sT1, sT2, sT3 = 48, 49, 50, 51
sLWK, sLW3072, sLWV, sLW4096 = 52, 53, 59, 66
sTHR, sCNT, sDK, sNEG, sSLOT = 54, 55, 56, 57, 58
sSTAMP = 60
sTM = 62
sQI, sRH = 64, 65
sXCD, sIDX = 67, 68
sPF = 72
sPF2 = 76
sFL = 8
sPB = 4
sOUT = 12
def srd(b): return "s[%d:%d]" % (b, b + 3)
def vr(b, n=1): return "v%d" % b if n == 1 else "v[%d:%d]" % (b, b + n - 1)

def _stamp(a, idx, instr):
    if not STAMP: return
    a("%s s[%d:%d]" % (instr, sTM, sTM + 1)); a("s_waitcnt lgkmcnt(0)")
    if a.stamp_wave == 0: a("s_mov_b32 s%d, s%d" % (80 + idx, sTM))
    else: a("v_writelane_b32 v40, s%d, %d" % (sTM, idx))
def stamp(a, idx, cyc=None):
    _stamp(a, idx, "s_memrealtime")
    if cyc is not None: _stamp(a, cyc, "s_memtime")
DBG_WG = 37
def stamp_flush(a):
    if not STAMP: return
    if "dbg" in OPT:
        sk = a.label("Ldbgs")
        a("s_cmp_lg_u32 s2, %d" % DBG_WG); a("s_cbranch_scc1 %s" % sk)
        a("s_cmp_lg_u32 s%d, %d" % (sWAVE, a.stamp_wave)); a("s_cbranch_scc1 %s" % sk)
        a("v_mov_b32 v1, 0")
        if a.stamp_wave == 0:
            for dw, (j, j0) in zip((1, 2, 3, 5, 6, 7, 9, 10, 11), ((1, 0), (2, 0), (3, 0), (4, 0), (11, 10), (12, 11), (13, 12), (14, 13), (7, 6))):
                a("s_sub_u32 s%d, s%d, s%d" % (sT0, 80 + j, 80 + j0)); a("v_mov_b32 v2, s%d" % sT0); a("global_store_dword v1, v2, s[16:17] offset:%d" % (4 * dw))
        else:
            a("v_readlane_b32 s%d, v40, 15" % sT0); a("v_readlane_b32 s%d, v40, 16" % sT1); a("s_nop 3"); a("s_sub_u32 s%d, s%d, s%d" % (sT0, sT0, sT1)); a("v_mov_b32 v2, s%d" % sT0)
            a("global_store_dword v1, v2, s[16:17] offset:52")
            a("v_readlane_b32 s%d, v40, 36" % sT0); a("s_nop 3"); a("s_sub_u32 s%d, s%d, s%d" % (sT0, sT0, sT1)); a("v_mov_b32 v2, s%d" % sT0)
            a("global_store_dword v1, v2, s[16:17] offset:56")
        a("%s:" % sk)
        return
    sk = a.label("Lst")
    a("s_cmp_lg_u32 s%d, %d" % (sWAVE, a.stamp_wave)); a("s_cbranch_scc1 %s" % sk)
    if a.stamp_wave == 0:
        a("v_mov_b32 v1, 0")
        for i in range(16):
            if i in (8, 9, 15): continue
            a("v_mov_b32 v2, s%d" % (80 + i)); a("global_store_dword v1, v2, s[%d:%d] offset:%d" % (sSTAMP, sSTAMP + 1, 4 * i))
    else:
        a("v_and_b32 v2, 63, v0"); a("v_lshlrev_b32 v3, 2, v2")
        a("v_cmp_lt_u32 vcc, 14, v2"); a("v_cmp_eq_u32 s[96:97], 8, v2"); a("s_or_b64 vcc, vcc, s[96:97]"); a("v_cmp_eq_u32 s[96:97], 9, v2"); a("s_or_b64 vcc, vcc, s[96:97]")
        a("s_and_saveexec_b64 s[96:97], vcc")
        a("global_store_dword v3, v40, s[%d:%d]" % (sSTAMP, sSTAMP + 1))
        a("s_mov_b64 exec, s[96:97]")
    a("%s:" % sk)

def common_prologue(a, endlab, nwg):
    if STAMP: a("s_memrealtime s[84:85]")
    a("s_cmp_ge_u32 s2, %d" % nwg); a("s_cbranch_scc1 %s" % endlab)
    a("s_load_dwordx8 s[4:11], s[0:1], 0")
    a("s_load_dwordx4 s[12:15], s[0:1], 32")
    a("s_load_dwordx4 s[16:19], s[0:1], 48")
    a("v_lshrrev_b32 v1, 6, v0")
    a("s_nop 0")
    a("v_readfirstlane_b32 s%d, v1" % sWAVE)
    a("s_waitcnt lgkmcnt(0)")

class VQ:
    def __init__(s): s.q = []
    def issue(s, tag, n=1): s.q += [tag] * n
    def wait(s, tags):
        idx = [i for i, t in enumerate(s.q) if t in tags]
        if not idx: return None
        last = max(idx); n = len(s.q) - 1 - last
        s.q = s.q[last + 1:]
        return min(n, 63)

KV_FLAGS = " nt"
W_FLAGS = ""
O_FLAGS = ""
P_FLAGS = " sc0 sc1"


def gen_loader(a):
    a("s_sub_u32 s%d, s%d, 4" % (sLW, sWAVE))
    a("v_and_b32 v1, 63, v0")
    if STAMP: a("v_mov_b32 v40, 0")
    a("s_cmp_ge_u32 s%d, 2" % sLW); a("s_cbranch_scc1 L_kvloader")
    gen_wloader(a)
    a("L_kvloader:")
    gen_kvloader(a)

def mk_bar(a, q, trace_base=None):
    def bar(tags):
        n = q.wait(tags) if tags else None
        if n is not None and "nowait" not in OPT: a("s_waitcnt vmcnt(%d)" % n)
        if "trace" in OPT and bar.n < 48 and trace_base is not None: stamp(a, 16 + bar.n)
        a("s_barrier")
        bar.n += 1
    bar.n = 0
    return bar

def dma(a, vreg, srdb, soff, imm, flags):
    if "noload" in OPT: return
    a("buffer_load_dwordx4 v%d, %s, s%d offen offset:%d%s lds" % (vreg, srd(srdb), soff, imm, flags))

def emit_pf(a, chunks, lane=1):
    if not chunks: return
    sk = a.label("Lpfq"); skx = a.label("Lpfx")
    a("s_cmp_ge_u32 s%d, 28" % sIDX); a("s_cbranch_scc1 %s" % sk)
    a("s_cmp_ge_u32 s%d, 16" % sIDX); a("s_cbranch_scc1 %s" % skx)
    a("v_lshrrev_b32 v30, 4, v%d" % lane); a("v_and_b32 v31, 15, v%d" % lane)
    a("s_lshl_b32 s%d, s%d, 2" % (sT0, sIDX)); a("v_add_u32 v30, s%d, v30" % sT0); a("v_lshlrev_b32 v30, 13, v30"); a("v_lshlrev_b32 v31, 7, v31"); a("v_add_u32 v30, v30, v31")
    for cp in chunks:
        if isinstance(cp, int): a("s_mov_b32 s%d, %d" % (sT0, cp * 64 * 8192))
        else: a("s_lshl_b32 s%d, s%d, 19" % (sT0, cp[0])); a("s_add_u32 s%d, s%d, %d" % (sT0, sT0, cp[1] * 64 * 8192))
        a("buffer_load_dword v32, v30, %s, s%d offen" % (srd(sPF), sT0))
    a("s_branch %s" % sk)
    a("%s:" % skx)
    a("s_sub_u32 s%d, s%d, 16" % (sT0, sIDX)); a("s_lshl_b32 s%d, s%d, 6" % (sT0, sT0)); a("v_add_u32 v30, s%d, v%d" % (sT0, lane)); a("v_mul_u32_u24 v30, 1152, v30")
    for cp in chunks:
        if isinstance(cp, int): a("s_mov_b32 s%d, %d" % (sT0, cp * 128))
        else: a("s_lshl_b32 s%d, s%d, 7" % (sT0, cp[0])); a("s_add_u32 s%d, s%d, %d" % (sT0, sT0, cp[1] * 128))
        a("buffer_load_dword v32, v30, %s, s%d offen" % (srd(sPF2), sT0))
    a("%s:" % sk)

def code_prefetch(a, lane=1):
    if "nocpf" in OPT: return
    lab = a.label("Lcpf")
    a("s_getpc_b64 s[94:95]")
    a("%s:" % lab)
    a("s_sub_u32 s94, s94, (%s - %s)" % (lab, KNAME)); a("s_subb_u32 s95, s95, 0")
    a("s_lshl_b32 s%d, s%d, 11" % (sT0, sIDX))
    a("v_and_b32 v34, 15, v%d" % lane); a("v_lshlrev_b32 v34, 7, v34"); a("v_add_u32 v34, s%d, v34" % sT0)
    a("v_min_u32 v34, (L_k1_end - %s), v34" % KNAME)
    a("global_load_dword v35, v34, s[94:95]")

def attn_kv4(a, is_w, iss_O=None, cpf=None):
    vK4, vV4 = 18, 19
    sL4, sMK, sMV, sTK, sKS = 86, 88, 89, 87, 90
    a("s_sub_u32 s%d, s%d, 4" % (sL4, sWAVE))
    a("v_lshrrev_b32 v2, 4, v1"); a("v_and_b32 v3, 15, v1")
    a("s_lshl_b32 s%d, s%d, 12" % (sT0, sL4)); a("v_lshlrev_b32 v4, 8, v2"); a("v_add_u32 v4, s%d, v4" % sT0)
    a("v_xor_b32 v5, v2, v3"); a("v_lshlrev_b32 v5, 4, v5"); a("v_add_u32 v%d, v4, v5" % vK4)
    a("v_lshlrev_b32 v5, 1, v2"); a("v_xor_b32 v5, v5, v3"); a("v_lshlrev_b32 v5, 4, v5"); a("v_add_u32 v%d, v4, v5" % vV4)
    a("s_mul_i32 s%d, s%d, %d" % (sMK, sL4, 4 * KGRP)); a("s_mul_i32 s%d, s%d, %d" % (sMV, sL4, 4 * VGRP)); a("s_add_u32 s%d, s%d, %d" % (sMV, sMV, VOFF))
    a("s_mov_b32 s%d, %d" % (sTK, 3 * 16384)); a("s_mov_b32 s%d, %d" % (sKS, 3 * PAIR))
    def w(n):
        if "nowait" not in OPT: a("s_waitcnt vmcnt(%d)" % n)
    def item():
        a("s_add_u32 s%d, s%d, s%d" % (sT1, sMK, sKS)); a("s_add_u32 s%d, s%d, s%d" % (sT2, sMV, sKS))
        for isK in (True, False):
            grp = KGRP if isK else VGRP
            for ii in range(4):
                a("s_add_u32 m0, s%d, %d" % (sT1 if isK else sT2, ii * (grp - 1024))); a("s_nop 0")
                dma(a, vK4 if isK else vV4, sK if isK else sV, sTK, ii * 1024, KV_FLAGS)
        a("s_add_u32 s%d, s%d, 16384" % (sTK, sTK))
        a("s_add_u32 s%d, s%d, %d" % (sKS, sKS, PAIR)); a("s_cmp_eq_u32 s%d, %d" % (sKS, 4 * PAIR)); a("s_cselect_b32 s%d, 0, s%d" % (sKS, sKS))
    if not is_w: w(16)
    a("s_barrier")
    item()
    lab = a.label("Lkv4"); a("s_mov_b32 s%d, 2" % sCNT); a("%s:" % lab)
    w(8)
    a("s_barrier")
    item()
    if is_w:
        sk = a.label("Lc4"); a("s_cmp_lg_u32 s%d, %d" % (sCNT, CPF_AT)); a("s_cbranch_scc1 %s" % sk); cpf(); a("%s:" % sk)
    a("s_add_u32 s%d, s%d, 1" % (sCNT, sCNT)); a("s_cmp_lt_u32 s%d, 14" % sCNT); a("s_cbranch_scc1 %s" % lab)
    w(8); a("s_barrier")
    if is_w: iss_O()
    w(16 if is_w else 0); a("s_barrier")
    if is_w: iss_O()
    if is_w: w(16)
    a("s_barrier")
    if is_w: iss_O()

def gen_wloader(a):
    vW, vX, vO = 10, 14, 16
    a.stamp_wave = 4
    sA, sBb = sLWK, sLWV
    a("v_lshrrev_b32 v6, 5, v1"); a("v_and_b32 v7, 31, v1")
    a("s_lshl_b32 s%d, s%d, 17" % (sT1, sLW))
    a("v_lshlrev_b32 v8, 13, v6"); a("v_add_u32 v8, s%d, v8" % sT1)
    for var in range(4):
        a("v_add_u32 v5, %d, v6" % (2 * (var & 1) + 4 * (var >> 1))); a("v_lshlrev_b32 v5, 1, v5"); a("v_xor_b32 v5, v5, v7")
        a("v_lshlrev_b32 v5, 4, v5"); a("v_add_u32 v%d, v8, v5" % (vW + var))
    a("v_lshrrev_b32 v6, 3, v1"); a("v_and_b32 v7, 7, v1")
    a("s_mul_i32 s%d, s%d, 48" % (sT1, sLW)); a("v_add_u32 v8, s%d, v6" % sT1); a("v_mul_u32_u24 v8, 1152, v8")
    a("v_lshrrev_b32 v9, 1, v6")
    for i in range(2):
        a("v_add_u32 v5, %d, v9" % (4 * i)); a("v_xor_b32 v5, v5, v7"); a("v_lshlrev_b32 v5, 4, v5"); a("v_add_u32 v%d, v8, v5" % (vX + i))
    a("v_mul_u32_u24 v8, 1152, v6")
    a("v_and_b32 v5, 3, v9"); a("v_lshlrev_b32 v5, 1, v5"); a("v_xor_b32 v5, v5, v7"); a("v_lshlrev_b32 v5, 4, v5"); a("v_add_u32 v%d, v8, v5" % vO)
    a("s_lshl_b32 s%d, s%d, 13" % (sA, sLW))
    a("s_mul_i32 s%d, s%d, 6144" % (sBb, sLW))
    a("s_lshl_b32 s%d, s%d, 14" % (sLW4096, sLW))
    a("s_mul_i32 s%d, s%d, %d" % (sLW3072, sLW, 128 * 1152))
    sWK, sXK, sOK = 98, 99, 100
    sWS, sXS, sOS = 93, 92, 91
    A_, SI, B_, SJ = ROTQ
    a("s_and_b32 s%d, s%d, 7" % (sT0, sIDX)); a("s_lshr_b32 s%d, s%d, %d" % (sT0, sT0, SI)); a("s_mul_i32 s%d, s%d, %d" % (sT0, sT0, A_))
    a("s_lshr_b32 s%d, s%d, %d" % (sT1, sIDX, 3 + SJ)); a("s_mul_i32 s%d, s%d, %d" % (sT1, sT1, B_)); a("s_add_u32 s%d, s%d, s%d" % (sT0, sT0, sT1))
    for _ in range(2): a("s_cmp_ge_u32 s%d, 9" % sT0); a("s_cselect_b32 s%d, 9, 0" % sT1); a("s_sub_u32 s%d, s%d, s%d" % (sT0, sT0, sT1))
    a("s_lshl_b32 s%d, s%d, 19" % (sWK, sT0)); a("s_lshl_b32 s%d, s%d, 7" % (sXK, sT0))
    a("s_and_b32 s%d, s%d, 7" % (sT0, sB)); a("s_lshl_b32 s%d, s%d, 7" % (sOK, sT0))
    a("s_mov_b32 s%d, %d" % (sWS, 2 * 16384)); a("s_mov_b32 s%d, 0" % sXS); a("s_mov_b32 s%d, 0" % sOS)
    a("s_add_u32 s%d, s%d, %d" % (sA, sA, WBASE)); a("s_add_u32 s%d, s%d, %d" % (sBb, sBb, XBASE))
    def adv(reg, step, wrap):
        a("s_add_u32 s%d, s%d, %d" % (reg, reg, step)); a("s_cmp_eq_u32 s%d, %d" % (reg, wrap)); a("s_cselect_b32 s%d, 0, s%d" % (reg, reg))
    def iss_W():
        a("s_add_u32 m0, s%d, s%d" % (sA, sWS))
        for ii in range(8):
            if ii == 4: a("s_add_u32 m0, m0, 4096")
            a("s_add_u32 s%d, s%d, %d" % (sT0, sWK, 16384 * ii - (ii & 3) * 1024))
            dma(a, vW + (ii & 1) + 2 * (ii >> 2), sWQ, sT0, (ii & 3) * 1024, W_FLAGS)
        adv(sWK, 262144, 18 * 262144); adv(sWS, 16384, 65536)
    def iss_X():
        a("s_add_u32 m0, s%d, s%d" % (sBb, sXS))
        for ii in range(6):
            if ii == 4: a("s_add_u32 m0, m0, 4096")
            a("s_add_u32 s%d, s%d, %d" % (sT0, sXK, 9216 * ii - (ii & 3) * 1024))
            dma(a, vX + (ii & 1), sX, sT0, (ii & 3) * 1024, W_FLAGS)
        adv(sXK, 128, 9 * 128); a("s_xor_b32 s%d, s%d, %d" % (sXS, sXS, XSLOT))
    def iss_O():
        a("s_add_u32 s%d, s%d, s%d" % (sT1, sLW3072, sOK))
        a("s_add_u32 m0, s%d, s%d" % (sLW4096, sOS))
        for ii in range(16):
            if ii % 4 == 0 and ii: a("s_add_u32 m0, m0, 4096")
            a("s_add_u32 s%d, s%d, %d" % (sT0, sT1, 9216 * ii - (ii & 3) * 1024))
            dma(a, vO, sWO, sT0, (ii & 3) * 1024, O_FLAGS)
        adv(sOK, 128, 9 * 128); adv(sOS, PAIR, 4 * PAIR)
    tr = [16]
    def bar(w=None):
        if w is not None and "nowait" not in OPT: a("s_waitcnt vmcnt(%d)" % w)
        a("s_barrier")
    def loop(n, body, name):
        lab = a.label(name)
        a("s_mov_b32 s%d, 0" % sCNT); a("%s:" % lab)
        body()
        a("s_add_u32 s%d, s%d, 1" % (sCNT, sCNT)); a("s_cmp_lt_u32 s%d, %d" % (sCNT, n)); a("s_cbranch_scc1 %s" % lab)
    a("s_waitcnt lgkmcnt(0)")
    early_srds(a)
    if STAMP: a("v_writelane_b32 v40, s84, 16"); stamp(a, 17)
    if "look2" not in OPT:
        if "split0" in OPT:
            li = a.label("Lwi"); sk0 = a.label("Lwi0")
            a("s_mov_b32 s%d, 0" % sCNT); a("%s:" % li)
            iss_X(); iss_W(); iss_W()
            a("s_cmp_lg_u32 s%d, 0" % sCNT); a("s_cbranch_scc1 %s" % sk0)
            late_srds(a, "w")
            if STAMP: stamp(a, 18)
            if "nowait" not in OPT: a("s_waitcnt vmcnt(8)")
            if STAMP: stamp(a, 19)
            bar(None)
            a("s_mov_b32 s%d, 1" % sCNT); a("s_branch %s" % li)
            a("%s:" % sk0)
        else:
            loop(2, lambda: (iss_X(), iss_W(), iss_W()), "Lwi")
            bar(30)
        bar(22)
        iss_W()
        def qbody():
            bar(16)
            iss_X(); iss_W()
            bar(22)
            sk = a.label("Lwl"); a("s_cmp_eq_u32 s%d, 6" % sCNT); a("s_cbranch_scc1 %s" % sk)
            iss_W()
            a("%s:" % sk)
        loop(7, qbody, "Lwq")
        bar(8)
        bar(0)
    else:
        if STAMP: stamp(a, 17)
        iss_X(); iss_W(); iss_W()
        if STAMP: stamp(a, 18)
        def qbody():
            bar(8)
            iss_X(); iss_W()
            bar(14)
            iss_W()
        loop(8, qbody, "Lwq")
        bar(8)
        bar(0)
    bar(None); bar(None)
    stamp(a, 8)
    def cpf():
        sk = a.label("Lcp"); a("s_cmp_lg_u32 s%d, 1" % sLW); a("s_cbranch_scc1 %s" % sk); code_prefetch(a); a("%s:" % sk)
    if "kv4" in OPT: attn_kv4(a, True, iss_O, cpf)
    else:
        loop(CPF_AT, lambda: bar(None), "Lwa")
        cpf()
        loop(13 - CPF_AT, lambda: bar(None), "Lwb")
        loop(2, lambda: (bar(None), iss_O()), "Lwo")
        bar(16)
        iss_O()
    a("s_barrier"); a("s_barrier")
    loop(6, lambda: (bar(16), iss_O()), "Lwp")
    bar(0)
    a("s_barrier"); a("s_barrier"); a("s_barrier")
    stamp(a, 9)
    a("s_add_u32 s%d, s%d, 4" % (sCNT, sLW))
    a("s_branch L_reduce")

def dbg_check(a):
    if "nored" in OPT: return
    sk = a.label("Ldbg"); lp = a.label("Ldbgw")
    a("s_cmp_lg_u32 s%d, 0" % sLW); a("s_cbranch_scc1 %s" % sk)
    a("s_lshl_b32 s%d, s%d, 4" % (sT0, sB)); a("v_mov_b32 v12, s%d" % sT0); a("s_mov_b32 s%d, 0" % sT3)
    a("%s:" % lp)
    a("global_load_dword v13, v12, s[16:17] sc1"); a("s_waitcnt vmcnt(0)"); a("v_readfirstlane_b32 s%d, v13" % sT1)
    a("s_add_u32 s%d, s%d, 1" % (sT3, sT3)); a("s_cmp_gt_u32 s%d, %d" % (sT3, SPIN_MAX)); a("s_cbranch_scc1 %s" % sk)
    a("s_cmp_lt_u32 s%d, 16" % sT1); a("s_cbranch_scc1 %s" % lp)
    a("%s:" % sk)

def gen_kvloader(a):
    vK, vV = 10, 11
    a.stamp_wave = -1
    a("s_sub_u32 s%d, s%d, 2" % (sLW, sLW))
    a("v_lshrrev_b32 v2, 4, v1"); a("v_and_b32 v3, 15, v1")
    a("s_lshl_b32 s%d, s%d, 13" % (sT0, sLW))
    a("v_lshlrev_b32 v4, 8, v2"); a("v_add_u32 v4, s%d, v4" % sT0)
    a("v_xor_b32 v5, v2, v3"); a("v_lshlrev_b32 v5, 4, v5"); a("v_add_u32 v%d, v4, v5" % vK)
    a("v_lshlrev_b32 v5, 1, v2"); a("v_xor_b32 v5, v5, v3"); a("v_lshlrev_b32 v5, 4, v5"); a("v_add_u32 v%d, v4, v5" % vV)
    a("s_mul_i32 s%d, s%d, %d" % (sLWK, sLW, 8 * KGRP)); a("s_mul_i32 s%d, s%d, %d" % (sLWV, sLW, 8 * VGRP))
    sROT = 92
    if "krot" in OPT:
        a("s_mul_i32 s%d, s%d, %d" % (sROT, sXCD, KROT[0])); a("s_mul_i32 s%d, s%d, %d" % (sT0, sIDX, KROT[1])); a("s_add_u32 s%d, s%d, s%d" % (sROT, sROT, sT0))
    q = VQ(); bar = mk_bar(a, q, None)
    def iss(T, isK, lo=0, hi=8):
        for ii in range(lo, hi):
            if "krot" in OPT:
                if ii == lo: a("s_add_u32 s%d, s%d, %d" % (sT2, sROT, T)); a("s_and_b32 s%d, s%d, 15" % (sT2, sT2)); a("s_lshl_b32 s%d, s%d, 14" % (sT2, sT2))
                if ii % 4 == 0 or ii == lo: a("s_add_u32 s%d, s%d, %d" % (sT0, sT2, (ii >> 2) * 4096))
            elif ii % 4 == 0 or ii == lo: a("s_mov_b32 s%d, %d" % (sT0, T * 16384 + (ii >> 2) * 4096))
            grp = KGRP if isK else VGRP
            a("s_add_u32 m0, s%d, %d" % (sLWK if isK else sLWV, (T % 4) * PAIR + (0 if isK else VOFF) + ii * grp - (ii & 3) * 1024))
            if ii % 4: a("s_nop 0")
            else: a("s_nop 0")
            dma(a, vK if isK else vV, sK if isK else sV, sT0, (ii & 3) * 1024, KV_FLAGS)
        q.issue("I%d" % T, hi - lo)
    def prefetch_q():
        sk = a.label("Lpfq"); skx = a.label("Lpfx")
        a("s_cmp_lg_u32 s%d, %d" % (sLW, PF_WAVE)); a("s_cbranch_scc1 %s" % sk)
        a("s_cmp_ge_u32 s%d, 28" % sIDX); a("s_cbranch_scc1 %s" % sk)
        a("s_cmp_ge_u32 s%d, 16" % sIDX); a("s_cbranch_scc1 %s" % skx)
        a("s_lshl_b32 s%d, s%d, 2" % (sT0, sIDX)); a("v_add_u32 v5, s%d, v2" % sT0); a("v_lshlrev_b32 v5, 13, v5"); a("v_lshlrev_b32 v6, 7, v3"); a("v_add_u32 v5, v5, v6")
        for cp in range(PF_FIRST, 9):
            a("s_mov_b32 s%d, %d" % (sT0, cp * 64 * 8192)); a("buffer_load_dword v%d, v5, %s, s%d offen" % (20 + cp, srd(sPF), sT0))
        a("s_branch %s" % sk)
        a("%s:" % skx)
        a("s_sub_u32 s%d, s%d, 16" % (sT0, sIDX)); a("s_lshl_b32 s%d, s%d, 6" % (sT0, sT0)); a("v_add_u32 v5, s%d, v1" % sT0); a("v_mul_u32_u24 v5, 1152, v5")
        for cp in range(PF_FIRST, 9):
            a("s_mov_b32 s%d, %d" % (sT0, cp * 128)); a("buffer_load_dword v%d, v5, %s, s%d offen" % (20 + cp, srd(sPF2), sT0))
        a("%s:" % sk)
    def clear_flags(part):
        sk = a.label("Lclr")
        a("s_cmp_lg_u32 s%d, 1" % sLW); a("s_cbranch_scc1 %s" % sk)
        if part == 0:
            a("v_mov_b32 v20, 0"); a("v_mov_b32 v21, 0")
            a("s_lshl_b32 s%d, s%d, 3" % (sT0, sH))
            a("v_lshlrev_b32 v5, 7, v1"); a("v_add_u32 v5, s%d, v5" % sT0); a("v_mov_b32 v7, 0x40000000"); a("v_cmp_gt_u32 vcc, 9, v1"); a("s_nop 1"); a("v_cndmask_b32 v5, v7, v5, vcc")
            a("buffer_store_dwordx2 v[20:21], v5, %s, 0 offen sc0 sc1" % srd(sFL))
        else:
            a("s_waitcnt vmcnt(0)")
            a("s_lshl_b32 s%d, s%d, 4" % (sT0, sB)); a("v_mov_b32 v5, s%d" % sT0); a("v_mov_b32 v6, 1")
            a("s_mov_b64 s[96:97], exec"); a("s_mov_b64 exec, 1")
            a("global_atomic_add v5, v6, s[16:17] sc1")
            a("s_mov_b64 exec, s[96:97]")
        a("%s:" % sk)
    if "cpf0" in OPT:
        sk = a.label("Lcp0"); a("s_cmp_lg_u32 s%d, 1" % sLW); a("s_cbranch_scc1 %s" % sk); code_prefetch(a); a("%s:" % sk)
    if "notlb" not in OPT:
        sk = a.label("Ltlb")
        a("s_cmp_lg_u32 s%d, 0" % sLW); a("s_cbranch_scc1 %s" % sk)
        a("v_mov_b32 v5, 0")
        for i, sr in enumerate((sK, sV, sWO, sP, sOUT)): a("buffer_load_dword v%d, v5, %s, 0 offen nt" % (33 + i, srd(sr)))
        a("v_mul_u32_u24 v5, %d, v1" % (PART // 8)); a("v_lshlrev_b32 v5, 3, v5"); a("v_mov_b32 v7, 0x40000000"); a("v_cmp_gt_u32 vcc, 16, v1"); a("s_nop 1"); a("v_cndmask_b32 v5, v7, v5, vcc")
        a("buffer_load_dword v38, v5, %s, 0 offen nt" % srd(sPB))
        a("%s:" % sk)
    clear_flags(0)
    if "nopfq" not in OPT and PF_AT < 0: prefetch_q()
    for s in range(18):
        bar(None)
        if s == 4: clear_flags(1)
        if "nopfq" not in OPT and PF_AT == s: prefetch_q()
        for e in KSCHED.get(s, []): iss(e[1], e[0] == "K", *e[2:])
    bar(None)
    for e in KSCHED.get(18, []): iss(e[1], e[0] == "K", *e[2:])
    bar(["I0", "I1"] if "wait01" in OPT else ["I0"])
    for e in KSCHED.get(19, []): iss(e[1], e[0] == "K", *e[2:])
    if "kv4" in OPT:
        assert FIRST_RULE == 1
        attn_kv4(a, False)
    else:
        sTK, sKS = 93, 91
        def item_dyn():
            if PACE == "w7":
                sk = a.label("Lpace"); a("s_cmp_lg_u32 s%d, 1" % sLW); a("s_cbranch_scc1 %s" % sk); a("s_waitcnt vmcnt(0)"); a("%s:" % sk)
            a("s_add_u32 s%d, s%d, s%d" % (sT1, sLWK, sKS)); a("s_add_u32 s%d, s%d, s%d" % (sT2, sLWV, sKS))
            for isK in (True, False):
                if PACE == "kv": a("s_waitcnt vmcnt(8)")
                if PACE == "v" and not isK: a("s_waitcnt vmcnt(8)")
                for ii in range(8):
                    if ii % 4 == 0: a("s_add_u32 s%d, s%d, %d" % (sT0, sTK, (ii >> 2) * 4096))
                    grp = KGRP if isK else VGRP
                    a("s_add_u32 m0, s%d, %d" % (sT1 if isK else sT2, (0 if isK else VOFF) + ii * grp - (ii & 3) * 1024)); a("s_nop 0")
                    dma(a, vK if isK else vV, sK if isK else sV, sT0, (ii & 3) * 1024, KV_FLAGS)
            a("s_add_u32 s%d, s%d, 16384" % (sTK, sTK))
            a("s_add_u32 s%d, s%d, %d" % (sKS, sKS, PAIR)); a("s_cmp_eq_u32 s%d, %d" % (sKS, 4 * PAIR)); a("s_cselect_b32 s%d, 0, s%d" % (sKS, sKS))
        def wv(n):
            if "nowait" not in OPT: a("s_waitcnt vmcnt(%d)" % n)
        if LAG:
            a("s_mov_b32 s%d, %d" % (sTK, 2 * 16384)); a("s_mov_b32 s%d, %d" % (sKS, 2 * PAIR))
            lab = a.label("Lkvl"); a("s_mov_b32 s%d, 1" % sCNT); a("%s:" % lab)
            wv(0); a("s_barrier"); item_dyn()
            a("s_add_u32 s%d, s%d, 1" % (sCNT, sCNT)); a("s_cmp_le_u32 s%d, %d" % (sCNT, LAG)); a("s_cbranch_scc1 %s" % lab)
            item_dyn()
            first = LAG + 1
        else:
            if FIRST_RULE == 2:
                n1 = q.wait(["I1"])
                if n1 is not None: wv(n1)
                a("s_barrier")
            a("s_mov_b32 s%d, %d" % (sTK, (FIRST_RULE + 2) * 16384)); a("s_mov_b32 s%d, %d" % (sKS, ((FIRST_RULE + 2) % 4) * PAIR))
            first = FIRST_RULE
        lab = a.label("Lkv"); a("s_mov_b32 s%d, %d" % (sCNT, first - 1)); a("%s:" % lab)
        wv(16)
        a("s_barrier")
        item_dyn()
        a("s_add_u32 s%d, s%d, 1" % (sCNT, sCNT)); a("s_cmp_lt_u32 s%d, 13" % sCNT); a("s_cbranch_scc1 %s" % lab)
        wv(16)
        a("s_barrier")
        dbg_check(a)
        wv(0)
        a("s_barrier")
        a("s_barrier")
    if "kv4" in OPT: dbg_check(a)
    a("s_barrier"); a("s_barrier")
    vPR, vPO, vF, vOne = 20, 24, 25, 26
    sCH = 93
    a("v_lshlrev_b32 v%d, 4, v1" % vPO)
    a("s_mul_i32 s%d, s%d, 6144" % (sT0, sLW)); a("s_add_u32 s%d, s%d, %d" % (sT0, sT0, PB0)); a("v_add_u32 v%d, s%d, v%d" % (vPR, sT0, vPO)); a("v_add_u32 v%d, 3072, v%d" % (vPR + 1, vPR))
    a("s_mul_i32 s%d, s%d, %d" % (sT0, sLW, 2 * PAIR)); a("s_add_u32 s%d, s%d, 32768" % (sT0, sT0)); a("v_add_u32 v%d, s%d, v%d" % (vPR + 2, sT0, vPO)); a("v_add_u32 v%d, %d, v%d" % (vPR + 3, PAIR, vPR + 2))
    a("s_mul_i32 s%d, s%d, 6144" % (sT0, sLW)); a("v_add_u32 v%d, s%d, v%d" % (vPO, sT0, vPO))
    a("v_mov_b32 v%d, 1" % vOne)
    a("s_lshl_b32 s%d, s%d, 3" % (sT0, sH)); a("s_lshl_b32 s%d, s%d, 2" % (sT1, sLW)); a("s_add_u32 s%d, s%d, s%d" % (sT0, sT0, sT1))
    a("v_mov_b32 v%d, 0x40000000" % vF); a("s_nop 0"); a("v_writelane_b32 v%d, s%d, 0" % (vF, sT0))
    a("s_mov_b32 s%d, 0" % sCH)
    def flag_store(back):
        a("s_sub_u32 s%d, s%d, %d" % (sT0, sCH, back)); a("s_lshl_b32 s%d, s%d, 7" % (sT0, sT0))
        a("buffer_store_dword v%d, v%d, %s, s%d offen sc0 sc1" % (vOne, vF, srd(sFL), sT0))
    def turn(buf, guard):
        for w2 in range(2):
            for j in range(3): a("ds_read_b128 %s, v%d offset:%d" % (vr(64 + 32 * buf + 4 * (3 * w2 + j), 4), vPR + 2 * buf + w2, j * 1024))
        a("s_mul_i32 s%d, s%d, 12288" % (sT0, sCH))
        for i in range(6):
            a("s_waitcnt lgkmcnt(%d)" % (5 - i))
            if "nostore" not in OPT: a("buffer_store_dwordx4 %s, v%d, %s, s%d offen%s" % (vr(64 + 32 * buf + 4 * i, 4), vPO, srd(sP), sT0, P_FLAGS))
            if i < 5: a("s_add_u32 s%d, s%d, 1024" % (sT0, sT0))
        if "nored" not in OPT:
            sk = a.label("Lfl")
            if guard: a("s_cmp_lt_u32 s%d, 2" % sCH); a("s_cbranch_scc1 %s" % sk)
            a("s_waitcnt vmcnt(%d)" % FLW)
            flag_store(2)
            a("%s:" % sk)
        a("s_add_u32 s%d, s%d, 1" % (sCH, sCH))
    a("s_barrier")
    lab = a.label("Lsto"); a("%s:" % lab)
    a("s_barrier"); turn(0, True)
    a("s_barrier"); turn(1, True)
    a("s_cmp_lt_u32 s%d, 8" % sCH); a("s_cbranch_scc1 %s" % lab)
    a("s_barrier"); turn(0, False)
    if "nored" not in OPT:
        a("s_waitcnt vmcnt(7)"); flag_store(2)
        a("s_waitcnt vmcnt(1)"); flag_store(1)
    a("s_cmp_eq_u32 s%d, 0" % sLW); a("s_cselect_b32 s%d, 7, 6" % sCNT)
    a("s_branch L_reduce")

KSCHED = {2: [("K", 0)], 5: [("V", 0)], 8: [("K", 1)], 11: [("V", 1)], 16: [("K", 2)], 17: [("V", 2)]}

def gen_reducer(a):
    a("L_reduce:")
    if "nored" in OPT:
        a.stamp_wave = 4; stamp_flush(a); a("s_endpgm"); return
    rho = sCNT
    giveup = a.label("Lgiveup"); poll = a.label("Lpoll")
    a("s_mul_i32 s%d, s%d, 7" % (sT0, rho)); a("s_cmp_eq_u32 s%d, 7" % rho); a("s_cselect_b32 s%d, 48, s%d" % (sT0, sT0))
    a("s_mul_hi_u32 s%d, s%d, %d" % (sT2, sT0, (2**32 + 5) // 6))
    a("s_cmp_ge_u32 s%d, 6" % rho); a("s_cselect_b32 s%d, 48, 56" % sTASK2); a("s_cselect_b32 s%d, 0, -1" % sCNT2)
    a("v_lshlrev_b32 v9, 2, v1"); a("v_mov_b32 v7, 0x40000000")
    a("s_lshl_b32 s%d, s%d, 7" % (sT2, sT2))
    a("buffer_load_dword v11, v9, %s, s%d offen sc1" % (srd(sFL), sT2))
    a("v_lshrrev_b32 v2, 3, v1"); a("v_add_u32 v2, s%d, v2" % sT0)
    a("v_mul_u32_u24 v8, 10923, v2"); a("v_lshrrev_b32 v8, 16, v8")
    a("v_mul_u32_u24 v5, 6, v8"); a("v_sub_u32 v2, v2, v5")
    a("v_lshlrev_b32 v2, 3, v2"); a("v_and_b32 v5, 7, v1"); a("v_add_u32 v2, v2, v5")
    a("s_mul_i32 s%d, s%d, 48" % (sT1, sH)); a("v_add_u32 v2, s%d, v2" % sT1)
    a("v_mul_u32_u24 v3, 12288, v8"); a("v_lshlrev_b32 v5, 4, v2"); a("v_add_u32 v3, v3, v5")
    a("v_cmp_gt_u32 vcc, s%d, v1" % sTASK2); a("s_nop 1"); a("v_cndmask_b32 v3, v7, v3, vcc")
    a("v_lshrrev_b32 v4, 6, v2"); a("v_and_b32 v5, 63, v2")
    a("v_cmp_le_u32 s[96:97], 6, v4"); a("s_nop 1"); a("v_cndmask_b32 v6, 0, 1, s[96:97]")
    a("v_mul_u32_u24 v10, 6, v6"); a("v_sub_u32 v4, v4, v10")
    a("v_lshlrev_b32 v4, 4, v4"); a("v_and_b32 v10, 15, v5"); a("v_add_u32 v4, v4, v10"); a("v_mul_u32_u24 v4, 1152, v4")
    a("v_lshlrev_b32 v6, 6, v6"); a("v_lshrrev_b32 v5, 4, v5"); a("v_lshlrev_b32 v5, 3, v5"); a("v_add_u32 v4, v4, v6"); a("v_add_u32 v4, v4, v5")
    a("s_and_b32 s%d, s%d, 7" % (sT1, sB)); a("v_add_u32 v8, s%d, v8" % sT1)
    a("v_cmp_le_u32 s[96:97], 9, v8"); a("s_nop 1"); a("v_cndmask_b32 v6, 0, 9, s[96:97]"); a("v_sub_u32 v8, v8, v6"); a("v_lshlrev_b32 v8, 7, v8"); a("v_add_u32 v4, v4, v8")
    a("v_cndmask_b32 v4, v7, v4, vcc")
    a("s_mov_b32 s%d, 0" % sT3)
    a("s_branch %s_chk" % poll)
    a("%s:" % poll)
    a("buffer_load_dword v11, v9, %s, s%d offen sc1" % (srd(sFL), sT2))
    a("%s_chk:" % poll)
    a("s_waitcnt vmcnt(0)")
    a("v_cmp_eq_u32 vcc, 1, v11")
    a("s_add_u32 s%d, s%d, 1" % (sT3, sT3)); a("s_cmp_gt_u32 s%d, %d" % (sT3, SPIN_MAX)); a("s_cbranch_scc1 %s" % giveup)
    a("s_orn2_b32 vcc_hi, vcc_hi, s%d" % sCNT2)
    a("s_cmp_eq_u64 vcc, -1"); a("s_cbranch_scc0 %s" % poll)
    a("s_mov_b32 s%d, 0" % sT0)
    for h in range(16):
        a("buffer_load_dwordx4 v[%d:%d], v3, %s, s%d offen%s" % (64 + 4 * h, 67 + 4 * h, srd(sPB), sT0, R_FLAGS))
        if h < 15: a("s_add_u32 s%d, s%d, %d" % (sT0, sT0, PART))
    if "dot2" in OPT:
        a("v_mov_b32 v12, 0x00003f80"); a("v_mov_b32 v13, 0x3f800000")
        for r in range(8): a("v_mov_b32 v%d, 0" % (48 + r))
    for h in range(16):
        a("s_waitcnt vmcnt(%d)" % (15 - h))
        for r in range(4):
            src = 64 + 4 * h + r
            if "dot2" in OPT:
                a("v_dot2c_f32_bf16 v%d, v%d, v12" % (48 + 2 * r, src)); a("v_dot2c_f32_bf16 v%d, v%d, v13" % (49 + 2 * r, src))
            elif h == 0:
                a("v_lshlrev_b32 v%d, 16, v%d" % (48 + 2 * r, src)); a("v_and_b32 v%d, 0xffff0000, v%d" % (49 + 2 * r, src))
            else:
                a("v_lshlrev_b32 v12, 16, v%d" % src); a("v_and_b32 v13, 0xffff0000, v%d" % src)
                a("v_add_f32 v%d, v%d, v12" % (48 + 2 * r, 48 + 2 * r)); a("v_add_f32 v%d, v%d, v13" % (49 + 2 * r, 49 + 2 * r))
    for r in range(4): a("v_cvt_pk_bf16_f32 v%d, v%d, v%d" % (56 + r, 48 + 2 * r, 49 + 2 * r))
    a("buffer_store_dwordx2 v[56:57], v4, %s, 0 offen%s" % (srd(sOUT), OUT_FLAGS))
    a("buffer_store_dwordx2 v[58:59], v4, %s, 0 offen offset:32%s" % (srd(sOUT), OUT_FLAGS))
    a("%s:" % giveup)
    if STAMP:
        sk = a.label("Lnst"); a("s_cmp_lg_u32 s%d, 4" % sWAVE); a("s_cbranch_scc1 %s" % sk)
        a.stamp_wave = 4; stamp(a, 15); stamp_flush(a)
        a("%s:" % sk)
    a("s_endpgm")
R_FLAGS = " sc1"
OUT_FLAGS = ""
sTASK2 = 101
sCNT2 = 95
PB0 = 143360
SPIN_MAX = 200000
sWOP = 70

PF_O_AT = 10
PF_WAVE = 1
PF_FIRST = 4
PF_AT = 0
PF0 = 2
RAMP = 0
PACE = None
ALIGN_T = None
ALIGN_R = None
ALIGN_Q = None
ALIGN_O = None
LAG = 0
RAMP_EVERY = 1
FLW = 12
STG_AT = 7
NSTG0 = 3
ROTQ = (1, 0, 2, 0)
KROT = (2, 1)
CPF_AT = 11
FIRST_RULE = 1
CMP_SLACK = 6
FLAG_DELAY = 4

def O_(j, db): return (j * 8 + db) * 4
def Q_(j, s): return 96 + (j * 4 + s) * 4
def KF(f): return 144 + 4 * f
def VF(db): return 176 + 4 * db
def S_(par): return 208 + 8 * par
def P_(par): return 224 + 4 * par
def N_(j): return 232 + 4 * j
def L_(j): return 244 + j
vKA, vVA, vT, vT2, vS, vLANE = 247, 248, 252, 253, 254, 255
MF = "v_mfma_f32_16x16x32_bf16"

def interleave(mfmas, fillers):
    out = list(fillers.get(-1, []))
    for i, m in enumerate(mfmas):
        out.append(m); out += fillers.get(i, [])
    return out
def spread(items, slots):
    d = {}; n = len(items)
    for i, it in enumerate(items): d.setdefault(slots[i * len(slots) // n], []).append(it)
    return d
def merge(*ds):
    o = {}
    for d in ds:
        for k, v in d.items(): o.setdefault(k, []).extend(v)
    return o

KORD = [(kb, s) for s in range(4) for kb in range(2)]
def k_read(kb, s, half, ad=None):
    return "ds_read_b128 %s, v%d offset:%d" % (vr(KF(kb * 4 + s), 4), vKA if ad is None else ad, half * 8 * KGRP + kb * 4 * KGRP + s * 64)
def v_reads(db, half):
    A, cc = divmod(db, 4)
    o = half * 8 * VGRP + A * 128
    return ["ds_read_b64_tr_b16 %s, v%d offset:%d" % (vr(VF(db), 2), vVA + cc, o), "ds_read_b64_tr_b16 %s, v%d offset:%d" % (vr(VF(db) + 2, 2), vVA + cc, o + 4 * VGRP)]

TAB = None
def hoist_waits(lines):
    out = []
    for l in lines:
        if l.startswith("s_waitcnt lgkmcnt") and out:
            n = int(l.split("(")[1].split(")")[0])
            k = len(out) - 1; jumped = 0; ok = False
            while k >= 0:
                x = out[k]
                if x.startswith("v_mfma"): ok = True; break
                if x.endswith(":") or x.startswith(("s_cbranch", "s_barrier", "s_waitcnt")): break
                if x.startswith("ds_"): jumped += 1
                k -= 1
            if ok and n - jumped >= 0:
                out.insert(k + 1, "s_waitcnt lgkmcnt(%d)" % (n - jumped)); continue
        out.append(l)
    return out

def gen_compute(a):
    rare = []
    a("v_and_b32 v%d, 63, v0" % vLANE)
    a("s_lshr_b32 s%d, s%d, 1" % (sQI, sWAVE)); a("s_and_b32 s%d, s%d, 1" % (sRH, sWAVE))
    g, rp, c, q = 240, 241, 242, 243
    a("v_lshrrev_b32 v%d, 4, v%d" % (g, vLANE)); a("v_bfe_u32 v%d, v%d, 2, 2" % (rp, vLANE)); a("v_and_b32 v%d, 3, v%d" % (c, vLANE)); a("v_and_b32 v%d, 15, v%d" % (q, vLANE))
    vWA, vXA = 232, 244
    t, t2 = vT, vT2
    a("v_lshlrev_b32 v%d, 3, v%d" % (t, g)); a("v_add_u32 v%d, v%d, v%d" % (t, t, rp)); a("v_lshlrev_b32 v%d, 9, v%d" % (t, t))
    a("v_and_b32 v%d, 1, v%d" % (t2, g)); a("v_lshlrev_b32 v%d, 2, v%d" % (t2, t2)); a("v_add_u32 v%d, v%d, v%d" % (t2, t2, rp)); a("v_lshlrev_b32 v%d, 5, v%d" % (t2, t2))
    a("v_add_u32 v%d, v%d, v%d" % (t, t, t2)); a("v_lshlrev_b32 v%d, 3, v%d" % (t2, c)); a("v_add_u32 v%d, v%d, v%d" % (t, t, t2))
    a("s_lshl_b32 s%d, s%d, 8" % (sT0, sQI)); a("s_add_u32 s%d, s%d, %d" % (sT0, sT0, WBASE)); a("v_add_u32 v%d, s%d, v%d" % (t, sT0, t))
    assert WBASE % 256 == 0 and XBASE % 128 == 0
    for db in range(8): a("v_xor_b32 v%d, %d, v%d" % (vWA + db, db * 32, t))
    a("s_mul_i32 s%d, s%d, %d" % (sT0, sRH, 48 * 128)); a("s_add_u32 s%d, s%d, %d" % (sT0, sT0, XBASE))
    a("v_lshrrev_b32 v%d, 1, v%d" % (t, q)); a("v_xor_b32 v%d, v%d, v%d" % (t, t, g)); a("v_lshlrev_b32 v%d, 4, v%d" % (t, t))
    a("v_lshlrev_b32 v%d, 7, v%d" % (t2, q)); a("v_add_u32 v%d, v%d, v%d" % (t, t, t2)); a("v_add_u32 v%d, s%d, v%d" % (vXA, sT0, t)); a("v_xor_b32 v%d, 64, v%d" % (vXA + 1, vXA))
    a("v_lshrrev_b32 v%d, 2, v%d" % (t, q)); a("v_mul_u32_u24 v%d, %d, v%d" % (t, KGRP, t))
    a("v_and_b32 v%d, 3, v%d" % (t2, q)); a("v_lshlrev_b32 v%d, 8, v%d" % (vKA, t2)); a("v_add_u32 v%d, v%d, v%d" % (t, t, vKA))
    a("v_xor_b32 v%d, v%d, v%d" % (t2, t2, g)); a("v_lshlrev_b32 v%d, 4, v%d" % (t2, t2)); a("v_add_u32 v%d, v%d, v%d" % (vKA, t, t2))
    a("v_mul_u32_u24 v%d, %d, v%d" % (t, VGRP, g)); a("v_lshlrev_b32 v%d, 8, v%d" % (t2, rp)); a("v_add_u32 v%d, v%d, v%d" % (t, t, t2))
    a("v_lshlrev_b32 v%d, 3, v%d" % (t2, c)); a("v_add_u32 v%d, v%d, v%d" % (t, t, t2)); a("v_add_u32 v%d, %d, v%d" % (t, VOFF, t))
    for cc in range(4):
        a("v_xor_b32 v%d, %d, v%d" % (t2, cc, rp)); a("v_lshlrev_b32 v%d, 5, v%d" % (t2, t2)); a("v_add_u32 v%d, v%d, v%d" % (vVA + cc, t, t2))
    stamp(a, 0, 10)

    def ABUF(buf, db): return 144 + 32 * buf + 4 * db
    def BBUF(buf, j): return 208 + 12 * buf + 4 * j
    def q_reads(s):
        buf = s & 1; wo = ((s + 2) % 4) * 16384; xo = ((s // 2) % 2) * XSLOT
        r = []
        for j in range(3): r.append("ds_read_b128 %s, v%d offset:%d" % (vr(BBUF(buf, j), 4), vXA + (s & 1), xo + j * 2048))
        for db in range(8):
            r.append("ds_read_b64_tr_b16 %s, v%d offset:%d" % (vr(ABUF(buf, db), 2), vWA + db, wo))
            r.append("ds_read_b64_tr_b16 %s, v%d offset:%d" % (vr(ABUF(buf, db) + 2, 2), vWA + db, wo + 2048))
        return r
    for r in range(0, 96, 2): a("v_mov_b64 %s, 0" % vr(r, 2))
    a("s_barrier")
    for x in q_reads(0): a(x)
    def q_stage(s, reads=True):
        buf = s & 1
        a("s_waitcnt lgkmcnt(0)")
        a("s_barrier")
        mf = []
        for db in range(8):
            for j in range(3):
                mf.append("%s %s, %s, %s, %s" % (MF, vr(O_(j, db), 4), vr(ABUF(buf, db), 4), vr(BBUF(buf, j), 4), vr(O_(j, db), 4)))
        rd = q_reads(s + 1) if reads else []
        for x in interleave(mf, spread(rd, list(range(0, 17))) if rd else {}): a(x)
    lq = a.label("Lq")
    a("s_mov_b32 s%d, 0" % sCNT)
    if ALIGN_Q is not None:
        a(".p2align 6")
        for _ in range(ALIGN_Q): a("s_nop 0")
    a("%s:" % lq)
    for s in range(4): q_stage(s)
    a("s_add_u32 s%d, s%d, 1" % (sCNT, sCNT)); a("s_cmp_lt_u32 s%d, 4" % sCNT); a("s_cbranch_scc1 %s" % lq)
    q_stage(16); q_stage(17, reads=False)
    stamp(a, 1, 11)
    a("s_mov_b32 s%d, %s" % (sT0, f32(C_SCALE))); a("s_mov_b32 s%d, s%d" % (sT0 + 1, sT0))
    a("v_mov_b64 v[232:233], 0"); a("v_mov_b64 v[234:235], 0")
    a("s_nop 4")
    blocks = [(j, s) for s in range(4) for j in range(3)]
    for p in range(0, 12, 2):
        pair = blocks[p:p + 2]
        regs = [(O_(j, 2 * s), O_(j, 2 * s + 1), Q_(j, s)) for j, s in pair]
        for X, Y, D in regs:
            for b in (X, Y):
                for r in (0, 2): a("v_pk_mul_f32 %s, %s, s[%d:%d]" % (vr(b + r, 2), vr(b + r, 2), sT0, sT0 + 1))
        for X, Y, D in regs:
            a("v_cvt_pk_bf16_f32 v%d, v%d, v%d" % (D + 0, X + 0, X + 1)); a("v_cvt_pk_bf16_f32 v%d, v%d, v%d" % (D + 1, X + 2, X + 3))
            a("v_cvt_pk_bf16_f32 v%d, v%d, v%d" % (D + 2, Y + 0, Y + 1)); a("v_cvt_pk_bf16_f32 v%d, v%d, v%d" % (D + 3, Y + 2, Y + 3))
        zs = [b for X, Y, D in regs for b in (X, Y)]
        def z(i):
            if "zmov" in OPT: a("v_mov_b64 %s, 0" % vr(zs[i], 2)); a("v_mov_b64 %s, 0" % vr(zs[i] + 2, 2))
            else: a("%s %s, v[232:235], v[232:235], 0" % (MF, vr(zs[i], 4)))
        z(0)
        for X, Y, D in regs: a("v_permlane32_swap_b32 v%d, v%d" % (D + 0, D + 2)); a("v_permlane32_swap_b32 v%d, v%d" % (D + 1, D + 3))
        z(1)
        a("v_permlane16_swap_b32 v%d, v%d" % (regs[0][2] + 0, regs[0][2] + 2)); a("v_permlane16_swap_b32 v%d, v%d" % (regs[0][2] + 1, regs[0][2] + 3))
        z(2)
        a("v_permlane16_swap_b32 v%d, v%d" % (regs[1][2] + 0, regs[1][2] + 2)); a("v_permlane16_swap_b32 v%d, v%d" % (regs[1][2] + 1, regs[1][2] + 3))
        z(3)
    if "stB0" in OPT: stamp(a, 5)
    a("s_barrier")
    for kb, s_ in KORD: a(k_read(kb, s_, 0))
    a("s_waitcnt lgkmcnt(0)")
    for j in range(3):
        for kb, s_ in KORD:
            d = 176 + 8 * j + 4 * kb
            a("%s %s, %s, %s, %s" % (MF, vr(d, 4), vr(KF(kb * 4 + s_), 4), vr(Q_(j, s_), 4), "0" if s_ == 0 else vr(d, 4)))
    for r in range(224, 232, 2): a("v_mov_b64 %s, 0" % vr(r, 2))
    for j in range(3): a("v_mov_b32 v%d, 0" % L_(j))
    a("v_mov_b32 v%d, 0" % vS)
    a("s_mov_b32 s%d, %s" % (sTHR, "0x7f800000" if "norare" in OPT else f32(256.0)))
    a("s_mov_b32 s%d, 0" % sSLOT); a("s_mov_b32 s%d, 0" % sDK)
    a("s_mov_b32 s%d, 0x%x" % (sNEG, -3 * PAIR & 0xffffffff))
    a("s_mov_b64 vcc, 0")
    a("s_nop 3")
    for j in range(3):
        S = 176 + 8 * j; t, t2 = 200 + 2 * j, 201 + 2 * j
        a("v_max3_f32 v%d, v%d, v%d, v%d" % (t, S, S + 1, S + 2)); a("v_max3_f32 v%d, v%d, v%d, v%d" % (t2, S + 3, S + 4, S + 5))
        a("v_max3_f32 v%d, v%d, v%d, v%d" % (t, t, S + 6, S + 7)); a("v_max_f32 v%d, v%d, v%d" % (t, t, t2))
    for sw in ("v_permlane32_swap_b32", "v_permlane16_swap_b32"):
        for j in range(3): a("v_mov_b32 v%d, v%d" % (201 + 2 * j, 200 + 2 * j))
        a("s_nop 0")
        for j in range(3): a("%s v%d, v%d" % (sw, 200 + 2 * j, 201 + 2 * j))
        for j in range(3): a("v_max_f32 v%d, v%d, v%d" % (200 + 2 * j, 200 + 2 * j, 201 + 2 * j))
    for j in range(3):
        for i in range(4): a("v_sub_f32 v%d, 0, v%d" % (N_(j) + i, 200 + 2 * j))
    for r in range(176, 208, 2): a("v_mov_b64 %s, 0" % vr(r, 2))
    def qk_mfmas(jn, par):
        m = []
        for kb, s in KORD:
            d = S_(par) + 4 * kb
            cc = vr(N_(jn), 4) if s == 0 else vr(d, 4)
            m.append("%s %s, %s, %s, %s" % (MF, vr(d, 4), vr(KF(kb * 4 + s), 4), vr(Q_(jn, s), 4), cc))
        return m
    def pv_mfmas(jp, par):
        return ["%s %s, %s, %s, %s" % (MF, vr(O_(jp, db), 4), vr(VF(db), 4), vr(P_(par), 4), vr(O_(jp, db), 4)) for db in range(8)]
    for m in qk_mfmas(0, 0): a(m)
    a("s_nop 7")

    def rare_code(st, j, adv):
        par = (3 * st + j) & 1
        S, P = S_(par), P_(par)
        rl, cont = a.label("Lrare"), a.label("Lcont")
        r = Asm()
        r("%s:" % rl)
        if adv: r("v_subrev_u32 v%d, s%d, v%d" % (vT2, sDK, vKA))
        else: r("v_mov_b32 v%d, v%d" % (vT2, vKA))
        for kb in range(2):
            for s in range(4):
                r("ds_read_b128 %s, v%d offset:%d" % (vr(P, 4), vT2, st * 8 * KGRP + kb * 4 * KGRP + s * 64))
                r("s_waitcnt lgkmcnt(0)")
                cc = vr(N_(j), 4) if s == 0 else vr(S + 4 * kb, 4)
                r("%s %s, %s, %s, %s" % (MF, vr(S + 4 * kb, 4), vr(P, 4), vr(Q_(j, s), 4), cc))
                r("s_nop 3")
        r("s_nop 7")
        r("v_max3_f32 v%d, v%d, v%d, v%d" % (vT, S, S + 1, S + 2)); r("v_max3_f32 v%d, v%d, v%d, v%d" % (vT2, S + 3, S + 4, S + 5))
        r("v_max3_f32 v%d, v%d, v%d, v%d" % (vT, vT, S + 6, S + 7)); r("v_max_f32 v%d, v%d, v%d" % (vT, vT, vT2))
        r("v_mov_b32 v%d, v%d" % (vT2, vT)); r("s_nop 1"); r("v_permlane32_swap_b32 v%d, v%d" % (vT, vT2)); r("v_max_f32 v%d, v%d, v%d" % (vT, vT, vT2))
        r("v_mov_b32 v%d, v%d" % (vT2, vT)); r("s_nop 1"); r("v_permlane16_swap_b32 v%d, v%d" % (vT, vT2)); r("v_max_f32 v%d, v%d, v%d" % (vT, vT, vT2))
        r("v_max_f32 v%d, 0, v%d" % (vT, vT))
        r("v_sub_f32 v%d, 0, v%d" % (vT2, vT)); r("v_exp_f32 v%d, v%d" % (vT2, vT2)); r("s_nop 0")
        r("v_mul_f32 v%d, v%d, v%d" % (L_(j), L_(j), vT2))
        for db in range(8):
            for rr in range(4): r("v_mul_f32 v%d, v%d, v%d" % (O_(j, db) + rr, O_(j, db) + rr, vT2))
        for i in range(4): r("v_sub_f32 v%d, v%d, v%d" % (N_(j) + i, N_(j) + i, vT))
        for i in range(8): r("v_sub_f32 v%d, v%d, v%d" % (S + i, S + i, vT))
        for i in range(8): r("v_exp_f32 v%d, v%d" % (S + i, S + i))
        r("s_nop 0")
        r("v_add_f32 v%d, v%d, v%d" % (vS, S, S + 1))
        for i in range(2, 8): r("v_add_f32 v%d, v%d, v%d" % (vS, vS, S + i))
        for i in range(4): r("v_cvt_pk_bf16_f32 v%d, v%d, v%d" % (P + i, S + 2 * i, S + 2 * i + 1))
        r("s_nop 1")
        r("s_branch %s" % cont)
        rare.append(r.text())
        if "nobr" in OPT: return ["%s:" % cont]
        if "sccbr" in OPT: return ["s_cbranch_scc1 %s" % rl, "%s:" % cont]
        return ["s_cbranch_vccnz %s" % rl, "%s:" % cont]

    def block_tab(st, j, prev, qk=True, kload=None, vlo=None, vhi=None, barrier=False, extra=(), pre_extra=(), klate=None):
        par = (3 * st + j) & 1
        jn, jp = (j + 1) % 3, (j - 1) % 3
        S, P = S_(par), P_(par)
        pre = []
        if barrier: pre.append("s_barrier")
        endbr = []
        if "brend" in OPT:
            endbr = rare_code(st, j, st == 1 and j >= 1)
        elif prev is not None: pre += rare_code(*prev)
        pre += list(pre_extra)
        mf = qk_mfmas(jn, par ^ 1) + pv_mfmas(jp, par ^ 1)
        N = {}
        for i in range(8): N["E%d" % i] = "v_exp_f32 v%d, v%d" % (S + i, S + i)
        for i in range(4):
            N["C%d" % i] = "v_cvt_pk_bf16_f32 v%d, v%d, v%d" % (P + i, S + 2 * i, S + 2 * i + 1)
            N["A%d" % i] = "v_add_f32 v%d, v%d, v%d" % (S + 2 * i, S + 2 * i, S + 2 * i + 1)
        N["B0"] = "v_add_f32 v%d, v%d, v%d" % (S, S, S + 2); N["B1"] = "v_add_f32 v%d, v%d, v%d" % (S + 4, S + 4, S + 6)
        N["SUM"] = "v_add_f32 v%d, v%d, v%d" % (vS, S, S + 4); N["CMP"] = "v_cmp_lt_f32 vcc, s%d, v%d" % (sTHR, vS)
        N["L"] = "v_add_f32 v%d, v%d, v%d" % (L_(jp), L_(jp), vS)
        lds = {g: [] for g in range(16)}
        if "nolds" not in OPT:
            if vlo is not None:
                rs = [x for db in range(4) for x in v_reads(db, vlo)]
                for x, g in zip(rs, TAB["vlo"]): lds[g].append(x)
            if vhi is not None:
                rs = [x for db in range(4, 8) for x in v_reads(db, vhi)]
                for x, g in zip(rs, TAB["vhi"]): lds[g].append(x)
            if kload is not None:
                for (kb, s_), g in zip(KORD[:6], TAB["k"]): lds[g].append(k_read(kb, s_, kload))
            if klate is not None:
                for (kb, s_), g in zip(KORD[6:], TAB["klate"]): lds[g].append(k_read(kb, s_, klate))
        out = list(pre)
        ex = list(extra)
        for g in range(16):
            out.append(mf[g])
            if g == 15 and endbr: out += (["s_cmp_lg_u64 vcc, 0"] if "sccbr" in OPT else []) + endbr
            out += lds[g]
            if "nosm" not in OPT: out += [N[n] for n in TAB["valu"].get(g, [])]
            if g == TAB.get("scc_at", 15) and "sccbr" in OPT and "brend" not in OPT: out.append("s_cmp_lg_u64 vcc, 0")
            if g in TAB.get("extra_at", ()) and ex:
                x = ex.pop(0); out += (x if isinstance(x, list) else [x])
        for x in ex: out += (x if isinstance(x, list) else [x])
        return out

    def block(st, j, prev, qk=True, kload=None, vlo=None, vhi=None, barrier=False, extra=(), pre_extra=(), klate=None):
        if TAB is not None and qk: return block_tab(st, j, prev, qk, kload, vlo, vhi, barrier, extra, pre_extra, klate)
        if "brend" in OPT: prev = None
        if "sccbr" in OPT and prev is not None: pre_extra = list(pre_extra)
        par = (3 * st + j) & 1
        jn, jp = (j + 1) % 3, (j - 1) % 3
        S, P = S_(par), P_(par)
        pre = []
        if barrier: pre.append("s_barrier")
        if prev is not None: pre += rare_code(*prev)
        pre += list(pre_extra)
        mf = (qk_mfmas(jn, par ^ 1) if qk else []) + pv_mfmas(jp, par ^ 1)
        nq = 8 if qk else 0
        if not qk: pre.append("s_nop 1")
        it = []
        Ladd = Item("v_add_f32 v%d, v%d, v%d" % (L_(jp), L_(jp), vS), lo=0, hi=6, pri=5)
        E = [Item("v_exp_f32 v%d, v%d" % (S + i, S + i), lo=0, pri=3) for i in range(8)]
        for i in range(1, 8): pass
        A01 = Item("v_add_f32 v%d, v%d, v%d" % (vT, S, S + 1), deps=[E[0], E[1]])
        A23 = Item("v_add_f32 v%d, v%d, v%d" % (vT2, S + 2, S + 3), deps=[E[2], E[3]])
        B_ = Item("v_add_f32 v%d, v%d, v%d" % (vT, vT, vT2), deps=[A01, A23])
        A45 = Item("v_add_f32 v%d, v%d, v%d" % (vT2, S + 4, S + 5), deps=[E[4], E[5], B_])
        C_ = Item("v_add_f32 v%d, v%d, v%d" % (vT, vT, vT2), deps=[A45])
        A67 = Item("v_add_f32 v%d, v%d, v%d" % (vT2, S + 6, S + 7), deps=[E[6], E[7], C_])
        D_ = Item("v_add_f32 v%d, v%d, v%d" % (vS, vT, vT2), deps=[A67, Ladd])
        CMP = Item("v_cmp_lt_f32 vcc, s%d, v%d" % (sTHR, vS), deps=[D_], hi=len(mf) - CMP_SLACK)
        CV = [Item("v_cvt_pk_bf16_f32 v%d, v%d, v%d" % (P + i, S + 2 * i, S + 2 * i + 1), deps=[E[2 * i], E[2 * i + 1]], hi=len(mf) - 2) for i in range(4)]
        if "nosm" in OPT: it = []
        else: it = [Ladd] + E + [A01, A23, B_, A45, C_, A67, D_, CMP] + CV
        if "nolds" not in OPT:
            if vlo is not None:
                for db in range(4): it.append(Item(v_reads(db, vlo), lo=nq + db, pri=4))
            if vhi is not None:
                for db in range(4, 8): it.append(Item(v_reads(db, vhi), lo=0, hi=nq + db - 7, pri=6))
            if kload is not None:
                for i, (kb, s) in enumerate(KORD[:6]): it.append(Item(k_read(kb, s, kload), lo=max(i, 5), hi=min(15, 9 + i), pri=4))
            if klate is not None:
                for i, (kb, s) in list(enumerate(KORD))[6:]: it.append(Item(k_read(kb, s, klate), lo=0, hi=0, pri=7))
        for x in extra: it.append(Item(x, lo=8))
        return schedule(mf, it, pre)

    def tile(last, first_of_all=False):
        L = []
        L += block(0, 0, (1, 2, True), vlo=0)
        L += block(0, 1, (0, 0, False), vhi=0, kload=1)
        L += block(0, 2, (0, 1, False), klate=1)
        L += block(1, 0, (0, 2, False), vlo=1)
        adv = ["s_add_u32 s%d, s%d, 1" % (sSLOT, sSLOT), "s_and_b32 s%d, s%d, 3" % (sSLOT, sSLOT), "s_cmp_eq_u32 s%d, 0" % sSLOT,
               "s_cselect_b32 s%d, s%d, %d" % (sDK, sNEG, PAIR), "v_add_u32 v%d, s%d, v%d" % (vKA, sDK, vKA)]
        L += block(1, 1, (1, 0, False), vhi=1, kload=(None if last else 0), barrier=True, pre_extra=adv)
        L += block(1, 2, (1, 1, True), qk=not last, klate=(None if last else 0),
                   extra=[["v_add_u32 v%d, s%d, v%d" % (vVA + cc, sDK, vVA + cc)] for cc in range(4)])
        return L
    steady = tile(False)
    del rare[:]
    steady2 = tile(False)
    nr = len(rare)
    lastt = tile(True)
    if "peel" not in OPT: del rare[nr:]
    if TAB is not None:
        body = hoist_waits(auto_lgkm(steady2, entry_lines=steady, age=TAB.get("age")))
        lastb = hoist_waits(auto_lgkm(lastt, entry_lines=steady, age=TAB.get("age")))
    else:
        body = auto_lgkm(steady2, entry_lines=steady)
        lastb = auto_lgkm(lastt, entry_lines=steady)
    if "w0" in OPT:
        import re
        body = [re.sub(r"lgkmcnt\(\d+\)", "lgkmcnt(0)", x) if x.startswith("s_waitcnt lgkmcnt") else x for x in body]
    print("   attention steady tile: model %d cycles (%d/unit), %d instrs" % (model_cycles(body), model_cycles(body) / 6, len(body)))
    loop = a.label("Ltile")
    _stamp(a, 6, "s_memtime")
    a("s_mov_b32 s%d, 0" % sCNT)
    if RAMP:
        import re as _re
        nr2 = len(rare)
        tab_save = globals()["TAB"]; globals()["TAB"] = None
        assert "brend" not in OPT
        ramp_raw = tile(False)
        globals()["TAB"] = tab_save
        rb = auto_lgkm(ramp_raw, entry_lines=ramp_raw)
        cnt = [0]
        def _mod(x):
            if not x.startswith("s_waitcnt lgkmcnt"): return x
            cnt[0] += 1
            return "s_waitcnt lgkmcnt(0)" if cnt[0] % RAMP_EVERY == 0 else x
        rb = [_mod(x) for x in rb]
        lr = a.label("Lramp")
        if ALIGN_R is not None: a(".p2align 6")
        a("%s:" % lr)
        for x in rb: a(x)
        a("s_add_u32 s%d, s%d, 1" % (sCNT, sCNT)); a("s_cmp_lt_u32 s%d, %d" % (sCNT, RAMP)); a("s_cbranch_scc1 %s" % lr)
        a("s_waitcnt lgkmcnt(0)")
    if ALIGN_T is not None:
        a(".p2align 6")
        for _ in range(ALIGN_T): a("s_nop 0")
    a("%s:" % loop)
    for x in body: a(x)
    a("s_add_u32 s%d, s%d, 1" % (sCNT, sCNT)); a("s_cmp_lt_u32 s%d, %d" % (sCNT, 15 if "peel" in OPT else 16)); a("s_cbranch_scc1 %s" % loop)
    _stamp(a, 7, "s_memtime")
    if "peel" in OPT:
        for x in lastb: a(x)
    else: a("s_waitcnt lgkmcnt(0)")
    for x in rare_code(1, 2, True): a(x)
    a("v_add_f32 v%d, v%d, v%d" % (L_(2), L_(2), vS))
    def OA(s, j): return 96 + (s * 3 + j) * 4
    def OB(s, j): return 144 + (s * 3 + j) * 4
    vA0, vA1 = 240, 241
    vAO = 224
    a("s_barrier")
    side = []
    T3 = [232, 233, 234]
    for j in range(3): side.append("v_mov_b32 v%d, v%d" % (T3[j], L_(j)))
    for j in range(3): side.append("v_permlane32_swap_b32 v%d, v%d" % (L_(j), T3[j]))
    for j in range(3): side.append("v_add_f32 v%d, v%d, v%d" % (L_(j), L_(j), T3[j]))
    for j in range(3): side.append("v_mov_b32 v%d, v%d" % (T3[j], L_(j)))
    for j in range(3): side.append("v_permlane16_swap_b32 v%d, v%d" % (L_(j), T3[j]))
    for j in range(3): side.append("v_add_f32 v%d, v%d, v%d" % (L_(j), L_(j), T3[j]))
    for j in range(3): side.append("v_rcp_f32 v%d, v%d" % (L_(j), L_(j)))
    g, rp, c, t, l16 = 144, 145, 146, 147, 148
    side += ["v_lshlrev_b32 v%d, 4, v%d" % (l16, vLANE),
             "s_mul_i32 s%d, s%d, 12288" % (sT0, sWAVE), "s_add_u32 s%d, s%d, %d" % (sT0, sT0, EXCH), "v_add_u32 v%d, s%d, v%d" % (vA0, sT0, l16),
             "s_xor_b32 s%d, s%d, 2" % (sT2, sWAVE), "s_mul_i32 s%d, s%d, 12288" % (sT0, sT2), "s_add_u32 s%d, s%d, %d" % (sT0, sT0, EXCH), "v_add_u32 v%d, s%d, v%d" % (vA1, sT0, l16),
             "v_lshrrev_b32 v%d, 4, v%d" % (g, vLANE), "v_bfe_u32 v%d, v%d, 2, 2" % (rp, vLANE), "v_and_b32 v%d, 3, v%d" % (c, vLANE),
             "v_lshlrev_b32 v%d, 2, v%d" % (t, g), "v_add_u32 v%d, v%d, v%d" % (t, t, rp),
             "v_lshrrev_b32 v%d, 1, v%d" % (g, t), "v_and_b32 v%d, 3, v%d" % (g, g), "v_lshlrev_b32 v%d, 5, v%d" % (g, g),
             "v_lshlrev_b32 v%d, 7, v%d" % (t, t), "v_add_u32 v%d, v%d, v%d" % (t, t, g), "v_lshlrev_b32 v%d, 3, v%d" % (c, c), "v_add_u32 v%d, v%d, v%d" % (t, t, c),
             "s_lshl_b32 s%d, s%d, 6" % (sT0, sQI), "v_xor_b32 v%d, s%d, v%d" % (t, sT0, t),
             "s_lshl_b32 s%d, s%d, 14" % (sT0, sQI), "s_xor_b32 s%d, s%d, 16384" % (sT1, sT0),
             "v_add_u32 v%d, s%d, v%d" % (vAO + 0, sT0, t), "v_xor_b32 v%d, 32, v%d" % (vAO + 1, vAO + 0),
             "v_add_u32 v%d, s%d, v%d" % (vAO + 2, sT1, t), "v_xor_b32 v%d, 32, v%d" % (vAO + 3, vAO + 2)]
    pvl = pv_mfmas(2, 1)
    per = (len(side) + 7) // 8
    a("s_nop 0")
    for i, m in enumerate(pvl):
        a(m)
        for x in side[i * per:(i + 1) * per]: a(x)
    stamp(a, 2, 12)
    def scale_op(j):
        if j == 0: return vr(244, 2), " op_sel_hi:[1,0]"
        if j == 1: return vr(244, 2), " op_sel:[0,1] op_sel_hi:[1,1]"
        return vr(246, 2), " op_sel_hi:[1,0]"
    for j in range(3):
        if j == 2: a("s_nop 1")
        sc, mod = scale_op(j)
        for s in range(4):
            X, Y, D = O_(j, 2 * s), O_(j, 2 * s + 1), OA(s, j)
            for r in range(0, 4, 2):
                a("v_pk_mul_f32 %s, %s, %s%s" % (vr(X + r, 2), vr(X + r, 2), sc, mod)); a("v_pk_mul_f32 %s, %s, %s%s" % (vr(Y + r, 2), vr(Y + r, 2), sc, mod))
            a("v_cvt_pk_bf16_f32 v%d, v%d, v%d" % (D + 0, X + 0, X + 1)); a("v_cvt_pk_bf16_f32 v%d, v%d, v%d" % (D + 1, X + 2, X + 3))
            a("v_cvt_pk_bf16_f32 v%d, v%d, v%d" % (D + 2, Y + 0, Y + 1)); a("v_cvt_pk_bf16_f32 v%d, v%d, v%d" % (D + 3, Y + 2, Y + 3))
            a("ds_write_b128 v%d, %s offset:%d" % (vA0, vr(D, 4), (s * 3 + j) * 1024))
    a("s_waitcnt lgkmcnt(0)")
    a("s_barrier")
    for i in range(12): a("ds_read_b128 %s, v%d offset:%d" % (vr(144 + 4 * i, 4), vA1, i * 1024))
    stamp(a, 3, 13)
    assert PAIR % 256 == 0
    def AF(i): return 192 + 4 * (i % 8)
    def ACC(buf, z, j): return buf * 24 + (z * 3 + j) * 4
    def PK(buf, j): return 48 + buf * 12 + 4 * j
    def a_reads(G):
        c_, kk = divmod(G, 8)
        hs, s = (0, kk) if kk < 4 else (1, kk - 4)
        r = []
        for z in range(2):
            fr = AF(2 * G + z)
            r.append("ds_read_b64_tr_b16 %s, v%d offset:%d" % (vr(fr, 2), vAO + 2 * hs + z, s * 4096))
            r.append("ds_read_b64_tr_b16 %s, v%d offset:%d" % (vr(fr + 2, 2), vAO + 2 * hs + z, s * 4096 + 2048))
        return r
    LOOK = 3
    def slot_delta(c_from): return (-3 * PAIR if (16 + c_from + 1) % 4 == 0 else PAIR) & 0xffffffff
    for G in range(LOOK):
        for x in a_reads(G): a(x)
    vPW, vPWR = 229, 231
    a("v_lshlrev_b32 v%d, 4, v%d" % (vT, vLANE))
    a("s_mul_i32 s%d, s%d, 3072" % (sT0, sWAVE)); a("s_add_u32 s%d, s%d, %d" % (sT0, sT0, PB0)); a("v_add_u32 v%d, s%d, v%d" % (vPW, sT0, vT))
    a("s_mul_i32 s%d, s%d, %d" % (sT0, sWAVE, PAIR)); a("s_add_u32 s%d, s%d, 32768" % (sT0, sT0)); a("v_add_u32 v%d, s%d, v%d" % (vPWR, sT0, vT))
    a("v_add_u32 v%d, %d, v%d" % (vPW + 1, 156672, vT))
    sD, sDP, sSL = sDK, sNEG + 0, sSLOT
    sD, sDP = 56, 69
    a("s_mov_b32 s%d, 0" % sSLOT); a("s_mov_b32 s%d, 0" % sDP); a("s_mov_b32 s%d, 0x%x" % (sNEG, -3 * PAIR & 0xffffffff))
    def epilogue(buf):
        epi = []
        for j in range(3):
            d = PK(buf, j)
            for z in range(2):
                A_ = ACC(buf, z, j)
                epi.append("v_cvt_pk_bf16_f32 v%d, v%d, v%d" % (d + 2 * z, A_, A_ + 1)); epi.append("v_cvt_pk_bf16_f32 v%d, v%d, v%d" % (d + 2 * z + 1, A_ + 2, A_ + 3))
            epi.append("ds_write_b128 v%d, %s offset:%d" % (vPW + buf, vr(d, 4), j * 1024))
        return epi
    def o_step(buf, last, strict=False):
        epi = epilogue(buf ^ 1)
        cvts = [x for x in epi if x.startswith("v_cvt")]; wrs = [x for x in epi if x.startswith("ds_write")]
        extra = {kk: {g: [] for g in range(6)} for kk in range(8)}
        if "ostep_old" in OPT:
            seq = epi; pos = [(1, 1), (1, 1), (1, 2), (1, 2), (1, 3), (1, 4), (1, 4), (1, 5), (2, 1), (2, 1), (2, 2), (2, 3), (2, 3), (2, 4), (2, 5)]
            for x, (kk, g) in zip(seq, pos): extra[kk][g].append(x)
        else:
            cpos = [(1, 0), (1, 1), (1, 2), (1, 3), (1, 4), (2, 0), (2, 1), (2, 2), (2, 3), (3, 0), (3, 1), (3, 2)]
            for x, (kk, g) in zip(cvts, cpos): extra[kk][g].append(x)
            for x, (kk, g) in zip(wrs, [(1, 5), (2, 5), (3, 4)]): extra[kk][g].append(x)
        for kk in range(8):
            G = kk
            hs, s = (0, kk) if kk < 4 else (1, kk - 4)
            rd = []; barrier = (kk == 5)
            if kk == 4 and not last:
                extra[4][4] += ["s_add_u32 s%d, s%d, 1" % (sSLOT, sSLOT), "s_and_b32 s%d, s%d, 3" % (sSLOT, sSLOT)]
                extra[4][5] += ["s_cmp_eq_u32 s%d, 0" % sSLOT, "s_cselect_b32 s%d, s%d, %d" % (sD, sNEG, PAIR)]
            pre = []
            if kk == 5 and not last:
                pre += ["v_add_u32 v%d, s%d, v%d" % (vAO + 0, sD, vAO + 0), "v_add_u32 v%d, s%d, v%d" % (vAO + 1, sD, vAO + 1)]
                extra[6][4].append("s_mov_b32 s%d, s%d" % (sDP, sD))
            if kk == 0:
                extra[0][4].append("v_add_u32 v%d, s%d, v%d" % (vAO + 2, sDP, vAO + 2)); extra[0][5].append("v_add_u32 v%d, s%d, v%d" % (vAO + 3, sDP, vAO + 3))
            if kk == 4 and buf == 0: extra[4][3].append("v_mov_b32 v%d, v%d" % (vPW + 1, vPWR))
            if not (last and kk + LOOK >= 8): rd = a_reads(G + LOOK)
            younger = 4 * (LOOK - 1) if not last else 4 * min(LOOK - 1, 7 - kk)
            if barrier: younger = min(younger, 4)
            if strict: younger = 0
            a("s_waitcnt lgkmcnt(%d)" % younger)
            if barrier: a("s_barrier")
            for x in pre: a(x)
            mf = []
            for z in range(2):
                for j in range(3):
                    bsrc = OA(s, j) if hs == 0 else OB(s, j)
                    cc = "0" if kk == 0 else vr(ACC(buf, z, j), 4)
                    mf.append("%s %s, %s, %s, %s" % (MF, vr(ACC(buf, z, j), 4), vr(AF(2 * G + z), 4), vr(bsrc, 4), cc))
            fill = spread(rd, [0, 1, 2, 3]) if rd else {}
            fill = merge(fill, extra[kk])
            for x in interleave(mf, fill): a(x)
    lo = a.label("Lo")
    a("s_mov_b32 s%d, 0" % sCNT)
    if "oramp" in OPT:
        o_step(0, False, True); o_step(1, False, True)
        a("s_mov_b32 s%d, 1" % sCNT)
    if ALIGN_O is not None:
        a(".p2align 6")
        for _ in range(ALIGN_O): a("s_nop 0")
    a("%s:" % lo)
    o_step(0, False); o_step(1, False)
    a("s_add_u32 s%d, s%d, 1" % (sCNT, sCNT)); a("s_cmp_lt_u32 s%d, 4" % sCNT); a("s_cbranch_scc1 %s" % lo)
    o_step(0, True)
    a("s_nop 7")
    for x in epilogue(0): a(x)
    a("s_waitcnt lgkmcnt(0)")
    a("s_barrier")
    stamp(a, 4, 14)
    if "stB0" not in OPT: stamp(a, 5)
    stamp_flush(a)
    a("v_mov_b32 v1, v%d" % vLANE)
    a("s_mov_b32 s%d, s%d" % (sCNT, sWAVE))
    a("s_branch L_reduce")
    for r in rare: a(r)

def mk_srd(a, b, lo, hi, off, size):
    a("s_add_u32 s%d, s%d, s%d" % (b, lo, off)); a("s_addc_u32 s%d, s%d, 0" % (b + 1, hi)); a("s_mov_b32 s%d, %d" % (b + 2, size)); a("s_mov_b32 s%d, 0x20000" % (b + 3))

def late_srds(a, role):
    a("s_lshl_b32 s%d, s%d, 4" % (sT0, sB)); a("s_add_u32 s%d, s%d, s%d" % (sT0, sT0, sH))
    if role == "kv":
        a("s_lshl_b32 s%d, s%d, 18" % (sT1, sT0)); mk_srd(a, sK, 6, 7, sT1, 262144); mk_srd(a, sV, 8, 9, sT1, 262144)
        a("s_mul_i32 s%d, s%d, %d" % (sT1, sT0, PART)); a("s_add_u32 s%d, s%d, %d" % (sT1, sT1, WS_PART)); mk_srd(a, sP, 18, 19, sT1, PART)
    if role == "w":
        if "kv4" in OPT: a("s_lshl_b32 s%d, s%d, 18" % (sT1, sT0)); mk_srd(a, sK, 6, 7, sT1, 262144); mk_srd(a, sV, 8, 9, sT1, 262144)
        a("s_mul_i32 s%d, s%d, 294912" % (sT1, sH)); mk_srd(a, sWO, 12, 13, sT1, 294912)
    a("s_mul_i32 s%d, s%d, 110592" % (sT1, sB)); mk_srd(a, sOUT, 14, 15, sT1, 110592)
    a("s_mul_i32 s%d, s%d, %d" % (sT1, sB, 16 * PART)); a("s_add_u32 s%d, s%d, %d" % (sT1, sT1, WS_PART)); mk_srd(a, sPB, 18, 19, sT1, 16 * PART)
    a("s_mul_i32 s%d, s%d, %d" % (sT1, sB, 9 * 128)); a("s_add_u32 s%d, s%d, %d" % (sT1, sT1, WS_FLAG)); mk_srd(a, sFL, 18, 19, sT1, 9 * 128)
    if STAMP:
        a("s_lshl_b32 s%d, s2, 9" % sT1); a("s_add_u32 s%d, s18, s%d" % (sSTAMP, sT1)); a("s_addc_u32 s%d, s19, 0" % (sSTAMP + 1))

def early_srds(a):
    a("s_mul_i32 s%d, s%d, 110592" % (sT1, sB)); mk_srd(a, sX, 4, 5, sT1, 110592)
    a("s_lshl_b32 s%d, s%d, 9" % (sT1, sH)); mk_srd(a, sWQ, 10, 11, sT1, 0); a("s_sub_u32 s%d, 4718592, s%d" % (sWQ + 2, sT1))

def gen_k1():
    a = Asm(); a.stamp_wave = 0; a.stamp_tmp = 252
    if STAMP: a("s_memrealtime s[84:85]")
    a("s_cmp_ge_u32 s2, 256"); a("s_cbranch_scc1 L_k1_end")
    a("s_load_dwordx8 s[4:11], s[0:1], 0")
    a("s_load_dwordx4 s[12:15], s[0:1], 32")
    a("s_load_dwordx4 s[16:19], s[0:1], 48")
    a("v_lshrrev_b32 v1, 6, v0")
    a("s_and_b32 s%d, s2, 7" % sXCD); a("s_lshr_b32 s%d, s2, 3" % sIDX)
    a("v_readfirstlane_b32 s%d, v1" % sWAVE)
    a("s_and_b32 s%d, s%d, 1" % (sB, sXCD)); a("s_lshl_b32 s%d, s%d, 3" % (sB, sB)); a("s_and_b32 s%d, s%d, 7" % (sT2, sIDX)); a("s_add_u32 s%d, s%d, s%d" % (sB, sB, sT2))
    a("s_lshr_b32 s%d, s%d, 1" % (sH, sXCD)); a("s_lshl_b32 s%d, s%d, 2" % (sH, sH)); a("s_lshr_b32 s%d, s%d, 3" % (sT2, sIDX)); a("s_add_u32 s%d, s%d, s%d" % (sH, sH, sT2))
    a("v_and_b32 v1, 63, v0")
    a("s_sub_u32 s%d, s%d, 4" % (sLW, sWAVE))
    a("s_cmp_lt_u32 s%d, 2" % sLW); a("s_cbranch_scc0 L_notw")
    a.stamp_wave = 4; a.stamp_tmp = 40
    if STAMP: a("v_mov_b32 v40, 0")
    gen_wloader(a)
    a("L_notw:")
    a("s_cmp_ge_u32 s%d, 4" % sWAVE); a("s_cbranch_scc1 L_kvloader")
    a.stamp_wave = 0
    a("s_waitcnt lgkmcnt(0)")
    late_srds(a, "c")
    gen_compute(a)
    a("L_kvloader:")
    a.stamp_wave = 4
    if STAMP: a("v_mov_b32 v40, 0")
    a("s_waitcnt lgkmcnt(0)")
    late_srds(a, "kv")
    gen_kvloader(a)
    gen_reducer(a)
    a("L_k1_end:")
    a("s_endpgm")
    return a.text()

def build(fn, stamp=False, opt=()):
    global STAMP, OPT
    STAMP = stamp; OPT = set(opt)
    k1 = gen_k1()
    errs = hazard.check(k1, "k1")
    for e in errs[:10]: print(e)
    if errs: print("k1: %d hazard warnings" % len(errs))
    txt = HEADER + "; @launch grid=(256,1,1) block=(512,1,1) lds=%d\n" % LDS_BYTES
    txt += '.amdgcn_target "amdgcn-amd-amdhsa--gfx950"\n.text\n' + kernel_begin(KNAME) + k1 + '\n.section .rodata,"a"\n.p2align 6\n' + kernel_desc(KNAME, 256, 102, 256)
    open(fn, "w").write(txt)
    print(fn, len(txt), "bytes,", txt.count("\n"), "lines")

if __name__ == "__main__":
    def pieces(start, per):
        d = {}; st = start
        for kind in "KV":
            for lo in range(0, 8, per):
                d.setdefault(st, []).append((kind, 0, lo, lo + per)); st += 1
        return d
    def mk(start, per, i1at):
        d = pieces(start, per)
        d.setdefault(i1at, []).extend([("K", 1), ("V", 1)])
        d.setdefault(19, []).extend([("K", 2), ("V", 2)])
        return d
    PF0 = 0
    O = ["rotq", "nopfq", "notlb"]
    KSCHED = mk(12, 4, 18)
    TAB = None
    D = O + ["dot2", "split0"]
    C = D + ["cpf0", "zmov"]
    RAMP = 2; ALIGN_T = 0; ALIGN_R = 0
    build("v8.s", False, C); build("v8_st.s", True, C)
    def mklag():
        d = pieces(12, 4); d.setdefault(19, []).extend([("K", 1), ("V", 1)]); return d
    KS0 = dict(KSCHED)
    RAMP = 0
    KSCHED = mklag(); LAG = 3
    PACE = None
    build("lk_a_st.s", True, C + ["norare", "nored"])
    build("lk_b_st.s", True, C + ["norare", "nored", "nolds"])
    build("lk_c_st.s", True, C + ["norare", "nored", "nosm"])
    build("lk_d_st.s", True, C + ["norare", "nored", "nosm", "nolds"])
    LAG = 0; KSCHED = KS0; RAMP = 2
```

```python
import sys, struct
from asmlib import *
import hazard
from sched import Item, schedule, auto_lgkm, model_cycles

def f32(x): return "0x%08x" % struct.unpack("<I", struct.pack("<f", x))[0]
C_SCALE = 1.4426950408889634 / (128 ** 0.5)

PAIR = 35840
KGRP, VGRP = 1088, 1152
VOFF = 16 * KGRP
WBASE = 2 * PAIR
XBASE = WBASE + 4 * 16384
XSLOT = 12288
EXCH = 3 * PAIR
LDS_BYTES = 163840
PART = 108 * 1024
WS_PART = 1 << 20
WS_FLAG = 1 << 19
KNAME = 'standalone__gqa_block_cached__near_ridge_kernel'
OPT = set()
STAMP = False

sK, sV, sX, sWQ, sWO, sP = 20, 24, 28, 32, 36, 40
sWAVE, sB, sH, sLW = 44, 45, 46, 47
sT0, sT1, sT2, sT3 = 48, 49, 50, 51
sLWK, sLW3072, sLWV, sLW4096 = 52, 53, 59, 66
sTHR, sCNT, sDK, sNEG, sSLOT = 54, 55, 56, 57, 58
sSTAMP = 60
sTM = 62
sQI, sRH = 64, 65
sXCD, sIDX = 67, 68
sPF = 72
sPF2 = 76
sFL = 8
sPB = 4
sOUT = 12
def srd(b): return "s[%d:%d]" % (b, b + 3)
def vr(b, n=1): return "v%d" % b if n == 1 else "v[%d:%d]" % (b, b + n - 1)

def _stamp(a, idx, instr):
    if not STAMP: return
    a("%s s[%d:%d]" % (instr, sTM, sTM + 1)); a("s_waitcnt lgkmcnt(0)")
    if a.stamp_wave == 0: a("s_mov_b32 s%d, s%d" % (80 + idx, sTM))
    else: a("v_writelane_b32 v40, s%d, %d" % (sTM, idx))
def stamp(a, idx, cyc=None):
    _stamp(a, idx, "s_memrealtime")
    if cyc is not None: _stamp(a, cyc, "s_memtime")
DBG_WG = 37
def stamp_flush(a):
    if not STAMP: return
    if "dbg" in OPT:
        sk = a.label("Ldbgs")
        a("s_cmp_lg_u32 s2, %d" % DBG_WG); a("s_cbranch_scc1 %s" % sk)
        a("s_cmp_lg_u32 s%d, %d" % (sWAVE, a.stamp_wave)); a("s_cbranch_scc1 %s" % sk)
        a("v_mov_b32 v1, 0")
        if a.stamp_wave == 0:
            for dw, (j, j0) in zip((1, 2, 3, 5, 6, 7, 9, 10, 11), ((1, 0), (2, 0), (3, 0), (4, 0), (11, 10), (12, 11), (13, 12), (14, 13), (7, 6))):
                a("s_sub_u32 s%d, s%d, s%d" % (sT0, 80 + j, 80 + j0)); a("v_mov_b32 v2, s%d" % sT0); a("global_store_dword v1, v2, s[16:17] offset:%d" % (4 * dw))
        else:
            a("v_readlane_b32 s%d, v40, 15" % sT0); a("v_readlane_b32 s%d, v40, 16" % sT1); a("s_nop 3"); a("s_sub_u32 s%d, s%d, s%d" % (sT0, sT0, sT1)); a("v_mov_b32 v2, s%d" % sT0)
            a("global_store_dword v1, v2, s[16:17] offset:52")
            a("v_readlane_b32 s%d, v40, 36" % sT0); a("s_nop 3"); a("s_sub_u32 s%d, s%d, s%d" % (sT0, sT0, sT1)); a("v_mov_b32 v2, s%d" % sT0)
            a("global_store_dword v1, v2, s[16:17] offset:56")
        a("%s:" % sk)
        return
    sk = a.label("Lst")
    a("s_cmp_lg_u32 s%d, %d" % (sWAVE, a.stamp_wave)); a("s_cbranch_scc1 %s" % sk)
    if a.stamp_wave == 0:
        a("v_mov_b32 v1, 0")
        for i in range(16):
            if i in (8, 9, 15): continue
            a("v_mov_b32 v2, s%d" % (80 + i)); a("global_store_dword v1, v2, s[%d:%d] offset:%d" % (sSTAMP, sSTAMP + 1, 4 * i))
    else:
        a("v_and_b32 v2, 63, v0"); a("v_lshlrev_b32 v3, 2, v2")
        a("v_cmp_lt_u32 vcc, 14, v2"); a("v_cmp_eq_u32 s[96:97], 8, v2"); a("s_or_b64 vcc, vcc, s[96:97]"); a("v_cmp_eq_u32 s[96:97], 9, v2"); a("s_or_b64 vcc, vcc, s[96:97]")
        a("s_and_saveexec_b64 s[96:97], vcc")
        a("global_store_dword v3, v40, s[%d:%d]" % (sSTAMP, sSTAMP + 1))
        a("s_mov_b64 exec, s[96:97]")
    a("%s:" % sk)

def common_prologue(a, endlab, nwg):
    if STAMP: a("s_memrealtime s[84:85]")
    a("s_cmp_ge_u32 s2, %d" % nwg); a("s_cbranch_scc1 %s" % endlab)
    a("s_load_dwordx8 s[4:11], s[0:1], 0")
    a("s_load_dwordx4 s[12:15], s[0:1], 32")
    a("s_load_dwordx4 s[16:19], s[0:1], 48")
    a("v_lshrrev_b32 v1, 6, v0")
    a("s_nop 0")
    a("v_readfirstlane_b32 s%d, v1" % sWAVE)
    a("s_waitcnt lgkmcnt(0)")

class VQ:
    def __init__(s): s.q = []
    def issue(s, tag, n=1): s.q += [tag] * n
    def wait(s, tags):
        idx = [i for i, t in enumerate(s.q) if t in tags]
        if not idx: return None
        last = max(idx); n = len(s.q) - 1 - last
        s.q = s.q[last + 1:]
        return min(n, 63)

KV_FLAGS = " nt"
W_FLAGS = ""
O_FLAGS = ""
P_FLAGS = " sc0 sc1"


def gen_loader(a):
    a("s_sub_u32 s%d, s%d, 4" % (sLW, sWAVE))
    a("v_and_b32 v1, 63, v0")
    if STAMP: a("v_mov_b32 v40, 0")
    a("s_cmp_ge_u32 s%d, 2" % sLW); a("s_cbranch_scc1 L_kvloader")
    gen_wloader(a)
    a("L_kvloader:")
    gen_kvloader(a)

def mk_bar(a, q, trace_base=None):
    def bar(tags):
        n = q.wait(tags) if tags else None
        if n is not None and "nowait" not in OPT: a("s_waitcnt vmcnt(%d)" % n)
        if "trace" in OPT and bar.n < 48 and trace_base is not None: stamp(a, 16 + bar.n)
        a("s_barrier")
        bar.n += 1
    bar.n = 0
    return bar

def dma(a, vreg, srdb, soff, imm, flags):
    if "noload" in OPT: return
    a("buffer_load_dwordx4 v%d, %s, s%d offen offset:%d%s lds" % (vreg, srd(srdb), soff, imm, flags))

def emit_pf(a, chunks, lane=1):
    if not chunks: return
    sk = a.label("Lpfq"); skx = a.label("Lpfx")
    a("s_cmp_ge_u32 s%d, 28" % sIDX); a("s_cbranch_scc1 %s" % sk)
    a("s_cmp_ge_u32 s%d, 16" % sIDX); a("s_cbranch_scc1 %s" % skx)
    a("v_lshrrev_b32 v30, 4, v%d" % lane); a("v_and_b32 v31, 15, v%d" % lane)
    a("s_lshl_b32 s%d, s%d, 2" % (sT0, sIDX)); a("v_add_u32 v30, s%d, v30" % sT0); a("v_lshlrev_b32 v30, 13, v30"); a("v_lshlrev_b32 v31, 7, v31"); a("v_add_u32 v30, v30, v31")
    for cp in chunks:
        if isinstance(cp, int): a("s_mov_b32 s%d, %d" % (sT0, cp * 64 * 8192))
        else: a("s_lshl_b32 s%d, s%d, 19" % (sT0, cp[0])); a("s_add_u32 s%d, s%d, %d" % (sT0, sT0, cp[1] * 64 * 8192))
        a("buffer_load_dword v32, v30, %s, s%d offen" % (srd(sPF), sT0))
    a("s_branch %s" % sk)
    a("%s:" % skx)
    a("s_sub_u32 s%d, s%d, 16" % (sT0, sIDX)); a("s_lshl_b32 s%d, s%d, 6" % (sT0, sT0)); a("v_add_u32 v30, s%d, v%d" % (sT0, lane)); a("v_mul_u32_u24 v30, 1152, v30")
    for cp in chunks:
        if isinstance(cp, int): a("s_mov_b32 s%d, %d" % (sT0, cp * 128))
        else: a("s_lshl_b32 s%d, s%d, 7" % (sT0, cp[0])); a("s_add_u32 s%d, s%d, %d" % (sT0, sT0, cp[1] * 128))
        a("buffer_load_dword v32, v30, %s, s%d offen" % (srd(sPF2), sT0))
    a("%s:" % sk)

def code_prefetch(a, lane=1):
    if "nocpf" in OPT: return
    lab = a.label("Lcpf")
    a("s_getpc_b64 s[94:95]")
    a("%s:" % lab)
    a("s_sub_u32 s94, s94, (%s - %s)" % (lab, KNAME)); a("s_subb_u32 s95, s95, 0")
    a("s_lshl_b32 s%d, s%d, 11" % (sT0, sIDX))
    a("v_and_b32 v34, 15, v%d" % lane); a("v_lshlrev_b32 v34, 7, v34"); a("v_add_u32 v34, s%d, v34" % sT0)
    a("v_min_u32 v34, (L_k1_end - %s), v34" % KNAME)
    a("global_load_dword v35, v34, s[94:95]")

def attn_kv4(a, is_w, iss_O=None, cpf=None):
    vK4, vV4 = 18, 19
    sL4, sMK, sMV, sTK, sKS = 86, 88, 89, 87, 90
    a("s_sub_u32 s%d, s%d, 4" % (sL4, sWAVE))
    a("v_lshrrev_b32 v2, 4, v1"); a("v_and_b32 v3, 15, v1")
    a("s_lshl_b32 s%d, s%d, 12" % (sT0, sL4)); a("v_lshlrev_b32 v4, 8, v2"); a("v_add_u32 v4, s%d, v4" % sT0)
    a("v_xor_b32 v5, v2, v3"); a("v_lshlrev_b32 v5, 4, v5"); a("v_add_u32 v%d, v4, v5" % vK4)
    a("v_lshlrev_b32 v5, 1, v2"); a("v_xor_b32 v5, v5, v3"); a("v_lshlrev_b32 v5, 4, v5"); a("v_add_u32 v%d, v4, v5" % vV4)
    a("s_mul_i32 s%d, s%d, %d" % (sMK, sL4, 4 * KGRP)); a("s_mul_i32 s%d, s%d, %d" % (sMV, sL4, 4 * VGRP)); a("s_add_u32 s%d, s%d, %d" % (sMV, sMV, VOFF))
    a("s_mov_b32 s%d, %d" % (sTK, 3 * 16384)); a("s_mov_b32 s%d, %d" % (sKS, 3 * PAIR))
    def w(n):
        if "nowait" not in OPT: a("s_waitcnt vmcnt(%d)" % n)
    def item():
        a("s_add_u32 s%d, s%d, s%d" % (sT1, sMK, sKS)); a("s_add_u32 s%d, s%d, s%d" % (sT2, sMV, sKS))
        for isK in (True, False):
            grp = KGRP if isK else VGRP
            for ii in range(4):
                a("s_add_u32 m0, s%d, %d" % (sT1 if isK else sT2, ii * (grp - 1024))); a("s_nop 0")
                dma(a, vK4 if isK else vV4, sK if isK else sV, sTK, ii * 1024, KV_FLAGS)
        a("s_add_u32 s%d, s%d, 16384" % (sTK, sTK))
        a("s_add_u32 s%d, s%d, %d" % (sKS, sKS, PAIR)); a("s_cmp_eq_u32 s%d, %d" % (sKS, 4 * PAIR)); a("s_cselect_b32 s%d, 0, s%d" % (sKS, sKS))
    if not is_w: w(16)
    a("s_barrier")
    item()
    lab = a.label("Lkv4"); a("s_mov_b32 s%d, 2" % sCNT); a("%s:" % lab)
    w(8)
    a("s_barrier")
    item()
    if is_w:
        sk = a.label("Lc4"); a("s_cmp_lg_u32 s%d, %d" % (sCNT, CPF_AT)); a("s_cbranch_scc1 %s" % sk); cpf(); a("%s:" % sk)
    a("s_add_u32 s%d, s%d, 1" % (sCNT, sCNT)); a("s_cmp_lt_u32 s%d, 14" % sCNT); a("s_cbranch_scc1 %s" % lab)
    w(8); a("s_barrier")
    if is_w: iss_O()
    w(16 if is_w else 0); a("s_barrier")
    if is_w: iss_O()
    if is_w: w(16)
    a("s_barrier")
    if is_w: iss_O()

def gen_wloader(a):
    vW, vX, vO = 10, 14, 16
    a.stamp_wave = 4
    sA, sBb = sLWK, sLWV
    a("v_lshrrev_b32 v6, 5, v1"); a("v_and_b32 v7, 31, v1")
    a("s_lshl_b32 s%d, s%d, 17" % (sT1, sLW))
    a("v_lshlrev_b32 v8, 13, v6"); a("v_add_u32 v8, s%d, v8" % sT1)
    for var in range(4):
        a("v_add_u32 v5, %d, v6" % (2 * (var & 1) + 4 * (var >> 1))); a("v_lshlrev_b32 v5, 1, v5"); a("v_xor_b32 v5, v5, v7")
        a("v_lshlrev_b32 v5, 4, v5"); a("v_add_u32 v%d, v8, v5" % (vW + var))
    a("v_lshrrev_b32 v6, 3, v1"); a("v_and_b32 v7, 7, v1")
    a("s_mul_i32 s%d, s%d, 48" % (sT1, sLW)); a("v_add_u32 v8, s%d, v6" % sT1); a("v_mul_u32_u24 v8, 1152, v8")
    a("v_lshrrev_b32 v9, 1, v6")
    for i in range(2):
        a("v_add_u32 v5, %d, v9" % (4 * i)); a("v_xor_b32 v5, v5, v7"); a("v_lshlrev_b32 v5, 4, v5"); a("v_add_u32 v%d, v8, v5" % (vX + i))
    a("v_mul_u32_u24 v8, 1152, v6")
    a("v_and_b32 v5, 3, v9"); a("v_lshlrev_b32 v5, 1, v5"); a("v_xor_b32 v5, v5, v7"); a("v_lshlrev_b32 v5, 4, v5"); a("v_add_u32 v%d, v8, v5" % vO)
    a("s_lshl_b32 s%d, s%d, 13" % (sA, sLW))
    a("s_mul_i32 s%d, s%d, 6144" % (sBb, sLW))
    a("s_lshl_b32 s%d, s%d, 14" % (sLW4096, sLW))
    a("s_mul_i32 s%d, s%d, %d" % (sLW3072, sLW, 128 * 1152))
    sWK, sXK, sOK = 98, 99, 100
    sWS, sXS, sOS = 93, 92, 91
    A_, SI, B_, SJ = ROTQ
    a("s_and_b32 s%d, s%d, 7" % (sT0, sIDX)); a("s_lshr_b32 s%d, s%d, %d" % (sT0, sT0, SI)); a("s_mul_i32 s%d, s%d, %d" % (sT0, sT0, A_))
    a("s_lshr_b32 s%d, s%d, %d" % (sT1, sIDX, 3 + SJ)); a("s_mul_i32 s%d, s%d, %d" % (sT1, sT1, B_)); a("s_add_u32 s%d, s%d, s%d" % (sT0, sT0, sT1))
    for _ in range(2): a("s_cmp_ge_u32 s%d, 9" % sT0); a("s_cselect_b32 s%d, 9, 0" % sT1); a("s_sub_u32 s%d, s%d, s%d" % (sT0, sT0, sT1))
    a("s_lshl_b32 s%d, s%d, 19" % (sWK, sT0)); a("s_lshl_b32 s%d, s%d, 7" % (sXK, sT0))
    a("s_and_b32 s%d, s%d, 7" % (sT0, sB)); a("s_lshl_b32 s%d, s%d, 7" % (sOK, sT0))
    a("s_mov_b32 s%d, %d" % (sWS, 2 * 16384)); a("s_mov_b32 s%d, 0" % sXS); a("s_mov_b32 s%d, 0" % sOS)
    a("s_add_u32 s%d, s%d, %d" % (sA, sA, WBASE)); a("s_add_u32 s%d, s%d, %d" % (sBb, sBb, XBASE))
    def adv(reg, step, wrap):
        a("s_add_u32 s%d, s%d, %d" % (reg, reg, step)); a("s_cmp_eq_u32 s%d, %d" % (reg, wrap)); a("s_cselect_b32 s%d, 0, s%d" % (reg, reg))
    def iss_W():
        a("s_add_u32 m0, s%d, s%d" % (sA, sWS))
        for ii in range(8):
            if ii == 4: a("s_add_u32 m0, m0, 4096")
            a("s_add_u32 s%d, s%d, %d" % (sT0, sWK, 16384 * ii - (ii & 3) * 1024))
            dma(a, vW + (ii & 1) + 2 * (ii >> 2), sWQ, sT0, (ii & 3) * 1024, W_FLAGS)
        adv(sWK, 262144, 18 * 262144); adv(sWS, 16384, 65536)
    def iss_X():
        a("s_add_u32 m0, s%d, s%d" % (sBb, sXS))
        for ii in range(6):
            if ii == 4: a("s_add_u32 m0, m0, 4096")
            a("s_add_u32 s%d, s%d, %d" % (sT0, sXK, 9216 * ii - (ii & 3) * 1024))
            dma(a, vX + (ii & 1), sX, sT0, (ii & 3) * 1024, W_FLAGS)
        adv(sXK, 128, 9 * 128); a("s_xor_b32 s%d, s%d, %d" % (sXS, sXS, XSLOT))
    def iss_O():
        a("s_add_u32 s%d, s%d, s%d" % (sT1, sLW3072, sOK))
        a("s_add_u32 m0, s%d, s%d" % (sLW4096, sOS))
        for ii in range(16):
            if ii % 4 == 0 and ii: a("s_add_u32 m0, m0, 4096")
            a("s_add_u32 s%d, s%d, %d" % (sT0, sT1, 9216 * ii - (ii & 3) * 1024))
            dma(a, vO, sWO, sT0, (ii & 3) * 1024, O_FLAGS)
        adv(sOK, 128, 9 * 128); adv(sOS, PAIR, 4 * PAIR)
    tr = [16]
    def bar(w=None):
        if w is not None and "nowait" not in OPT: a("s_waitcnt vmcnt(%d)" % w)
        a("s_barrier")
    def loop(n, body, name):
        lab = a.label(name)
        a("s_mov_b32 s%d, 0" % sCNT); a("%s:" % lab)
        body()
        a("s_add_u32 s%d, s%d, 1" % (sCNT, sCNT)); a("s_cmp_lt_u32 s%d, %d" % (sCNT, n)); a("s_cbranch_scc1 %s" % lab)
    a("s_waitcnt lgkmcnt(0)")
    early_srds(a)
    if STAMP: a("v_writelane_b32 v40, s84, 16"); stamp(a, 17)
    if "look2" not in OPT:
        if "split0" in OPT:
            li = a.label("Lwi"); sk0 = a.label("Lwi0")
            a("s_mov_b32 s%d, 0" % sCNT); a("%s:" % li)
            iss_X(); iss_W(); iss_W()
            a("s_cmp_lg_u32 s%d, 0" % sCNT); a("s_cbranch_scc1 %s" % sk0)
            late_srds(a, "w")
            if STAMP: stamp(a, 18)
            if "nowait" not in OPT: a("s_waitcnt vmcnt(8)")
            if STAMP: stamp(a, 19)
            bar(None)
            a("s_mov_b32 s%d, 1" % sCNT); a("s_branch %s" % li)
            a("%s:" % sk0)
        else:
            loop(2, lambda: (iss_X(), iss_W(), iss_W()), "Lwi")
            bar(30)
        bar(22)
        iss_W()
        def qbody():
            bar(16)
            iss_X(); iss_W()
            bar(22)
            sk = a.label("Lwl"); a("s_cmp_eq_u32 s%d, 6" % sCNT); a("s_cbranch_scc1 %s" % sk)
            iss_W()
            a("%s:" % sk)
        loop(7, qbody, "Lwq")
        bar(8)
        bar(0)
    else:
        if STAMP: stamp(a, 17)
        iss_X(); iss_W(); iss_W()
        if STAMP: stamp(a, 18)
        def qbody():
            bar(8)
            iss_X(); iss_W()
            bar(14)
            iss_W()
        loop(8, qbody, "Lwq")
        bar(8)
        bar(0)
    bar(None); bar(None)
    stamp(a, 8)
    def cpf():
        sk = a.label("Lcp"); a("s_cmp_lg_u32 s%d, 1" % sLW); a("s_cbranch_scc1 %s" % sk); code_prefetch(a); a("%s:" % sk)
    if "kv4" in OPT: attn_kv4(a, True, iss_O, cpf)
    else:
        loop(CPF_AT, lambda: bar(None), "Lwa")
        cpf()
        loop(13 - CPF_AT, lambda: bar(None), "Lwb")
        loop(2, lambda: (bar(None), iss_O()), "Lwo")
        bar(16)
        iss_O()
    a("s_barrier"); a("s_barrier")
    loop(6, lambda: (bar(16), iss_O()), "Lwp")
    bar(0)
    a("s_barrier"); a("s_barrier"); a("s_barrier")
    stamp(a, 9)
    a("s_add_u32 s%d, s%d, 4" % (sCNT, sLW))
    a("s_branch L_reduce")

def dbg_check(a):
    if "nored" in OPT: return
    sk = a.label("Ldbg"); lp = a.label("Ldbgw")
    a("s_cmp_lg_u32 s%d, 0" % sLW); a("s_cbranch_scc1 %s" % sk)
    a("s_lshl_b32 s%d, s%d, 4" % (sT0, sB)); a("v_mov_b32 v12, s%d" % sT0); a("s_mov_b32 s%d, 0" % sT3)
    a("%s:" % lp)
    a("global_load_dword v13, v12, s[16:17] sc1"); a("s_waitcnt vmcnt(0)"); a("v_readfirstlane_b32 s%d, v13" % sT1)
    a("s_add_u32 s%d, s%d, 1" % (sT3, sT3)); a("s_cmp_gt_u32 s%d, %d" % (sT3, SPIN_MAX)); a("s_cbranch_scc1 %s" % sk)
    a("s_cmp_lt_u32 s%d, 16" % sT1); a("s_cbranch_scc1 %s" % lp)
    a("%s:" % sk)

def gen_kvloader(a):
    vK, vV = 10, 11
    a.stamp_wave = -1
    a("s_sub_u32 s%d, s%d, 2" % (sLW, sLW))
    a("v_lshrrev_b32 v2, 4, v1"); a("v_and_b32 v3, 15, v1")
    a("s_lshl_b32 s%d, s%d, 13" % (sT0, sLW))
    a("v_lshlrev_b32 v4, 8, v2"); a("v_add_u32 v4, s%d, v4" % sT0)
    a("v_xor_b32 v5, v2, v3"); a("v_lshlrev_b32 v5, 4, v5"); a("v_add_u32 v%d, v4, v5" % vK)
    a("v_lshlrev_b32 v5, 1, v2"); a("v_xor_b32 v5, v5, v3"); a("v_lshlrev_b32 v5, 4, v5"); a("v_add_u32 v%d, v4, v5" % vV)
    a("s_mul_i32 s%d, s%d, %d" % (sLWK, sLW, 8 * KGRP)); a("s_mul_i32 s%d, s%d, %d" % (sLWV, sLW, 8 * VGRP))
    sROT = 92
    if "krot" in OPT:
        a("s_mul_i32 s%d, s%d, %d" % (sROT, sXCD, KROT[0])); a("s_mul_i32 s%d, s%d, %d" % (sT0, sIDX, KROT[1])); a("s_add_u32 s%d, s%d, s%d" % (sROT, sROT, sT0))
    q = VQ(); bar = mk_bar(a, q, None)
    def iss(T, isK, lo=0, hi=8):
        for ii in range(lo, hi):
            if "krot" in OPT:
                if ii == lo: a("s_add_u32 s%d, s%d, %d" % (sT2, sROT, T)); a("s_and_b32 s%d, s%d, 15" % (sT2, sT2)); a("s_lshl_b32 s%d, s%d, 14" % (sT2, sT2))
                if ii % 4 == 0 or ii == lo: a("s_add_u32 s%d, s%d, %d" % (sT0, sT2, (ii >> 2) * 4096))
            elif ii % 4 == 0 or ii == lo: a("s_mov_b32 s%d, %d" % (sT0, T * 16384 + (ii >> 2) * 4096))
            grp = KGRP if isK else VGRP
            a("s_add_u32 m0, s%d, %d" % (sLWK if isK else sLWV, (T % 4) * PAIR + (0 if isK else VOFF) + ii * grp - (ii & 3) * 1024))
            if ii % 4: a("s_nop 0")
            else: a("s_nop 0")
            dma(a, vK if isK else vV, sK if isK else sV, sT0, (ii & 3) * 1024, KV_FLAGS)
        q.issue("I%d" % T, hi - lo)
    def prefetch_q():
        sk = a.label("Lpfq"); skx = a.label("Lpfx")
        a("s_cmp_lg_u32 s%d, %d" % (sLW, PF_WAVE)); a("s_cbranch_scc1 %s" % sk)
        a("s_cmp_ge_u32 s%d, 28" % sIDX); a("s_cbranch_scc1 %s" % sk)
        a("s_cmp_ge_u32 s%d, 16" % sIDX); a("s_cbranch_scc1 %s" % skx)
        a("s_lshl_b32 s%d, s%d, 2" % (sT0, sIDX)); a("v_add_u32 v5, s%d, v2" % sT0); a("v_lshlrev_b32 v5, 13, v5"); a("v_lshlrev_b32 v6, 7, v3"); a("v_add_u32 v5, v5, v6")
        for cp in range(PF_FIRST, 9):
            a("s_mov_b32 s%d, %d" % (sT0, cp * 64 * 8192)); a("buffer_load_dword v%d, v5, %s, s%d offen" % (20 + cp, srd(sPF), sT0))
        a("s_branch %s" % sk)
        a("%s:" % skx)
        a("s_sub_u32 s%d, s%d, 16" % (sT0, sIDX)); a("s_lshl_b32 s%d, s%d, 6" % (sT0, sT0)); a("v_add_u32 v5, s%d, v1" % sT0); a("v_mul_u32_u24 v5, 1152, v5")
        for cp in range(PF_FIRST, 9):
            a("s_mov_b32 s%d, %d" % (sT0, cp * 128)); a("buffer_load_dword v%d, v5, %s, s%d offen" % (20 + cp, srd(sPF2), sT0))
        a("%s:" % sk)
    def clear_flags(part):
        sk = a.label("Lclr")
        a("s_cmp_lg_u32 s%d, 1" % sLW); a("s_cbranch_scc1 %s" % sk)
        if part == 0:
            a("v_mov_b32 v20, 0"); a("v_mov_b32 v21, 0")
            a("s_lshl_b32 s%d, s%d, 3" % (sT0, sH))
            a("v_lshlrev_b32 v5, 7, v1"); a("v_add_u32 v5, s%d, v5" % sT0); a("v_mov_b32 v7, 0x40000000"); a("v_cmp_gt_u32 vcc, 9, v1"); a("s_nop 1"); a("v_cndmask_b32 v5, v7, v5, vcc")
            a("buffer_store_dwordx2 v[20:21], v5, %s, 0 offen sc0 sc1" % srd(sFL))
        else:
            a("s_waitcnt vmcnt(0)")
            a("s_lshl_b32 s%d, s%d, 4" % (sT0, sB)); a("v_mov_b32 v5, s%d" % sT0); a("v_mov_b32 v6, 1")
            a("s_mov_b64 s[96:97], exec"); a("s_mov_b64 exec, 1")
            a("global_atomic_add v5, v6, s[16:17] sc1")
            a("s_mov_b64 exec, s[96:97]")
        a("%s:" % sk)
    if "cpf0" in OPT:
        sk = a.label("Lcp0"); a("s_cmp_lg_u32 s%d, 1" % sLW); a("s_cbranch_scc1 %s" % sk); code_prefetch(a); a("%s:" % sk)
    if "notlb" not in OPT:
        sk = a.label("Ltlb")
        a("s_cmp_lg_u32 s%d, 0" % sLW); a("s_cbranch_scc1 %s" % sk)
        a("v_mov_b32 v5, 0")
        for i, sr in enumerate((sK, sV, sWO, sP, sOUT)): a("buffer_load_dword v%d, v5, %s, 0 offen nt" % (33 + i, srd(sr)))
        a("v_mul_u32_u24 v5, %d, v1" % (PART // 8)); a("v_lshlrev_b32 v5, 3, v5"); a("v_mov_b32 v7, 0x40000000"); a("v_cmp_gt_u32 vcc, 16, v1"); a("s_nop 1"); a("v_cndmask_b32 v5, v7, v5, vcc")
        a("buffer_load_dword v38, v5, %s, 0 offen nt" % srd(sPB))
        a("%s:" % sk)
    clear_flags(0)
    if "nopfq" not in OPT and PF_AT < 0: prefetch_q()
    for s in range(18):
        bar(None)
        if s == 4: clear_flags(1)
        if PFW_AT is not None and PFW_AT <= s < PFW_AT + 3:
            sk = a.label("Lpfw"); a("s_cmp_lg_u32 s%d, 0" % sLW); a("s_cbranch_scc1 %s" % sk)
            a("s_mul_i32 s%d, s2, 144" % sT0); a("s_add_u32 s%d, s%d, %d" % (sT0, sT0, 48 * (s - PFW_AT)))
            a("v_add_u32 v5, s%d, v1" % sT0); a("v_lshlrev_b32 v5, 7, v5"); a("v_mov_b32 v7, 0x40000000"); a("v_cmp_gt_u32 vcc, 48, v1"); a("s_nop 1"); a("v_cndmask_b32 v5, v7, v5, vcc")
            a("buffer_load_dword v30, v5, s[72:75], 0 offen")
            a("%s:" % sk)
        if "nopfq" not in OPT and PF_AT == s: prefetch_q()
        for e in KSCHED.get(s, []): iss(e[1], e[0] == "K", *e[2:])
    bar(None)
    for e in KSCHED.get(18, []): iss(e[1], e[0] == "K", *e[2:])
    bar(["I0", "I1"] if "wait01" in OPT else ["I0"])
    for e in KSCHED.get(19, []): iss(e[1], e[0] == "K", *e[2:])
    if "kv4" in OPT:
        assert FIRST_RULE == 1
        attn_kv4(a, False)
    else:
        sTK, sKS = 93, 91
        def item_dyn():
            if PACE == "w7":
                sk = a.label("Lpace"); a("s_cmp_lg_u32 s%d, 1" % sLW); a("s_cbranch_scc1 %s" % sk); a("s_waitcnt vmcnt(0)"); a("%s:" % sk)
            a("s_add_u32 s%d, s%d, s%d" % (sT1, sLWK, sKS)); a("s_add_u32 s%d, s%d, s%d" % (sT2, sLWV, sKS))
            for isK in (True, False):
                if PACE == "kv": a("s_waitcnt vmcnt(8)")
                if PACE == "v" and not isK: a("s_waitcnt vmcnt(8)")
                for ii in range(8):
                    if ii % 4 == 0: a("s_add_u32 s%d, s%d, %d" % (sT0, sTK, (ii >> 2) * 4096))
                    grp = KGRP if isK else VGRP
                    a("s_add_u32 m0, s%d, %d" % (sT1 if isK else sT2, (0 if isK else VOFF) + ii * grp - (ii & 3) * 1024)); a("s_nop 0")
                    dma(a, vK if isK else vV, sK if isK else sV, sT0, (ii & 3) * 1024, KV_FLAGS)
            a("s_add_u32 s%d, s%d, 16384" % (sTK, sTK))
            a("s_add_u32 s%d, s%d, %d" % (sKS, sKS, PAIR)); a("s_cmp_eq_u32 s%d, %d" % (sKS, 4 * PAIR)); a("s_cselect_b32 s%d, 0, s%d" % (sKS, sKS))
        def wv(n):
            if "nowait" not in OPT: a("s_waitcnt vmcnt(%d)" % n)
        if LAG:
            a("s_mov_b32 s%d, %d" % (sTK, 2 * 16384)); a("s_mov_b32 s%d, %d" % (sKS, 2 * PAIR))
            lab = a.label("Lkvl"); a("s_mov_b32 s%d, 1" % sCNT); a("%s:" % lab)
            wv(0); a("s_barrier"); item_dyn()
            a("s_add_u32 s%d, s%d, 1" % (sCNT, sCNT)); a("s_cmp_le_u32 s%d, %d" % (sCNT, LAG)); a("s_cbranch_scc1 %s" % lab)
            item_dyn()
            first = LAG + 1
        else:
            if FIRST_RULE == 2:
                n1 = q.wait(["I1"])
                if n1 is not None: wv(n1)
                a("s_barrier")
            a("s_mov_b32 s%d, %d" % (sTK, (FIRST_RULE + 2) * 16384)); a("s_mov_b32 s%d, %d" % (sKS, ((FIRST_RULE + 2) % 4) * PAIR))
            first = FIRST_RULE
        lab = a.label("Lkv"); a("s_mov_b32 s%d, %d" % (sCNT, first - 1)); a("%s:" % lab)
        wv(16)
        a("s_barrier")
        item_dyn()
        a("s_add_u32 s%d, s%d, 1" % (sCNT, sCNT)); a("s_cmp_lt_u32 s%d, 13" % sCNT); a("s_cbranch_scc1 %s" % lab)
        wv(16)
        a("s_barrier")
        dbg_check(a)
        wv(0)
        a("s_barrier")
        a("s_barrier")
    if "kv4" in OPT: dbg_check(a)
    a("s_barrier"); a("s_barrier")
    vPR, vPO, vF, vOne = 20, 24, 25, 26
    sCH = 93
    a("v_lshlrev_b32 v%d, 4, v1" % vPO)
    a("s_mul_i32 s%d, s%d, 6144" % (sT0, sLW)); a("s_add_u32 s%d, s%d, %d" % (sT0, sT0, PB0)); a("v_add_u32 v%d, s%d, v%d" % (vPR, sT0, vPO)); a("v_add_u32 v%d, 3072, v%d" % (vPR + 1, vPR))
    a("s_mul_i32 s%d, s%d, %d" % (sT0, sLW, 2 * PAIR)); a("s_add_u32 s%d, s%d, 32768" % (sT0, sT0)); a("v_add_u32 v%d, s%d, v%d" % (vPR + 2, sT0, vPO)); a("v_add_u32 v%d, %d, v%d" % (vPR + 3, PAIR, vPR + 2))
    a("s_mul_i32 s%d, s%d, 6144" % (sT0, sLW)); a("v_add_u32 v%d, s%d, v%d" % (vPO, sT0, vPO))
    a("v_mov_b32 v%d, 1" % vOne)
    a("s_lshl_b32 s%d, s%d, 3" % (sT0, sH)); a("s_lshl_b32 s%d, s%d, 2" % (sT1, sLW)); a("s_add_u32 s%d, s%d, s%d" % (sT0, sT0, sT1))
    a("v_mov_b32 v%d, 0x40000000" % vF); a("s_nop 0"); a("v_writelane_b32 v%d, s%d, 0" % (vF, sT0))
    a("s_mov_b32 s%d, 0" % sCH)
    def flag_store(back):
        a("s_sub_u32 s%d, s%d, %d" % (sT0, sCH, back)); a("s_lshl_b32 s%d, s%d, 7" % (sT0, sT0))
        a("buffer_store_dword v%d, v%d, %s, s%d offen sc0 sc1" % (vOne, vF, srd(sFL), sT0))
    def turn(buf, guard):
        for w2 in range(2):
            for j in range(3): a("ds_read_b128 %s, v%d offset:%d" % (vr(64 + 32 * buf + 4 * (3 * w2 + j), 4), vPR + 2 * buf + w2, j * 1024))
        a("s_mul_i32 s%d, s%d, 12288" % (sT0, sCH))
        for i in range(6):
            a("s_waitcnt lgkmcnt(%d)" % (5 - i))
            if "nostore" not in OPT: a("buffer_store_dwordx4 %s, v%d, %s, s%d offen%s" % (vr(64 + 32 * buf + 4 * i, 4), vPO, srd(sP), sT0, P_FLAGS))
            if i < 5: a("s_add_u32 s%d, s%d, 1024" % (sT0, sT0))
        if "nored" not in OPT:
            sk = a.label("Lfl")
            if guard: a("s_cmp_lt_u32 s%d, 2" % sCH); a("s_cbranch_scc1 %s" % sk)
            a("s_waitcnt vmcnt(%d)" % FLW)
            flag_store(2)
            a("%s:" % sk)
        a("s_add_u32 s%d, s%d, 1" % (sCH, sCH))
    a("s_barrier")
    lab = a.label("Lsto"); a("%s:" % lab)
    a("s_barrier"); turn(0, True)
    a("s_barrier"); turn(1, True)
    a("s_cmp_lt_u32 s%d, 8" % sCH); a("s_cbranch_scc1 %s" % lab)
    a("s_barrier"); turn(0, False)
    if "nored" not in OPT:
        a("s_waitcnt vmcnt(7)"); flag_store(2)
        a("s_waitcnt vmcnt(1)"); flag_store(1)
    a("s_cmp_eq_u32 s%d, 0" % sLW); a("s_cselect_b32 s%d, 7, 6" % sCNT)
    a("s_branch L_reduce")

KSCHED = {2: [("K", 0)], 5: [("V", 0)], 8: [("K", 1)], 11: [("V", 1)], 16: [("K", 2)], 17: [("V", 2)]}

def gen_reducer(a):
    a("L_reduce:")
    if "nored" in OPT:
        a.stamp_wave = 4; stamp_flush(a); a("s_endpgm"); return
    rho = sCNT
    giveup = a.label("Lgiveup"); poll = a.label("Lpoll")
    a("s_mul_i32 s%d, s%d, 7" % (sT0, rho)); a("s_cmp_eq_u32 s%d, 7" % rho); a("s_cselect_b32 s%d, 48, s%d" % (sT0, sT0))
    a("s_mul_hi_u32 s%d, s%d, %d" % (sT2, sT0, (2**32 + 5) // 6))
    a("s_cmp_ge_u32 s%d, 6" % rho); a("s_cselect_b32 s%d, 48, 56" % sTASK2); a("s_cselect_b32 s%d, 0, -1" % sCNT2)
    a("v_lshlrev_b32 v9, 2, v1"); a("v_mov_b32 v7, 0x40000000")
    a("s_lshl_b32 s%d, s%d, 7" % (sT2, sT2))
    a("buffer_load_dword v11, v9, %s, s%d offen sc1" % (srd(sFL), sT2))
    a("v_lshrrev_b32 v2, 3, v1"); a("v_add_u32 v2, s%d, v2" % sT0)
    a("v_mul_u32_u24 v8, 10923, v2"); a("v_lshrrev_b32 v8, 16, v8")
    a("v_mul_u32_u24 v5, 6, v8"); a("v_sub_u32 v2, v2, v5")
    a("v_lshlrev_b32 v2, 3, v2"); a("v_and_b32 v5, 7, v1"); a("v_add_u32 v2, v2, v5")
    a("s_mul_i32 s%d, s%d, 48" % (sT1, sH)); a("v_add_u32 v2, s%d, v2" % sT1)
    a("v_mul_u32_u24 v3, 12288, v8"); a("v_lshlrev_b32 v5, 4, v2"); a("v_add_u32 v3, v3, v5")
    a("v_cmp_gt_u32 vcc, s%d, v1" % sTASK2); a("s_nop 1"); a("v_cndmask_b32 v3, v7, v3, vcc")
    a("v_lshrrev_b32 v4, 6, v2"); a("v_and_b32 v5, 63, v2")
    a("v_cmp_le_u32 s[96:97], 6, v4"); a("s_nop 1"); a("v_cndmask_b32 v6, 0, 1, s[96:97]")
    a("v_mul_u32_u24 v10, 6, v6"); a("v_sub_u32 v4, v4, v10")
    a("v_lshlrev_b32 v4, 4, v4"); a("v_and_b32 v10, 15, v5"); a("v_add_u32 v4, v4, v10"); a("v_mul_u32_u24 v4, 1152, v4")
    a("v_lshlrev_b32 v6, 6, v6"); a("v_lshrrev_b32 v5, 4, v5"); a("v_lshlrev_b32 v5, 3, v5"); a("v_add_u32 v4, v4, v6"); a("v_add_u32 v4, v4, v5")
    a("s_and_b32 s%d, s%d, 7" % (sT1, sB)); a("v_add_u32 v8, s%d, v8" % sT1)
    a("v_cmp_le_u32 s[96:97], 9, v8"); a("s_nop 1"); a("v_cndmask_b32 v6, 0, 9, s[96:97]"); a("v_sub_u32 v8, v8, v6"); a("v_lshlrev_b32 v8, 7, v8"); a("v_add_u32 v4, v4, v8")
    a("v_cndmask_b32 v4, v7, v4, vcc")
    a("s_mov_b32 s%d, 0" % sT3)
    a("s_branch %s_chk" % poll)
    a("%s:" % poll)
    a("buffer_load_dword v11, v9, %s, s%d offen sc1" % (srd(sFL), sT2))
    a("%s_chk:" % poll)
    a("s_waitcnt vmcnt(0)")
    a("v_cmp_eq_u32 vcc, 1, v11")
    a("s_add_u32 s%d, s%d, 1" % (sT3, sT3)); a("s_cmp_gt_u32 s%d, %d" % (sT3, SPIN_MAX)); a("s_cbranch_scc1 %s" % giveup)
    a("s_orn2_b32 vcc_hi, vcc_hi, s%d" % sCNT2)
    a("s_cmp_eq_u64 vcc, -1"); a("s_cbranch_scc0 %s" % poll)
    a("s_mov_b32 s%d, 0" % sT0)
    for h in range(16):
        a("buffer_load_dwordx4 v[%d:%d], v3, %s, s%d offen%s" % (64 + 4 * h, 67 + 4 * h, srd(sPB), sT0, R_FLAGS))
        if h < 15: a("s_add_u32 s%d, s%d, %d" % (sT0, sT0, PART))
    if "dot2" in OPT:
        a("v_mov_b32 v12, 0x00003f80"); a("v_mov_b32 v13, 0x3f800000")
        for r in range(8): a("v_mov_b32 v%d, 0" % (48 + r))
    for h in range(16):
        a("s_waitcnt vmcnt(%d)" % (15 - h))
        for r in range(4):
            src = 64 + 4 * h + r
            if "dot2" in OPT:
                a("v_dot2c_f32_bf16 v%d, v%d, v12" % (48 + 2 * r, src)); a("v_dot2c_f32_bf16 v%d, v%d, v13" % (49 + 2 * r, src))
            elif h == 0:
                a("v_lshlrev_b32 v%d, 16, v%d" % (48 + 2 * r, src)); a("v_and_b32 v%d, 0xffff0000, v%d" % (49 + 2 * r, src))
            else:
                a("v_lshlrev_b32 v12, 16, v%d" % src); a("v_and_b32 v13, 0xffff0000, v%d" % src)
                a("v_add_f32 v%d, v%d, v12" % (48 + 2 * r, 48 + 2 * r)); a("v_add_f32 v%d, v%d, v13" % (49 + 2 * r, 49 + 2 * r))
    for r in range(4): a("v_cvt_pk_bf16_f32 v%d, v%d, v%d" % (56 + r, 48 + 2 * r, 49 + 2 * r))
    a("buffer_store_dwordx2 v[56:57], v4, %s, 0 offen%s" % (srd(sOUT), OUT_FLAGS))
    a("buffer_store_dwordx2 v[58:59], v4, %s, 0 offen offset:32%s" % (srd(sOUT), OUT_FLAGS))
    a("%s:" % giveup)
    if STAMP:
        sk = a.label("Lnst"); a("s_cmp_lg_u32 s%d, 4" % sWAVE); a("s_cbranch_scc1 %s" % sk)
        a.stamp_wave = 4; stamp(a, 15); stamp_flush(a)
        a("%s:" % sk)
    a("s_endpgm")
R_FLAGS = " sc1"
OUT_FLAGS = ""
sTASK2 = 101
sCNT2 = 95
PB0 = 143360
SPIN_MAX = 200000
sWOP = 70

PF_O_AT = 10
PF_WAVE = 1
PF_FIRST = 4
PF_AT = 0
PF0 = 2
RAMP = 0
PFW_AT = None
PACE = None
ALIGN_T = None
ALIGN_R = None
ALIGN_Q = None
ALIGN_O = None
LAG = 0
RAMP_EVERY = 1
FLW = 12
STG_AT = 7
NSTG0 = 3
ROTQ = (1, 0, 2, 0)
KROT = (2, 1)
CPF_AT = 11
FIRST_RULE = 1
CMP_SLACK = 6
FLAG_DELAY = 4

def O_(j, db): return (j * 8 + db) * 4
def Q_(j, s): return 96 + (j * 4 + s) * 4
def KF(f): return 144 + 4 * f
def VF(db): return 176 + 4 * db
def S_(par): return 208 + 8 * par
def P_(par): return 224 + 4 * par
def N_(j): return 232 + 4 * j
def L_(j): return 244 + j
vKA, vVA, vT, vT2, vS, vLANE = 247, 248, 252, 253, 254, 255
MF = "v_mfma_f32_16x16x32_bf16"

def interleave(mfmas, fillers):
    out = list(fillers.get(-1, []))
    for i, m in enumerate(mfmas):
        out.append(m); out += fillers.get(i, [])
    return out
def spread(items, slots):
    d = {}; n = len(items)
    for i, it in enumerate(items): d.setdefault(slots[i * len(slots) // n], []).append(it)
    return d
def merge(*ds):
    o = {}
    for d in ds:
        for k, v in d.items(): o.setdefault(k, []).extend(v)
    return o

KORD = [(kb, s) for s in range(4) for kb in range(2)]
def k_read(kb, s, half, ad=None):
    return "ds_read_b128 %s, v%d offset:%d" % (vr(KF(kb * 4 + s), 4), vKA if ad is None else ad, half * 8 * KGRP + kb * 4 * KGRP + s * 64)
def v_reads(db, half):
    A, cc = divmod(db, 4)
    o = half * 8 * VGRP + A * 128
    return ["ds_read_b64_tr_b16 %s, v%d offset:%d" % (vr(VF(db), 2), vVA + cc, o), "ds_read_b64_tr_b16 %s, v%d offset:%d" % (vr(VF(db) + 2, 2), vVA + cc, o + 4 * VGRP)]

TAB = None
def hoist_waits(lines):
    out = []
    for l in lines:
        if l.startswith("s_waitcnt lgkmcnt") and out:
            n = int(l.split("(")[1].split(")")[0])
            k = len(out) - 1; jumped = 0; ok = False
            while k >= 0:
                x = out[k]
                if x.startswith("v_mfma"): ok = True; break
                if x.endswith(":") or x.startswith(("s_cbranch", "s_barrier", "s_waitcnt")): break
                if x.startswith("ds_"): jumped += 1
                k -= 1
            if ok and n - jumped >= 0:
                out.insert(k + 1, "s_waitcnt lgkmcnt(%d)" % (n - jumped)); continue
        out.append(l)
    return out

def gen_compute(a):
    rare = []
    a("v_and_b32 v%d, 63, v0" % vLANE)
    a("s_lshr_b32 s%d, s%d, 1" % (sQI, sWAVE)); a("s_and_b32 s%d, s%d, 1" % (sRH, sWAVE))
    g, rp, c, q = 240, 241, 242, 243
    a("v_lshrrev_b32 v%d, 4, v%d" % (g, vLANE)); a("v_bfe_u32 v%d, v%d, 2, 2" % (rp, vLANE)); a("v_and_b32 v%d, 3, v%d" % (c, vLANE)); a("v_and_b32 v%d, 15, v%d" % (q, vLANE))
    vWA, vXA = 232, 244
    t, t2 = vT, vT2
    a("v_lshlrev_b32 v%d, 3, v%d" % (t, g)); a("v_add_u32 v%d, v%d, v%d" % (t, t, rp)); a("v_lshlrev_b32 v%d, 9, v%d" % (t, t))
    a("v_and_b32 v%d, 1, v%d" % (t2, g)); a("v_lshlrev_b32 v%d, 2, v%d" % (t2, t2)); a("v_add_u32 v%d, v%d, v%d" % (t2, t2, rp)); a("v_lshlrev_b32 v%d, 5, v%d" % (t2, t2))
    a("v_add_u32 v%d, v%d, v%d" % (t, t, t2)); a("v_lshlrev_b32 v%d, 3, v%d" % (t2, c)); a("v_add_u32 v%d, v%d, v%d" % (t, t, t2))
    a("s_lshl_b32 s%d, s%d, 8" % (sT0, sQI)); a("s_add_u32 s%d, s%d, %d" % (sT0, sT0, WBASE)); a("v_add_u32 v%d, s%d, v%d" % (t, sT0, t))
    assert WBASE % 256 == 0 and XBASE % 128 == 0
    for db in range(8): a("v_xor_b32 v%d, %d, v%d" % (vWA + db, db * 32, t))
    a("s_mul_i32 s%d, s%d, %d" % (sT0, sRH, 48 * 128)); a("s_add_u32 s%d, s%d, %d" % (sT0, sT0, XBASE))
    a("v_lshrrev_b32 v%d, 1, v%d" % (t, q)); a("v_xor_b32 v%d, v%d, v%d" % (t, t, g)); a("v_lshlrev_b32 v%d, 4, v%d" % (t, t))
    a("v_lshlrev_b32 v%d, 7, v%d" % (t2, q)); a("v_add_u32 v%d, v%d, v%d" % (t, t, t2)); a("v_add_u32 v%d, s%d, v%d" % (vXA, sT0, t)); a("v_xor_b32 v%d, 64, v%d" % (vXA + 1, vXA))
    a("v_lshrrev_b32 v%d, 2, v%d" % (t, q)); a("v_mul_u32_u24 v%d, %d, v%d" % (t, KGRP, t))
    a("v_and_b32 v%d, 3, v%d" % (t2, q)); a("v_lshlrev_b32 v%d, 8, v%d" % (vKA, t2)); a("v_add_u32 v%d, v%d, v%d" % (t, t, vKA))
    a("v_xor_b32 v%d, v%d, v%d" % (t2, t2, g)); a("v_lshlrev_b32 v%d, 4, v%d" % (t2, t2)); a("v_add_u32 v%d, v%d, v%d" % (vKA, t, t2))
    a("v_mul_u32_u24 v%d, %d, v%d" % (t, VGRP, g)); a("v_lshlrev_b32 v%d, 8, v%d" % (t2, rp)); a("v_add_u32 v%d, v%d, v%d" % (t, t, t2))
    a("v_lshlrev_b32 v%d, 3, v%d" % (t2, c)); a("v_add_u32 v%d, v%d, v%d" % (t, t, t2)); a("v_add_u32 v%d, %d, v%d" % (t, VOFF, t))
    for cc in range(4):
        a("v_xor_b32 v%d, %d, v%d" % (t2, cc, rp)); a("v_lshlrev_b32 v%d, 5, v%d" % (t2, t2)); a("v_add_u32 v%d, v%d, v%d" % (vVA + cc, t, t2))
    stamp(a, 0, 10)

    def ABUF(buf, db): return 144 + 32 * buf + 4 * db
    def BBUF(buf, j): return 208 + 12 * buf + 4 * j
    def q_reads(s):
        buf = s & 1; wo = ((s + 2) % 4) * 16384; xo = ((s // 2) % 2) * XSLOT
        r = []
        for j in range(3): r.append("ds_read_b128 %s, v%d offset:%d" % (vr(BBUF(buf, j), 4), vXA + (s & 1), xo + j * 2048))
        for db in range(8):
            r.append("ds_read_b64_tr_b16 %s, v%d offset:%d" % (vr(ABUF(buf, db), 2), vWA + db, wo))
            r.append("ds_read_b64_tr_b16 %s, v%d offset:%d" % (vr(ABUF(buf, db) + 2, 2), vWA + db, wo + 2048))
        return r
    for r in range(0, 96, 2): a("v_mov_b64 %s, 0" % vr(r, 2))
    a("s_barrier")
    for x in q_reads(0): a(x)
    def q_stage(s, reads=True):
        buf = s & 1
        a("s_waitcnt lgkmcnt(0)")
        a("s_barrier")
        mf = []
        for db in range(8):
            for j in range(3):
                mf.append("%s %s, %s, %s, %s" % (MF, vr(O_(j, db), 4), vr(ABUF(buf, db), 4), vr(BBUF(buf, j), 4), vr(O_(j, db), 4)))
        rd = q_reads(s + 1) if reads else []
        for x in interleave(mf, spread(rd, list(range(0, 17))) if rd else {}): a(x)
    lq = a.label("Lq")
    a("s_mov_b32 s%d, 0" % sCNT)
    if ALIGN_Q is not None:
        a(".p2align 6")
        for _ in range(ALIGN_Q): a("s_nop 0")
    a("%s:" % lq)
    for s in range(4): q_stage(s)
    a("s_add_u32 s%d, s%d, 1" % (sCNT, sCNT)); a("s_cmp_lt_u32 s%d, 4" % sCNT); a("s_cbranch_scc1 %s" % lq)
    q_stage(16); q_stage(17, reads=False)
    stamp(a, 1, 11)
    a("s_mov_b32 s%d, %s" % (sT0, f32(C_SCALE))); a("s_mov_b32 s%d, s%d" % (sT0 + 1, sT0))
    a("v_mov_b64 v[232:233], 0"); a("v_mov_b64 v[234:235], 0")
    a("s_nop 4")
    blocks = [(j, s) for s in range(4) for j in range(3)]
    for p in range(0, 12, 2):
        pair = blocks[p:p + 2]
        regs = [(O_(j, 2 * s), O_(j, 2 * s + 1), Q_(j, s)) for j, s in pair]
        for X, Y, D in regs:
            for b in (X, Y):
                for r in (0, 2): a("v_pk_mul_f32 %s, %s, s[%d:%d]" % (vr(b + r, 2), vr(b + r, 2), sT0, sT0 + 1))
        for X, Y, D in regs:
            a("v_cvt_pk_bf16_f32 v%d, v%d, v%d" % (D + 0, X + 0, X + 1)); a("v_cvt_pk_bf16_f32 v%d, v%d, v%d" % (D + 1, X + 2, X + 3))
            a("v_cvt_pk_bf16_f32 v%d, v%d, v%d" % (D + 2, Y + 0, Y + 1)); a("v_cvt_pk_bf16_f32 v%d, v%d, v%d" % (D + 3, Y + 2, Y + 3))
        zs = [b for X, Y, D in regs for b in (X, Y)]
        def z(i):
            if "zmov" in OPT: a("v_mov_b64 %s, 0" % vr(zs[i], 2)); a("v_mov_b64 %s, 0" % vr(zs[i] + 2, 2))
            else: a("%s %s, v[232:235], v[232:235], 0" % (MF, vr(zs[i], 4)))
        z(0)
        for X, Y, D in regs: a("v_permlane32_swap_b32 v%d, v%d" % (D + 0, D + 2)); a("v_permlane32_swap_b32 v%d, v%d" % (D + 1, D + 3))
        z(1)
        a("v_permlane16_swap_b32 v%d, v%d" % (regs[0][2] + 0, regs[0][2] + 2)); a("v_permlane16_swap_b32 v%d, v%d" % (regs[0][2] + 1, regs[0][2] + 3))
        z(2)
        a("v_permlane16_swap_b32 v%d, v%d" % (regs[1][2] + 0, regs[1][2] + 2)); a("v_permlane16_swap_b32 v%d, v%d" % (regs[1][2] + 1, regs[1][2] + 3))
        z(3)
    if "stB0" in OPT: stamp(a, 5)
    a("s_barrier")
    for kb, s_ in KORD: a(k_read(kb, s_, 0))
    a("s_waitcnt lgkmcnt(0)")
    for j in range(3):
        for kb, s_ in KORD:
            d = 176 + 8 * j + 4 * kb
            a("%s %s, %s, %s, %s" % (MF, vr(d, 4), vr(KF(kb * 4 + s_), 4), vr(Q_(j, s_), 4), "0" if s_ == 0 else vr(d, 4)))
    for r in range(224, 232, 2): a("v_mov_b64 %s, 0" % vr(r, 2))
    for j in range(3): a("v_mov_b32 v%d, 0" % L_(j))
    a("v_mov_b32 v%d, 0" % vS)
    a("s_mov_b32 s%d, %s" % (sTHR, "0x7f800000" if "norare" in OPT else f32(256.0)))
    a("s_mov_b32 s%d, 0" % sSLOT); a("s_mov_b32 s%d, 0" % sDK)
    a("s_mov_b32 s%d, 0x%x" % (sNEG, -3 * PAIR & 0xffffffff))
    a("s_mov_b64 vcc, 0")
    a("s_nop 3")
    for j in range(3):
        S = 176 + 8 * j; t, t2 = 200 + 2 * j, 201 + 2 * j
        a("v_max3_f32 v%d, v%d, v%d, v%d" % (t, S, S + 1, S + 2)); a("v_max3_f32 v%d, v%d, v%d, v%d" % (t2, S + 3, S + 4, S + 5))
        a("v_max3_f32 v%d, v%d, v%d, v%d" % (t, t, S + 6, S + 7)); a("v_max_f32 v%d, v%d, v%d" % (t, t, t2))
    for sw in ("v_permlane32_swap_b32", "v_permlane16_swap_b32"):
        for j in range(3): a("v_mov_b32 v%d, v%d" % (201 + 2 * j, 200 + 2 * j))
        a("s_nop 0")
        for j in range(3): a("%s v%d, v%d" % (sw, 200 + 2 * j, 201 + 2 * j))
        for j in range(3): a("v_max_f32 v%d, v%d, v%d" % (200 + 2 * j, 200 + 2 * j, 201 + 2 * j))
    for j in range(3):
        for i in range(4): a("v_sub_f32 v%d, 0, v%d" % (N_(j) + i, 200 + 2 * j))
    for r in range(176, 208, 2): a("v_mov_b64 %s, 0" % vr(r, 2))
    def qk_mfmas(jn, par):
        m = []
        for kb, s in KORD:
            d = S_(par) + 4 * kb
            cc = vr(N_(jn), 4) if s == 0 else vr(d, 4)
            m.append("%s %s, %s, %s, %s" % (MF, vr(d, 4), vr(KF(kb * 4 + s), 4), vr(Q_(jn, s), 4), cc))
        return m
    def pv_mfmas(jp, par):
        return ["%s %s, %s, %s, %s" % (MF, vr(O_(jp, db), 4), vr(VF(db), 4), vr(P_(par), 4), vr(O_(jp, db), 4)) for db in range(8)]
    for m in qk_mfmas(0, 0): a(m)
    a("s_nop 7")

    def rare_code(st, j, adv):
        par = (3 * st + j) & 1
        S, P = S_(par), P_(par)
        rl, cont = a.label("Lrare"), a.label("Lcont")
        r = Asm()
        r("%s:" % rl)
        if adv: r("v_subrev_u32 v%d, s%d, v%d" % (vT2, sDK, vKA))
        else: r("v_mov_b32 v%d, v%d" % (vT2, vKA))
        for kb in range(2):
            for s in range(4):
                r("ds_read_b128 %s, v%d offset:%d" % (vr(P, 4), vT2, st * 8 * KGRP + kb * 4 * KGRP + s * 64))
                r("s_waitcnt lgkmcnt(0)")
                cc = vr(N_(j), 4) if s == 0 else vr(S + 4 * kb, 4)
                r("%s %s, %s, %s, %s" % (MF, vr(S + 4 * kb, 4), vr(P, 4), vr(Q_(j, s), 4), cc))
                r("s_nop 3")
        r("s_nop 7")
        r("v_max3_f32 v%d, v%d, v%d, v%d" % (vT, S, S + 1, S + 2)); r("v_max3_f32 v%d, v%d, v%d, v%d" % (vT2, S + 3, S + 4, S + 5))
        r("v_max3_f32 v%d, v%d, v%d, v%d" % (vT, vT, S + 6, S + 7)); r("v_max_f32 v%d, v%d, v%d" % (vT, vT, vT2))
        r("v_mov_b32 v%d, v%d" % (vT2, vT)); r("s_nop 1"); r("v_permlane32_swap_b32 v%d, v%d" % (vT, vT2)); r("v_max_f32 v%d, v%d, v%d" % (vT, vT, vT2))
        r("v_mov_b32 v%d, v%d" % (vT2, vT)); r("s_nop 1"); r("v_permlane16_swap_b32 v%d, v%d" % (vT, vT2)); r("v_max_f32 v%d, v%d, v%d" % (vT, vT, vT2))
        r("v_max_f32 v%d, 0, v%d" % (vT, vT))
        r("v_sub_f32 v%d, 0, v%d" % (vT2, vT)); r("v_exp_f32 v%d, v%d" % (vT2, vT2)); r("s_nop 0")
        r("v_mul_f32 v%d, v%d, v%d" % (L_(j), L_(j), vT2))
        for db in range(8):
            for rr in range(4): r("v_mul_f32 v%d, v%d, v%d" % (O_(j, db) + rr, O_(j, db) + rr, vT2))
        for i in range(4): r("v_sub_f32 v%d, v%d, v%d" % (N_(j) + i, N_(j) + i, vT))
        for i in range(8): r("v_sub_f32 v%d, v%d, v%d" % (S + i, S + i, vT))
        for i in range(8): r("v_exp_f32 v%d, v%d" % (S + i, S + i))
        r("s_nop 0")
        r("v_add_f32 v%d, v%d, v%d" % (vS, S, S + 1))
        for i in range(2, 8): r("v_add_f32 v%d, v%d, v%d" % (vS, vS, S + i))
        for i in range(4): r("v_cvt_pk_bf16_f32 v%d, v%d, v%d" % (P + i, S + 2 * i, S + 2 * i + 1))
        r("s_nop 1")
        r("s_branch %s" % cont)
        rare.append(r.text())
        if "nobr" in OPT: return ["%s:" % cont]
        if "sccbr" in OPT: return ["s_cbranch_scc1 %s" % rl, "%s:" % cont]
        return ["s_cbranch_vccnz %s" % rl, "%s:" % cont]

    def block_tab(st, j, prev, qk=True, kload=None, vlo=None, vhi=None, barrier=False, extra=(), pre_extra=(), klate=None):
        par = (3 * st + j) & 1
        jn, jp = (j + 1) % 3, (j - 1) % 3
        S, P = S_(par), P_(par)
        pre = []
        if barrier: pre.append("s_barrier")
        endbr = []
        if "brend" in OPT:
            endbr = rare_code(st, j, st == 1 and j >= 1)
        elif prev is not None: pre += rare_code(*prev)
        pre += list(pre_extra)
        mf = qk_mfmas(jn, par ^ 1) + pv_mfmas(jp, par ^ 1)
        N = {}
        for i in range(8): N["E%d" % i] = "v_exp_f32 v%d, v%d" % (S + i, S + i)
        for i in range(4):
            N["C%d" % i] = "v_cvt_pk_bf16_f32 v%d, v%d, v%d" % (P + i, S + 2 * i, S + 2 * i + 1)
            N["A%d" % i] = "v_add_f32 v%d, v%d, v%d" % (S + 2 * i, S + 2 * i, S + 2 * i + 1)
        N["B0"] = "v_add_f32 v%d, v%d, v%d" % (S, S, S + 2); N["B1"] = "v_add_f32 v%d, v%d, v%d" % (S + 4, S + 4, S + 6)
        N["SUM"] = "v_add_f32 v%d, v%d, v%d" % (vS, S, S + 4); N["CMP"] = "v_cmp_lt_f32 vcc, s%d, v%d" % (sTHR, vS)
        N["L"] = "v_add_f32 v%d, v%d, v%d" % (L_(jp), L_(jp), vS)
        lds = {g: [] for g in range(16)}
        if "nolds" not in OPT:
            if vlo is not None:
                rs = [x for db in range(4) for x in v_reads(db, vlo)]
                for x, g in zip(rs, TAB["vlo"]): lds[g].append(x)
            if vhi is not None:
                rs = [x for db in range(4, 8) for x in v_reads(db, vhi)]
                for x, g in zip(rs, TAB["vhi"]): lds[g].append(x)
            if kload is not None:
                for (kb, s_), g in zip(KORD[:6], TAB["k"]): lds[g].append(k_read(kb, s_, kload))
            if klate is not None:
                for (kb, s_), g in zip(KORD[6:], TAB["klate"]): lds[g].append(k_read(kb, s_, klate))
        out = list(pre)
        ex = list(extra)
        for g in range(16):
            out.append(mf[g])
            if g == 15 and endbr: out += (["s_cmp_lg_u64 vcc, 0"] if "sccbr" in OPT else []) + endbr
            out += lds[g]
            if "nosm" not in OPT: out += [N[n] for n in TAB["valu"].get(g, [])]
            if g == TAB.get("scc_at", 15) and "sccbr" in OPT and "brend" not in OPT: out.append("s_cmp_lg_u64 vcc, 0")
            if g in TAB.get("extra_at", ()) and ex:
                x = ex.pop(0); out += (x if isinstance(x, list) else [x])
        for x in ex: out += (x if isinstance(x, list) else [x])
        return out

    def block(st, j, prev, qk=True, kload=None, vlo=None, vhi=None, barrier=False, extra=(), pre_extra=(), klate=None):
        if TAB is not None and qk: return block_tab(st, j, prev, qk, kload, vlo, vhi, barrier, extra, pre_extra, klate)
        if "brend" in OPT: prev = None
        if "sccbr" in OPT and prev is not None: pre_extra = list(pre_extra)
        par = (3 * st + j) & 1
        jn, jp = (j + 1) % 3, (j - 1) % 3
        S, P = S_(par), P_(par)
        pre = []
        if barrier: pre.append("s_barrier")
        if prev is not None: pre += rare_code(*prev)
        pre += list(pre_extra)
        mf = (qk_mfmas(jn, par ^ 1) if qk else []) + pv_mfmas(jp, par ^ 1)
        nq = 8 if qk else 0
        if not qk: pre.append("s_nop 1")
        it = []
        Ladd = Item("v_add_f32 v%d, v%d, v%d" % (L_(jp), L_(jp), vS), lo=0, hi=6, pri=5)
        E = [Item("v_exp_f32 v%d, v%d" % (S + i, S + i), lo=0, pri=3) for i in range(8)]
        for i in range(1, 8): pass
        A01 = Item("v_add_f32 v%d, v%d, v%d" % (vT, S, S + 1), deps=[E[0], E[1]])
        A23 = Item("v_add_f32 v%d, v%d, v%d" % (vT2, S + 2, S + 3), deps=[E[2], E[3]])
        B_ = Item("v_add_f32 v%d, v%d, v%d" % (vT, vT, vT2), deps=[A01, A23])
        A45 = Item("v_add_f32 v%d, v%d, v%d" % (vT2, S + 4, S + 5), deps=[E[4], E[5], B_])
        C_ = Item("v_add_f32 v%d, v%d, v%d" % (vT, vT, vT2), deps=[A45])
        A67 = Item("v_add_f32 v%d, v%d, v%d" % (vT2, S + 6, S + 7), deps=[E[6], E[7], C_])
        D_ = Item("v_add_f32 v%d, v%d, v%d" % (vS, vT, vT2), deps=[A67, Ladd])
        CMP = Item("v_cmp_lt_f32 vcc, s%d, v%d" % (sTHR, vS), deps=[D_], hi=len(mf) - CMP_SLACK)
        CV = [Item("v_cvt_pk_bf16_f32 v%d, v%d, v%d" % (P + i, S + 2 * i, S + 2 * i + 1), deps=[E[2 * i], E[2 * i + 1]], hi=len(mf) - 2) for i in range(4)]
        if "nosm" in OPT: it = []
        else: it = [Ladd] + E + [A01, A23, B_, A45, C_, A67, D_, CMP] + CV
        if "nolds" not in OPT:
            if vlo is not None:
                for db in range(4): it.append(Item(v_reads(db, vlo), lo=nq + db, pri=4))
            if vhi is not None:
                for db in range(4, 8): it.append(Item(v_reads(db, vhi), lo=0, hi=nq + db - 7, pri=6))
            if kload is not None:
                for i, (kb, s) in enumerate(KORD[:6]): it.append(Item(k_read(kb, s, kload), lo=max(i, 5), hi=min(15, 9 + i), pri=4))
            if klate is not None:
                for i, (kb, s) in list(enumerate(KORD))[6:]: it.append(Item(k_read(kb, s, klate), lo=0, hi=0, pri=7))
        for x in extra: it.append(Item(x, lo=8))
        return schedule(mf, it, pre)

    def tile(last, first_of_all=False):
        L = []
        L += block(0, 0, (1, 2, True), vlo=0)
        L += block(0, 1, (0, 0, False), vhi=0, kload=1)
        L += block(0, 2, (0, 1, False), klate=1)
        L += block(1, 0, (0, 2, False), vlo=1)
        adv = ["s_add_u32 s%d, s%d, 1" % (sSLOT, sSLOT), "s_and_b32 s%d, s%d, 3" % (sSLOT, sSLOT), "s_cmp_eq_u32 s%d, 0" % sSLOT,
               "s_cselect_b32 s%d, s%d, %d" % (sDK, sNEG, PAIR), "v_add_u32 v%d, s%d, v%d" % (vKA, sDK, vKA)]
        L += block(1, 1, (1, 0, False), vhi=1, kload=(None if last else 0), barrier=True, pre_extra=adv)
        L += block(1, 2, (1, 1, True), qk=not last, klate=(None if last else 0),
                   extra=[["v_add_u32 v%d, s%d, v%d" % (vVA + cc, sDK, vVA + cc)] for cc in range(4)])
        return L
    steady = tile(False)
    del rare[:]
    steady2 = tile(False)
    nr = len(rare)
    lastt = tile(True)
    if "peel" not in OPT: del rare[nr:]
    if TAB is not None:
        body = hoist_waits(auto_lgkm(steady2, entry_lines=steady, age=TAB.get("age")))
        lastb = hoist_waits(auto_lgkm(lastt, entry_lines=steady, age=TAB.get("age")))
    else:
        body = auto_lgkm(steady2, entry_lines=steady)
        lastb = auto_lgkm(lastt, entry_lines=steady)
    if "w0" in OPT:
        import re
        body = [re.sub(r"lgkmcnt\(\d+\)", "lgkmcnt(0)", x) if x.startswith("s_waitcnt lgkmcnt") else x for x in body]
    print("   attention steady tile: model %d cycles (%d/unit), %d instrs" % (model_cycles(body), model_cycles(body) / 6, len(body)))
    loop = a.label("Ltile")
    _stamp(a, 6, "s_memtime")
    a("s_mov_b32 s%d, 0" % sCNT)
    if RAMP:
        import re as _re
        nr2 = len(rare)
        tab_save = globals()["TAB"]; globals()["TAB"] = None
        assert "brend" not in OPT
        ramp_raw = tile(False)
        globals()["TAB"] = tab_save
        rb = auto_lgkm(ramp_raw, entry_lines=ramp_raw)
        cnt = [0]
        def _mod(x):
            if not x.startswith("s_waitcnt lgkmcnt"): return x
            cnt[0] += 1
            return "s_waitcnt lgkmcnt(0)" if cnt[0] % RAMP_EVERY == 0 else x
        rb = [_mod(x) for x in rb]
        lr = a.label("Lramp")
        if ALIGN_R is not None: a(".p2align 6")
        a("%s:" % lr)
        for x in rb: a(x)
        a("s_add_u32 s%d, s%d, 1" % (sCNT, sCNT)); a("s_cmp_lt_u32 s%d, %d" % (sCNT, RAMP)); a("s_cbranch_scc1 %s" % lr)
        a("s_waitcnt lgkmcnt(0)")
    if ALIGN_T is not None:
        a(".p2align 6")
        for _ in range(ALIGN_T): a("s_nop 0")
    a("%s:" % loop)
    for x in body: a(x)
    a("s_add_u32 s%d, s%d, 1" % (sCNT, sCNT)); a("s_cmp_lt_u32 s%d, %d" % (sCNT, 15 if "peel" in OPT else 16)); a("s_cbranch_scc1 %s" % loop)
    _stamp(a, 7, "s_memtime")
    if "peel" in OPT:
        for x in lastb: a(x)
    else: a("s_waitcnt lgkmcnt(0)")
    for x in rare_code(1, 2, True): a(x)
    a("v_add_f32 v%d, v%d, v%d" % (L_(2), L_(2), vS))
    def OA(s, j): return 96 + (s * 3 + j) * 4
    def OB(s, j): return 144 + (s * 3 + j) * 4
    vA0, vA1 = 240, 241
    vAO = 224
    a("s_barrier")
    side = []
    T3 = [232, 233, 234]
    for j in range(3): side.append("v_mov_b32 v%d, v%d" % (T3[j], L_(j)))
    for j in range(3): side.append("v_permlane32_swap_b32 v%d, v%d" % (L_(j), T3[j]))
    for j in range(3): side.append("v_add_f32 v%d, v%d, v%d" % (L_(j), L_(j), T3[j]))
    for j in range(3): side.append("v_mov_b32 v%d, v%d" % (T3[j], L_(j)))
    for j in range(3): side.append("v_permlane16_swap_b32 v%d, v%d" % (L_(j), T3[j]))
    for j in range(3): side.append("v_add_f32 v%d, v%d, v%d" % (L_(j), L_(j), T3[j]))
    for j in range(3): side.append("v_rcp_f32 v%d, v%d" % (L_(j), L_(j)))
    g, rp, c, t, l16 = 144, 145, 146, 147, 148
    side += ["v_lshlrev_b32 v%d, 4, v%d" % (l16, vLANE),
             "s_mul_i32 s%d, s%d, 12288" % (sT0, sWAVE), "s_add_u32 s%d, s%d, %d" % (sT0, sT0, EXCH), "v_add_u32 v%d, s%d, v%d" % (vA0, sT0, l16),
             "s_xor_b32 s%d, s%d, 2" % (sT2, sWAVE), "s_mul_i32 s%d, s%d, 12288" % (sT0, sT2), "s_add_u32 s%d, s%d, %d" % (sT0, sT0, EXCH), "v_add_u32 v%d, s%d, v%d" % (vA1, sT0, l16),
             "v_lshrrev_b32 v%d, 4, v%d" % (g, vLANE), "v_bfe_u32 v%d, v%d, 2, 2" % (rp, vLANE), "v_and_b32 v%d, 3, v%d" % (c, vLANE),
             "v_lshlrev_b32 v%d, 2, v%d" % (t, g), "v_add_u32 v%d, v%d, v%d" % (t, t, rp),
             "v_lshrrev_b32 v%d, 1, v%d" % (g, t), "v_and_b32 v%d, 3, v%d" % (g, g), "v_lshlrev_b32 v%d, 5, v%d" % (g, g),
             "v_lshlrev_b32 v%d, 7, v%d" % (t, t), "v_add_u32 v%d, v%d, v%d" % (t, t, g), "v_lshlrev_b32 v%d, 3, v%d" % (c, c), "v_add_u32 v%d, v%d, v%d" % (t, t, c),
             "s_lshl_b32 s%d, s%d, 6" % (sT0, sQI), "v_xor_b32 v%d, s%d, v%d" % (t, sT0, t),
             "s_lshl_b32 s%d, s%d, 14" % (sT0, sQI), "s_xor_b32 s%d, s%d, 16384" % (sT1, sT0),
             "v_add_u32 v%d, s%d, v%d" % (vAO + 0, sT0, t), "v_xor_b32 v%d, 32, v%d" % (vAO + 1, vAO + 0),
             "v_add_u32 v%d, s%d, v%d" % (vAO + 2, sT1, t), "v_xor_b32 v%d, 32, v%d" % (vAO + 3, vAO + 2)]
    pvl = pv_mfmas(2, 1)
    per = (len(side) + 7) // 8
    a("s_nop 0")
    for i, m in enumerate(pvl):
        a(m)
        for x in side[i * per:(i + 1) * per]: a(x)
    stamp(a, 2, 12)
    def scale_op(j):
        if j == 0: return vr(244, 2), " op_sel_hi:[1,0]"
        if j == 1: return vr(244, 2), " op_sel:[0,1] op_sel_hi:[1,1]"
        return vr(246, 2), " op_sel_hi:[1,0]"
    for j in range(3):
        if j == 2: a("s_nop 1")
        sc, mod = scale_op(j)
        for s in range(4):
            X, Y, D = O_(j, 2 * s), O_(j, 2 * s + 1), OA(s, j)
            for r in range(0, 4, 2):
                a("v_pk_mul_f32 %s, %s, %s%s" % (vr(X + r, 2), vr(X + r, 2), sc, mod)); a("v_pk_mul_f32 %s, %s, %s%s" % (vr(Y + r, 2), vr(Y + r, 2), sc, mod))
            a("v_cvt_pk_bf16_f32 v%d, v%d, v%d" % (D + 0, X + 0, X + 1)); a("v_cvt_pk_bf16_f32 v%d, v%d, v%d" % (D + 1, X + 2, X + 3))
            a("v_cvt_pk_bf16_f32 v%d, v%d, v%d" % (D + 2, Y + 0, Y + 1)); a("v_cvt_pk_bf16_f32 v%d, v%d, v%d" % (D + 3, Y + 2, Y + 3))
            a("ds_write_b128 v%d, %s offset:%d" % (vA0, vr(D, 4), (s * 3 + j) * 1024))
    a("s_waitcnt lgkmcnt(0)")
    a("s_barrier")
    for i in range(12): a("ds_read_b128 %s, v%d offset:%d" % (vr(144 + 4 * i, 4), vA1, i * 1024))
    stamp(a, 3, 13)
    assert PAIR % 256 == 0
    def AF(i): return 192 + 4 * (i % 8)
    def ACC(buf, z, j): return buf * 24 + (z * 3 + j) * 4
    def PK(buf, j): return 48 + buf * 12 + 4 * j
    def a_reads(G):
        c_, kk = divmod(G, 8)
        hs, s = (0, kk) if kk < 4 else (1, kk - 4)
        r = []
        for z in range(2):
            fr = AF(2 * G + z)
            r.append("ds_read_b64_tr_b16 %s, v%d offset:%d" % (vr(fr, 2), vAO + 2 * hs + z, s * 4096))
            r.append("ds_read_b64_tr_b16 %s, v%d offset:%d" % (vr(fr + 2, 2), vAO + 2 * hs + z, s * 4096 + 2048))
        return r
    LOOK = 3
    def slot_delta(c_from): return (-3 * PAIR if (16 + c_from + 1) % 4 == 0 else PAIR) & 0xffffffff
    for G in range(LOOK):
        for x in a_reads(G): a(x)
    vPW, vPWR = 229, 231
    a("v_lshlrev_b32 v%d, 4, v%d" % (vT, vLANE))
    a("s_mul_i32 s%d, s%d, 3072" % (sT0, sWAVE)); a("s_add_u32 s%d, s%d, %d" % (sT0, sT0, PB0)); a("v_add_u32 v%d, s%d, v%d" % (vPW, sT0, vT))
    a("s_mul_i32 s%d, s%d, %d" % (sT0, sWAVE, PAIR)); a("s_add_u32 s%d, s%d, 32768" % (sT0, sT0)); a("v_add_u32 v%d, s%d, v%d" % (vPWR, sT0, vT))
    a("v_add_u32 v%d, %d, v%d" % (vPW + 1, 156672, vT))
    sD, sDP, sSL = sDK, sNEG + 0, sSLOT
    sD, sDP = 56, 69
    a("s_mov_b32 s%d, 0" % sSLOT); a("s_mov_b32 s%d, 0" % sDP); a("s_mov_b32 s%d, 0x%x" % (sNEG, -3 * PAIR & 0xffffffff))
    def epilogue(buf):
        epi = []
        for j in range(3):
            d = PK(buf, j)
            for z in range(2):
                A_ = ACC(buf, z, j)
                epi.append("v_cvt_pk_bf16_f32 v%d, v%d, v%d" % (d + 2 * z, A_, A_ + 1)); epi.append("v_cvt_pk_bf16_f32 v%d, v%d, v%d" % (d + 2 * z + 1, A_ + 2, A_ + 3))
            epi.append("ds_write_b128 v%d, %s offset:%d" % (vPW + buf, vr(d, 4), j * 1024))
        return epi
    def o_step(buf, last, strict=False):
        epi = epilogue(buf ^ 1)
        cvts = [x for x in epi if x.startswith("v_cvt")]; wrs = [x for x in epi if x.startswith("ds_write")]
        extra = {kk: {g: [] for g in range(6)} for kk in range(8)}
        if "ostep_old" in OPT:
            seq = epi; pos = [(1, 1), (1, 1), (1, 2), (1, 2), (1, 3), (1, 4), (1, 4), (1, 5), (2, 1), (2, 1), (2, 2), (2, 3), (2, 3), (2, 4), (2, 5)]
            for x, (kk, g) in zip(seq, pos): extra[kk][g].append(x)
        else:
            cpos = [(1, 0), (1, 1), (1, 2), (1, 3), (1, 4), (2, 0), (2, 1), (2, 2), (2, 3), (3, 0), (3, 1), (3, 2)]
            for x, (kk, g) in zip(cvts, cpos): extra[kk][g].append(x)
            for x, (kk, g) in zip(wrs, [(1, 5), (2, 5), (3, 4)]): extra[kk][g].append(x)
        for kk in range(8):
            G = kk
            hs, s = (0, kk) if kk < 4 else (1, kk - 4)
            rd = []; barrier = (kk == 5)
            if kk == 4 and not last:
                extra[4][4] += ["s_add_u32 s%d, s%d, 1" % (sSLOT, sSLOT), "s_and_b32 s%d, s%d, 3" % (sSLOT, sSLOT)]
                extra[4][5] += ["s_cmp_eq_u32 s%d, 0" % sSLOT, "s_cselect_b32 s%d, s%d, %d" % (sD, sNEG, PAIR)]
            pre = []
            if kk == 5 and not last:
                pre += ["v_add_u32 v%d, s%d, v%d" % (vAO + 0, sD, vAO + 0), "v_add_u32 v%d, s%d, v%d" % (vAO + 1, sD, vAO + 1)]
                extra[6][4].append("s_mov_b32 s%d, s%d" % (sDP, sD))
            if kk == 0:
                extra[0][4].append("v_add_u32 v%d, s%d, v%d" % (vAO + 2, sDP, vAO + 2)); extra[0][5].append("v_add_u32 v%d, s%d, v%d" % (vAO + 3, sDP, vAO + 3))
            if kk == 4 and buf == 0: extra[4][3].append("v_mov_b32 v%d, v%d" % (vPW + 1, vPWR))
            if not (last and kk + LOOK >= 8): rd = a_reads(G + LOOK)
            younger = 4 * (LOOK - 1) if not last else 4 * min(LOOK - 1, 7 - kk)
            if barrier: younger = min(younger, 4)
            if strict: younger = 0
            a("s_waitcnt lgkmcnt(%d)" % younger)
            if barrier: a("s_barrier")
            for x in pre: a(x)
            mf = []
            for z in range(2):
                for j in range(3):
                    bsrc = OA(s, j) if hs == 0 else OB(s, j)
                    cc = "0" if kk == 0 else vr(ACC(buf, z, j), 4)
                    mf.append("%s %s, %s, %s, %s" % (MF, vr(ACC(buf, z, j), 4), vr(AF(2 * G + z), 4), vr(bsrc, 4), cc))
            fill = spread(rd, [0, 1, 2, 3]) if rd else {}
            fill = merge(fill, extra[kk])
            for x in interleave(mf, fill): a(x)
    lo = a.label("Lo")
    a("s_mov_b32 s%d, 0" % sCNT)
    if "oramp" in OPT:
        o_step(0, False, True); o_step(1, False, True)
        a("s_mov_b32 s%d, 1" % sCNT)
    if ALIGN_O is not None:
        a(".p2align 6")
        for _ in range(ALIGN_O): a("s_nop 0")
    a("%s:" % lo)
    o_step(0, False); o_step(1, False)
    a("s_add_u32 s%d, s%d, 1" % (sCNT, sCNT)); a("s_cmp_lt_u32 s%d, 4" % sCNT); a("s_cbranch_scc1 %s" % lo)
    o_step(0, True)
    a("s_nop 7")
    for x in epilogue(0): a(x)
    a("s_waitcnt lgkmcnt(0)")
    a("s_barrier")
    stamp(a, 4, 14)
    if "stB0" not in OPT: stamp(a, 5)
    stamp_flush(a)
    a("v_mov_b32 v1, v%d" % vLANE)
    a("s_mov_b32 s%d, s%d" % (sCNT, sWAVE))
    a("s_branch L_reduce")
    for r in rare: a(r)

def mk_srd(a, b, lo, hi, off, size):
    a("s_add_u32 s%d, s%d, s%d" % (b, lo, off)); a("s_addc_u32 s%d, s%d, 0" % (b + 1, hi)); a("s_mov_b32 s%d, %d" % (b + 2, size)); a("s_mov_b32 s%d, 0x20000" % (b + 3))

def late_srds(a, role):
    a("s_lshl_b32 s%d, s%d, 4" % (sT0, sB)); a("s_add_u32 s%d, s%d, s%d" % (sT0, sT0, sH))
    if role == "kv":
        if PFW_AT is not None:
            a("s_mov_b32 s72, s12"); a("s_mov_b32 s73, s13"); a("s_mov_b32 s74, 4718592"); a("s_mov_b32 s75, 0x20000")
        a("s_lshl_b32 s%d, s%d, 18" % (sT1, sT0)); mk_srd(a, sK, 6, 7, sT1, 262144); mk_srd(a, sV, 8, 9, sT1, 262144)
        a("s_mul_i32 s%d, s%d, %d" % (sT1, sT0, PART)); a("s_add_u32 s%d, s%d, %d" % (sT1, sT1, WS_PART)); mk_srd(a, sP, 18, 19, sT1, PART)
    if role == "w":
        if "kv4" in OPT: a("s_lshl_b32 s%d, s%d, 18" % (sT1, sT0)); mk_srd(a, sK, 6, 7, sT1, 262144); mk_srd(a, sV, 8, 9, sT1, 262144)
        a("s_mul_i32 s%d, s%d, 294912" % (sT1, sH)); mk_srd(a, sWO, 12, 13, sT1, 294912)
    a("s_mul_i32 s%d, s%d, 110592" % (sT1, sB)); mk_srd(a, sOUT, 14, 15, sT1, 110592)
    a("s_mul_i32 s%d, s%d, %d" % (sT1, sB, 16 * PART)); a("s_add_u32 s%d, s%d, %d" % (sT1, sT1, WS_PART)); mk_srd(a, sPB, 18, 19, sT1, 16 * PART)
    a("s_mul_i32 s%d, s%d, %d" % (sT1, sB, 9 * 128)); a("s_add_u32 s%d, s%d, %d" % (sT1, sT1, WS_FLAG)); mk_srd(a, sFL, 18, 19, sT1, 9 * 128)
    if STAMP:
        a("s_lshl_b32 s%d, s2, 9" % sT1); a("s_add_u32 s%d, s18, s%d" % (sSTAMP, sT1)); a("s_addc_u32 s%d, s19, 0" % (sSTAMP + 1))

def early_srds(a):
    a("s_mul_i32 s%d, s%d, 110592" % (sT1, sB)); mk_srd(a, sX, 4, 5, sT1, 110592)
    a("s_lshl_b32 s%d, s%d, 9" % (sT1, sH)); mk_srd(a, sWQ, 10, 11, sT1, 0); a("s_sub_u32 s%d, 4718592, s%d" % (sWQ + 2, sT1))

def gen_k1():
    a = Asm(); a.stamp_wave = 0; a.stamp_tmp = 252
    if STAMP: a("s_memrealtime s[84:85]")
    a("s_cmp_ge_u32 s2, 256"); a("s_cbranch_scc1 L_k1_end")
    a("s_load_dwordx8 s[4:11], s[0:1], 0")
    a("s_load_dwordx4 s[12:15], s[0:1], 32")
    a("s_load_dwordx4 s[16:19], s[0:1], 48")
    a("v_lshrrev_b32 v1, 6, v0")
    a("s_and_b32 s%d, s2, 7" % sXCD); a("s_lshr_b32 s%d, s2, 3" % sIDX)
    a("v_readfirstlane_b32 s%d, v1" % sWAVE)
    a("s_and_b32 s%d, s%d, 1" % (sB, sXCD)); a("s_lshl_b32 s%d, s%d, 3" % (sB, sB)); a("s_and_b32 s%d, s%d, 7" % (sT2, sIDX)); a("s_add_u32 s%d, s%d, s%d" % (sB, sB, sT2))
    a("s_lshr_b32 s%d, s%d, 1" % (sH, sXCD)); a("s_lshl_b32 s%d, s%d, 2" % (sH, sH)); a("s_lshr_b32 s%d, s%d, 3" % (sT2, sIDX)); a("s_add_u32 s%d, s%d, s%d" % (sH, sH, sT2))
    a("v_and_b32 v1, 63, v0")
    a("s_sub_u32 s%d, s%d, 4" % (sLW, sWAVE))
    a("s_cmp_lt_u32 s%d, 2" % sLW); a("s_cbranch_scc0 L_notw")
    a.stamp_wave = 4; a.stamp_tmp = 40
    if STAMP: a("v_mov_b32 v40, 0")
    gen_wloader(a)
    a("L_notw:")
    a("s_cmp_ge_u32 s%d, 4" % sWAVE); a("s_cbranch_scc1 L_kvloader")
    a.stamp_wave = 0
    a("s_waitcnt lgkmcnt(0)")
    late_srds(a, "c")
    gen_compute(a)
    a("L_kvloader:")
    a.stamp_wave = 4
    if STAMP: a("v_mov_b32 v40, 0")
    a("s_waitcnt lgkmcnt(0)")
    late_srds(a, "kv")
    gen_kvloader(a)
    gen_reducer(a)
    a("L_k1_end:")
    a("s_endpgm")
    return a.text()

def build(fn, stamp=False, opt=()):
    global STAMP, OPT
    STAMP = stamp; OPT = set(opt)
    k1 = gen_k1()
    errs = hazard.check(k1, "k1")
    for e in errs[:10]: print(e)
    if errs: print("k1: %d hazard warnings" % len(errs))
    txt = HEADER + "; @launch grid=(256,1,1) block=(512,1,1) lds=%d\n" % LDS_BYTES
    txt += '.amdgcn_target "amdgcn-amd-amdhsa--gfx950"\n.text\n' + kernel_begin(KNAME) + k1 + '\n.section .rodata,"a"\n.p2align 6\n' + kernel_desc(KNAME, 256, 102, 256)
    open(fn, "w").write(txt)
    print(fn, len(txt), "bytes,", txt.count("\n"), "lines")

if __name__ == "__main__":
    def pieces(start, per):
        d = {}; st = start
        for kind in "KV":
            for lo in range(0, 8, per):
                d.setdefault(st, []).append((kind, 0, lo, lo + per)); st += 1
        return d
    def mk(start, per, i1at):
        d = pieces(start, per)
        d.setdefault(i1at, []).extend([("K", 1), ("V", 1)])
        d.setdefault(19, []).extend([("K", 2), ("V", 2)])
        return d
    PF0 = 0
    O = ["rotq", "nopfq", "notlb"]
    KSCHED = mk(12, 4, 18)
    TAB = None
    D = O + ["dot2", "split0"]
    C = D + ["cpf0", "zmov"]
    RAMP = 2; ALIGN_T = 0; ALIGN_R = 0
    build("v8.s", False, C); build("v8_st.s", True, C)
    RAMP = 3; build("x_r3_st.s", True, C); build("x_r3.s", False, C)
    RAMP = 2; ALIGN_T = None; build("x_na_st.s", True, C)
    ALIGN_T = 0
    CMP_SLACK = 4; build("x_s4_st.s", True, C); build("x_s4.s", False, C)
    CMP_SLACK = 6
```
